```python
import torch

def _softmax(x, axis=-1):
    return torch.softmax(x, dim=axis)

def _gelu(x):
    return torch.nn.functional.gelu(x, approximate='tanh')

def _silu(x):
    return torch.nn.functional.silu(x)

def _sigmoid(x):
    return torch.sigmoid(x)

def _layernorm(x, axis=-1, eps=1e-05):
    m = x.mean(dim=axis, keepdim=True)
    v = x.var(dim=axis, keepdim=True, unbiased=False)
    return (x - m) / torch.sqrt(v + eps)

def _scatter_add(tgt, idx, src, axis=0):
    return tgt.clone().index_add_(axis, idx, src)

def _segment_sum(src, seg, n):
    out = torch.zeros((n,) + src.shape[1:], dtype=src.dtype)
    return out.index_add_(0, seg, src)

def _pad(x, pw):
    flat = tuple((v for pair in reversed(pw) for v in pair))
    return torch.nn.functional.pad(x, flat)
kernel_name = 'adaLN_cond__gqa_block_cached__mixer_gmlp__prompt'

def setup_inputs():

    _w = lambda a: (lambda t: t.to(torch.bfloat16) if t.is_floating_point() else t)(torch.as_tensor(a))

    def _A_setup():
        B, Sq, D = (1, 2048, 448)
        Hq, Hkv, Sk, Dh = (16, 8, 2048, 256)
        assert Hq % Hkv == 0, (Hq, Hkv)
        return {'x': _w((lambda *s: torch.randn(*s, dtype=torch.bfloat16) * 0.05)(B, Sq, D)), 'k_cache': _w((lambda *s: torch.randn(*s, dtype=torch.bfloat16) * 3.2)(B, Hkv, Sk, Dh)), 'v_cache': _w((lambda *s: torch.randn(*s, dtype=torch.bfloat16) * 0.4)(B, Hkv, Sk, Dh)), 'wq': _w((lambda *s: torch.randn(*s, dtype=torch.bfloat16) * 3.2)(D, Hq * Dh) * D ** (-0.5)), 'wo': _w((lambda *s: torch.randn(*s, dtype=torch.bfloat16) * 0.4)(Hq * Dh, D) * (Hq * Dh) ** (-0.5))}
    _A_in = _A_setup()

    def _B_setup():
        B, S, D, F = (1, 2048, 448, 1792)
        Fh = F // 2
        return {'x': _w((lambda *s: torch.randn(*s, dtype=torch.bfloat16) * 0.05)(B, S, D)), 'w_in': _w((lambda *s: torch.randn(*s, dtype=torch.bfloat16) * 0.8)(D, 2 * Fh)), 'w_sp': _w(0.01 * (lambda *s: torch.randn(*s, dtype=torch.bfloat16) * 0.8)(S, S)), 'b_sp': _w(1.0 + 0.01 * (lambda *s: torch.randn(*s, dtype=torch.bfloat16) * 0.05)(S)), 'w_out': _w((lambda *s: torch.randn(*s, dtype=torch.bfloat16) * 0.05)(Fh, D))}
    _B_in = _B_setup()
    return {'A_x': _A_in['x'], 'A_k_cache': _A_in['k_cache'], 'A_v_cache': _A_in['v_cache'], 'A_wq': _A_in['wq'], 'A_wo': _A_in['wo'], 'B_x': _B_in['x'], 'B_w_in': _B_in['w_in'], 'B_w_sp': _B_in['w_sp'], 'B_b_sp': _B_in['b_sp'], 'B_w_out': _B_in['w_out'], 'c': _w((lambda *s: torch.randn(*s, dtype=torch.bfloat16) * 0.1)(1, 448) * 8.0), 'w_mod': _w((lambda *s: torch.randn(*s, dtype=torch.bfloat16) * 0.1)(448, 6 * 448) * 448 ** (-0.5) * 8.0)}

def reference(A_x, A_k_cache, A_v_cache, A_wq, A_wo, B_x, B_w_in, B_w_sp, B_b_sp, B_w_out, c, w_mod):

    def _A_ref(x, k_cache, v_cache, wq, wo):
        B, Sq, D = x.shape
        Hq, Dh = (16, 256)
        Hkv = k_cache.shape[1]
        rep = Hq // Hkv
        q = (lambda x, *d: x.permute(*d))((x @ wq).reshape(B, Sq, Hq, Dh), 0, 2, 1, 3)
        k = (lambda x, n, axis: torch.repeat_interleave(x, n, dim=axis))(k_cache, rep, axis=1)
        v = (lambda x, n, axis: torch.repeat_interleave(x, n, dim=axis))(v_cache, rep, axis=1)
        scores = torch.einsum('bhqd,bhkd->bhqk', q, k) * Dh ** (-0.5)
        p = _softmax(scores, axis=-1)
        o = torch.einsum('bhqk,bhkd->bhqd', p, v)
        return (lambda x, *d: x.permute(*d))(o, 0, 2, 1, 3).reshape(B, Sq, Hq * Dh) @ wo

    def _B_ref(x, w_in, w_sp, b_sp, w_out):
        B, S, D = x.shape
        F = w_in.shape[-1]
        Fh = F // 2
        z = _gelu(torch.einsum('bsd,df->bsf', x, w_in))
        z1 = z[..., :Fh].clone()
        z2 = _layernorm(z[..., Fh:], axis=-1)
        g = torch.einsum('ts,bsf->btf', w_sp, z2) + b_sp[None, :, None]
        return torch.einsum('bsf,fd->bsd', z1 * g, w_out)
    x = A_x
    mod = (_silu(c) @ w_mod).reshape(c.shape[0], 6, 1, -1)
    sa, ca, ga, sb, cb, gb = (mod[:, 0].clone(), mod[:, 1].clone(), mod[:, 2].clone(), mod[:, 3].clone(), mod[:, 4].clone(), mod[:, 5].clone())
    h = _layernorm(x, axis=-1) * (1 + ca) + sa
    x = x + ga * _A_ref(h, A_k_cache, A_v_cache, A_wq, A_wo)
    h = _layernorm(x, axis=-1) * (1 + cb) + sb
    x = x + gb * _B_ref(h, B_w_in, B_w_sp, B_b_sp, B_w_out)
    return x
```

```python
import re

REG_RE = re.compile(r"^(-|abs\(|\|)?([vas])(?:(\d+)|\[(\d+):(\d+)\])\)?\|?$")
TRANS = ("v_exp_f32", "v_log_f32", "v_rcp_f32", "v_rsq_f32", "v_sqrt_f32", "v_sin_f32", "v_cos_f32",
         "v_rcp_iflag_f32")
RMW = ("v_fmac_f32", "v_dot2c_f32_bf16", "v_pk_fmac_f16", "v_mac_f32")


def regs_of(tok):
    tok = tok.strip()
    if tok in ("vcc",):
        return ["vcc"]
    if tok in ("vcc_lo", "vcc_hi"):
        return ["vcc"]
    if tok in ("exec", "exec_lo", "exec_hi"):
        return ["exec"]
    if tok == "m0":
        return ["m0"]
    t = tok
    if t.startswith("-"):
        t = t[1:]
    if t.startswith("abs(") and t.endswith(")"):
        t = t[4:-1]
    if t.startswith("|") and t.endswith("|"):
        t = t[1:-1]
    m = re.match(r"^([vas])(?:(\d+)|\[(\d+):(\d+)\])$", t)
    if not m:
        return []
    f = m.group(1)
    if m.group(2) is not None:
        return [f + m.group(2)]
    return [f + str(i) for i in range(int(m.group(3)), int(m.group(4)) + 1)]


def split_ops(s):
    out, depth, cur = [], 0, ""
    for ch in s:
        if ch in "[(":
            depth += 1
        if ch in "])":
            depth -= 1
        if ch == "," and depth == 0:
            out.append(cur.strip())
            cur = ""
        else:
            cur += ch
    if cur.strip():
        out.append(cur.strip())
    return out


class I:
    def __init__(self, text, tag=None, comment=None):
        self.text = text.strip()
        self.tag = tag
        self.comment = comment
        self.pre_lgkm = None
        self.pre_vm = None
        self.pre_nop = 0
        self.parse()

    def parse(self):
        t = self.text
        self.reads, self.writes = [], []
        self.srcC = []
        self.srcAB = []
        self.passes = 0
        self.dpp = False
        self.wide_store = []
        if t.endswith(":"):
            self.kind = "label"
            self.mn = ""
            return
        if t.startswith("WAITTAG"):
            self.kind = "waitfor"
            self.mn = self.base = "WAITTAG"
            self.wtags = self.tag
            self.tag = None
            return
        if t.startswith("WAITFOR"):
            self.kind = "waitfor"
            self.mn = self.base = "WAITFOR"
            self.reads = [r for o in split_ops(t[7:]) for r in regs_of(o)]
            return
        parts = t.split(None, 1)
        mn = parts[0]
        self.mn = mn
        rest = parts[1] if len(parts) > 1 else ""
        ops = split_ops(rest)
        mods = []
        if ops:
            last = ops[-1].split()
            ops[-1] = last[0]
            mods = last[1:]
        self.ops, self.mods = ops, mods
        R = lambda xs: [r for o in xs for r in regs_of(o)]
        base = mn.replace("_e32", "").replace("_e64", "")
        self.base = base
        if mn.startswith("v_mfma"):
            self.kind = "mfma"
            self.writes = R(ops[:1])
            self.srcAB = R(ops[1:3])
            self.srcC = R(ops[3:4])
            self.reads = self.srcAB + self.srcC
            self.passes = 8 if "32x32" in mn else 4
        elif mn.startswith("ds_read") or mn.startswith("ds_bpermute") or mn.startswith("ds_swizzle") \
                or mn.startswith("ds_permute"):
            self.kind = "ds_read"
            self.writes = R(ops[:1])
            self.reads = R(ops[1:])
        elif mn.startswith("ds_"):
            self.kind = "ds_write"
            self.reads = R(ops)
        elif mn.startswith("buffer_load") or mn.startswith("global_load"):
            if "lds" in mods or "_lds_" in mn:
                self.kind = "dma"
                self.reads = R(ops) + ["m0"]
            else:
                self.kind = "vload"
                self.writes = R(ops[:1])
                self.reads = R(ops[1:])
        elif mn.startswith("buffer_store") or mn.startswith("global_store") or mn.startswith("buffer_atomic") \
                or mn.startswith("global_atomic"):
            self.kind = "vstore"
            self.reads = R(ops)
            if "x4" in mn or "x3" in mn:
                self.wide_store = R(ops[:1]) if mn.startswith("buffer") else R(ops[1:2])
            if "atomic" in mn and "sc0" in mods:
                self.kind = "vload"
                self.writes = R(ops[:1])
        elif mn.startswith("buffer_wbl2") or mn.startswith("buffer_inv"):
            self.kind = "vstore"
        elif mn.startswith("s_load") or mn.startswith("s_memtime") or mn.startswith("s_memrealtime") \
                or mn.startswith("s_buffer_load"):
            self.kind = "smem"
            self.writes = R(ops[:1])
            self.reads = R(ops[1:])
        elif mn == "s_waitcnt":
            self.kind = "wait"
            m = re.search(r"vmcnt\((\d+)\)", t)
            self.vm = int(m.group(1)) if m else None
            m = re.search(r"lgkmcnt\((\d+)\)", t)
            self.lgkm = int(m.group(1)) if m else None
        elif mn == "s_barrier":
            self.kind = "barrier"
        elif mn == "s_nop":
            self.kind = "nop"
            self.n = int(ops[0], 0) + 1
        elif mn.startswith("s_cbranch") or mn == "s_branch" or mn == "s_endpgm":
            self.kind = "branch"
            if "vcc" in mn:
                self.reads = ["vcc"]
            if "exec" in mn:
                self.reads = ["exec"]
        elif mn.startswith("s_cmp") or mn.startswith("s_bitcmp") or mn in ("s_setprio", "s_sleep"):
            self.kind = "salu"
            self.reads = R(ops)
        elif mn.startswith("s_"):
            self.kind = "salu"
            self.writes = R(ops[:1])
            self.reads = R(ops[1:])
            if "saveexec" in mn:
                self.writes += ["exec"]
                self.reads += ["exec"]
            if mn in ("s_addk_i32", "s_mulk_i32", "s_bitset1_b32"):
                self.reads += R(ops[:1])
        elif mn.startswith("v_"):
            self.kind = "trans" if base in TRANS else "valu"
            if base.startswith("v_permlane") and "swap" in base:
                self.writes = R(ops[:2])
                self.reads = R(ops[:2])
            elif base in ("v_add_co_u32", "v_sub_co_u32", "v_addc_co_u32", "v_subb_co_u32", "v_mad_u64_u32",
                          "v_div_scale_f32"):
                self.writes = R(ops[:2])
                self.reads = R(ops[2:])
            else:
                self.writes = R(ops[:1])
                self.reads = R(ops[1:])
                if base in RMW or "_dpp" in mn or base == "v_writelane_b32":
                    self.reads += R(ops[:1])
            if "_dpp" in mn:
                self.dpp = True
                self.dpp_src = R(ops[1:2])
        else:
            raise ValueError("unknown instruction " + t)

    def is_valu(self):
        return self.kind in ("valu", "trans")

    def lines(self):
        out = []
        if self.pre_vm is not None or self.pre_lgkm is not None:
            w = "s_waitcnt"
            if self.pre_vm is not None:
                w += " vmcnt(%d)" % self.pre_vm
            if self.pre_lgkm is not None:
                w += " lgkmcnt(%d)" % self.pre_lgkm
            out.append("    " + w)
        n = self.pre_nop
        while n > 0:
            k = min(n, 16)
            out.append("    s_nop %d" % (k - 1))
            n -= k
        if self.kind == "label":
            out.append(self.text)
        elif self.kind == "waitfor":
            pass
        else:
            out.append("    " + self.text + (("    ; " + self.comment) if self.comment else ""))
        return out


class Loop:
    def __init__(self, body, count):
        self.body = body
        self.count = count


class Prog:
    def __init__(self, name):
        self.name = name
        self.items = []
        self.stack = [self.items]
        self.side = []

    def __call__(self, text, tag=None, comment=None):
        if isinstance(text, I):
            self.stack[-1].append(text)
            return text
        last = None
        for ln in text.strip().split("\n"):
            ln = ln.split(";")[0].strip()
            if not ln:
                continue
            last = I(ln, tag, comment)
            self.stack[-1].append(last)
        return last

    def extend(self, lst):
        for x in lst:
            self(x)

    def begin_loop(self, count):
        lp = Loop([], count)
        self.stack[-1].append(lp)
        self.stack.append(lp.body)
        return lp

    def end_loop(self):
        self.stack.pop()

    def begin_side(self):
        self.stack.append(self.side)

    def end_side(self):
        self.stack.pop()

    def trace(self, items=None, it=0):
        for x in (self.items if items is None else items):
            if isinstance(x, Loop):
                for k in range(x.count):
                    yield from self.trace(x.body, k)
            else:
                yield x, it

    def static(self, items=None):
        for x in (self.items if items is None else items):
            if isinstance(x, Loop):
                yield from self.static(x.body)
            else:
                yield x

    @staticmethod
    def tagset(ins, it):
        if ins.tag is None:
            return set()
        key = ins.tag[1]
        if callable(key):
            key = key(it)
        keys = key if isinstance(key, list) else [key]
        pre = ("rd",) if ins.tag[0] == "rd" else ()
        return set(("tag",) + pre + tuple(k) for k in keys)

    def insert_waits(self, seq=None):
        lg, vm = [], []
        smem_out = False
        for ins, it in (self.trace() if seq is None else seq):
            if ins.kind == "label":
                continue
            touched = set(ins.reads) | set(ins.writes)
            if ins.mn == "WAITTAG":
                wt = ins.wtags(it) if callable(ins.wtags) else ins.wtags
                touched = set(("tag",) + tuple(k) for k in wt)
            need = None
            for idx, (o, dst) in enumerate(lg):
                if dst & touched:
                    n = len(lg) - 1 - idx
                    if any(q.kind == "smem" for q, _ in lg):
                        n = 0
                    need = n if need is None else min(need, n)
            if need is not None:
                need = min(need, 15)
                ins.pre_lgkm = need if ins.pre_lgkm is None else min(ins.pre_lgkm, need)
            need = None
            for idx, (o, dst) in enumerate(vm):
                if dst & touched:
                    n = len(vm) - 1 - idx
                    need = n if need is None else min(need, n)
            if need is not None:
                need = min(need, 63)
                ins.pre_vm = need if ins.pre_vm is None else min(ins.pre_vm, need)
            if ins.pre_lgkm is not None:
                lg = lg[len(lg) - ins.pre_lgkm:] if ins.pre_lgkm < len(lg) else lg
                if ins.pre_lgkm == 0:
                    lg = []
            if ins.pre_vm is not None:
                vm = vm[len(vm) - ins.pre_vm:] if ins.pre_vm < len(vm) else vm
                if ins.pre_vm == 0:
                    vm = []
            if ins.kind == "wait":
                if ins.lgkm is not None:
                    if any(q.kind == "smem" for q, _ in lg) and ins.lgkm != 0:
                        pass
                    else:
                        lg = lg[len(lg) - ins.lgkm:] if 0 < ins.lgkm < len(lg) else ([] if ins.lgkm == 0 else lg)
                if ins.vm is not None:
                    vm = vm[len(vm) - ins.vm:] if 0 < ins.vm < len(vm) else ([] if ins.vm == 0 else vm)
            elif ins.kind in ("ds_read", "ds_write", "smem"):
                lg.append((ins, set(ins.writes) | self.tagset(ins, it)))
            elif ins.kind in ("vload", "vstore", "dma"):
                vm.append((ins, set(ins.writes) | self.tagset(ins, it)))

    def insert_nops(self, seq=None, verbose=False):
        changed = True
        rounds = 0
        while changed:
            changed = False
            rounds += 1
            pos = 0
            lastw = {}
            lastC = {}
            lastS = {}
            for ins, it in (self.trace() if seq is None else seq):
                if ins.kind == "label":
                    continue
                if ins.pre_vm is not None or ins.pre_lgkm is not None:
                    pos += 1
                if ins.kind == "waitfor":
                    continue
                pos += ins.pre_nop
                need = 0

                def req(ppos, ws, why):
                    nonlocal need
                    have = pos - ppos - 1
                    if have < ws:
                        if ws - have > need:
                            need = ws - have
                            if verbose:
                                print("hazard:", why, "before", ins.text, "need", ws - have)

                isv = ins.is_valu()
                for r in ins.reads:
                    if r not in lastw:
                        continue
                    p, w = lastw[r]
                    if w.kind == "mfma":
                        if ins.kind == "mfma":
                            if r in ins.srcAB:
                                req(p, 12 if w.passes == 8 else 8, "mfma->AB")
                            if r in ins.srcC:
                                if not (ins.srcC == w.writes and ins.passes == w.passes):
                                    req(p, 10 if w.passes == 8 else 6, "mfma->C overlap")
                        else:
                            req(p, 12 if w.passes == 8 else 8, "mfma->read")
                    elif w.is_valu():
                        if ins.kind == "mfma":
                            req(p, 2, "valu->mfma")
                        if r[0] in "va" and r != "vcc":
                            if w.kind == "trans" and ins.kind == "valu":
                                req(p, 1, "trans->valu")
                            if w.kind == "trans" and ins.kind in ("vstore", "ds_write", "vload", "ds_read", "dma"):
                                req(p, 1, "trans->mem")
                            if isv and ins.base.startswith("v_permlane"):
                                req(p, 2, "valu->permlane")
                            if ins.dpp and r in ins.dpp_src:
                                req(p, 2, "valu->dpp")
                            if isv and ins.base in ("v_readfirstlane_b32", "v_readlane_b32"):
                                req(p, 1, "valu->readlane")
                            if w.base.startswith("v_dot"):
                                if not (ins.base == w.base and r == ins.reads[-1] and r not in ins.reads[:-1]):
                                    req(p, 3, "dot->other")
                            if "sdwa" in w.mn and "dst_sel:DWORD" not in w.text:
                                req(p, 1, "sdwa")
                        else:
                            if isv:
                                req(p, 2, "valu sgpr->valu")
                                if ins.base in ("v_readlane_b32", "v_writelane_b32"):
                                    req(p, 4, "valu sgpr->lane sel")
                            if ins.kind in ("vload", "vstore", "dma"):
                                req(p, 5, "valu sgpr->vmem")
                            if ins.kind == "salu":
                                req(p, 1, "valu sgpr->salu (pad)")
                    elif w.kind == "salu":
                        if r == "m0" and ins.kind == "dma":
                            req(p, 1, "m0->dma")
                for r in ins.writes:
                    if r in lastw:
                        p, w = lastw[r]
                        if w.kind == "mfma" and ins.kind != "mfma":
                            req(p, 12 if w.passes == 8 else 8, "mfma->WAW")
                        if w.kind == "mfma" and ins.kind == "mfma" and not (
                                ins.srcC == w.writes and ins.writes == w.writes and ins.passes == w.passes):
                            req(p, 10 if w.passes == 8 else 6, "mfma->mfma WAW")
                        if w.is_valu() and w.base.startswith("v_dot") and ins.base != w.base:
                            req(p, 3, "dot->WAW")
                    if r in lastC and ins.kind != "mfma":
                        p, ps = lastC[r]
                        req(p, 7 if ps == 8 else 3, "mfma C WAR")
                    if r in lastS:
                        req(lastS[r], 2, "store data WAR")
                if need > 0:
                    ins.pre_nop += need
                    pos += need
                    changed = True
                for r in ins.writes:
                    lastw[r] = (pos, ins)
                for r in ins.srcC:
                    lastC[r] = (pos, ins.passes)
                for r in ins.wide_store:
                    lastS[r] = pos
                pos += ins.n if ins.kind == "nop" else 1
            assert rounds < 20

    def check_lds(self):
        lg, vm = [], []
        nbar = 0
        fills = {}
        reads = {}
        errs = []

        def retire(q, n):
            k = len(q) - n
            for e in q[:max(k, 0)]:
                e["ret"] = nbar
            return q[max(k, 0):]

        for ins, it in self.trace():
            if ins.kind == "label":
                continue
            if ins.pre_lgkm is not None:
                lg = retire(lg, ins.pre_lgkm)
            if ins.pre_vm is not None:
                vm = retire(vm, ins.pre_vm)
            if ins.kind == "wait":
                if ins.lgkm is not None:
                    lg = retire(lg, ins.lgkm)
                if ins.vm is not None:
                    vm = retire(vm, ins.vm)
            if ins.kind == "barrier":
                nbar += 1
            e = {"ret": None, "ins": ins}
            if ins.tag is not None:
                kind, key = ins.tag[0], ins.tag[1]
                private = len(ins.tag) > 2 and ins.tag[2] == "private"
                if callable(key):
                    key = key(it)
                keys = key if isinstance(key, list) else [key]
                for key in keys:
                    slot, gen = key
                    if kind == "rd":
                        fl = fills.get(key)
                        if not fl:
                            errs.append("read of never-filled %s: %s" % (key, ins.text))
                        else:
                            for f in fl:
                                if f["ret"] is None or (not private and f["ret"] >= nbar):
                                    errs.append("read of %s before fill visible: %s" % (key, ins.text))
                                    break
                        for k2 in fills:
                            if k2[0] == slot and k2[1] > gen:
                                errs.append("read of %s after overwrite by %s: %s" % (key, k2, ins.text))
                        reads.setdefault(key, []).append(e)
                    else:
                        for k2, rl in reads.items():
                            if k2[0] == slot and k2[1] != gen:
                                for r in rl:
                                    if r["ret"] is None or (not private and r["ret"] >= nbar):
                                        errs.append("fill %s while reads of %s pending: %s" % (key, k2, ins.text))
                                        break
                        fills.setdefault(key, []).append(e)
            if ins.kind in ("ds_read", "ds_write", "smem"):
                lg.append(e)
            elif ins.kind in ("vload", "vstore", "dma"):
                vm.append(e)
        if errs:
            seen = []
            for x in errs:
                if x not in seen:
                    seen.append(x)
            raise RuntimeError("LDS protocol errors (%d):\n" % len(errs) + "\n".join(seen[:20]))

    def finalize(self, verbose=False):
        self.insert_waits()
        self.insert_nops(verbose=verbose)
        self.check_lds()
        if self.side:
            seq = [(x, 0) for x in self.side]
            self.insert_waits(seq)
            self.insert_nops(seq)

    def text(self):
        out = []
        for ins in self.static():
            out += ins.lines()
        for ins in self.side:
            out += ins.lines()
        return "\n".join(out) + "\n"

    def max_regs(self):
        mx = {"v": -1, "a": -1, "s": -1}
        for ins in list(self.static()) + self.side:
            for r in ins.reads + ins.writes:
                if r[0] in mx and r[1:].isdigit():
                    mx[r[0]] = max(mx[r[0]], int(r[1:]))
        return mx


def kernel_text(prog, wg_y=False):
    mx = prog.max_regs()
    nv = mx["v"] + 1
    na = mx["a"] + 1
    acc = max(4, (nv + 3) // 4 * 4)
    nfv = acc + na if na > 0 else nv
    ns = max(mx["s"] + 1, 16)
    name = prog.name
    code = f""".text
.globl {name}
.p2align 8
.type {name},@function
{name}:
{prog.text()}"""
    kd = f""".section .rodata,"a"
.p2align 6
.amdhsa_kernel {name}
  .amdhsa_next_free_vgpr {nfv}
  .amdhsa_next_free_sgpr {ns}
  .amdhsa_accum_offset {acc}
  .amdhsa_group_segment_fixed_size 0
  .amdhsa_kernarg_size 120
  .amdhsa_user_sgpr_count 2
  .amdhsa_user_sgpr_kernarg_segment_ptr 1
  .amdhsa_system_sgpr_workgroup_id_x 1
.end_amdhsa_kernel
"""
    return code, kd


def v(i, n=1):
    return f"v{i}" if n == 1 else f"v[{i}:{i + n - 1}]"


def a(i, n=1):
    return f"a{i}" if n == 1 else f"a[{i}:{i + n - 1}]"


def s(i, n=1):
    return f"s{i}" if n == 1 else f"s[{i}:{i + n - 1}]"
```

```python
import sys
sys.path.insert(0, "work")
from asmlib import *
HDR = open('adaLN_cond__gqa_block_cached__mixer_gmlp__prompt.s.ref').read().split("; Override launch")[0]
DOC = """; Generated by the author's own Python emitter (hand-scheduled; waits / wait-states inserted by script).
"""
def write(kernels, path):
    codes, kds, launches = [], [], []
    for p, l in kernels:
        c, k = kernel_text(p)
        codes.append(c); kds.append(k); launches.append(l)
    open(path, "w").write(HDR + "".join(launches) + DOC + '.amdgcn_target "amdgcn-amd-amdhsa--gfx950"\n' + "".join(codes) + "".join(kds))
```

```python
import sys
sys.path.insert(0, "work")
from asmlib import *
from layout import *
from k_prep import srd, f2u

SLOT = 16640
V_WDMA = 4
V_WRD = 8
V_LIN = 12
V_XW = 13; V_XR = 14; V_TMP = 15
V_H = 16
V_O = 128
V_S = [96, 112]
V_NEGM = 80
V_P = [64, 72]
V_E = 56
V_KRD = 40
V_VRD = 48
V_KDMA = 32
V_VDMA = 36
V_L = 50
V_TS = 52
V_T0 = 54; V_T1 = 55
V_T2 = 30; V_T3 = 31
A_Q = 0
A_F = 64
NR = 16
SRD_K, SRD_V, SRD_W, SRD_Q, SRD_O = 16, 20, 24, 40, 44
S_W, S_J, S_PB = 28, 29, 30
S_KOFF, S_VOFF, S_M0K, S_M0V, S_CNT, S_THR = 32, 33, 34, 35, 36, 37
S_WOFF, S_WBASE, S_HD, S_QT = 38, 39, 48, 49
LDS_BYTES = 9 * SLOT


def make_plan(gJ=24, gB=52, d0=3, e_first=2, e_last=58):
    pl = ["m"] * 64
    for k in range(8):
        pl[(d0 + 8 * k) % 64] = "d"
    assert pl[gJ] == "m" and pl[gB] == "m"
    pl[gJ] = "j"; pl[gB] = "B"
    es = []
    for r in range(16):
        g = gJ + e_first + round(r * (e_last - e_first) / 15)
        while pl[g % 64] != "m":
            g += -1 if r == 15 else 1
        pl[g % 64] = "e"
        es.append(g % 64)
    for i in range(10):
        g = es[(i * 16) // 10] - 1
        while pl[g % 64] != "m":
            g -= 1
        pl[g % 64] = "t"
    return "".join(pl)


def frag(f):
    return A_F + 4 * (f % NR)


def slot_of(kind, t):
    return (t % 4) + (4 if kind == "K" else 0)


class Attn:
    def __init__(self, opts):
        self.o = opts
        self.plan = opts.get("plan", make_plan())
        pl = self.plan
        assert len(pl) == 64
        assert pl.count("e") + pl.count("E") == 16
        assert pl.count("d") == 8 and pl.count("B") == 1 and pl.count("j") == 1
        nds = pl.count("m") + pl.count("E") + 2 * pl.count("t")
        assert nds == 48, nds
        self.gB = pl.index("B"); self.gJ = pl.index("j")
        dsg = []
        for k in range(1, 65):
            g = (self.gB + k) % 64
            if pl[g] in "mE": dsg.append(g)
            if pl[g] == "t": dsg += [g, g]
        ops = [(f, 0) for f in range(16)] + [(f, e) for f in range(16, 32) for e in range(2)]
        self.ds = {}
        leads = []
        for g, (f, e) in zip(dsg, ops):
            nxt = g > self.gB
            assert not (nxt and f >= 16)
            self.ds.setdefault(g, []).append((f, e, nxt))
            leads.append(2 * f + (64 if nxt else 0) - g)
        assert max(leads) < 2 * NR - 2
        self.va = {}
        exps, rest = self.softmax_parts(0)
        done = set()
        ie = ir = 0
        for k in range(1, 64):
            g = (self.gJ + k) % 64
            add = []
            if pl[g] in "eE":
                self.va.setdefault(g, []).append(("e", ie)); add = [ie]; ie += 1
            elif pl[g] == "m":
                if ir < len(rest) and all(d in done for d in rest[ir][1]):
                    self.va.setdefault(g, []).append(("r", ir)); ir += 1
            done.update(add)
        assert ie == 16 and ir == len(rest), (ir, len(rest))
        self.nafter = sum(1 for g in range(64) if pl[g] == "d" and g > self.gB)

    @staticmethod
    def key(kind, t):
        return (slot_of(kind, t), 100 + t)

    def kread(self, tfn, c, f):
        kt, sx = f // 8, f % 8
        return I(f"ds_read_b128 {a(frag(f),4)}, {v(V_KRD + sx % 4)} offset:{(c % 4)*SLOT + kt*8192 + (sx//4)*256}",
                 tag=("rd", lambda it: self.key("K", tfn(it))))

    def vread(self, tfn, c, f, e):
        t = f - 16
        return I(f"ds_read_b64_tr_b16 {a(frag(f)+2*e,2)}, {v(V_VRD + t % 2)} offset:{(c % 4)*SLOT + e*2048 + 64*(t//2)}",
                 tag=("rd", lambda it: self.key("V", tfn(it))))

    def dma(self, kind, tfn, jj):
        tag = ("dma", lambda it: self.key(kind, tfn(it)))
        if kind == "K":
            return I(f"buffer_load_dwordx4 {v(V_KDMA+jj)}, {s(SRD_K,4)}, {s(S_KOFF)} offen offset:{jj*1024} lds", tag=tag)
        return I(f"buffer_load_dwordx4 {v(V_VDMA+jj)}, {s(SRD_V,4)}, {s(S_VOFF)} offen offset:{jj*1024} lds", tag=tag)

    def m0(self, kind, c):
        if kind == "K":
            return I(f"s_add_u32 m0, {s(S_M0K)}, {slot_of('K', c)*SLOT}")
        return I(f"s_add_u32 m0, {s(S_M0V)}, {slot_of('V', c)*SLOT}")

    def adv(self, kind):
        r = S_KOFF if kind == "K" else S_VOFF
        return I(f"s_add_u32 {s(r)}, {s(r)}, 16384")

    def wfill(self, which, st, hf):
        if which == "Q":
            pair = st % 4
            off = st * 32 * 8192 + hf * 512
            srdw = SRD_Q
            gen = st
        else:
            pair = (st + 2) % 4
            off = ((st + 8 * hf) % 16) * 32 * 896 + hf * 448
            srdw = SRD_O
            gen = 200 + st
        slot = 2 * pair + hf
        pre = [I(f"s_add_u32 m0, {s(S_M0V)}, {slot*SLOT}"), I(f"s_add_u32 {s(S_WOFF)}, {s(S_WBASE)}, {off}")]
        d = [I(f"buffer_load_dwordx4 {v(V_WDMA+jj)}, {s(srdw,4)}, {s(S_WOFF)} offen offset:{jj*1024} lds",
               tag=("dma", (slot, gen))) for jj in range(4)]
        return pre, d

    def wkeys(self, which, st):
        pair = st % 4 if which == "Q" else (st + 2) % 4
        gen = st if which == "Q" else 200 + st
        return [(2 * pair, gen), (2 * pair + 1, gen)]

    def wread(self, which, st, t, e, f):
        pair = st % 4 if which == "Q" else (st + 2) % 4
        return I(f"ds_read_b64_tr_b16 {a(frag(f)+2*e,2)}, {v(V_WRD + 2*(pair//2) + t % 2)} "
                 f"offset:{(pair % 2)*2*SLOT + e*2048 + 64*(t//2)}", tag=("rd", self.wkeys(which, st)))

    def kvfill(self, kind, t, jjs=range(4)):
        pre = [self.m0(kind, t)]
        d = [self.dma(kind, (lambda t: lambda it: t)(t), jj) for jj in jjs]
        post = [self.adv(kind)] if 3 in jjs else []
        return pre, d, post

    def softmax_parts(self, par):
        S = V_S[par]; P = V_P[par]
        exps = [I(f"v_exp_f32 {v(V_E + r % 8)}, {v(S + r)}") for r in range(16)]
        rest = []
        rest.append((I(f"v_add_f32 {v(V_L)}, {v(V_L)}, {v(V_TS)}"), [], True))
        rest.append((I(f"v_add_f32 {v(V_L+1)}, {v(V_L+1)}, {v(V_TS+1)}"), [], True))
        for q in range(16):
            kt, qt, i = q // 8, (q // 4) % 2, q % 4
            ts = v(V_TS + qt)
            e = v(V_E + q % 8)
            if kt == 0 and i == 0:
                pass
            elif kt == 0 and i == 1:
                rest.append((I(f"v_add_f32 {ts}, {v(V_E + (q-1) % 8)}, {e}"), [q-1, q], False))
            else:
                rest.append((I(f"v_add_f32 {ts}, {ts}, {e}"), [q], False))
            if q == 15:
                rest.append((I(f"v_add_f32 {v(V_T2)}, {v(V_TS)}, {v(V_TS+1)}"), [q], False))
                rest.append((I(f"v_cmp_lt_f32 vcc, {s(S_THR)}, {v(V_T2)}"), [q], False))
            if q % 2 == 1:
                rest.append((I(f"v_cvt_pk_bf16_f32 {v(P + 4*qt + 2*kt + i // 2)}, {v(V_E + (q-1) % 8)}, {e}"), [q-1, q], False))
        return exps, rest

    def softmax_linear(self, par):
        exps, rest = self.softmax_parts(par)
        out = []
        ir = 2
        for r in range(16):
            out.append(exps[r])
            while ir < len(rest) and max(rest[ir][1]) < r:
                out.append(rest[ir][0]); ir += 1
        out += [x[0] for x in rest[ir:]]
        return out

    def body(self, p, c, A, aval=None, lid=None, extra_scalar=None, extra_valu=None):
        pl = self.plan
        par = c % 2
        gB, gJ = self.gB, self.gJ
        first = aval == -1
        do_pv = not first
        do_qk = aval is None or aval + 1 <= 63
        next_k = aval is None or aval + 2 <= 63
        SC = [[] for _ in range(64)]
        VE = [[] for _ in range(64)]
        cur = self.softmax_parts(par)
        nxt = self.softmax_parts(1 - par)
        late = []
        for g in range(64):
            for (f, e, nx) in self.ds.get(g, []):
                if nx:
                    if next_k:
                        VE[g].append(self.kread(lambda it: A(it)+2, c+2, f))
                elif f < 16:
                    if do_qk:
                        VE[g].append(self.kread(lambda it: A(it)+1, c+1, f))
                else:
                    if do_pv:
                        VE[g].append(self.vread(A, c, f, e))
            for kind, idx in self.va.get(g, []):
                if g < gJ:
                    if do_pv:
                        VE[g].append(cur[0][idx] if kind == "e" else cur[1][idx][0])
                else:
                    if kind == "r" and nxt[1][idx][2]:
                        if do_pv:
                            VE[g].append(nxt[1][idx][0])
                    elif do_qk:
                        x = nxt[0][idx] if kind == "e" else nxt[1][idx][0]
                        if first and g < 32:
                            late.append(x)
                        else:
                            VE[g].append(x)
        for g, x in (extra_valu or []):
            VE[g].append(x)
        if do_pv:
            VE[gJ].append(I(f"s_cbranch_vccnz L_fb{lid}"))
            VE[gJ].append(I(f"L_ret{lid}:"))
        def bartags(it):
            av = A(it)
            ks = []
            if av + 2 <= 63: ks.append(self.key("K", av + 2))
            if av + 1 <= 63: ks.append(self.key("V", av + 1))
            if av == 63: ks += self.wkeys("O", 0)
            return ks
        VE[gB].append(I("WAITTAG", tag=bartags))
        VE[gB].append(I("s_barrier"))
        dg = [g for g in range(64) if pl[g] == "d"]
        after = [g for g in dg if g > gB]
        before = [g for g in dg if g < gB]
        def free_sc(g, step):
            while pl[g % 64] in "dBj" or SC[g % 64]:
                g += step
            assert 0 <= g < 64
            return g
        seq = [("V", 3, jj) for jj in range(4)] + [("K", 5, jj) for jj in range(4)]
        for i, g in enumerate(after + before):
            kind, off, jj = seq[i]
            if g < gB:
                off -= 1
            if aval is not None and aval + off > 63:
                t = aval + off
                m = {("K", 64): (0, 0), ("K", 65): (0, 1), ("K", 66): (1, 0), ("K", 67): (1, 1),
                     ("V", 64): (2, 0), ("V", 65): (2, 1)}.get((kind, t))
                if m is None:
                    continue
                pre, d = self.wfill("O", m[0], m[1])
                VE[g].append(d[jj])
                if jj == 0:
                    for x in pre:
                        SC[free_sc(g - 1, -1)].append(x)
                continue
            VE[g].append(self.dma(kind, (lambda off: lambda it: A(it) + off)(off), jj))
            if jj == 0:
                SC[free_sc(g - 1, -1)].append(self.m0(kind, c + off))
            if jj == 3:
                SC[free_sc(g + 1, 1)].append(self.adv(kind))
        for g, x in (extra_scalar or []):
            SC[free_sc(g, -1)].append(x)
        WG = 2
        for f0 in range(0, 32, WG):
            fs = list(range(f0, f0 + WG))
            if f0 == 0:
                if not next_k: continue
                g = free_sc(63, -1)
            else:
                if (f0 < 16 and not do_qk) or (f0 >= 16 and not do_pv): continue
                g = free_sc(2 * f0 - 1, -1)
            SC[g].append(I("WAITFOR " + ", ".join(a(frag(f), 4) for f in fs)))
        for g in range(64):
            f, qt = g // 2, g % 2
            fr = a(frag(f), 4)
            if f < 16 and do_qk:
                Sx = V_S[1-par]
                kt, sx = f // 8, f % 8
                D = v(Sx + 8*kt + 4*qt, 4)
                C = D if sx else ("0" if first else v(V_NEGM + 4*qt, 4))
                p(f"v_mfma_f32_16x16x32_bf16 {D}, {fr}, {a(A_Q + 8*sx + 4*qt, 4)}, {C}")
            if f >= 16 and do_pv:
                O = v(V_O + 8*(f-16) + 4*qt, 4)
                C = "0" if aval == 0 else O
                p(f"v_mfma_f32_16x16x32_bf16 {O}, {fr}, {v(V_P[par] + 4*qt, 4)}, {C}")
            for x in SC[g] + VE[g]:
                p(x)
            if g == 31 and first:
                S0 = V_S[1-par]
                self.tile_max(p, S0)
                self.apply_delta(p, S0, None, init=True)
                for x in late:
                    p(x)

    def tile_max(self, p, S):
        for qt in range(2):
            T = V_T0 + qt
            rs = [S + 4*qt + i for i in range(4)] + [S + 8 + 4*qt + i for i in range(4)]
            p(f"v_max3_f32 {v(T)}, {v(rs[0])}, {v(rs[1])}, {v(rs[2])}")
            p(f"v_max3_f32 {v(T)}, {v(T)}, {v(rs[3])}, {v(rs[4])}")
            p(f"v_max3_f32 {v(T)}, {v(T)}, {v(rs[5])}, {v(rs[6])}")
            p(f"v_max_f32 {v(T)}, {v(T)}, {v(rs[7])}")
            self.xreduce(p, T, "v_max_f32")

    def xreduce(self, p, T, op):
        p(f"v_mov_b32 {v(V_T3)}, {v(T)}")
        p(f"v_permlane32_swap_b32 {v(T)}, {v(V_T3)}")
        p(f"{op} {v(T)}, {v(T)}, {v(V_T3)}")
        p(f"v_mov_b32 {v(V_T3)}, {v(T)}")
        p(f"v_permlane16_swap_b32 {v(T)}, {v(V_T3)}")
        p(f"{op} {v(T)}, {v(T)}, {v(V_T3)}")

    def apply_delta(self, p, S, Sn, init=False):
        T = lambda r: v(V_T0 + (r // 4) % 2)
        for r in range(8):
            src = "0" if init else v(V_NEGM + r)
            p(f"v_sub_f32 {v(V_NEGM+r)}, {src}, {T(r)}")
        for r in range(16):
            p(f"v_sub_f32 {v(S+r)}, {v(S+r)}, {T(r)}")
        if Sn is not None:
            for r in range(16):
                p(f"v_sub_f32 {v(Sn+r)}, {v(Sn+r)}, {T(r)}")

    def fallback(self, p, par, lid, has_next):
        p.begin_side()
        p(f"L_fb{lid}:")
        p("s_nop 15")
        S = V_S[par]; Sn = V_S[1-par]
        self.tile_max(p, S)
        for qt in range(2):
            p(f"v_max_f32 {v(V_T0+qt)}, 0, {v(V_T0+qt)}")
        self.apply_delta(p, S, Sn if has_next else None)
        for qt in range(2):
            p(f"v_sub_f32 {v(V_T0+qt)}, 0, {v(V_T0+qt)}")
            p(f"v_exp_f32 {v(V_T0+qt)}, {v(V_T0+qt)}")
            p(f"v_mul_f32 {v(V_L+qt)}, {v(V_L+qt)}, {v(V_T0+qt)}")
        for r in range(128):
            p(f"v_mul_f32 {v(V_O+r)}, {v(V_O+r)}, {v(V_T0 + (r // 4) % 2)}")
        for x in self.softmax_linear(par):
            p(x)
        p("s_nop 1")
        p(f"s_branch L_ret{lid}")
        p.end_side()

    def gemm_phase(self, p, which, nst, nm, mfma_fn, fills, bartags, valu, xds, LEAD=10):
        G = 2 * nm
        N = nst * G
        gb = G - LEAD - 1
        kindg = ["m"] * (N + 64)
        SC = [[] for _ in range(N + 64)]
        VE = [[] for _ in range(N + 64)]
        tail = []
        for i in range(nst):
            bt = bartags(i)
            if bt is not None:
                g = i * G + gb
                kindg[g] = "B"
                VE[g] = [I("WAITTAG", tag=bt), I("s_barrier")]
        pend_sc = []
        for i in range(nst):
            groups = fills(i)
            nd = sum(len(x[1]) for x in groups)
            k = 0
            for pre, d, post in groups:
                for jj, x in enumerate(d):
                    g = i * G + gb + 3 + (k * (G - 3)) // 8
                    k += 1
                    if g >= N:
                        if jj == 0: tail += pre
                        tail.append(x)
                        if jj == len(d) - 1: tail += post
                        continue
                    assert kindg[g] == "m", (i, g, kindg[g])
                    kindg[g] = "d"
                    VE[g] = [x]
                    if jj == 0:
                        pend_sc.append((g - 1, -1, pre))
                    if jj == len(d) - 1:
                        pend_sc.append((g + 1, 1, post))
        for g, step, lst in pend_sc:
            if step == 1:
                SC[g] += lst if g < N else []
                if g >= N: tail += lst
            else:
                for k, x in enumerate(lst):
                    gg = g - (len(lst) - 1 - k)
                    if kindg[gg] != "m": gg = g
                    SC[gg].append(x)
        dsq = []
        for i in range(nst):
            for t in range(nm):
                f = i * nm + t
                for e in range(2):
                    dsq.append((i * G + 2 * t + e - LEAD, self.wread(which, i, t, e, f)))
        pre_ds = [x for (g, x) in dsq if g < 0]
        dsq = [(g, x) for (g, x) in dsq if g >= 0]
        for x in pre_ds:
            p(x)
        nds = [0] * (N + 64)
        for i in range(nst):
            xs = xds(i)
            for k, x in enumerate(xs):
                g = i * G + 1 + (k * (gb - 2)) // max(1, len(xs))
                while kindg[g] != "m": g += 1
                kindg[g] = "x"
                VE[g] = [x]
        q = 0
        for g in range(N):
            if kindg[g] != "m":
                continue
            while q < len(dsq) and dsq[q][0] <= g and nds[g] < 2:
                VE[g].append(dsq[q][1]); nds[g] += 1; q += 1
        assert q == len(dsq)
        for i in range(nst):
            ops = valu(i)
            slots = []
            for g in range(i * G, (i + 1) * G):
                if kindg[g] == "m":
                    slots += [g] * (2 - nds[g])
            mg = [g for g in range(i * G, (i + 1) * G) if kindg[g] == "m"]
            k = 0
            while len(slots) < len(ops):
                slots.append(mg[(k * 7) % len(mg)]); k += 1
            slots.sort()
            for k, x in enumerate(ops):
                VE[slots[(k * len(slots)) // len(ops)]].append(x)
        for f0 in range(2, nst * nm, 2):
            g = 2 * f0 - 1
            while kindg[g] in "dB" or SC[g]:
                g -= 1
            SC[g].append(I("WAITFOR " + ", ".join(a(frag(f), 4) for f in (f0, f0 + 1))))
        for g in range(N):
            i, t, qt = g // G, (g % G) // 2, g % 2
            p(mfma_fn(i, t, qt, a(frag(i * nm + t), 4)))
            for x in SC[g] + VE[g]:
                p(x)
        for x in tail:
            p(x)


def stamp(p, opts, k):
    if opts.get("stamp"):
        p(f"s_memtime s[{60+4*k}:{61+4*k}]")
        p(f"s_memrealtime s[{62+4*k}:{63+4*k}]")
        p("s_waitcnt lgkmcnt(0)")


def gen_attn(opts=None):
    opts = opts or {}
    name = opts.get("name", "attn_kernel")
    p = Prog(name)
    at = Attn(opts)
    thr = opts.get("thr", 0x5f800000)
    p(f"""
    s_cmp_ge_u32 s2, 256
    s_cbranch_scc1 L_end{name}
    s_load_dwordx8 s[4:11], s[0:1], 8
    s_load_dwordx2 s[12:13], s[0:1], 112
    v_lshrrev_b32 v1, 6, v0
    v_readfirstlane_b32 {s(S_W)}, v1
    s_and_b32 {s(S_J)}, s2, 7
    s_lshr_b32 {s(S_PB)}, s2, 3
    v_and_b32 v1, 63, v0
    v_lshlrev_b32 {v(V_LIN)}, 4, v1
    s_lshr_b32 {s(S_HD)}, {s(S_W)}, 1
    s_and_b32 s14, {s(S_W)}, 1
    s_lshl_b32 {s(S_QT)}, {s(S_PB)}, 2
    s_lshl_b32 s14, s14, 1
    s_add_u32 {s(S_QT)}, {s(S_QT)}, s14
    s_waitcnt lgkmcnt(0)
    """)
    stamp(p, opts, 0)
    srd(p, SRD_W, 12, 13, WS_USED)
    srd(p, SRD_Q, 8, 9, 448 * 8192)
    p(f"""
    s_mul_i32 s14, {s(S_QT)}, {14*1024}
    s_add_u32 s14, s14, {WS_XN}
    s_add_u32 s15, s14, {14*1024}
    v_bfe_u32 v2, v0, 4, 2
    v_lshlrev_b32 v3, 5, v2
    """)
    def modload(ks):
        M = V_O + 16 * (ks % 7)
        for h in range(2):
            p(f"buffer_load_dwordx4 {v(M+4*h,4)}, v3, {s(SRD_W,4)}, 0 offen offset:{WS_MOD + 1792 + 128*ks + 16*h}")
            p(f"buffer_load_dwordx4 {v(M+8+4*h,4)}, v3, {s(SRD_W,4)}, 0 offen offset:{WS_MOD + 128*ks + 16*h}")
    for ks in range(14):
        for qt in range(2):
            p(f"buffer_load_dwordx4 {v(V_H+8*ks+4*qt,4)}, {v(V_LIN)}, {s(SRD_W,4)}, s{14+qt} offen offset:{(ks % 4)*1024}")
        if ks % 4 == 3:
            p("s_add_u32 s14, s14, 4096")
            p("s_add_u32 s15, s15, 4096")
        if ks < 7:
            modload(ks)
    p(f"""
    s_mul_i32 {s(S_M0V)}, {s(S_W)}, 4160
    s_lshl_b32 {s(S_M0K)}, {s(S_W)}, 12
    s_lshl_b32 {s(S_WBASE)}, {s(S_J)}, 10
    v_bfe_u32 v1, v0, 5, 1              ; hh
    v_and_b32 v2, 31, v0
    v_lshlrev_b32 {v(V_TMP)}, 1, v1
    v_xor_b32 v2, v2, {v(V_TMP)}        ; chunk
    v_lshlrev_b32 v1, 3, v1
    v_add_u32 v1, {s(S_W)}, v1          ; 8hh + w
    v_lshlrev_b32 v1, 13, v1
    v_lshl_add_u32 {v(V_WDMA)}, v2, 4, v1
    """)
    for jj in range(1, 4):
        p(f"v_add_u32 {v(V_WDMA+jj)}, {(16*(jj % 2) + 4*(jj//2))*8192 - jj*1024}, {v(V_WDMA)}")
    def emit_wfill(which, st):
        for hf in range(2):
            pre, d = at.wfill(which, st, hf)
            p.extend(pre); p.extend(d)
    emit_wfill("Q", 0)
    p(f"""
    v_bfe_u32 v1, v0, 2, 2
    v_mul_u32_u24 v1, 4160, v1
    v_and_b32 v2, 3, v0
    v_lshl_add_u32 v1, v2, 3, v1
    v_bfe_u32 v2, v0, 4, 2
    v_lshl_add_u32 v1, v2, 9, v1
    v_bfe_u32 v2, v0, 4, 1
    v_lshl_add_u32 {v(V_XR)}, v2, 5, v1
    s_mul_i32 s14, {s(S_HD)}, {SLOT}
    v_add_u32 {v(V_WRD)}, s14, {v(V_XR)}
    v_xor_b32 {v(V_WRD+1)}, 32, {v(V_WRD)}
    v_add_u32 {v(V_WRD+2)}, {4*SLOT}, {v(V_WRD)}
    v_add_u32 {v(V_WRD+3)}, {4*SLOT}, {v(V_WRD+1)}
    """)
    T = V_O + 112
    for ks in range(14):
        M = V_O + 16 * (ks % 7)
        for qt in range(2):
            for d in range(4):
                x = V_H + 8*ks + 4*qt + d
                t = T + 2 * (d % 4)
                p(f"v_lshlrev_b32 v{t}, 16, v{x}")
                p(f"v_and_b32 v{t+1}, 0xffff0000, v{x}")
                p(f"v_pk_fma_f32 {v(t,2)}, {v(t,2)}, {v(M+2*d,2)}, {v(M+8+2*d,2)}")
                p(f"v_cvt_pk_bf16_f32 v{x}, v{t}, v{t+1}")
        if ks < 7:
            modload(ks + 7)
        if ks < 3:
            emit_wfill("Q", ks + 1)
    p(I("WAITTAG", tag=at.wkeys("Q", 0)))
    p("s_barrier")
    stamp(p, opts, 1)
    srd(p, SRD_O, 10, 11, 4096 * 896)
    p(f"""
    s_lshl_b32 s14, {s(S_J)}, 20
    s_add_u32 {s(SRD_K)}, s4, s14
    s_addc_u32 {s(SRD_K+1)}, s5, 0
    s_mov_b32 {s(SRD_K+2)}, 0x100000
    s_mov_b32 {s(SRD_K+3)}, 0x20000
    s_add_u32 {s(SRD_V)}, s6, s14
    s_addc_u32 {s(SRD_V+1)}, s7, 0
    s_mov_b32 {s(SRD_V+2)}, 0x100000
    s_mov_b32 {s(SRD_V+3)}, 0x20000
    s_mov_b32 {s(S_KOFF)}, 0
    s_mov_b32 {s(S_VOFF)}, 0
    s_mov_b32 {s(S_THR)}, {thr}
    s_lshl_b32 s15, {s(S_W)}, 3
    """)
    setup = f"""
    v_bfe_u32 v1, v0, 5, 1
    v_and_b32 v2, 31, v0
    v_add_u32 v16, s15, v1
    v_lshlrev_b32 v17, 9, v16
    v_and_b32 v16, 15, v16
    v_xor_b32 v16, v16, v2
    v_lshl_add_u32 {v(V_KDMA)}, v16, 4, v17
    v_xor_b32 {v(V_KDMA+1)}, 32, {v(V_KDMA)}
    v_xor_b32 {v(V_KDMA+2)}, 64, {v(V_KDMA)}
    v_xor_b32 {v(V_KDMA+3)}, 96, {v(V_KDMA)}
    v_lshlrev_b32 v16, 2, v1
    v_add_u32 v16, {s(S_W)}, v16
    v_lshlrev_b32 v16, 9, v16
    v_lshlrev_b32 v17, 1, v1
    v_xor_b32 v17, v17, v2
    v_lshl_add_u32 {v(V_VDMA)}, v17, 4, v16
    v_add_u32 {v(V_VDMA+1)}, 3072, {v(V_VDMA)}
    v_add_u32 {v(V_VDMA+2)}, 6144, {v(V_VDMA)}
    v_add_u32 {v(V_VDMA+3)}, 9216, {v(V_VDMA)}
    v_and_b32 v16, 15, v0
    v_bfe_u32 v17, v0, 4, 2
    v_xor_b32 v17, v17, v16
    v_lshlrev_b32 v16, 9, v16
    v_add_u32 v16, {4*SLOT}, v16
    v_lshl_add_u32 {v(V_KRD)}, v17, 4, v16
    v_xor_b32 {v(V_KRD+1)}, 64, {v(V_KRD)}
    v_xor_b32 {v(V_KRD+2)}, 0x80, {v(V_KRD)}
    v_xor_b32 {v(V_KRD+3)}, 0xc0, {v(V_KRD)}
    v_mov_b32 {v(V_VRD)}, {v(V_XR)}
    v_xor_b32 {v(V_VRD+1)}, 32, {v(V_XR)}
    v_mov_b32 {v(V_L)}, 0
    v_mov_b32 {v(V_L+1)}, 0
    """
    setup = [I(x.strip()) for x in setup.strip().split("\n")]
    assert (4 * SLOT) % 256 == 0
    def q_mfma(i, t, qt, fr):
        D = v(V_O + 8*t + 4*qt, 4)
        return f"v_mfma_f32_16x16x32_bf16 {D}, {fr}, {v(V_H + 8*i + 4*qt, 4)}, {D if i else 0}"
    def q_fills(i):
        st = i + 3
        if i == 0: return []
        if st < 14:
            return [at.wfill("Q", st, hf) + ([],) for hf in range(2)]
        if i == 11: return [at.kvfill("K", 0), at.kvfill("K", 1)]
        if i == 12: return [at.kvfill("K", 2)]
        return [at.kvfill("V", 0), at.kvfill("V", 1, range(at.nafter))]
    def q_bar(i):
        return at.wkeys("Q", i + 1) if i < 13 else [at.key("K", 0)]
    def q_valu(i):
        if i in (6, 7, 8):
            n = len(setup)
            return setup[(i-6)*n//3:(i-5)*n//3]
        return []
    at.gemm_phase(p, "Q", 14, 16, q_mfma, q_fills, q_bar, q_valu, lambda i: [])
    for g in range(at.gB + 1, 64):
        for (f, e, nx) in at.ds.get(g, []):
            p(at.kread(lambda it: 0, 0, f))
    p(f"""
    v_bfe_u32 v1, v0, 5, 1
    v_and_b32 v2, 31, v0
    v_lshlrev_b32 v3, 1, v1
    v_xor_b32 v3, v3, v2
    v_lshlrev_b32 v1, 2, v1
    v_add_u32 v1, {s(S_W)}, v1
    v_mul_u32_u24 v1, 896, v1
    v_lshl_add_u32 v1, v3, 4, v1
    v_mov_b32 v3, 0x40000000
    v_cmp_gt_u32 vcc, 28, v2
    v_cndmask_b32 {v(V_WDMA)}, v3, v1, vcc
    v_add_u32 {v(V_WDMA+1)}, {8*896 - 1024}, {v(V_WDMA)}
    v_add_u32 {v(V_WDMA+2)}, {16*896 - 2048}, {v(V_WDMA)}
    v_add_u32 {v(V_WDMA+3)}, {24*896 - 3072}, {v(V_WDMA)}
    s_mul_i32 {s(S_WBASE)}, {s(S_J)}, {512*896}
    s_lshl_b32 s14, {s(S_W)}, 12
    s_add_u32 s14, s14, {8*SLOT}
    v_add_u32 {v(V_XW)}, s14, {v(V_LIN)}
    v_xor_b32 {v(V_XR)}, 0x2000, {v(V_XW)}
    """)
    assert (8 * SLOT) & 0x3fff == (8 * SLOT) % 16384 and ((8 * SLOT) % 16384) + 4096 <= 8192
    for sx in range(8):
        for qt in range(2):
            X = V_O + 16*sx + 4*qt
            Y = X + 8
            p(f"v_cvt_pk_bf16_f32 v{X}, v{X}, v{X+1}")
            p(f"v_cvt_pk_bf16_f32 v{X+1}, v{X+2}, v{X+3}")
            p(f"v_cvt_pk_bf16_f32 v{Y}, v{Y}, v{Y+1}")
            p(f"v_cvt_pk_bf16_f32 v{Y+1}, v{Y+2}, v{Y+3}")
        for qt in range(2):
            X = V_O + 16*sx + 4*qt
            Y = X + 8
            p(f"v_permlane32_swap_b32 v{X}, v{Y}")
            p(f"v_permlane32_swap_b32 v{X+1}, v{Y+1}")
        for qt in range(2):
            X = V_O + 16*sx + 4*qt
            Y = X + 8
            p(f"v_permlane16_swap_b32 v{X}, v{Y}")
            p(f"v_permlane16_swap_b32 v{X+1}, v{Y+1}")
        for qt in range(2):
            X = V_O + 16*sx + 4*qt
            Y = X + 8
            for k, r in enumerate((X, X+1, Y, Y+1)):
                p(f"v_accvgpr_write_b32 a{A_Q + 8*sx + 4*qt + k}, v{r}")
    stamp(p, opts, 2)
    lid = [opts.get("lid0", 0)]
    def B(c, fn, aval=None, **kw):
        at.body(p, c, fn, aval=aval, lid=lid[0], **kw)
        if aval != -1:
            at.fallback(p, c % 2, lid[0], aval != 63)
        lid[0] += 1
    B(3, lambda it: -1, aval=-1)
    B(0, lambda it: 0, aval=0, extra_scalar=[(60, I(f"s_mov_b32 {s(S_CNT)}, 14"))])
    p.begin_loop(14)
    p(f"L_loop{name}:")
    for c in range(1, 5):
        ex = [(60, I(f"s_sub_u32 {s(S_CNT)}, {s(S_CNT)}, 1"))] if c == 2 else None
        B(c % 4, (lambda c: lambda it: 4*it + c)(c), extra_scalar=ex)
    p(f"s_cmp_lg_u32 {s(S_CNT)}, 0")
    p(f"s_cbranch_scc1 L_loop{name}")
    p.end_loop()
    for av in range(57, 64):
        B(av % 4, (lambda av: lambda it: av)(av), aval=av)
    stamp(p, opts, 3)
    for qt in range(2):
        at.xreduce(p, V_L + qt, "v_add_f32")
        p(f"v_rcp_f32 v{2+qt}, {v(V_L+qt)}")
    def conv(u):
        out = []
        for qt in range(2):
            X = V_O + 16*u + 4*qt
            Y = X + 8
            for r in (X, X+1, X+2, X+3, Y, Y+1, Y+2, Y+3):
                out.append(I(f"v_mul_f32 v{r}, v{r}, v{2+qt}"))
            out.append(I(f"v_cvt_pk_bf16_f32 v{X}, v{X}, v{X+1}"))
            out.append(I(f"v_cvt_pk_bf16_f32 v{X+1}, v{X+2}, v{X+3}"))
            out.append(I(f"v_cvt_pk_bf16_f32 v{X+2}, v{Y}, v{Y+1}"))
            out.append(I(f"v_cvt_pk_bf16_f32 v{X+3}, v{Y+2}, v{Y+3}"))
        return out
    p.extend(conv(0)); p.extend(conv(1))
    ACC = V_H
    def o_mfma(i, t, qt, fr):
        D = v(ACC + 8*t + 4*qt, 4)
        Bop = v(V_O + 16*i + 4*qt, 4) if i < 8 else a(A_Q + 8*(i-8) + 4*qt, 4)
        return f"v_mfma_f32_16x16x32_bf16 {D}, {fr}, {Bop}, {D if i else 0}"
    def o_fills(i):
        st = i + 3
        return [at.wfill("O", st, hf) + ([],) for hf in range(2)] if st < 16 else []
    def o_bar(i):
        if i == 15: return None
        ks = at.wkeys("O", i + 1)
        if i < 8:
            ks = ks + [(8, i // 2)] if i % 2 == 0 else ks + [("rd", 8, i // 2)]
        return ks
    def o_valu(i):
        return conv(i + 2) if i + 2 < 8 else []
    def o_xds(i):
        if i >= 8: return []
        rho = i // 2
        out = []
        for k in range(4):
            u, qt = 2*rho + k // 2, k % 2
            if i % 2 == 0:
                out.append(I(f"ds_write_b128 {v(V_XW)}, {v(V_O + 16*u + 4*qt, 4)} offset:{1024*k}", tag=("wr", (8, rho))))
            else:
                out.append(I(f"ds_read_b128 {a(A_Q + 8*u + 4*qt, 4)}, {v(V_XR)} offset:{1024*k}", tag=("rd", (8, rho))))
        return out
    at.gemm_phase(p, "O", 16, 14, o_mfma, o_fills, o_bar, o_valu, o_xds)
    stamp(p, opts, 4)
    p(f"""
    s_lshl_b32 s14, {s(S_J)}, 7
    s_add_u32 s14, s14, {s(S_QT)}
    s_mul_i32 s14, s14, {14*1024}
    s_mul_i32 s15, {s(S_HD)}, {7*1024}
    s_add_u32 s14, s14, s15
    s_add_u32 s14, s14, {WS_PART}
    s_add_u32 s15, s14, {14*1024}
    s_add_u32 s50, s14, 4096
    s_add_u32 s51, s15, 4096
    """)
    for uu in range(7):
        for qt in range(2):
            X = ACC + 16*uu + 4*qt
            Y = X + 8
            p(f"v_cvt_pk_bf16_f32 v{X}, v{X}, v{X+1}")
            p(f"v_cvt_pk_bf16_f32 v{X+1}, v{X+2}, v{X+3}")
            p(f"v_cvt_pk_bf16_f32 v{X+2}, v{Y}, v{Y+1}")
            p(f"v_cvt_pk_bf16_f32 v{X+3}, v{Y+2}, v{Y+3}")
            so = (14 + qt) if uu < 4 else (50 + qt)
            p(f"buffer_store_dwordx4 {v(X,4)}, {v(V_LIN)}, {s(SRD_W,4)}, s{so} offen offset:{(uu % 4)*1024}")
    if opts.get("stamp"):
        p("s_waitcnt vmcnt(0)")
        stamp(p, opts, 5)
        p(f"""
        s_lshl_b32 s13, s2, 2
        s_add_u32 s13, s13, {s(S_W)}
        s_lshl_b32 s13, s13, 6
        s_add_u32 s13, s13, {WS_STAMP + 65536 * opts.get("slot", 0)}
        v_mov_b32 v1, 0
        """)
        for k in range(6):
            p(f"v_mov_b32 v2, s{60+4*k}")
            p(f"v_mov_b32 v3, s{62+4*k}")
            p(f"buffer_store_dwordx2 v[2:3], v1, {s(SRD_W,4)}, s13 offen offset:{8*k}")
    p(f"L_end{name}:")
    p("s_endpgm")
    p.finalize()
    return p, f"; @launch kernel={name} grid=(256,1,1) block=(256,1,1) lds={LDS_BYTES}\n"
```

```python
import sys
sys.path.insert(0, "work")
from asmlib import *
from layout import *
from k_prep import srd, f2u

def gen_g(opts=None):
    opts = opts or {}
    p = Prog("g_kernel")
    RING = 6
    DEPTH = 5
    VB = 16
    RS = 112
    ACC = 128
    A_A = 0
    A_MU = 168
    PB0 = 98304
    p(f"""
    s_cmp_ge_u32 s2, 256
    s_cbranch_scc1 L_g_end
    s_load_dwordx4 s[4:7], s[0:1], 56
    s_load_dwordx2 s[8:9], s[0:1], 112
    v_lshrrev_b32 v1, 6, v0
    v_readfirstlane_b32 s12, v1          ; wave
    s_and_b32 s13, s2, 7                 ; x
    s_lshr_b32 s14, s2, 3                ; i
    s_and_b32 s15, s13, 1
    s_lshl_b32 s15, s15, 2
    s_and_b32 s32, s14, 3
    s_add_u32 s32, s32, s15              ; fb
    s_lshr_b32 s15, s13, 1
    s_lshl_b32 s15, s15, 3
    s_lshr_b32 s33, s14, 2
    s_add_u32 s33, s33, s15              ; tb
    v_and_b32 v1, 63, v0
    v_lshlrev_b32 v2, 4, v1              ; lane*16
    v_and_b32 v3, 15, v0                 ; n
    v_bfe_u32 v8, v0, 4, 2               ; g
    v_lshlrev_b32 v9, 12, v3
    v_lshl_add_u32 v9, v8, 4, v9
    v_lshlrev_b32 v10, 6, v1
    s_waitcnt lgkmcnt(0)
    """)
    srd(p, 16, 4, 5, 2048 * 4096)
    srd(p, 20, 6, 7, 4096)
    srd(p, 28, 8, 9, WS_USED)
    p(f"""
    s_lshl_b32 s34, s12, 12
    s_add_u32 s34, s34, {WS_STATS}
    """)
    ST = ACC
    for k in range(4):
        p(f"buffer_load_dwordx4 {v(ST+4*k,4)}, v10, s[28:31], s34 offen offset:{16*k}")
    for nl in range(4):
        p(f"s_add_u32 s34, s12, {nl}")
        p(f"s_and_b32 s34, s34, 3")
        p(f"s_lshl_b32 s34, s34, 16")
        p(f"v_add_u32 v{4+nl}, s34, v9")
    p(f"""
    s_lshl_b32 s35, s33, 18
    s_lshl_b32 s34, s12, 10
    s_add_u32 s35, s35, s34              ; B soffset
    s_lshl_b32 s36, s32, 6
    s_lshl_b32 s34, s12, 4
    s_add_u32 s36, s36, s34
    s_mul_i32 s36, s36, 7168
    s_add_u32 s36, s36, {WS_ZZ}
    s_add_u32 s37, s36, 4096
    """)
    def loads(ks):
        out = []
        for nl in range(4):
            out.append(I(f"buffer_load_dwordx4 {v(VB + 16*(ks % RING) + 4*nl, 4)}, v{4+nl}, s[16:19], s35 offen offset:{64*ks}"))
        for mt in range(7):
            out.append(I(f"buffer_load_dwordx4 {a(A_A + 28*(ks % RING) + 4*mt, 4)}, v2, s[28:31], s{36 + mt//4} offen offset:{(mt % 4)*1024}"))
        post = [I("s_add_u32 s36, s36, 7168"), I("s_add_u32 s37, s37, 7168")]
        return out, post
    for ks in range(DEPTH):
        o, post = loads(ks)
        p.extend(o); p.extend(post)
    MU = ACC + 16; R = ACC + 24; T = ACC + 32
    p(f"v_mov_b32 v11, {f2u(1e-5)}")
    for k in range(8):
        p(f"v_mul_f32 v{MU+k}, {f2u(1.0/896)}, v{ST+2*k}")
        p(f"v_mul_f32 v{R+k}, {f2u(1.0/896)}, v{ST+2*k+1}")
        p(f"v_fma_f32 v{R+k}, -v{MU+k}, v{MU+k}, v{R+k}")
        p(f"v_max_f32 v{R+k}, 0, v{R+k}")
        p(f"v_add_f32 v{R+k}, v11, v{R+k}")
        p(f"v_rsq_f32 v{R+k}, v{R+k}")
    for k in range(4):
        p(f"v_cvt_pk_bf16_f32 v{T+k}, v{MU+2*k}, v{MU+2*k+1}")
        p(f"v_lshlrev_b32 v12, 16, v{T+k}")
        p(f"v_and_b32 v13, 0xffff0000, v{T+k}")
        p(f"v_sub_f32 v12, v{MU+2*k}, v12")
        p(f"v_sub_f32 v13, v{MU+2*k+1}, v13")
        p(f"v_cvt_pk_bf16_f32 v{T+4+k}, v12, v13")
    p(f"""
    s_lshl_b32 s34, s12, 12
    s_add_u32 s34, s34, {PB0}
    v_lshlrev_b32 v12, 5, v1
    v_add_u32 v12, s34, v12
    v_add_u32 v13, s34, v2
    """)
    tg = ("wr", ("P", 0), "private")
    p(f"ds_write_b128 v12, {v(R,4)}", tag=tg)
    p(f"ds_write_b128 v12, {v(R+4,4)} offset:16", tag=tg)
    p(f"ds_write_b128 v13, {v(T,4)} offset:2048", tag=tg)
    p(f"ds_write_b128 v13, {v(T+4,4)} offset:3072", tag=tg)
    p(f"""
    v_lshlrev_b32 v14, 5, v8
    v_add_u32 v14, s34, v14
    v_and_b32 v15, 1, v0
    v_lshlrev_b32 v15, 10, v15
    v_lshl_add_u32 v15, v8, 4, v15
    v_add_u32 v15, s34, v15
    s_waitcnt lgkmcnt(0)
    """)
    rt = ("rd", ("P", 0), "private")
    def rs_reads(ks):
        return [I(f"ds_read_b128 {v(RS + 8*(ks % 2) + 4*h, 4)}, v14 offset:{128*ks + 16*h}", tag=rt) for h in range(2)]
    def mu_read(ks):
        return I(f"ds_read_b128 {a(A_MU + 4*(ks % 2), 4)}, v15 offset:{2048 + 64*ks}", tag=rt)
    def scale(ks):
        out = []
        for nl in range(4):
            for d in range(4):
                x = VB + 16*(ks % RING) + 4*nl + d
                t = 8 + 2 * (d % 3)
                r = RS + 8*(ks % 2) + 2*d
                out.append(I(f"v_lshlrev_b32 v{t}, 16, v{x}"))
                out.append(I(f"v_and_b32 v{t+1}, 0xffff0000, v{x}"))
                out.append(I(f"v_mul_f32 v{t}, v{t}, v{r}"))
                out.append(I(f"v_mul_f32 v{t+1}, v{t+1}, v{r+1}"))
                out.append(I(f"v_cvt_pk_bf16_f32 v{x}, v{t}, v{t+1}"))
        return out
    p.extend(rs_reads(0)); p.extend(rs_reads(1)); p(mu_read(0))
    p.extend(scale(0))
    Z1 = VB
    for ks in range(16):
        SC = [[] for _ in range(32)]
        VE = [[] for _ in range(32)]
        kind = ["m"] * 32
        if ks + DEPTH < 16:
            o, post = loads(ks + DEPTH)
            for k, x in enumerate(o):
                g = 1 + (k * 30) // 11
                kind[g] = "d"; VE[g] = [x]
            SC[30] = [post[0]]; SC[31] = [post[1]]
        elif ks == 13:
            pre = f"""
            s_lshr_b32 s34, s12, 1
            s_lshl_b32 s38, s33, 1
            s_add_u32 s34, s34, s38
            s_lshl_b32 s38, s32, 6
            s_add_u32 s34, s34, s38
            s_mul_i32 s34, s34, 7168
            s_and_b32 s38, s12, 1
            s_lshl_b32 s38, s38, 3
            s_add_u32 s34, s34, s38
            s_add_u32 s38, s34, {WS_Z1}
            s_add_u32 s39, s38, 4096
            s_lshl_b32 s34, s33, 7
            s_lshl_b32 s40, s12, 5
            s_add_u32 s40, s40, s34
            v_lshlrev_b32 v3, 1, v3
            """
            p(pre)
            for ft in range(7):
                g = 1 + 3 * ft
                kind[g] = "d"
                VE[g] = [I(f"buffer_load_dwordx2 {v(Z1 + 2*ft, 2)}, v2, s[28:31], s{38 + ft//4} offen offset:{(ft % 4)*1024}")]
            kind[22] = "d"
            VE[22] = [I(f"buffer_load_ushort v{Z1+14}, v3, s[20:23], s40 offen")]
        ds = []
        if ks + 1 < 16:
            ds.append(mu_read(ks + 1))
        mg = [g for g in range(32) if kind[g] == "m"]
        if ks + 1 < 16:
            VE[mg[1]].append(ds[0])
            ops = scale(ks + 1)
            n = len(mg) - 2
            for k, x in enumerate(ops):
                VE[mg[(k * n) // len(ops)]].append(x)
            SC[0].append(I(f"WAITFOR {v(VB + 16*((ks+1) % RING), 16)}, {v(RS + 8*((ks+1) % 2), 8)}"))
            SC[mg[-3]].append(I(f"WAITFOR {a(A_A + 28*((ks+1) % RING), 28)}, {a(A_MU + 4*((ks+1) % 2), 4)}"))
        if ks + 2 < 16:
            rr = rs_reads(ks + 2)
            VE[mg[2]].insert(0, rr[0])
            VE[mg[3]].insert(0, rr[1])
        for g in range(32):
            mt, nl = g // 4, g % 4
            D = v(ACC + 16*mt + 4*nl, 4)
            Aop = a(A_A + 28*(ks % RING) + 4*mt, 4) if mt < 7 else a(A_MU + 4*(ks % 2), 4)
            p(f"v_mfma_f32_16x16x32_bf16 {D}, {Aop}, {v(VB + 16*(ks % RING) + 4*nl, 4)}, {D if ks else 0}")
            for x in SC[g] + VE[g]:
                p(x)
    for nl in range(1, 4):
        p(f"s_add_u32 s34, s12, {nl}")
        p(f"s_and_b32 s34, s34, 3")
        p(f"s_mul_i32 s34, s34, 24576")
        p(f"s_add_u32 s34, s34, {(nl-1)*8192}")
        p(f"v_add_u32 v{4+nl}, s34, v2")
    p("s_mul_i32 s34, s12, 24576")
    p("v_add_u32 v4, s34, v2")
    for mt in range(8):
        for nl in range(1, 4):
            p(f"ds_write_b128 v{4+nl}, {v(ACC + 16*mt + 4*nl, 4)} offset:{mt*1024}", tag=("wr", ("X", 0)))
    p("s_waitcnt lgkmcnt(0)")
    p("s_barrier")
    for mt in (7, 0, 1, 2, 3, 4, 5, 6):
        for k in range(3):
            p(f"ds_read_b128 {v(ACC + 16*mt + 4*(k+1), 4)}, v4 offset:{k*8192 + mt*1024}", tag=("rd", ("X", 0)))
    p(f"""
    s_lshl_b32 s34, s33, 2
    s_add_u32 s34, s34, s12
    s_mul_i32 s34, s34, {28*1024}
    s_add_u32 s34, s34, {WS_U}
    s_mul_i32 s35, s32, 7
    v_lshlrev_b32 v{Z1+14}, 16, v{Z1+14}
    """)
    def red(mt, n=2):
        X = ACC + 16*mt
        for h in range(n):
            p(f"v_pk_add_f32 {v(X+2*h,2)}, {v(X+2*h,2)}, {v(X+4+2*h,2)}")
            p(f"v_pk_add_f32 {v(X+8+2*h,2)}, {v(X+8+2*h,2)}, {v(X+12+2*h,2)}")
        for h in range(n):
            p(f"v_pk_add_f32 {v(X+2*h,2)}, {v(X+2*h,2)}, {v(X+8+2*h,2)}")
    red(7, 1)
    X7 = ACC + 112
    p(f"v_sub_f32 v8, v{Z1+14}, v{X7}")
    p(f"v_sub_f32 v8, v8, v{X7+1}")
    for ft in range(7):
        red(ft)
        X = ACC + 16*ft
        for h in range(2):
            p(f"v_pk_add_f32 {v(X+2*h,2)}, {v(X+2*h,2)}, v[8:9] op_sel_hi:[1,0]")
            p(f"v_lshlrev_b32 v{10+2*h}, 16, v{Z1+2*ft+h}")
            p(f"v_and_b32 v{11+2*h}, 0xffff0000, v{Z1+2*ft+h}")
            p(f"v_pk_mul_f32 {v(X+2*h,2)}, {v(X+2*h,2)}, {v(10+2*h,2)}")
        p(f"v_cvt_pk_bf16_f32 v{X}, v{X}, v{X+1}")
        p(f"v_cvt_pk_bf16_f32 v{X+1}, v{X+2}, v{X+3}")
        p(f"""
        s_add_u32 s36, s35, {ft}
        s_lshr_b32 s37, s36, 1
        s_lshl_b32 s37, s37, 10
        s_and_b32 s36, s36, 1
        s_lshl_b32 s36, s36, 3
        s_add_u32 s36, s36, s37
        s_add_u32 s36, s36, s34
        buffer_store_dwordx2 {v(X,2)}, v2, s[28:31], s36 offen
        """)
    p("L_g_end:")
    p("s_endpgm")
    p.finalize()
    return p, f"; @launch kernel=g_kernel grid=(256,1,1) block=(256,1,1) lds={PB0 + 16384}\n"


def gen_o(opts=None):
    p = Prog("o_kernel")
    ACC = 64
    A_B = 0
    A_F = 112
    NRO = 8
    WREG = 28672
    p(f"""
    s_cmp_ge_u32 s2, 224
    s_cbranch_scc1 L_o_end
    s_load_dwordx2 s[4:5], s[0:1], 72
    s_load_dwordx2 s[6:7], s[0:1], 96
    s_load_dwordx2 s[8:9], s[0:1], 112
    v_lshrrev_b32 v1, 6, v0
    v_readfirstlane_b32 s12, v1          ; wave
    s_and_b32 s13, s2, 7
    s_lshr_b32 s14, s2, 3
    s_lshl_b32 s33, s13, 2
    s_and_b32 s15, s14, 3
    s_add_u32 s33, s33, s15              ; tb
    s_lshr_b32 s32, s14, 2               ; cb
    v_and_b32 v1, 63, v0
    v_lshlrev_b32 v2, 4, v1
    v_lshrrev_b32 v3, 3, v1
    v_mul_u32_u24 v3, 896, v3
    v_bfe_u32 v8, v0, 4, 2               ; g
    v_lshlrev_b32 v9, 1, v8
    v_and_b32 v10, 7, v0
    v_xor_b32 v9, v9, v10
    v_lshl_add_u32 v4, v9, 4, v3
    v_add_u32 v5, {7168-1024}, v4
    v_add_u32 v6, {2*(7168-1024)}, v4
    v_add_u32 v7, {3*(7168-1024)}, v4
    s_mul_i32 s34, s12, {224*896}
    s_lshl_b32 s35, s32, 7
    s_add_u32 s34, s34, s35              ; W soffset
    s_mul_i32 s35, s12, {WREG}
    s_waitcnt lgkmcnt(0)
    """)
    srd(p, 16, 4, 5, 896 * 896)
    srd(p, 20, 6, 7, 2048 * 896)
    srd(p, 28, 8, 9, WS_USED)
    for nl in range(4):
        p(f"s_add_u32 s36, s12, {nl}")
        p(f"s_and_b32 s36, s36, 3")
        p(f"s_lshl_b32 s37, s33, 2")
        p(f"s_add_u32 s36, s36, s37")
        p(f"s_mul_i32 s36, s36, {28*1024}")
        p(f"s_mul_i32 s37, s12, 7168")
        p(f"s_add_u32 s36, s36, s37")
        p(f"s_add_u32 s{40+nl}, s36, {WS_U}")
        p(f"s_add_u32 s{44+nl}, s{40+nl}, 4096")
    for ks in range(7):
        p(f"s_add_u32 m0, s35, {ks*4096}")
        for k in range(4):
            p(f"buffer_load_dwordx4 v{4+k}, s[16:19], s34 offen offset:{k*1024} lds", tag=("dma", (ks, 0), "private"))
        p(f"s_add_u32 s34, s34, {4*7168}")
        for nl in range(4):
            p(f"buffer_load_dwordx4 {a(A_B + 16*ks + 4*nl, 4)}, v2, s[28:31], s{40 + nl + 4*(ks//4)} offen offset:{(ks % 4)*1024}")
    X1 = 16; GB = 24
    p(f"""
    s_lshl_b32 s36, s33, 2
    s_add_u32 s36, s36, s12              ; tt
    s_mul_i32 s37, s36, {14*1024}
    s_lshl_b32 s38, s32, 11
    s_add_u32 s37, s37, s38
    s_add_u32 s37, s37, {WS_X1}
    buffer_load_dwordx4 {v(X1,4)}, v2, s[28:31], s37 offen
    buffer_load_dwordx4 {v(X1+4,4)}, v2, s[28:31], s37 offen offset:1024
    v_lshlrev_b32 v9, 4, v8
    s_lshl_b32 s38, s32, 8
    s_add_u32 s38, s38, {WS_MOD + 5*1792}
    """)
    for ct in range(4):
        p(f"buffer_load_dwordx4 {v(GB+4*ct,4)}, v9, s[28:31], s38 offen offset:{64*ct}")
    p(f"""
    v_lshrrev_b32 v3, 2, v1              ; 4g+r
    v_lshlrev_b32 v3, 7, v3
    v_bfe_u32 v10, v0, 3, 2              ; sw = (g%2)*2 + r/2
    v_lshl_add_u32 v3, v10, 5, v3
    v_and_b32 v10, 3, v0
    v_lshl_add_u32 v3, v10, 3, v3
    v_add_u32 v12, s35, v3
    v_xor_b32 v13, 32, v12
    v_xor_b32 v14, 64, v12
    v_xor_b32 v15, 0x60, v12
    """)
    def rd(f):
        ks, ct = f // 4, f % 4
        return [I(f"ds_read_b64_tr_b16 {a(A_F + 4*(f % NRO) + 2*e, 2)}, v{12+ct} offset:{ks*4096 + e*2048}",
                  tag=("rd", (ks, 0), "private")) for e in range(2)]
    PFO = 3
    p(I("WAITTAG", tag=[(0, 0)]))
    for f in range(PFO):
        p.extend(rd(f))
    for f in range(28):
        ks, ct = f // 4, f % 4
        nx = f + PFO
        for nl in range(4):
            D = v(ACC + 16*ct + 4*nl, 4)
            p(f"v_mfma_f32_16x16x32_bf16 {D}, {a(A_F + 4*(f % NRO), 4)}, {a(A_B + 16*ks + 4*nl, 4)}, {D if ks else 0}")
            if nx < 28 and nl < 2:
                if nl == 0 and nx % 4 == 0:
                    p(I("WAITTAG", tag=[(nx // 4, 0)]))
                p(rd(nx)[nl])
            if nl == 3 and f + 1 < 28:
                p(f"WAITFOR {a(A_F + 4*((f+1) % NRO), 4)}, {a(A_B + 16*((f+1)//4), 16)}")
    p("v_add_u32 v4, s35, v2")
    for nl in range(1, 4):
        p(f"s_sub_u32 s36, s12, {nl}")
        p(f"s_and_b32 s36, s36, 3")
        p(f"s_mul_i32 s36, s36, {WREG}")
        p(f"v_add_u32 v{4+nl}, s36, v2")
    for ct in range(4):
        for nl in range(1, 4):
            p(f"ds_write_b128 v4, {v(ACC + 16*ct + 4*nl, 4)} offset:{(nl-1)*4096 + ct*1024}", tag=("wr", ("X", 0)))
    p("s_waitcnt lgkmcnt(0)")
    p("s_barrier")
    for ct in range(4):
        for nl in range(1, 4):
            p(f"ds_read_b128 {v(ACC + 16*ct + 4*nl, 4)}, v{4+nl} offset:{(nl-1)*4096 + ct*1024}", tag=("rd", ("X", 0)))
    p(f"""
    v_and_b32 v3, 15, v0
    v_mul_u32_u24 v3, 896, v3
    v_lshl_add_u32 v3, v8, 4, v3
    s_lshl_b32 s36, s33, 2
    s_add_u32 s36, s36, s12
    s_mul_i32 s36, s36, {16*896}
    s_lshl_b32 s37, s32, 7
    s_add_u32 s36, s36, s37
    """)
    for ct in range(4):
        X = ACC + 16*ct
        for h in range(2):
            p(f"v_pk_add_f32 {v(X+2*h,2)}, {v(X+2*h,2)}, {v(X+4+2*h,2)}")
            p(f"v_pk_add_f32 {v(X+8+2*h,2)}, {v(X+8+2*h,2)}, {v(X+12+2*h,2)}")
        for h in range(2):
            p(f"v_pk_add_f32 {v(X+2*h,2)}, {v(X+2*h,2)}, {v(X+8+2*h,2)}")
            p(f"v_lshlrev_b32 v{10}, 16, v{X1+2*ct+h}")
            p(f"v_and_b32 v{11}, 0xffff0000, v{X1+2*ct+h}")
            p(f"v_pk_fma_f32 {v(X+2*h,2)}, {v(X+2*h,2)}, {v(GB+4*ct+2*h,2)}, v[10:11]")
        k, odd = ct // 2, ct % 2
        O = 40 + 4*k + 2*odd
        p(f"v_cvt_pk_bf16_f32 v{O}, v{X}, v{X+1}")
        p(f"v_cvt_pk_bf16_f32 v{O+1}, v{X+2}, v{X+3}")
        if odd:
            O = 40 + 4*k
            p(f"v_permlane32_swap_b32 v{O}, v{O+2}")
            p(f"v_permlane32_swap_b32 v{O+1}, v{O+3}")
            p(f"v_permlane16_swap_b32 v{O}, v{O+2}")
            p(f"v_permlane16_swap_b32 v{O+1}, v{O+3}")
            p(f"buffer_store_dwordx4 {v(O,4)}, v3, s[20:23], s36 offen offset:{64*k}")
    p("L_o_end:")
    p("s_endpgm")
    p.finalize()
    return p, f"; @launch kernel=o_kernel grid=(224,1,1) block=(256,1,1) lds={4*WREG}\n"
```

```python
import sys
sys.path.insert(0, "work")
from asmlib import *
from layout import *
import struct
def f2u(x): return struct.unpack("<I", struct.pack("<f", x))[0]
LOG2E = 1.4426950408889634
QSCALE = LOG2E / 16.0

def srd(p, d, lo, hi, nbytes):
    p(f"s_mov_b32 s{d}, s{lo}")
    p(f"s_mov_b32 s{d+1}, s{hi}")
    p(f"s_mov_b32 s{d+2}, {nbytes}")
    p(f"s_mov_b32 s{d+3}, 0x20000")

def xreduce(p, T, tmp, op):
    p(f"v_mov_b32 {v(tmp)}, {v(T)}")
    p(f"v_permlane32_swap_b32 {v(T)}, {v(tmp)}")
    p(f"{op} {v(T)}, {v(T)}, {v(tmp)}")
    p(f"v_mov_b32 {v(tmp)}, {v(T)}")
    p(f"v_permlane16_swap_b32 {v(T)}, {v(tmp)}")
    p(f"{op} {v(T)}, {v(T)}, {v(tmp)}")

PREP_GRID = 74

def gen_prep():
    p = Prog("prep_kernel")
    p(f"""
    s_cmp_ge_u32 s2, {PREP_GRID}
    s_cbranch_scc1 L_prep_end
    s_load_dwordx2 s[4:5], s[0:1], 0
    s_load_dwordx4 s[8:11], s[0:1], 80
    s_load_dwordx2 s[6:7], s[0:1], 112
    s_waitcnt lgkmcnt(0)
    """)
    srd(p, 16, 4, 5, 2048 * 896)
    srd(p, 20, 8, 9, 896)
    srd(p, 24, 10, 11, 448 * 5376)
    srd(p, 28, 6, 7, WS_USED)
    p("s_cmp_ge_u32 s2, 42")
    p("s_cbranch_scc1 L_prep_ln")
    p(f"""
    v_and_b32 v1, 7, v0
    v_lshrrev_b32 v2, 3, v0
    v_lshlrev_b32 v3, 1, v2
    v_mul_u32_u24 v4, 5376, v2
    v_lshl_add_u32 v4, v1, 4, v4
    s_lshl_b32 s12, s2, 7
    """)
    for i in range(14):
        p(f"buffer_load_ushort v{16+i}, v3, s[20:23], 0 offen offset:{64*i}")
    for i in range(14):
        p(f"buffer_load_dwordx4 {v(32+4*i,4)}, v4, s[24:27], s12 offen")
        if i < 13:
            p(f"s_add_u32 s12, s12, {32*5376}")
    p(f"s_mov_b32 s13, {f2u(-LOG2E)}")
    for i in range(14):
        x = 16 + i
        p(f"v_lshlrev_b32 v{x}, 16, v{x}")
        p(f"v_mul_f32 v5, s13, v{x}")
        p(f"v_exp_f32 v5, v5")
        p(f"v_add_f32 v5, 1.0, v5")
        p(f"v_rcp_f32 v5, v5")
        p(f"v_mul_f32 v5, v5, v{x}")
        p(f"v_cvt_pk_bf16_f32 v5, v5, v5")
        p(f"v_lshlrev_b32 v{x}, 16, v5")
    for r in range(8):
        p(f"v_mov_b32 v{8+r}, 0")
    for i in range(14):
        for d in range(4):
            w = 32 + 4*i + d
            p(f"v_lshlrev_b32 v5, 16, v{w}")
            p(f"v_and_b32 v6, 0xffff0000, v{w}")
            p(f"v_fmac_f32 v{8+2*d}, v5, v{16+i}")
            p(f"v_fmac_f32 v{9+2*d}, v6, v{16+i}")
    p(f"""
    v_lshlrev_b32 v5, 5, v0
    ds_write_b128 v5, v[8:11]
    ds_write_b128 v5, v[12:15] offset:16
    s_waitcnt lgkmcnt(0)
    s_barrier
    v_lshrrev_b32 v6, 6, v0
    v_readfirstlane_b32 s14, v6
    s_cmp_lg_u32 s14, 0
    s_cbranch_scc1 L_prep_end
    v_lshlrev_b32 v5, 2, v0
    """)
    for i in range(32):
        p(f"ds_read_b32 v{32+i}, v5 offset:{256*i}")
    for st in (16, 8, 4, 2, 1):
        for i in range(st):
            p(f"v_add_f32 v{32+i}, v{32+i}, v{32+i+st}")
    p(f"""
    v_cvt_pk_bf16_f32 v32, v32, v32
    v_lshlrev_b32 v32, 16, v32
    s_mul_i32 s14, s2, 37
    s_lshr_b32 s14, s14, 8
    s_cmp_eq_u32 s14, 1
    s_cselect_b32 s15, 1, 0
    s_cmp_eq_u32 s14, 4
    s_cselect_b32 s15, 1, s15
    s_cmp_eq_u32 s15, 0
    s_cbranch_scc1 L_prep_no1
    v_add_f32 v32, 1.0, v32
    v_cvt_pk_bf16_f32 v32, v32, v32
    v_lshlrev_b32 v32, 16, v32
    L_prep_no1:
    s_cmp_lt_u32 s14, 2
    s_cselect_b32 s15, {f2u(QSCALE)}, 1.0
    v_mul_f32 v32, s15, v32
    s_lshl_b32 s12, s2, 8
    buffer_store_dword v32, v5, s[28:31], s12 offen offset:{WS_MOD}
    s_endpgm
    """)
    p(f"""
    L_prep_ln:
    v_lshrrev_b32 v6, 6, v0
    v_readfirstlane_b32 s14, v6
    s_sub_u32 s12, s2, 42
    s_lshl_b32 s12, s12, 2
    s_add_u32 s12, s12, s14          ; q-tile
    v_and_b32 v1, 15, v0
    v_bfe_u32 v2, v0, 4, 2
    v_mul_u32_u24 v3, 896, v1
    v_lshl_add_u32 v3, v2, 4, v3
    s_mul_i32 s13, s12, {16*896}
    """)
    X = 16
    F = 72
    for ks in range(14):
        p(f"buffer_load_dwordx4 {v(X+4*ks,4)}, v3, s[16:19], s13 offen offset:{64*ks}")
    p(f"""
    v_and_b32 v4, 63, v0
    v_lshlrev_b32 v5, 2, v4
    v_mov_b32 v6, 0
    s_lshl_b32 s14, s12, 7
    s_add_u32 s14, s14, {WS_STATS}
    v_cmp_gt_u32 vcc, 32, v4
    s_and_saveexec_b64 s[34:35], vcc
    buffer_store_dword v6, v5, s[28:31], s14 offen
    s_mov_b64 exec, s[34:35]
    v_lshlrev_b32 v4, 4, v4
    v_mov_b32 v8, 0
    v_mov_b32 v9, 0
    """)
    for d in range(56):
        p(f"v_lshlrev_b32 v{F+2*d}, 16, v{X+d}")
        p(f"v_and_b32 v{F+2*d+1}, 0xffff0000, v{X+d}")
        p(f"v_pk_add_f32 v[8:9], v[8:9], {v(F+2*d,2)}")
    p("v_add_f32 v8, v8, v9")
    xreduce(p, 8, 10, "v_add_f32")
    p(f"v_mul_f32 v8, {f2u(-1.0/448)}, v8")
    p("v_mov_b32 v10, 0")
    p("v_mov_b32 v11, 0")
    for d in range(56):
        p(f"v_pk_add_f32 {v(F+2*d,2)}, {v(F+2*d,2)}, v[8:9] op_sel_hi:[1,0]")
        p(f"v_pk_fma_f32 v[10:11], {v(F+2*d,2)}, {v(F+2*d,2)}, v[10:11]")
    p("v_add_f32 v10, v10, v11")
    xreduce(p, 10, 12, "v_add_f32")
    p(f"""
    v_mov_b32 v12, {f2u(1e-5)}
    v_fmac_f32 v12, {f2u(1.0/448)}, v10
    v_rsq_f32 v12, v12
    s_mul_i32 s13, s12, {14*1024}
    s_add_u32 s13, s13, {WS_XN}
    """)
    for ks in range(14):
        for d in range(4*ks, 4*ks+4):
            p(f"v_pk_mul_f32 {v(F+2*d,2)}, {v(F+2*d,2)}, v[12:13] op_sel_hi:[1,0]")
            p(f"v_cvt_pk_bf16_f32 v{X+d}, v{F+2*d}, v{F+2*d+1}")
        p(f"buffer_store_dwordx4 {v(X+4*ks,4)}, v4, s[28:31], s13 offen offset:{(ks % 4)*1024}")
        if ks % 4 == 3:
            p("s_add_u32 s13, s13, 4096")
    p("L_prep_end:")
    p("s_endpgm")
    p.finalize()
    return p, f"; @launch kernel=prep_kernel grid=({PREP_GRID},1,1) block=(256,1,1) lds=8192\n"
```

```python
import sys
sys.path.insert(0, "work")
from asmlib import *
from layout import *
from k_prep import srd, f2u

def lane_reduce_345(p, T, tmp):
    p(f"v_add_f32_dpp {v(T)}, {v(T)}, {v(T)} row_ror:8 row_mask:0xf bank_mask:0xf")
    p(f"v_mov_b32 {v(tmp)}, {v(T)}")
    p(f"v_permlane32_swap_b32 {v(T)}, {v(tmp)}")
    p(f"v_add_f32 {v(T)}, {v(T)}, {v(tmp)}")
    p(f"v_mov_b32 {v(tmp)}, {v(T)}")
    p(f"v_permlane16_swap_b32 {v(T)}, {v(tmp)}")
    p(f"v_add_f32 {v(T)}, {v(T)}, {v(tmp)}")

def gen_red():
    p = Prog("red_kernel")
    p(f"""
    s_cmp_ge_u32 s2, 256
    s_cbranch_scc1 L_red_end
    s_load_dwordx2 s[4:5], s[0:1], 0
    s_load_dwordx2 s[6:7], s[0:1], 112
    v_lshrrev_b32 v1, 6, v0
    v_readfirstlane_b32 s12, v1
    v_and_b32 v1, 7, v0                  ; n8
    v_bfe_u32 v2, v0, 3, 2               ; g
    v_bfe_u32 v3, v0, 5, 1               ; uu
    v_lshlrev_b32 v4, 10, v3
    v_lshl_add_u32 v4, v2, 8, v4
    v_lshl_add_u32 v4, v1, 4, v4
    s_lshr_b32 s13, s2, 1                ; q-tile
    s_and_b32 s14, s2, 1                 ; half
    s_mul_i32 s15, s13, {14*1024}
    s_lshl_b32 s32, s14, 7
    s_add_u32 s15, s15, s32
    s_lshl_b32 s32, s12, 11
    s_add_u32 s15, s15, s32
    s_waitcnt lgkmcnt(0)
    """)
    srd(p, 16, 4, 5, 2048 * 896)
    srd(p, 28, 6, 7, WS_USED)
    p(f"s_add_u32 s32, s15, {WS_PART}")
    for j in range(8):
        p(f"buffer_load_dwordx4 {v(32+4*j,4)}, v4, s[28:31], s32 offen")
        if j < 7:
            p(f"s_add_u32 s32, s32, {128*14*1024}")
    p(f"""
    v_mul_u32_u24 v5, 896, v1
    v_lshl_add_u32 v5, v3, 6, v5
    v_lshl_add_u32 v5, v2, 3, v5
    s_mul_i32 s33, s2, {8*896}
    s_lshl_b32 s34, s12, 7
    s_add_u32 s33, s33, s34
    buffer_load_dwordx2 v[64:65], v5, s[16:19], s33 offen
    buffer_load_dwordx2 v[66:67], v5, s[16:19], s33 offen offset:32
    v_lshlrev_b32 v6, 7, v3
    v_lshl_add_u32 v6, v2, 4, v6         ; (32uu + 4g)*4
    s_lshl_b32 s34, s12, 8
    s_add_u32 s34, s34, {WS_MOD + 2*1792}
    """)
    for k, sec in enumerate((0, 1, 2)):
        for e in range(2):
            p(f"buffer_load_dwordx4 {v(72+8*k+4*e,4)}, v6, s[28:31], s34 offen offset:{sec*1792 + 64*e}")
    A = 16
    for j in range(8):
        for d in range(4):
            x = 32 + 4*j + d
            if j == 0:
                p(f"v_lshlrev_b32 v{A+2*d}, 16, v{x}")
                p(f"v_and_b32 v{A+2*d+1}, 0xffff0000, v{x}")
            else:
                t = 8 + 2 * (d % 2)
                p(f"v_lshlrev_b32 v{t}, 16, v{x}")
                p(f"v_and_b32 v{t+1}, 0xffff0000, v{x}")
                p(f"v_pk_add_f32 {v(A+2*d,2)}, {v(A+2*d,2)}, {v(t,2)}")
    X1 = 24
    for d in range(4):
        t = 8 + 2 * (d % 2)
        p(f"v_lshlrev_b32 v{t}, 16, v{64+d}")
        p(f"v_and_b32 v{t+1}, 0xffff0000, v{64+d}")
        p(f"v_pk_fma_f32 {v(A+2*d,2)}, {v(A+2*d,2)}, {v(72+2*d,2)}, {v(t,2)}")
        p(f"v_cvt_pk_bf16_f32 v{X1+d}, v{A+2*d}, v{A+2*d+1}")
        p(f"v_lshlrev_b32 v{A+2*d}, 16, v{X1+d}")
        p(f"v_and_b32 v{A+2*d+1}, 0xffff0000, v{X1+d}")
    p(f"""
    s_add_u32 s32, s15, {WS_X1}
    buffer_store_dwordx4 {v(X1,4)}, v4, s[28:31], s32 offen
    v_pk_add_f32 v[8:9], {v(A,2)}, {v(A+2,2)}
    v_pk_add_f32 v[10:11], {v(A+4,2)}, {v(A+6,2)}
    v_pk_add_f32 v[8:9], v[8:9], v[10:11]
    v_add_f32 v8, v8, v9
    """)
    lane_reduce_345(p, 8, 9)
    p(f"""
    s_lshl_b32 s33, s12, 5
    v_lshlrev_b32 v12, 2, v1
    v_add_u32 v13, s33, v12
    ds_write_b32 v13, v8
    s_waitcnt lgkmcnt(0)
    s_barrier
    """)
    def gather(off):
        for w in range(7):
            p(f"ds_read_b32 v{32+w}, v12 offset:{off + 32*w}")
        p("v_add_f32 v32, v32, v33")
        p("v_add_f32 v34, v34, v35")
        p("v_add_f32 v36, v36, v37")
        p("v_add_f32 v32, v32, v38")
        p("v_add_f32 v34, v34, v36")
        p("v_add_f32 v8, v32, v34")
    gather(0)
    p(f"v_mul_f32 v8, {f2u(-1.0/448)}, v8")
    for d in range(4):
        p(f"v_pk_add_f32 {v(A+2*d,2)}, {v(A+2*d,2)}, v[8:9] op_sel_hi:[1,0]")
    p(f"v_pk_mul_f32 v[10:11], {v(A,2)}, {v(A,2)}")
    for d in range(1, 4):
        p(f"v_pk_fma_f32 v[10:11], {v(A+2*d,2)}, {v(A+2*d,2)}, v[10:11]")
    p("v_add_f32 v8, v10, v11")
    lane_reduce_345(p, 8, 9)
    p(f"""
    ds_write_b32 v13, v8 offset:256
    s_waitcnt lgkmcnt(0)
    s_barrier
    """)
    gather(256)
    p(f"""
    v_mov_b32 v10, {f2u(1e-5)}
    v_fmac_f32 v10, {f2u(1.0/448)}, v8
    v_rsq_f32 v10, v10
    """)
    for d in range(4):
        p(f"v_pk_mul_f32 {v(A+2*d,2)}, {v(A+2*d,2)}, v[10:11] op_sel_hi:[1,0]")
        p(f"v_pk_fma_f32 {v(A+2*d,2)}, {v(A+2*d,2)}, {v(88+2*d,2)}, {v(80+2*d,2)}")
        p(f"v_cvt_pk_bf16_f32 v{28+d}, v{A+2*d}, v{A+2*d+1}")
    p(f"""
    s_add_u32 s32, s15, {WS_H2}
    buffer_store_dwordx4 v[28:31], v4, s[28:31], s32 offen
    L_red_end:
    s_endpgm
    """)
    p.finalize()
    return p, "; @launch kernel=red_kernel grid=(256,1,1) block=(448,1,1) lds=512\n"
```

```python
import sys
sys.path.insert(0, "work")
from asmlib import *
from layout import *
from k_prep import srd, f2u, LOG2E

C1 = -2.0 * 0.7978845608028654 * LOG2E
C2 = C1 * 0.044715

def gelu_pairs(p, regs, T):
    n = len(regs)
    NB = 4
    for i0 in range(0, n, NB):
        grp = regs[i0:i0+NB]
        for k, x in enumerate(grp):
            p(f"v_pk_mul_f32 {v(T+2*k,2)}, {v(x,2)}, {v(x,2)}")
        for k, x in enumerate(grp):
            p(f"v_pk_fma_f32 {v(T+2*k,2)}, {v(T+2*k,2)}, v[4:5], v[6:7] op_sel_hi:[1,0,0]")
        for k, x in enumerate(grp):
            p(f"v_pk_mul_f32 {v(T+2*k,2)}, {v(T+2*k,2)}, {v(x,2)}")
        for k, x in enumerate(grp):
            p(f"v_exp_f32 v{T+2*k}, v{T+2*k}")
            p(f"v_exp_f32 v{T+2*k+1}, v{T+2*k+1}")
        for k, x in enumerate(grp):
            p(f"v_pk_add_f32 {v(T+2*k,2)}, {v(T+2*k,2)}, 1.0 op_sel_hi:[1,0]")
        for k, x in enumerate(grp):
            p(f"v_rcp_f32 v{T+2*k}, v{T+2*k}")
            p(f"v_rcp_f32 v{T+2*k+1}, v{T+2*k+1}")
        for k, x in enumerate(grp):
            p(f"v_pk_mul_f32 {v(x,2)}, {v(x,2)}, {v(T+2*k,2)}")

def _build(zz):
    p = Prog("z_kernel")
    ACC = 64
    VD = 16
    NRZ = 14
    A_H = 0
    A_F = 112
    p(f"""
    s_cmp_ge_u32 s2, 256
    s_cbranch_scc1 L_z_end
    s_load_dwordx2 s[4:5], s[0:1], 48
    s_load_dwordx2 s[6:7], s[0:1], 112
    v_lshrrev_b32 v1, 6, v0
    v_readfirstlane_b32 s12, v1          ; wave
    s_and_b32 s13, s2, 7                 ; x
    s_lshr_b32 s14, s2, 3                ; i
    s_and_b32 s15, s13, 3
    s_lshl_b32 s15, s15, 2
    s_and_b32 s32, s14, 3
    s_add_u32 s32, s32, s15              ; cgp (0..15)
    s_lshr_b32 s15, s13, 2
    s_lshl_b32 s15, s15, 3
    s_lshr_b32 s33, s14, 2
    s_add_u32 s33, s33, s15              ; rg (0..15)
    s_lshl_b32 s34, s33, 2
    s_add_u32 s34, s34, s12
    v_and_b32 v1, 63, v0                 ; lane
    v_lshlrev_b32 v2, 4, v1              ; lane*16
    s_movk_i32 s35, 0x124a
    """)
    for m in range(7):
        p(f"v_add_u32 v3, {64*m}, v1")
        p(f"v_mul_u32_u24 v8, s35, v3")
        p(f"v_lshrrev_b32 v8, 16, v8")
        p(f"v_mul_u32_u24 v9, {3584 - 14*16}, v8")
        p(f"v_lshl_add_u32 v{VD+m}, v1, 4, v9")
        if m >= 4:
            p(f"v_add_u32 v{VD+m}, 4096, v{VD+m}")
    p("s_waitcnt lgkmcnt(0)")
    srd(p, 16, 4, 5, 448 * 3584)
    srd(p, 28, 6, 7, WS_USED)
    p(f"""
    v_and_b32 v3, 15, v0                 ; m
    v_bfe_u32 v8, v0, 4, 2               ; kg
    v_lshrrev_b32 v9, 3, v3
    v_mul_u32_u24 v9, {14*1024}, v9
    v_bfe_u32 v10, v0, 2, 1              ; (m/4)%2
    v_lshlrev_b32 v10, 3, v10
    v_and_b32 v11, 3, v0
    v_add_u32 v10, v10, v11              ; pos%16 for e=0
    v_lshl_add_u32 v10, v8, 4, v10
    v_lshl_add_u32 v10, v10, 4, v9
    v_add_u32 v11, 64, v10               ; e=1
    v_add_u32 v13, {14*1024}, v2
    s_cmp_ge_u32 s32, 8
    s_cselect_b64 vcc, -1, 0
    v_cndmask_b32 v10, v2, v10, vcc
    v_cndmask_b32 v11, v13, v11, vcc
    s_mul_i32 s36, s34, {28*1024}
    s_add_u32 s36, s36, {WS_H2}
    s_mul_i32 s37, s32, 224
    s_mul_i32 s38, s12, {32*3584}
    s_add_u32 s37, s37, s38
    s_mul_i32 s38, s12, 7168
    """)
    for rnd in range(4):
        for m in range(7):
            if m % 4 == 0:
                p(f"s_add_u32 m0, s38, {rnd*4*7168 + m*1024}")
            p(f"buffer_load_dwordx4 v{VD+m}, s[16:19], s37 offen offset:{(m % 4)*1024} lds", tag=("dma", (rnd, 0)))
        p(f"s_add_u32 s37, s37, {4*32*3584}")
        for u in range(4*rnd, min(14, 4*rnd+4)):
            for e in range(2):
                p(f"buffer_load_dwordx4 {a(A_H+8*u+4*e,4)}, v{10+e}, s[28:31], s36 offen offset:{(u % 4)*1024}")
        p(f"s_add_u32 s36, s36, 4096")
    p(f"""
    v_lshrrev_b32 v3, 2, v1              ; 4g + r
    v_mul_u32_u24 v3, 224, v3
    v_and_b32 v8, 3, v0
    v_lshl_add_u32 v12, v8, 3, v3
    v_add_u32 v13, {8*7168}, v12
    v_mov_b32 v4, {f2u(C2)}
    v_mov_b32 v6, {f2u(C1)}
    s_cmp_ge_u32 s32, 8
    s_cbranch_scc1 L_z_zz
    """)
    npre = len(p.items)
    if zz:
        p("L_z_zz:")
    LEAD = 8
    N = 14 * 14
    rds = []
    for u in range(14):
        for ft in range(7):
            f = u * 7 + ft
            for e in range(2):
                base = 12 if u < 8 else 13
                rds.append(I(f"ds_read_b64_tr_b16 {a(A_F + 4*(f % NRZ) + 2*e, 2)}, v{base} offset:{(u % 8)*7168 + e*3584 + 32*ft}",
                             tag=("rd", (u // 4, 0))))
    def bar(rnd):
        p(I("WAITTAG", tag=[(rnd, 0)]))
        p("s_barrier")
    bar(0)
    for x in rds[:LEAD]:
        p(x)
    for g in range(N):
        u, ft, e = g // 14, (g % 14) // 2, g % 2
        f = u * 7 + ft
        D = v(ACC + 8*ft + 4*e, 4)
        W = a(A_F + 4*(f % NRZ), 4)
        H = a(A_H + 8*u + 4*e, 4)
        C = D if u else "0"
        if zz:
            p(f"v_mfma_f32_16x16x32_bf16 {D}, {H}, {W}, {C}")
        else:
            p(f"v_mfma_f32_16x16x32_bf16 {D}, {W}, {H}, {C}")
        if e == 1 and f + 1 < 98:
            p(f"WAITFOR {a(A_F + 4*((f+1) % NRZ), 4)}")
        k = g + LEAD
        if k < N:
            if k % 56 == 0:
                bar(k // 56)
            p(rds[k])
    gelu_pairs(p, [ACC + 2*k for k in range(28)], 24)
    p(f"""
    s_and_b32 s36, s32, 7
    s_mul_i32 s36, s36, {64*7*1024}
    s_mul_i32 s37, s34, {7*1024}
    s_add_u32 s36, s36, s37
    s_add_u32 s36, s36, {WS_ZZ if zz else WS_Z1}
    s_add_u32 s37, s36, 4096
    """)
    if zz:
        for k in range(0, 8, 2):
            p(f"v_pk_add_f32 {v(32+k,2)}, {v(ACC+k,2)}, {v(ACC+8+k,2)}")
            p(f"v_pk_mul_f32 {v(40+k,2)}, {v(ACC+k,2)}, {v(ACC+k,2)}")
        for ft in range(1, 7):
            for k in range(0, 8, 2):
                if ft >= 2:
                    p(f"v_pk_add_f32 {v(32+k,2)}, {v(32+k,2)}, {v(ACC+8*ft+k,2)}")
                p(f"v_pk_fma_f32 {v(40+k,2)}, {v(ACC+8*ft+k,2)}, {v(ACC+8*ft+k,2)}, {v(40+k,2)}")
    for ft in range(7):
        X = ACC + 8*ft
        for k in range(4):
            p(f"v_cvt_pk_bf16_f32 v{X+k}, v{X+2*k}, v{X+2*k+1}")
        p(f"buffer_store_dwordx4 {v(X,4)}, v2, s[28:31], s{36 + ft//4} offen offset:{(ft % 4)*1024}")
    if zz:
        for sh in (8, 4, 2, 1):
            for k in range(16):
                p(f"v_add_f32_dpp v{32+k}, v{32+k}, v{32+k} row_ror:{sh} row_mask:0xf bank_mask:0xf")
        p("v_and_b32 v3, 15, v0")
        p("v_mov_b32 v8, v32")
        for n in range(1, 16):
            src = 32 + n // 2 + 8 * (n % 2)
            p(f"v_cmp_eq_u32 vcc, {n}, v3")
            p(f"v_cndmask_b32 v8, v8, v{src}, vcc")
        p(f"""
        v_lshlrev_b32 v9, 2, v1
        s_lshl_b32 s36, s34, 8
        s_add_u32 s36, s36, {WS_STATS}
        buffer_atomic_add_f32 v8, v9, s[28:31], s36 offen
        L_z_end:
        """)
    p("s_endpgm")
    p.finalize()
    return p, npre

def gen_z():
    p0, n0 = _build(False)
    p1, n1 = _build(True)
    a0 = [x.lines() for x in p0.items[:n0]]
    a1 = [x.lines() for x in p1.items[:n1]]
    assert a0 == a1
    p0.side = p1.items[n1:]
    return p0, "; @launch kernel=z_kernel grid=(256,1,1) block=(256,1,1) lds=114688\n"
```

```python
MB = 1 << 20
WS_MOD   = 0
WS_STATS = 64 * 1024
WS_FLAG  = 80 * 1024
WS_XN    = 1 * MB
WS_PART  = 4 * MB
WS_X1    = 20 * MB
WS_H2    = 24 * MB
WS_Z1    = 26 * MB
WS_ZZ    = 30 * MB
WS_U     = 34 * MB
WS_STAMP = 38 * MB
WS_QTEST = 40 * MB
WS_OTEST = 40 * MB + 16 * MB
WS_USED  = 40 * MB
```

```python
import sys
sys.path.insert(0, "work")
from build import *
from k_prep import *
from k_attn import *
from k_red import *
from k_z import *
from k_g import *
stampf = len(sys.argv) > 2 and sys.argv[2] == "st"
STAMP["on"] = stampf
import json
AO = json.loads(sys.argv[3]) if len(sys.argv) > 3 else {}
write([gen_prep(("attn_kernel", "L_o_end")), gen_attn(dict({"tail_code": ("red_kernel", "L_o_end")}, **AO)), gen_red(), gen_z(), gen_g(), gen_o()], sys.argv[1])
```

```python
import sys
sys.path.insert(0, "work")
from asmlib import *
from layout import *
from k_prep import srd, f2u, stamp, stamp_dump, code_prefetch

SLOT = 16640
V_WDMA = 4
V_WRD = 8
V_LIN = 12
V_XW = 13; V_XR = 14; V_TMP = 15
V_H = 16
V_O = 128
V_S = [96, 112]
V_NEGM = 80
V_P = [64, 72]
V_E = 56
V_KRD = 40
V_VRD = 48
V_KDMA = 32
V_VDMA = 36
V_L = 50
V_TS = 52
V_T0 = 54; V_T1 = 55
V_T2 = 30; V_T3 = 31
A_Q = 0
A_F = 64
NR = 16
SRD_K, SRD_V, SRD_W, SRD_Q, SRD_O = 16, 20, 24, 40, 44
S_W, S_J, S_PB = 28, 29, 30
S_KOFF, S_VOFF, S_M0K, S_M0V, S_CNT, S_THR = 32, 33, 34, 35, 36, 37
S_WOFF, S_WBASE, S_HD, S_QT = 38, 39, 48, 49
MODL = 9 * SLOT
LDS_BYTES = 9 * SLOT + 8192
A_HP = 128


def make_plan(gJ=24, gB=52, d0=3, e_first=2, e_last=58):
    pl = ["m"] * 64
    for k in range(8):
        pl[(d0 + 8 * k) % 64] = "d"
    assert pl[gJ] == "m" and pl[gB] == "m"
    pl[gJ] = "j"; pl[gB] = "B"
    es = []
    for r in range(16):
        g = gJ + e_first + round(r * (e_last - e_first) / 15)
        while pl[g % 64] != "m":
            g += -1 if r == 15 else 1
        pl[g % 64] = "e"
        es.append(g % 64)
    for i in range(10):
        g = es[(i * 16) // 10] - 1
        while pl[g % 64] != "m":
            g -= 1
        pl[g % 64] = "t"
    return "".join(pl)


def frag(f):
    return A_F + 4 * (f % NR)


def slot_of(kind, t):
    return (t % 4) + (4 if kind == "K" else 0)


class Attn:
    def __init__(self, opts):
        self.o = opts
        self.plan = opts.get("plan", make_plan())
        pl = self.plan
        assert len(pl) == 64
        assert pl.count("e") + pl.count("E") == 16
        assert pl.count("d") == 8 and pl.count("B") == 1 and pl.count("j") == 1
        nds = pl.count("m") + pl.count("E") + 2 * pl.count("t")
        assert nds == 48, nds
        self.gB = pl.index("B"); self.gJ = pl.index("j")
        dsg = []
        for k in range(1, 65):
            g = (self.gB + k) % 64
            if pl[g] in "mE": dsg.append(g)
            if pl[g] == "t": dsg += [g, g]
        ops = [(f, 0) for f in range(16)] + [(f, e) for f in range(16, 32) for e in range(2)]
        self.ds = {}
        leads = []
        for g, (f, e) in zip(dsg, ops):
            nxt = g > self.gB
            assert not (nxt and f >= 16)
            self.ds.setdefault(g, []).append((f, e, nxt))
            leads.append(2 * f + (64 if nxt else 0) - g)
        assert max(leads) < 2 * NR - 2
        self.va = {}
        exps, rest = self.softmax_parts(0)
        done = set()
        ie = ir = 0
        for k in range(1, 64):
            g = (self.gJ + k) % 64
            add = []
            if pl[g] in "eE":
                self.va.setdefault(g, []).append(("e", ie)); add = [ie]; ie += 1
            elif pl[g] == "m":
                if ir < len(rest) and all(d in done for d in rest[ir][1]):
                    self.va.setdefault(g, []).append(("r", ir)); ir += 1
            done.update(add)
        assert ie == 16 and ir == len(rest), (ir, len(rest))
        self.nafter = sum(1 for g in range(64) if pl[g] == "d" and g > self.gB)

    @staticmethod
    def key(kind, t):
        return (slot_of(kind, t), 100 + t)

    def kread(self, tfn, c, f):
        kt, sx = f // 8, f % 8
        return I(f"ds_read_b128 {a(frag(f),4)}, {v(V_KRD + sx % 4)} offset:{(c % 4)*SLOT + kt*8192 + (sx//4)*256}",
                 tag=("rd", lambda it: self.key("K", tfn(it))))

    def vread(self, tfn, c, f, e):
        t = f - 16
        return I(f"ds_read_b64_tr_b16 {a(frag(f)+2*e,2)}, {v(V_VRD + t % 2)} offset:{(c % 4)*SLOT + e*2048 + 64*(t//2)}",
                 tag=("rd", lambda it: self.key("V", tfn(it))))

    def dma(self, kind, tfn, jj):
        tag = ("dma", lambda it: self.key(kind, tfn(it)))
        if kind == "K":
            return I(f"buffer_load_dwordx4 {v(V_KDMA+jj)}, {s(SRD_K,4)}, {s(S_KOFF)} offen offset:{jj*1024} lds", tag=tag)
        return I(f"buffer_load_dwordx4 {v(V_VDMA+jj)}, {s(SRD_V,4)}, {s(S_VOFF)} offen offset:{jj*1024} lds", tag=tag)

    def m0(self, kind, c):
        if kind == "K":
            return I(f"s_add_u32 m0, {s(S_M0K)}, {slot_of('K', c)*SLOT}")
        return I(f"s_add_u32 m0, {s(S_M0V)}, {slot_of('V', c)*SLOT}")

    def adv(self, kind):
        r = S_KOFF if kind == "K" else S_VOFF
        return I(f"s_add_u32 {s(r)}, {s(r)}, 16384")

    def wfill(self, which, st, hf):
        if which == "Q":
            pair = st % 4
            off = ((st + 7 * hf) % 14) * 32 * 8192 + hf * 512
            srdw = SRD_Q
            gen = st
        else:
            pair = (st + 2) % 4
            off = ((st + 8 * hf) % 16) * 32 * 896 + hf * 448
            srdw = SRD_O
            gen = 200 + st
        slot = 2 * pair + hf
        pre = [I(f"s_add_u32 m0, {s(S_M0V)}, {slot*SLOT}"), I(f"s_add_u32 {s(S_WOFF)}, {s(S_WBASE)}, {off}")]
        d = [I(f"buffer_load_dwordx4 {v(V_WDMA+jj)}, {s(srdw,4)}, {s(S_WOFF)} offen offset:{jj*1024} lds",
               tag=("dma", (slot, gen))) for jj in range(4)]
        return pre, d

    def wkeys(self, which, st):
        pair = st % 4 if which == "Q" else (st + 2) % 4
        gen = st if which == "Q" else 200 + st
        return [(2 * pair, gen), (2 * pair + 1, gen)]

    def wread(self, which, st, t, e, f):
        pair = st % 4 if which == "Q" else (st + 2) % 4
        return I(f"ds_read_b64_tr_b16 {a(frag(f)+2*e,2)}, {v(V_WRD + 2*(pair//2) + t % 2)} "
                 f"offset:{(pair % 2)*2*SLOT + e*2048 + 64*(t//2)}", tag=("rd", self.wkeys(which, st)))

    def kvfill(self, kind, t, jjs=range(4)):
        pre = [self.m0(kind, t)]
        d = [self.dma(kind, (lambda t: lambda it: t)(t), jj) for jj in jjs]
        post = [self.adv(kind)] if 3 in jjs else []
        return pre, d, post

    def softmax_parts(self, par):
        S = V_S[par]; P = V_P[par]
        exps = [I(f"v_exp_f32 {v(V_E + r % 8)}, {v(S + r)}") for r in range(16)]
        rest = []
        rest.append((I(f"v_add_f32 {v(V_L)}, {v(V_L)}, {v(V_TS)}"), [], True))
        rest.append((I(f"v_add_f32 {v(V_L+1)}, {v(V_L+1)}, {v(V_TS+1)}"), [], True))
        for q in range(16):
            kt, qt, i = q // 8, (q // 4) % 2, q % 4
            ts = v(V_TS + qt)
            e = v(V_E + q % 8)
            if kt == 0 and i == 0:
                pass
            elif kt == 0 and i == 1:
                rest.append((I(f"v_add_f32 {ts}, {v(V_E + (q-1) % 8)}, {e}"), [q-1, q], False))
            else:
                rest.append((I(f"v_add_f32 {ts}, {ts}, {e}"), [q], False))
            if q == 15:
                rest.append((I(f"v_add_f32 {v(V_T2)}, {v(V_TS)}, {v(V_TS+1)}"), [q], False))
                rest.append((I(f"v_cmp_lt_f32 vcc, {s(S_THR)}, {v(V_T2)}"), [q], False))
            if q % 2 == 1:
                rest.append((I(f"v_cvt_pk_bf16_f32 {v(P + 4*qt + 2*kt + i // 2)}, {v(V_E + (q-1) % 8)}, {e}"), [q-1, q], False))
        return exps, rest

    def softmax_linear(self, par):
        exps, rest = self.softmax_parts(par)
        out = []
        ir = 2
        for r in range(16):
            out.append(exps[r])
            while ir < len(rest) and max(rest[ir][1]) < r:
                out.append(rest[ir][0]); ir += 1
        out += [x[0] for x in rest[ir:]]
        return out

    def body(self, p, c, A, aval=None, lid=None, extra_scalar=None, extra_valu=None):
        pl = self.plan
        par = c % 2
        gB, gJ = self.gB, self.gJ
        first = aval == -1
        do_pv = not first
        do_qk = aval is None or aval + 1 <= 63
        next_k = aval is None or aval + 2 <= 63
        SC = [[] for _ in range(64)]
        VE = [[] for _ in range(64)]
        cur = self.softmax_parts(par)
        nxt = self.softmax_parts(1 - par)
        late = []
        for g in range(64):
            for (f, e, nx) in self.ds.get(g, []):
                if nx:
                    if next_k:
                        VE[g].append(self.kread(lambda it: A(it)+2, c+2, f))
                elif f < 16:
                    if do_qk:
                        VE[g].append(self.kread(lambda it: A(it)+1, c+1, f))
                else:
                    if do_pv:
                        VE[g].append(self.vread(A, c, f, e))
            for kind, idx in self.va.get(g, []):
                if g < gJ:
                    if do_pv:
                        VE[g].append(cur[0][idx] if kind == "e" else cur[1][idx][0])
                else:
                    if kind == "r" and nxt[1][idx][2]:
                        if do_pv:
                            VE[g].append(nxt[1][idx][0])
                    elif do_qk:
                        x = nxt[0][idx] if kind == "e" else nxt[1][idx][0]
                        if first and g < 32:
                            late.append(x)
                        else:
                            VE[g].append(x)
        for g, x in (extra_valu or []):
            VE[g].append(x)
        if do_pv:
            VE[gJ].append(I(f"s_cbranch_vccnz L_fb{lid}"))
            VE[gJ].append(I(f"L_ret{lid}:"))
        def bartags(it):
            av = A(it)
            ks = []
            if av + 2 <= 63: ks.append(self.key("K", av + 2))
            if av + 1 <= 63: ks.append(self.key("V", av + 1))
            if av == 63: ks += self.wkeys("O", 0)
            return ks
        VE[gB].append(I("WAITTAG", tag=bartags))
        VE[gB].append(I("s_barrier"))
        dg = [g for g in range(64) if pl[g] == "d"]
        after = [g for g in dg if g > gB]
        before = [g for g in dg if g < gB]
        def free_sc(g, step):
            while pl[g % 64] in "dBj" or SC[g % 64]:
                g += step
            assert 0 <= g < 64
            return g
        seq = [("V", 3, jj) for jj in range(4)] + [("K", 5, jj) for jj in range(4)]
        for i, g in enumerate(after + before):
            kind, off, jj = seq[i]
            if g < gB:
                off -= 1
            if aval is not None and aval + off > 63:
                t = aval + off
                m = {("K", 64): (0, 0), ("K", 65): (0, 1), ("K", 66): (1, 0), ("K", 67): (1, 1),
                     ("V", 64): (2, 0), ("V", 65): (2, 1)}.get((kind, t))
                if m is None:
                    continue
                pre, d = self.wfill("O", m[0], m[1])
                VE[g].append(d[jj])
                if jj == 0:
                    for x in pre:
                        SC[free_sc(g - 1, -1)].append(x)
                continue
            VE[g].append(self.dma(kind, (lambda off: lambda it: A(it) + off)(off), jj))
            if jj == 0:
                SC[free_sc(g - 1, -1)].append(self.m0(kind, c + off))
            if jj == 3:
                SC[free_sc(g + 1, 1)].append(self.adv(kind))
        for g, x in (extra_scalar or []):
            SC[free_sc(g, -1)].append(x)
        WG = 2
        for f0 in range(0, 32, WG):
            fs = list(range(f0, f0 + WG))
            if f0 == 0:
                if not next_k: continue
                g = free_sc(63, -1)
            else:
                if (f0 < 16 and not do_qk) or (f0 >= 16 and not do_pv): continue
                g = free_sc(2 * f0 - 1, -1)
            SC[g].append(I("WAITFOR " + ", ".join(a(frag(f), 4) for f in fs)))
        for g in range(64):
            f, qt = g // 2, g % 2
            fr = a(frag(f), 4)
            if f < 16 and do_qk:
                Sx = V_S[1-par]
                kt, sx = f // 8, f % 8
                D = v(Sx + 8*kt + 4*qt, 4)
                C = D if sx else ("0" if first else v(V_NEGM + 4*qt, 4))
                p(f"v_mfma_f32_16x16x32_bf16 {D}, {fr}, {a(A_Q + 8*sx + 4*qt, 4)}, {C}")
            if f >= 16 and do_pv:
                O = v(V_O + 8*(f-16) + 4*qt, 4)
                C = "0" if aval == 0 else O
                p(f"v_mfma_f32_16x16x32_bf16 {O}, {fr}, {v(V_P[par] + 4*qt, 4)}, {C}")
            for x in SC[g] + VE[g]:
                p(x)
            if g == 31 and first:
                S0 = V_S[1-par]
                self.tile_max(p, S0)
                self.apply_delta(p, S0, None, init=True)
                for x in late:
                    p(x)

    def tile_max(self, p, S):
        for qt in range(2):
            T = V_T0 + qt
            rs = [S + 4*qt + i for i in range(4)] + [S + 8 + 4*qt + i for i in range(4)]
            p(f"v_max3_f32 {v(T)}, {v(rs[0])}, {v(rs[1])}, {v(rs[2])}")
            p(f"v_max3_f32 {v(T)}, {v(T)}, {v(rs[3])}, {v(rs[4])}")
            p(f"v_max3_f32 {v(T)}, {v(T)}, {v(rs[5])}, {v(rs[6])}")
            p(f"v_max_f32 {v(T)}, {v(T)}, {v(rs[7])}")
            self.xreduce(p, T, "v_max_f32")

    def xreduce(self, p, T, op):
        p(f"v_mov_b32 {v(V_T3)}, {v(T)}")
        p(f"v_permlane32_swap_b32 {v(T)}, {v(V_T3)}")
        p(f"{op} {v(T)}, {v(T)}, {v(V_T3)}")
        p(f"v_mov_b32 {v(V_T3)}, {v(T)}")
        p(f"v_permlane16_swap_b32 {v(T)}, {v(V_T3)}")
        p(f"{op} {v(T)}, {v(T)}, {v(V_T3)}")

    def apply_delta(self, p, S, Sn, init=False):
        T = lambda r: v(V_T0 + (r // 4) % 2)
        for r in range(8):
            src = "0" if init else v(V_NEGM + r)
            p(f"v_sub_f32 {v(V_NEGM+r)}, {src}, {T(r)}")
        for r in range(16):
            p(f"v_sub_f32 {v(S+r)}, {v(S+r)}, {T(r)}")
        if Sn is not None:
            for r in range(16):
                p(f"v_sub_f32 {v(Sn+r)}, {v(Sn+r)}, {T(r)}")

    def fallback(self, p, par, lid, has_next):
        p.begin_side()
        p(f"L_fb{lid}:")
        p("s_nop 15")
        S = V_S[par]; Sn = V_S[1-par]
        self.tile_max(p, S)
        for qt in range(2):
            p(f"v_max_f32 {v(V_T0+qt)}, 0, {v(V_T0+qt)}")
        self.apply_delta(p, S, Sn if has_next else None)
        for qt in range(2):
            p(f"v_sub_f32 {v(V_T0+qt)}, 0, {v(V_T0+qt)}")
            p(f"v_exp_f32 {v(V_T0+qt)}, {v(V_T0+qt)}")
            p(f"v_mul_f32 {v(V_L+qt)}, {v(V_L+qt)}, {v(V_T0+qt)}")
        for r in range(128):
            p(f"v_mul_f32 {v(V_O+r)}, {v(V_O+r)}, {v(V_T0 + (r // 4) % 2)}")
        for x in self.softmax_linear(par):
            p(x)
        p("s_nop 1")
        p(f"s_branch L_ret{lid}")
        p.end_side()

    def gemm_phase(self, p, which, nst, nm, mfma_fn, fills, bartags, valu, xds):
        LEAD = self.o.get("lead", 18)
        SP = self.o.get("sp", 3)
        G = 2 * nm
        N = nst * G
        gb = G - LEAD - 1
        kindg = ["m"] * (N + 64)
        SC = [[] for _ in range(N + 64)]
        VE = [[] for _ in range(N + 64)]
        tail = []
        for i in range(nst):
            bt = bartags(i)
            if bt is not None:
                g = i * G + gb
                kindg[g] = "B"
                VE[g] = [I("WAITTAG", tag=bt), I("s_barrier")]
        for i in range(nst):
            k = 0
            for pre, d, post in fills(i):
                for jj, x in enumerate(d):
                    g = i * G + gb + 3 + k * SP
                    k += 1
                    if g >= N:
                        if jj == 0: tail += pre
                        tail.append(x)
                        if jj == len(d) - 1: tail += post
                        continue
                    assert kindg[g] == "m" and kindg[g-1] == "m" and kindg[g-2] == "m", (i, g)
                    kindg[g] = "d"
                    VE[g] = [x]
                    if jj == 0:
                        for kk, y in enumerate(pre):
                            SC[g - len(pre) + kk].append(y)
                    if jj == len(d) - 1:
                        if g + 1 < N: SC[g + 1] += post
                        else: tail += post
        dsq = []
        for i in range(nst):
            for t in range(nm):
                f = i * nm + t
                for e in range(2):
                    dsq.append((i * G + 2 * t + e - LEAD, self.wread(which, i, t, e, f), i * G + 2 * t))
        for i in range(nst):
            xs = xds(i)
            lo = max(0, (i - 1) * G + gb + 1); hi = i * G + gb - 4
            for k, x in enumerate(xs):
                g = lo + (k * (hi - lo)) // len(xs)
                if x.kind == "ds_write":
                    while kindg[g] != "m": g += 1
                    kindg[g] = "x"
                    VE[g] = [x]
                else:
                    dsq.append((g, x, i * G + gb + 6))
        dsq.sort(key=lambda z: z[0])
        for (g, x, c) in dsq:
            if g < 0: p(x)
        dsq = [z for z in dsq if z[0] >= 0]
        nds = [0] * (N + 64)
        q = 0
        minlead = 99
        for g in range(N):
            if kindg[g] != "m":
                continue
            while q < len(dsq) and dsq[q][0] <= g and nds[g] < 2:
                VE[g].append(dsq[q][1]); nds[g] += 1
                minlead = min(minlead, dsq[q][2] - g)
                q += 1
        assert q == len(dsq)
        assert minlead >= 7, minlead
        for i in range(nst):
            ops = valu(i)
            slots = []
            for g in range(i * G, (i + 1) * G):
                if kindg[g] == "m":
                    slots += [g] * (2 - nds[g])
            mg = [g for g in range(i * G, (i + 1) * G) if kindg[g] == "m"]
            k = 0
            while len(slots) < len(ops):
                slots.append(mg[(k * 7) % len(mg)]); k += 1
            slots.sort()
            for k, x in enumerate(ops):
                VE[slots[(k * len(slots)) // len(ops)]].append(x)
        for f0 in range(2, nst * nm, 2):
            g = 2 * f0 - 1
            while kindg[g] in "dB" or SC[g]:
                g -= 1
            SC[g].append(I("WAITFOR " + ", ".join(a(frag(f), 4) for f in (f0, f0 + 1))))
        for g in range(N):
            i, t, qt = g // G, (g % G) // 2, g % 2
            p(mfma_fn(i, t, qt, a(frag(i * nm + t), 4)))
            abl = self.o.get("gabl", "")
            for x in SC[g] + VE[g]:
                if "D" in abl and x.kind == "dma": continue
                if "B" in abl and x.kind == "barrier": continue
                if "R" in abl and x.kind == "ds_read": continue
                if "W" in abl and x.kind == "ds_write": continue
                if "V" in abl and x.kind == "valu" and ("mul" in x.mn or "cvt" in x.mn or "fma" in x.mn): continue
                p(x)
        for x in tail:
            p(x)


def gen_attn(opts=None):
    opts = opts or {}
    name = opts.get("name", "attn_kernel")
    p = Prog(name)
    at = Attn(opts)
    thr = opts.get("thr", 0x5f800000)
    p(f"""
    s_cmp_ge_u32 s2, 256
    s_cbranch_scc1 L_end{name}
    s_load_dwordx8 s[4:11], s[0:1], 8
    s_load_dwordx2 s[12:13], s[0:1], 112
    v_lshrrev_b32 v1, 6, v0
    v_readfirstlane_b32 {s(S_W)}, v1
    s_and_b32 {s(S_J)}, s2, 7
    s_lshr_b32 {s(S_PB)}, s2, 3
    v_and_b32 v1, 63, v0
    v_lshlrev_b32 {v(V_LIN)}, 4, v1
    s_lshr_b32 {s(S_HD)}, {s(S_W)}, 1
    s_and_b32 s14, {s(S_W)}, 1
    s_lshl_b32 {s(S_QT)}, {s(S_PB)}, 2
    s_lshl_b32 s14, s14, 1
    s_add_u32 {s(S_QT)}, {s(S_QT)}, s14
    s_waitcnt lgkmcnt(0)
    """)
    stamp(p, 0)
    srd(p, SRD_W, 12, 13, WS_USED)
    srd(p, SRD_Q, 8, 9, 448 * 8192)
    def extras():
        if opts.get("touch", True):
            p(f"""
            v_lshrrev_b32 v1, 3, v0
            v_min_u32 v1, 13, v1
            v_lshlrev_b32 v1, 13, v1
            v_and_b32 v2, 7, v0
            v_lshl_add_u32 v1, v2, 7, v1
            s_mul_i32 s53, {s(S_PB)}, {14*8192}
            s_add_u32 s53, s53, {s(S_WBASE)}
            buffer_load_dword v{V_O+127}, v1, {s(SRD_Q,4)}, s53 offen
            """)
        if opts.get("cpf", True):
            code_prefetch(p, name, f"L_end{name}", 12, 1, V_O + 126)
    p(f"s_lshl_b32 {s(S_WBASE)}, {s(S_J)}, 10")
    extras()
    V_MRD = 3
    p(f"""
    s_mul_i32 s14, {s(S_QT)}, {14*1024}
    s_mul_i32 s15, {s(S_HD)}, {7*1024}
    s_add_u32 s14, s14, s15
    s_add_u32 s14, s14, {WS_XN}
    s_add_u32 s15, s14, {14*1024}
    s_add_u32 s50, s14, 4096
    s_add_u32 s51, s15, 4096
    s_lshl_b32 s52, {s(S_W)}, 11
    s_add_u32 s52, s52, {MODL}
    s_mov_b32 m0, s52
    s_mul_i32 s53, {s(S_HD)}, 896
    s_add_u32 s54, s53, {WS_MOD + 1792 - 1024}
    """)
    mt = ("dma", ("M", 0), "private")
    p(f"buffer_load_dwordx4 {v(V_LIN)}, {s(SRD_W,4)}, s53 offen offset:{WS_MOD} lds", tag=mt)
    p(f"buffer_load_dwordx4 {v(V_LIN)}, {s(SRD_W,4)}, s54 offen offset:1024 lds", tag=mt)
    for ks in range(7):
        for qt in range(2):
            so = (14 + qt) if ks < 4 else (50 + qt)
            p(f"buffer_load_dwordx4 {v(V_H+8*ks+4*qt,4)}, {v(V_LIN)}, {s(SRD_W,4)}, s{so} offen offset:{(ks % 4)*1024}")
    p(f"""
    s_mul_i32 {s(S_M0V)}, {s(S_W)}, 4160
    s_lshl_b32 {s(S_M0K)}, {s(S_W)}, 12
    s_lshl_b32 {s(S_WBASE)}, {s(S_J)}, 10
    v_bfe_u32 v1, v0, 5, 1              ; hh
    v_and_b32 v2, 31, v0
    v_lshlrev_b32 {v(V_TMP)}, 1, v1
    v_xor_b32 v2, v2, {v(V_TMP)}        ; chunk
    v_lshlrev_b32 v1, 3, v1
    v_add_u32 v1, {s(S_W)}, v1          ; 8hh + w
    v_lshlrev_b32 v1, 13, v1
    v_lshl_add_u32 {v(V_WDMA)}, v2, 4, v1
    """)
    for jj in range(1, 4):
        p(f"v_add_u32 {v(V_WDMA+jj)}, {(16*(jj % 2) + 4*(jj//2))*8192 - jj*1024}, {v(V_WDMA)}")
    def emit_wfill(which, st):
        for hf in range(2):
            pre, d = at.wfill(which, st, hf)
            p.extend(pre); p.extend(d)
    emit_wfill("Q", 0)
    p(f"""
    v_bfe_u32 v1, v0, 2, 2
    v_mul_u32_u24 v1, 4160, v1
    v_and_b32 v2, 3, v0
    v_lshl_add_u32 v1, v2, 3, v1
    v_bfe_u32 v2, v0, 4, 2
    v_lshl_add_u32 v1, v2, 9, v1
    v_lshlrev_b32 v{V_MRD}, 5, v2
    v_add_u32 v{V_MRD}, s52, v{V_MRD}
    v_bfe_u32 v2, v0, 4, 1
    v_lshl_add_u32 {v(V_TMP)}, v2, 5, v1
    s_mul_i32 s14, {s(S_HD)}, {SLOT}
    v_add_u32 {v(V_WRD)}, s14, {v(V_TMP)}
    v_xor_b32 {v(V_WRD+1)}, 32, {v(V_WRD)}
    v_add_u32 {v(V_WRD+2)}, {4*SLOT}, {v(V_WRD)}
    v_add_u32 {v(V_WRD+3)}, {4*SLOT}, {v(V_WRD+1)}
    s_lshl_b32 s14, {s(S_W)}, 12
    s_add_u32 s14, s14, {8*SLOT}
    v_add_u32 {v(V_XW)}, s14, {v(V_LIN)}
    v_xor_b32 {v(V_XR)}, 0x2000, {v(V_XW)}
    """)
    MB = 72
    TM = 120
    def modreads(ks):
        M = MB + 16 * (ks % 3)
        rt = ("rd", ("M", 0), "private")
        return [I(f"ds_read_b128 {v(M + 8*k + 4*h, 4)}, v{V_MRD} offset:{1024*(1-k) + 128*ks + 16*h}", tag=rt)
                for k in range(2) for h in range(2)]
    def modulate(ks, pk):
        M = MB + 16 * (ks % 3)
        out = []
        for qt in range(2):
            for d in range(4):
                x = V_H + 8*ks + 4*qt + d
                t = TM + 2 * d
                out.append(I(f"v_lshlrev_b32 v{t}, 16, v{x}"))
                out.append(I(f"v_and_b32 v{t+1}, 0xffff0000, v{x}"))
                if pk:
                    out.append(I(f"v_pk_fma_f32 {v(t,2)}, {v(t,2)}, {v(M+2*d,2)}, {v(M+8+2*d,2)}"))
                else:
                    out.append(I(f"v_fma_f32 v{t}, v{t}, v{M+2*d}, v{M+8+2*d}"))
                    out.append(I(f"v_fma_f32 v{t+1}, v{t+1}, v{M+2*d+1}, v{M+8+2*d+1}"))
                out.append(I(f"v_cvt_pk_bf16_f32 v{x}, v{t}, v{t+1}"))
        return out
    NUP = opts.get("nup", 4)
    stamp(p, 1)
    p(I("WAITTAG", tag=[("M", 0)]))
    stamp(p, 2)
    p.extend(modreads(0)); p.extend(modreads(1)); p.extend(modreads(2))
    assert NUP >= 4
    for ks in range(NUP):
        p.extend(modulate(ks, True))
        if ks + 3 < 7:
            p.extend(modreads(ks + 3))
        if ks == 0:
            emit_wfill("Q", 1)
        if ks == 2:
            emit_wfill("Q", 2)
    stamp(p, 3)
    p(I("WAITTAG", tag=at.wkeys("Q", 0)))
    p("s_barrier")
    stamp(p, 4)
    srd(p, SRD_O, 10, 11, 4096 * 896)
    p(f"""
    s_lshl_b32 s14, {s(S_J)}, 20
    s_add_u32 {s(SRD_K)}, s4, s14
    s_addc_u32 {s(SRD_K+1)}, s5, 0
    s_mov_b32 {s(SRD_K+2)}, 0x100000
    s_mov_b32 {s(SRD_K+3)}, 0x20000
    s_add_u32 {s(SRD_V)}, s6, s14
    s_addc_u32 {s(SRD_V+1)}, s7, 0
    s_mov_b32 {s(SRD_V+2)}, 0x100000
    s_mov_b32 {s(SRD_V+3)}, 0x20000
    s_mov_b32 {s(S_KOFF)}, 0
    s_mov_b32 {s(S_VOFF)}, 0
    s_mov_b32 {s(S_THR)}, {thr}
    s_lshl_b32 s15, {s(S_W)}, 3
    """)
    setup = f"""
    v_bfe_u32 v1, v0, 5, 1
    v_and_b32 v2, 31, v0
    v_add_u32 v16, s15, v1
    v_lshlrev_b32 v17, 9, v16
    v_and_b32 v16, 15, v16
    v_xor_b32 v16, v16, v2
    v_lshl_add_u32 {v(V_KDMA)}, v16, 4, v17
    v_xor_b32 {v(V_KDMA+1)}, 32, {v(V_KDMA)}
    v_xor_b32 {v(V_KDMA+2)}, 64, {v(V_KDMA)}
    v_xor_b32 {v(V_KDMA+3)}, 96, {v(V_KDMA)}
    v_lshlrev_b32 v16, 2, v1
    v_add_u32 v16, {s(S_W)}, v16
    v_lshlrev_b32 v16, 9, v16
    v_lshlrev_b32 v17, 1, v1
    v_xor_b32 v17, v17, v2
    v_lshl_add_u32 {v(V_VDMA)}, v17, 4, v16
    v_add_u32 {v(V_VDMA+1)}, 3072, {v(V_VDMA)}
    v_add_u32 {v(V_VDMA+2)}, 6144, {v(V_VDMA)}
    v_add_u32 {v(V_VDMA+3)}, 9216, {v(V_VDMA)}
    v_and_b32 v16, 15, v0
    v_bfe_u32 v17, v0, 4, 2
    v_xor_b32 v17, v17, v16
    v_lshlrev_b32 v16, 9, v16
    v_add_u32 v16, {4*SLOT}, v16
    v_lshl_add_u32 {v(V_KRD)}, v17, 4, v16
    v_xor_b32 {v(V_KRD+1)}, 64, {v(V_KRD)}
    v_xor_b32 {v(V_KRD+2)}, 0x80, {v(V_KRD)}
    v_xor_b32 {v(V_KRD+3)}, 0xc0, {v(V_KRD)}
    v_mov_b32 {v(V_VRD)}, {v(V_TMP)}
    v_xor_b32 {v(V_VRD+1)}, 32, {v(V_TMP)}
    v_mov_b32 {v(V_L)}, 0
    v_mov_b32 {v(V_L+1)}, 0
    """
    setup = [I(x.strip()) for x in setup.strip().split("\n")]
    assert (4 * SLOT) % 256 == 0
    def q_mfma(i, t, qt, fr):
        D = v(V_O + 8*t + 4*qt, 4)
        Bop = v(V_H + 8*i + 4*qt, 4) if i < 7 else a(A_HP + 8*(i-7) + 4*qt, 4)
        return f"v_mfma_f32_16x16x32_bf16 {D}, {fr}, {Bop}, {D if i else 0}"
    def q_fills(i):
        st = i + 3
        if st < 14:
            return [at.wfill("Q", st, hf) + ([],) for hf in range(2)]
        if i == 11: return [at.kvfill("K", 0), at.kvfill("K", 1)]
        if i == 12: return [at.kvfill("K", 2)]
        return [at.kvfill("V", 0), at.kvfill("V", 1, range(at.nafter))]
    def q_bar(i):
        ks = at.wkeys("Q", i + 1) if i < 13 else [at.key("K", 0)]
        i -= 1
        if 0 <= i < 8:
            ks = ks + [(8, i // 2)] if i % 2 == 0 else ks + [("rd", 8, i // 2)]
        return ks
    def q_valu(i):
        out = []
        if NUP + i < 7:
            out += modulate(NUP + i, False)
        if i in (8, 9, 10):
            n = len(setup)
            out += setup[(i-8)*n//3:(i-7)*n//3]
        return out
    def q_xds(i):
        out = []
        i -= 1
        if 0 <= i < 8:
            rho = i // 2
            for k in range(4):
                u, qt = 2*rho + k // 2, k % 2
                if u >= 7: continue
                if i % 2 == 0:
                    out.append(I(f"ds_write_b128 {v(V_XW)}, {v(V_H + 8*u + 4*qt, 4)} offset:{1024*k}", tag=("wr", (8, rho))))
                else:
                    out.append(I(f"ds_read_b128 {a(A_HP + 8*u + 4*qt, 4)}, {v(V_XR)} offset:{1024*k}", tag=("rd", (8, rho))))
        return out
    at.gemm_phase(p, "Q", 14, 16, q_mfma, q_fills, q_bar, q_valu, q_xds)
    stamp(p, 5)
    for g in range(at.gB + 1, 64):
        for (f, e, nx) in at.ds.get(g, []):
            p(at.kread(lambda it: 0, 0, f))
    p(f"""
    v_bfe_u32 v1, v0, 5, 1
    v_and_b32 v2, 31, v0
    v_lshlrev_b32 v3, 1, v1
    v_xor_b32 v3, v3, v2
    v_lshlrev_b32 v1, 2, v1
    v_add_u32 v1, {s(S_W)}, v1
    v_mul_u32_u24 v1, 896, v1
    v_lshl_add_u32 v1, v3, 4, v1
    v_mov_b32 v3, 0x40000000
    v_cmp_gt_u32 vcc, 28, v2
    v_cndmask_b32 {v(V_WDMA)}, v3, v1, vcc
    v_add_u32 {v(V_WDMA+1)}, {8*896 - 1024}, {v(V_WDMA)}
    v_add_u32 {v(V_WDMA+2)}, {16*896 - 2048}, {v(V_WDMA)}
    v_add_u32 {v(V_WDMA+3)}, {24*896 - 3072}, {v(V_WDMA)}
    s_mul_i32 {s(S_WBASE)}, {s(S_J)}, {512*896}
    """)
    assert (8 * SLOT) & 0x3fff == (8 * SLOT) % 16384 and ((8 * SLOT) % 16384) + 4096 <= 8192
    for sx in range(8):
        for qt in range(2):
            X = V_O + 16*sx + 4*qt
            Y = X + 8
            p(f"v_cvt_pk_bf16_f32 v{X}, v{X}, v{X+1}")
            p(f"v_cvt_pk_bf16_f32 v{X+1}, v{X+2}, v{X+3}")
            p(f"v_cvt_pk_bf16_f32 v{Y}, v{Y}, v{Y+1}")
            p(f"v_cvt_pk_bf16_f32 v{Y+1}, v{Y+2}, v{Y+3}")
        for qt in range(2):
            X = V_O + 16*sx + 4*qt
            Y = X + 8
            p(f"v_permlane32_swap_b32 v{X}, v{Y}")
            p(f"v_permlane32_swap_b32 v{X+1}, v{Y+1}")
        for qt in range(2):
            X = V_O + 16*sx + 4*qt
            Y = X + 8
            p(f"v_permlane16_swap_b32 v{X}, v{Y}")
            p(f"v_permlane16_swap_b32 v{X+1}, v{Y+1}")
        for qt in range(2):
            X = V_O + 16*sx + 4*qt
            Y = X + 8
            for k, r in enumerate((X, X+1, Y, Y+1)):
                p(f"v_accvgpr_write_b32 a{A_Q + 8*sx + 4*qt + k}, v{r}")
    stamp(p, 6)
    lid = [opts.get("lid0", 0)]
    def B(c, fn, aval=None, **kw):
        at.body(p, c, fn, aval=aval, lid=lid[0], **kw)
        if aval != -1:
            at.fallback(p, c % 2, lid[0], aval != 63)
        lid[0] += 1
    B(3, lambda it: -1, aval=-1)
    if opts.get("touch", True):
        p(f"""
        v_min_u32 v1, 111, v0
        v_lshlrev_b32 v1, 7, v1
        s_mul_i32 s53, {s(S_PB)}, {112*128}
        s_add_u32 s53, s53, {s(S_WBASE)}
        buffer_load_dword v2, v1, {s(SRD_O,4)}, s53 offen
        """)
    B(0, lambda it: 0, aval=0, extra_scalar=[(60, I(f"s_mov_b32 {s(S_CNT)}, 14"))])
    p.begin_loop(14)
    p(f"L_loop{name}:")
    for c in range(1, 5):
        ex = [(60, I(f"s_sub_u32 {s(S_CNT)}, {s(S_CNT)}, 1"))] if c == 2 else None
        B(c % 4, (lambda c: lambda it: 4*it + c)(c), extra_scalar=ex)
    p(f"s_cmp_lg_u32 {s(S_CNT)}, 0")
    p(f"s_cbranch_scc1 L_loop{name}")
    p.end_loop()
    for av in range(57, 64):
        B(av % 4, (lambda av: lambda it: av)(av), aval=av)
    stamp(p, 7)
    for qt in range(2):
        at.xreduce(p, V_L + qt, "v_add_f32")
        p(f"v_rcp_f32 v{2+qt}, {v(V_L+qt)}")
    def conv(u):
        out = []
        for qt in range(2):
            X = V_O + 16*u + 4*qt
            Y = X + 8
            for r in (X, X+1, X+2, X+3, Y, Y+1, Y+2, Y+3):
                out.append(I(f"v_mul_f32 v{r}, v{r}, v{2+qt}"))
            out.append(I(f"v_cvt_pk_bf16_f32 v{X}, v{X}, v{X+1}"))
            out.append(I(f"v_cvt_pk_bf16_f32 v{X+1}, v{X+2}, v{X+3}"))
            out.append(I(f"v_cvt_pk_bf16_f32 v{X+2}, v{Y}, v{Y+1}"))
            out.append(I(f"v_cvt_pk_bf16_f32 v{X+3}, v{Y+2}, v{Y+3}"))
        return out
    p.extend(conv(0)); p.extend(conv(1))
    ACC = V_H
    def o_mfma(i, t, qt, fr):
        D = v(ACC + 8*t + 4*qt, 4)
        Bop = v(V_O + 16*i + 4*qt, 4) if i < 8 else a(A_Q + 8*(i-8) + 4*qt, 4)
        return f"v_mfma_f32_16x16x32_bf16 {D}, {fr}, {Bop}, {D if i else 0}"
    def o_fills(i):
        st = i + 3
        return [at.wfill("O", st, hf) + ([],) for hf in range(2)] if st < 16 else []
    def o_bar(i):
        if i == 15: return None
        ks = at.wkeys("O", i + 1)
        i -= 1
        if 0 <= i < 8:
            ks = ks + [(8, 10 + i // 2)] if i % 2 == 0 else ks + [("rd", 8, 10 + i // 2)]
        return ks
    def o_valu(i):
        return conv(i + 2) if i + 2 < 8 else []
    def o_xds(i):
        i -= 1
        if i >= 8 or i < 0: return []
        rho = i // 2
        out = []
        for k in range(4):
            u, qt = 2*rho + k // 2, k % 2
            if i % 2 == 0:
                out.append(I(f"ds_write_b128 {v(V_XW)}, {v(V_O + 16*u + 4*qt, 4)} offset:{1024*k}", tag=("wr", (8, 10 + rho))))
            else:
                out.append(I(f"ds_read_b128 {a(A_Q + 8*u + 4*qt, 4)}, {v(V_XR)} offset:{1024*k}", tag=("rd", (8, 10 + rho))))
        return out
    at.gemm_phase(p, "O", 16, 14, o_mfma, o_fills, o_bar, o_valu, o_xds)
    stamp(p, 8)
    p(f"""
    s_lshl_b32 s14, {s(S_J)}, 7
    s_add_u32 s14, s14, {s(S_QT)}
    s_mul_i32 s14, s14, {14*1024}
    s_mul_i32 s15, {s(S_HD)}, {7*1024}
    s_add_u32 s14, s14, s15
    s_add_u32 s14, s14, {WS_PART}
    s_add_u32 s15, s14, {14*1024}
    s_add_u32 s50, s14, 4096
    s_add_u32 s51, s15, 4096
    """)
    for uu in range(7):
        for qt in range(2):
            X = ACC + 16*uu + 4*qt
            Y = X + 8
            p(f"v_cvt_pk_bf16_f32 v{X}, v{X}, v{X+1}")
            p(f"v_cvt_pk_bf16_f32 v{X+1}, v{X+2}, v{X+3}")
            p(f"v_cvt_pk_bf16_f32 v{X+2}, v{Y}, v{Y+1}")
            p(f"v_cvt_pk_bf16_f32 v{X+3}, v{Y+2}, v{Y+3}")
            so = (14 + qt) if uu < 4 else (50 + qt)
            p(f"buffer_store_dwordx4 {v(X,4)}, {v(V_LIN)}, {s(SRD_W,4)}, s{so} offen offset:{(uu % 4)*1024}")
    stamp_dump(p, opts.get("slot", 1), 10, SRD_W, S_W)
    p(f"L_end{name}:")
    p("s_endpgm")
    if opts.get("gabl"):
        p.check_lds = lambda: None
    p.finalize()
    return p, f"; @launch kernel={name} grid=(256,1,1) block=(256,1,1) lds={LDS_BYTES}\n"
```

```python
import sys
sys.path.insert(0, "work")
from asmlib import *
from layout import *
from k_prep import srd, f2u, stamp, stamp_dump, code_prefetch

def gen_g(opts=None):
    opts = opts or {}
    p = Prog("g_kernel")
    RA = 6
    VB = 16
    RS = 48
    VDB = 64
    VRB = 72
    Z1 = 80
    ACC = 128
    A_A = 0
    A_MU = 168
    WR = 32768
    PB0 = 4 * WR
    p(f"""
    s_cmp_ge_u32 s2, 256
    s_cbranch_scc1 L_g_end
    s_load_dwordx4 s[4:7], s[0:1], 56
    s_load_dwordx2 s[8:9], s[0:1], 112
    v_lshrrev_b32 v1, 6, v0
    v_readfirstlane_b32 s12, v1          ; wave
    s_and_b32 s13, s2, 7                 ; x
    s_lshr_b32 s14, s2, 3                ; i
    s_and_b32 s15, s13, 1
    s_lshl_b32 s15, s15, 2
    s_and_b32 s32, s14, 3
    s_add_u32 s32, s32, s15              ; fb
    s_lshr_b32 s15, s13, 1
    s_lshl_b32 s15, s15, 3
    s_lshr_b32 s33, s14, 2
    s_add_u32 s33, s33, s15              ; tb
    v_and_b32 v1, 63, v0
    v_lshlrev_b32 v2, 4, v1              ; lane*16
    v_and_b32 v3, 15, v0                 ; n
    v_bfe_u32 v8, v0, 4, 2               ; g
    v_lshlrev_b32 v10, 6, v1
    v_lshrrev_b32 v9, 3, v1
    v_lshlrev_b32 v9, 12, v9
    v_and_b32 v11, 7, v0
    v_xor_b32 v11, v11, v8
    v_lshl_add_u32 v9, v11, 4, v9
    v_xor_b32 v11, 64, v9                ; odd m
    s_waitcnt lgkmcnt(0)
    """)
    stamp(p, 0)
    srd(p, 16, 4, 5, 2048 * 4096)
    srd(p, 20, 6, 7, 4096)
    srd(p, 28, 8, 9, WS_USED)
    p(f"""
    s_lshl_b32 s34, s12, 12
    s_add_u32 s34, s34, {WS_STATS}
    """)
    ST = ACC
    for k in range(4):
        p(f"buffer_load_dwordx4 {v(ST+4*k,4)}, v10, s[28:31], s34 offen offset:{16*k}")
    for m in range(8):
        nl = m // 2
        if m % 2 == 0:
            p(f"s_add_u32 s34, s12, {nl}")
            p(f"s_and_b32 s34, s34, 3")
            p(f"s_lshl_b32 s34, s34, 16")
        p(f"s_add_u32 s35, s34, {(m % 2)*32768 + 4096 - (m % 4)*1024}")
        p(f"v_add_u32 v{VDB+m}, s35, v{9 if m % 2 == 0 else 11}")
    p(f"""
    s_lshl_b32 s35, s33, 18
    s_lshl_b32 s34, s12, 10
    s_add_u32 s35, s35, s34
    s_sub_u32 s16, s16, 4096
    s_subb_u32 s17, s17, 0
    s_add_u32 s18, s18, 4096
    s_lshl_b32 s36, s32, 6
    s_lshl_b32 s34, s12, 4
    s_add_u32 s36, s36, s34
    s_mul_i32 s36, s36, 7168
    s_add_u32 s36, s36, {WS_ZZ}
    s_add_u32 s37, s36, 4096
    s_lshl_b32 s41, s12, 15
    """)
    def bdma(dd, half):
        pre = [I(f"s_add_u32 m0, s41, {(dd % 4)*8192 + half*4096}")]
        out = [I(f"buffer_load_dwordx4 v{VDB+4*half+k}, s[16:19], s35 offen offset:{k*1024} lds",
                 tag=("dma", (dd % 4, dd), "private")) for k in range(4)]
        post = [I("s_add_u32 s35, s35, 128")] if half else []
        return pre, out, post
    def aload(ks):
        out = [I(f"buffer_load_dwordx4 {a(A_A + 28*(ks % RA) + 4*mt, 4)}, v2, s[28:31], s{36 + mt//4} offen offset:{(mt % 4)*1024}")
               for mt in range(7)]
        post = [I("s_add_u32 s36, s36, 7168"), I("s_add_u32 s37, s37, 7168")]
        return out, post
    def emit(x):
        for lst in x: p.extend(lst)
    emit(bdma(0, 0)); emit(bdma(0, 1)); emit(aload(0))
    code_prefetch(p, "g", "L_g_end", 6, 12, 13)
    emit(aload(1)); emit(bdma(1, 0)); emit(bdma(1, 1)); emit(aload(2)); emit(aload(3)); emit(bdma(2, 0)); emit(bdma(2, 1)); emit(aload(4))
    MU = ACC + 16; R = ACC + 24; T = ACC + 32
    p(f"v_mov_b32 v11, {f2u(1e-5)}")
    for k in range(8):
        p(f"v_mul_f32 v{MU+k}, {f2u(1.0/896)}, v{ST+2*k}")
        p(f"v_mul_f32 v{R+k}, {f2u(1.0/896)}, v{ST+2*k+1}")
        p(f"v_fma_f32 v{R+k}, -v{MU+k}, v{MU+k}, v{R+k}")
        p(f"v_max_f32 v{R+k}, 0, v{R+k}")
        p(f"v_add_f32 v{R+k}, v11, v{R+k}")
        p(f"v_rsq_f32 v{R+k}, v{R+k}")
    for k in range(4):
        p(f"v_cvt_pk_bf16_f32 v{T+k}, v{MU+2*k}, v{MU+2*k+1}")
        p(f"v_lshlrev_b32 v4, 16, v{T+k}")
        p(f"v_and_b32 v5, 0xffff0000, v{T+k}")
        p(f"v_sub_f32 v4, v{MU+2*k}, v4")
        p(f"v_sub_f32 v5, v{MU+2*k+1}, v5")
        p(f"v_cvt_pk_bf16_f32 v{T+4+k}, v4, v5")
    p(f"""
    s_lshl_b32 s34, s12, 12
    s_add_u32 s34, s34, {PB0}
    v_lshlrev_b32 v4, 5, v1
    v_add_u32 v4, s34, v4
    v_add_u32 v5, s34, v2
    """)
    tg = ("wr", ("P", 0), "private")
    p(f"ds_write_b128 v4, {v(R,4)}", tag=tg)
    p(f"ds_write_b128 v4, {v(R+4,4)} offset:16", tag=tg)
    p(f"ds_write_b128 v5, {v(T,4)} offset:2048", tag=tg)
    p(f"ds_write_b128 v5, {v(T+4,4)} offset:3072", tag=tg)
    p(f"""
    v_lshlrev_b32 v14, 5, v8
    v_add_u32 v14, s34, v14
    v_and_b32 v15, 1, v0
    v_lshlrev_b32 v15, 10, v15
    v_lshl_add_u32 v15, v8, 4, v15
    v_add_u32 v15, s34, v15
    v_lshrrev_b32 v4, 1, v3
    v_xor_b32 v4, v4, v8
    v_lshlrev_b32 v4, 4, v4
    v_lshl_add_u32 v4, v3, 7, v4
    v_add_u32 v{VRB}, s41, v4
    v_xor_b32 v{VRB+1}, 64, v{VRB}
    s_waitcnt lgkmcnt(0)
    """)
    rt = ("rd", ("P", 0), "private")
    def rs_reads(ks):
        return [I(f"ds_read_b128 {v(RS + 8*(ks % 2) + 4*h, 4)}, v14 offset:{128*ks + 16*h}", tag=rt) for h in range(2)]
    def mu_read(ks):
        return I(f"ds_read_b128 {a(A_MU + 4*(ks % 2), 4)}, v15 offset:{2048 + 64*ks}", tag=rt)
    def b_reads(ks):
        dd = ks // 2
        return [I(f"ds_read_b128 {v(VB + 16*(ks % 2) + 4*nl, 4)}, v{VRB + ks % 2} offset:{(dd % 4)*8192 + nl*2048}",
                  tag=("rd", (dd % 4, dd), "private")) for nl in range(4)]
    def scale(ks):
        out = []
        for nl in range(4):
            for d in range(4):
                x = VB + 16*(ks % 2) + 4*nl + d
                t = 4 + 2 * (d % 4)
                r = RS + 8*(ks % 2) + 2*d
                out.append(I(f"v_lshlrev_b32 v{t}, 16, v{x}"))
                out.append(I(f"v_and_b32 v{t+1}, 0xffff0000, v{x}"))
                out.append(I(f"v_mul_f32 v{t}, v{t}, v{r}"))
                out.append(I(f"v_mul_f32 v{t+1}, v{t+1}, v{r+1}"))
                out.append(I(f"v_cvt_pk_bf16_f32 v{x}, v{t}, v{t+1}"))
        return out
    p.extend(rs_reads(0)); p.extend(rs_reads(1)); p(mu_read(0))
    p(I("WAITTAG", tag=[(0, 0)]))
    p.extend(b_reads(0))
    p.extend(scale(0))
    stamp(p, 1)
    for ks in range(16):
        if ks == 8: stamp(p, 2)
        SC = [[] for _ in range(32)]
        VE = [[] for _ in range(32)]
        kind = ["m"] * 32
        vm = []
        dd = (ks + 1) // 2 + 3 if False else None
        hb = ks + 6
        pre = post = []
        if hb // 2 < 8:
            pre, o, post = bdma(hb // 2, hb % 2)
            vm += o
        post2 = []
        if ks + 5 < 16:
            o, post2 = aload(ks + 5)
            vm += o
        if ks == 13:
            p(f"""
            s_lshr_b32 s34, s12, 1
            s_lshl_b32 s38, s33, 1
            s_add_u32 s34, s34, s38
            s_lshl_b32 s38, s32, 6
            s_add_u32 s34, s34, s38
            s_mul_i32 s34, s34, 7168
            s_and_b32 s38, s12, 1
            s_lshl_b32 s38, s38, 3
            s_add_u32 s34, s34, s38
            s_add_u32 s38, s34, {WS_Z1}
            s_add_u32 s39, s38, 4096
            s_lshl_b32 s34, s33, 7
            s_lshl_b32 s40, s12, 5
            s_add_u32 s40, s40, s34
            v_lshlrev_b32 v3, 1, v3
            """)
            vm += [I(f"buffer_load_dwordx2 {v(Z1 + 2*ft, 2)}, v2, s[28:31], s{38 + ft//4} offen offset:{(ft % 4)*1024}") for ft in range(7)]
            vm += [I(f"buffer_load_ushort v{Z1+14}, v3, s[20:23], s40 offen")]
        for k, x in enumerate(vm):
            g = 6 + (k * 24) // 11
            kind[g] = "d"; VE[g] = [x]
        SC[5] = list(pre)
        SC[29] = list(post); SC[30] = post2[:1]; SC[31] = post2[1:]
        mg = [g for g in range(32) if kind[g] == "m"]
        if ks + 1 < 16:
            if (ks + 1) % 2 == 0:
                SC[0].append(I("WAITTAG", tag=[(((ks+1)//2) % 4, (ks+1)//2)]))
            br = b_reads(ks + 1)
            for k in range(4):
                VE[k].append(br[k])
            VE[4].append(mu_read(ks + 1))
            ops = scale(ks + 1)
            mv = [g for g in mg if g >= 5]
            for k, x in enumerate(ops):
                VE[mv[(k * len(mv)) // len(ops)]].append(x)
            SC[28].append(I(f"WAITFOR {a(A_A + 28*((ks+1) % RA), 28)}, {a(A_MU + 4*((ks+1) % 2), 4)}"))
        if ks + 2 < 16:
            rr = rs_reads(ks + 2)
            mv = [g for g in mg if g >= 5]
            VE[mv[1]].insert(0, rr[0])
            VE[mv[2]].insert(0, rr[1])
        for g in range(32):
            mt, nl = g // 4, g % 4
            D = v(ACC + 16*mt + 4*nl, 4)
            Aop = a(A_A + 28*(ks % RA) + 4*mt, 4) if mt < 7 else a(A_MU + 4*(ks % 2), 4)
            p(f"v_mfma_f32_16x16x32_bf16 {D}, {Aop}, {v(VB + 16*(ks % 2) + 4*nl, 4)}, {D if ks else 0}")
            for x in SC[g] + VE[g]:
                p(x)
    stamp(p, 3)
    p("v_add_u32 v4, s41, v2")
    for nl in range(1, 4):
        p(f"s_sub_u32 s34, s12, {nl}")
        p(f"s_and_b32 s34, s34, 3")
        p(f"s_lshl_b32 s34, s34, 15")
        p(f"v_add_u32 v{4+nl}, s34, v2")
    for mt in range(8):
        for nl in range(1, 4):
            p(f"ds_write_b128 v4, {v(ACC + 16*mt + 4*nl, 4)} offset:{(nl-1)*8192 + mt*1024}", tag=("wr", ("X", 0)))
    p("s_waitcnt lgkmcnt(0)")
    p("s_barrier")
    for mt in (7, 0, 1, 2, 3, 4, 5, 6):
        for nl in range(1, 4):
            p(f"ds_read_b128 {v(ACC + 16*mt + 4*nl, 4)}, v{4+nl} offset:{(nl-1)*8192 + mt*1024}", tag=("rd", ("X", 0)))
    p(f"""
    s_lshl_b32 s34, s33, 2
    s_add_u32 s34, s34, s12
    s_mul_i32 s34, s34, {28*1024}
    s_add_u32 s34, s34, {WS_U}
    s_mul_i32 s35, s32, 7
    v_lshlrev_b32 v{Z1+14}, 16, v{Z1+14}
    """)
    def red(mt, n=2):
        X = ACC + 16*mt
        for h in range(n):
            p(f"v_pk_add_f32 {v(X+2*h,2)}, {v(X+2*h,2)}, {v(X+4+2*h,2)}")
            p(f"v_pk_add_f32 {v(X+8+2*h,2)}, {v(X+8+2*h,2)}, {v(X+12+2*h,2)}")
        for h in range(n):
            p(f"v_pk_add_f32 {v(X+2*h,2)}, {v(X+2*h,2)}, {v(X+8+2*h,2)}")
    red(7, 1)
    X7 = ACC + 112
    p(f"v_sub_f32 v8, v{Z1+14}, v{X7}")
    p(f"v_sub_f32 v8, v8, v{X7+1}")
    for ft in range(7):
        red(ft)
        X = ACC + 16*ft
        for h in range(2):
            p(f"v_pk_add_f32 {v(X+2*h,2)}, {v(X+2*h,2)}, v[8:9] op_sel_hi:[1,0]")
            p(f"v_lshlrev_b32 v{10+2*h}, 16, v{Z1+2*ft+h}")
            p(f"v_and_b32 v{11+2*h}, 0xffff0000, v{Z1+2*ft+h}")
            p(f"v_pk_mul_f32 {v(X+2*h,2)}, {v(X+2*h,2)}, {v(10+2*h,2)}")
        p(f"v_cvt_pk_bf16_f32 v{X}, v{X}, v{X+1}")
        p(f"v_cvt_pk_bf16_f32 v{X+1}, v{X+2}, v{X+3}")
        p(f"""
        s_add_u32 s36, s35, {ft}
        s_lshr_b32 s37, s36, 1
        s_lshl_b32 s37, s37, 10
        s_and_b32 s36, s36, 1
        s_lshl_b32 s36, s36, 3
        s_add_u32 s36, s36, s37
        s_add_u32 s36, s36, s34
        buffer_store_dwordx2 {v(X,2)}, v2, s[28:31], s36 offen
        """)
    stamp(p, 4)
    stamp_dump(p, 4, 6, 28, 12)
    p("L_g_end:")
    p("s_endpgm")
    p.finalize()
    return p, f"; @launch kernel=g_kernel grid=(256,1,1) block=(256,1,1) lds={PB0 + 16384}\n"


def gen_o(opts=None):
    p = Prog("o_kernel")
    ACC = 64
    A_B = 0
    A_F = 112
    NRO = 8
    WREG = 28672
    p(f"""
    s_cmp_ge_u32 s2, 224
    s_cbranch_scc1 L_o_end
    s_load_dwordx2 s[4:5], s[0:1], 72
    s_load_dwordx2 s[6:7], s[0:1], 96
    s_load_dwordx2 s[8:9], s[0:1], 112
    v_lshrrev_b32 v1, 6, v0
    v_readfirstlane_b32 s12, v1          ; wave
    s_and_b32 s13, s2, 7
    s_lshr_b32 s14, s2, 3
    s_lshl_b32 s33, s13, 2
    s_and_b32 s15, s14, 3
    s_add_u32 s33, s33, s15              ; tb
    s_lshr_b32 s32, s14, 2               ; cb
    v_and_b32 v1, 63, v0
    v_lshlrev_b32 v2, 4, v1
    v_lshrrev_b32 v3, 3, v1
    v_mul_u32_u24 v3, 896, v3
    v_bfe_u32 v8, v0, 4, 2               ; g
    v_lshlrev_b32 v9, 1, v8
    v_and_b32 v10, 7, v0
    v_xor_b32 v9, v9, v10
    v_lshl_add_u32 v4, v9, 4, v3
    v_add_u32 v5, {7168-1024}, v4
    v_add_u32 v6, {2*(7168-1024)}, v4
    v_add_u32 v7, {3*(7168-1024)}, v4
    s_mul_i32 s34, s12, {224*896}
    s_lshl_b32 s35, s32, 7
    s_add_u32 s34, s34, s35              ; W soffset
    s_mul_i32 s35, s12, {WREG}
    s_waitcnt lgkmcnt(0)
    """)
    stamp(p, 0)
    srd(p, 16, 4, 5, 896 * 896)
    srd(p, 20, 6, 7, 2048 * 896)
    srd(p, 28, 8, 9, WS_USED)
    for nl in range(4):
        p(f"s_add_u32 s36, s12, {nl}")
        p(f"s_and_b32 s36, s36, 3")
        p(f"s_lshl_b32 s37, s33, 2")
        p(f"s_add_u32 s36, s36, s37")
        p(f"s_mul_i32 s36, s36, {28*1024}")
        p(f"s_mul_i32 s37, s12, 7168")
        p(f"s_add_u32 s36, s36, s37")
        p(f"s_add_u32 s{40+nl}, s36, {WS_U}")
        p(f"s_add_u32 s{44+nl}, s{40+nl}, 4096")
    for ks in range(7):
        p(f"s_add_u32 m0, s35, {ks*4096}")
        for k in range(4):
            p(f"buffer_load_dwordx4 v{4+k}, s[16:19], s34 offen offset:{k*1024} lds", tag=("dma", (ks, 0), "private"))
        p(f"s_add_u32 s34, s34, {4*7168}")
        for nl in range(4):
            p(f"buffer_load_dwordx4 {a(A_B + 16*ks + 4*nl, 4)}, v2, s[28:31], s{40 + nl + 4*(ks//4)} offen offset:{(ks % 4)*1024}")
    X1 = 16; GB = 24
    p(f"""
    s_lshl_b32 s36, s33, 2
    s_add_u32 s36, s36, s12              ; tt
    s_mul_i32 s37, s36, {14*1024}
    s_lshl_b32 s38, s32, 11
    s_add_u32 s37, s37, s38
    s_add_u32 s37, s37, {WS_X1}
    buffer_load_dwordx4 {v(X1,4)}, v2, s[28:31], s37 offen
    buffer_load_dwordx4 {v(X1+4,4)}, v2, s[28:31], s37 offen offset:1024
    v_lshlrev_b32 v9, 4, v8
    s_lshl_b32 s38, s32, 8
    s_add_u32 s38, s38, {WS_MOD + 5*1792}
    """)
    for ct in range(4):
        p(f"buffer_load_dwordx4 {v(GB+4*ct,4)}, v9, s[28:31], s38 offen offset:{64*ct}")
    p(f"""
    v_lshrrev_b32 v3, 2, v1              ; 4g+r
    v_lshlrev_b32 v3, 7, v3
    v_bfe_u32 v10, v0, 3, 2              ; sw = (g%2)*2 + r/2
    v_lshl_add_u32 v3, v10, 5, v3
    v_and_b32 v10, 3, v0
    v_lshl_add_u32 v3, v10, 3, v3
    v_add_u32 v12, s35, v3
    v_xor_b32 v13, 32, v12
    v_xor_b32 v14, 64, v12
    v_xor_b32 v15, 0x60, v12
    """)
    def rd(f):
        ks, ct = f // 4, f % 4
        return [I(f"ds_read_b64_tr_b16 {a(A_F + 4*(f % NRO) + 2*e, 2)}, v{12+ct} offset:{ks*4096 + e*2048}",
                  tag=("rd", (ks, 0), "private")) for e in range(2)]
    PFO = 3
    stamp(p, 1)
    p(I("WAITTAG", tag=[(0, 0)]))
    stamp(p, 2)
    for f in range(PFO):
        p.extend(rd(f))
    for f in range(28):
        ks, ct = f // 4, f % 4
        nx = f + PFO
        for nl in range(4):
            D = v(ACC + 16*ct + 4*nl, 4)
            p(f"v_mfma_f32_16x16x32_bf16 {D}, {a(A_F + 4*(f % NRO), 4)}, {a(A_B + 16*ks + 4*nl, 4)}, {D if ks else 0}")
            if nx < 28 and nl < 2:
                if nl == 0 and nx % 4 == 0:
                    p(I("WAITTAG", tag=[(nx // 4, 0)]))
                p(rd(nx)[nl])
            if nl == 3 and f + 1 < 28:
                p(f"WAITFOR {a(A_F + 4*((f+1) % NRO), 4)}, {a(A_B + 16*((f+1)//4), 16)}")
    stamp(p, 3)
    p("v_add_u32 v4, s35, v2")
    for nl in range(1, 4):
        p(f"s_sub_u32 s36, s12, {nl}")
        p(f"s_and_b32 s36, s36, 3")
        p(f"s_mul_i32 s36, s36, {WREG}")
        p(f"v_add_u32 v{4+nl}, s36, v2")
    for ct in range(4):
        for nl in range(1, 4):
            p(f"ds_write_b128 v4, {v(ACC + 16*ct + 4*nl, 4)} offset:{(nl-1)*4096 + ct*1024}", tag=("wr", ("X", 0)))
    p("s_waitcnt lgkmcnt(0)")
    p("s_barrier")
    for ct in range(4):
        for nl in range(1, 4):
            p(f"ds_read_b128 {v(ACC + 16*ct + 4*nl, 4)}, v{4+nl} offset:{(nl-1)*4096 + ct*1024}", tag=("rd", ("X", 0)))
    p(f"""
    v_and_b32 v3, 15, v0
    v_mul_u32_u24 v3, 896, v3
    v_lshl_add_u32 v3, v8, 4, v3
    s_lshl_b32 s36, s33, 2
    s_add_u32 s36, s36, s12
    s_mul_i32 s36, s36, {16*896}
    s_lshl_b32 s37, s32, 7
    s_add_u32 s36, s36, s37
    """)
    for ct in range(4):
        X = ACC + 16*ct
        for h in range(2):
            p(f"v_pk_add_f32 {v(X+2*h,2)}, {v(X+2*h,2)}, {v(X+4+2*h,2)}")
            p(f"v_pk_add_f32 {v(X+8+2*h,2)}, {v(X+8+2*h,2)}, {v(X+12+2*h,2)}")
        for h in range(2):
            p(f"v_pk_add_f32 {v(X+2*h,2)}, {v(X+2*h,2)}, {v(X+8+2*h,2)}")
            p(f"v_lshlrev_b32 v{10}, 16, v{X1+2*ct+h}")
            p(f"v_and_b32 v{11}, 0xffff0000, v{X1+2*ct+h}")
            p(f"v_pk_fma_f32 {v(X+2*h,2)}, {v(X+2*h,2)}, {v(GB+4*ct+2*h,2)}, v[10:11]")
        k, odd = ct // 2, ct % 2
        O = 40 + 4*k + 2*odd
        p(f"v_cvt_pk_bf16_f32 v{O}, v{X}, v{X+1}")
        p(f"v_cvt_pk_bf16_f32 v{O+1}, v{X+2}, v{X+3}")
        if odd:
            O = 40 + 4*k
            p(f"v_permlane32_swap_b32 v{O}, v{O+2}")
            p(f"v_permlane32_swap_b32 v{O+1}, v{O+3}")
            p(f"v_permlane16_swap_b32 v{O}, v{O+2}")
            p(f"v_permlane16_swap_b32 v{O+1}, v{O+3}")
            p(f"buffer_store_dwordx4 {v(O,4)}, v3, s[20:23], s36 offen offset:{64*k}")
    stamp(p, 4)
    stamp_dump(p, 5, 6, 28, 12)
    p("L_o_end:")
    p("s_endpgm")
    p.finalize()
    return p, f"; @launch kernel=o_kernel grid=(224,1,1) block=(256,1,1) lds={4*WREG}\n"
```

```python
import sys
sys.path.insert(0, "work")
from asmlib import *
from layout import *
import struct
def f2u(x): return struct.unpack("<I", struct.pack("<f", x))[0]
LOG2E = 1.4426950408889634
QSCALE = LOG2E / 16.0

def srd(p, d, lo, hi, nbytes):
    p(f"s_mov_b32 s{d}, s{lo}")
    p(f"s_mov_b32 s{d+1}, s{hi}")
    p(f"s_mov_b32 s{d+2}, {nbytes}")
    p(f"s_mov_b32 s{d+3}, 0x20000")

def xreduce(p, T, tmp, op):
    p(f"v_mov_b32 {v(tmp)}, {v(T)}")
    p(f"v_permlane32_swap_b32 {v(T)}, {v(tmp)}")
    p(f"{op} {v(T)}, {v(T)}, {v(tmp)}")
    p(f"v_mov_b32 {v(tmp)}, {v(T)}")
    p(f"v_permlane16_swap_b32 {v(T)}, {v(tmp)}")
    p(f"{op} {v(T)}, {v(T)}, {v(tmp)}")

PREP_GRID = 74
STAMP = {"on": False}

def code_prefetch(p, tag, endlabel, lines_per_wg, vt, vd, sp=(56, 57)):
    p(f"s_getpc_b64 s[{sp[0]}:{sp[1]}]")
    p(f"L_pf_{tag}:")
    p(f"s_lshr_b32 s58, s2, 3")
    p(f"s_mul_i32 s58, s58, {lines_per_wg * 128}")
    p(f"v_min_u32 v{vt}, {lines_per_wg - 1}, v0")
    p(f"v_lshlrev_b32 v{vt}, 7, v{vt}")
    p(f"v_add_u32 v{vt}, s58, v{vt}")
    p(f"v_min_u32 v{vt}, {endlabel}-L_pf_{tag}-4, v{vt}")
    p(f"global_load_dword v{vd}, v{vt}, s[{sp[0]}:{sp[1]}]")

def stamp(p, k):
    if STAMP["on"]:
        p(f"s_memtime s[{60+4*k}:{61+4*k}]")
        p(f"s_memrealtime s[{62+4*k}:{63+4*k}]")
        p("s_waitcnt lgkmcnt(0)")

def stamp_dump(p, slot, n, srdw, swave, wshift=2):
    if not STAMP["on"]:
        return
    p("s_waitcnt vmcnt(0)")
    stamp(p, n - 1)
    p(f"""
    s_lshl_b32 s13, s2, 2
    s_and_b32 s14, s{swave}, 3
    s_add_u32 s13, s13, s14
    s_lshl_b32 s13, s13, 7
    s_add_u32 s13, s13, {WS_STAMP + 131072 * slot}
    v_mov_b32 v1, 0
    """)
    for k in range(n):
        p(f"v_mov_b32 v2, s{60+4*k}")
        p(f"v_mov_b32 v3, s{62+4*k}")
        p(f"buffer_store_dwordx2 v[2:3], v1, s[{srdw}:{srdw+3}], s13 offen offset:{8*k}")

def gen_prep():
    p = Prog("prep_kernel")
    p(f"""
    s_cmp_ge_u32 s2, {PREP_GRID}
    s_cbranch_scc1 L_prep_end
    s_load_dwordx2 s[4:5], s[0:1], 0
    s_load_dwordx4 s[8:11], s[0:1], 80
    s_load_dwordx2 s[6:7], s[0:1], 112
    s_waitcnt lgkmcnt(0)
    """)
    srd(p, 16, 4, 5, 2048 * 896)
    srd(p, 20, 8, 9, 896)
    srd(p, 24, 10, 11, 448 * 5376)
    srd(p, 28, 6, 7, WS_USED)
    p("s_cmp_ge_u32 s2, 42")
    p("s_cbranch_scc1 L_prep_ln")
    p(f"""
    v_and_b32 v1, 7, v0
    v_lshrrev_b32 v2, 3, v0
    v_lshlrev_b32 v3, 1, v2
    v_mul_u32_u24 v4, 5376, v2
    v_lshl_add_u32 v4, v1, 4, v4
    s_lshl_b32 s12, s2, 7
    """)
    for i in range(14):
        p(f"buffer_load_ushort v{16+i}, v3, s[20:23], 0 offen offset:{64*i}")
    for i in range(14):
        p(f"buffer_load_dwordx4 {v(32+4*i,4)}, v4, s[24:27], s12 offen")
        if i < 13:
            p(f"s_add_u32 s12, s12, {32*5376}")
    p(f"s_mov_b32 s13, {f2u(-LOG2E)}")
    for i in range(14):
        x = 16 + i
        p(f"v_lshlrev_b32 v{x}, 16, v{x}")
        p(f"v_mul_f32 v5, s13, v{x}")
        p(f"v_exp_f32 v5, v5")
        p(f"v_add_f32 v5, 1.0, v5")
        p(f"v_rcp_f32 v5, v5")
        p(f"v_mul_f32 v5, v5, v{x}")
        p(f"v_cvt_pk_bf16_f32 v5, v5, v5")
        p(f"v_lshlrev_b32 v{x}, 16, v5")
    for r in range(8):
        p(f"v_mov_b32 v{8+r}, 0")
    for i in range(14):
        for d in range(4):
            w = 32 + 4*i + d
            p(f"v_lshlrev_b32 v5, 16, v{w}")
            p(f"v_and_b32 v6, 0xffff0000, v{w}")
            p(f"v_fmac_f32 v{8+2*d}, v5, v{16+i}")
            p(f"v_fmac_f32 v{9+2*d}, v6, v{16+i}")
    p(f"""
    v_lshlrev_b32 v5, 5, v0
    ds_write_b128 v5, v[8:11]
    ds_write_b128 v5, v[12:15] offset:16
    s_waitcnt lgkmcnt(0)
    s_barrier
    v_lshrrev_b32 v6, 6, v0
    v_readfirstlane_b32 s14, v6
    s_cmp_lg_u32 s14, 0
    s_cbranch_scc1 L_prep_end
    v_lshlrev_b32 v5, 2, v0
    """)
    for i in range(32):
        p(f"ds_read_b32 v{32+i}, v5 offset:{256*i}")
    for st in (16, 8, 4, 2, 1):
        for i in range(st):
            p(f"v_add_f32 v{32+i}, v{32+i}, v{32+i+st}")
    p(f"""
    v_cvt_pk_bf16_f32 v32, v32, v32
    v_lshlrev_b32 v32, 16, v32
    s_mul_i32 s14, s2, 37
    s_lshr_b32 s14, s14, 8
    s_cmp_eq_u32 s14, 1
    s_cselect_b32 s15, 1, 0
    s_cmp_eq_u32 s14, 4
    s_cselect_b32 s15, 1, s15
    s_cmp_eq_u32 s15, 0
    s_cbranch_scc1 L_prep_no1
    v_add_f32 v32, 1.0, v32
    v_cvt_pk_bf16_f32 v32, v32, v32
    v_lshlrev_b32 v32, 16, v32
    L_prep_no1:
    s_cmp_lt_u32 s14, 2
    s_cselect_b32 s15, {f2u(QSCALE)}, 1.0
    v_mul_f32 v32, s15, v32
    s_lshl_b32 s12, s2, 8
    buffer_store_dword v32, v5, s[28:31], s12 offen offset:{WS_MOD}
    s_endpgm
    """)
    p(f"""
    L_prep_ln:
    v_lshrrev_b32 v6, 6, v0
    v_readfirstlane_b32 s14, v6
    s_sub_u32 s12, s2, 42
    s_lshl_b32 s12, s12, 2
    s_add_u32 s12, s12, s14          ; q-tile
    v_and_b32 v1, 15, v0
    v_bfe_u32 v2, v0, 4, 2
    v_mul_u32_u24 v3, 896, v1
    v_lshl_add_u32 v3, v2, 4, v3
    s_mul_i32 s13, s12, {16*896}
    """)
    X = 16
    F = 72
    for ks in range(14):
        p(f"buffer_load_dwordx4 {v(X+4*ks,4)}, v3, s[16:19], s13 offen offset:{64*ks}")
    p(f"""
    v_and_b32 v4, 63, v0
    v_lshlrev_b32 v5, 2, v4
    v_mov_b32 v6, 0
    s_lshl_b32 s14, s12, 7
    s_add_u32 s14, s14, {WS_STATS}
    v_cmp_gt_u32 vcc, 32, v4
    s_and_saveexec_b64 s[34:35], vcc
    buffer_store_dword v6, v5, s[28:31], s14 offen
    s_mov_b64 exec, s[34:35]
    v_lshlrev_b32 v4, 4, v4
    v_mov_b32 v8, 0
    v_mov_b32 v9, 0
    """)
    for d in range(56):
        p(f"v_lshlrev_b32 v{F+2*d}, 16, v{X+d}")
        p(f"v_and_b32 v{F+2*d+1}, 0xffff0000, v{X+d}")
        p(f"v_pk_add_f32 v[8:9], v[8:9], {v(F+2*d,2)}")
    p("v_add_f32 v8, v8, v9")
    xreduce(p, 8, 10, "v_add_f32")
    p(f"v_mul_f32 v8, {f2u(-1.0/448)}, v8")
    p("v_mov_b32 v10, 0")
    p("v_mov_b32 v11, 0")
    for d in range(56):
        p(f"v_pk_add_f32 {v(F+2*d,2)}, {v(F+2*d,2)}, v[8:9] op_sel_hi:[1,0]")
        p(f"v_pk_fma_f32 v[10:11], {v(F+2*d,2)}, {v(F+2*d,2)}, v[10:11]")
    p("v_add_f32 v10, v10, v11")
    xreduce(p, 10, 12, "v_add_f32")
    p(f"""
    v_mov_b32 v12, {f2u(1e-5)}
    v_fmac_f32 v12, {f2u(1.0/448)}, v10
    v_rsq_f32 v12, v12
    s_mul_i32 s13, s12, {14*1024}
    s_add_u32 s13, s13, {WS_XN}
    """)
    for ks in range(14):
        for d in range(4*ks, 4*ks+4):
            p(f"v_pk_mul_f32 {v(F+2*d,2)}, {v(F+2*d,2)}, v[12:13] op_sel_hi:[1,0]")
            p(f"v_cvt_pk_bf16_f32 v{X+d}, v{F+2*d}, v{F+2*d+1}")
        p(f"buffer_store_dwordx4 {v(X+4*ks,4)}, v4, s[28:31], s13 offen offset:{(ks % 4)*1024}")
        if ks % 4 == 3:
            p("s_add_u32 s13, s13, 4096")
    p("L_prep_end:")
    p("s_endpgm")
    p.finalize()
    return p, f"; @launch kernel=prep_kernel grid=({PREP_GRID},1,1) block=(256,1,1) lds=8192\n"
```

```python
import sys
sys.path.insert(0, "work")
from asmlib import *
from layout import *
from k_prep import srd, f2u, stamp, stamp_dump

def lane_reduce_345(p, T, tmp):
    p(f"v_add_f32_dpp {v(T)}, {v(T)}, {v(T)} row_ror:8 row_mask:0xf bank_mask:0xf")
    p(f"v_mov_b32 {v(tmp)}, {v(T)}")
    p(f"v_permlane32_swap_b32 {v(T)}, {v(tmp)}")
    p(f"v_add_f32 {v(T)}, {v(T)}, {v(tmp)}")
    p(f"v_mov_b32 {v(tmp)}, {v(T)}")
    p(f"v_permlane16_swap_b32 {v(T)}, {v(tmp)}")
    p(f"v_add_f32 {v(T)}, {v(T)}, {v(tmp)}")

def gen_red():
    p = Prog("red_kernel")
    p(f"""
    s_cmp_ge_u32 s2, 256
    s_cbranch_scc1 L_red_end
    s_load_dwordx2 s[4:5], s[0:1], 0
    s_load_dwordx2 s[6:7], s[0:1], 112
    v_lshrrev_b32 v1, 6, v0
    v_readfirstlane_b32 s12, v1
    v_and_b32 v1, 7, v0                  ; n8
    v_bfe_u32 v2, v0, 3, 2               ; g
    v_bfe_u32 v3, v0, 5, 1               ; uu
    v_lshlrev_b32 v4, 10, v3
    v_lshl_add_u32 v4, v2, 8, v4
    v_lshl_add_u32 v4, v1, 4, v4
    s_lshr_b32 s13, s2, 1                ; q-tile
    s_and_b32 s14, s2, 1                 ; half
    s_mul_i32 s15, s13, {14*1024}
    s_lshl_b32 s32, s14, 7
    s_add_u32 s15, s15, s32
    s_lshl_b32 s32, s12, 11
    s_add_u32 s15, s15, s32
    s_waitcnt lgkmcnt(0)
    """)
    stamp(p, 0)
    srd(p, 16, 4, 5, 2048 * 896)
    srd(p, 28, 6, 7, WS_USED)
    p(f"s_add_u32 s32, s15, {WS_PART}")
    for j in range(8):
        p(f"buffer_load_dwordx4 {v(32+4*j,4)}, v4, s[28:31], s32 offen")
        if j < 7:
            p(f"s_add_u32 s32, s32, {128*14*1024}")
    p(f"""
    v_mul_u32_u24 v5, 896, v1
    v_lshl_add_u32 v5, v3, 6, v5
    v_lshl_add_u32 v5, v2, 3, v5
    s_mul_i32 s33, s2, {8*896}
    s_lshl_b32 s34, s12, 7
    s_add_u32 s33, s33, s34
    buffer_load_dwordx2 v[64:65], v5, s[16:19], s33 offen
    buffer_load_dwordx2 v[66:67], v5, s[16:19], s33 offen offset:32
    v_lshlrev_b32 v6, 7, v3
    v_lshl_add_u32 v6, v2, 4, v6         ; (32uu + 4g)*4
    s_lshl_b32 s34, s12, 8
    s_add_u32 s34, s34, {WS_MOD + 2*1792}
    """)
    for k, sec in enumerate((0, 1, 2)):
        for e in range(2):
            p(f"buffer_load_dwordx4 {v(72+8*k+4*e,4)}, v6, s[28:31], s34 offen offset:{sec*1792 + 64*e}")
    A = 16
    for j in range(8):
        for d in range(4):
            x = 32 + 4*j + d
            if j == 0:
                p(f"v_lshlrev_b32 v{A+2*d}, 16, v{x}")
                p(f"v_and_b32 v{A+2*d+1}, 0xffff0000, v{x}")
            else:
                t = 8 + 2 * (d % 2)
                p(f"v_lshlrev_b32 v{t}, 16, v{x}")
                p(f"v_and_b32 v{t+1}, 0xffff0000, v{x}")
                p(f"v_pk_add_f32 {v(A+2*d,2)}, {v(A+2*d,2)}, {v(t,2)}")
    X1 = 24
    stamp(p, 1)
    for d in range(4):
        t = 8 + 2 * (d % 2)
        p(f"v_lshlrev_b32 v{t}, 16, v{64+d}")
        p(f"v_and_b32 v{t+1}, 0xffff0000, v{64+d}")
        p(f"v_pk_fma_f32 {v(A+2*d,2)}, {v(A+2*d,2)}, {v(72+2*d,2)}, {v(t,2)}")
        p(f"v_cvt_pk_bf16_f32 v{X1+d}, v{A+2*d}, v{A+2*d+1}")
        p(f"v_lshlrev_b32 v{A+2*d}, 16, v{X1+d}")
        p(f"v_and_b32 v{A+2*d+1}, 0xffff0000, v{X1+d}")
    p(f"""
    s_add_u32 s32, s15, {WS_X1}
    buffer_store_dwordx4 {v(X1,4)}, v4, s[28:31], s32 offen
    v_pk_add_f32 v[8:9], {v(A,2)}, {v(A+2,2)}
    v_pk_add_f32 v[10:11], {v(A+4,2)}, {v(A+6,2)}
    v_pk_add_f32 v[8:9], v[8:9], v[10:11]
    v_add_f32 v8, v8, v9
    """)
    lane_reduce_345(p, 8, 9)
    p(f"""
    s_lshl_b32 s33, s12, 5
    v_lshlrev_b32 v12, 2, v1
    v_add_u32 v13, s33, v12
    ds_write_b32 v13, v8
    s_waitcnt lgkmcnt(0)
    s_barrier
    """)
    def gather(off):
        for w in range(7):
            p(f"ds_read_b32 v{32+w}, v12 offset:{off + 32*w}")
        p("v_add_f32 v32, v32, v33")
        p("v_add_f32 v34, v34, v35")
        p("v_add_f32 v36, v36, v37")
        p("v_add_f32 v32, v32, v38")
        p("v_add_f32 v34, v34, v36")
        p("v_add_f32 v8, v32, v34")
    gather(0)
    p(f"v_mul_f32 v8, {f2u(-1.0/448)}, v8")
    for d in range(4):
        p(f"v_pk_add_f32 {v(A+2*d,2)}, {v(A+2*d,2)}, v[8:9] op_sel_hi:[1,0]")
    p(f"v_pk_mul_f32 v[10:11], {v(A,2)}, {v(A,2)}")
    for d in range(1, 4):
        p(f"v_pk_fma_f32 v[10:11], {v(A+2*d,2)}, {v(A+2*d,2)}, v[10:11]")
    p("v_add_f32 v8, v10, v11")
    lane_reduce_345(p, 8, 9)
    p(f"""
    ds_write_b32 v13, v8 offset:256
    s_waitcnt lgkmcnt(0)
    s_barrier
    """)
    gather(256)
    p(f"""
    v_mov_b32 v10, {f2u(1e-5)}
    v_fmac_f32 v10, {f2u(1.0/448)}, v8
    v_rsq_f32 v10, v10
    """)
    for d in range(4):
        p(f"v_pk_mul_f32 {v(A+2*d,2)}, {v(A+2*d,2)}, v[10:11] op_sel_hi:[1,0]")
        p(f"v_pk_fma_f32 {v(A+2*d,2)}, {v(A+2*d,2)}, {v(88+2*d,2)}, {v(80+2*d,2)}")
        p(f"v_cvt_pk_bf16_f32 v{28+d}, v{A+2*d}, v{A+2*d+1}")
    p(f"""
    s_add_u32 s32, s15, {WS_H2}
    buffer_store_dwordx4 v[28:31], v4, s[28:31], s32 offen
    """)
    stamp(p, 2)
    stamp_dump(p, 2, 4, 28, 12)
    p("L_red_end:")
    p("s_endpgm")
    p.finalize()
    return p, "; @launch kernel=red_kernel grid=(256,1,1) block=(448,1,1) lds=512\n"
```

```python
import sys
sys.path.insert(0, "work")
from asmlib import *
from layout import *
from k_prep import srd, f2u, LOG2E, stamp, stamp_dump

C1 = -2.0 * 0.7978845608028654 * LOG2E
C2 = C1 * 0.044715

def gelu_pairs(p, regs, T):
    n = len(regs)
    NB = 4
    for i0 in range(0, n, NB):
        grp = regs[i0:i0+NB]
        for k, x in enumerate(grp):
            p(f"v_pk_mul_f32 {v(T+2*k,2)}, {v(x,2)}, {v(x,2)}")
        for k, x in enumerate(grp):
            p(f"v_pk_fma_f32 {v(T+2*k,2)}, {v(T+2*k,2)}, v[4:5], v[6:7] op_sel_hi:[1,0,0]")
        for k, x in enumerate(grp):
            p(f"v_pk_mul_f32 {v(T+2*k,2)}, {v(T+2*k,2)}, {v(x,2)}")
        for k, x in enumerate(grp):
            p(f"v_exp_f32 v{T+2*k}, v{T+2*k}")
            p(f"v_exp_f32 v{T+2*k+1}, v{T+2*k+1}")
        for k, x in enumerate(grp):
            p(f"v_pk_add_f32 {v(T+2*k,2)}, {v(T+2*k,2)}, 1.0 op_sel_hi:[1,0]")
        for k, x in enumerate(grp):
            p(f"v_rcp_f32 v{T+2*k}, v{T+2*k}")
            p(f"v_rcp_f32 v{T+2*k+1}, v{T+2*k+1}")
        for k, x in enumerate(grp):
            p(f"v_pk_mul_f32 {v(x,2)}, {v(x,2)}, {v(T+2*k,2)}")

def _build(zz):
    p = Prog("z_kernel")
    ACC = 64
    VD = 16
    NRZ = 14
    A_H = 0
    A_F = 112
    p(f"""
    s_cmp_ge_u32 s2, 256
    s_cbranch_scc1 L_z_end
    s_load_dwordx2 s[4:5], s[0:1], 48
    s_load_dwordx2 s[6:7], s[0:1], 112
    v_lshrrev_b32 v1, 6, v0
    v_readfirstlane_b32 s12, v1          ; wave
    s_and_b32 s13, s2, 7                 ; x
    s_lshr_b32 s14, s2, 3                ; i
    s_and_b32 s15, s13, 3
    s_lshl_b32 s15, s15, 2
    s_and_b32 s32, s14, 3
    s_add_u32 s32, s32, s15              ; cgp (0..15)
    s_lshr_b32 s15, s13, 2
    s_lshl_b32 s15, s15, 3
    s_lshr_b32 s33, s14, 2
    s_add_u32 s33, s33, s15              ; rg (0..15)
    s_lshl_b32 s34, s33, 2
    s_add_u32 s34, s34, s12
    v_and_b32 v1, 63, v0                 ; lane
    v_lshlrev_b32 v2, 4, v1              ; lane*16
    s_movk_i32 s35, 0x124a
    """)
    for m in range(7):
        p(f"v_add_u32 v3, {64*m}, v1")
        p(f"v_mul_u32_u24 v8, s35, v3")
        p(f"v_lshrrev_b32 v8, 16, v8")
        p(f"v_mul_u32_u24 v9, {3584 - 14*16}, v8")
        p(f"v_lshl_add_u32 v{VD+m}, v1, 4, v9")
        if m >= 4:
            p(f"v_add_u32 v{VD+m}, 4096, v{VD+m}")
    p("s_waitcnt lgkmcnt(0)")
    stamp(p, 0)
    srd(p, 16, 4, 5, 448 * 3584)
    srd(p, 28, 6, 7, WS_USED)
    p(f"""
    v_and_b32 v3, 15, v0                 ; m
    v_bfe_u32 v8, v0, 4, 2               ; kg
    v_lshrrev_b32 v9, 3, v3
    v_mul_u32_u24 v9, {14*1024}, v9
    v_bfe_u32 v10, v0, 2, 1              ; (m/4)%2
    v_lshlrev_b32 v10, 3, v10
    v_and_b32 v11, 3, v0
    v_add_u32 v10, v10, v11              ; pos%16 for e=0
    v_lshl_add_u32 v10, v8, 4, v10
    v_lshl_add_u32 v10, v10, 4, v9
    v_add_u32 v11, 64, v10               ; e=1
    v_add_u32 v13, {14*1024}, v2
    s_cmp_ge_u32 s32, 8
    s_cselect_b64 vcc, -1, 0
    v_cndmask_b32 v10, v2, v10, vcc
    v_cndmask_b32 v11, v13, v11, vcc
    s_mul_i32 s36, s34, {28*1024}
    s_add_u32 s36, s36, {WS_H2}
    s_mul_i32 s37, s32, 224
    s_mul_i32 s38, s12, {32*3584}
    s_add_u32 s37, s37, s38
    s_mul_i32 s38, s12, 7168
    """)
    for rnd in range(4):
        for m in range(7):
            if m % 4 == 0:
                p(f"s_add_u32 m0, s38, {rnd*4*7168 + m*1024}")
            p(f"buffer_load_dwordx4 v{VD+m}, s[16:19], s37 offen offset:{(m % 4)*1024} lds", tag=("dma", (rnd, 0)))
        p(f"s_add_u32 s37, s37, {4*32*3584}")
        for u in range(4*rnd, min(14, 4*rnd+4)):
            for e in range(2):
                p(f"buffer_load_dwordx4 {a(A_H+8*u+4*e,4)}, v{10+e}, s[28:31], s36 offen offset:{(u % 4)*1024}")
        p(f"s_add_u32 s36, s36, 4096")
    p(f"""
    v_lshrrev_b32 v3, 2, v1              ; 4g + r
    v_mul_u32_u24 v3, 224, v3
    v_and_b32 v8, 3, v0
    v_lshl_add_u32 v12, v8, 3, v3
    v_add_u32 v13, {8*7168}, v12
    v_mov_b32 v4, {f2u(C2)}
    v_mov_b32 v6, {f2u(C1)}
    s_cmp_ge_u32 s32, 8
    s_cbranch_scc1 L_z_zz
    """)
    npre = len(p.items)
    if zz:
        p("L_z_zz:")
    LEAD = 8
    N = 14 * 14
    rds = []
    for u in range(14):
        for ft in range(7):
            f = u * 7 + ft
            for e in range(2):
                base = 12 if u < 8 else 13
                rds.append(I(f"ds_read_b64_tr_b16 {a(A_F + 4*(f % NRZ) + 2*e, 2)}, v{base} offset:{(u % 8)*7168 + e*3584 + 32*ft}",
                             tag=("rd", (u // 4, 0))))
    def bar(rnd):
        p(I("WAITTAG", tag=[(rnd, 0)]))
        p("s_barrier")
    stamp(p, 1)
    bar(0)
    stamp(p, 2)
    for x in rds[:LEAD]:
        p(x)
    for g in range(N):
        u, ft, e = g // 14, (g % 14) // 2, g % 2
        f = u * 7 + ft
        D = v(ACC + 8*ft + 4*e, 4)
        W = a(A_F + 4*(f % NRZ), 4)
        H = a(A_H + 8*u + 4*e, 4)
        C = D if u else "0"
        if zz:
            p(f"v_mfma_f32_16x16x32_bf16 {D}, {H}, {W}, {C}")
        else:
            p(f"v_mfma_f32_16x16x32_bf16 {D}, {W}, {H}, {C}")
        if e == 1 and f + 1 < 98:
            p(f"WAITFOR {a(A_F + 4*((f+1) % NRZ), 4)}")
        k = g + LEAD
        if k < N:
            if k % 56 == 0:
                bar(k // 56)
            p(rds[k])
    stamp(p, 3)
    gelu_pairs(p, [ACC + 2*k for k in range(28)], 24)
    p(f"""
    s_and_b32 s36, s32, 7
    s_mul_i32 s36, s36, {64*7*1024}
    s_mul_i32 s37, s34, {7*1024}
    s_add_u32 s36, s36, s37
    s_add_u32 s36, s36, {WS_ZZ if zz else WS_Z1}
    s_add_u32 s37, s36, 4096
    """)
    if zz:
        for k in range(0, 8, 2):
            p(f"v_pk_add_f32 {v(32+k,2)}, {v(ACC+k,2)}, {v(ACC+8+k,2)}")
            p(f"v_pk_mul_f32 {v(40+k,2)}, {v(ACC+k,2)}, {v(ACC+k,2)}")
        for ft in range(1, 7):
            for k in range(0, 8, 2):
                if ft >= 2:
                    p(f"v_pk_add_f32 {v(32+k,2)}, {v(32+k,2)}, {v(ACC+8*ft+k,2)}")
                p(f"v_pk_fma_f32 {v(40+k,2)}, {v(ACC+8*ft+k,2)}, {v(ACC+8*ft+k,2)}, {v(40+k,2)}")
    for ft in range(7):
        X = ACC + 8*ft
        for k in range(4):
            p(f"v_cvt_pk_bf16_f32 v{X+k}, v{X+2*k}, v{X+2*k+1}")
        p(f"buffer_store_dwordx4 {v(X,4)}, v2, s[28:31], s{36 + ft//4} offen offset:{(ft % 4)*1024}")
    if zz:
        for sh in (8, 4, 2, 1):
            for k in range(16):
                p(f"v_add_f32_dpp v{32+k}, v{32+k}, v{32+k} row_ror:{sh} row_mask:0xf bank_mask:0xf")
        p("v_and_b32 v3, 15, v0")
        p("v_mov_b32 v8, v32")
        for n in range(1, 16):
            src = 32 + n // 2 + 8 * (n % 2)
            p(f"v_cmp_eq_u32 vcc, {n}, v3")
            p(f"v_cndmask_b32 v8, v8, v{src}, vcc")
        p(f"""
        v_lshlrev_b32 v9, 2, v1
        s_lshl_b32 s36, s34, 8
        s_add_u32 s36, s36, {WS_STATS}
        buffer_atomic_add_f32 v8, v9, s[28:31], s36 offen
        """)
    stamp(p, 4)
    stamp_dump(p, 3, 6, 28, 12)
    if zz:
        p("L_z_end:")
    p("s_endpgm")
    p.finalize()
    return p, npre

def gen_z():
    p0, n0 = _build(False)
    p1, n1 = _build(True)
    a0 = [x.lines() for x in p0.items[:n0]]
    a1 = [x.lines() for x in p1.items[:n1]]
    assert a0 == a1
    p0.side = p1.items[n1:]
    return p0, "; @launch kernel=z_kernel grid=(256,1,1) block=(256,1,1) lds=114688\n"
```

```python
import sys
sys.path.insert(0, "work")
from build import *
from k_prep import *
from k_attn import *
from k_red import *
from k_z import *
from k_g import *
def gen_nop():
    p = Prog("nop_kernel")
    p("v_mov_b32 v1, 0")
    p("s_endpgm")
    p.finalize()
    return p, "; @launch kernel=nop_kernel grid=(256,1,1) block=(256,1,1) lds=0\n"
base = [gen_prep(), gen_attn(), gen_red(), gen_z(), gen_g(), gen_o()]
nop = gen_nop()
def w(path, order):
    codes, kds = [], []
    for p, l in base + [nop]:
        c, k = kernel_text(p); codes.append(c); kds.append(k)
    open(path, "w").write(HDR + "".join(order) + '.amdgcn_target "amdgcn-amd-amdhsa--gfx950"\n' + "".join(codes) + "".join(kds))
L = [l for p, l in base]
w("e_front.s", [nop[1]] * 4 + L)
w("e_back.s", L + [nop[1]] * 4)
w("e_base.s", L + [])
w("e_dbl.s", L + L[1:2] + L[2:3])
```

```python
import sys
sys.path.insert(0, "work")
from asmlib import *
from layout import *
from k_prep import srd, f2u, stamp, stamp_dump, code_prefetch

SLOT = 16640
V_WDMA = 4
V_WRD = 8
V_LIN = 12
V_XW = 13; V_XR = 14; V_TMP = 15
V_H = 16
V_O = 128
V_S = [96, 112]
V_NEGM = 80
V_P = [64, 72]
V_E = 56
V_KRD = 40
V_VRD = 48
V_KDMA = 32
V_VDMA = 36
V_L = 50
V_TS = 52
V_T0 = 54; V_T1 = 55
V_T2 = 30; V_T3 = 31
A_Q = 0
A_F = 64
NR = 16
SRD_K, SRD_V, SRD_W, SRD_Q, SRD_O = 16, 20, 24, 40, 44
S_W, S_J, S_PB = 28, 29, 30
S_KOFF, S_VOFF, S_M0K, S_M0V, S_CNT, S_THR = 32, 33, 34, 35, 36, 37
S_WOFF, S_WBASE, S_HD, S_QT = 38, 39, 48, 49
MODL = 9 * SLOT
LDS_BYTES = 9 * SLOT + 8192
A_HP = 128


def make_plan(gJ=24, gB=52, d0=3, e_first=2, e_last=58):
    pl = ["m"] * 64
    for k in range(8):
        pl[(d0 + 8 * k) % 64] = "d"
    assert pl[gJ] == "m" and pl[gB] == "m"
    pl[gJ] = "j"; pl[gB] = "B"
    es = []
    for r in range(16):
        g = gJ + e_first + round(r * (e_last - e_first) / 15)
        while pl[g % 64] != "m":
            g += -1 if r == 15 else 1
        pl[g % 64] = "e"
        es.append(g % 64)
    for i in range(10):
        g = es[(i * 16) // 10] - 1
        while pl[g % 64] != "m":
            g -= 1
        pl[g % 64] = "t"
    return "".join(pl)


def frag(f):
    return A_F + 4 * (f % NR)


def slot_of(kind, t):
    return (t % 4) + (4 if kind == "K" else 0)


class Attn:
    def __init__(self, opts):
        self.o = opts
        self.plan = opts.get("plan", make_plan())
        pl = self.plan
        assert len(pl) == 64
        assert pl.count("e") + pl.count("E") == 16
        assert pl.count("d") == 8 and pl.count("B") == 1 and pl.count("j") == 1
        nds = pl.count("m") + pl.count("E") + 2 * pl.count("t")
        assert nds == 48, nds
        self.gB = pl.index("B"); self.gJ = pl.index("j")
        dsg = []
        for k in range(1, 65):
            g = (self.gB + k) % 64
            if pl[g] in "mE": dsg.append(g)
            if pl[g] == "t": dsg += [g, g]
        ops = [(f, 0) for f in range(16)] + [(f, e) for f in range(16, 32) for e in range(2)]
        self.ds = {}
        leads = []
        for g, (f, e) in zip(dsg, ops):
            nxt = g > self.gB
            assert not (nxt and f >= 16)
            self.ds.setdefault(g, []).append((f, e, nxt))
            leads.append(2 * f + (64 if nxt else 0) - g)
        assert max(leads) < 2 * NR - 2
        self.va = {}
        exps, rest = self.softmax_parts(0)
        done = set()
        ie = ir = 0
        for k in range(1, 64):
            g = (self.gJ + k) % 64
            add = []
            if pl[g] in "eE":
                self.va.setdefault(g, []).append(("e", ie)); add = [ie]; ie += 1
            elif pl[g] == "m":
                if ir < len(rest) and all(d in done for d in rest[ir][1]):
                    self.va.setdefault(g, []).append(("r", ir)); ir += 1
            done.update(add)
        assert ie == 16 and ir == len(rest), (ir, len(rest))
        self.nafter = sum(1 for g in range(64) if pl[g] == "d" and g > self.gB)

    @staticmethod
    def key(kind, t):
        return (slot_of(kind, t), 100 + t)

    def kread(self, tfn, c, f):
        kt, sx = f // 8, f % 8
        return I(f"ds_read_b128 {a(frag(f),4)}, {v(V_KRD + sx % 4)} offset:{(c % 4)*SLOT + kt*8192 + (sx//4)*256}",
                 tag=("rd", lambda it: self.key("K", tfn(it))))

    def vread(self, tfn, c, f, e):
        t = f - 16
        return I(f"ds_read_b64_tr_b16 {a(frag(f)+2*e,2)}, {v(V_VRD + t % 2)} offset:{(c % 4)*SLOT + e*2048 + 64*(t//2)}",
                 tag=("rd", lambda it: self.key("V", tfn(it))))

    def dma(self, kind, tfn, jj):
        tag = ("dma", lambda it: self.key(kind, tfn(it)))
        if kind == "K":
            return I(f"buffer_load_dwordx4 {v(V_KDMA+jj)}, {s(SRD_K,4)}, {s(S_KOFF)} offen offset:{jj*1024} lds", tag=tag)
        return I(f"buffer_load_dwordx4 {v(V_VDMA+jj)}, {s(SRD_V,4)}, {s(S_VOFF)} offen offset:{jj*1024} lds", tag=tag)

    def m0(self, kind, c):
        if kind == "K":
            return I(f"s_add_u32 m0, {s(S_M0K)}, {slot_of('K', c)*SLOT}")
        return I(f"s_add_u32 m0, {s(S_M0V)}, {slot_of('V', c)*SLOT}")

    def adv(self, kind):
        r = S_KOFF if kind == "K" else S_VOFF
        return I(f"s_add_u32 {s(r)}, {s(r)}, 16384")

    def wfill(self, which, st, hf):
        if which == "Q":
            pair = st % 4
            off = ((st + 7 * hf) % 14) * 32 * 8192 + hf * 512
            srdw = SRD_Q
            gen = st
        else:
            pair = (st + 2) % 4
            off = ((st + 8 * hf) % 16) * 32 * 896 + hf * 448
            srdw = SRD_O
            gen = 200 + st
        slot = 2 * pair + hf
        pre = [I(f"s_add_u32 m0, {s(S_M0V)}, {slot*SLOT}"), I(f"s_add_u32 {s(S_WOFF)}, {s(S_WBASE)}, {off}")]
        d = [I(f"buffer_load_dwordx4 {v(V_WDMA+jj)}, {s(srdw,4)}, {s(S_WOFF)} offen offset:{jj*1024} lds",
               tag=("dma", (slot, gen))) for jj in range(4)]
        return pre, d

    def wkeys(self, which, st):
        pair = st % 4 if which == "Q" else (st + 2) % 4
        gen = st if which == "Q" else 200 + st
        return [(2 * pair, gen), (2 * pair + 1, gen)]

    def wread(self, which, st, t, e, f):
        pair = st % 4 if which == "Q" else (st + 2) % 4
        return I(f"ds_read_b64_tr_b16 {a(frag(f)+2*e,2)}, {v(V_WRD + 2*(pair//2) + t % 2)} "
                 f"offset:{(pair % 2)*2*SLOT + e*2048 + 64*(t//2)}", tag=("rd", self.wkeys(which, st)))

    def kvfill(self, kind, t, jjs=range(4)):
        pre = [self.m0(kind, t)]
        d = [self.dma(kind, (lambda t: lambda it: t)(t), jj) for jj in jjs]
        post = [self.adv(kind)] if 3 in jjs else []
        return pre, d, post

    def softmax_parts(self, par):
        S = V_S[par]; P = V_P[par]
        exps = [I(f"v_exp_f32 {v(V_E + r % 8)}, {v(S + r)}") for r in range(16)]
        rest = []
        rest.append((I(f"v_add_f32 {v(V_L)}, {v(V_L)}, {v(V_TS)}"), [], True))
        rest.append((I(f"v_add_f32 {v(V_L+1)}, {v(V_L+1)}, {v(V_TS+1)}"), [], True))
        for q in range(16):
            kt, qt, i = q // 8, (q // 4) % 2, q % 4
            ts = v(V_TS + qt)
            e = v(V_E + q % 8)
            if kt == 0 and i == 0:
                pass
            elif kt == 0 and i == 1:
                rest.append((I(f"v_add_f32 {ts}, {v(V_E + (q-1) % 8)}, {e}"), [q-1, q], False))
            else:
                rest.append((I(f"v_add_f32 {ts}, {ts}, {e}"), [q], False))
            if q == 15:
                rest.append((I(f"v_add_f32 {v(V_T2)}, {v(V_TS)}, {v(V_TS+1)}"), [q], False))
                rest.append((I(f"v_cmp_lt_f32 vcc, {s(S_THR)}, {v(V_T2)}"), [q], False))
            if q % 2 == 1:
                rest.append((I(f"v_cvt_pk_bf16_f32 {v(P + 4*qt + 2*kt + i // 2)}, {v(V_E + (q-1) % 8)}, {e}"), [q-1, q], False))
        return exps, rest

    def softmax_linear(self, par):
        exps, rest = self.softmax_parts(par)
        out = []
        ir = 2
        for r in range(16):
            out.append(exps[r])
            while ir < len(rest) and max(rest[ir][1]) < r:
                out.append(rest[ir][0]); ir += 1
        out += [x[0] for x in rest[ir:]]
        return out

    def body(self, p, c, A, aval=None, lid=None, extra_scalar=None, extra_valu=None):
        pl = self.plan
        par = c % 2
        gB, gJ = self.gB, self.gJ
        first = aval == -1
        do_pv = not first
        do_qk = aval is None or aval + 1 <= 63
        next_k = aval is None or aval + 2 <= 63
        SC = [[] for _ in range(64)]
        VE = [[] for _ in range(64)]
        cur = self.softmax_parts(par)
        nxt = self.softmax_parts(1 - par)
        late = []
        for g in range(64):
            for (f, e, nx) in self.ds.get(g, []):
                if nx:
                    if next_k:
                        VE[g].append(self.kread(lambda it: A(it)+2, c+2, f))
                elif f < 16:
                    if do_qk:
                        VE[g].append(self.kread(lambda it: A(it)+1, c+1, f))
                else:
                    if do_pv:
                        VE[g].append(self.vread(A, c, f, e))
            for kind, idx in self.va.get(g, []):
                if g < gJ:
                    if do_pv:
                        VE[g].append(cur[0][idx] if kind == "e" else cur[1][idx][0])
                else:
                    if kind == "r" and nxt[1][idx][2]:
                        if do_pv:
                            VE[g].append(nxt[1][idx][0])
                    elif do_qk:
                        x = nxt[0][idx] if kind == "e" else nxt[1][idx][0]
                        if first and g < 32:
                            late.append(x)
                        else:
                            VE[g].append(x)
        if do_pv:
            VE[gJ].append(I(f"s_cbranch_vccnz L_fb{lid}"))
            VE[gJ].append(I(f"L_ret{lid}:"))
        def bartags(it):
            av = A(it)
            ks = []
            if av + 2 <= 63: ks.append(self.key("K", av + 2))
            if av + 1 <= 63: ks.append(self.key("V", av + 1))
            if av == 63: ks += self.wkeys("O", 0)
            return ks
        VE[gB].append(I("WAITTAG", tag=bartags))
        VE[gB].append(I("s_barrier"))
        for g, x in (extra_valu or []):
            VE[g].append(x)
        dg = [g for g in range(64) if pl[g] == "d"]
        after = [g for g in dg if g > gB]
        before = [g for g in dg if g < gB]
        def free_sc(g, step):
            while pl[g % 64] in "dBj" or SC[g % 64]:
                g += step
            assert 0 <= g < 64
            return g
        seq = [("V", 3, jj) for jj in range(4)] + [("K", 5, jj) for jj in range(4)]
        for i, g in enumerate(after + before):
            kind, off, jj = seq[i]
            if g < gB:
                off -= 1
            if aval is not None and aval + off > 63:
                t = aval + off
                m = {("K", 64): (0, 0), ("K", 65): (0, 1), ("K", 66): (1, 0), ("K", 67): (1, 1),
                     ("V", 64): (2, 0), ("V", 65): (2, 1)}.get((kind, t))
                if m is None:
                    continue
                pre, d = self.wfill("O", m[0], m[1])
                VE[g].append(d[jj])
                if jj == 0:
                    for x in pre:
                        SC[free_sc(g - 1, -1)].append(x)
                continue
            VE[g].append(self.dma(kind, (lambda off: lambda it: A(it) + off)(off), jj))
            if jj == 0:
                SC[free_sc(g - 1, -1)].append(self.m0(kind, c + off))
            if jj == 3:
                SC[free_sc(g + 1, 1)].append(self.adv(kind))
        for g, x in (extra_scalar or []):
            SC[free_sc(g, -1)].append(x)
        WG = 2
        for f0 in range(0, 32, WG):
            fs = list(range(f0, f0 + WG))
            if f0 == 0:
                if not next_k: continue
                g = free_sc(63, -1)
            else:
                if (f0 < 16 and not do_qk) or (f0 >= 16 and not do_pv): continue
                g = free_sc(2 * f0 - 1, -1)
            SC[g].append(I("WAITFOR " + ", ".join(a(frag(f), 4) for f in fs)))
        for g in range(64):
            f, qt = g // 2, g % 2
            fr = a(frag(f), 4)
            if f < 16 and do_qk:
                Sx = V_S[1-par]
                kt, sx = f // 8, f % 8
                D = v(Sx + 8*kt + 4*qt, 4)
                C = D if sx else ("0" if first else v(V_NEGM + 4*qt, 4))
                p(f"v_mfma_f32_16x16x32_bf16 {D}, {fr}, {a(A_Q + 8*sx + 4*qt, 4)}, {C}")
            if f >= 16 and do_pv:
                O = v(V_O + 8*(f-16) + 4*qt, 4)
                C = "0" if aval == 0 else O
                p(f"v_mfma_f32_16x16x32_bf16 {O}, {fr}, {v(V_P[par] + 4*qt, 4)}, {C}")
            for x in SC[g] + VE[g]:
                p(x)
            if g == 31 and first:
                S0 = V_S[1-par]
                self.tile_max(p, S0)
                self.apply_delta(p, S0, None, init=True)
                for x in late:
                    p(x)

    def tile_max(self, p, S):
        for qt in range(2):
            T = V_T0 + qt
            rs = [S + 4*qt + i for i in range(4)] + [S + 8 + 4*qt + i for i in range(4)]
            p(f"v_max3_f32 {v(T)}, {v(rs[0])}, {v(rs[1])}, {v(rs[2])}")
            p(f"v_max3_f32 {v(T)}, {v(T)}, {v(rs[3])}, {v(rs[4])}")
            p(f"v_max3_f32 {v(T)}, {v(T)}, {v(rs[5])}, {v(rs[6])}")
            p(f"v_max_f32 {v(T)}, {v(T)}, {v(rs[7])}")
            self.xreduce(p, T, "v_max_f32")

    def xreduce(self, p, T, op):
        p(f"v_mov_b32 {v(V_T3)}, {v(T)}")
        p(f"v_permlane32_swap_b32 {v(T)}, {v(V_T3)}")
        p(f"{op} {v(T)}, {v(T)}, {v(V_T3)}")
        p(f"v_mov_b32 {v(V_T3)}, {v(T)}")
        p(f"v_permlane16_swap_b32 {v(T)}, {v(V_T3)}")
        p(f"{op} {v(T)}, {v(T)}, {v(V_T3)}")

    def apply_delta(self, p, S, Sn, init=False):
        T = lambda r: v(V_T0 + (r // 4) % 2)
        for r in range(8):
            src = "0" if init else v(V_NEGM + r)
            p(f"v_sub_f32 {v(V_NEGM+r)}, {src}, {T(r)}")
        for r in range(16):
            p(f"v_sub_f32 {v(S+r)}, {v(S+r)}, {T(r)}")
        if Sn is not None:
            for r in range(16):
                p(f"v_sub_f32 {v(Sn+r)}, {v(Sn+r)}, {T(r)}")

    def fallback(self, p, par, lid, has_next):
        p.begin_side()
        p(f"L_fb{lid}:")
        p("s_nop 15")
        S = V_S[par]; Sn = V_S[1-par]
        self.tile_max(p, S)
        for qt in range(2):
            p(f"v_max_f32 {v(V_T0+qt)}, 0, {v(V_T0+qt)}")
        self.apply_delta(p, S, Sn if has_next else None)
        for qt in range(2):
            p(f"v_sub_f32 {v(V_T0+qt)}, 0, {v(V_T0+qt)}")
            p(f"v_exp_f32 {v(V_T0+qt)}, {v(V_T0+qt)}")
            p(f"v_mul_f32 {v(V_L+qt)}, {v(V_L+qt)}, {v(V_T0+qt)}")
        for r in range(128):
            p(f"v_mul_f32 {v(V_O+r)}, {v(V_O+r)}, {v(V_T0 + (r // 4) % 2)}")
        for x in self.softmax_linear(par):
            p(x)
        p("s_nop 1")
        p(f"s_branch L_ret{lid}")
        p.end_side()

    def gemm_phase(self, p, which, nst, nm, mfma_fn, fills, bartags, valu, xds):
        LEAD = self.o.get("lead", 18)
        SP = self.o.get("sp", 3)
        G = 2 * nm
        N = nst * G
        gb = G - LEAD - 1
        kindg = ["m"] * (N + 64)
        SC = [[] for _ in range(N + 64)]
        VE = [[] for _ in range(N + 64)]
        tail = []
        for i in range(nst):
            bt = bartags(i)
            if bt is not None:
                g = i * G + gb
                kindg[g] = "B"
                VE[g] = [I("WAITTAG", tag=bt), I("s_barrier")]
        for i in range(nst):
            k = 0
            for pre, d, post in fills(i):
                for jj, x in enumerate(d):
                    g = i * G + gb + 3 + k * SP
                    k += 1
                    if g >= N:
                        if jj == 0: tail += pre
                        tail.append(x)
                        if jj == len(d) - 1: tail += post
                        continue
                    assert kindg[g] == "m" and kindg[g-1] == "m" and kindg[g-2] == "m", (i, g)
                    kindg[g] = "d"
                    VE[g] = [x]
                    if jj == 0:
                        for kk, y in enumerate(pre):
                            SC[g - len(pre) + kk].append(y)
                    if jj == len(d) - 1:
                        if g + 1 < N: SC[g + 1] += post
                        else: tail += post
        dsq = []
        for i in range(nst):
            for t in range(nm):
                f = i * nm + t
                for e in range(2):
                    dsq.append((i * G + 2 * t + e - LEAD, self.wread(which, i, t, e, f), i * G + 2 * t))
        for i in range(nst):
            xs = xds(i)
            lo = max(0, (i - 1) * G + gb + 1); hi = i * G + gb - 4
            for k, x in enumerate(xs):
                g = lo + (k * (hi - lo)) // len(xs)
                if x.kind == "ds_write":
                    while kindg[g] != "m": g += 1
                    kindg[g] = "x"
                    VE[g] = [x]
                else:
                    dsq.append((g, x, i * G + gb + 6))
        dsq.sort(key=lambda z: z[0])
        for (g, x, c) in dsq:
            if g < 0: p(x)
        dsq = [z for z in dsq if z[0] >= 0]
        nds = [0] * (N + 64)
        q = 0
        minlead = 99
        for g in range(N):
            if kindg[g] != "m":
                continue
            while q < len(dsq) and dsq[q][0] <= g and nds[g] < 2:
                VE[g].append(dsq[q][1]); nds[g] += 1
                minlead = min(minlead, dsq[q][2] - g)
                q += 1
        assert q == len(dsq)
        assert minlead >= 7, minlead
        for i in range(nst):
            ops = valu(i)
            slots = []
            for g in range(i * G, (i + 1) * G):
                if kindg[g] == "m":
                    slots += [g] * (2 - nds[g])
            mg = [g for g in range(i * G, (i + 1) * G) if kindg[g] == "m"]
            k = 0
            while len(slots) < len(ops):
                slots.append(mg[(k * 7) % len(mg)]); k += 1
            slots.sort()
            for k, x in enumerate(ops):
                VE[slots[(k * len(slots)) // len(ops)]].append(x)
        for f0 in range(2, nst * nm, 2):
            g = 2 * f0 - 1
            while kindg[g] in "dB" or SC[g]:
                g -= 1
            SC[g].append(I("WAITFOR " + ", ".join(a(frag(f), 4) for f in (f0, f0 + 1))))
        for g in range(N):
            i, t, qt = g // G, (g % G) // 2, g % 2
            p(mfma_fn(i, t, qt, a(frag(i * nm + t), 4)))
            abl = self.o.get("gabl", "")
            for x in SC[g] + VE[g]:
                if "D" in abl and x.kind == "dma": continue
                if "B" in abl and x.kind == "barrier": continue
                if "R" in abl and x.kind == "ds_read": continue
                if "W" in abl and x.kind == "ds_write": continue
                if "V" in abl and x.kind == "valu" and ("mul" in x.mn or "cvt" in x.mn or "fma" in x.mn): continue
                p(x)
        for x in tail:
            p(x)


def gen_attn(opts=None):
    opts = opts or {}
    name = opts.get("name", "attn_kernel")
    p = Prog(name)
    at = Attn(opts)
    thr = opts.get("thr", 0x5f800000)
    p(f"""
    s_cmp_ge_u32 s2, 256
    s_cbranch_scc1 L_end{name}
    s_load_dwordx8 s[4:11], s[0:1], 8
    s_load_dwordx2 s[12:13], s[0:1], 112
    v_lshrrev_b32 v1, 6, v0
    v_readfirstlane_b32 {s(S_W)}, v1
    s_and_b32 {s(S_J)}, s2, 7
    s_lshr_b32 {s(S_PB)}, s2, 3
    v_and_b32 v1, 63, v0
    v_lshlrev_b32 {v(V_LIN)}, 4, v1
    s_lshr_b32 {s(S_HD)}, {s(S_W)}, 1
    s_and_b32 s14, {s(S_W)}, 1
    s_lshl_b32 {s(S_QT)}, {s(S_PB)}, 2
    s_lshl_b32 s14, s14, 1
    s_add_u32 {s(S_QT)}, {s(S_QT)}, s14
    s_waitcnt lgkmcnt(0)
    """)
    stamp(p, 0)
    srd(p, SRD_W, 12, 13, WS_USED)
    srd(p, SRD_Q, 8, 9, 448 * 8192)
    def extras():
        if opts.get("touch", True):
            p(f"""
            v_lshrrev_b32 v1, {4 if opts.get("t64", False) else 3}, v0
            v_min_u32 v1, 13, v1
            v_lshlrev_b32 v1, 13, v1
            v_and_b32 v2, {15 if opts.get("t64", False) else 7}, v0
            v_lshl_add_u32 v1, v2, {6 if opts.get("t64", False) else 7}, v1
            s_mul_i32 s53, {s(S_PB)}, {14*8192}
            s_add_u32 s53, s53, {s(S_WBASE)}
            buffer_load_dword v{V_O+127}, v1, {s(SRD_Q,4)}, s53 offen
            """)
        if opts.get("cpf", True):
            code_prefetch(p, name, f"L_end{name}", 12, 1, V_O + 126)
    p(f"s_lshl_b32 {s(S_WBASE)}, {s(S_J)}, 10")
    extras()
    V_MRD = 3
    p(f"""
    s_mul_i32 s14, {s(S_QT)}, {14*1024}
    s_mul_i32 s15, {s(S_HD)}, {7*1024}
    s_add_u32 s14, s14, s15
    s_add_u32 s14, s14, {WS_XN}
    s_add_u32 s15, s14, {14*1024}
    s_add_u32 s50, s14, 4096
    s_add_u32 s51, s15, 4096
    s_lshl_b32 s52, {s(S_W)}, 11
    s_add_u32 s52, s52, {MODL}
    s_mov_b32 m0, s52
    s_mul_i32 s53, {s(S_HD)}, 896
    s_add_u32 s54, s53, {WS_MOD + 1792 - 1024}
    """)
    mt = ("dma", ("M", 0), "private")
    p(f"buffer_load_dwordx4 {v(V_LIN)}, {s(SRD_W,4)}, s53 offen offset:{WS_MOD} lds", tag=mt)
    p(f"buffer_load_dwordx4 {v(V_LIN)}, {s(SRD_W,4)}, s54 offen offset:1024 lds", tag=mt)
    for ks in range(7):
        for qt in range(2):
            so = (14 + qt) if ks < 4 else (50 + qt)
            p(f"buffer_load_dwordx4 {v(V_H+8*ks+4*qt,4)}, {v(V_LIN)}, {s(SRD_W,4)}, s{so} offen offset:{(ks % 4)*1024}")
    p(f"""
    s_mul_i32 {s(S_M0V)}, {s(S_W)}, 4160
    s_lshl_b32 {s(S_M0K)}, {s(S_W)}, 12
    s_lshl_b32 {s(S_WBASE)}, {s(S_J)}, 10
    v_bfe_u32 v1, v0, 5, 1              ; hh
    v_and_b32 v2, 31, v0
    v_lshlrev_b32 {v(V_TMP)}, 1, v1
    v_xor_b32 v2, v2, {v(V_TMP)}        ; chunk
    v_lshlrev_b32 v1, 3, v1
    v_add_u32 v1, {s(S_W)}, v1          ; 8hh + w
    v_lshlrev_b32 v1, 13, v1
    v_lshl_add_u32 {v(V_WDMA)}, v2, 4, v1
    """)
    for jj in range(1, 4):
        p(f"v_add_u32 {v(V_WDMA+jj)}, {(16*(jj % 2) + 4*(jj//2))*8192 - jj*1024}, {v(V_WDMA)}")
    def emit_wfill(which, st):
        for hf in range(2):
            pre, d = at.wfill(which, st, hf)
            p.extend(pre); p.extend(d)
    emit_wfill("Q", 0)
    p(f"""
    v_bfe_u32 v1, v0, 2, 2
    v_mul_u32_u24 v1, 4160, v1
    v_and_b32 v2, 3, v0
    v_lshl_add_u32 v1, v2, 3, v1
    v_bfe_u32 v2, v0, 4, 2
    v_lshl_add_u32 v1, v2, 9, v1
    v_lshlrev_b32 v{V_MRD}, 5, v2
    v_add_u32 v{V_MRD}, s52, v{V_MRD}
    v_bfe_u32 v2, v0, 4, 1
    v_lshl_add_u32 {v(V_TMP)}, v2, 5, v1
    s_mul_i32 s14, {s(S_HD)}, {SLOT}
    v_add_u32 {v(V_WRD)}, s14, {v(V_TMP)}
    v_xor_b32 {v(V_WRD+1)}, 32, {v(V_WRD)}
    v_add_u32 {v(V_WRD+2)}, {4*SLOT}, {v(V_WRD)}
    v_add_u32 {v(V_WRD+3)}, {4*SLOT}, {v(V_WRD+1)}
    s_lshl_b32 s14, {s(S_W)}, 12
    s_add_u32 s14, s14, {8*SLOT}
    v_add_u32 {v(V_XW)}, s14, {v(V_LIN)}
    v_xor_b32 {v(V_XR)}, 0x2000, {v(V_XW)}
    """)
    MB = 72
    TM = 120
    def modreads(ks):
        M = MB + 16 * (ks % 3)
        rt = ("rd", ("M", 0), "private")
        return [I(f"ds_read_b128 {v(M + 8*k + 4*h, 4)}, v{V_MRD} offset:{1024*(1-k) + 128*ks + 16*h}", tag=rt)
                for k in range(2) for h in range(2)]
    def modulate(ks, pk):
        M = MB + 16 * (ks % 3)
        out = []
        for qt in range(2):
            for d in range(4):
                x = V_H + 8*ks + 4*qt + d
                t = TM + 2 * d
                out.append(I(f"v_lshlrev_b32 v{t}, 16, v{x}"))
                out.append(I(f"v_and_b32 v{t+1}, 0xffff0000, v{x}"))
                if pk:
                    out.append(I(f"v_pk_fma_f32 {v(t,2)}, {v(t,2)}, {v(M+2*d,2)}, {v(M+8+2*d,2)}"))
                else:
                    out.append(I(f"v_fma_f32 v{t}, v{t}, v{M+2*d}, v{M+8+2*d}"))
                    out.append(I(f"v_fma_f32 v{t+1}, v{t+1}, v{M+2*d+1}, v{M+8+2*d+1}"))
                out.append(I(f"v_cvt_pk_bf16_f32 v{x}, v{t}, v{t+1}"))
        return out
    NUP = opts.get("nup", 4)
    stamp(p, 1)
    p(I("WAITTAG", tag=[("M", 0)]))
    stamp(p, 2)
    p.extend(modreads(0)); p.extend(modreads(1)); p.extend(modreads(2))
    assert NUP >= 4
    for ks in range(NUP):
        p.extend(modulate(ks, True))
        if ks + 3 < 7:
            p.extend(modreads(ks + 3))
        if ks == 0:
            emit_wfill("Q", 1)
        if ks == 2:
            emit_wfill("Q", 2)
    stamp(p, 3)
    p(I("WAITTAG", tag=at.wkeys("Q", 0)))
    p("s_barrier")
    stamp(p, 4)
    srd(p, SRD_O, 10, 11, 4096 * 896)
    p(f"""
    s_lshl_b32 s14, {s(S_J)}, 20
    s_add_u32 {s(SRD_K)}, s4, s14
    s_addc_u32 {s(SRD_K+1)}, s5, 0
    s_mov_b32 {s(SRD_K+2)}, 0x100000
    s_mov_b32 {s(SRD_K+3)}, 0x20000
    s_add_u32 {s(SRD_V)}, s6, s14
    s_addc_u32 {s(SRD_V+1)}, s7, 0
    s_mov_b32 {s(SRD_V+2)}, 0x100000
    s_mov_b32 {s(SRD_V+3)}, 0x20000
    s_mov_b32 {s(S_KOFF)}, 0
    s_mov_b32 {s(S_VOFF)}, 0
    s_mov_b32 {s(S_THR)}, {thr}
    s_lshl_b32 s15, {s(S_W)}, 3
    """)
    setup = f"""
    v_bfe_u32 v1, v0, 5, 1
    v_and_b32 v2, 31, v0
    v_add_u32 v16, s15, v1
    v_lshlrev_b32 v17, 9, v16
    v_and_b32 v16, 15, v16
    v_xor_b32 v16, v16, v2
    v_lshl_add_u32 {v(V_KDMA)}, v16, 4, v17
    v_xor_b32 {v(V_KDMA+1)}, 32, {v(V_KDMA)}
    v_xor_b32 {v(V_KDMA+2)}, 64, {v(V_KDMA)}
    v_xor_b32 {v(V_KDMA+3)}, 96, {v(V_KDMA)}
    v_lshlrev_b32 v16, 2, v1
    v_add_u32 v16, {s(S_W)}, v16
    v_lshlrev_b32 v16, 9, v16
    v_lshlrev_b32 v17, 1, v1
    v_xor_b32 v17, v17, v2
    v_lshl_add_u32 {v(V_VDMA)}, v17, 4, v16
    v_add_u32 {v(V_VDMA+1)}, 3072, {v(V_VDMA)}
    v_add_u32 {v(V_VDMA+2)}, 6144, {v(V_VDMA)}
    v_add_u32 {v(V_VDMA+3)}, 9216, {v(V_VDMA)}
    v_and_b32 v16, 15, v0
    v_bfe_u32 v17, v0, 4, 2
    v_xor_b32 v17, v17, v16
    v_lshlrev_b32 v16, 9, v16
    v_add_u32 v16, {4*SLOT}, v16
    v_lshl_add_u32 {v(V_KRD)}, v17, 4, v16
    v_xor_b32 {v(V_KRD+1)}, 64, {v(V_KRD)}
    v_xor_b32 {v(V_KRD+2)}, 0x80, {v(V_KRD)}
    v_xor_b32 {v(V_KRD+3)}, 0xc0, {v(V_KRD)}
    v_mov_b32 {v(V_VRD)}, {v(V_TMP)}
    v_xor_b32 {v(V_VRD+1)}, 32, {v(V_TMP)}
    v_mov_b32 {v(V_L)}, 0
    v_mov_b32 {v(V_L+1)}, 0
    """
    setup = [I(x.strip()) for x in setup.strip().split("\n")]
    assert (4 * SLOT) % 256 == 0
    def q_mfma(i, t, qt, fr):
        D = v(V_O + 8*t + 4*qt, 4)
        Bop = v(V_H + 8*i + 4*qt, 4) if i < 7 else a(A_HP + 8*(i-7) + 4*qt, 4)
        return f"v_mfma_f32_16x16x32_bf16 {D}, {fr}, {Bop}, {D if i else 0}"
    def q_fills(i):
        st = i + 3
        if st < 14:
            return [at.wfill("Q", st, hf) + ([],) for hf in range(2)]
        if i == 11: return [at.kvfill("K", 0), at.kvfill("K", 1)]
        if i == 12: return [at.kvfill("K", 2)]
        return [at.kvfill("V", 0), at.kvfill("V", 1, range(at.nafter))]
    def q_bar(i):
        ks = at.wkeys("Q", i + 1) if i < 13 else [at.key("K", 0)]
        i -= 1
        if 0 <= i < 8:
            ks = ks + [(8, i // 2)] if i % 2 == 0 else ks + [("rd", 8, i // 2)]
        return ks
    def q_valu(i):
        out = []
        if NUP + i < 7:
            out += modulate(NUP + i, False)
        if i in (8, 9, 10):
            n = len(setup)
            out += setup[(i-8)*n//3:(i-7)*n//3]
        return out
    def q_xds(i):
        out = []
        i -= 1
        if 0 <= i < 8:
            rho = i // 2
            for k in range(4):
                u, qt = 2*rho + k // 2, k % 2
                if u >= 7: continue
                if i % 2 == 0:
                    out.append(I(f"ds_write_b128 {v(V_XW)}, {v(V_H + 8*u + 4*qt, 4)} offset:{1024*k}", tag=("wr", (8, rho))))
                else:
                    out.append(I(f"ds_read_b128 {a(A_HP + 8*u + 4*qt, 4)}, {v(V_XR)} offset:{1024*k}", tag=("rd", (8, rho))))
        return out
    at.gemm_phase(p, "Q", 14, 16, q_mfma, q_fills, q_bar, q_valu, q_xds)
    stamp(p, 5)
    p("s_load_dwordx4 s[4:7], s[0:1], 48")
    p("s_load_dwordx2 s[8:9], s[0:1], 72")
    p("s_waitcnt lgkmcnt(0)")
    for g in range(at.gB + 1, 64):
        for (f, e, nx) in at.ds.get(g, []):
            p(at.kread(lambda it: 0, 0, f))
    p(f"""
    v_bfe_u32 v1, v0, 5, 1
    v_and_b32 v2, 31, v0
    v_lshlrev_b32 v3, 1, v1
    v_xor_b32 v3, v3, v2
    v_lshlrev_b32 v1, 2, v1
    v_add_u32 v1, {s(S_W)}, v1
    v_mul_u32_u24 v1, 896, v1
    v_lshl_add_u32 v1, v3, 4, v1
    v_mov_b32 v3, 0x40000000
    v_cmp_gt_u32 vcc, 28, v2
    v_cndmask_b32 {v(V_WDMA)}, v3, v1, vcc
    v_add_u32 {v(V_WDMA+1)}, {8*896 - 1024}, {v(V_WDMA)}
    v_add_u32 {v(V_WDMA+2)}, {16*896 - 2048}, {v(V_WDMA)}
    v_add_u32 {v(V_WDMA+3)}, {24*896 - 3072}, {v(V_WDMA)}
    s_mul_i32 {s(S_WBASE)}, {s(S_J)}, {512*896}
    """)
    assert (8 * SLOT) & 0x3fff == (8 * SLOT) % 16384 and ((8 * SLOT) % 16384) + 4096 <= 8192
    for sx in range(8):
        for qt in range(2):
            X = V_O + 16*sx + 4*qt
            Y = X + 8
            p(f"v_cvt_pk_bf16_f32 v{X}, v{X}, v{X+1}")
            p(f"v_cvt_pk_bf16_f32 v{X+1}, v{X+2}, v{X+3}")
            p(f"v_cvt_pk_bf16_f32 v{Y}, v{Y}, v{Y+1}")
            p(f"v_cvt_pk_bf16_f32 v{Y+1}, v{Y+2}, v{Y+3}")
        for qt in range(2):
            X = V_O + 16*sx + 4*qt
            Y = X + 8
            p(f"v_permlane32_swap_b32 v{X}, v{Y}")
            p(f"v_permlane32_swap_b32 v{X+1}, v{Y+1}")
        for qt in range(2):
            X = V_O + 16*sx + 4*qt
            Y = X + 8
            p(f"v_permlane16_swap_b32 v{X}, v{Y}")
            p(f"v_permlane16_swap_b32 v{X+1}, v{Y+1}")
        for qt in range(2):
            X = V_O + 16*sx + 4*qt
            Y = X + 8
            for k, r in enumerate((X, X+1, Y, Y+1)):
                p(f"v_accvgpr_write_b32 a{A_Q + 8*sx + 4*qt + k}, v{r}")
    stamp(p, 6)
    lid = [opts.get("lid0", 0)]
    def B(c, fn, aval=None, **kw):
        at.body(p, c, fn, aval=aval, lid=lid[0], **kw)
        if aval != -1:
            at.fallback(p, c % 2, lid[0], aval != 63)
        lid[0] += 1
    B(3, lambda it: -1, aval=-1)
    if opts.get("touch", True):
        p(f"""
        v_min_u32 v1, {223 if opts.get("t64", False) else 111}, v0
        v_lshlrev_b32 v1, {6 if opts.get("t64", False) else 7}, v1
        s_mul_i32 s53, {s(S_PB)}, {112*128}
        s_add_u32 s53, s53, {s(S_WBASE)}
        buffer_load_dword v2, v1, {s(SRD_O,4)}, s53 offen
        """)
    exv = None
    if opts.get("warm", True) and opts.get("wloop", False):
        srd(p, 52, 6, 7, 2048 * 4096)
        p(f"""
        v_and_b32 v16, 63, v0
        v_min_u32 v16, 4, v16
        s_mul_i32 s14, {s(S_W)}, 640
        s_lshl_b32 s59, s2, 15
        s_add_u32 s59, s59, s14
        v_lshlrev_b32 v16, 7, v16
        """)
        exv = [(at.gB, I("buffer_load_dword v17, v16, s[52:55], s59 offen"))]
    B(0, lambda it: 0, aval=0, extra_scalar=[(60, I(f"s_mov_b32 {s(S_CNT)}, 14"))])
    p.begin_loop(14)
    p(f"L_loop{name}:")
    for c in range(1, 5):
        ex = [(60, I(f"s_sub_u32 {s(S_CNT)}, {s(S_CNT)}, 1"))] if c == 2 else None
        if c == 3 and exv: ex = [(60, I("s_add_u32 s59, s59, 2560"))]
        B(c % 4, (lambda c: lambda it: 4*it + c)(c), extra_scalar=ex, extra_valu=exv if c == 1 else None)
    p(f"s_cmp_lg_u32 {s(S_CNT)}, 0")
    p(f"s_cbranch_scc1 L_loop{name}")
    p.end_loop()
    for av in range(57, 64):
        B(av % 4, (lambda av: lambda it: av)(av), aval=av)
    stamp(p, 7)
    for qt in range(2):
        at.xreduce(p, V_L + qt, "v_add_f32")
        p(f"v_rcp_f32 v{2+qt}, {v(V_L+qt)}")
    def conv(u):
        out = []
        for qt in range(2):
            X = V_O + 16*u + 4*qt
            Y = X + 8
            for r in (X, X+1, X+2, X+3, Y, Y+1, Y+2, Y+3):
                out.append(I(f"v_mul_f32 v{r}, v{r}, v{2+qt}"))
            out.append(I(f"v_cvt_pk_bf16_f32 v{X}, v{X}, v{X+1}"))
            out.append(I(f"v_cvt_pk_bf16_f32 v{X+1}, v{X+2}, v{X+3}"))
            out.append(I(f"v_cvt_pk_bf16_f32 v{X+2}, v{Y}, v{Y+1}"))
            out.append(I(f"v_cvt_pk_bf16_f32 v{X+3}, v{Y+2}, v{Y+3}"))
        return out
    p.extend(conv(0)); p.extend(conv(1))
    ACC = V_H
    WV = V_O + 8
    p(f"""
    s_mul_i32 s14, s2, {49*128}
    s_mul_i32 s15, s2, {25*128}
    s_lshl_b32 s59, s2, 8
    """)
    p("s_lshl_b32 s58, s2, 15")
    wops = [I(x) for x in (f"v_lshl_add_u32 v{WV}, v0, 7, s58", f"v_min_u32 v{WV+1}, 48, v0", f"v_lshl_add_u32 v{WV+1}, v{WV+1}, 7, s14",
                           f"v_min_u32 v{WV+2}, 24, v0", f"v_lshl_add_u32 v{WV+2}, v{WV+2}, 7, s15",
                           f"v_min_u32 v{WV+2}, {896*896-4}, v{WV+2}")]
    if opts.get("tail_code"):
        l0, l1 = opts["tail_code"]
        p("s_getpc_b64 s[10:11]")
        p(f"L_tc{name}:")
        wops += [I(x) for x in (f"v_min_u32 v{WV+3}, 1, v0", f"v_lshl_add_u32 v{WV+3}, v{WV+3}, 7, s59",
                                f"v_min_u32 v{WV+3}, {l1}-{l0}-4, v{WV+3}", f"v_add_u32 v{WV+3}, {l0}-L_tc{name}, v{WV+3}")]
    def o_mfma(i, t, qt, fr):
        D = v(ACC + 8*t + 4*qt, 4)
        Bop = v(V_O + 16*i + 4*qt, 4) if i < 8 else a(A_Q + 8*(i-8) + 4*qt, 4)
        return f"v_mfma_f32_16x16x32_bf16 {D}, {fr}, {Bop}, {D if i else 0}"
    def o_fills(i):
        st = i + 3
        if i == 13 and opts.get("warm", True):
            ld = [I(f"global_load_dword v{WV+5}, v{WV+1}, s[4:5]"),
                  I(f"global_load_dword v{WV+6}, v{WV+2}, s[8:9]")]
            if not opts.get("wloop", False):
                ld.append(I(f"global_load_dword v{WV+4}, v{WV}, s[6:7]"))
            if opts.get("tail_code"):
                ld.append(I(f"global_load_dword v{WV+7}, v{WV+3}, s[10:11]"))
            return [([], ld, [])]
        return [at.wfill("O", st, hf) + ([],) for hf in range(2)] if st < 16 else []
    def o_bar(i):
        if i == 15: return None
        ks = at.wkeys("O", i + 1)
        i -= 1
        if 0 <= i < 8:
            ks = ks + [(8, 10 + i // 2)] if i % 2 == 0 else ks + [("rd", 8, 10 + i // 2)]
        return ks
    def o_valu(i):
        if i == 12 and opts.get("warm", True):
            return wops
        return conv(i + 2) if i + 2 < 8 else []
    def o_xds(i):
        i -= 1
        if i >= 8 or i < 0: return []
        rho = i // 2
        out = []
        for k in range(4):
            u, qt = 2*rho + k // 2, k % 2
            if i % 2 == 0:
                out.append(I(f"ds_write_b128 {v(V_XW)}, {v(V_O + 16*u + 4*qt, 4)} offset:{1024*k}", tag=("wr", (8, 10 + rho))))
            else:
                out.append(I(f"ds_read_b128 {a(A_Q + 8*u + 4*qt, 4)}, {v(V_XR)} offset:{1024*k}", tag=("rd", (8, 10 + rho))))
        return out
    at.gemm_phase(p, "O", 16, 14, o_mfma, o_fills, o_bar, o_valu, o_xds)
    stamp(p, 8)
    p(f"""
    s_lshl_b32 s14, {s(S_J)}, 7
    s_add_u32 s14, s14, {s(S_QT)}
    s_mul_i32 s14, s14, {14*1024}
    s_mul_i32 s15, {s(S_HD)}, {7*1024}
    s_add_u32 s14, s14, s15
    s_add_u32 s14, s14, {WS_PART}
    s_add_u32 s15, s14, {14*1024}
    s_add_u32 s50, s14, 4096
    s_add_u32 s51, s15, 4096
    """)
    for uu in range(7):
        for qt in range(2):
            X = ACC + 16*uu + 4*qt
            Y = X + 8
            p(f"v_cvt_pk_bf16_f32 v{X}, v{X}, v{X+1}")
            p(f"v_cvt_pk_bf16_f32 v{X+1}, v{X+2}, v{X+3}")
            p(f"v_cvt_pk_bf16_f32 v{X+2}, v{Y}, v{Y+1}")
            p(f"v_cvt_pk_bf16_f32 v{X+3}, v{Y+2}, v{Y+3}")
            so = (14 + qt) if uu < 4 else (50 + qt)
            p(f"buffer_store_dwordx4 {v(X,4)}, {v(V_LIN)}, {s(SRD_W,4)}, s{so} offen offset:{(uu % 4)*1024}")
    stamp_dump(p, opts.get("slot", 1), 10, SRD_W, S_W)
    p(f"L_end{name}:")
    p("s_endpgm")
    if opts.get("gabl"):
        p.check_lds = lambda: None
    p.finalize()
    return p, f"; @launch kernel={name} grid=(256,1,1) block=(256,1,1) lds={LDS_BYTES}\n"
```

```python
import sys
sys.path.insert(0, "work")
from asmlib import *
from layout import *
import struct
def f2u(x): return struct.unpack("<I", struct.pack("<f", x))[0]
LOG2E = 1.4426950408889634
QSCALE = LOG2E / 16.0

def srd(p, d, lo, hi, nbytes):
    p(f"s_mov_b32 s{d}, s{lo}")
    p(f"s_mov_b32 s{d+1}, s{hi}")
    p(f"s_mov_b32 s{d+2}, {nbytes}")
    p(f"s_mov_b32 s{d+3}, 0x20000")

def xreduce(p, T, tmp, op):
    p(f"v_mov_b32 {v(tmp)}, {v(T)}")
    p(f"v_permlane32_swap_b32 {v(T)}, {v(tmp)}")
    p(f"{op} {v(T)}, {v(T)}, {v(tmp)}")
    p(f"v_mov_b32 {v(tmp)}, {v(T)}")
    p(f"v_permlane16_swap_b32 {v(T)}, {v(tmp)}")
    p(f"{op} {v(T)}, {v(T)}, {v(tmp)}")

PREP_GRID = 74
STAMP = {"on": False}

def code_prefetch(p, tag, endlabel, lines_per_wg, vt, vd, sp=(56, 57)):
    p(f"s_getpc_b64 s[{sp[0]}:{sp[1]}]")
    p(f"L_pf_{tag}:")
    p(f"s_lshr_b32 s58, s2, 3")
    p(f"s_mul_i32 s58, s58, {lines_per_wg * 128}")
    p(f"v_min_u32 v{vt}, {lines_per_wg - 1}, v0")
    p(f"v_lshlrev_b32 v{vt}, 7, v{vt}")
    p(f"v_add_u32 v{vt}, s58, v{vt}")
    p(f"v_min_u32 v{vt}, {endlabel}-L_pf_{tag}-4, v{vt}")
    p(f"global_load_dword v{vd}, v{vt}, s[{sp[0]}:{sp[1]}]")

def stamp(p, k):
    if STAMP["on"]:
        p(f"s_memtime s[{60+4*k}:{61+4*k}]")
        p(f"s_memrealtime s[{62+4*k}:{63+4*k}]")
        p("s_waitcnt lgkmcnt(0)")

def stamp_dump(p, slot, n, srdw, swave, wshift=2):
    if not STAMP["on"]:
        return
    p("s_waitcnt vmcnt(0)")
    stamp(p, n - 1)
    p(f"""
    s_lshl_b32 s13, s2, 2
    s_and_b32 s14, s{swave}, 3
    s_add_u32 s13, s13, s14
    s_lshl_b32 s13, s13, 7
    s_add_u32 s13, s13, {WS_STAMP + 131072 * slot}
    v_mov_b32 v1, 0
    """)
    for k in range(n):
        p(f"v_mov_b32 v2, s{60+4*k}")
        p(f"v_mov_b32 v3, s{62+4*k}")
        p(f"buffer_store_dwordx2 v[2:3], v1, s[{srdw}:{srdw+3}], s13 offen offset:{8*k}")

def gen_prep(code=None):
    p = Prog("prep_kernel")
    p(f"""
    s_cmp_ge_u32 s2, {PREP_GRID}
    s_cbranch_scc1 L_prep_end
    s_cmp_ge_u32 s2, 74
    s_cbranch_scc1 L_prep_warm
    s_load_dwordx2 s[4:5], s[0:1], 0
    s_load_dwordx4 s[8:11], s[0:1], 80
    s_load_dwordx2 s[6:7], s[0:1], 112
    s_waitcnt lgkmcnt(0)
    """)
    stamp(p, 0)
    p("v_lshrrev_b32 v6, 6, v0")
    p("v_readfirstlane_b32 s40, v6")
    srd(p, 16, 4, 5, 2048 * 896)
    srd(p, 20, 8, 9, 896)
    srd(p, 24, 10, 11, 448 * 5376)
    srd(p, 28, 6, 7, WS_USED)
    p("s_cmp_ge_u32 s2, 42")
    p("s_cbranch_scc1 L_prep_ln")
    p(f"""
    v_and_b32 v1, 7, v0
    v_lshrrev_b32 v2, 3, v0
    v_lshlrev_b32 v3, 1, v2
    v_mul_u32_u24 v4, 5376, v2
    v_lshl_add_u32 v4, v1, 4, v4
    s_lshl_b32 s12, s2, 7
    """)
    for i in range(14):
        p(f"buffer_load_ushort v{16+i}, v3, s[20:23], 0 offen offset:{64*i}")
    for i in range(14):
        p(f"buffer_load_dwordx4 {v(32+4*i,4)}, v4, s[24:27], s12 offen")
        if i < 13:
            p(f"s_add_u32 s12, s12, {32*5376}")
    p(f"s_mov_b32 s13, {f2u(-LOG2E)}")
    for i in range(14):
        x = 16 + i
        p(f"v_lshlrev_b32 v{x}, 16, v{x}")
        p(f"v_mul_f32 v5, s13, v{x}")
        p(f"v_exp_f32 v5, v5")
        p(f"v_add_f32 v5, 1.0, v5")
        p(f"v_rcp_f32 v5, v5")
        p(f"v_mul_f32 v5, v5, v{x}")
        p(f"v_cvt_pk_bf16_f32 v5, v5, v5")
        p(f"v_lshlrev_b32 v{x}, 16, v5")
    for r in range(8):
        p(f"v_mov_b32 v{8+r}, 0")
    for i in range(14):
        for d in range(4):
            w = 32 + 4*i + d
            p(f"v_lshlrev_b32 v5, 16, v{w}")
            p(f"v_and_b32 v6, 0xffff0000, v{w}")
            p(f"v_fmac_f32 v{8+2*d}, v5, v{16+i}")
            p(f"v_fmac_f32 v{9+2*d}, v6, v{16+i}")
    p(f"""
    v_lshlrev_b32 v5, 5, v0
    ds_write_b128 v5, v[8:11]
    ds_write_b128 v5, v[12:15] offset:16
    s_waitcnt lgkmcnt(0)
    s_barrier
    v_lshrrev_b32 v6, 6, v0
    v_readfirstlane_b32 s14, v6
    s_cmp_lg_u32 s14, 0
    s_cbranch_scc1 L_prep_end
    v_lshlrev_b32 v5, 2, v0
    """)
    for i in range(32):
        p(f"ds_read_b32 v{32+i}, v5 offset:{256*i}")
    for st in (16, 8, 4, 2, 1):
        for i in range(st):
            p(f"v_add_f32 v{32+i}, v{32+i}, v{32+i+st}")
    p(f"""
    v_cvt_pk_bf16_f32 v32, v32, v32
    v_lshlrev_b32 v32, 16, v32
    s_mul_i32 s14, s2, 37
    s_lshr_b32 s14, s14, 8
    s_cmp_eq_u32 s14, 1
    s_cselect_b32 s15, 1, 0
    s_cmp_eq_u32 s14, 4
    s_cselect_b32 s15, 1, s15
    s_cmp_eq_u32 s15, 0
    s_cbranch_scc1 L_prep_no1
    v_add_f32 v32, 1.0, v32
    v_cvt_pk_bf16_f32 v32, v32, v32
    v_lshlrev_b32 v32, 16, v32
    L_prep_no1:
    s_cmp_lt_u32 s14, 2
    s_cselect_b32 s15, {f2u(QSCALE)}, 1.0
    v_mul_f32 v32, s15, v32
    s_lshl_b32 s12, s2, 8
    buffer_store_dword v32, v5, s[28:31], s12 offen offset:{WS_MOD}
    """)
    stamp_dump(p, 0, 2, 28, 40)
    p("s_endpgm")
    p(f"""
    L_prep_ln:
    v_lshrrev_b32 v6, 6, v0
    v_readfirstlane_b32 s14, v6
    s_sub_u32 s12, s2, 42
    s_lshl_b32 s12, s12, 2
    s_add_u32 s12, s12, s14          ; q-tile
    v_and_b32 v1, 15, v0
    v_bfe_u32 v2, v0, 4, 2
    v_mul_u32_u24 v3, 896, v1
    v_lshl_add_u32 v3, v2, 4, v3
    s_mul_i32 s13, s12, {16*896}
    """)
    X = 16
    F = 72
    for ks in range(14):
        p(f"buffer_load_dwordx4 {v(X+4*ks,4)}, v3, s[16:19], s13 offen offset:{64*ks}")
    p(f"""
    v_and_b32 v4, 63, v0
    v_lshlrev_b32 v5, 2, v4
    v_mov_b32 v6, 0
    s_lshl_b32 s14, s12, 7
    s_add_u32 s14, s14, {WS_STATS}
    v_cmp_gt_u32 vcc, 32, v4
    s_and_saveexec_b64 s[34:35], vcc
    buffer_store_dword v6, v5, s[28:31], s14 offen
    s_mov_b64 exec, s[34:35]
    v_lshlrev_b32 v4, 4, v4
    v_mov_b32 v8, 0
    v_mov_b32 v9, 0
    """)
    for d in range(56):
        p(f"v_lshlrev_b32 v{F+2*d}, 16, v{X+d}")
        p(f"v_and_b32 v{F+2*d+1}, 0xffff0000, v{X+d}")
        p(f"v_pk_add_f32 v[8:9], v[8:9], {v(F+2*d,2)}")
    p("v_add_f32 v8, v8, v9")
    xreduce(p, 8, 10, "v_add_f32")
    p(f"v_mul_f32 v8, {f2u(-1.0/448)}, v8")
    p("v_mov_b32 v10, 0")
    p("v_mov_b32 v11, 0")
    for d in range(56):
        p(f"v_pk_add_f32 {v(F+2*d,2)}, {v(F+2*d,2)}, v[8:9] op_sel_hi:[1,0]")
        p(f"v_pk_fma_f32 v[10:11], {v(F+2*d,2)}, {v(F+2*d,2)}, v[10:11]")
    p("v_add_f32 v10, v10, v11")
    xreduce(p, 10, 12, "v_add_f32")
    p(f"""
    v_mov_b32 v12, {f2u(1e-5)}
    v_fmac_f32 v12, {f2u(1.0/448)}, v10
    v_rsq_f32 v12, v12
    s_mul_i32 s13, s12, {14*1024}
    s_add_u32 s13, s13, {WS_XN}
    """)
    for ks in range(14):
        for d in range(4*ks, 4*ks+4):
            p(f"v_pk_mul_f32 {v(F+2*d,2)}, {v(F+2*d,2)}, v[12:13] op_sel_hi:[1,0]")
            p(f"v_cvt_pk_bf16_f32 v{X+d}, v{F+2*d}, v{F+2*d+1}")
        p(f"buffer_store_dwordx4 {v(X+4*ks,4)}, v4, s[28:31], s13 offen offset:{(ks % 4)*1024}")
        if ks % 4 == 3:
            p("s_add_u32 s13, s13, 4096")
    stamp_dump(p, 0, 2, 28, 40)
    p("s_endpgm")
    p(f"""
    L_prep_warm:
    s_load_dwordx2 s[4:5], s[0:1], 24
    s_load_dwordx4 s[8:11], s[0:1], 48
    s_load_dwordx2 s[6:7], s[0:1], 72
    s_sub_u32 s12, s2, 74
    s_lshl_b32 s12, s12, 15
    v_lshl_add_u32 v1, v0, 7, s12
    s_waitcnt lgkmcnt(0)
    """)
    srd(p, 16, 4, 5, 448 * 8192)
    srd(p, 20, 8, 9, 448 * 3584)
    srd(p, 24, 10, 11, 2048 * 4096)
    srd(p, 28, 6, 7, 896 * 896)
    NL = 182 * 256 * 128
    p(f"""
    buffer_load_dword v2, v1, s[16:19], 0 offen
    v_subrev_u32 v3, {448*8192}, v1
    buffer_load_dword v4, v3, s[20:23], 0 offen
    buffer_load_dword v5, v1, s[24:27], 0 offen
    v_add_u32 v6, {NL}, v1
    buffer_load_dword v7, v6, s[24:27], 0 offen
    v_subrev_u32 v8, {2048*4096 - NL}, v1
    buffer_load_dword v9, v8, s[28:31], 0 offen
    """)
    if code:
        p(f"""
        s_getpc_b64 s[14:15]
        L_prep_pc:
        v_subrev_u32 v10, {NL - 131072}, v1
        v_cmp_gt_u32 vcc, {code[1]}-{code[0]}, v10
        v_add_u32 v10, {code[0]}-L_prep_pc, v10
        s_and_saveexec_b64 s[34:35], vcc
        s_cbranch_execz L_prep_end
        global_load_dword v11, v10, s[14:15]
        """)
    p("L_prep_end:")
    p("s_endpgm")
    p.finalize()
    return p, f"; @launch kernel=prep_kernel grid=({PREP_GRID},1,1) block=(256,1,1) lds=8192\n"
```

```python
import sys
sys.path.insert(0, "work")
from asmlib import *
from layout import *
from k_prep import srd, f2u, stamp, stamp_dump, code_prefetch, signal, poll
from k_red import emit_red_pre, emit_red

SLOT = 16640
V_WDMA = 4
V_WRD = 8
V_LIN = 12
V_XW = 13; V_XR = 14; V_TMP = 15
V_H = 16
V_O = 128
V_S = [96, 112]
V_NEGM = 80
V_P = [64, 72]
V_E = 56
V_KRD = 40
V_VRD = 48
V_KDMA = 32
V_VDMA = 36
V_L = 50
V_TS = 52
V_T0 = 54; V_T1 = 55
V_T2 = 30; V_T3 = 31
A_Q = 0
A_F = 64
NR = 16
SRD_K, SRD_V, SRD_W, SRD_Q, SRD_O = 16, 20, 24, 40, 44
S_W, S_J, S_PB = 28, 29, 30
S_KOFF, S_VOFF, S_M0K, S_M0V, S_CNT, S_THR = 32, 33, 34, 35, 36, 37
S_WOFF, S_WBASE, S_HD, S_QT = 38, 39, 48, 49
MODL = 9 * SLOT
LDS_BYTES = 9 * SLOT + 8192
A_HP = 128


def make_plan(gJ=24, gB=52, d0=3, e_first=2, e_last=58):
    pl = ["m"] * 64
    for k in range(8):
        pl[(d0 + 8 * k) % 64] = "d"
    assert pl[gJ] == "m" and pl[gB] == "m"
    pl[gJ] = "j"; pl[gB] = "B"
    es = []
    for r in range(16):
        g = gJ + e_first + round(r * (e_last - e_first) / 15)
        while pl[g % 64] != "m":
            g += -1 if r == 15 else 1
        pl[g % 64] = "e"
        es.append(g % 64)
    for i in range(10):
        g = es[(i * 16) // 10] - 1
        while pl[g % 64] != "m":
            g -= 1
        pl[g % 64] = "t"
    return "".join(pl)


def frag(f):
    return A_F + 4 * (f % NR)


def slot_of(kind, t):
    return (t % 4) + (4 if kind == "K" else 0)


class Attn:
    def __init__(self, opts):
        self.o = opts
        self.plan = opts.get("plan", make_plan())
        pl = self.plan
        assert len(pl) == 64
        assert pl.count("e") + pl.count("E") == 16
        assert pl.count("d") == 8 and pl.count("B") == 1 and pl.count("j") == 1
        nds = pl.count("m") + pl.count("E") + 2 * pl.count("t")
        assert nds == 48, nds
        self.gB = pl.index("B"); self.gJ = pl.index("j")
        dsg = []
        for k in range(1, 65):
            g = (self.gB + k) % 64
            if pl[g] in "mE": dsg.append(g)
            if pl[g] == "t": dsg += [g, g]
        ops = [(f, 0) for f in range(16)] + [(f, e) for f in range(16, 32) for e in range(2)]
        self.ds = {}
        leads = []
        for g, (f, e) in zip(dsg, ops):
            nxt = g > self.gB
            assert not (nxt and f >= 16)
            self.ds.setdefault(g, []).append((f, e, nxt))
            leads.append(2 * f + (64 if nxt else 0) - g)
        assert max(leads) < 2 * NR - 2
        self.va = {}
        exps, rest = self.softmax_parts(0)
        done = set()
        ie = ir = 0
        for k in range(1, 64):
            g = (self.gJ + k) % 64
            add = []
            if pl[g] in "eE":
                self.va.setdefault(g, []).append(("e", ie)); add = [ie]; ie += 1
            elif pl[g] == "m":
                if ir < len(rest) and all(d in done for d in rest[ir][1]):
                    self.va.setdefault(g, []).append(("r", ir)); ir += 1
            done.update(add)
        assert ie == 16 and ir == len(rest), (ir, len(rest))
        self.nafter = sum(1 for g in range(64) if pl[g] == "d" and g > self.gB)

    @staticmethod
    def key(kind, t):
        return (slot_of(kind, t), 100 + t)

    def kread(self, tfn, c, f):
        kt, sx = f // 8, f % 8
        return I(f"ds_read_b128 {a(frag(f),4)}, {v(V_KRD + sx % 4)} offset:{(c % 4)*SLOT + kt*8192 + (sx//4)*256}",
                 tag=("rd", lambda it: self.key("K", tfn(it))))

    def vread(self, tfn, c, f, e):
        t = f - 16
        return I(f"ds_read_b64_tr_b16 {a(frag(f)+2*e,2)}, {v(V_VRD + t % 2)} offset:{(c % 4)*SLOT + e*2048 + 64*(t//2)}",
                 tag=("rd", lambda it: self.key("V", tfn(it))))

    def dma(self, kind, tfn, jj):
        tag = ("dma", lambda it: self.key(kind, tfn(it)))
        if kind == "K":
            return I(f"buffer_load_dwordx4 {v(V_KDMA+jj)}, {s(SRD_K,4)}, {s(S_KOFF)} offen offset:{jj*1024} lds", tag=tag)
        return I(f"buffer_load_dwordx4 {v(V_VDMA+jj)}, {s(SRD_V,4)}, {s(S_VOFF)} offen offset:{jj*1024} lds", tag=tag)

    def m0(self, kind, c):
        if kind == "K":
            return I(f"s_add_u32 m0, {s(S_M0K)}, {slot_of('K', c)*SLOT}")
        return I(f"s_add_u32 m0, {s(S_M0V)}, {slot_of('V', c)*SLOT}")

    def adv(self, kind):
        r = S_KOFF if kind == "K" else S_VOFF
        return I(f"s_add_u32 {s(r)}, {s(r)}, 16384")

    def wfill(self, which, st, hf):
        if which == "Q":
            pair = st % 4
            off = ((st + 7 * hf) % 14) * 32 * 8192 + hf * 512
            srdw = SRD_Q
            gen = st
        else:
            pair = (st + 2) % 4
            off = ((st + 8 * hf) % 16) * 32 * 896 + hf * 448
            srdw = SRD_O
            gen = 200 + st
        slot = 2 * pair + hf
        pre = [I(f"s_add_u32 m0, {s(S_M0V)}, {slot*SLOT}"), I(f"s_add_u32 {s(S_WOFF)}, {s(S_WBASE)}, {off}")]
        d = [I(f"buffer_load_dwordx4 {v(V_WDMA+jj)}, {s(srdw,4)}, {s(S_WOFF)} offen offset:{jj*1024} lds",
               tag=("dma", (slot, gen))) for jj in range(4)]
        return pre, d

    def wkeys(self, which, st):
        pair = st % 4 if which == "Q" else (st + 2) % 4
        gen = st if which == "Q" else 200 + st
        return [(2 * pair, gen), (2 * pair + 1, gen)]

    def wread(self, which, st, t, e, f):
        pair = st % 4 if which == "Q" else (st + 2) % 4
        return I(f"ds_read_b64_tr_b16 {a(frag(f)+2*e,2)}, {v(V_WRD + 2*(pair//2) + t % 2)} "
                 f"offset:{(pair % 2)*2*SLOT + e*2048 + 64*(t//2)}", tag=("rd", self.wkeys(which, st)))

    def kvfill(self, kind, t, jjs=range(4)):
        pre = [self.m0(kind, t)]
        d = [self.dma(kind, (lambda t: lambda it: t)(t), jj) for jj in jjs]
        post = [self.adv(kind)] if 3 in jjs else []
        return pre, d, post

    def softmax_parts(self, par):
        S = V_S[par]; P = V_P[par]
        exps = [I(f"v_exp_f32 {v(V_E + r % 8)}, {v(S + r)}") for r in range(16)]
        rest = []
        rest.append((I(f"v_add_f32 {v(V_L)}, {v(V_L)}, {v(V_TS)}"), [], True))
        rest.append((I(f"v_add_f32 {v(V_L+1)}, {v(V_L+1)}, {v(V_TS+1)}"), [], True))
        for q in range(16):
            kt, qt, i = q // 8, (q // 4) % 2, q % 4
            ts = v(V_TS + qt)
            e = v(V_E + q % 8)
            if kt == 0 and i == 0:
                pass
            elif kt == 0 and i == 1:
                rest.append((I(f"v_add_f32 {ts}, {v(V_E + (q-1) % 8)}, {e}"), [q-1, q], False))
            else:
                rest.append((I(f"v_add_f32 {ts}, {ts}, {e}"), [q], False))
            if q == 15:
                rest.append((I(f"v_add_f32 {v(V_T2)}, {v(V_TS)}, {v(V_TS+1)}"), [q], False))
                rest.append((I(f"v_cmp_lt_f32 vcc, {s(S_THR)}, {v(V_T2)}"), [q], False))
            if q % 2 == 1:
                rest.append((I(f"v_cvt_pk_bf16_f32 {v(P + 4*qt + 2*kt + i // 2)}, {v(V_E + (q-1) % 8)}, {e}"), [q-1, q], False))
        return exps, rest

    def softmax_linear(self, par):
        exps, rest = self.softmax_parts(par)
        out = []
        ir = 2
        for r in range(16):
            out.append(exps[r])
            while ir < len(rest) and max(rest[ir][1]) < r:
                out.append(rest[ir][0]); ir += 1
        out += [x[0] for x in rest[ir:]]
        return out

    def body(self, p, c, A, aval=None, lid=None, extra_scalar=None, extra_valu=None):
        pl = self.plan
        par = c % 2
        gB, gJ = self.gB, self.gJ
        first = aval == -1
        do_pv = not first
        do_qk = aval is None or aval + 1 <= 63
        next_k = aval is None or aval + 2 <= 63
        SC = [[] for _ in range(64)]
        VE = [[] for _ in range(64)]
        cur = self.softmax_parts(par)
        nxt = self.softmax_parts(1 - par)
        late = []
        for g in range(64):
            for (f, e, nx) in self.ds.get(g, []):
                if nx:
                    if next_k:
                        VE[g].append(self.kread(lambda it: A(it)+2, c+2, f))
                elif f < 16:
                    if do_qk:
                        VE[g].append(self.kread(lambda it: A(it)+1, c+1, f))
                else:
                    if do_pv:
                        VE[g].append(self.vread(A, c, f, e))
            for kind, idx in self.va.get(g, []):
                if g < gJ:
                    if do_pv:
                        VE[g].append(cur[0][idx] if kind == "e" else cur[1][idx][0])
                else:
                    if kind == "r" and nxt[1][idx][2]:
                        if do_pv:
                            VE[g].append(nxt[1][idx][0])
                    elif do_qk:
                        x = nxt[0][idx] if kind == "e" else nxt[1][idx][0]
                        if first and g < 32:
                            late.append(x)
                        else:
                            VE[g].append(x)
        if do_pv:
            VE[gJ].append(I(f"s_cbranch_vccnz L_fb{lid}"))
            VE[gJ].append(I(f"L_ret{lid}:"))
        def bartags(it):
            av = A(it)
            ks = []
            if av + 2 <= 63: ks.append(self.key("K", av + 2))
            if av + 1 <= 63: ks.append(self.key("V", av + 1))
            if av == 63: ks += self.wkeys("O", 0)
            return ks
        VE[gB].append(I("WAITTAG", tag=bartags))
        VE[gB].append(I("s_barrier"))
        for g, x in (extra_valu or []):
            VE[g].append(x)
        dg = [g for g in range(64) if pl[g] == "d"]
        after = [g for g in dg if g > gB]
        before = [g for g in dg if g < gB]
        def free_sc(g, step):
            while pl[g % 64] in "dBj" or SC[g % 64]:
                g += step
            assert 0 <= g < 64
            return g
        seq = [("V", 3, jj) for jj in range(4)] + [("K", 5, jj) for jj in range(4)]
        for i, g in enumerate(after + before):
            kind, off, jj = seq[i]
            if g < gB:
                off -= 1
            if aval is not None and aval + off > 63:
                t = aval + off
                m = {("K", 64): (0, 0), ("K", 65): (0, 1), ("K", 66): (1, 0), ("K", 67): (1, 1),
                     ("V", 64): (2, 0), ("V", 65): (2, 1)}.get((kind, t))
                if m is None:
                    continue
                pre, d = self.wfill("O", m[0], m[1])
                VE[g].append(d[jj])
                if jj == 0:
                    for x in pre:
                        SC[free_sc(g - 1, -1)].append(x)
                continue
            VE[g].append(self.dma(kind, (lambda off: lambda it: A(it) + off)(off), jj))
            if jj == 0:
                SC[free_sc(g - 1, -1)].append(self.m0(kind, c + off))
            if jj == 3:
                SC[free_sc(g + 1, 1)].append(self.adv(kind))
        for g, x in (extra_scalar or []):
            SC[free_sc(g, -1)].append(x)
        WG = 2
        for f0 in range(0, 32, WG):
            fs = list(range(f0, f0 + WG))
            if f0 == 0:
                if not next_k: continue
                g = free_sc(63, -1)
            else:
                if (f0 < 16 and not do_qk) or (f0 >= 16 and not do_pv): continue
                g = free_sc(2 * f0 - 1, -1)
            SC[g].append(I("WAITFOR " + ", ".join(a(frag(f), 4) for f in fs)))
        for g in range(64):
            f, qt = g // 2, g % 2
            fr = a(frag(f), 4)
            if f < 16 and do_qk:
                Sx = V_S[1-par]
                kt, sx = f // 8, f % 8
                D = v(Sx + 8*kt + 4*qt, 4)
                C = D if sx else ("0" if first else v(V_NEGM + 4*qt, 4))
                p(f"v_mfma_f32_16x16x32_bf16 {D}, {fr}, {a(A_Q + 8*sx + 4*qt, 4)}, {C}")
            if f >= 16 and do_pv:
                O = v(V_O + 8*(f-16) + 4*qt, 4)
                C = "0" if aval == 0 else O
                p(f"v_mfma_f32_16x16x32_bf16 {O}, {fr}, {v(V_P[par] + 4*qt, 4)}, {C}")
            for x in SC[g] + VE[g]:
                p(x)
            if g == 31 and first:
                S0 = V_S[1-par]
                self.tile_max(p, S0)
                self.apply_delta(p, S0, None, init=True)
                for x in late:
                    p(x)

    def tile_max(self, p, S):
        for qt in range(2):
            T = V_T0 + qt
            rs = [S + 4*qt + i for i in range(4)] + [S + 8 + 4*qt + i for i in range(4)]
            p(f"v_max3_f32 {v(T)}, {v(rs[0])}, {v(rs[1])}, {v(rs[2])}")
            p(f"v_max3_f32 {v(T)}, {v(T)}, {v(rs[3])}, {v(rs[4])}")
            p(f"v_max3_f32 {v(T)}, {v(T)}, {v(rs[5])}, {v(rs[6])}")
            p(f"v_max_f32 {v(T)}, {v(T)}, {v(rs[7])}")
            self.xreduce(p, T, "v_max_f32")

    def xreduce(self, p, T, op):
        p(f"v_mov_b32 {v(V_T3)}, {v(T)}")
        p(f"v_permlane32_swap_b32 {v(T)}, {v(V_T3)}")
        p(f"{op} {v(T)}, {v(T)}, {v(V_T3)}")
        p(f"v_mov_b32 {v(V_T3)}, {v(T)}")
        p(f"v_permlane16_swap_b32 {v(T)}, {v(V_T3)}")
        p(f"{op} {v(T)}, {v(T)}, {v(V_T3)}")

    def apply_delta(self, p, S, Sn, init=False):
        T = lambda r: v(V_T0 + (r // 4) % 2)
        for r in range(8):
            src = "0" if init else v(V_NEGM + r)
            p(f"v_sub_f32 {v(V_NEGM+r)}, {src}, {T(r)}")
        for r in range(16):
            p(f"v_sub_f32 {v(S+r)}, {v(S+r)}, {T(r)}")
        if Sn is not None:
            for r in range(16):
                p(f"v_sub_f32 {v(Sn+r)}, {v(Sn+r)}, {T(r)}")

    def fallback(self, p, par, lid, has_next):
        p.begin_side()
        p(f"L_fb{lid}:")
        p("s_nop 15")
        S = V_S[par]; Sn = V_S[1-par]
        self.tile_max(p, S)
        for qt in range(2):
            p(f"v_max_f32 {v(V_T0+qt)}, 0, {v(V_T0+qt)}")
        self.apply_delta(p, S, Sn if has_next else None)
        for qt in range(2):
            p(f"v_sub_f32 {v(V_T0+qt)}, 0, {v(V_T0+qt)}")
            p(f"v_exp_f32 {v(V_T0+qt)}, {v(V_T0+qt)}")
            p(f"v_mul_f32 {v(V_L+qt)}, {v(V_L+qt)}, {v(V_T0+qt)}")
        for r in range(128):
            p(f"v_mul_f32 {v(V_O+r)}, {v(V_O+r)}, {v(V_T0 + (r // 4) % 2)}")
        for x in self.softmax_linear(par):
            p(x)
        p("s_nop 1")
        p(f"s_branch L_ret{lid}")
        p.end_side()

    def gemm_phase(self, p, which, nst, nm, mfma_fn, fills, bartags, valu, xds):
        LEAD = self.o.get("lead", 18)
        SP = self.o.get("sp", 3)
        G = 2 * nm
        N = nst * G
        gb = G - LEAD - 1
        kindg = ["m"] * (N + 64)
        SC = [[] for _ in range(N + 64)]
        VE = [[] for _ in range(N + 64)]
        tail = []
        for i in range(nst):
            bt = bartags(i)
            if bt is not None:
                g = i * G + gb
                kindg[g] = "B"
                VE[g] = [I("WAITTAG", tag=bt), I("s_barrier")]
        for i in range(nst):
            k = 0
            for pre, d, post in fills(i):
                for jj, x in enumerate(d):
                    g = i * G + gb + 3 + k * SP
                    k += 1
                    if g >= N:
                        if jj == 0: tail += pre
                        tail.append(x)
                        if jj == len(d) - 1: tail += post
                        continue
                    assert kindg[g] == "m" and kindg[g-1] == "m" and kindg[g-2] == "m", (i, g)
                    kindg[g] = "d"
                    VE[g] = [x]
                    if jj == 0:
                        for kk, y in enumerate(pre):
                            SC[g - len(pre) + kk].append(y)
                    if jj == len(d) - 1:
                        if g + 1 < N: SC[g + 1] += post
                        else: tail += post
        dsq = []
        for i in range(nst):
            for t in range(nm):
                f = i * nm + t
                for e in range(2):
                    dsq.append((i * G + 2 * t + e - LEAD, self.wread(which, i, t, e, f), i * G + 2 * t))
        for i in range(nst):
            xs = xds(i)
            lo = max(0, (i - 1) * G + gb + 1); hi = i * G + gb - 4
            for k, x in enumerate(xs):
                g = lo + (k * (hi - lo)) // len(xs)
                if x.kind == "ds_write":
                    while kindg[g] != "m": g += 1
                    kindg[g] = "x"
                    VE[g] = [x]
                else:
                    dsq.append((g, x, i * G + gb + 6))
        dsq.sort(key=lambda z: z[0])
        for (g, x, c) in dsq:
            if g < 0: p(x)
        dsq = [z for z in dsq if z[0] >= 0]
        nds = [0] * (N + 64)
        q = 0
        minlead = 99
        for g in range(N):
            if kindg[g] != "m":
                continue
            while q < len(dsq) and dsq[q][0] <= g and nds[g] < 2:
                VE[g].append(dsq[q][1]); nds[g] += 1
                minlead = min(minlead, dsq[q][2] - g)
                q += 1
        assert q == len(dsq)
        assert minlead >= 7, minlead
        for i in range(nst):
            ops = valu(i)
            slots = []
            for g in range(i * G, (i + 1) * G):
                if kindg[g] == "m":
                    slots += [g] * (2 - nds[g])
            mg = [g for g in range(i * G, (i + 1) * G) if kindg[g] == "m"]
            k = 0
            while len(slots) < len(ops):
                slots.append(mg[(k * 7) % len(mg)]); k += 1
            slots.sort()
            for k, x in enumerate(ops):
                VE[slots[(k * len(slots)) // len(ops)]].append(x)
        for f0 in range(2, nst * nm, 2):
            g = 2 * f0 - 1
            while kindg[g] in "dB" or SC[g]:
                g -= 1
            SC[g].append(I("WAITFOR " + ", ".join(a(frag(f), 4) for f in (f0, f0 + 1))))
        for g in range(N):
            i, t, qt = g // G, (g % G) // 2, g % 2
            p(mfma_fn(i, t, qt, a(frag(i * nm + t), 4)))
            abl = self.o.get("gabl", "")
            for x in SC[g] + VE[g]:
                if "D" in abl and x.kind == "dma": continue
                if "B" in abl and x.kind == "barrier": continue
                if "R" in abl and x.kind == "ds_read": continue
                if "W" in abl and x.kind == "ds_write": continue
                if "V" in abl and x.kind == "valu" and ("mul" in x.mn or "cvt" in x.mn or "fma" in x.mn): continue
                p(x)
        for x in tail:
            p(x)


def gen_attn(opts=None):
    opts = opts or {}
    name = opts.get("name", "attn_kernel")
    p = Prog(name)
    at = Attn(opts)
    thr = opts.get("thr", 0x5f800000)
    p(f"""
    s_cmp_ge_u32 s2, 256
    s_cbranch_scc1 L_end{name}
    s_load_dwordx8 s[4:11], s[0:1], 8
    s_load_dwordx2 s[12:13], s[0:1], 112
    v_lshrrev_b32 v1, 6, v0
    v_readfirstlane_b32 {s(S_W)}, v1
    s_and_b32 {s(S_J)}, s2, 7
    s_lshr_b32 {s(S_PB)}, s2, 3
    v_and_b32 v1, 63, v0
    v_lshlrev_b32 {v(V_LIN)}, 4, v1
    s_lshr_b32 {s(S_HD)}, {s(S_W)}, 1
    s_and_b32 s14, {s(S_W)}, 1
    s_lshl_b32 {s(S_QT)}, {s(S_PB)}, 2
    s_lshl_b32 s14, s14, 1
    s_add_u32 {s(S_QT)}, {s(S_QT)}, s14
    s_waitcnt lgkmcnt(0)
    """)
    stamp(p, 0)
    srd(p, SRD_W, 12, 13, WS_USED)
    srd(p, SRD_Q, 8, 9, 448 * 8192)
    def extras():
        if opts.get("touch", True):
            p(f"""
            v_lshrrev_b32 v1, {4 if opts.get("t64", False) else 3}, v0
            v_min_u32 v1, 13, v1
            v_lshlrev_b32 v1, 13, v1
            v_and_b32 v2, {15 if opts.get("t64", False) else 7}, v0
            v_lshl_add_u32 v1, v2, {6 if opts.get("t64", False) else 7}, v1
            s_mul_i32 s53, {s(S_PB)}, {14*8192}
            s_add_u32 s53, s53, {s(S_WBASE)}
            buffer_load_dword v{V_O+127}, v1, {s(SRD_Q,4)}, s53 offen
            """)
        if opts.get("cpf", True):
            code_prefetch(p, name, f"L_end{name}", 12, 1, V_O + 126)
    p(f"s_lshl_b32 {s(S_WBASE)}, {s(S_J)}, 10")
    extras()
    V_MRD = 3
    p(f"""
    s_mul_i32 s14, {s(S_QT)}, {14*1024}
    s_mul_i32 s15, {s(S_HD)}, {7*1024}
    s_add_u32 s14, s14, s15
    s_add_u32 s14, s14, {WS_XN}
    s_add_u32 s15, s14, {14*1024}
    s_add_u32 s50, s14, 4096
    s_add_u32 s51, s15, 4096
    s_lshl_b32 s52, {s(S_W)}, 11
    s_add_u32 s52, s52, {MODL}
    s_mov_b32 m0, s52
    s_mul_i32 s53, {s(S_HD)}, 896
    s_add_u32 s54, s53, {WS_MOD + 1792 - 1024}
    """)
    mt = ("dma", ("M", 0), "private")
    p(f"buffer_load_dwordx4 {v(V_LIN)}, {s(SRD_W,4)}, s53 offen offset:{WS_MOD} lds", tag=mt)
    p(f"buffer_load_dwordx4 {v(V_LIN)}, {s(SRD_W,4)}, s54 offen offset:1024 lds", tag=mt)
    for ks in range(7):
        for qt in range(2):
            so = (14 + qt) if ks < 4 else (50 + qt)
            p(f"buffer_load_dwordx4 {v(V_H+8*ks+4*qt,4)}, {v(V_LIN)}, {s(SRD_W,4)}, s{so} offen offset:{(ks % 4)*1024}")
    p(f"""
    s_mul_i32 {s(S_M0V)}, {s(S_W)}, 4160
    s_lshl_b32 {s(S_M0K)}, {s(S_W)}, 12
    s_lshl_b32 {s(S_WBASE)}, {s(S_J)}, 10
    v_bfe_u32 v1, v0, 5, 1              ; hh
    v_and_b32 v2, 31, v0
    v_lshlrev_b32 {v(V_TMP)}, 1, v1
    v_xor_b32 v2, v2, {v(V_TMP)}        ; chunk
    v_lshlrev_b32 v1, 3, v1
    v_add_u32 v1, {s(S_W)}, v1          ; 8hh + w
    v_lshlrev_b32 v1, 13, v1
    v_lshl_add_u32 {v(V_WDMA)}, v2, 4, v1
    """)
    for jj in range(1, 4):
        p(f"v_add_u32 {v(V_WDMA+jj)}, {(16*(jj % 2) + 4*(jj//2))*8192 - jj*1024}, {v(V_WDMA)}")
    def emit_wfill(which, st):
        for hf in range(2):
            pre, d = at.wfill(which, st, hf)
            p.extend(pre); p.extend(d)
    emit_wfill("Q", 0)
    p(f"""
    v_bfe_u32 v1, v0, 2, 2
    v_mul_u32_u24 v1, 4160, v1
    v_and_b32 v2, 3, v0
    v_lshl_add_u32 v1, v2, 3, v1
    v_bfe_u32 v2, v0, 4, 2
    v_lshl_add_u32 v1, v2, 9, v1
    v_lshlrev_b32 v{V_MRD}, 5, v2
    v_add_u32 v{V_MRD}, s52, v{V_MRD}
    v_bfe_u32 v2, v0, 4, 1
    v_lshl_add_u32 {v(V_TMP)}, v2, 5, v1
    s_mul_i32 s14, {s(S_HD)}, {SLOT}
    v_add_u32 {v(V_WRD)}, s14, {v(V_TMP)}
    v_xor_b32 {v(V_WRD+1)}, 32, {v(V_WRD)}
    v_add_u32 {v(V_WRD+2)}, {4*SLOT}, {v(V_WRD)}
    v_add_u32 {v(V_WRD+3)}, {4*SLOT}, {v(V_WRD+1)}
    s_lshl_b32 s14, {s(S_W)}, 12
    s_add_u32 s14, s14, {8*SLOT}
    v_add_u32 {v(V_XW)}, s14, {v(V_LIN)}
    v_xor_b32 {v(V_XR)}, 0x2000, {v(V_XW)}
    """)
    MB = 72
    TM = 120
    def modreads(ks):
        M = MB + 16 * (ks % 3)
        rt = ("rd", ("M", 0), "private")
        return [I(f"ds_read_b128 {v(M + 8*k + 4*h, 4)}, v{V_MRD} offset:{1024*(1-k) + 128*ks + 16*h}", tag=rt)
                for k in range(2) for h in range(2)]
    def modulate(ks, pk):
        M = MB + 16 * (ks % 3)
        out = []
        for qt in range(2):
            for d in range(4):
                x = V_H + 8*ks + 4*qt + d
                t = TM + 2 * d
                out.append(I(f"v_lshlrev_b32 v{t}, 16, v{x}"))
                out.append(I(f"v_and_b32 v{t+1}, 0xffff0000, v{x}"))
                if pk:
                    out.append(I(f"v_pk_fma_f32 {v(t,2)}, {v(t,2)}, {v(M+2*d,2)}, {v(M+8+2*d,2)}"))
                else:
                    out.append(I(f"v_fma_f32 v{t}, v{t}, v{M+2*d}, v{M+8+2*d}"))
                    out.append(I(f"v_fma_f32 v{t+1}, v{t+1}, v{M+2*d+1}, v{M+8+2*d+1}"))
                out.append(I(f"v_cvt_pk_bf16_f32 v{x}, v{t}, v{t+1}"))
        return out
    NUP = opts.get("nup", 4)
    stamp(p, 1)
    p(I("WAITTAG", tag=[("M", 0)]))
    stamp(p, 2)
    p.extend(modreads(0)); p.extend(modreads(1)); p.extend(modreads(2))
    assert NUP >= 4
    for ks in range(NUP):
        p.extend(modulate(ks, True))
        if ks + 3 < 7:
            p.extend(modreads(ks + 3))
        if ks == 0:
            emit_wfill("Q", 1)
        if ks == 2:
            emit_wfill("Q", 2)
    stamp(p, 3)
    p(I("WAITTAG", tag=at.wkeys("Q", 0)))
    p("s_barrier")
    stamp(p, 4)
    srd(p, SRD_O, 10, 11, 4096 * 896)
    p(f"""
    s_lshl_b32 s14, {s(S_J)}, 20
    s_add_u32 {s(SRD_K)}, s4, s14
    s_addc_u32 {s(SRD_K+1)}, s5, 0
    s_mov_b32 {s(SRD_K+2)}, 0x100000
    s_mov_b32 {s(SRD_K+3)}, 0x20000
    s_add_u32 {s(SRD_V)}, s6, s14
    s_addc_u32 {s(SRD_V+1)}, s7, 0
    s_mov_b32 {s(SRD_V+2)}, 0x100000
    s_mov_b32 {s(SRD_V+3)}, 0x20000
    s_mov_b32 {s(S_KOFF)}, 0
    s_mov_b32 {s(S_VOFF)}, 0
    s_mov_b32 {s(S_THR)}, {thr}
    s_lshl_b32 s15, {s(S_W)}, 3
    """)
    setup = f"""
    v_bfe_u32 v1, v0, 5, 1
    v_and_b32 v2, 31, v0
    v_add_u32 v16, s15, v1
    v_lshlrev_b32 v17, 9, v16
    v_and_b32 v16, 15, v16
    v_xor_b32 v16, v16, v2
    v_lshl_add_u32 {v(V_KDMA)}, v16, 4, v17
    v_xor_b32 {v(V_KDMA+1)}, 32, {v(V_KDMA)}
    v_xor_b32 {v(V_KDMA+2)}, 64, {v(V_KDMA)}
    v_xor_b32 {v(V_KDMA+3)}, 96, {v(V_KDMA)}
    v_lshlrev_b32 v16, 2, v1
    v_add_u32 v16, {s(S_W)}, v16
    v_lshlrev_b32 v16, 9, v16
    v_lshlrev_b32 v17, 1, v1
    v_xor_b32 v17, v17, v2
    v_lshl_add_u32 {v(V_VDMA)}, v17, 4, v16
    v_add_u32 {v(V_VDMA+1)}, 3072, {v(V_VDMA)}
    v_add_u32 {v(V_VDMA+2)}, 6144, {v(V_VDMA)}
    v_add_u32 {v(V_VDMA+3)}, 9216, {v(V_VDMA)}
    v_and_b32 v16, 15, v0
    v_bfe_u32 v17, v0, 4, 2
    v_xor_b32 v17, v17, v16
    v_lshlrev_b32 v16, 9, v16
    v_add_u32 v16, {4*SLOT}, v16
    v_lshl_add_u32 {v(V_KRD)}, v17, 4, v16
    v_xor_b32 {v(V_KRD+1)}, 64, {v(V_KRD)}
    v_xor_b32 {v(V_KRD+2)}, 0x80, {v(V_KRD)}
    v_xor_b32 {v(V_KRD+3)}, 0xc0, {v(V_KRD)}
    v_mov_b32 {v(V_VRD)}, {v(V_TMP)}
    v_xor_b32 {v(V_VRD+1)}, 32, {v(V_TMP)}
    v_mov_b32 {v(V_L)}, 0
    v_mov_b32 {v(V_L+1)}, 0
    """
    setup = [I(x.strip()) for x in setup.strip().split("\n")]
    assert (4 * SLOT) % 256 == 0
    def q_mfma(i, t, qt, fr):
        D = v(V_O + 8*t + 4*qt, 4)
        Bop = v(V_H + 8*i + 4*qt, 4) if i < 7 else a(A_HP + 8*(i-7) + 4*qt, 4)
        return f"v_mfma_f32_16x16x32_bf16 {D}, {fr}, {Bop}, {D if i else 0}"
    def q_fills(i):
        st = i + 3
        if st < 14:
            return [at.wfill("Q", st, hf) + ([],) for hf in range(2)]
        if i == 11: return [at.kvfill("K", 0), at.kvfill("K", 1)]
        if i == 12: return [at.kvfill("K", 2)]
        return [at.kvfill("V", 0), at.kvfill("V", 1, range(at.nafter))]
    def q_bar(i):
        ks = at.wkeys("Q", i + 1) if i < 13 else [at.key("K", 0)]
        i -= 1
        if 0 <= i < 8:
            ks = ks + [(8, i // 2)] if i % 2 == 0 else ks + [("rd", 8, i // 2)]
        return ks
    def q_valu(i):
        out = []
        if NUP + i < 7:
            out += modulate(NUP + i, False)
        if i in (8, 9, 10):
            n = len(setup)
            out += setup[(i-8)*n//3:(i-7)*n//3]
        return out
    def q_xds(i):
        out = []
        i -= 1
        if 0 <= i < 8:
            rho = i // 2
            for k in range(4):
                u, qt = 2*rho + k // 2, k % 2
                if u >= 7: continue
                if i % 2 == 0:
                    out.append(I(f"ds_write_b128 {v(V_XW)}, {v(V_H + 8*u + 4*qt, 4)} offset:{1024*k}", tag=("wr", (8, rho))))
                else:
                    out.append(I(f"ds_read_b128 {a(A_HP + 8*u + 4*qt, 4)}, {v(V_XR)} offset:{1024*k}", tag=("rd", (8, rho))))
        return out
    at.gemm_phase(p, "Q", 14, 16, q_mfma, q_fills, q_bar, q_valu, q_xds)
    stamp(p, 5)
    p("s_load_dwordx4 s[4:7], s[0:1], 48")
    p("s_load_dwordx2 s[8:9], s[0:1], 72")
    p("s_waitcnt lgkmcnt(0)")
    for g in range(at.gB + 1, 64):
        for (f, e, nx) in at.ds.get(g, []):
            p(at.kread(lambda it: 0, 0, f))
    p(f"""
    v_bfe_u32 v1, v0, 5, 1
    v_and_b32 v2, 31, v0
    v_lshlrev_b32 v3, 1, v1
    v_xor_b32 v3, v3, v2
    v_lshlrev_b32 v1, 2, v1
    v_add_u32 v1, {s(S_W)}, v1
    v_mul_u32_u24 v1, 896, v1
    v_lshl_add_u32 v1, v3, 4, v1
    v_mov_b32 v3, 0x40000000
    v_cmp_gt_u32 vcc, 28, v2
    v_cndmask_b32 {v(V_WDMA)}, v3, v1, vcc
    v_add_u32 {v(V_WDMA+1)}, {8*896 - 1024}, {v(V_WDMA)}
    v_add_u32 {v(V_WDMA+2)}, {16*896 - 2048}, {v(V_WDMA)}
    v_add_u32 {v(V_WDMA+3)}, {24*896 - 3072}, {v(V_WDMA)}
    s_mul_i32 {s(S_WBASE)}, {s(S_J)}, {512*896}
    """)
    assert (8 * SLOT) & 0x3fff == (8 * SLOT) % 16384 and ((8 * SLOT) % 16384) + 4096 <= 8192
    for sx in range(8):
        for qt in range(2):
            X = V_O + 16*sx + 4*qt
            Y = X + 8
            p(f"v_cvt_pk_bf16_f32 v{X}, v{X}, v{X+1}")
            p(f"v_cvt_pk_bf16_f32 v{X+1}, v{X+2}, v{X+3}")
            p(f"v_cvt_pk_bf16_f32 v{Y}, v{Y}, v{Y+1}")
            p(f"v_cvt_pk_bf16_f32 v{Y+1}, v{Y+2}, v{Y+3}")
        for qt in range(2):
            X = V_O + 16*sx + 4*qt
            Y = X + 8
            p(f"v_permlane32_swap_b32 v{X}, v{Y}")
            p(f"v_permlane32_swap_b32 v{X+1}, v{Y+1}")
        for qt in range(2):
            X = V_O + 16*sx + 4*qt
            Y = X + 8
            p(f"v_permlane16_swap_b32 v{X}, v{Y}")
            p(f"v_permlane16_swap_b32 v{X+1}, v{Y+1}")
        for qt in range(2):
            X = V_O + 16*sx + 4*qt
            Y = X + 8
            for k, r in enumerate((X, X+1, Y, Y+1)):
                p(f"v_accvgpr_write_b32 a{A_Q + 8*sx + 4*qt + k}, v{r}")
    stamp(p, 6)
    lid = [opts.get("lid0", 0)]
    def B(c, fn, aval=None, **kw):
        at.body(p, c, fn, aval=aval, lid=lid[0], **kw)
        if aval != -1:
            at.fallback(p, c % 2, lid[0], aval != 63)
        lid[0] += 1
    B(3, lambda it: -1, aval=-1)
    if opts.get("touch", True):
        p(f"""
        v_min_u32 v1, {223 if opts.get("t64", False) else 111}, v0
        v_lshlrev_b32 v1, {6 if opts.get("t64", False) else 7}, v1
        s_mul_i32 s53, {s(S_PB)}, {112*128}
        s_add_u32 s53, s53, {s(S_WBASE)}
        buffer_load_dword v2, v1, {s(SRD_O,4)}, s53 offen
        """)
    exv = None
    if opts.get("warm", True) and opts.get("wloop", False):
        srd(p, 52, 6, 7, 2048 * 4096)
        p(f"""
        v_and_b32 v16, 63, v0
        v_min_u32 v16, 4, v16
        s_mul_i32 s14, {s(S_W)}, 640
        s_lshl_b32 s59, s2, 15
        s_add_u32 s59, s59, s14
        v_lshlrev_b32 v16, 7, v16
        """)
        exv = [(at.gB, I("buffer_load_dword v17, v16, s[52:55], s59 offen"))]
    B(0, lambda it: 0, aval=0, extra_scalar=[(60, I(f"s_mov_b32 {s(S_CNT)}, 14"))])
    p.begin_loop(14)
    p(f"L_loop{name}:")
    for c in range(1, 5):
        ex = [(60, I(f"s_sub_u32 {s(S_CNT)}, {s(S_CNT)}, 1"))] if c == 2 else None
        if c == 3 and exv: ex = [(60, I("s_add_u32 s59, s59, 2560"))]
        B(c % 4, (lambda c: lambda it: 4*it + c)(c), extra_scalar=ex, extra_valu=exv if c == 1 else None)
    p(f"s_cmp_lg_u32 {s(S_CNT)}, 0")
    p(f"s_cbranch_scc1 L_loop{name}")
    p.end_loop()
    for av in range(57, 64):
        B(av % 4, (lambda av: lambda it: av)(av), aval=av)
    stamp(p, 7)
    for qt in range(2):
        at.xreduce(p, V_L + qt, "v_add_f32")
        p(f"v_rcp_f32 v{2+qt}, {v(V_L+qt)}")
    def conv(u):
        out = []
        for qt in range(2):
            X = V_O + 16*u + 4*qt
            Y = X + 8
            for r in (X, X+1, X+2, X+3, Y, Y+1, Y+2, Y+3):
                out.append(I(f"v_mul_f32 v{r}, v{r}, v{2+qt}"))
            out.append(I(f"v_cvt_pk_bf16_f32 v{X}, v{X}, v{X+1}"))
            out.append(I(f"v_cvt_pk_bf16_f32 v{X+1}, v{X+2}, v{X+3}"))
            out.append(I(f"v_cvt_pk_bf16_f32 v{X+2}, v{Y}, v{Y+1}"))
            out.append(I(f"v_cvt_pk_bf16_f32 v{X+3}, v{Y+2}, v{Y+3}"))
        return out
    p.extend(conv(0)); p.extend(conv(1))
    ACC = V_H
    WV = V_O + 8
    p(f"""
    s_mul_i32 s14, s2, {49*128}
    s_mul_i32 s15, s2, {25*128}
    s_lshl_b32 s59, s2, 8
    """)
    p("s_lshl_b32 s58, s2, 15")
    wops = [I(x) for x in (f"v_lshl_add_u32 v{WV}, v0, 7, s58", f"v_min_u32 v{WV+1}, 48, v0", f"v_lshl_add_u32 v{WV+1}, v{WV+1}, 7, s14",
                           f"v_min_u32 v{WV+2}, 24, v0", f"v_lshl_add_u32 v{WV+2}, v{WV+2}, 7, s15",
                           f"v_min_u32 v{WV+2}, {896*896-4}, v{WV+2}")]
    if opts.get("tail_code"):
        l0, l1 = opts["tail_code"]
        p("s_getpc_b64 s[10:11]")
        p(f"L_tc{name}:")
        wops += [I(x) for x in (f"v_min_u32 v{WV+3}, 1, v0", f"v_lshl_add_u32 v{WV+3}, v{WV+3}, 7, s59",
                                f"v_min_u32 v{WV+3}, {l1}-{l0}-4, v{WV+3}", f"v_add_u32 v{WV+3}, {l0}-L_tc{name}, v{WV+3}")]
    def o_mfma(i, t, qt, fr):
        D = v(ACC + 8*t + 4*qt, 4)
        Bop = v(V_O + 16*i + 4*qt, 4) if i < 8 else a(A_Q + 8*(i-8) + 4*qt, 4)
        return f"v_mfma_f32_16x16x32_bf16 {D}, {fr}, {Bop}, {D if i else 0}"
    def o_fills(i):
        st = i + 3
        if i == 13 and opts.get("warm", True):
            ld = [I(f"global_load_dword v{WV+5}, v{WV+1}, s[4:5]"),
                  I(f"global_load_dword v{WV+6}, v{WV+2}, s[8:9]")]
            if not opts.get("wloop", False):
                ld.append(I(f"global_load_dword v{WV+4}, v{WV}, s[6:7]"))
            if opts.get("tail_code"):
                ld.append(I(f"global_load_dword v{WV+7}, v{WV+3}, s[10:11]"))
            return [([], ld, [])]
        return [at.wfill("O", st, hf) + ([],) for hf in range(2)] if st < 16 else []
    def o_bar(i):
        if i == 15: return None
        ks = at.wkeys("O", i + 1)
        i -= 1
        if 0 <= i < 8:
            ks = ks + [(8, 10 + i // 2)] if i % 2 == 0 else ks + [("rd", 8, 10 + i // 2)]
        return ks
    def o_valu(i):
        if i == 12 and opts.get("warm", True):
            return wops
        return conv(i + 2) if i + 2 < 8 else []
    def o_xds(i):
        i -= 1
        if i >= 8 or i < 0: return []
        rho = i // 2
        out = []
        for k in range(4):
            u, qt = 2*rho + k // 2, k % 2
            if i % 2 == 0:
                out.append(I(f"ds_write_b128 {v(V_XW)}, {v(V_O + 16*u + 4*qt, 4)} offset:{1024*k}", tag=("wr", (8, 10 + rho))))
            else:
                out.append(I(f"ds_read_b128 {a(A_Q + 8*u + 4*qt, 4)}, {v(V_XR)} offset:{1024*k}", tag=("rd", (8, 10 + rho))))
        return out
    at.gemm_phase(p, "O", 16, 14, o_mfma, o_fills, o_bar, o_valu, o_xds)
    stamp(p, 8)
    p(f"""
    s_lshl_b32 s14, {s(S_J)}, 7
    s_add_u32 s14, s14, {s(S_QT)}
    s_mul_i32 s14, s14, {14*1024}
    s_mul_i32 s15, {s(S_HD)}, {7*1024}
    s_add_u32 s14, s14, s15
    s_add_u32 s14, s14, {WS_PART}
    s_add_u32 s15, s14, {14*1024}
    s_add_u32 s50, s14, 4096
    s_add_u32 s51, s15, 4096
    """)
    for uu in range(7):
        for qt in range(2):
            X = ACC + 16*uu + 4*qt
            Y = X + 8
            p(f"v_cvt_pk_bf16_f32 v{X}, v{X}, v{X+1}")
            p(f"v_cvt_pk_bf16_f32 v{X+1}, v{X+2}, v{X+3}")
            p(f"v_cvt_pk_bf16_f32 v{X+2}, v{Y}, v{Y+1}")
            p(f"v_cvt_pk_bf16_f32 v{X+3}, v{Y+2}, v{Y+3}")
            so = (14 + qt) if uu < 4 else (50 + qt)
            p(f"buffer_store_dwordx4 {v(X,4)}, {v(V_LIN)}, {s(SRD_W,4)}, s{so} offen offset:{(uu % 4)*1024}" + (" sc1" if opts.get("fuse") else ""))
    nst = 10
    if opts.get("fuse"):
        p("s_load_dwordx2 s[4:5], s[0:1], 0")
        p("s_waitcnt lgkmcnt(0)")
        srd(p, SRD_K, 4, 5, 2048 * 896)
        p(f"""
        s_lshl_b32 s14, {s(S_PB)}, 7
        s_lshl_b32 s15, {s(S_J)}, 2
        s_add_u32 s14, s14, s15
        s_add_u32 s14, s14, {WS_FLAG}
        """)
        signal(p, SRD_W, 14, S_W, "r" + name)
        stamp(p, 9)
        emit_red_pre(p, S_W, S_PB, S_J, SRD_W, SRD_K)
        emit_red(p, S_W, S_PB, SRD_W, MODL)
        nst = 13
    stamp_dump(p, opts.get("slot", 1), nst, SRD_W, S_W)
    p(f"L_end{name}:")
    p("s_endpgm")
    if opts.get("gabl"):
        p.check_lds = lambda: None
    p.finalize()
    return p, f"; @launch kernel={name} grid=(256,1,1) block=(256,1,1) lds={LDS_BYTES}\n"
```

```python
import sys
sys.path.insert(0, "work")
from asmlib import *
from layout import *
import struct
def f2u(x): return struct.unpack("<I", struct.pack("<f", x))[0]
LOG2E = 1.4426950408889634
QSCALE = LOG2E / 16.0

def srd(p, d, lo, hi, nbytes):
    p(f"s_mov_b32 s{d}, s{lo}")
    p(f"s_mov_b32 s{d+1}, s{hi}")
    p(f"s_mov_b32 s{d+2}, {nbytes}")
    p(f"s_mov_b32 s{d+3}, 0x20000")

def xreduce(p, T, tmp, op):
    p(f"v_mov_b32 {v(tmp)}, {v(T)}")
    p(f"v_permlane32_swap_b32 {v(T)}, {v(tmp)}")
    p(f"{op} {v(T)}, {v(T)}, {v(tmp)}")
    p(f"v_mov_b32 {v(tmp)}, {v(T)}")
    p(f"v_permlane16_swap_b32 {v(T)}, {v(tmp)}")
    p(f"{op} {v(T)}, {v(T)}, {v(tmp)}")

PREP_GRID = 74
STAMP = {"on": False}

def code_prefetch(p, tag, endlabel, lines_per_wg, vt, vd, sp=(56, 57)):
    p(f"s_getpc_b64 s[{sp[0]}:{sp[1]}]")
    p(f"L_pf_{tag}:")
    p(f"s_lshr_b32 s58, s2, 3")
    p(f"s_mul_i32 s58, s58, {lines_per_wg * 128}")
    p(f"v_min_u32 v{vt}, {lines_per_wg - 1}, v0")
    p(f"v_lshlrev_b32 v{vt}, 7, v{vt}")
    p(f"v_add_u32 v{vt}, s58, v{vt}")
    p(f"v_min_u32 v{vt}, {endlabel}-L_pf_{tag}-4, v{vt}")
    p(f"global_load_dword v{vd}, v{vt}, s[{sp[0]}:{sp[1]}]")

def signal(p, srdw, soff, swave, tag, vt=1, keys=None):
    if keys is None:
        p("s_waitcnt vmcnt(0)")
    else:
        p(I("WAITTAG", tag=keys))
    p("s_barrier")
    p(f"s_cmp_lg_u32 s{swave}, 0")
    p(f"s_cbranch_scc1 L_sig_{tag}")
    p(f"v_mov_b32 v{vt}, 1")
    p(f"v_mov_b32 v{vt+1}, 0")
    p("s_mov_b64 exec, 1")
    x = I(f"buffer_store_dword v{vt}, v{vt+1}, s[{srdw}:{srdw+3}], s{soff} offen sc1")
    x.kind = "salu"
    p(x)
    p("s_mov_b64 exec, -1")
    p(f"L_sig_{tag}:")

def poll(p, srdw, soff, vaddr, vd, tag, scnt, nload=1, stride=256):
    p(f"s_mov_b32 s{scnt}, 0x100000")
    p(f"L_poll_{tag}:")
    for k in range(nload):
        p(f"buffer_load_dword v{vd+k}, v{vaddr}, s[{srdw}:{srdw+3}], s{soff} offen offset:{stride*k} sc1")
    p("s_waitcnt vmcnt(0)")
    for k in range(1, nload):
        p(f"v_and_b32 v{vd}, v{vd}, v{vd+k}")
    p(f"v_cmp_eq_u32 vcc, 0, v{vd}")
    p(f"s_cbranch_vccz L_polled_{tag}")
    p("s_sleep 1")
    p(f"s_sub_u32 s{scnt}, s{scnt}, 1")
    p(f"s_cmp_lg_u32 s{scnt}, 0")
    p(f"s_cbranch_scc1 L_poll_{tag}")
    p(f"L_polled_{tag}:")

def stamp(p, k):
    if STAMP["on"]:
        p(f"s_memtime s[96:97]")
        p(f"s_memrealtime s[98:99]")
        p("s_waitcnt lgkmcnt(0)")
        p(f"s_mov_b32 s{60+2*k}, s96")
        p(f"s_mov_b32 s{61+2*k}, s98")

def stamp_dump(p, slot, n, srdw, swave, wshift=2):
    if not STAMP["on"]:
        return
    p("s_waitcnt vmcnt(0)")
    stamp(p, n - 1)
    p(f"""
    s_lshl_b32 s13, s2, 2
    s_and_b32 s14, s{swave}, 3
    s_add_u32 s13, s13, s14
    s_lshl_b32 s13, s13, 7
    s_add_u32 s13, s13, {WS_STAMP + 131072 * slot}
    v_mov_b32 v1, 0
    """)
    for k in range(n):
        p(f"v_mov_b32 v2, s{60+2*k}")
        p(f"v_mov_b32 v3, s{61+2*k}")
        p(f"buffer_store_dwordx2 v[2:3], v1, s[{srdw}:{srdw+3}], s13 offen offset:{8*k}")

def gen_prep(code=None):
    p = Prog("prep_kernel")
    p(f"""
    s_cmp_ge_u32 s2, {PREP_GRID}
    s_cbranch_scc1 L_prep_end
    s_cmp_ge_u32 s2, 74
    s_cbranch_scc1 L_prep_warm
    s_load_dwordx2 s[4:5], s[0:1], 0
    s_load_dwordx4 s[8:11], s[0:1], 80
    s_load_dwordx2 s[6:7], s[0:1], 112
    s_waitcnt lgkmcnt(0)
    """)
    stamp(p, 0)
    p("v_lshrrev_b32 v6, 6, v0")
    p("v_readfirstlane_b32 s40, v6")
    srd(p, 16, 4, 5, 2048 * 896)
    srd(p, 20, 8, 9, 896)
    srd(p, 24, 10, 11, 448 * 5376)
    srd(p, 28, 6, 7, WS_USED)
    p("s_cmp_ge_u32 s2, 42")
    p("s_cbranch_scc1 L_prep_ln")
    p(f"""
    v_and_b32 v1, 7, v0
    v_lshrrev_b32 v2, 3, v0
    v_lshlrev_b32 v3, 1, v2
    v_mul_u32_u24 v4, 5376, v2
    v_lshl_add_u32 v4, v1, 4, v4
    s_lshl_b32 s12, s2, 7
    """)
    for i in range(14):
        p(f"buffer_load_ushort v{16+i}, v3, s[20:23], 0 offen offset:{64*i}")
    for i in range(14):
        p(f"buffer_load_dwordx4 {v(32+4*i,4)}, v4, s[24:27], s12 offen")
        if i < 13:
            p(f"s_add_u32 s12, s12, {32*5376}")
    p(f"s_mov_b32 s13, {f2u(-LOG2E)}")
    for i in range(14):
        x = 16 + i
        p(f"v_lshlrev_b32 v{x}, 16, v{x}")
        p(f"v_mul_f32 v5, s13, v{x}")
        p(f"v_exp_f32 v5, v5")
        p(f"v_add_f32 v5, 1.0, v5")
        p(f"v_rcp_f32 v5, v5")
        p(f"v_mul_f32 v5, v5, v{x}")
        p(f"v_cvt_pk_bf16_f32 v5, v5, v5")
        p(f"v_lshlrev_b32 v{x}, 16, v5")
    for r in range(8):
        p(f"v_mov_b32 v{8+r}, 0")
    for i in range(14):
        for d in range(4):
            w = 32 + 4*i + d
            p(f"v_lshlrev_b32 v5, 16, v{w}")
            p(f"v_and_b32 v6, 0xffff0000, v{w}")
            p(f"v_fmac_f32 v{8+2*d}, v5, v{16+i}")
            p(f"v_fmac_f32 v{9+2*d}, v6, v{16+i}")
    p(f"""
    v_lshlrev_b32 v5, 5, v0
    ds_write_b128 v5, v[8:11]
    ds_write_b128 v5, v[12:15] offset:16
    s_waitcnt lgkmcnt(0)
    s_barrier
    v_lshrrev_b32 v6, 6, v0
    v_readfirstlane_b32 s14, v6
    s_cmp_lg_u32 s14, 0
    s_cbranch_scc1 L_prep_end
    v_lshlrev_b32 v5, 2, v0
    """)
    for i in range(32):
        p(f"ds_read_b32 v{32+i}, v5 offset:{256*i}")
    for st in (16, 8, 4, 2, 1):
        for i in range(st):
            p(f"v_add_f32 v{32+i}, v{32+i}, v{32+i+st}")
    p(f"""
    v_cvt_pk_bf16_f32 v32, v32, v32
    v_lshlrev_b32 v32, 16, v32
    s_mul_i32 s14, s2, 37
    s_lshr_b32 s14, s14, 8
    s_cmp_eq_u32 s14, 1
    s_cselect_b32 s15, 1, 0
    s_cmp_eq_u32 s14, 4
    s_cselect_b32 s15, 1, s15
    s_cmp_eq_u32 s15, 0
    s_cbranch_scc1 L_prep_no1
    v_add_f32 v32, 1.0, v32
    v_cvt_pk_bf16_f32 v32, v32, v32
    v_lshlrev_b32 v32, 16, v32
    L_prep_no1:
    s_cmp_lt_u32 s14, 2
    s_cselect_b32 s15, {f2u(QSCALE)}, 1.0
    v_mul_f32 v32, s15, v32
    s_lshl_b32 s12, s2, 8
    buffer_store_dword v32, v5, s[28:31], s12 offen offset:{WS_MOD}
    """)
    stamp_dump(p, 0, 2, 28, 40)
    p("s_endpgm")
    p(f"""
    L_prep_ln:
    v_lshrrev_b32 v6, 6, v0
    v_readfirstlane_b32 s14, v6
    s_sub_u32 s12, s2, 42
    s_lshl_b32 s12, s12, 2
    s_add_u32 s12, s12, s14          ; q-tile
    v_and_b32 v1, 15, v0
    v_bfe_u32 v2, v0, 4, 2
    v_mul_u32_u24 v3, 896, v1
    v_lshl_add_u32 v3, v2, 4, v3
    s_mul_i32 s13, s12, {16*896}
    """)
    X = 16
    F = 72
    for ks in range(14):
        p(f"buffer_load_dwordx4 {v(X+4*ks,4)}, v3, s[16:19], s13 offen offset:{64*ks}")
    p(f"""
    v_and_b32 v4, 63, v0
    v_lshlrev_b32 v5, 2, v4
    v_mov_b32 v6, 0
    s_lshl_b32 s14, s12, 8
    s_add_u32 s14, s14, {WS_STATS}
    buffer_store_dword v6, v5, s[28:31], s14 offen
    v_lshlrev_b32 v4, 4, v4
    v_mov_b32 v8, 0
    v_mov_b32 v9, 0
    """)
    for d in range(56):
        p(f"v_lshlrev_b32 v{F+2*d}, 16, v{X+d}")
        p(f"v_and_b32 v{F+2*d+1}, 0xffff0000, v{X+d}")
        p(f"v_pk_add_f32 v[8:9], v[8:9], {v(F+2*d,2)}")
    p("v_add_f32 v8, v8, v9")
    xreduce(p, 8, 10, "v_add_f32")
    p(f"v_mul_f32 v8, {f2u(-1.0/448)}, v8")
    p("v_mov_b32 v10, 0")
    p("v_mov_b32 v11, 0")
    for d in range(56):
        p(f"v_pk_add_f32 {v(F+2*d,2)}, {v(F+2*d,2)}, v[8:9] op_sel_hi:[1,0]")
        p(f"v_pk_fma_f32 v[10:11], {v(F+2*d,2)}, {v(F+2*d,2)}, v[10:11]")
    p("v_add_f32 v10, v10, v11")
    xreduce(p, 10, 12, "v_add_f32")
    p(f"""
    v_mov_b32 v12, {f2u(1e-5)}
    v_fmac_f32 v12, {f2u(1.0/448)}, v10
    v_rsq_f32 v12, v12
    s_mul_i32 s13, s12, {14*1024}
    s_add_u32 s13, s13, {WS_XN}
    """)
    for ks in range(14):
        for d in range(4*ks, 4*ks+4):
            p(f"v_pk_mul_f32 {v(F+2*d,2)}, {v(F+2*d,2)}, v[12:13] op_sel_hi:[1,0]")
            p(f"v_cvt_pk_bf16_f32 v{X+d}, v{F+2*d}, v{F+2*d+1}")
        p(f"buffer_store_dwordx4 {v(X+4*ks,4)}, v4, s[28:31], s13 offen offset:{(ks % 4)*1024}")
        if ks % 4 == 3:
            p("s_add_u32 s13, s13, 4096")
    stamp_dump(p, 0, 2, 28, 40)
    p("s_endpgm")
    p(f"""
    L_prep_warm:
    s_load_dwordx2 s[4:5], s[0:1], 24
    s_load_dwordx4 s[8:11], s[0:1], 48
    s_load_dwordx2 s[6:7], s[0:1], 72
    s_sub_u32 s12, s2, 74
    s_lshl_b32 s12, s12, 15
    v_lshl_add_u32 v1, v0, 7, s12
    s_waitcnt lgkmcnt(0)
    """)
    srd(p, 16, 4, 5, 448 * 8192)
    srd(p, 20, 8, 9, 448 * 3584)
    srd(p, 24, 10, 11, 2048 * 4096)
    srd(p, 28, 6, 7, 896 * 896)
    NL = 182 * 256 * 128
    p(f"""
    buffer_load_dword v2, v1, s[16:19], 0 offen
    v_subrev_u32 v3, {448*8192}, v1
    buffer_load_dword v4, v3, s[20:23], 0 offen
    buffer_load_dword v5, v1, s[24:27], 0 offen
    v_add_u32 v6, {NL}, v1
    buffer_load_dword v7, v6, s[24:27], 0 offen
    v_subrev_u32 v8, {2048*4096 - NL}, v1
    buffer_load_dword v9, v8, s[28:31], 0 offen
    """)
    if code:
        p(f"""
        s_getpc_b64 s[14:15]
        L_prep_pc:
        v_subrev_u32 v10, {NL - 131072}, v1
        v_cmp_gt_u32 vcc, {code[1]}-{code[0]}, v10
        v_add_u32 v10, {code[0]}-L_prep_pc, v10
        s_and_saveexec_b64 s[34:35], vcc
        s_cbranch_execz L_prep_end
        global_load_dword v11, v10, s[14:15]
        """)
    p("L_prep_end:")
    p("s_endpgm")
    p.finalize()
    return p, f"; @launch kernel=prep_kernel grid=({PREP_GRID},1,1) block=(256,1,1) lds=8192\n"
```

```python
import sys
sys.path.insert(0, "work")
from asmlib import *
from layout import *
from k_prep import srd, f2u, stamp, stamp_dump, signal, poll

def lane_reduce_345(p, T, tmp):
    p(f"v_add_f32_dpp {v(T)}, {v(T)}, {v(T)} row_ror:8 row_mask:0xf bank_mask:0xf")
    p(f"v_mov_b32 {v(tmp)}, {v(T)}")
    p(f"v_permlane32_swap_b32 {v(T)}, {v(tmp)}")
    p(f"v_add_f32 {v(T)}, {v(T)}, {v(tmp)}")
    p(f"v_mov_b32 {v(tmp)}, {v(T)}")
    p(f"v_permlane16_swap_b32 {v(T)}, {v(tmp)}")
    p(f"v_add_f32 {v(T)}, {v(T)}, {v(tmp)}")

def gen_red():
    p = Prog("red_kernel")
    p(f"""
    s_cmp_ge_u32 s2, 256
    s_cbranch_scc1 L_red_end
    s_load_dwordx2 s[4:5], s[0:1], 0
    s_load_dwordx2 s[6:7], s[0:1], 112
    v_lshrrev_b32 v1, 6, v0
    v_readfirstlane_b32 s12, v1
    v_and_b32 v1, 7, v0                  ; n8
    v_bfe_u32 v2, v0, 3, 2               ; g
    v_bfe_u32 v3, v0, 5, 1               ; uu
    v_lshlrev_b32 v4, 10, v3
    v_lshl_add_u32 v4, v2, 8, v4
    v_lshl_add_u32 v4, v1, 4, v4
    s_lshr_b32 s13, s2, 1                ; q-tile
    s_and_b32 s14, s2, 1                 ; half
    s_mul_i32 s15, s13, {14*1024}
    s_lshl_b32 s32, s14, 7
    s_add_u32 s15, s15, s32
    s_lshl_b32 s32, s12, 11
    s_add_u32 s15, s15, s32
    s_waitcnt lgkmcnt(0)
    """)
    stamp(p, 0)
    srd(p, 16, 4, 5, 2048 * 896)
    srd(p, 28, 6, 7, WS_USED)
    p(f"s_add_u32 s32, s15, {WS_PART}")
    for j in range(8):
        p(f"buffer_load_dwordx4 {v(32+4*j,4)}, v4, s[28:31], s32 offen")
        if j < 7:
            p(f"s_add_u32 s32, s32, {128*14*1024}")
    p(f"""
    v_mul_u32_u24 v5, 896, v1
    v_lshl_add_u32 v5, v3, 6, v5
    v_lshl_add_u32 v5, v2, 3, v5
    s_mul_i32 s33, s2, {8*896}
    s_lshl_b32 s34, s12, 7
    s_add_u32 s33, s33, s34
    buffer_load_dwordx2 v[64:65], v5, s[16:19], s33 offen
    buffer_load_dwordx2 v[66:67], v5, s[16:19], s33 offen offset:32
    v_lshlrev_b32 v6, 7, v3
    v_lshl_add_u32 v6, v2, 4, v6         ; (32uu + 4g)*4
    s_lshl_b32 s34, s12, 8
    s_add_u32 s34, s34, {WS_MOD + 2*1792}
    """)
    for k, sec in enumerate((0, 1, 2)):
        for e in range(2):
            p(f"buffer_load_dwordx4 {v(72+8*k+4*e,4)}, v6, s[28:31], s34 offen offset:{sec*1792 + 64*e}")
    A = 16
    for j in range(8):
        for d in range(4):
            x = 32 + 4*j + d
            if j == 0:
                p(f"v_lshlrev_b32 v{A+2*d}, 16, v{x}")
                p(f"v_and_b32 v{A+2*d+1}, 0xffff0000, v{x}")
            else:
                t = 8 + 2 * (d % 2)
                p(f"v_lshlrev_b32 v{t}, 16, v{x}")
                p(f"v_and_b32 v{t+1}, 0xffff0000, v{x}")
                p(f"v_pk_add_f32 {v(A+2*d,2)}, {v(A+2*d,2)}, {v(t,2)}")
    X1 = 24
    stamp(p, 1)
    for d in range(4):
        t = 8 + 2 * (d % 2)
        p(f"v_lshlrev_b32 v{t}, 16, v{64+d}")
        p(f"v_and_b32 v{t+1}, 0xffff0000, v{64+d}")
        p(f"v_pk_fma_f32 {v(A+2*d,2)}, {v(A+2*d,2)}, {v(72+2*d,2)}, {v(t,2)}")
        p(f"v_cvt_pk_bf16_f32 v{X1+d}, v{A+2*d}, v{A+2*d+1}")
        p(f"v_lshlrev_b32 v{A+2*d}, 16, v{X1+d}")
        p(f"v_and_b32 v{A+2*d+1}, 0xffff0000, v{X1+d}")
    p(f"""
    s_add_u32 s32, s15, {WS_X1}
    buffer_store_dwordx4 {v(X1,4)}, v4, s[28:31], s32 offen
    v_pk_add_f32 v[8:9], {v(A,2)}, {v(A+2,2)}
    v_pk_add_f32 v[10:11], {v(A+4,2)}, {v(A+6,2)}
    v_pk_add_f32 v[8:9], v[8:9], v[10:11]
    v_add_f32 v8, v8, v9
    """)
    lane_reduce_345(p, 8, 9)
    p(f"""
    s_lshl_b32 s33, s12, 5
    v_lshlrev_b32 v12, 2, v1
    v_add_u32 v13, s33, v12
    ds_write_b32 v13, v8
    s_waitcnt lgkmcnt(0)
    s_barrier
    """)
    def gather(off):
        for w in range(7):
            p(f"ds_read_b32 v{32+w}, v12 offset:{off + 32*w}")
        p("v_add_f32 v32, v32, v33")
        p("v_add_f32 v34, v34, v35")
        p("v_add_f32 v36, v36, v37")
        p("v_add_f32 v32, v32, v38")
        p("v_add_f32 v34, v34, v36")
        p("v_add_f32 v8, v32, v34")
    gather(0)
    p(f"v_mul_f32 v8, {f2u(-1.0/448)}, v8")
    for d in range(4):
        p(f"v_pk_add_f32 {v(A+2*d,2)}, {v(A+2*d,2)}, v[8:9] op_sel_hi:[1,0]")
    p(f"v_pk_mul_f32 v[10:11], {v(A,2)}, {v(A,2)}")
    for d in range(1, 4):
        p(f"v_pk_fma_f32 v[10:11], {v(A+2*d,2)}, {v(A+2*d,2)}, v[10:11]")
    p("v_add_f32 v8, v10, v11")
    lane_reduce_345(p, 8, 9)
    p(f"""
    ds_write_b32 v13, v8 offset:256
    s_waitcnt lgkmcnt(0)
    s_barrier
    """)
    gather(256)
    p(f"""
    v_mov_b32 v10, {f2u(1e-5)}
    v_fmac_f32 v10, {f2u(1.0/448)}, v8
    v_rsq_f32 v10, v10
    """)
    for d in range(4):
        p(f"v_pk_mul_f32 {v(A+2*d,2)}, {v(A+2*d,2)}, v[10:11] op_sel_hi:[1,0]")
        p(f"v_pk_fma_f32 {v(A+2*d,2)}, {v(A+2*d,2)}, {v(88+2*d,2)}, {v(80+2*d,2)}")
        p(f"v_cvt_pk_bf16_f32 v{28+d}, v{A+2*d}, v{A+2*d+1}")
    p(f"""
    s_add_u32 s32, s15, {WS_H2}
    buffer_store_dwordx4 v[28:31], v4, s[28:31], s32 offen
    """)
    stamp(p, 2)
    stamp_dump(p, 2, 4, 28, 12)
    p("L_red_end:")
    p("s_endpgm")
    p.finalize()
    return p, "; @launch kernel=red_kernel grid=(256,1,1) block=(448,1,1) lds=512\n"


def emit_red_pre(p, S_W, S_PB, S_J, SRD_W, SRD_X):
    B = 128
    p(f"""
    v_and_b32 v1, 7, v0                  ; n8
    v_bfe_u32 v2, v0, 3, 2               ; g
    v_bfe_u32 v3, v0, 5, 1               ; uu
    v_lshlrev_b32 v4, 10, v3
    v_lshl_add_u32 v4, v2, 8, v4
    v_lshl_add_u32 v4, v1, 4, v4
    s_lshl_b32 s50, s{S_PB}, 3
    s_add_u32 s50, s50, s{S_J}
    s_lshr_b32 s51, s50, 1
    s_mul_i32 s51, s51, {14*1024}
    s_and_b32 s52, s50, 1
    s_lshl_b32 s52, s52, 7
    s_add_u32 s51, s51, s52
    s_lshl_b32 s52, s{S_W}, 11
    s_add_u32 s51, s51, s52
    s_cmp_eq_u32 s{S_W}, 3
    s_cselect_b32 s53, 0x40000000, 0
    s_cselect_b32 s54, 0, 1.0
    v_add_u32 v5, s53, v4
    v_add_u32 v5, 8192, v5
    v_mul_u32_u24 v6, 896, v1
    v_lshl_add_u32 v6, v3, 6, v6
    v_lshl_add_u32 v6, v2, 3, v6
    v_add_u32 v7, s53, v6
    s_mul_i32 s55, s50, {8*896}
    s_lshl_b32 s52, s{S_W}, 7
    s_add_u32 s55, s55, s52
    v_lshlrev_b32 v8, 7, v3
    v_lshl_add_u32 v8, v2, 4, v8
    v_add_u32 v9, s53, v8
    v_add_u32 v9, 1024, v9
    s_lshl_b32 s52, s{S_W}, 8
    s_add_u32 s52, s52, {WS_MOD + 2*1792}
    """)
    for h in range(2):
        for e in range(2):
            p(f"buffer_load_dwordx2 {v(B+4*h+2*e,2)}, v{6+h}, s[{SRD_X}:{SRD_X+3}], s55 offen offset:{512*h + 32*e}")
    for h in range(2):
        for k in range(3):
            for e in range(2):
                p(f"buffer_load_dwordx4 {v(B+8+24*h+8*k+4*e,4)}, v{8+h}, s[{SRD_W}:{SRD_W+3}], s52 offen offset:{k*1792 + 64*e}")

def emit_red(p, S_W, S_PB, SRD_W, ldsoff, after_loads=()):
    B = 128
    PR = 16
    A = 80
    X1 = 96
    p(f"""
    v_min_u32 v10, 7, v1
    v_lshlrev_b32 v10, 2, v10
    s_lshl_b32 s52, s{S_PB}, 7
    s_add_u32 s52, s52, {WS_FLAG}
    """)
    poll(p, SRD_W, 52, 10, 11, "r" + p.name, 56)
    stamp(p, 6)
    p(f"s_add_u32 s52, s51, {WS_PART}")
    for j in range(8):
        for h in range(2):
            p(f"buffer_load_dwordx4 {v(PR+8*j+4*h,4)}, v{4+h}, s[{SRD_W}:{SRD_W+3}], s52 offen sc1")
        if j < 7:
            p(f"s_add_u32 s52, s52, {128*14*1024}")
    p.extend(after_loads)
    for j in range(8):
        for d in range(8):
            x = PR + 8*j + d
            if j == 0:
                p(f"v_lshlrev_b32 v{A+2*d}, 16, v{x}")
                p(f"v_and_b32 v{A+2*d+1}, 0xffff0000, v{x}")
            else:
                t = 104 + 2 * (d % 4)
                p(f"v_lshlrev_b32 v{t}, 16, v{x}")
                p(f"v_and_b32 v{t+1}, 0xffff0000, v{x}")
                p(f"v_pk_add_f32 {v(A+2*d,2)}, {v(A+2*d,2)}, {v(t,2)}")
    M = lambda d, k: B + 8 + 24*(d//4) + 8*k + 2*(d % 4)
    for d in range(8):
        t = 104 + 2 * (d % 4)
        p(f"v_lshlrev_b32 v{t}, 16, v{B+d}")
        p(f"v_and_b32 v{t+1}, 0xffff0000, v{B+d}")
        p(f"v_pk_fma_f32 {v(A+2*d,2)}, {v(A+2*d,2)}, {v(M(d,0),2)}, {v(t,2)}")
        p(f"v_cvt_pk_bf16_f32 v{X1+d}, v{A+2*d}, v{A+2*d+1}")
        p(f"v_lshlrev_b32 v{A+2*d}, 16, v{X1+d}")
        p(f"v_and_b32 v{A+2*d+1}, 0xffff0000, v{X1+d}")
    p(f"s_add_u32 s52, s51, {WS_X1}")
    for h in range(2):
        p(f"buffer_store_dwordx4 {v(X1+4*h,4)}, v{4+h}, s[{SRD_W}:{SRD_W+3}], s52 offen sc1")
    p(f"v_pk_add_f32 v[104:105], {v(A,2)}, {v(A+2,2)}")
    for d in range(2, 8):
        p(f"v_pk_add_f32 v[104:105], v[104:105], {v(A+2*d,2)}")
    p("v_add_f32 v104, v104, v105")
    lane_reduce_345(p, 104, 105)
    p(f"""
    s_lshl_b32 s52, s{S_W}, 5
    v_lshlrev_b32 v12, 2, v1
    v_add_u32 v12, {ldsoff}, v12
    v_add_u32 v13, s52, v12
    ds_write_b32 v13, v104
    s_waitcnt lgkmcnt(0)
    s_barrier
    """)
    def gather(off):
        for w in range(4):
            p(f"ds_read_b32 v{108+w}, v12 offset:{off + 32*w}")
        p("v_add_f32 v108, v108, v109")
        p("v_add_f32 v110, v110, v111")
        p("v_add_f32 v104, v108, v110")
    gather(0)
    p(f"v_mul_f32 v104, {f2u(-1.0/448)}, v104")
    p(f"v_mul_f32 v106, s54, v104")
    for d in range(8):
        p(f"v_pk_add_f32 {v(A+2*d,2)}, {v(A+2*d,2)}, {'v[104:105]' if d < 4 else 'v[106:107]'} op_sel_hi:[1,0]")
    p(f"v_pk_mul_f32 v[106:107], {v(A,2)}, {v(A,2)}")
    for d in range(1, 8):
        p(f"v_pk_fma_f32 v[106:107], {v(A+2*d,2)}, {v(A+2*d,2)}, v[106:107]")
    p("v_add_f32 v104, v106, v107")
    lane_reduce_345(p, 104, 105)
    p(f"""
    ds_write_b32 v13, v104 offset:128
    s_waitcnt lgkmcnt(0)
    s_barrier
    """)
    gather(128)
    p(f"""
    v_mov_b32 v106, {f2u(1e-5)}
    v_fmac_f32 v106, {f2u(1.0/448)}, v104
    v_rsq_f32 v106, v106
    """)
    for d in range(8):
        p(f"v_pk_mul_f32 {v(A+2*d,2)}, {v(A+2*d,2)}, v[106:107] op_sel_hi:[1,0]")
        p(f"v_pk_fma_f32 {v(A+2*d,2)}, {v(A+2*d,2)}, {v(M(d,2),2)}, {v(M(d,1),2)}")
        p(f"v_cvt_pk_bf16_f32 v{PR+d}, v{A+2*d}, v{A+2*d+1}")
    p(f"s_add_u32 s52, s51, {WS_H2}")
    for h in range(2):
        p(f"buffer_store_dwordx4 {v(PR+4*h,4)}, v{4+h}, s[{SRD_W}:{SRD_W+3}], s52 offen sc1")
```

```python
import sys
sys.path.insert(0, "work")
from k_attn import *
from k_z import gelu_pairs, C1, C2
NSTAMP = 16

def build_mega(opts):
    opts = opts or {}
    name = opts.get("name", "mega_kernel")
    p = Prog(name)
    at = Attn(opts)
    LD = opts.get("ld", " sc1")
    thr = opts.get("thr", 0x5f800000)
    p(f"""
    s_cmp_ge_u32 s2, 256
    s_cbranch_scc1 L_end{name}
    s_load_dwordx8 s[4:11], s[0:1], 8
    s_load_dwordx2 s[12:13], s[0:1], 112
    v_lshrrev_b32 v1, 6, v0
    v_readfirstlane_b32 {s(S_W)}, v1
    s_and_b32 {s(S_J)}, s2, 7
    s_lshr_b32 {s(S_PB)}, s2, 3
    v_and_b32 v1, 63, v0
    v_lshlrev_b32 {v(V_LIN)}, 4, v1
    s_lshr_b32 {s(S_HD)}, {s(S_W)}, 1
    s_and_b32 s14, {s(S_W)}, 1
    s_lshl_b32 {s(S_QT)}, {s(S_PB)}, 2
    s_lshl_b32 s14, s14, 1
    s_add_u32 {s(S_QT)}, {s(S_QT)}, s14
    s_waitcnt lgkmcnt(0)
    """)
    stamp(p, 0)
    srd(p, SRD_W, 12, 13, WS_USED)
    srd(p, SRD_Q, 8, 9, 448 * 8192)
    def extras():
        if opts.get("touch", True):
            p(f"""
            v_lshrrev_b32 v1, {4 if opts.get("t64", False) else 3}, v0
            v_min_u32 v1, 13, v1
            v_lshlrev_b32 v1, 13, v1
            v_and_b32 v2, {15 if opts.get("t64", False) else 7}, v0
            v_lshl_add_u32 v1, v2, {6 if opts.get("t64", False) else 7}, v1
            s_mul_i32 s53, {s(S_PB)}, {14*8192}
            s_add_u32 s53, s53, {s(S_WBASE)}
            buffer_load_dword v{V_O+127}, v1, {s(SRD_Q,4)}, s53 offen
            """)
        if opts.get("cpf", True):
            code_prefetch(p, name, f"L_end{name}", 22, 1, V_O + 126)
    p(f"s_lshl_b32 {s(S_WBASE)}, {s(S_J)}, 10")
    extras()
    V_MRD = 3
    p(f"""
    s_mul_i32 s14, {s(S_QT)}, {14*1024}
    s_mul_i32 s15, {s(S_HD)}, {7*1024}
    s_add_u32 s14, s14, s15
    s_add_u32 s14, s14, {WS_XN}
    s_add_u32 s15, s14, {14*1024}
    s_add_u32 s50, s14, 4096
    s_add_u32 s51, s15, 4096
    s_lshl_b32 s52, {s(S_W)}, 11
    s_add_u32 s52, s52, {MODL}
    s_mov_b32 m0, s52
    s_mul_i32 s53, {s(S_HD)}, 896
    s_add_u32 s54, s53, {WS_MOD + 1792 - 1024}
    """)
    mt = ("dma", ("M", 0), "private")
    p(f"buffer_load_dwordx4 {v(V_LIN)}, {s(SRD_W,4)}, s53 offen offset:{WS_MOD} lds", tag=mt)
    p(f"buffer_load_dwordx4 {v(V_LIN)}, {s(SRD_W,4)}, s54 offen offset:1024 lds", tag=mt)
    for ks in range(7):
        for qt in range(2):
            so = (14 + qt) if ks < 4 else (50 + qt)
            p(f"buffer_load_dwordx4 {v(V_H+8*ks+4*qt,4)}, {v(V_LIN)}, {s(SRD_W,4)}, s{so} offen offset:{(ks % 4)*1024}")
    p(f"""
    s_mul_i32 {s(S_M0V)}, {s(S_W)}, 4160
    s_lshl_b32 {s(S_M0K)}, {s(S_W)}, 12
    s_lshl_b32 {s(S_WBASE)}, {s(S_J)}, 10
    v_bfe_u32 v1, v0, 5, 1              ; hh
    v_and_b32 v2, 31, v0
    v_lshlrev_b32 {v(V_TMP)}, 1, v1
    v_xor_b32 v2, v2, {v(V_TMP)}        ; chunk
    v_lshlrev_b32 v1, 3, v1
    v_add_u32 v1, {s(S_W)}, v1          ; 8hh + w
    v_lshlrev_b32 v1, 13, v1
    v_lshl_add_u32 {v(V_WDMA)}, v2, 4, v1
    """)
    for jj in range(1, 4):
        p(f"v_add_u32 {v(V_WDMA+jj)}, {(16*(jj % 2) + 4*(jj//2))*8192 - jj*1024}, {v(V_WDMA)}")
    def emit_wfill(which, st):
        for hf in range(2):
            pre, d = at.wfill(which, st, hf)
            p.extend(pre); p.extend(d)
    emit_wfill("Q", 0)
    p(f"""
    v_bfe_u32 v1, v0, 2, 2
    v_mul_u32_u24 v1, 4160, v1
    v_and_b32 v2, 3, v0
    v_lshl_add_u32 v1, v2, 3, v1
    v_bfe_u32 v2, v0, 4, 2
    v_lshl_add_u32 v1, v2, 9, v1
    v_lshlrev_b32 v{V_MRD}, 5, v2
    v_add_u32 v{V_MRD}, s52, v{V_MRD}
    v_bfe_u32 v2, v0, 4, 1
    v_lshl_add_u32 {v(V_TMP)}, v2, 5, v1
    s_mul_i32 s14, {s(S_HD)}, {SLOT}
    v_add_u32 {v(V_WRD)}, s14, {v(V_TMP)}
    v_xor_b32 {v(V_WRD+1)}, 32, {v(V_WRD)}
    v_add_u32 {v(V_WRD+2)}, {4*SLOT}, {v(V_WRD)}
    v_add_u32 {v(V_WRD+3)}, {4*SLOT}, {v(V_WRD+1)}
    s_lshl_b32 s14, {s(S_W)}, 12
    s_add_u32 s14, s14, {8*SLOT}
    v_add_u32 {v(V_XW)}, s14, {v(V_LIN)}
    v_xor_b32 {v(V_XR)}, 0x2000, {v(V_XW)}
    """)
    MB = 72
    TM = 120
    def modreads(ks):
        M = MB + 16 * (ks % 3)
        rt = ("rd", ("M", 0), "private")
        return [I(f"ds_read_b128 {v(M + 8*k + 4*h, 4)}, v{V_MRD} offset:{1024*(1-k) + 128*ks + 16*h}", tag=rt)
                for k in range(2) for h in range(2)]
    def modulate(ks, pk):
        M = MB + 16 * (ks % 3)
        out = []
        for qt in range(2):
            for d in range(4):
                x = V_H + 8*ks + 4*qt + d
                t = TM + 2 * d
                out.append(I(f"v_lshlrev_b32 v{t}, 16, v{x}"))
                out.append(I(f"v_and_b32 v{t+1}, 0xffff0000, v{x}"))
                if pk:
                    out.append(I(f"v_pk_fma_f32 {v(t,2)}, {v(t,2)}, {v(M+2*d,2)}, {v(M+8+2*d,2)}"))
                else:
                    out.append(I(f"v_fma_f32 v{t}, v{t}, v{M+2*d}, v{M+8+2*d}"))
                    out.append(I(f"v_fma_f32 v{t+1}, v{t+1}, v{M+2*d+1}, v{M+8+2*d+1}"))
                out.append(I(f"v_cvt_pk_bf16_f32 v{x}, v{t}, v{t+1}"))
        return out
    NUP = opts.get("nup", 4)
    p(I("WAITTAG", tag=[("M", 0)]))
    p.extend(modreads(0)); p.extend(modreads(1)); p.extend(modreads(2))
    assert NUP >= 4
    for ks in range(NUP):
        p.extend(modulate(ks, True))
        if ks + 3 < 7:
            p.extend(modreads(ks + 3))
        if ks == 0:
            emit_wfill("Q", 1)
        if ks == 2:
            emit_wfill("Q", 2)
    p(I("WAITTAG", tag=at.wkeys("Q", 0)))
    p("s_barrier")
    stamp(p, 1)
    srd(p, SRD_O, 10, 11, 4096 * 896)
    p(f"""
    s_lshl_b32 s14, {s(S_J)}, 20
    s_add_u32 {s(SRD_K)}, s4, s14
    s_addc_u32 {s(SRD_K+1)}, s5, 0
    s_mov_b32 {s(SRD_K+2)}, 0x100000
    s_mov_b32 {s(SRD_K+3)}, 0x20000
    s_add_u32 {s(SRD_V)}, s6, s14
    s_addc_u32 {s(SRD_V+1)}, s7, 0
    s_mov_b32 {s(SRD_V+2)}, 0x100000
    s_mov_b32 {s(SRD_V+3)}, 0x20000
    s_mov_b32 {s(S_KOFF)}, 0
    s_mov_b32 {s(S_VOFF)}, 0
    s_mov_b32 {s(S_THR)}, {thr}
    s_lshl_b32 s15, {s(S_W)}, 3
    """)
    setup = f"""
    v_bfe_u32 v1, v0, 5, 1
    v_and_b32 v2, 31, v0
    v_add_u32 v16, s15, v1
    v_lshlrev_b32 v17, 9, v16
    v_and_b32 v16, 15, v16
    v_xor_b32 v16, v16, v2
    v_lshl_add_u32 {v(V_KDMA)}, v16, 4, v17
    v_xor_b32 {v(V_KDMA+1)}, 32, {v(V_KDMA)}
    v_xor_b32 {v(V_KDMA+2)}, 64, {v(V_KDMA)}
    v_xor_b32 {v(V_KDMA+3)}, 96, {v(V_KDMA)}
    v_lshlrev_b32 v16, 2, v1
    v_add_u32 v16, {s(S_W)}, v16
    v_lshlrev_b32 v16, 9, v16
    v_lshlrev_b32 v17, 1, v1
    v_xor_b32 v17, v17, v2
    v_lshl_add_u32 {v(V_VDMA)}, v17, 4, v16
    v_add_u32 {v(V_VDMA+1)}, 3072, {v(V_VDMA)}
    v_add_u32 {v(V_VDMA+2)}, 6144, {v(V_VDMA)}
    v_add_u32 {v(V_VDMA+3)}, 9216, {v(V_VDMA)}
    v_and_b32 v16, 15, v0
    v_bfe_u32 v17, v0, 4, 2
    v_xor_b32 v17, v17, v16
    v_lshlrev_b32 v16, 9, v16
    v_add_u32 v16, {4*SLOT}, v16
    v_lshl_add_u32 {v(V_KRD)}, v17, 4, v16
    v_xor_b32 {v(V_KRD+1)}, 64, {v(V_KRD)}
    v_xor_b32 {v(V_KRD+2)}, 0x80, {v(V_KRD)}
    v_xor_b32 {v(V_KRD+3)}, 0xc0, {v(V_KRD)}
    v_mov_b32 {v(V_VRD)}, {v(V_TMP)}
    v_xor_b32 {v(V_VRD+1)}, 32, {v(V_TMP)}
    v_mov_b32 {v(V_L)}, 0
    v_mov_b32 {v(V_L+1)}, 0
    """
    setup = [I(x.strip()) for x in setup.strip().split("\n")]
    assert (4 * SLOT) % 256 == 0
    def q_mfma(i, t, qt, fr):
        D = v(V_O + 8*t + 4*qt, 4)
        Bop = v(V_H + 8*i + 4*qt, 4) if i < 7 else a(A_HP + 8*(i-7) + 4*qt, 4)
        return f"v_mfma_f32_16x16x32_bf16 {D}, {fr}, {Bop}, {D if i else 0}"
    def q_fills(i):
        st = i + 3
        if st < 14:
            return [at.wfill("Q", st, hf) + ([],) for hf in range(2)]
        if i == 11: return [at.kvfill("K", 0), at.kvfill("K", 1)]
        if i == 12: return [at.kvfill("K", 2)]
        return [at.kvfill("V", 0), at.kvfill("V", 1, range(at.nafter))]
    def q_bar(i):
        ks = at.wkeys("Q", i + 1) if i < 13 else [at.key("K", 0)]
        i -= 1
        if 0 <= i < 8:
            ks = ks + [(8, i // 2)] if i % 2 == 0 else ks + [("rd", 8, i // 2)]
        return ks
    def q_valu(i):
        out = []
        if NUP + i < 7:
            out += modulate(NUP + i, False)
        if i in (8, 9, 10):
            n = len(setup)
            out += setup[(i-8)*n//3:(i-7)*n//3]
        return out
    def q_xds(i):
        out = []
        i -= 1
        if 0 <= i < 8:
            rho = i // 2
            for k in range(4):
                u, qt = 2*rho + k // 2, k % 2
                if u >= 7: continue
                if i % 2 == 0:
                    out.append(I(f"ds_write_b128 {v(V_XW)}, {v(V_H + 8*u + 4*qt, 4)} offset:{1024*k}", tag=("wr", (8, rho))))
                else:
                    out.append(I(f"ds_read_b128 {a(A_HP + 8*u + 4*qt, 4)}, {v(V_XR)} offset:{1024*k}", tag=("rd", (8, rho))))
        return out
    at.gemm_phase(p, "Q", 14, 16, q_mfma, q_fills, q_bar, q_valu, q_xds)
    p("s_load_dwordx4 s[4:7], s[0:1], 48")
    p("s_load_dwordx2 s[8:9], s[0:1], 72")
    p("s_load_dwordx2 s[10:11], s[0:1], 0")
    p("s_waitcnt lgkmcnt(0)")
    srd(p, SRD_Q, 4, 5, 448 * 3584)
    for g in range(at.gB + 1, 64):
        for (f, e, nx) in at.ds.get(g, []):
            p(at.kread(lambda it: 0, 0, f))
    p(f"""
    v_bfe_u32 v1, v0, 5, 1
    v_and_b32 v2, 31, v0
    v_lshlrev_b32 v3, 1, v1
    v_xor_b32 v3, v3, v2
    v_lshlrev_b32 v1, 2, v1
    v_add_u32 v1, {s(S_W)}, v1
    v_mul_u32_u24 v1, 896, v1
    v_lshl_add_u32 v1, v3, 4, v1
    v_mov_b32 v3, 0x40000000
    v_cmp_gt_u32 vcc, 28, v2
    v_cndmask_b32 {v(V_WDMA)}, v3, v1, vcc
    v_add_u32 {v(V_WDMA+1)}, {8*896 - 1024}, {v(V_WDMA)}
    v_add_u32 {v(V_WDMA+2)}, {16*896 - 2048}, {v(V_WDMA)}
    v_add_u32 {v(V_WDMA+3)}, {24*896 - 3072}, {v(V_WDMA)}
    s_mul_i32 {s(S_WBASE)}, {s(S_J)}, {512*896}
    """)
    assert (8 * SLOT) & 0x3fff == (8 * SLOT) % 16384 and ((8 * SLOT) % 16384) + 4096 <= 8192
    for sx in range(8):
        for qt in range(2):
            X = V_O + 16*sx + 4*qt
            Y = X + 8
            p(f"v_cvt_pk_bf16_f32 v{X}, v{X}, v{X+1}")
            p(f"v_cvt_pk_bf16_f32 v{X+1}, v{X+2}, v{X+3}")
            p(f"v_cvt_pk_bf16_f32 v{Y}, v{Y}, v{Y+1}")
            p(f"v_cvt_pk_bf16_f32 v{Y+1}, v{Y+2}, v{Y+3}")
        for qt in range(2):
            X = V_O + 16*sx + 4*qt
            Y = X + 8
            p(f"v_permlane32_swap_b32 v{X}, v{Y}")
            p(f"v_permlane32_swap_b32 v{X+1}, v{Y+1}")
        for qt in range(2):
            X = V_O + 16*sx + 4*qt
            Y = X + 8
            p(f"v_permlane16_swap_b32 v{X}, v{Y}")
            p(f"v_permlane16_swap_b32 v{X+1}, v{Y+1}")
        for qt in range(2):
            X = V_O + 16*sx + 4*qt
            Y = X + 8
            for k, r in enumerate((X, X+1, Y, Y+1)):
                p(f"v_accvgpr_write_b32 a{A_Q + 8*sx + 4*qt + k}, v{r}")
    stamp(p, 2)
    lid = [opts.get("lid0", 0)]
    def B(c, fn, aval=None, **kw):
        at.body(p, c, fn, aval=aval, lid=lid[0], **kw)
        if aval != -1:
            at.fallback(p, c % 2, lid[0], aval != 63)
        lid[0] += 1
    B(3, lambda it: -1, aval=-1)
    if opts.get("touch", True):
        p(f"""
        v_min_u32 v1, {223 if opts.get("t64", False) else 111}, v0
        v_lshlrev_b32 v1, {6 if opts.get("t64", False) else 7}, v1
        s_mul_i32 s53, {s(S_PB)}, {112*128}
        s_add_u32 s53, s53, {s(S_WBASE)}
        buffer_load_dword v2, v1, {s(SRD_O,4)}, s53 offen
        """)
    exv = None
    if opts.get("warm", True):
        p(f"""
        v_and_b32 v1, 63, v0
        s_lshl_b32 s14, s2, 15
        s_min_u32 s14, s14, {2048*4096 - 35840}
        s_mul_i32 s15, {s(S_W)}, 640
        s_add_u32 s14, s14, s15
        v_cmp_gt_u32 vcc, 5, v1
        v_cndmask_b32 v3, 0, v1, vcc
        v_lshl_add_u32 v3, v3, 7, s14
        v_mov_b32 v16, s6
        v_mov_b32 v17, s7
        v_mov_b32 v18, 2560
        v_mov_b32 v19, 0
        s_mul_i32 s14, s2, {49*128}
        s_min_u32 s14, s14, {448*3584 - 56*128}
        s_lshl_b32 s15, {s(S_W)}, 7
        s_add_u32 s14, s14, s15
        v_writelane_b32 v3, s14, 5
        v_writelane_b32 v16, s4, 5
        v_writelane_b32 v17, s5, 5
        s_movk_i32 s14, 0x200
        v_writelane_b32 v18, s14, 5
        s_mul_i32 s14, s2, {25*128}
        s_min_u32 s14, s14, {896*896 - 28*128}
        s_and_b32 s15, {s(S_W)}, 1
        s_lshl_b32 s15, s15, 7
        s_add_u32 s14, s14, s15
        v_writelane_b32 v3, s14, 6
        v_writelane_b32 v16, s8, 6
        v_writelane_b32 v17, s9, 6
        s_movk_i32 s14, 0x100
        v_writelane_b32 v18, s14, 6
        v_add_co_u32 v16, vcc, v16, v3
        v_addc_co_u32 v17, vcc, 0, v17, vcc
        """)
        exv = [(at.gB, I("global_load_dword v20, v[16:17], off"))]
        exv2 = [(at.gJ, I("v_lshl_add_u64 v[16:17], v[16:17], 0, v[18:19]"))]
    B(0, lambda it: 0, aval=0, extra_scalar=[(60, I(f"s_mov_b32 {s(S_CNT)}, 14"))])
    p.begin_loop(14)
    p(f"L_loop{name}:")
    for c in range(1, 5):
        ex = [(60, I(f"s_sub_u32 {s(S_CNT)}, {s(S_CNT)}, 1"))] if c == 2 else None
        B(c % 4, (lambda c: lambda it: 4*it + c)(c), extra_scalar=ex,
          extra_valu=(exv if c == 1 else exv2 if c == 3 else None) if exv else None)
    p(f"s_cmp_lg_u32 {s(S_CNT)}, 0")
    p(f"s_cbranch_scc1 L_loop{name}")
    p.end_loop()
    for av in range(57, 64):
        B(av % 4, (lambda av: lambda it: av)(av), aval=av)
    stamp(p, 3)
    for qt in range(2):
        at.xreduce(p, V_L + qt, "v_add_f32")
        p(f"v_rcp_f32 v{2+qt}, {v(V_L+qt)}")
    def conv(u):
        out = []
        for qt in range(2):
            X = V_O + 16*u + 4*qt
            Y = X + 8
            for r in (X, X+1, X+2, X+3, Y, Y+1, Y+2, Y+3):
                out.append(I(f"v_mul_f32 v{r}, v{r}, v{2+qt}"))
            out.append(I(f"v_cvt_pk_bf16_f32 v{X}, v{X}, v{X+1}"))
            out.append(I(f"v_cvt_pk_bf16_f32 v{X+1}, v{X+2}, v{X+3}"))
            out.append(I(f"v_cvt_pk_bf16_f32 v{X+2}, v{Y}, v{Y+1}"))
            out.append(I(f"v_cvt_pk_bf16_f32 v{X+3}, v{Y+2}, v{Y+3}"))
        return out
    p.extend(conv(0)); p.extend(conv(1))
    ACC = V_H
    ZD = V_O + 120
    ZT = V_O + 24
    p(f"""
    s_and_b32 s15, {s(S_J)}, 1
    s_lshl_b32 s15, s15, 2
    s_and_b32 s32, {s(S_PB)}, 3
    s_add_u32 s32, s32, s15              ; fb
    s_lshr_b32 s15, {s(S_J)}, 1
    s_lshl_b32 s15, s15, 3
    s_lshr_b32 s33, {s(S_PB)}, 2
    s_add_u32 s33, s33, s15              ; tb
    s_mul_i32 s34, s32, 224
    s_mul_i32 s36, {s(S_W)}, {32*3584}
    s_add_u32 s34, s34, s36
    s_add_u32 s37, s34, 1792
    s_mul_i32 s36, {s(S_W)}, 7168
    s_movk_i32 s31, 0x124a
    s_and_b32 s57, s32, 1
    s_lshl_b32 s57, s57, 1
    v_and_b32 v1, 63, v0
    """)
    zops = []
    for m in range(7):
        zops += [I(f"v_add_u32 v{ZT}, {64*m}, v1"), I(f"v_mul_u32_u24 v{ZT+1}, s31, v{ZT}"), I(f"v_lshrrev_b32 v{ZT+1}, 16, v{ZT+1}"),
                 I(f"v_mul_u32_u24 v{ZT+2}, 14, v{ZT+1}"), I(f"v_sub_u32 v{ZT}, v{ZT}, v{ZT+2}"),
                 I(f"v_add_u32 v{ZT}, s57, v{ZT}"), I(f"v_subrev_u32 v{ZT+2}, 14, v{ZT}"), I(f"v_min_u32 v{ZT}, v{ZT}, v{ZT+2}"),
                 I(f"v_mul_u32_u24 v{ZT+1}, 3584, v{ZT+1}"), I(f"v_lshl_add_u32 v{ZD+m}, v{ZT}, 4, v{ZT+1}")]
        if m % 4:
            zops.append(I(f"v_subrev_u32 v{ZD+m}, {(m % 4)*1024}, v{ZD+m}"))
    ZBASE = [[2 * 2 * SLOT, 3 * 2 * SLOT, 0, 8 * SLOT], [2 * SLOT, 2 * 2 * SLOT, 3 * 2 * SLOT, 8 * SLOT]]
    ZKEYS = [[[(4, 300), (5, 300)], [(6, 300), (7, 300)], [(0, 300), (1, 300)], [(8, 300)]],
             [[(2, 310), (3, 310)], [(4, 310), (5, 310)], [(6, 310), (7, 310)], [(8, 310)]]]
    def zfill(rnd, z1=0):
        gs = []
        so = 34 if z1 else 37
        for hf in range(2):
            pre = [I(f"s_add_u32 m0, s36, {ZBASE[z1][rnd] + hf*4096}")]
            d = [I(f"buffer_load_dwordx4 v{ZD+m}, {s(SRD_Q,4)}, s{so} offen offset:{(m % 4)*1024} lds", tag=("dma", ZKEYS[z1][rnd]))
                 for m in range(4*hf, min(7, 4*hf+4))]
            post = [I(f"s_add_u32 s{so}, s{so}, {4*32*3584}")] if hf else []
            gs.append((pre, d, post))
        return gs
    def flat(gs):
        return [x for g in gs for lst in g for x in lst]
    def o_mfma(i, t, qt, fr):
        D = v(ACC + 8*t + 4*qt, 4)
        Bop = v(V_O + 16*i + 4*qt, 4) if i < 8 else a(A_Q + 8*(i-8) + 4*qt, 4)
        return f"v_mfma_f32_16x16x32_bf16 {D}, {fr}, {Bop}, {D if i else 0}"
    def o_fills(i):
        st = i + 3
        if i >= 13:
            return zfill(i - 13)
        return [at.wfill("O", st, hf) + ([],) for hf in range(2)] if st < 16 else []
    def o_bar(i):
        if i == 15: return []
        ks = at.wkeys("O", i + 1)
        i -= 1
        if 0 <= i < 8:
            ks = ks + [(8, 10 + i // 2)] if i % 2 == 0 else ks + [("rd", 8, 10 + i // 2)]
        return ks
    def o_valu(i):
        if i in (8, 9, 10, 11, 12):
            n = len(zops)
            return zops[(i-8)*n//5:(i-7)*n//5]
        return conv(i + 2) if i + 2 < 8 else []
    def o_xds(i):
        i -= 1
        if i >= 8 or i < 0: return []
        rho = i // 2
        out = []
        for k in range(4):
            u, qt = 2*rho + k // 2, k % 2
            if i % 2 == 0:
                out.append(I(f"ds_write_b128 {v(V_XW)}, {v(V_O + 16*u + 4*qt, 4)} offset:{1024*k}", tag=("wr", (8, 10 + rho))))
            else:
                out.append(I(f"ds_read_b128 {a(A_Q + 8*u + 4*qt, 4)}, {v(V_XR)} offset:{1024*k}", tag=("rd", (8, 10 + rho))))
        return out
    at.gemm_phase(p, "O", 16, 14, o_mfma, o_fills, o_bar, o_valu, o_xds)
    stamp(p, 4)
    p(f"""
    s_lshl_b32 s14, {s(S_J)}, 7
    s_add_u32 s14, s14, {s(S_QT)}
    s_mul_i32 s14, s14, {14*1024}
    s_mul_i32 s15, {s(S_HD)}, {7*1024}
    s_add_u32 s14, s14, s15
    s_add_u32 s14, s14, {WS_PART}
    s_add_u32 s15, s14, {14*1024}
    s_add_u32 s50, s14, 4096
    s_add_u32 s51, s15, 4096
    """)
    for uu in range(7):
        for qt in range(2):
            X = ACC + 16*uu + 4*qt
            Y = X + 8
            p(f"v_cvt_pk_bf16_f32 v{X}, v{X}, v{X+1}")
            p(f"v_cvt_pk_bf16_f32 v{X+1}, v{X+2}, v{X+3}")
            p(f"v_cvt_pk_bf16_f32 v{X+2}, v{Y}, v{Y+1}")
            p(f"v_cvt_pk_bf16_f32 v{X+3}, v{Y+2}, v{Y+3}")
            so = (14 + qt) if uu < 4 else (50 + qt)
            p(f"buffer_store_dwordx4 {v(X,4)}, {v(V_LIN)}, {s(SRD_W,4)}, s{so} offen offset:{(uu % 4)*1024} sc1", tag=("wr", ("PT", 0), "private"))

    for gsx in zfill(3):
        for lst in gsx: p.extend(lst)
    srd(p, SRD_K, 10, 11, 2048 * 896)
    emit_red_pre(p, S_W, S_PB, S_J, SRD_W, SRD_K)
    p(f"""
    s_lshl_b32 s14, {s(S_PB)}, 7
    s_lshl_b32 s15, {s(S_J)}, 2
    s_add_u32 s14, s14, s15
    s_add_u32 s14, s14, {WS_FLAG}
    """)
    signal(p, SRD_W, 14, S_W, "r" + name, vt=10, keys=[("PT", 0)])
    stamp(p, 5)
    emit_red(p, S_W, S_PB, SRD_W, 163840 - 512, after_loads=flat(zfill(0, 1)))
    W4 = s(SRD_W, 4)
    ZACC = 128
    NRZ = 16
    A_H = 0
    A_FZ = 64
    VB = 16; RS = 48; VDB = 64; VRB = 72; Z1 = 80; GACC = 128
    RA = 6; A_A = 0; A_MU = 168; PB0 = 131072
    p(f"""
    s_add_u32 s14, s14, 4096
    v_and_b32 v1, 63, v0
    v_lshlrev_b32 v2, 4, v1
    v_and_b32 v3, 15, v0                 ; n
    v_bfe_u32 v8, v0, 4, 2               ; g
    s_lshl_b32 s58, s33, 2
    s_add_u32 s58, s58, {s(S_W)}
    s_mul_i32 s4, s58, {14*1024}
    s_add_u32 s4, s4, {WS_H2}
    s_add_u32 s5, s4, 4096
    s_add_u32 s12, s4, 8192
    s_add_u32 s13, s4, 12288
    v_lshrrev_b32 v9, 2, v1
    v_mul_u32_u24 v9, 224, v9
    v_and_b32 v12, 3, v0
    v_lshl_add_u32 v12, v12, 3, v9
    v_add_u32 v13, {4*SLOT}, v12
    v_add_u32 v14, {8*SLOT}, v12
    v_and_b32 v15, 1, v0
    v_lshlrev_b32 v15, 2, v15
    s_lshl_b32 s15, s33, 7
    s_lshl_b32 s50, {s(S_W)}, 3
    s_add_u32 s15, s15, s50
    s_add_u32 s15, s15, {WS_FLAG + 4096}
    """)
    signal(p, SRD_W, 14, S_W, "z" + name, vt=48)
    stamp(p, 7)
    srd(p, SRD_V, 6, 7, 2048 * 4096 + 4096)
    p(f"""
    s_sub_u32 {s(SRD_V)}, {s(SRD_V)}, 4096
    s_subb_u32 {s(SRD_V+1)}, {s(SRD_V+1)}, 0
    s_mov_b32 s50, s32
    s_mov_b32 s51, s33
    v_lshrrev_b32 v9, 3, v1
    v_lshlrev_b32 v9, 12, v9
    v_and_b32 v4, 7, v0
    v_xor_b32 v4, v4, v8
    v_lshl_add_u32 v4, v4, 4, v9
    v_xor_b32 v5, 64, v4
    """)
    for m in range(8):
        nl = m // 2
        if m % 2 == 0:
            p(f"s_add_u32 s52, {s(S_W)}, {nl}")
            p(f"s_and_b32 s52, s52, 3")
            p(f"s_lshl_b32 s52, s52, 16")
        p(f"s_add_u32 s53, s52, {(m % 2)*32768 + 4096 - (m % 4)*1024}")
        p(f"v_add_u32 v{VDB+m}, s53, v{4 + m % 2}")
    p(f"""
    s_lshl_b32 s52, s51, 18
    s_lshl_b32 s53, {s(S_W)}, 10
    s_add_u32 s52, s52, s53
    s_lshl_b32 s54, s50, 6
    s_lshl_b32 s53, {s(S_W)}, 4
    s_add_u32 s54, s54, s53
    s_mul_i32 s54, s54, 7168
    s_add_u32 s54, s54, {WS_ZZ}
    s_add_u32 s55, s54, 4096
    s_lshl_b32 s53, {s(S_W)}, 15
    v_mov_b32 v4, {f2u(C2)}
    v_mov_b32 v6, {f2u(C1)}
    s_lshl_b32 s38, s50, 6
    s_lshr_b32 s39, s58, 1
    s_add_u32 s38, s38, s39
    s_mul_i32 s38, s38, 7168
    s_and_b32 s39, s58, 1
    s_lshl_b32 s39, s39, 9
    s_add_u32 s38, s38, s39
    s_add_u32 s38, s38, {WS_ZZ}
    s_add_u32 s39, s38, 4096
    v_and_b32 v10, 1, v8
    v_lshlrev_b32 v10, 10, v10           ; (g%2)*1024 : second tile of the pair
    v_lshrrev_b32 v11, 1, v8
    v_lshl_add_u32 v10, v11, 8, v10      ; + (g/2)*256
    v_lshl_add_u32 v10, v3, 4, v10       ; + n*16
    v_lshlrev_b32 v11, 20, v10
    v_and_b32 v11, 0x40000000, v11
    v_or_b32 v11, v11, v10
    """)
    ALLS = [(k, 400) for k in range(9)]
    def bdma(dd, half, first=False):
        pre = [I(f"s_add_u32 m0, s53, {(dd % 4)*8192 + half*4096}")]
        tg = ("dma", [(f"B{dd % 4}", dd)] + ALLS) if first else ("dma", (f"B{dd % 4}", dd), "private")
        out = [I(f"buffer_load_dwordx4 v{VDB+4*half+k}, {s(SRD_V,4)}, s52 offen offset:{k*1024} lds", tag=tg) for k in range(4)]
        post = [I("s_add_u32 s52, s52, 128")] if half else []
        return pre, out, post
    LEADZ = 6
    def zreads(z1):
        rds = []
        for u in range(14):
            rnd = u // 4
            ab = ZBASE[z1][rnd] + (u % 4) * 7168
            base, off = (12, ab) if ab < 4 * SLOT else (13, ab - 4 * SLOT) if ab < 8 * SLOT else (14, ab - 8 * SLOT)
            for ft in range(7):
                f = u * 7 + ft + 98 * z1
                rds.append([I(f"ds_read_b64_tr_b16 {a(A_FZ + 4*(f % NRZ) + 2*e, 2)}, v{base} offset:{off + e*3584 + 32*ft}",
                              tag=("rd", ZKEYS[z1][rnd])) for e in range(2)])
        return rds
    def zgemm(z1, rds, acc, hook=None):
        for g in range(98):
            if hook and g == hook[0]:
                hook[1]()
            u, ft = g // 7, g % 7
            f = g + 98 * z1
            D = v(acc + 4*ft, 4)
            Wf = a(A_FZ + 4*(f % NRZ), 4)
            H = a(A_H + 4*u, 4)
            C = D if u else "0"
            p(f"v_mfma_f32_16x16x32_bf16 {D}, {Wf}, {H}, {C}" if z1 else f"v_mfma_f32_16x16x32_bf16 {D}, {H}, {Wf}, {C}")
            if g + 1 < 98 and (g % 2 == 1 or ft == 6):
                ex = f", {a(A_H + 4*(u+1), 4)}" if ft >= 5 and u < 13 else ""
                p(f"WAITFOR {a(A_FZ + 4*((f+1) % NRZ), 4)}, {a(A_FZ + 4*((f+2) % NRZ), 4)}{ex}")
            if g + LEADZ < 98:
                p.extend(rds[g + LEADZ])
    rz = zreads(0)
    for x in rz[:LEADZ]:
        p.extend(x)
    poll(p, SRD_W, 15, 15, 48, "z" + name, 56)
    stamp(p, 8)
    for u in range(14):
        p(f"buffer_load_dwordx4 {a(A_H+4*u,4)}, v2, {W4}, s{[4,5,12,13][u//4]} offen offset:{(u % 4)*1024}{LD}")
    zgemm(0, rz, ZACC)
    p("s_barrier")
    stamp(p, 9)
    def interleave(gl, bl):
        step = max(1, len(gl) // len(bl))
        for k, x in enumerate(gl):
            if k % step == 0 and bl:
                p.extend(bl.pop(0))
            p(x)
        for x in bl:
            p.extend(x)
    def groups(gs):
        out = []
        for pre, o, post in gs:
            for k, x in enumerate(o):
                out.append((pre if k == 0 else []) + [x] + (post if k == len(o) - 1 else []))
        return out
    gp = Prog("tmp")
    gelu_pairs(gp, [ZACC + 2*k for k in range(14)], 24)
    interleave(gp.items, groups(zfill(1, 1) + zfill(2, 1) + zfill(3, 1)))
    for k in range(0, 4, 2):
        p(f"v_pk_add_f32 {v(32+k,2)}, {v(ZACC+k,2)}, {v(ZACC+4+k,2)}")
        p(f"v_pk_mul_f32 {v(36+k,2)}, {v(ZACC+k,2)}, {v(ZACC+k,2)}")
    for ft in range(1, 7):
        for k in range(0, 4, 2):
            if ft >= 2:
                p(f"v_pk_add_f32 {v(32+k,2)}, {v(32+k,2)}, {v(ZACC+4*ft+k,2)}")
            p(f"v_pk_fma_f32 {v(36+k,2)}, {v(ZACC+4*ft+k,2)}, {v(ZACC+4*ft+k,2)}, {v(36+k,2)}")
    zt = ("wr", ("ZZ", 0), "private")
    for pr in range(4):
        X = ZACC + 8*pr
        for k in range(4):
            sx = X + 2*k if pr < 3 else X + 2*(k % 2)
            p(f"v_cvt_pk_bf16_f32 v{40+4*(pr % 2)+k}, v{sx}, v{sx+1}")
        Y = 40 + 4*(pr % 2)
        p(f"v_permlane16_swap_b32 v{Y}, v{Y+2}")
        p(f"v_permlane16_swap_b32 v{Y+1}, v{Y+3}")
        p(f"buffer_store_dwordx4 {v(Y,4)}, v{10 if pr < 3 else 11}, {W4}, s{38 + pr//2} offen offset:{(pr % 2)*2048} sc1", tag=zt)
    for sh in (8, 4, 2, 1):
        for k in range(8):
            p(f"v_add_f32_dpp v{32+k}, v{32+k}, v{32+k} row_ror:{sh} row_mask:0xf bank_mask:0xf")
    p("v_mov_b32 v24, v32")
    for n in range(1, 8):
        srcr = 32 + n // 2 + 4 * (n % 2)
        p(f"v_cmp_eq_u32 vcc, {n}, v3")
        p(f"v_cndmask_b32 v24, v24, v{srcr}, vcc")
    p(f"""
    v_lshlrev_b32 v9, 5, v8
    v_lshl_add_u32 v9, v3, 2, v9
    v_lshlrev_b32 v25, 27, v3
    v_and_b32 v25, 0x40000000, v25
    v_or_b32 v9, v9, v25
    s_lshl_b32 s38, s58, 7
    s_add_u32 s38, s38, {WS_STATS}
    """)
    p(f"buffer_atomic_add_f32 v24, v9, {W4}, s38 offen", tag=zt)
    rz = zreads(1)
    for x in rz[:LEADZ]:
        p.extend(x)
    p(I("WAITTAG", tag=ZKEYS[1][1] + ZKEYS[1][2] + ZKEYS[1][3]))
    p("s_barrier")
    Z1ACC = 160
    p(f"""
    s_lshl_b32 s14, s2, 4
    s_add_u32 s14, s14, {WS_FLAG + 8192}
    s_mov_b32 s15, {WS_FLAG + 8192}
    """)
    def sig_g():
        signal(p, SRD_W, 14, S_W, "g" + name, vt=48)
        stamp(p, 10)
    zgemm(1, rz, Z1ACC, hook=(opts.get("sigg", 35), sig_g))
    p("s_barrier")
    NB0 = opts.get("nb0", 4)
    gp = Prog("tmp")
    gelu_pairs(gp, [Z1ACC + 2*k for k in range(14)], 96)
    for k in range(14):
        gp(f"v_cvt_pk_bf16_f32 v{Z1+k}, v{Z1ACC+2*k}, v{Z1ACC+2*k+1}")
    interleave(gp.items, groups([bdma(dd, hf, first=True) for dd in range(NB0) for hf in range(2)]))
    p("s_load_dwordx2 s[4:5], s[0:1], 64")
    p("s_load_dwordx2 s[6:7], s[0:1], 96")
    p(f"""
    v_lshlrev_b32 v10, 6, v1
    s_lshl_b32 s34, {s(S_W)}, 12
    s_add_u32 s35, s34, {WS_STATS}
    s_add_u32 s34, s34, {PB0}
    v_lshlrev_b32 v12, 5, v1
    v_add_u32 v12, s34, v12
    v_add_u32 v13, s34, v2
    v_lshlrev_b32 v14, 5, v8
    v_add_u32 v14, s34, v14
    v_and_b32 v15, 1, v0
    v_lshlrev_b32 v15, 10, v15
    v_lshl_add_u32 v15, v8, 4, v15
    v_add_u32 v15, s34, v15
    v_lshrrev_b32 v9, 1, v3
    v_xor_b32 v9, v9, v8
    v_lshlrev_b32 v9, 4, v9
    v_lshl_add_u32 v9, v3, 7, v9
    v_add_u32 v{VRB}, s53, v9
    v_xor_b32 v{VRB+1}, 64, v{VRB}
    v_mov_b32 v11, {f2u(1e-5)}
    s_waitcnt lgkmcnt(0)
    """)
    srd(p, SRD_K, 4, 5, 4096)
    srd(p, SRD_O, 8, 9, 896 * 896)
    srd(p, SRD_Q, 6, 7, 2048 * 896)
    def b_reads(ks):
        dd = ks // 2
        return [I(f"ds_read_b128 {v(VB + 16*(ks % 2) + 4*nl, 4)}, v{VRB + ks % 2} offset:{(dd % 4)*8192 + nl*2048}",
                  tag=("rd", (f"B{dd % 4}", dd), "private")) for nl in range(4)]
    poll(p, SRD_W, 15, 2, 48, "g" + name, 56, nload=4, stride=1024)
    p.extend(b_reads(0))
    stamp(p, 11)
    if opts.get("gst"): stamp(p, 0)
    ST = GACC
    for k in range(4):
        p(f"buffer_load_dwordx4 {v(ST+4*k,4)}, v10, {W4}, s35 offen offset:{16*k} sc1")
    def aload(ks):
        out = [I(f"buffer_load_dwordx4 {a(A_A + 28*(ks % RA) + 4*mt, 4)}, v2, {W4}, s{54 + mt//4} offen offset:{(mt % 4)*1024}{LD}")
               for mt in range(7)]
        post = [I("s_add_u32 s54, s54, 7168"), I("s_add_u32 s55, s55, 7168")]
        return out, post
    NA0 = opts.get("na0", 2)
    for ks in range(NA0):
        o, post = aload(ks); p.extend(o); p.extend(post)
    MU = GACC + 16; R = GACC + 24; T = GACC + 64
    for k in range(8):
        p(f"v_mul_f32 v{MU+k}, {f2u(1.0/896)}, v{ST+2*k}")
        p(f"v_mul_f32 v{R+k}, {f2u(1.0/896)}, v{ST+2*k+1}")
        p(f"v_fma_f32 v{R+k}, -v{MU+k}, v{MU+k}, v{R+k}")
        p(f"v_max_f32 v{R+k}, 0, v{R+k}")
        p(f"v_add_f32 v{R+k}, v11, v{R+k}")
        p(f"v_rsq_f32 v{R+k}, v{R+k}")
    tg = ("wr", ("P", 0), "private")
    p(f"ds_write_b128 v12, {v(R,4)}", tag=tg)
    p(f"ds_write_b128 v12, {v(R+4,4)} offset:16", tag=tg)
    for k in range(4):
        p(f"v_cvt_pk_bf16_f32 v{T+k}, v{MU+2*k}, v{MU+2*k+1}")
        p(f"v_lshlrev_b32 v4, 16, v{T+k}")
        p(f"v_and_b32 v5, 0xffff0000, v{T+k}")
        p(f"v_sub_f32 v4, v{MU+2*k}, v4")
        p(f"v_sub_f32 v5, v{MU+2*k+1}, v5")
        p(f"v_cvt_pk_bf16_f32 v{T+4+k}, v4, v5")
    p(f"ds_write_b128 v13, {v(T,4)} offset:2048", tag=tg)
    p(f"ds_write_b128 v13, {v(T+4,4)} offset:3072", tag=tg)
    o, post = aload(NA0); p.extend(o); p.extend(post)
    p("s_waitcnt lgkmcnt(0)")
    rt = ("rd", ("P", 0), "private")
    def rs_reads(ks):
        return [I(f"ds_read_b128 {v(RS + 8*(ks % 2) + 4*h, 4)}, v14 offset:{128*ks + 16*h}", tag=rt) for h in range(2)]
    def mu_read(ks):
        return I(f"ds_read_b128 {a(A_MU + 4*(ks % 2), 4)}, v15 offset:{2048 + 64*ks}", tag=rt)
    def scale(ks, pk=False):
        out = []
        for nl in range(4):
            for d in range(4):
                x = VB + 16*(ks % 2) + 4*nl + d
                t = 4 + 2 * (d % 4)
                r = RS + 8*(ks % 2) + 2*d
                out.append(I(f"v_lshlrev_b32 v{t}, 16, v{x}"))
                out.append(I(f"v_and_b32 v{t+1}, 0xffff0000, v{x}"))
                if pk:
                    out.append(I(f"v_pk_mul_f32 {v(t,2)}, {v(t,2)}, {v(r,2)}"))
                else:
                    out.append(I(f"v_mul_f32 v{t}, v{t}, v{r}"))
                    out.append(I(f"v_mul_f32 v{t+1}, v{t+1}, v{r+1}"))
                out.append(I(f"v_cvt_pk_bf16_f32 v{x}, v{t}, v{t+1}"))
        return out
    p.extend(rs_reads(0)); p.extend(rs_reads(1)); p(mu_read(0))
    p.extend(scale(0, True))
    nexta = NA0 + 1
    nextb = 2 * NB0
    for ks in range(16):
        if opts.get("gst") and ks in (0, 4, 8, 12):
            stamp(p, 1 + ks // 4)
        SC = [[] for _ in range(33)]
        VE = [[] for _ in range(32)]
        kind = ["m"] * 32
        vm = []
        budget = opts.get("gbud", 11)
        def addb():
            nonlocal nextb, budget
            pre, o, post = bdma(nextb // 2, nextb % 2); nextb += 1; budget -= 4
            vm.extend([(pre if k == 0 else [], x, post if k == 3 else []) for k, x in enumerate(o)])
        def adda():
            nonlocal nexta, budget
            o, post = aload(nexta); nexta += 1; budget -= 7
            vm.extend([([], x, post if k == 6 else []) for k, x in enumerate(o)])
        while True:
            canb = nextb < 16 and nextb <= ks + 6 and budget >= 4
            cana = nexta < 16 and nexta <= ks + opts.get("glead", 3) and budget >= 7
            if canb and (not cana or budget >= 11):
                addb()
            elif cana:
                adda()
            else:
                break
        if ks == 13:
            p(f"""
            s_lshl_b32 s35, s58, 5
            v_lshlrev_b32 v12, 1, v3
            """)
            vm += [([], I(f"buffer_load_ushort v{Z1+14}, v12, {s(SRD_K,4)}, s35 offen"), [])]
        for k, (pre, x, post) in enumerate(vm):
            g = 3 + 2 * k if len(vm) > 11 else 6 + (k * 24) // 11
            kind[g] = "d"; VE[g] = [x]
            SC[g - 1] += pre
            SC[g + 1] += post
        mg = [g for g in range(32) if kind[g] == "m"]
        if ks + 1 < 16:
            if (ks + 1) % 2 == 0:
                SC[0].append(I("WAITTAG", tag=[(f"B{((ks+1)//2) % 4}", (ks+1)//2)]))
            br = b_reads(ks + 1) + [mu_read(ks + 1)] + (rs_reads(ks + 2) if ks + 2 < 16 else [])
            for k, x in enumerate(br):
                VE[mg[k]].append(x)
            ops = scale(ks + 1)
            mv = mg[4:]
            for k, x in enumerate(ops):
                VE[mv[(k * len(mv)) // len(ops)]].append(x)
            SC[mg[-1]].append(I(f"WAITFOR {a(A_A + 28*((ks+1) % RA), 28)}, {a(A_MU + 4*((ks+1) % 2), 4)}"))
        for g in range(32):
            mt, nl = g // 4, g % 4
            D = v(GACC + 16*mt + 4*nl, 4)
            Aop = a(A_A + 28*(ks % RA) + 4*mt, 4) if mt < 7 else a(A_MU + 4*(ks % 2), 4)
            p(f"v_mfma_f32_16x16x32_bf16 {D}, {Aop}, {v(VB + 16*(ks % 2) + 4*nl, 4)}, {D if ks else 0}")
            for x in SC[g] + VE[g]:
                p(x)
            if ks == 15:
                if g == 0:
                    p("v_add_u32 v4, s53, v2")
                g2 = g - 8
                if g2 >= 0 and g2 % 4:
                    p(f"ds_write_b128 v4, {v(GACC + 16*(g2//4) + 4*(g2 % 4), 4)} offset:{(g2 % 4 - 1)*8192 + (g2//4)*1024}", tag=("wr", ("X", 0)))
        assert not SC[32]
    assert nexta == 16 and nextb == 16
    stamp(p, 12)
    if opts.get("gst"): stamp(p, 5)
    for nl in range(1, 4):
        p(f"s_sub_u32 s34, {s(S_W)}, {nl}")
        p(f"s_and_b32 s34, s34, 3")
        p(f"s_lshl_b32 s34, s34, 15")
        p(f"v_add_u32 v{4+nl}, s34, v2")
    for mt in range(6, 8):
        for nl in range(1, 4):
            p(f"ds_write_b128 v4, {v(GACC + 16*mt + 4*nl, 4)} offset:{(nl-1)*8192 + mt*1024}", tag=("wr", ("X", 0)))
    p("s_waitcnt lgkmcnt(0)")
    if opts.get("gst"): stamp(p, 6)
    p("s_barrier")
    if opts.get("gst"): stamp(p, 7)
    for mt in (7, 0, 1, 2, 3, 4, 5, 6):
        for nl in range(1, 4):
            p(f"ds_read_b128 {v(GACC + 16*mt + 4*nl, 4)}, v{4+nl} offset:{(nl-1)*8192 + mt*1024}", tag=("rd", ("X", 0)))
    p(f"""
    s_mul_i32 s34, s58, {28*1024}
    s_add_u32 s34, s34, {WS_U}
    s_mul_i32 s35, s50, 7
    s_add_u32 s36, s35, 1
    s_lshr_b32 s36, s36, 1
    s_lshl_b32 s36, s36, 10
    s_add_u32 s36, s36, s34
    s_and_b32 s37, s50, 1
    s_mul_i32 s37, s37, 4088
    s_sub_u32 s37, s36, s37
    s_add_u32 s37, s37, 3072
    v_lshlrev_b32 v{Z1+14}, 16, v{Z1+14}
    """)
    def red(mt, n=2):
        X = GACC + 16*mt
        for h in range(n):
            p(f"v_pk_add_f32 {v(X+2*h,2)}, {v(X+2*h,2)}, {v(X+4+2*h,2)}")
            p(f"v_pk_add_f32 {v(X+8+2*h,2)}, {v(X+8+2*h,2)}, {v(X+12+2*h,2)}")
        for h in range(n):
            p(f"v_pk_add_f32 {v(X+2*h,2)}, {v(X+2*h,2)}, {v(X+8+2*h,2)}")
    red(7, 1)
    X7 = GACC + 112
    p(f"v_sub_f32 v8, v{Z1+14}, v{X7}")
    p(f"v_sub_f32 v8, v8, v{X7+1}")
    for ft in range(7):
        red(ft)
        X = GACC + 16*ft
        for h in range(2):
            p(f"v_pk_add_f32 {v(X+2*h,2)}, {v(X+2*h,2)}, v[8:9] op_sel_hi:[1,0]")
            p(f"v_lshlrev_b32 v{10+2*h}, 16, v{Z1+2*ft+h}")
            p(f"v_and_b32 v{11+2*h}, 0xffff0000, v{Z1+2*ft+h}")
            p(f"v_pk_mul_f32 {v(X+2*h,2)}, {v(X+2*h,2)}, {v(10+2*h,2)}")
        Y = GACC + 16*(ft & ~1) + 4 + 2*(ft % 2)
        p(f"v_cvt_pk_bf16_f32 v{Y}, v{X}, v{X+1}")
        p(f"v_cvt_pk_bf16_f32 v{Y+1}, v{X+2}, v{X+3}")
        if ft % 2 == 1:
            p(f"buffer_store_dwordx4 {v(Y-2,4)}, v2, {W4}, s36 offen offset:{(ft//2)*1024} sc1", tag=("wr", ("U", 0), "private"))
        if ft == 6:
            p(f"buffer_store_dwordx2 {v(Y,2)}, v2, {W4}, s37 offen sc1", tag=("wr", ("U", 0), "private"))
    if opts.get("gst"): stamp(p, 8)
    p("s_barrier")
    OACC = 64; A_B = 0; A_FO = 112; NRO = 8
    p(f"""
    s_lshl_b32 s33, {s(S_J)}, 2
    s_and_b32 s15, {s(S_PB)}, 3
    s_add_u32 s33, s33, s15              ; tb'
    s_lshr_b32 s32, {s(S_PB)}, 2         ; cb
    v_lshrrev_b32 v3, 3, v1
    v_mul_u32_u24 v3, 896, v3
    v_bfe_u32 v8, v0, 4, 2
    v_lshlrev_b32 v9, 1, v8
    v_and_b32 v10, 7, v0
    v_xor_b32 v9, v9, v10
    v_lshl_add_u32 v4, v9, 4, v3
    v_add_u32 v5, {7168-1024}, v4
    v_add_u32 v6, {2*(7168-1024)}, v4
    v_add_u32 v7, {3*(7168-1024)}, v4
    s_mul_i32 s34, {s(S_W)}, {224*896}
    s_lshl_b32 s35, s32, 7
    s_add_u32 s34, s34, s35
    s_lshl_b32 s14, s51, 7
    s_lshl_b32 s15, s50, 2
    s_add_u32 s14, s14, s15
    s_add_u32 s14, s14, {WS_FLAG + 12288}
    """)
    NW0 = opts.get("nw0", 3)
    def wdma(ks):
        p(f"s_add_u32 m0, s53, {ks*4096}")
        for k in range(4):
            p(f"buffer_load_dwordx4 v{4+k}, {s(SRD_O,4)}, s34 offen offset:{k*1024} lds", tag=("dma", [(f"W{ks}", 0), ("X", 1)]))
        p(f"s_add_u32 s34, s34, {4*7168}")
    for ks in range(NW0):
        wdma(ks)
    signal(p, SRD_W, 14, S_W, "o" + name, vt=48, keys=[("U", 0)])
    stamp(p, 13)
    if opts.get("gst"): stamp(p, 9)
    p(f"s_cmp_ge_u32 {s(S_PB)}, 28")
    p(f"s_cbranch_scc1 L_end{name}")
    for ks in range(NW0, 7):
        wdma(ks)
    X1 = 16; GB = 24
    for nl in range(4):
        p(f"s_add_u32 s36, {s(S_W)}, {nl}")
        p(f"s_and_b32 s36, s36, 3")
        p(f"s_lshl_b32 s37, s33, 2")
        p(f"s_add_u32 s36, s36, s37")
        p(f"s_mul_i32 s36, s36, {28*1024}")
        p(f"s_mul_i32 s37, {s(S_W)}, 7168")
        p(f"s_add_u32 s36, s36, s37")
        p(f"s_add_u32 s{4+nl}, s36, {WS_U}")
        p(f"s_add_u32 s{8+nl}, s{4+nl}, 4096")
    p(f"""
    s_lshl_b32 s36, s33, 2
    s_add_u32 s36, s36, {s(S_W)}
    s_mul_i32 s37, s36, {14*1024}
    s_lshl_b32 s38, s32, 11
    s_add_u32 s37, s37, s38
    s_add_u32 s37, s37, {WS_X1}
    buffer_load_dwordx4 {v(X1,4)}, v2, {W4}, s37 offen sc1
    buffer_load_dwordx4 {v(X1+4,4)}, v2, {W4}, s37 offen offset:1024 sc1
    v_lshlrev_b32 v9, 4, v8
    s_lshl_b32 s38, s32, 8
    s_add_u32 s38, s38, {WS_MOD + 5*1792}
    """)
    for ct in range(4):
        p(f"buffer_load_dwordx4 {v(GB+4*ct,4)}, v9, {W4}, s38 offen offset:{64*ct}")
    p(f"""
    v_lshrrev_b32 v3, 2, v1
    v_lshlrev_b32 v3, 7, v3
    v_bfe_u32 v10, v0, 3, 2
    v_lshl_add_u32 v3, v10, 5, v3
    v_and_b32 v10, 3, v0
    v_lshl_add_u32 v3, v10, 3, v3
    v_add_u32 v12, s53, v3
    v_xor_b32 v13, 32, v12
    v_xor_b32 v14, 64, v12
    v_xor_b32 v15, 0x60, v12
    v_and_b32 v10, 7, v0
    v_lshlrev_b32 v10, 2, v10
    s_lshl_b32 s15, s33, 7
    s_add_u32 s15, s15, {WS_FLAG + 12288}
    """)
    poll(p, SRD_W, 15, 10, 48, "o" + name, 56)
    stamp(p, 14)
    ul = [I(f"buffer_load_dwordx4 {a(A_B + 16*ks + 4*nl, 4)}, v2, {W4}, s{4 + nl + 4*(ks//4)} offen offset:{(ks % 4)*1024}{LD}")
          for ks in range(7) for nl in range(4)]
    p.extend(ul[:16]); ul = ul[16:]
    def rd(f):
        ks, ct = f // 4, f % 4
        return [I(f"ds_read_b64_tr_b16 {a(A_FO + 4*(f % NRO) + 2*e, 2)}, v{12+ct} offset:{ks*4096 + e*2048}",
                  tag=("rd", (f"W{ks}", 0), "private")) for e in range(2)]
    PFO = 4
    for f in range(PFO):
        p.extend(rd(f))
    for f in range(28):
        ks, ct = f // 4, f % 4
        nx = f + PFO
        for nl in range(4):
            D = v(OACC + 16*ct + 4*nl, 4)
            p(f"v_mfma_f32_16x16x32_bf16 {D}, {a(A_FO + 4*(f % NRO), 4)}, {a(A_B + 16*ks + 4*nl, 4)}, {D if ks else 0}")
            if nx < 28 and nl < 2:
                p(rd(nx)[nl])
            if nl == 2 and ul:
                p(ul.pop(0))
            if nl == 3 and f + 1 < 28:
                p(f"WAITFOR {a(A_FO + 4*((f+1) % NRO), 4)}, {a(A_B + 16*((f+1)//4), 16)}")
    p("v_add_u32 v4, s53, v2")
    for nl in range(1, 4):
        p(f"s_sub_u32 s36, {s(S_W)}, {nl}")
        p(f"s_and_b32 s36, s36, 3")
        p(f"s_lshl_b32 s36, s36, 15")
        p(f"v_add_u32 v{4+nl}, s36, v2")
    for ct in range(4):
        for nl in range(1, 4):
            p(f"ds_write_b128 v4, {v(OACC + 16*ct + 4*nl, 4)} offset:{(nl-1)*4096 + ct*1024}", tag=("wr", ("Y", 0)))
    p("s_waitcnt lgkmcnt(0)")
    p("s_barrier")
    for ct in range(4):
        for nl in range(1, 4):
            p(f"ds_read_b128 {v(OACC + 16*ct + 4*nl, 4)}, v{4+nl} offset:{(nl-1)*4096 + ct*1024}", tag=("rd", ("Y", 0)))
    p(f"""
    v_and_b32 v3, 15, v0
    v_mul_u32_u24 v3, 896, v3
    v_lshl_add_u32 v3, v8, 4, v3
    s_lshl_b32 s36, s33, 2
    s_add_u32 s36, s36, {s(S_W)}
    s_mul_i32 s36, s36, {16*896}
    s_lshl_b32 s37, s32, 7
    s_add_u32 s36, s36, s37
    """)
    for ct in range(4):
        X = OACC + 16*ct
        for h in range(2):
            p(f"v_pk_add_f32 {v(X+2*h,2)}, {v(X+2*h,2)}, {v(X+4+2*h,2)}")
            p(f"v_pk_add_f32 {v(X+8+2*h,2)}, {v(X+8+2*h,2)}, {v(X+12+2*h,2)}")
        for h in range(2):
            p(f"v_pk_add_f32 {v(X+2*h,2)}, {v(X+2*h,2)}, {v(X+8+2*h,2)}")
            p(f"v_lshlrev_b32 v{10}, 16, v{X1+2*ct+h}")
            p(f"v_and_b32 v{11}, 0xffff0000, v{X1+2*ct+h}")
            p(f"v_pk_fma_f32 {v(X+2*h,2)}, {v(X+2*h,2)}, {v(GB+4*ct+2*h,2)}, v[10:11]")
        k, odd = ct // 2, ct % 2
        O = 40 + 4*k + 2*odd
        p(f"v_cvt_pk_bf16_f32 v{O}, v{X}, v{X+1}")
        p(f"v_cvt_pk_bf16_f32 v{O+1}, v{X+2}, v{X+3}")
        if odd:
            O = 40 + 4*k
            p(f"v_permlane32_swap_b32 v{O}, v{O+2}")
            p(f"v_permlane32_swap_b32 v{O+1}, v{O+3}")
            p(f"v_permlane16_swap_b32 v{O}, v{O+2}")
            p(f"v_permlane16_swap_b32 v{O+1}, v{O+3}")
            p(f"buffer_store_dwordx4 {v(O,4)}, v3, {s(SRD_Q,4)}, s36 offen offset:{64*k}")
    stamp_dump(p, opts.get("slot", 1), NSTAMP, SRD_W, S_W)
    p(f"L_end{name}:")
    p("s_endpgm")
    p.finalize()
    return p


def gen_mega(opts=None):
    p0 = build_mega(opts or {})
    return p0, f"; @launch kernel={p0.name} grid=(256,1,1) block=(256,1,1) lds=163840\n"
```

```python
import sys, json
sys.path.insert(0, "work")
from build import *
from k_prep import *
from mega import *
STAMP["on"] = len(sys.argv) > 2 and sys.argv[2] == "st"
AO = json.loads(sys.argv[3]) if len(sys.argv) > 3 else {}
write([gen_mega(AO)], sys.argv[1])
```

```python
import sys
sys.path.insert(0, "work")
from asmlib import *
from layout import *
import struct
def f2u(x): return struct.unpack("<I", struct.pack("<f", x))[0]
LOG2E = 1.4426950408889634
QSCALE = LOG2E / 16.0

def srd(p, d, lo, hi, nbytes):
    p(f"s_mov_b32 s{d}, s{lo}")
    p(f"s_mov_b32 s{d+1}, s{hi}")
    p(f"s_mov_b32 s{d+2}, {nbytes}")
    p(f"s_mov_b32 s{d+3}, 0x20000")

def xreduce(p, T, tmp, op):
    p(f"v_mov_b32 {v(tmp)}, {v(T)}")
    p(f"v_permlane32_swap_b32 {v(T)}, {v(tmp)}")
    p(f"{op} {v(T)}, {v(T)}, {v(tmp)}")
    p(f"v_mov_b32 {v(tmp)}, {v(T)}")
    p(f"v_permlane16_swap_b32 {v(T)}, {v(tmp)}")
    p(f"{op} {v(T)}, {v(T)}, {v(tmp)}")

PREP_GRID = 74
STAMP = {"on": False}

def code_prefetch(p, tag, endlabel, lines_per_wg, vt, vd, sp=(56, 57)):
    p(f"s_getpc_b64 s[{sp[0]}:{sp[1]}]")
    p(f"L_pf_{tag}:")
    p(f"s_lshr_b32 s58, s2, 3")
    p(f"s_mul_i32 s58, s58, {lines_per_wg * 128}")
    p(f"v_min_u32 v{vt}, {lines_per_wg - 1}, v0")
    p(f"v_lshlrev_b32 v{vt}, 7, v{vt}")
    p(f"v_add_u32 v{vt}, s58, v{vt}")
    p(f"v_min_u32 v{vt}, {endlabel}-L_pf_{tag}-4, v{vt}")
    p(f"global_load_dword v{vd}, v{vt}, s[{sp[0]}:{sp[1]}]")

def signal(p, srdw, soff, swave, tag, vt=1, keys=None):
    if keys is None:
        p("s_waitcnt vmcnt(0)")
    else:
        p(I("WAITTAG", tag=keys))
    p("s_barrier")
    p(f"s_cmp_lg_u32 s{swave}, 0")
    p(f"s_cbranch_scc1 L_sig_{tag}")
    p(f"v_mov_b32 v{vt}, 1")
    p(f"v_mov_b32 v{vt+1}, 0")
    p("s_mov_b64 exec, 1")
    x = I(f"buffer_atomic_add v{vt}, v{vt+1}, s[{srdw}:{srdw+3}], s{soff} offen sc1")
    x.kind = "salu"
    p(x)
    p("s_mov_b64 exec, -1")
    p(f"L_sig_{tag}:")

def poll(p, srdw, soff, vaddr, vd, tag, scnt, expect, sleep=1):
    p(f"s_mov_b32 s{scnt}, 0x100000")
    p(f"L_poll_{tag}:")
    p(f"buffer_load_dword v{vd}, v{vaddr}, s[{srdw}:{srdw+3}], s{soff} offen sc1")
    p("s_waitcnt vmcnt(0)")
    p(f"v_cmp_gt_u32 vcc, {expect}, v{vd}")
    p(f"s_cbranch_vccz L_polled_{tag}")
    p(f"s_sleep {sleep}")
    p(f"s_sub_u32 s{scnt}, s{scnt}, 1")
    p(f"s_cmp_lg_u32 s{scnt}, 0")
    p(f"s_cbranch_scc1 L_poll_{tag}")
    p(f"L_polled_{tag}:")

def stamp(p, k):
    if STAMP["on"]:
        p(f"s_memtime s[96:97]")
        p(f"s_memrealtime s[98:99]")
        p("s_waitcnt lgkmcnt(0)")
        p(f"s_mov_b32 s{60+2*k}, s96")
        p(f"s_mov_b32 s{61+2*k}, s98")

def stamp_dump(p, slot, n, srdw, swave, wshift=2):
    if not STAMP["on"]:
        return
    p("s_waitcnt vmcnt(0)")
    stamp(p, n - 1)
    p(f"""
    s_lshl_b32 s13, s2, 2
    s_and_b32 s14, s{swave}, 3
    s_add_u32 s13, s13, s14
    s_lshl_b32 s13, s13, 7
    s_add_u32 s13, s13, {WS_STAMP + 131072 * slot}
    v_mov_b32 v1, 0
    """)
    for k in range(n):
        p(f"v_mov_b32 v2, s{60+2*k}")
        p(f"v_mov_b32 v3, s{61+2*k}")
        p(f"buffer_store_dwordx2 v[2:3], v1, s[{srdw}:{srdw+3}], s13 offen offset:{8*k}")

def gen_prep(code=None):
    p = Prog("prep_kernel")
    p(f"""
    s_cmp_ge_u32 s2, {PREP_GRID}
    s_cbranch_scc1 L_prep_end
    s_cmp_ge_u32 s2, 74
    s_cbranch_scc1 L_prep_warm
    s_load_dwordx2 s[4:5], s[0:1], 0
    s_load_dwordx4 s[8:11], s[0:1], 80
    s_load_dwordx2 s[6:7], s[0:1], 112
    s_waitcnt lgkmcnt(0)
    """)
    stamp(p, 0)
    p("v_lshrrev_b32 v6, 6, v0")
    p("v_readfirstlane_b32 s40, v6")
    srd(p, 16, 4, 5, 2048 * 896)
    srd(p, 20, 8, 9, 896)
    srd(p, 24, 10, 11, 448 * 5376)
    srd(p, 28, 6, 7, WS_USED)
    p("s_cmp_ge_u32 s2, 42")
    p("s_cbranch_scc1 L_prep_ln")
    p(f"""
    v_and_b32 v1, 7, v0
    v_lshrrev_b32 v2, 3, v0
    v_lshlrev_b32 v3, 1, v2
    v_mul_u32_u24 v4, 5376, v2
    v_lshl_add_u32 v4, v1, 4, v4
    s_lshl_b32 s12, s2, 7
    """)
    for i in range(14):
        p(f"buffer_load_ushort v{16+i}, v3, s[20:23], 0 offen offset:{64*i}")
    for i in range(14):
        p(f"buffer_load_dwordx4 {v(32+4*i,4)}, v4, s[24:27], s12 offen")
        if i < 13:
            p(f"s_add_u32 s12, s12, {32*5376}")
    p(f"s_mov_b32 s13, {f2u(-LOG2E)}")
    for i in range(14):
        x = 16 + i
        p(f"v_lshlrev_b32 v{x}, 16, v{x}")
        p(f"v_mul_f32 v5, s13, v{x}")
        p(f"v_exp_f32 v5, v5")
        p(f"v_add_f32 v5, 1.0, v5")
        p(f"v_rcp_f32 v5, v5")
        p(f"v_mul_f32 v5, v5, v{x}")
        p(f"v_cvt_pk_bf16_f32 v5, v5, v5")
        p(f"v_lshlrev_b32 v{x}, 16, v5")
    for r in range(8):
        p(f"v_mov_b32 v{8+r}, 0")
    for i in range(14):
        for d in range(4):
            w = 32 + 4*i + d
            p(f"v_lshlrev_b32 v5, 16, v{w}")
            p(f"v_and_b32 v6, 0xffff0000, v{w}")
            p(f"v_fmac_f32 v{8+2*d}, v5, v{16+i}")
            p(f"v_fmac_f32 v{9+2*d}, v6, v{16+i}")
    p(f"""
    v_lshlrev_b32 v5, 5, v0
    ds_write_b128 v5, v[8:11]
    ds_write_b128 v5, v[12:15] offset:16
    s_waitcnt lgkmcnt(0)
    s_barrier
    v_lshrrev_b32 v6, 6, v0
    v_readfirstlane_b32 s14, v6
    s_cmp_lg_u32 s14, 0
    s_cbranch_scc1 L_prep_end
    v_lshlrev_b32 v5, 2, v0
    """)
    for i in range(32):
        p(f"ds_read_b32 v{32+i}, v5 offset:{256*i}")
    for st in (16, 8, 4, 2, 1):
        for i in range(st):
            p(f"v_add_f32 v{32+i}, v{32+i}, v{32+i+st}")
    p(f"""
    v_cvt_pk_bf16_f32 v32, v32, v32
    v_lshlrev_b32 v32, 16, v32
    s_mul_i32 s14, s2, 37
    s_lshr_b32 s14, s14, 8
    s_cmp_eq_u32 s14, 1
    s_cselect_b32 s15, 1, 0
    s_cmp_eq_u32 s14, 4
    s_cselect_b32 s15, 1, s15
    s_cmp_eq_u32 s15, 0
    s_cbranch_scc1 L_prep_no1
    v_add_f32 v32, 1.0, v32
    v_cvt_pk_bf16_f32 v32, v32, v32
    v_lshlrev_b32 v32, 16, v32
    L_prep_no1:
    s_cmp_lt_u32 s14, 2
    s_cselect_b32 s15, {f2u(QSCALE)}, 1.0
    v_mul_f32 v32, s15, v32
    s_lshl_b32 s12, s2, 8
    buffer_store_dword v32, v5, s[28:31], s12 offen offset:{WS_MOD}
    """)
    stamp_dump(p, 0, 2, 28, 40)
    p("s_endpgm")
    p(f"""
    L_prep_ln:
    v_lshrrev_b32 v6, 6, v0
    v_readfirstlane_b32 s14, v6
    s_sub_u32 s12, s2, 42
    s_lshl_b32 s12, s12, 2
    s_add_u32 s12, s12, s14          ; q-tile
    v_and_b32 v1, 15, v0
    v_bfe_u32 v2, v0, 4, 2
    v_mul_u32_u24 v3, 896, v1
    v_lshl_add_u32 v3, v2, 4, v3
    s_mul_i32 s13, s12, {16*896}
    """)
    X = 16
    F = 72
    for ks in range(14):
        p(f"buffer_load_dwordx4 {v(X+4*ks,4)}, v3, s[16:19], s13 offen offset:{64*ks}")
    p(f"""
    v_and_b32 v4, 63, v0
    v_lshlrev_b32 v5, 2, v4
    v_mov_b32 v6, 0
    s_lshl_b32 s14, s12, 8
    s_add_u32 s14, s14, {WS_STATS}
    buffer_store_dword v6, v5, s[28:31], s14 offen
    v_lshlrev_b32 v4, 4, v4
    v_mov_b32 v8, 0
    v_mov_b32 v9, 0
    """)
    for d in range(56):
        p(f"v_lshlrev_b32 v{F+2*d}, 16, v{X+d}")
        p(f"v_and_b32 v{F+2*d+1}, 0xffff0000, v{X+d}")
        p(f"v_pk_add_f32 v[8:9], v[8:9], {v(F+2*d,2)}")
    p("v_add_f32 v8, v8, v9")
    xreduce(p, 8, 10, "v_add_f32")
    p(f"v_mul_f32 v8, {f2u(-1.0/448)}, v8")
    p("v_mov_b32 v10, 0")
    p("v_mov_b32 v11, 0")
    for d in range(56):
        p(f"v_pk_add_f32 {v(F+2*d,2)}, {v(F+2*d,2)}, v[8:9] op_sel_hi:[1,0]")
        p(f"v_pk_fma_f32 v[10:11], {v(F+2*d,2)}, {v(F+2*d,2)}, v[10:11]")
    p("v_add_f32 v10, v10, v11")
    xreduce(p, 10, 12, "v_add_f32")
    p(f"""
    v_mov_b32 v12, {f2u(1e-5)}
    v_fmac_f32 v12, {f2u(1.0/448)}, v10
    v_rsq_f32 v12, v12
    s_mul_i32 s13, s12, {14*1024}
    s_add_u32 s13, s13, {WS_XN}
    """)
    for ks in range(14):
        for d in range(4*ks, 4*ks+4):
            p(f"v_pk_mul_f32 {v(F+2*d,2)}, {v(F+2*d,2)}, v[12:13] op_sel_hi:[1,0]")
            p(f"v_cvt_pk_bf16_f32 v{X+d}, v{F+2*d}, v{F+2*d+1}")
        p(f"buffer_store_dwordx4 {v(X+4*ks,4)}, v4, s[28:31], s13 offen offset:{(ks % 4)*1024}")
        if ks % 4 == 3:
            p("s_add_u32 s13, s13, 4096")
    stamp_dump(p, 0, 2, 28, 40)
    p("s_endpgm")
    p(f"""
    L_prep_warm:
    s_load_dwordx2 s[4:5], s[0:1], 24
    s_load_dwordx4 s[8:11], s[0:1], 48
    s_load_dwordx2 s[6:7], s[0:1], 72
    s_sub_u32 s12, s2, 74
    s_lshl_b32 s12, s12, 15
    v_lshl_add_u32 v1, v0, 7, s12
    s_waitcnt lgkmcnt(0)
    """)
    srd(p, 16, 4, 5, 448 * 8192)
    srd(p, 20, 8, 9, 448 * 3584)
    srd(p, 24, 10, 11, 2048 * 4096)
    srd(p, 28, 6, 7, 896 * 896)
    NL = 182 * 256 * 128
    p(f"""
    buffer_load_dword v2, v1, s[16:19], 0 offen
    v_subrev_u32 v3, {448*8192}, v1
    buffer_load_dword v4, v3, s[20:23], 0 offen
    buffer_load_dword v5, v1, s[24:27], 0 offen
    v_add_u32 v6, {NL}, v1
    buffer_load_dword v7, v6, s[24:27], 0 offen
    v_subrev_u32 v8, {2048*4096 - NL}, v1
    buffer_load_dword v9, v8, s[28:31], 0 offen
    """)
    if code:
        p(f"""
        s_getpc_b64 s[14:15]
        L_prep_pc:
        v_subrev_u32 v10, {NL - 131072}, v1
        v_cmp_gt_u32 vcc, {code[1]}-{code[0]}, v10
        v_add_u32 v10, {code[0]}-L_prep_pc, v10
        s_and_saveexec_b64 s[34:35], vcc
        s_cbranch_execz L_prep_end
        global_load_dword v11, v10, s[14:15]
        """)
    p("L_prep_end:")
    p("s_endpgm")
    p.finalize()
    return p, f"; @launch kernel=prep_kernel grid=({PREP_GRID},1,1) block=(256,1,1) lds=8192\n"
```

```python
import sys
sys.path.insert(0, "work")
from asmlib import *
from layout import *
from k_prep import srd, f2u, stamp, stamp_dump, signal, poll

def lane_reduce_345(p, T, tmp):
    p(f"v_add_f32_dpp {v(T)}, {v(T)}, {v(T)} row_ror:8 row_mask:0xf bank_mask:0xf")
    p(f"v_mov_b32 {v(tmp)}, {v(T)}")
    p(f"v_permlane32_swap_b32 {v(T)}, {v(tmp)}")
    p(f"v_add_f32 {v(T)}, {v(T)}, {v(tmp)}")
    p(f"v_mov_b32 {v(tmp)}, {v(T)}")
    p(f"v_permlane16_swap_b32 {v(T)}, {v(tmp)}")
    p(f"v_add_f32 {v(T)}, {v(T)}, {v(tmp)}")

def gen_red():
    p = Prog("red_kernel")
    p(f"""
    s_cmp_ge_u32 s2, 256
    s_cbranch_scc1 L_red_end
    s_load_dwordx2 s[4:5], s[0:1], 0
    s_load_dwordx2 s[6:7], s[0:1], 112
    v_lshrrev_b32 v1, 6, v0
    v_readfirstlane_b32 s12, v1
    v_and_b32 v1, 7, v0                  ; n8
    v_bfe_u32 v2, v0, 3, 2               ; g
    v_bfe_u32 v3, v0, 5, 1               ; uu
    v_lshlrev_b32 v4, 10, v3
    v_lshl_add_u32 v4, v2, 8, v4
    v_lshl_add_u32 v4, v1, 4, v4
    s_lshr_b32 s13, s2, 1                ; q-tile
    s_and_b32 s14, s2, 1                 ; half
    s_mul_i32 s15, s13, {14*1024}
    s_lshl_b32 s32, s14, 7
    s_add_u32 s15, s15, s32
    s_lshl_b32 s32, s12, 11
    s_add_u32 s15, s15, s32
    s_waitcnt lgkmcnt(0)
    """)
    stamp(p, 0)
    srd(p, 16, 4, 5, 2048 * 896)
    srd(p, 28, 6, 7, WS_USED)
    p(f"s_add_u32 s32, s15, {WS_PART}")
    for j in range(8):
        p(f"buffer_load_dwordx4 {v(32+4*j,4)}, v4, s[28:31], s32 offen")
        if j < 7:
            p(f"s_add_u32 s32, s32, {128*14*1024}")
    p(f"""
    v_mul_u32_u24 v5, 896, v1
    v_lshl_add_u32 v5, v3, 6, v5
    v_lshl_add_u32 v5, v2, 3, v5
    s_mul_i32 s33, s2, {8*896}
    s_lshl_b32 s34, s12, 7
    s_add_u32 s33, s33, s34
    buffer_load_dwordx2 v[64:65], v5, s[16:19], s33 offen
    buffer_load_dwordx2 v[66:67], v5, s[16:19], s33 offen offset:32
    v_lshlrev_b32 v6, 7, v3
    v_lshl_add_u32 v6, v2, 4, v6         ; (32uu + 4g)*4
    s_lshl_b32 s34, s12, 8
    s_add_u32 s34, s34, {WS_MOD + 2*1792}
    """)
    for k, sec in enumerate((0, 1, 2)):
        for e in range(2):
            p(f"buffer_load_dwordx4 {v(72+8*k+4*e,4)}, v6, s[28:31], s34 offen offset:{sec*1792 + 64*e}")
    A = 16
    for j in range(8):
        for d in range(4):
            x = 32 + 4*j + d
            if j == 0:
                p(f"v_lshlrev_b32 v{A+2*d}, 16, v{x}")
                p(f"v_and_b32 v{A+2*d+1}, 0xffff0000, v{x}")
            else:
                t = 8 + 2 * (d % 2)
                p(f"v_lshlrev_b32 v{t}, 16, v{x}")
                p(f"v_and_b32 v{t+1}, 0xffff0000, v{x}")
                p(f"v_pk_add_f32 {v(A+2*d,2)}, {v(A+2*d,2)}, {v(t,2)}")
    X1 = 24
    stamp(p, 1)
    for d in range(4):
        t = 8 + 2 * (d % 2)
        p(f"v_lshlrev_b32 v{t}, 16, v{64+d}")
        p(f"v_and_b32 v{t+1}, 0xffff0000, v{64+d}")
        p(f"v_pk_fma_f32 {v(A+2*d,2)}, {v(A+2*d,2)}, {v(72+2*d,2)}, {v(t,2)}")
        p(f"v_cvt_pk_bf16_f32 v{X1+d}, v{A+2*d}, v{A+2*d+1}")
        p(f"v_lshlrev_b32 v{A+2*d}, 16, v{X1+d}")
        p(f"v_and_b32 v{A+2*d+1}, 0xffff0000, v{X1+d}")
    p(f"""
    s_add_u32 s32, s15, {WS_X1}
    buffer_store_dwordx4 {v(X1,4)}, v4, s[28:31], s32 offen
    v_pk_add_f32 v[8:9], {v(A,2)}, {v(A+2,2)}
    v_pk_add_f32 v[10:11], {v(A+4,2)}, {v(A+6,2)}
    v_pk_add_f32 v[8:9], v[8:9], v[10:11]
    v_add_f32 v8, v8, v9
    """)
    lane_reduce_345(p, 8, 9)
    p(f"""
    s_lshl_b32 s33, s12, 5
    v_lshlrev_b32 v12, 2, v1
    v_add_u32 v13, s33, v12
    ds_write_b32 v13, v8
    s_waitcnt lgkmcnt(0)
    s_barrier
    """)
    def gather(off):
        for w in range(7):
            p(f"ds_read_b32 v{32+w}, v12 offset:{off + 32*w}")
        p("v_add_f32 v32, v32, v33")
        p("v_add_f32 v34, v34, v35")
        p("v_add_f32 v36, v36, v37")
        p("v_add_f32 v32, v32, v38")
        p("v_add_f32 v34, v34, v36")
        p("v_add_f32 v8, v32, v34")
    gather(0)
    p(f"v_mul_f32 v8, {f2u(-1.0/448)}, v8")
    for d in range(4):
        p(f"v_pk_add_f32 {v(A+2*d,2)}, {v(A+2*d,2)}, v[8:9] op_sel_hi:[1,0]")
    p(f"v_pk_mul_f32 v[10:11], {v(A,2)}, {v(A,2)}")
    for d in range(1, 4):
        p(f"v_pk_fma_f32 v[10:11], {v(A+2*d,2)}, {v(A+2*d,2)}, v[10:11]")
    p("v_add_f32 v8, v10, v11")
    lane_reduce_345(p, 8, 9)
    p(f"""
    ds_write_b32 v13, v8 offset:256
    s_waitcnt lgkmcnt(0)
    s_barrier
    """)
    gather(256)
    p(f"""
    v_mov_b32 v10, {f2u(1e-5)}
    v_fmac_f32 v10, {f2u(1.0/448)}, v8
    v_rsq_f32 v10, v10
    """)
    for d in range(4):
        p(f"v_pk_mul_f32 {v(A+2*d,2)}, {v(A+2*d,2)}, v[10:11] op_sel_hi:[1,0]")
        p(f"v_pk_fma_f32 {v(A+2*d,2)}, {v(A+2*d,2)}, {v(88+2*d,2)}, {v(80+2*d,2)}")
        p(f"v_cvt_pk_bf16_f32 v{28+d}, v{A+2*d}, v{A+2*d+1}")
    p(f"""
    s_add_u32 s32, s15, {WS_H2}
    buffer_store_dwordx4 v[28:31], v4, s[28:31], s32 offen
    """)
    stamp(p, 2)
    stamp_dump(p, 2, 4, 28, 12)
    p("L_red_end:")
    p("s_endpgm")
    p.finalize()
    return p, "; @launch kernel=red_kernel grid=(256,1,1) block=(448,1,1) lds=512\n"


def emit_red_pre(p, S_W, S_PB, S_J, SRD_W, SRD_X):
    B = 128
    p(f"""
    v_and_b32 v1, 7, v0                  ; n8
    v_bfe_u32 v2, v0, 3, 2               ; g
    v_bfe_u32 v3, v0, 5, 1               ; uu
    v_lshlrev_b32 v4, 10, v3
    v_lshl_add_u32 v4, v2, 8, v4
    v_lshl_add_u32 v4, v1, 4, v4
    s_lshl_b32 s50, s{S_PB}, 3
    s_add_u32 s50, s50, s{S_J}
    s_lshr_b32 s51, s50, 1
    s_mul_i32 s51, s51, {14*1024}
    s_and_b32 s52, s50, 1
    s_lshl_b32 s52, s52, 7
    s_add_u32 s51, s51, s52
    s_lshl_b32 s52, s{S_W}, 11
    s_add_u32 s51, s51, s52
    s_cmp_eq_u32 s{S_W}, 3
    s_cselect_b32 s53, 0x40000000, 0
    s_cselect_b32 s54, 0, 1.0
    v_add_u32 v5, s53, v4
    v_add_u32 v5, 8192, v5
    v_mul_u32_u24 v6, 896, v1
    v_lshl_add_u32 v6, v3, 6, v6
    v_lshl_add_u32 v6, v2, 3, v6
    v_add_u32 v7, s53, v6
    s_mul_i32 s55, s50, {8*896}
    s_lshl_b32 s52, s{S_W}, 7
    s_add_u32 s55, s55, s52
    v_lshlrev_b32 v8, 7, v3
    v_lshl_add_u32 v8, v2, 4, v8
    v_add_u32 v9, s53, v8
    v_add_u32 v9, 1024, v9
    s_lshl_b32 s52, s{S_W}, 8
    s_add_u32 s52, s52, {WS_MOD + 2*1792}
    """)
    for h in range(2):
        for e in range(2):
            p(f"buffer_load_dwordx2 {v(B+4*h+2*e,2)}, v{6+h}, s[{SRD_X}:{SRD_X+3}], s55 offen offset:{512*h + 32*e}")
    for h in range(2):
        for k in range(3):
            for e in range(2):
                p(f"buffer_load_dwordx4 {v(B+8+24*h+8*k+4*e,4)}, v{8+h}, s[{SRD_W}:{SRD_W+3}], s52 offen offset:{k*1792 + 64*e} sc1")

def emit_red(p, S_W, S_PB, SRD_W, ldsoff, after_loads=()):
    B = 128
    PR = 16
    A = 80
    X1 = 96
    p(f"""
    v_mov_b32 v10, 0
    s_lshl_b32 s52, s{S_PB}, 7
    s_add_u32 s52, s52, {WS_FLAG}
    """)
    poll(p, SRD_W, 52, 10, 11, "r" + p.name, 56, 8)
    stamp(p, 6)
    p(f"s_add_u32 s52, s51, {WS_PART}")
    for j in range(8):
        for h in range(2):
            p(f"buffer_load_dwordx4 {v(PR+8*j+4*h,4)}, v{4+h}, s[{SRD_W}:{SRD_W+3}], s52 offen sc1")
        if j < 7:
            p(f"s_add_u32 s52, s52, {128*14*1024}")
    p.extend(after_loads)
    for j in range(8):
        for d in range(8):
            x = PR + 8*j + d
            if j == 0:
                p(f"v_lshlrev_b32 v{A+2*d}, 16, v{x}")
                p(f"v_and_b32 v{A+2*d+1}, 0xffff0000, v{x}")
            else:
                t = 104 + 2 * (d % 4)
                p(f"v_lshlrev_b32 v{t}, 16, v{x}")
                p(f"v_and_b32 v{t+1}, 0xffff0000, v{x}")
                p(f"v_pk_add_f32 {v(A+2*d,2)}, {v(A+2*d,2)}, {v(t,2)}")
    M = lambda d, k: B + 8 + 24*(d//4) + 8*k + 2*(d % 4)
    for d in range(8):
        t = 104 + 2 * (d % 4)
        p(f"v_lshlrev_b32 v{t}, 16, v{B+d}")
        p(f"v_and_b32 v{t+1}, 0xffff0000, v{B+d}")
        p(f"v_pk_fma_f32 {v(A+2*d,2)}, {v(A+2*d,2)}, {v(M(d,0),2)}, {v(t,2)}")
        p(f"v_cvt_pk_bf16_f32 v{X1+d}, v{A+2*d}, v{A+2*d+1}")
        p(f"v_lshlrev_b32 v{A+2*d}, 16, v{X1+d}")
        p(f"v_and_b32 v{A+2*d+1}, 0xffff0000, v{X1+d}")
    p(f"s_add_u32 s52, s51, {WS_X1}")
    for h in range(2):
        p(f"buffer_store_dwordx4 {v(X1+4*h,4)}, v{4+h}, s[{SRD_W}:{SRD_W+3}], s52 offen sc1")
    p(f"v_pk_add_f32 v[104:105], {v(A,2)}, {v(A+2,2)}")
    p(f"v_pk_mul_f32 v[106:107], {v(A,2)}, {v(A,2)}")
    for d in range(1, 8):
        if d >= 2:
            p(f"v_pk_add_f32 v[104:105], v[104:105], {v(A+2*d,2)}")
        p(f"v_pk_fma_f32 v[106:107], {v(A+2*d,2)}, {v(A+2*d,2)}, v[106:107]")
    p("v_add_f32 v104, v104, v105")
    p("v_add_f32 v105, v106, v107")
    lane_reduce_345(p, 104, 106)
    lane_reduce_345(p, 105, 107)
    p(f"""
    s_lshl_b32 s52, s{S_W}, 6
    v_lshlrev_b32 v12, 3, v1
    v_add_u32 v12, {ldsoff}, v12
    v_add_u32 v13, s52, v12
    ds_write_b64 v13, v[104:105]
    s_waitcnt lgkmcnt(0)
    s_barrier
    """)
    for w in range(4):
        p(f"ds_read_b64 {v(108+2*w,2)}, v12 offset:{64*w}")
    p(f"""
    v_pk_add_f32 v[108:109], v[108:109], v[110:111]
    v_pk_add_f32 v[112:113], v[112:113], v[114:115]
    v_pk_add_f32 v[104:105], v[108:109], v[112:113]
    v_mul_f32 v104, {f2u(1.0/448)}, v104
    v_mul_f32 v106, {f2u(1.0/448)}, v105
    v_fma_f32 v106, -v104, v104, v106
    v_max_f32 v106, 0, v106
    v_add_f32 v106, {f2u(1e-5)}, v106
    v_rsq_f32 v106, v106
    v_mul_f32 v104, -v104, v106
    """)
    for d in range(8):
        p(f"v_pk_fma_f32 {v(A+2*d,2)}, {v(A+2*d,2)}, v[106:107], v[104:105] op_sel_hi:[1,0,0]")
        p(f"v_pk_fma_f32 {v(A+2*d,2)}, {v(A+2*d,2)}, {v(M(d,2),2)}, {v(M(d,1),2)}")
        p(f"v_cvt_pk_bf16_f32 v{PR+d}, v{A+2*d}, v{A+2*d+1}")
    p(f"s_add_u32 s52, s51, {WS_H2}")
    for h in range(2):
        p(f"buffer_store_dwordx4 {v(PR+4*h,4)}, v{4+h}, s[{SRD_W}:{SRD_W+3}], s52 offen sc1")
```

```python
import sys
sys.path.insert(0, "work")
from k_attn import *
from k_z import gelu_pairs, C1, C2
from k_prep import LOG2E, QSCALE, xreduce
NSTAMP = 16

def build_mega(opts):
    opts = opts or {}
    name = opts.get("name", "adaLN_cond__gqa_block_cached__mixer_gmlp__prompt_kernel")
    p = Prog(name)
    at = Attn(opts)
    LD = opts.get("ld", " sc1")
    thr = opts.get("thr", 0x5f800000)
    SRD_D = 92
    p(f"""
    s_cmp_ge_u32 s2, 256
    s_cbranch_scc1 L_end{name}
    s_load_dwordx4 s[52:55], s[0:1], 80
    s_load_dwordx2 s[50:51], s[0:1], 0
    s_load_dwordx8 s[4:11], s[0:1], 8
    s_load_dwordx4 s[56:59], s[0:1], 104
    v_lshrrev_b32 v1, 6, v0
    v_readfirstlane_b32 {s(S_W)}, v1
    s_and_b32 {s(S_J)}, s2, 7
    s_lshr_b32 {s(S_PB)}, s2, 3
    v_and_b32 v1, 63, v0
    v_lshlrev_b32 {v(V_LIN)}, 4, v1
    s_lshr_b32 {s(S_HD)}, {s(S_W)}, 1
    s_and_b32 s14, {s(S_W)}, 1
    s_lshl_b32 {s(S_QT)}, {s(S_PB)}, 2
    s_lshl_b32 s14, s14, 1
    s_add_u32 {s(S_QT)}, {s(S_QT)}, s14
    v_mov_b32 v2, 0x40000000
    v_cmp_gt_u32 vcc, 56, v1
    v_cndmask_b32 v19, v2, {v(V_LIN)}, vcc
    v_add_u32 v18, 144, v19
    v_add_u32 v17, 288, v19
    v_add_u32 v16, 432, v19
    s_lshl_b32 s14, {s(S_PB)}, 2
    s_add_u32 s14, s14, {s(S_W)}
    s_mul_i32 s14, s14, {16*896}            ; x soffset
    s_mul_i32 s15, {s(S_W)}, {SLOT}
    s_add_u32 s15, s15, {4*SLOT}
    s_waitcnt lgkmcnt(0)
    """)
    stamp(p, 0)
    srd(p, SRD_W, 58, 59, WS_USED)
    srd(p, SRD_D, 56, 57, 256)
    srd(p, SRD_V, 54, 55, 448 * 5376)
    srd(p, SRD_O, 52, 53, 896)
    srd(p, SRD_K, 50, 51, 2048 * 896 + 432)
    p(f"""
    s_sub_u32 {s(SRD_K)}, {s(SRD_K)}, 432
    s_subb_u32 {s(SRD_K+1)}, {s(SRD_K+1)}, 0
    v_lshlrev_b32 v188, 2, v0
    v_mov_b32 v189, 0
    s_mov_b32 s31, 0
    v_mov_b32 v124, 1
    v_mov_b32 v125, 1
    v_mov_b32 v126, 0
    s_cmp_ge_u32 s2, 84
    s_cbranch_scc1 L_mod1r{name}
    """)
    MW = 128; MC = 160; MA = 176; MT = 184
    def raw(txt):
        x = I(txt); x.kind = "salu"; x.writes = []; return x
    p(f"""
    v_and_b32 v{MT}, 3, v0
    v_lshrrev_b32 v{MT+1}, 2, v0
    v_mul_u32_u24 v{MT+2}, 14, v{MT+1}
    v_mul_u32_u24 v{MT+3}, {7*5376}, v{MT+1}
    v_lshl_add_u32 v{MT+3}, v{MT}, 4, v{MT+3}
    s_lshl_b32 s12, s2, 6
    v_and_b32 v{MT+2}, -4, v{MT+2}
    s_sub_u32 s13, s2, 40
    s_lshl_b32 s13, s13, 10
    s_add_u32 s13, s13, {WS_STATS}
    s_sub_u32 s31, s2, 40
    s_cmp_ge_u32 s31, 32
    s_cselect_b32 s13, 0x40000000, s13
    """)
    for i in range(7):
        p(raw(f"buffer_load_dwordx4 {v(MW+4*i,4)}, v{MT+3}, {s(SRD_V,4)}, s12 offen"))
        if i < 6:
            p(f"s_add_u32 s12, s12, 5376")
    p(raw(f"buffer_load_dwordx4 {v(MC+8,4)}, v{MT+2}, {s(SRD_O,4)}, 0 offen"))
    p(raw(f"buffer_store_dword v{MT+5}, v{MT+4}, {s(SRD_W,4)}, s13 offen sc1"))
    p(f"L_mod1r{name}:")
    XK = [(4, -1), (5, -1), (6, -1), (7, -1)]
    NX0 = opts.get("nx0", 8)
    def xdma(ms):
        for m in ms:
            if m % 4 == 0:
                p(f"s_add_u32 m0, s15, {m*1040}")
            p(f"buffer_load_dwordx4 v{16 + m % 4}, {s(SRD_K,4)}, s14 offen offset:{(m % 4)*1040} lds", tag=("dma", XK))
            if m % 4 == 3:
                p(f"s_add_u32 s14, s14, {4*896}")
    xdma(range(NX0))
    p(f"""
    s_cmp_ge_u32 s2, 84
    s_cbranch_scc1 L_mod2r{name}
    s_mov_b32 s13, {f2u(-LOG2E)}
    """)
    if opts.get("pst"): stamp(p, 5)
    p(raw(f"s_waitcnt vmcnt({NX0 + 1})"))
    if opts.get("pst"): stamp(p, 6)
    p(f"v_and_b32 v{MT+1}, 1, v{MT+1}")
    p(f"v_lshlrev_b32 v{MT+1}, 4, v{MT+1}")
    for j in range(4):
        p(f"v_alignbit_b32 v{MC+8+j}, v{MC+8+min(j+1,3)}, v{MC+8+j}, v{MT+1}")
    for i in range(7):
        p(f"v_lshlrev_b32 v{MC+i}, 16, v{MC+8+i//2}" if i % 2 == 0 else f"v_and_b32 v{MC+i}, 0xffff0000, v{MC+8+i//2}")
    for i in range(7):
        p(f"v_mul_f32 v{MC+8+i}, s13, v{MC+i}")
    for i in range(7):
        p(f"v_exp_f32 v{MC+8+i}, v{MC+8+i}")
    for i in range(7):
        p(f"v_add_f32 v{MC+8+i}, 1.0, v{MC+8+i}")
    for i in range(7):
        p(f"v_rcp_f32 v{MC+8+i}, v{MC+8+i}")
    for i in range(7):
        p(f"v_mul_f32 v{MC+8+i}, v{MC+8+i}, v{MC+i}")
        p(f"v_cvt_pk_bf16_f32 v{MC+8+i}, v{MC+8+i}, v{MC+8+i}")
        p(f"v_lshlrev_b32 v{MT+8+2*i}, 16, v{MC+8+i}")
    for i in range(7):
        for d in range(4):
            w = MW + 4*i + d
            t = MC + 2 * d
            p(f"v_lshlrev_b32 v{t}, 16, v{w}")
            p(f"v_and_b32 v{t+1}, 0xffff0000, v{w}")
            if i == 0:
                p(f"v_pk_mul_f32 {v(MA+2*d,2)}, {v(t,2)}, {v(MT+8,2)} op_sel_hi:[1,0]")
            else:
                p(f"v_pk_fma_f32 {v(MA+2*d,2)}, {v(t,2)}, {v(MT+8+2*i,2)}, {v(MA+2*d,2)} op_sel_hi:[1,0,1]")
    for sh in (4, 8):
        for k in range(8):
            p(f"v_add_f32_dpp v{MA+k}, v{MA+k}, v{MA+k} row_ror:{sh} row_mask:0xf bank_mask:0xf")
    if opts.get("pst"): stamp(p, 7)
    p(f"""
    v_lshrrev_b32 v{MT+1}, 4, v0
    v_lshlrev_b32 v{MT+1}, 7, v{MT+1}
    v_lshl_add_u32 v{MT}, v{MT}, 5, v{MT+1}
    v_add_u32 v{MT}, {MODL}, v{MT}
    ds_write_b128 v{MT}, {v(MA,4)}
    ds_write_b128 v{MT}, {v(MA+4,4)} offset:16
    v_add_u32 v{MT+1}, {MODL}, v{MT+4}
    """)
    p(raw(f"s_waitcnt vmcnt({NX0}) lgkmcnt(0)"))
    p(raw("s_barrier"))
    p(f"""
    s_cmp_lg_u32 {s(S_W)}, 0
    s_cbranch_scc1 L_mod2r{name}
    """)
    if opts.get("pst"): stamp(p, 8)
    for i in range(8):
        p(f"ds_read_b32 v{MW+i}, v{MT+1} offset:{256*i}")
    for st in (4, 2, 1):
        for i in range(st):
            p(f"v_add_f32 v{MW+i}, v{MW+i}, v{MW+i+st}")
    p(f"""
    v_mov_b32 v{MW+1}, v{MW}
    v_permlane32_swap_b32 v{MW}, v{MW+1}
    v_add_f32 v{MW}, v{MW}, v{MW+1}
    v_cvt_pk_bf16_f32 v{MW}, v{MW}, v{MW}
    v_lshlrev_b32 v{MW}, 16, v{MW}
    v_add_f32 v{MW+1}, 1.0, v{MW}
    v_cvt_pk_bf16_f32 v{MW+1}, v{MW+1}, v{MW+1}
    v_lshlrev_b32 v{MW+1}, 16, v{MW+1}
    s_mul_i32 s12, s2, 0x4925
    s_lshr_b32 s12, s12, 18
    s_cmp_eq_u32 s12, 1
    s_cselect_b64 vcc, -1, 0
    s_cmp_eq_u32 s12, 4
    s_cselect_b64 vcc, -1, vcc
    v_cndmask_b32 v{MW}, v{MW}, v{MW+1}, vcc
    s_cmp_lt_u32 s12, 2
    s_cselect_b32 s13, {f2u(QSCALE)}, 1.0
    s_cselect_b32 s31, 0, 4
    v_mul_f32 v{MW}, s13, v{MW}
    s_lshl_b32 s12, s2, 7
    v_and_b32 v{MT+4}, 127, v{MT+4}
    v_mov_b32 v{MW+2}, 1
    """)
    p(raw(f"buffer_store_dword v{MW}, v{MT+4}, {s(SRD_W,4)}, s12 offen offset:{WS_MOD} sc1"))
    p(f"L_mod2r{name}:")
    p("s_nop 4")
    xdma(range(NX0, 16))
    p(f"""
    s_cmp_ge_u32 s2, 84
    s_cbranch_scc1 L_mod3r{name}
    s_cmp_lg_u32 {s(S_W)}, 0
    s_cbranch_scc1 L_mod3r{name}
    """)
    p(raw(f"s_waitcnt vmcnt({16 - NX0})"))
    if opts.get("pst"): stamp(p, 9)
    p("s_mov_b64 exec, 1")
    p(raw(f"buffer_atomic_add v124, v126, {s(SRD_D,4)}, s31 offen sc0 sc1"))
    p("s_mov_b64 exec, -1")
    p(f"L_mod3r{name}:")
    srd(p, SRD_Q, 8, 9, 448 * 8192)
    V_MRD = 3
    p(f"""
    s_mul_i32 {s(S_M0V)}, {s(S_W)}, 4160
    s_lshl_b32 {s(S_M0K)}, {s(S_W)}, 12
    s_lshl_b32 {s(S_WBASE)}, {s(S_J)}, 10
    v_lshrrev_b32 v1, 3, v0
    v_min_u32 v1, 13, v1
    v_lshlrev_b32 v1, 13, v1
    v_and_b32 v2, 7, v0
    v_lshl_add_u32 v1, v2, 7, v1
    s_mul_i32 s53, {s(S_PB)}, {14*8192}
    s_add_u32 s53, s53, {s(S_WBASE)}
    buffer_load_dword v{V_O+127}, v1, {s(SRD_Q,4)}, s53 offen
    """)
    code_prefetch(p, name, f"L_end{name}", 22, 1, V_O + 126)
    p(f"""
    v_bfe_u32 v1, v0, 5, 1              ; hh
    v_and_b32 v2, 31, v0
    v_lshlrev_b32 {v(V_TMP)}, 1, v1
    v_xor_b32 v2, v2, {v(V_TMP)}        ; chunk
    v_lshlrev_b32 v1, 3, v1
    v_add_u32 v1, {s(S_W)}, v1          ; 8hh + w
    v_lshlrev_b32 v1, 13, v1
    v_lshl_add_u32 {v(V_WDMA)}, v2, 4, v1
    """)
    for jj in range(1, 4):
        p(f"v_add_u32 {v(V_WDMA+jj)}, {(16*(jj % 2) + 4*(jj//2))*8192 - jj*1024}, {v(V_WDMA)}")
    def emit_wfill(which, st):
        for hf in range(2):
            pre, d = at.wfill(which, st, hf)
            p.extend(pre); p.extend(d)
    p(f"""
    s_lshl_b32 s52, {s(S_W)}, 11
    s_add_u32 s52, s52, {MODL}
    v_bfe_u32 v1, v0, 2, 2
    v_mul_u32_u24 v1, 4160, v1
    v_and_b32 v2, 3, v0
    v_lshl_add_u32 v1, v2, 3, v1
    v_bfe_u32 v2, v0, 4, 2
    v_lshl_add_u32 v1, v2, 9, v1
    v_lshlrev_b32 v{V_MRD}, 5, v2
    v_add_u32 v{V_MRD}, s52, v{V_MRD}
    v_and_b32 v120, 15, v0
    v_mul_u32_u24 v120, 1040, v120
    v_lshl_add_u32 v120, v2, 4, v120
    s_and_b32 s14, {s(S_W)}, 1
    s_mul_i32 s14, s14, {2*SLOT}
    s_mul_i32 s15, {s(S_HD)}, 448
    s_add_u32 s14, s14, s15
    s_add_u32 s14, s14, {4*SLOT}
    v_add_u32 v120, s14, v120
    v_bfe_u32 v2, v0, 4, 1
    v_lshl_add_u32 {v(V_TMP)}, v2, 5, v1
    s_mul_i32 s14, {s(S_HD)}, {SLOT}
    v_add_u32 {v(V_WRD)}, s14, {v(V_TMP)}
    v_xor_b32 {v(V_WRD+1)}, 32, {v(V_WRD)}
    v_add_u32 {v(V_WRD+2)}, {4*SLOT}, {v(V_WRD)}
    v_add_u32 {v(V_WRD+3)}, {4*SLOT}, {v(V_WRD+1)}
    s_lshl_b32 s14, {s(S_W)}, 12
    s_add_u32 s14, s14, {8*SLOT}
    v_add_u32 {v(V_XW)}, s14, {v(V_LIN)}
    v_xor_b32 {v(V_XR)}, 0x2000, {v(V_XW)}
    """)
    NE = opts.get("nearly", 1)
    for st in range(NE):
        emit_wfill("Q", st)
    p(f"""
    s_cmp_ge_u32 s2, 84
    s_cbranch_scc1 L_mod4r{name}
    s_cmp_lg_u32 {s(S_W)}, 0
    s_cbranch_scc1 L_mod4r{name}
    """)
    p(raw(f"s_waitcnt vmcnt({2 + 8 * NE})"))
    if opts.get("pst"): stamp(p, 10)
    p("s_cmp_lg_u32 s31, 0")
    p(f"s_cbranch_scc1 L_mod4r{name}")
    p("v_cmp_eq_u32 vcc, 27, v124")
    p(f"s_cbranch_vccz L_mod4r{name}")
    p("s_mov_b64 exec, 1")
    p(raw(f"buffer_store_dword v125, v126, {s(SRD_D,4)}, 0 offen offset:128 sc1"))
    p("s_mov_b64 exec, -1")
    p(f"L_mod4r{name}:")
    p(I("WAITTAG", tag=XK))
    p("s_barrier")
    for ks in range(7):
        for qt in range(2):
            p(f"ds_read_b128 {v(V_H+8*ks+4*qt,4)}, v120 offset:{qt*SLOT + 64*ks}", tag=("rd", XK))
    if NE < 1: emit_wfill("Q", 0)
    F = V_O
    SA = 112
    for k in range(56):
        qt = (k // 4) % 2
        p(f"v_lshlrev_b32 v{F+2*k}, 16, v{V_H+k}")
        p(f"v_and_b32 v{F+2*k+1}, 0xffff0000, v{V_H+k}")
        if k in (0, 4):
            p(f"v_pk_mul_f32 {v(SA+4+2*qt,2)}, {v(F+2*k,2)}, {v(F+2*k,2)}")
        else:
            p(f"v_pk_add_f32 {v(SA+2*qt,2)}, {v(F+2*k-2,2) if k in (1, 5) else v(SA+2*qt,2)}, {v(F+2*k,2)}")
            p(f"v_pk_fma_f32 {v(SA+4+2*qt,2)}, {v(F+2*k,2)}, {v(F+2*k,2)}, {v(SA+4+2*qt,2)}")
    for k in range(4):
        p(f"v_add_f32 v{SA+k}, v{SA+2*k}, v{SA+2*k+1}")
    for k in range(4):
        xreduce(p, SA + k, 121 + k, "v_add_f32")
    p(f"ds_write_b128 {v(V_XW)}, {v(SA,4)}", tag=("wr", (8, -1)))
    p("s_waitcnt lgkmcnt(0)")
    p("s_barrier")
    p(f"ds_read_b128 {v(SA+4,4)}, {v(V_XR)}", tag=("rd", (8, -1)))
    if NE < 2: emit_wfill("Q", 1)
    for qt in range(2):
        m_, r_ = 120 + 4*qt, 122 + 4*qt
        p(f"v_add_f32 v{SA+qt}, v{SA+qt}, v{SA+4+qt}")
        p(f"v_add_f32 v{SA+2+qt}, v{SA+2+qt}, v{SA+6+qt}")
        p(f"v_mul_f32 v{m_}, {f2u(1.0/448)}, v{SA+qt}")
        p(f"v_mul_f32 v{r_}, {f2u(1.0/448)}, v{SA+2+qt}")
        p(f"v_fma_f32 v{r_}, -v{m_}, v{m_}, v{r_}")
        p(f"v_max_f32 v{r_}, 0, v{r_}")
        p(f"v_add_f32 v{r_}, {f2u(1e-5)}, v{r_}")
        p(f"v_rsq_f32 v{r_}, v{r_}")
        p(f"v_mul_f32 v{m_}, -v{m_}, v{r_}")
    for k in range(56):
        qt = (k // 4) % 2
        p(f"v_pk_fma_f32 {v(F+2*k,2)}, {v(F+2*k,2)}, {v(122+4*qt,2)}, {v(120+4*qt,2)} op_sel_hi:[1,0,0]")
    NPRE = opts.get("npre", 3)
    for st in range(2, NPRE):
        emit_wfill("Q", st)
    p(f"""
    v_mov_b32 v1, 0x80
    s_mov_b32 s14, 0
    s_mul_i32 s53, {s(S_HD)}, 896
    v_add_u32 v2, s52, {v(V_LIN)}
    """)
    if opts.get("pst"): stamp(p, 1)
    p(f"s_cmp_lg_u32 {s(S_W)}, 0")
    p(f"s_cbranch_scc1 L_polled_m{name}")
    poll(p, SRD_D, 14, 1, 120, "m" + name, 56, 1, sleep=opts.get("msleep", 4))
    p("s_barrier")
    if opts.get("pst"): stamp(p, 2)
    p(f"buffer_load_dwordx4 v[120:123], {v(V_LIN)}, {s(SRD_W,4)}, s53 offen offset:{WS_MOD} sc1")
    p(f"buffer_load_dwordx4 v[124:127], {v(V_LIN)}, {s(SRD_W,4)}, s53 offen offset:{WS_MOD + 1792} sc1")
    for st in range(NPRE, 3):
        emit_wfill("Q", st)
    mt = ("wr", ("M", 0), "private")
    p("ds_write_b128 v2, v[120:123]", tag=mt)
    p("ds_write_b128 v2, v[124:127] offset:1024", tag=mt)
    MB = 72
    def modreads(ks):
        M = MB + 16 * (ks % 3)
        rt = ("rd", ("M", 0), "private")
        return [I(f"ds_read_b128 {v(M + 8*k + 4*h, 4)}, v{V_MRD} offset:{1024*(1-k) + 128*ks + 16*h}", tag=rt)
                for k in range(2) for h in range(2)]
    NUP = 7
    p(I("WAITTAG", tag=[("M", 0)]))
    p.extend(modreads(0)); p.extend(modreads(1)); p.extend(modreads(2))
    for ks in range(7):
        M = MB + 16 * (ks % 3)
        for k in range(8*ks, 8*ks + 8):
            d = k % 4
            p(f"v_pk_fma_f32 {v(F+2*k,2)}, {v(F+2*k,2)}, {v(M+2*d,2)}, {v(M+8+2*d,2)}")
            p(f"v_cvt_pk_bf16_f32 v{V_H+k}, v{F+2*k}, v{F+2*k+1}")
        if ks + 3 < 7:
            p.extend(modreads(ks + 3))
    p(f"s_waitcnt vmcnt({8 * max(0, 3 - NPRE)})")
    p("s_barrier")
    stamp(p, 3 if opts.get("pst") else 1)
    srd(p, SRD_O, 10, 11, 4096 * 896)
    p(f"""
    s_lshl_b32 s14, {s(S_J)}, 20
    s_add_u32 {s(SRD_K)}, s4, s14
    s_addc_u32 {s(SRD_K+1)}, s5, 0
    s_mov_b32 {s(SRD_K+2)}, 0x100000
    s_mov_b32 {s(SRD_K+3)}, 0x20000
    s_add_u32 {s(SRD_V)}, s6, s14
    s_addc_u32 {s(SRD_V+1)}, s7, 0
    s_mov_b32 {s(SRD_V+2)}, 0x100000
    s_mov_b32 {s(SRD_V+3)}, 0x20000
    s_mov_b32 {s(S_KOFF)}, 0
    s_mov_b32 {s(S_VOFF)}, 0
    s_mov_b32 {s(S_THR)}, {thr}
    s_lshl_b32 s15, {s(S_W)}, 3
    """)
    setup = f"""
    v_bfe_u32 v1, v0, 5, 1
    v_and_b32 v2, 31, v0
    v_add_u32 v16, s15, v1
    v_lshlrev_b32 v17, 9, v16
    v_and_b32 v16, 15, v16
    v_xor_b32 v16, v16, v2
    v_lshl_add_u32 {v(V_KDMA)}, v16, 4, v17
    v_xor_b32 {v(V_KDMA+1)}, 32, {v(V_KDMA)}
    v_xor_b32 {v(V_KDMA+2)}, 64, {v(V_KDMA)}
    v_xor_b32 {v(V_KDMA+3)}, 96, {v(V_KDMA)}
    v_lshlrev_b32 v16, 2, v1
    v_add_u32 v16, {s(S_W)}, v16
    v_lshlrev_b32 v16, 9, v16
    v_lshlrev_b32 v17, 1, v1
    v_xor_b32 v17, v17, v2
    v_lshl_add_u32 {v(V_VDMA)}, v17, 4, v16
    v_add_u32 {v(V_VDMA+1)}, 3072, {v(V_VDMA)}
    v_add_u32 {v(V_VDMA+2)}, 6144, {v(V_VDMA)}
    v_add_u32 {v(V_VDMA+3)}, 9216, {v(V_VDMA)}
    v_and_b32 v16, 15, v0
    v_bfe_u32 v17, v0, 4, 2
    v_xor_b32 v17, v17, v16
    v_lshlrev_b32 v16, 9, v16
    v_add_u32 v16, {4*SLOT}, v16
    v_lshl_add_u32 {v(V_KRD)}, v17, 4, v16
    v_xor_b32 {v(V_KRD+1)}, 64, {v(V_KRD)}
    v_xor_b32 {v(V_KRD+2)}, 0x80, {v(V_KRD)}
    v_xor_b32 {v(V_KRD+3)}, 0xc0, {v(V_KRD)}
    v_mov_b32 {v(V_VRD)}, {v(V_TMP)}
    v_xor_b32 {v(V_VRD+1)}, 32, {v(V_TMP)}
    v_mov_b32 {v(V_L)}, 0
    v_mov_b32 {v(V_L+1)}, 0
    """
    setup = [I(x.strip()) for x in setup.strip().split("\n")]
    assert (4 * SLOT) % 256 == 0
    def q_mfma(i, t, qt, fr):
        D = v(V_O + 8*t + 4*qt, 4)
        Bop = v(V_H + 8*i + 4*qt, 4) if i < 7 else a(A_HP + 8*(i-7) + 4*qt, 4)
        return f"v_mfma_f32_16x16x32_bf16 {D}, {fr}, {Bop}, {D if i else 0}"
    def q_fills(i):
        st = i + 3
        if i == 0 and NPRE == 4: return []
        if st < 14:
            return [at.wfill("Q", st, hf) + ([],) for hf in range(2)]
        if i == 11: return [at.kvfill("K", 0), at.kvfill("K", 1)]
        if i == 12: return [at.kvfill("K", 2)]
        return [at.kvfill("V", 0), at.kvfill("V", 1, range(at.nafter))]
    def q_bar(i):
        ks = at.wkeys("Q", i + 1) if i < 13 else [at.key("K", 0)]
        i -= 1
        if 0 <= i < 8:
            ks = ks + [(8, i // 2)] if i % 2 == 0 else ks + [("rd", 8, i // 2)]
        return ks
    def q_valu(i):
        out = []
        if i in (8, 9, 10):
            n = len(setup)
            out += setup[(i-8)*n//3:(i-7)*n//3]
        return out
    def q_xds(i):
        out = []
        i -= 1
        if 0 <= i < 8:
            rho = i // 2
            for k in range(4):
                u, qt = 2*rho + k // 2, k % 2
                if u >= 7: continue
                if i % 2 == 0:
                    out.append(I(f"ds_write_b128 {v(V_XW)}, {v(V_H + 8*u + 4*qt, 4)} offset:{1024*k}", tag=("wr", (8, rho))))
                else:
                    out.append(I(f"ds_read_b128 {a(A_HP + 8*u + 4*qt, 4)}, {v(V_XR)} offset:{1024*k}", tag=("rd", (8, rho))))
        return out
    at.gemm_phase(p, "Q", 14, 16, q_mfma, q_fills, q_bar, q_valu, q_xds)
    p("s_load_dwordx4 s[4:7], s[0:1], 48")
    p("s_load_dwordx2 s[8:9], s[0:1], 72")
    p("s_load_dwordx2 s[10:11], s[0:1], 0")
    p("s_waitcnt lgkmcnt(0)")
    srd(p, SRD_Q, 4, 5, 448 * 3584)
    for g in range(at.gB + 1, 64):
        for (f, e, nx) in at.ds.get(g, []):
            p(at.kread(lambda it: 0, 0, f))
    p(f"""
    v_bfe_u32 v1, v0, 5, 1
    v_and_b32 v2, 31, v0
    v_lshlrev_b32 v3, 1, v1
    v_xor_b32 v3, v3, v2
    v_lshlrev_b32 v1, 2, v1
    v_add_u32 v1, {s(S_W)}, v1
    v_mul_u32_u24 v1, 896, v1
    v_lshl_add_u32 v1, v3, 4, v1
    v_mov_b32 v3, 0x40000000
    v_cmp_gt_u32 vcc, 28, v2
    v_cndmask_b32 {v(V_WDMA)}, v3, v1, vcc
    v_add_u32 {v(V_WDMA+1)}, {8*896 - 1024}, {v(V_WDMA)}
    v_add_u32 {v(V_WDMA+2)}, {16*896 - 2048}, {v(V_WDMA)}
    v_add_u32 {v(V_WDMA+3)}, {24*896 - 3072}, {v(V_WDMA)}
    s_mul_i32 {s(S_WBASE)}, {s(S_J)}, {512*896}
    """)
    assert (8 * SLOT) & 0x3fff == (8 * SLOT) % 16384 and ((8 * SLOT) % 16384) + 4096 <= 8192
    p(f"""
    v_mov_b32 v1, 4
    buffer_load_dword v2, v1, {s(SRD_D,4)}, 0 offen sc1
    """)
    for sx in range(8):
        for qt in range(2):
            X = V_O + 16*sx + 4*qt
            Y = X + 8
            p(f"v_cvt_pk_bf16_f32 v{X}, v{X}, v{X+1}")
            p(f"v_cvt_pk_bf16_f32 v{X+1}, v{X+2}, v{X+3}")
            p(f"v_cvt_pk_bf16_f32 v{Y}, v{Y}, v{Y+1}")
            p(f"v_cvt_pk_bf16_f32 v{Y+1}, v{Y+2}, v{Y+3}")
        for qt in range(2):
            X = V_O + 16*sx + 4*qt
            Y = X + 8
            p(f"v_permlane32_swap_b32 v{X}, v{Y}")
            p(f"v_permlane32_swap_b32 v{X+1}, v{Y+1}")
        for qt in range(2):
            X = V_O + 16*sx + 4*qt
            Y = X + 8
            p(f"v_permlane16_swap_b32 v{X}, v{Y}")
            p(f"v_permlane16_swap_b32 v{X+1}, v{Y+1}")
        for qt in range(2):
            X = V_O + 16*sx + 4*qt
            Y = X + 8
            for k, r in enumerate((X, X+1, Y, Y+1)):
                p(f"v_accvgpr_write_b32 a{A_Q + 8*sx + 4*qt + k}, v{r}")
    stamp(p, 4 if opts.get("pst") else 2)
    p(f"""
    v_cmp_gt_u32 vcc, 56, v2
    s_cbranch_vccnz L_mslow{name}
    L_mok{name}:
    """)
    p.begin_side()
    p(f"L_mslow{name}:")
    p("s_mov_b32 s14, 0")
    poll(p, SRD_D, 14, 1, 2, "m2" + name, 56, 56, sleep=4)
    p(f"s_branch L_mok{name}")
    p.end_side()
    lid = [opts.get("lid0", 0)]
    import k_prep
    son = k_prep.STAMP["on"]
    if opts.get("pst"): k_prep.STAMP["on"] = False
    def B(c, fn, aval=None, **kw):
        at.body(p, c, fn, aval=aval, lid=lid[0], **kw)
        if aval != -1:
            at.fallback(p, c % 2, lid[0], aval != 63)
        lid[0] += 1
    B(3, lambda it: -1, aval=-1)
    if opts.get("touch", True):
        p(f"""
        v_min_u32 v1, {223 if opts.get("t64", False) else 111}, v0
        v_lshlrev_b32 v1, {6 if opts.get("t64", False) else 7}, v1
        s_mul_i32 s53, {s(S_PB)}, {112*128}
        s_add_u32 s53, s53, {s(S_WBASE)}
        buffer_load_dword v2, v1, {s(SRD_O,4)}, s53 offen
        """)
    exv = None
    if opts.get("warm", True):
        p(f"""
        v_and_b32 v1, 63, v0
        s_lshl_b32 s14, s2, 15
        s_min_u32 s14, s14, {2048*4096 - 35840}
        s_mul_i32 s15, {s(S_W)}, 640
        s_add_u32 s14, s14, s15
        v_cmp_gt_u32 vcc, 5, v1
        v_cndmask_b32 v3, 0, v1, vcc
        v_lshl_add_u32 v3, v3, 7, s14
        v_mov_b32 v16, s6
        v_mov_b32 v17, s7
        v_mov_b32 v18, 2560
        v_mov_b32 v19, 0
        s_mul_i32 s14, s2, {49*128}
        s_min_u32 s14, s14, {448*3584 - 56*128}
        s_lshl_b32 s15, {s(S_W)}, 7
        s_add_u32 s14, s14, s15
        v_writelane_b32 v3, s14, 5
        v_writelane_b32 v16, s4, 5
        v_writelane_b32 v17, s5, 5
        s_movk_i32 s14, 0x200
        v_writelane_b32 v18, s14, 5
        s_mul_i32 s14, s2, {25*128}
        s_min_u32 s14, s14, {896*896 - 28*128}
        s_and_b32 s15, {s(S_W)}, 1
        s_lshl_b32 s15, s15, 7
        s_add_u32 s14, s14, s15
        v_writelane_b32 v3, s14, 6
        v_writelane_b32 v16, s8, 6
        v_writelane_b32 v17, s9, 6
        s_movk_i32 s14, 0x100
        v_writelane_b32 v18, s14, 6
        v_add_co_u32 v16, vcc, v16, v3
        v_addc_co_u32 v17, vcc, 0, v17, vcc
        """)
        exv = [(at.gB, I("global_load_dword v20, v[16:17], off"))]
        exv2 = [(at.gJ, I("v_lshl_add_u64 v[16:17], v[16:17], 0, v[18:19]"))]
    B(0, lambda it: 0, aval=0, extra_scalar=[(60, I(f"s_mov_b32 {s(S_CNT)}, 14"))])
    p.begin_loop(14)
    p(f"L_loop{name}:")
    for c in range(1, 5):
        ex = [(60, I(f"s_sub_u32 {s(S_CNT)}, {s(S_CNT)}, 1"))] if c == 2 else None
        B(c % 4, (lambda c: lambda it: 4*it + c)(c), extra_scalar=ex,
          extra_valu=(exv if c == 1 else exv2 if c == 3 else None) if exv else None)
    p(f"s_cmp_lg_u32 {s(S_CNT)}, 0")
    p(f"s_cbranch_scc1 L_loop{name}")
    p.end_loop()
    for av in range(57, 64):
        B(av % 4, (lambda av: lambda it: av)(av), aval=av)
    if not opts.get("pst"): stamp(p, 3)
    for qt in range(2):
        at.xreduce(p, V_L + qt, "v_add_f32")
        p(f"v_rcp_f32 v{2+qt}, {v(V_L+qt)}")
    def conv(u):
        out = []
        for qt in range(2):
            X = V_O + 16*u + 4*qt
            Y = X + 8
            for r in (X, X+1, X+2, X+3, Y, Y+1, Y+2, Y+3):
                out.append(I(f"v_mul_f32 v{r}, v{r}, v{2+qt}"))
            out.append(I(f"v_cvt_pk_bf16_f32 v{X}, v{X}, v{X+1}"))
            out.append(I(f"v_cvt_pk_bf16_f32 v{X+1}, v{X+2}, v{X+3}"))
            out.append(I(f"v_cvt_pk_bf16_f32 v{X+2}, v{Y}, v{Y+1}"))
            out.append(I(f"v_cvt_pk_bf16_f32 v{X+3}, v{Y+2}, v{Y+3}"))
        return out
    p.extend(conv(0)); p.extend(conv(1))
    ACC = V_H
    ZD = V_O + 120
    ZT = V_O + 24
    p(f"""
    s_and_b32 s15, {s(S_J)}, 1
    s_lshl_b32 s15, s15, 2
    s_and_b32 s32, {s(S_PB)}, 3
    s_add_u32 s32, s32, s15              ; fb
    s_lshr_b32 s15, {s(S_J)}, 1
    s_lshl_b32 s15, s15, 3
    s_lshr_b32 s33, {s(S_PB)}, 2
    s_add_u32 s33, s33, s15              ; tb
    s_mul_i32 s34, s32, 224
    s_mul_i32 s36, {s(S_W)}, {32*3584}
    s_add_u32 s34, s34, s36
    s_add_u32 s37, s34, 1792
    s_mul_i32 s36, {s(S_W)}, 7168
    s_movk_i32 s31, 0x124a
    s_and_b32 s57, s32, 1
    s_lshl_b32 s57, s57, 1
    v_and_b32 v1, 63, v0
    """)
    zops = []
    for m in range(7):
        zops += [I(f"v_add_u32 v{ZT}, {64*m}, v1"), I(f"v_mul_u32_u24 v{ZT+1}, s31, v{ZT}"), I(f"v_lshrrev_b32 v{ZT+1}, 16, v{ZT+1}"),
                 I(f"v_mul_u32_u24 v{ZT+2}, 14, v{ZT+1}"), I(f"v_sub_u32 v{ZT}, v{ZT}, v{ZT+2}"),
                 I(f"v_add_u32 v{ZT}, s57, v{ZT}"), I(f"v_subrev_u32 v{ZT+2}, 14, v{ZT}"), I(f"v_min_u32 v{ZT}, v{ZT}, v{ZT+2}"),
                 I(f"v_mul_u32_u24 v{ZT+1}, 3584, v{ZT+1}"), I(f"v_lshl_add_u32 v{ZD+m}, v{ZT}, 4, v{ZT+1}")]
        if m % 4:
            zops.append(I(f"v_subrev_u32 v{ZD+m}, {(m % 4)*1024}, v{ZD+m}"))
    ZBASE = [[2 * 2 * SLOT, 3 * 2 * SLOT, 0, 8 * SLOT], [2 * SLOT, 2 * 2 * SLOT, 3 * 2 * SLOT, 8 * SLOT]]
    ZKEYS = [[[(4, 300), (5, 300)], [(6, 300), (7, 300)], [(0, 300), (1, 300)], [(8, 300)]],
             [[(2, 310), (3, 310)], [(4, 310), (5, 310)], [(6, 310), (7, 310)], [(8, 310)]]]
    def zfill(rnd, z1=0):
        gs = []
        so = 34 if z1 else 37
        for hf in range(2):
            pre = [I(f"s_add_u32 m0, s36, {ZBASE[z1][rnd] + hf*4096}")]
            d = [I(f"buffer_load_dwordx4 v{ZD+m}, {s(SRD_Q,4)}, s{so} offen offset:{(m % 4)*1024} lds", tag=("dma", ZKEYS[z1][rnd]))
                 for m in range(4*hf, min(7, 4*hf+4))]
            post = [I(f"s_add_u32 s{so}, s{so}, {4*32*3584}")] if hf else []
            gs.append((pre, d, post))
        return gs
    def flat(gs):
        return [x for g in gs for lst in g for x in lst]
    def o_mfma(i, t, qt, fr):
        D = v(ACC + 8*t + 4*qt, 4)
        Bop = v(V_O + 16*i + 4*qt, 4) if i < 8 else a(A_Q + 8*(i-8) + 4*qt, 4)
        return f"v_mfma_f32_16x16x32_bf16 {D}, {fr}, {Bop}, {D if i else 0}"
    def o_fills(i):
        st = i + 3
        if i >= 13:
            return zfill(i - 13)
        return [at.wfill("O", st, hf) + ([],) for hf in range(2)] if st < 16 else []
    def o_bar(i):
        if i == 15: return []
        ks = at.wkeys("O", i + 1)
        i -= 1
        if 0 <= i < 8:
            ks = ks + [(8, 10 + i // 2)] if i % 2 == 0 else ks + [("rd", 8, 10 + i // 2)]
        return ks
    def o_valu(i):
        if i in (8, 9, 10, 11, 12):
            n = len(zops)
            return zops[(i-8)*n//5:(i-7)*n//5]
        return conv(i + 2) if i + 2 < 8 else []
    def o_xds(i):
        i -= 1
        if i >= 8 or i < 0: return []
        rho = i // 2
        out = []
        for k in range(4):
            u, qt = 2*rho + k // 2, k % 2
            if i % 2 == 0:
                out.append(I(f"ds_write_b128 {v(V_XW)}, {v(V_O + 16*u + 4*qt, 4)} offset:{1024*k}", tag=("wr", (8, 10 + rho))))
            else:
                out.append(I(f"ds_read_b128 {a(A_Q + 8*u + 4*qt, 4)}, {v(V_XR)} offset:{1024*k}", tag=("rd", (8, 10 + rho))))
        return out
    at.gemm_phase(p, "O", 16, 14, o_mfma, o_fills, o_bar, o_valu, o_xds)
    if not opts.get("pst"): stamp(p, 4)
    p(f"""
    s_lshl_b32 s14, {s(S_J)}, 7
    s_add_u32 s14, s14, {s(S_QT)}
    s_mul_i32 s14, s14, {14*1024}
    s_mul_i32 s15, {s(S_HD)}, {7*1024}
    s_add_u32 s14, s14, s15
    s_add_u32 s14, s14, {WS_PART}
    s_add_u32 s15, s14, {14*1024}
    s_add_u32 s50, s14, 4096
    s_add_u32 s51, s15, 4096
    """)
    for uu in range(7):
        for qt in range(2):
            X = ACC + 16*uu + 4*qt
            Y = X + 8
            p(f"v_cvt_pk_bf16_f32 v{X}, v{X}, v{X+1}")
            p(f"v_cvt_pk_bf16_f32 v{X+1}, v{X+2}, v{X+3}")
            p(f"v_cvt_pk_bf16_f32 v{X+2}, v{Y}, v{Y+1}")
            p(f"v_cvt_pk_bf16_f32 v{X+3}, v{Y+2}, v{Y+3}")
            so = (14 + qt) if uu < 4 else (50 + qt)
            p(f"buffer_store_dwordx4 {v(X,4)}, {v(V_LIN)}, {s(SRD_W,4)}, s{so} offen offset:{(uu % 4)*1024} sc1", tag=("wr", ("PT", 0), "private"))

    for gsx in zfill(3):
        for lst in gsx: p.extend(lst)
    srd(p, SRD_K, 10, 11, 2048 * 896)
    emit_red_pre(p, S_W, S_PB, S_J, SRD_W, SRD_K)
    p(f"""
    s_lshl_b32 s14, {s(S_PB)}, 7
    s_add_u32 s14, s14, {WS_FLAG}
    """)
    signal(p, SRD_W, 14, S_W, "r" + name, vt=10, keys=[("PT", 0)])
    stamp(p, 5)
    emit_red(p, S_W, S_PB, SRD_W, 163840 - 512, after_loads=flat(zfill(0, 1)))
    W4 = s(SRD_W, 4)
    ZACC = 128
    NRZ = 16
    A_H = 0
    A_FZ = 64
    VB = 16; RS = 48; VDB = 64; VRB = 72; Z1 = 80; GACC = 128
    RA = 6; A_A = 0; A_MU = 168; PB0 = 131072
    p(f"""
    s_lshr_b32 s15, {s(S_J)}, 1
    s_lshl_b32 s15, s15, 5
    s_add_u32 s14, s14, s15
    s_add_u32 s14, s14, 4096
    v_and_b32 v1, 63, v0
    v_lshlrev_b32 v2, 4, v1
    v_and_b32 v3, 15, v0                 ; n
    v_bfe_u32 v8, v0, 4, 2               ; g
    s_lshl_b32 s58, s33, 2
    s_add_u32 s58, s58, {s(S_W)}
    s_mul_i32 s4, s58, {14*1024}
    s_add_u32 s4, s4, {WS_H2}
    s_add_u32 s5, s4, 4096
    s_add_u32 s12, s4, 8192
    s_add_u32 s13, s4, 12288
    v_lshrrev_b32 v9, 2, v1
    v_mul_u32_u24 v9, 224, v9
    v_and_b32 v12, 3, v0
    v_lshl_add_u32 v12, v12, 3, v9
    v_add_u32 v13, {4*SLOT}, v12
    v_add_u32 v14, {8*SLOT}, v12
    v_mov_b32 v15, 0
    s_lshl_b32 s15, s33, 7
    s_lshl_b32 s50, {s(S_W)}, 5
    s_add_u32 s15, s15, s50
    s_add_u32 s15, s15, {WS_FLAG + 4096}
    """)
    signal(p, SRD_W, 14, S_W, "z" + name, vt=48)
    stamp(p, 7)
    srd(p, SRD_V, 6, 7, 2048 * 4096 + 4096)
    p(f"""
    s_sub_u32 {s(SRD_V)}, {s(SRD_V)}, 4096
    s_subb_u32 {s(SRD_V+1)}, {s(SRD_V+1)}, 0
    s_mov_b32 s50, s32
    s_mov_b32 s51, s33
    v_lshrrev_b32 v9, 3, v1
    v_lshlrev_b32 v9, 12, v9
    v_and_b32 v4, 7, v0
    v_xor_b32 v4, v4, v8
    v_lshl_add_u32 v4, v4, 4, v9
    v_xor_b32 v5, 64, v4
    """)
    for m in range(8):
        nl = m // 2
        if m % 2 == 0:
            p(f"s_add_u32 s52, {s(S_W)}, {nl}")
            p(f"s_and_b32 s52, s52, 3")
            p(f"s_lshl_b32 s52, s52, 16")
        p(f"s_add_u32 s53, s52, {(m % 2)*32768 + 4096 - (m % 4)*1024}")
        p(f"v_add_u32 v{VDB+m}, s53, v{4 + m % 2}")
    p(f"""
    s_lshl_b32 s52, s51, 18
    s_lshl_b32 s53, {s(S_W)}, 10
    s_add_u32 s52, s52, s53
    s_lshl_b32 s54, s50, 6
    s_lshl_b32 s53, {s(S_W)}, 4
    s_add_u32 s54, s54, s53
    s_mul_i32 s54, s54, 7168
    s_add_u32 s54, s54, {WS_ZZ}
    s_add_u32 s55, s54, 4096
    s_lshl_b32 s53, {s(S_W)}, 15
    v_mov_b32 v4, {f2u(C2)}
    v_mov_b32 v6, {f2u(C1)}
    s_lshl_b32 s38, s50, 6
    s_lshr_b32 s39, s58, 1
    s_add_u32 s38, s38, s39
    s_mul_i32 s38, s38, 7168
    s_and_b32 s39, s58, 1
    s_lshl_b32 s39, s39, 9
    s_add_u32 s38, s38, s39
    s_add_u32 s38, s38, {WS_ZZ}
    s_add_u32 s39, s38, 4096
    v_and_b32 v10, 1, v8
    v_lshlrev_b32 v10, 10, v10           ; (g%2)*1024 : second tile of the pair
    v_lshrrev_b32 v11, 1, v8
    v_lshl_add_u32 v10, v11, 8, v10      ; + (g/2)*256
    v_lshl_add_u32 v10, v3, 4, v10       ; + n*16
    v_lshlrev_b32 v11, 20, v10
    v_and_b32 v11, 0x40000000, v11
    v_or_b32 v11, v11, v10
    """)
    ALLS = [(k, 400) for k in range(9)]
    def bdma(dd, half, first=False):
        pre = [I(f"s_add_u32 m0, s53, {(dd % 4)*8192 + half*4096}")]
        tg = ("dma", [(f"B{dd % 4}", dd)] + ALLS) if first else ("dma", (f"B{dd % 4}", dd), "private")
        out = [I(f"buffer_load_dwordx4 v{VDB+4*half+k}, {s(SRD_V,4)}, s52 offen offset:{k*1024} lds", tag=tg) for k in range(4)]
        post = [I("s_add_u32 s52, s52, 128")] if half else []
        return pre, out, post
    LEADZ = 6
    def zreads(z1):
        rds = []
        for u in range(14):
            rnd = u // 4
            ab = ZBASE[z1][rnd] + (u % 4) * 7168
            base, off = (12, ab) if ab < 4 * SLOT else (13, ab - 4 * SLOT) if ab < 8 * SLOT else (14, ab - 8 * SLOT)
            for ft in range(7):
                f = u * 7 + ft + 98 * z1
                rds.append([I(f"ds_read_b64_tr_b16 {a(A_FZ + 4*(f % NRZ) + 2*e, 2)}, v{base} offset:{off + e*3584 + 32*ft}",
                              tag=("rd", ZKEYS[z1][rnd])) for e in range(2)])
        return rds
    def zgemm(z1, rds, acc, hook=None):
        for g in range(98):
            if hook and g == hook[0]:
                hook[1]()
            u, ft = g // 7, g % 7
            f = g + 98 * z1
            D = v(acc + 4*ft, 4)
            Wf = a(A_FZ + 4*(f % NRZ), 4)
            H = a(A_H + 4*u, 4)
            C = D if u else "0"
            p(f"v_mfma_f32_16x16x32_bf16 {D}, {Wf}, {H}, {C}" if z1 else f"v_mfma_f32_16x16x32_bf16 {D}, {H}, {Wf}, {C}")
            if g + 1 < 98 and (g % 2 == 1 or ft == 6):
                ex = f", {a(A_H + 4*(u+1), 4)}" if ft >= 5 and u < 13 else ""
                p(f"WAITFOR {a(A_FZ + 4*((f+1) % NRZ), 4)}, {a(A_FZ + 4*((f+2) % NRZ), 4)}{ex}")
            if g + LEADZ < 98:
                p.extend(rds[g + LEADZ])
    rz = zreads(0)
    for x in rz[:LEADZ]:
        p.extend(x)
    poll(p, SRD_W, 15, 15, 48, "z" + name, 56, 2)
    stamp(p, 8)
    for u in range(14):
        p(f"buffer_load_dwordx4 {a(A_H+4*u,4)}, v2, {W4}, s{[4,5,12,13][u//4]} offen offset:{(u % 4)*1024}{LD}")
    zgemm(0, rz, ZACC)
    p("s_barrier")
    stamp(p, 9)
    def interleave(gl, bl):
        step = max(1, len(gl) // len(bl))
        for k, x in enumerate(gl):
            if k % step == 0 and bl:
                p.extend(bl.pop(0))
            p(x)
        for x in bl:
            p.extend(x)
    def groups(gs):
        out = []
        for pre, o, post in gs:
            for k, x in enumerate(o):
                out.append((pre if k == 0 else []) + [x] + (post if k == len(o) - 1 else []))
        return out
    gp = Prog("tmp")
    gelu_pairs(gp, [ZACC + 2*k for k in range(14)], 24)
    interleave(gp.items, groups(zfill(1, 1) + zfill(2, 1) + zfill(3, 1)))
    for k in range(0, 4, 2):
        p(f"v_pk_add_f32 {v(32+k,2)}, {v(ZACC+k,2)}, {v(ZACC+4+k,2)}")
        p(f"v_pk_mul_f32 {v(36+k,2)}, {v(ZACC+k,2)}, {v(ZACC+k,2)}")
    for ft in range(1, 7):
        for k in range(0, 4, 2):
            if ft >= 2:
                p(f"v_pk_add_f32 {v(32+k,2)}, {v(32+k,2)}, {v(ZACC+4*ft+k,2)}")
            p(f"v_pk_fma_f32 {v(36+k,2)}, {v(ZACC+4*ft+k,2)}, {v(ZACC+4*ft+k,2)}, {v(36+k,2)}")
    zt = ("wr", ("ZZ", 0), "private")
    for pr in range(4):
        X = ZACC + 8*pr
        for k in range(4):
            sx = X + 2*k if pr < 3 else X + 2*(k % 2)
            p(f"v_cvt_pk_bf16_f32 v{40+4*(pr % 2)+k}, v{sx}, v{sx+1}")
        Y = 40 + 4*(pr % 2)
        p(f"v_permlane16_swap_b32 v{Y}, v{Y+2}")
        p(f"v_permlane16_swap_b32 v{Y+1}, v{Y+3}")
        p(f"buffer_store_dwordx4 {v(Y,4)}, v{10 if pr < 3 else 11}, {W4}, s{38 + pr//2} offen offset:{(pr % 2)*2048} sc1", tag=zt)
    for sh in (8, 4, 2, 1):
        for k in range(8):
            p(f"v_add_f32_dpp v{32+k}, v{32+k}, v{32+k} row_ror:{sh} row_mask:0xf bank_mask:0xf")
    p("v_mov_b32 v24, v32")
    for n in range(1, 8):
        srcr = 32 + n // 2 + 4 * (n % 2)
        p(f"v_cmp_eq_u32 vcc, {n}, v3")
        p(f"v_cndmask_b32 v24, v24, v{srcr}, vcc")
    p(f"""
    v_lshlrev_b32 v9, 5, v8
    v_lshl_add_u32 v9, v3, 2, v9
    v_lshlrev_b32 v25, 27, v3
    v_and_b32 v25, 0x40000000, v25
    v_or_b32 v9, v9, v25
    s_lshl_b32 s38, s58, 7
    s_add_u32 s38, s38, {WS_STATS}
    """)
    p(f"buffer_atomic_add_f32 v24, v9, {W4}, s38 offen sc1", tag=zt)
    rz = zreads(1)
    for x in rz[:LEADZ]:
        p.extend(x)
    p(I("WAITTAG", tag=ZKEYS[1][1] + ZKEYS[1][2] + ZKEYS[1][3]))
    p("s_barrier")
    Z1ACC = 160
    p(f"""
    s_lshl_b32 s14, {s(S_PB)}, 7
    s_add_u32 s14, s14, {WS_FLAG + 8192}
    s_mov_b32 s15, {WS_FLAG + 8192}
    """)
    def sig_g():
        signal(p, SRD_W, 14, S_W, "g" + name, vt=48)
        stamp(p, 10)
    zgemm(1, rz, Z1ACC, hook=(opts.get("sigg", 35), sig_g))
    p("s_barrier")
    NB0 = opts.get("nb0", 4)
    gp = Prog("tmp")
    gelu_pairs(gp, [Z1ACC + 2*k for k in range(14)], 96)
    for k in range(14):
        gp(f"v_cvt_pk_bf16_f32 v{Z1+k}, v{Z1ACC+2*k}, v{Z1ACC+2*k+1}")
    interleave(gp.items, groups([bdma(dd, hf, first=True) for dd in range(NB0) for hf in range(2)]))
    p("s_load_dwordx2 s[4:5], s[0:1], 64")
    p("s_load_dwordx2 s[6:7], s[0:1], 96")
    p(f"""
    v_lshlrev_b32 v10, 6, v1
    s_lshl_b32 s34, {s(S_W)}, 12
    s_add_u32 s35, s34, {WS_STATS}
    s_add_u32 s34, s34, {PB0}
    v_lshlrev_b32 v12, 5, v1
    v_add_u32 v12, s34, v12
    v_add_u32 v13, s34, v2
    v_lshlrev_b32 v14, 5, v8
    v_add_u32 v14, s34, v14
    v_and_b32 v15, 1, v0
    v_lshlrev_b32 v15, 10, v15
    v_lshl_add_u32 v15, v8, 4, v15
    v_add_u32 v15, s34, v15
    v_lshrrev_b32 v9, 1, v3
    v_xor_b32 v9, v9, v8
    v_lshlrev_b32 v9, 4, v9
    v_lshl_add_u32 v9, v3, 7, v9
    v_add_u32 v{VRB}, s53, v9
    v_xor_b32 v{VRB+1}, 64, v{VRB}
    v_mov_b32 v11, {f2u(1e-5)}
    s_waitcnt lgkmcnt(0)
    """)
    srd(p, SRD_K, 4, 5, 4096)
    srd(p, SRD_O, 8, 9, 896 * 896)
    srd(p, SRD_Q, 6, 7, 2048 * 896)
    def b_reads(ks):
        dd = ks // 2
        return [I(f"ds_read_b128 {v(VB + 16*(ks % 2) + 4*nl, 4)}, v{VRB + ks % 2} offset:{(dd % 4)*8192 + nl*2048}",
                  tag=("rd", (f"B{dd % 4}", dd), "private")) for nl in range(4)]
    p("v_and_b32 v49, 31, v0")
    p("v_lshlrev_b32 v49, 7, v49")
    poll(p, SRD_W, 15, 49, 48, "g" + name, 56, 8)
    p.extend(b_reads(0))
    stamp(p, 11)
    if opts.get("gst"): stamp(p, 0)
    ST = GACC
    for k in range(4):
        p(f"buffer_load_dwordx4 {v(ST+4*k,4)}, v10, {W4}, s35 offen offset:{16*k} sc1")
    def aload(ks):
        out = [I(f"buffer_load_dwordx4 {a(A_A + 28*(ks % RA) + 4*mt, 4)}, v2, {W4}, s{54 + mt//4} offen offset:{(mt % 4)*1024}{LD}")
               for mt in range(7)]
        post = [I("s_add_u32 s54, s54, 7168"), I("s_add_u32 s55, s55, 7168")]
        return out, post
    NA0 = opts.get("na0", 2)
    for ks in range(NA0):
        o, post = aload(ks); p.extend(o); p.extend(post)
    MU = GACC + 16; R = GACC + 24; T = GACC + 64
    for k in range(8):
        p(f"v_mul_f32 v{MU+k}, {f2u(1.0/896)}, v{ST+2*k}")
        p(f"v_mul_f32 v{R+k}, {f2u(1.0/896)}, v{ST+2*k+1}")
        p(f"v_fma_f32 v{R+k}, -v{MU+k}, v{MU+k}, v{R+k}")
        p(f"v_max_f32 v{R+k}, 0, v{R+k}")
        p(f"v_add_f32 v{R+k}, v11, v{R+k}")
        p(f"v_rsq_f32 v{R+k}, v{R+k}")
    tg = ("wr", ("P", 0), "private")
    p(f"ds_write_b128 v12, {v(R,4)}", tag=tg)
    p(f"ds_write_b128 v12, {v(R+4,4)} offset:16", tag=tg)
    for k in range(4):
        p(f"v_cvt_pk_bf16_f32 v{T+k}, v{MU+2*k}, v{MU+2*k+1}")
        p(f"v_lshlrev_b32 v4, 16, v{T+k}")
        p(f"v_and_b32 v5, 0xffff0000, v{T+k}")
        p(f"v_sub_f32 v4, v{MU+2*k}, v4")
        p(f"v_sub_f32 v5, v{MU+2*k+1}, v5")
        p(f"v_cvt_pk_bf16_f32 v{T+4+k}, v4, v5")
    p(f"ds_write_b128 v13, {v(T,4)} offset:2048", tag=tg)
    p(f"ds_write_b128 v13, {v(T+4,4)} offset:3072", tag=tg)
    o, post = aload(NA0); p.extend(o); p.extend(post)
    p("s_waitcnt lgkmcnt(0)")
    rt = ("rd", ("P", 0), "private")
    def rs_reads(ks):
        return [I(f"ds_read_b128 {v(RS + 8*(ks % 2) + 4*h, 4)}, v14 offset:{128*ks + 16*h}", tag=rt) for h in range(2)]
    def mu_read(ks):
        return I(f"ds_read_b128 {a(A_MU + 4*(ks % 2), 4)}, v15 offset:{2048 + 64*ks}", tag=rt)
    def scale(ks, pk=False):
        out = []
        for nl in range(4):
            for d in range(4):
                x = VB + 16*(ks % 2) + 4*nl + d
                t = 4 + 2 * (d % 4)
                r = RS + 8*(ks % 2) + 2*d
                out.append(I(f"v_lshlrev_b32 v{t}, 16, v{x}"))
                out.append(I(f"v_and_b32 v{t+1}, 0xffff0000, v{x}"))
                if pk:
                    out.append(I(f"v_pk_mul_f32 {v(t,2)}, {v(t,2)}, {v(r,2)}"))
                else:
                    out.append(I(f"v_mul_f32 v{t}, v{t}, v{r}"))
                    out.append(I(f"v_mul_f32 v{t+1}, v{t+1}, v{r+1}"))
                out.append(I(f"v_cvt_pk_bf16_f32 v{x}, v{t}, v{t+1}"))
        return out
    p.extend(rs_reads(0)); p.extend(rs_reads(1)); p(mu_read(0))
    p.extend(scale(0, True))
    nexta = NA0 + 1
    nextb = 2 * NB0
    for ks in range(16):
        if opts.get("gst") and ks in (0, 4, 8, 12):
            stamp(p, 1 + ks // 4)
        SC = [[] for _ in range(33)]
        VE = [[] for _ in range(32)]
        kind = ["m"] * 32
        vm = []
        budget = opts.get("gbud", 11)
        def addb():
            nonlocal nextb, budget
            pre, o, post = bdma(nextb // 2, nextb % 2); nextb += 1; budget -= 4
            vm.extend([(pre if k == 0 else [], x, post if k == 3 else []) for k, x in enumerate(o)])
        def adda():
            nonlocal nexta, budget
            o, post = aload(nexta); nexta += 1; budget -= 7
            vm.extend([([], x, post if k == 6 else []) for k, x in enumerate(o)])
        while True:
            canb = nextb < 16 and nextb <= ks + 6 and budget >= 4
            cana = nexta < 16 and nexta <= ks + opts.get("glead", 3) and budget >= 7
            if canb and (not cana or budget >= 11):
                addb()
            elif cana:
                adda()
            else:
                break
        if ks == 13:
            p(f"""
            s_lshl_b32 s35, s58, 5
            v_lshlrev_b32 v12, 1, v3
            """)
            vm += [([], I(f"buffer_load_ushort v{Z1+14}, v12, {s(SRD_K,4)}, s35 offen"), [])]
        for k, (pre, x, post) in enumerate(vm):
            g = 3 + 2 * k if len(vm) > 11 else 6 + (k * 24) // 11
            kind[g] = "d"; VE[g] = [x]
            SC[g - 1] += pre
            SC[g + 1] += post
        mg = [g for g in range(32) if kind[g] == "m"]
        if ks + 1 < 16:
            if (ks + 1) % 2 == 0:
                SC[0].append(I("WAITTAG", tag=[(f"B{((ks+1)//2) % 4}", (ks+1)//2)]))
            br = b_reads(ks + 1) + [mu_read(ks + 1)] + (rs_reads(ks + 2) if ks + 2 < 16 else [])
            for k, x in enumerate(br):
                VE[mg[k]].append(x)
            ops = scale(ks + 1)
            mv = mg[4:]
            for k, x in enumerate(ops):
                VE[mv[(k * len(mv)) // len(ops)]].append(x)
            SC[mg[-1]].append(I(f"WAITFOR {a(A_A + 28*((ks+1) % RA), 28)}, {a(A_MU + 4*((ks+1) % 2), 4)}"))
        for g in range(32):
            mt, nl = g // 4, g % 4
            D = v(GACC + 16*mt + 4*nl, 4)
            Aop = a(A_A + 28*(ks % RA) + 4*mt, 4) if mt < 7 else a(A_MU + 4*(ks % 2), 4)
            p(f"v_mfma_f32_16x16x32_bf16 {D}, {Aop}, {v(VB + 16*(ks % 2) + 4*nl, 4)}, {D if ks else 0}")
            for x in SC[g] + VE[g]:
                p(x)
            if ks == 15:
                if g == 0:
                    p("v_add_u32 v4, s53, v2")
                g2 = g - 8
                if g2 >= 0 and g2 % 4:
                    p(f"ds_write_b128 v4, {v(GACC + 16*(g2//4) + 4*(g2 % 4), 4)} offset:{(g2 % 4 - 1)*8192 + (g2//4)*1024}", tag=("wr", ("X", 0)))
        assert not SC[32]
    assert nexta == 16 and nextb == 16
    stamp(p, 12)
    if opts.get("gst"): stamp(p, 5)
    for nl in range(1, 4):
        p(f"s_sub_u32 s34, {s(S_W)}, {nl}")
        p(f"s_and_b32 s34, s34, 3")
        p(f"s_lshl_b32 s34, s34, 15")
        p(f"v_add_u32 v{4+nl}, s34, v2")
    for mt in range(6, 8):
        for nl in range(1, 4):
            p(f"ds_write_b128 v4, {v(GACC + 16*mt + 4*nl, 4)} offset:{(nl-1)*8192 + mt*1024}", tag=("wr", ("X", 0)))
    p("s_waitcnt lgkmcnt(0)")
    if opts.get("gst"): stamp(p, 6)
    p("s_barrier")
    if opts.get("gst"): stamp(p, 7)
    for mt in (7, 0, 1, 2, 3, 4, 5, 6):
        for nl in range(1, 4):
            p(f"ds_read_b128 {v(GACC + 16*mt + 4*nl, 4)}, v{4+nl} offset:{(nl-1)*8192 + mt*1024}", tag=("rd", ("X", 0)))
    p(f"""
    s_mul_i32 s34, s58, {28*1024}
    s_add_u32 s34, s34, {WS_U}
    s_mul_i32 s35, s50, 7
    s_add_u32 s36, s35, 1
    s_lshr_b32 s36, s36, 1
    s_lshl_b32 s36, s36, 10
    s_add_u32 s36, s36, s34
    s_and_b32 s37, s50, 1
    s_mul_i32 s37, s37, 4088
    s_sub_u32 s37, s36, s37
    s_add_u32 s37, s37, 3072
    v_lshlrev_b32 v{Z1+14}, 16, v{Z1+14}
    """)
    def red(mt, n=2):
        X = GACC + 16*mt
        for h in range(n):
            p(f"v_pk_add_f32 {v(X+2*h,2)}, {v(X+2*h,2)}, {v(X+4+2*h,2)}")
            p(f"v_pk_add_f32 {v(X+8+2*h,2)}, {v(X+8+2*h,2)}, {v(X+12+2*h,2)}")
        for h in range(n):
            p(f"v_pk_add_f32 {v(X+2*h,2)}, {v(X+2*h,2)}, {v(X+8+2*h,2)}")
    red(7, 1)
    X7 = GACC + 112
    p(f"v_sub_f32 v8, v{Z1+14}, v{X7}")
    p(f"v_sub_f32 v8, v8, v{X7+1}")
    for ft in range(7):
        red(ft)
        X = GACC + 16*ft
        for h in range(2):
            p(f"v_pk_add_f32 {v(X+2*h,2)}, {v(X+2*h,2)}, v[8:9] op_sel_hi:[1,0]")
            p(f"v_lshlrev_b32 v{10+2*h}, 16, v{Z1+2*ft+h}")
            p(f"v_and_b32 v{11+2*h}, 0xffff0000, v{Z1+2*ft+h}")
            p(f"v_pk_mul_f32 {v(X+2*h,2)}, {v(X+2*h,2)}, {v(10+2*h,2)}")
        Y = GACC + 16*(ft & ~1) + 4 + 2*(ft % 2)
        p(f"v_cvt_pk_bf16_f32 v{Y}, v{X}, v{X+1}")
        p(f"v_cvt_pk_bf16_f32 v{Y+1}, v{X+2}, v{X+3}")
        if ft % 2 == 1:
            p(f"buffer_store_dwordx4 {v(Y-2,4)}, v2, {W4}, s36 offen offset:{(ft//2)*1024} sc1", tag=("wr", ("U", 0), "private"))
        if ft == 6:
            p(f"buffer_store_dwordx2 {v(Y,2)}, v2, {W4}, s37 offen sc1", tag=("wr", ("U", 0), "private"))
    if opts.get("gst"): stamp(p, 8)
    p("s_barrier")
    OACC = 64; A_B = 0; A_FO = 112; NRO = 8
    p(f"""
    s_lshl_b32 s33, {s(S_J)}, 2
    s_and_b32 s15, {s(S_PB)}, 3
    s_add_u32 s33, s33, s15              ; tb'
    s_lshr_b32 s32, {s(S_PB)}, 2         ; cb
    v_lshrrev_b32 v3, 3, v1
    v_mul_u32_u24 v3, 896, v3
    v_bfe_u32 v8, v0, 4, 2
    v_lshlrev_b32 v9, 1, v8
    v_and_b32 v10, 7, v0
    v_xor_b32 v9, v9, v10
    v_lshl_add_u32 v4, v9, 4, v3
    v_add_u32 v5, {7168-1024}, v4
    v_add_u32 v6, {2*(7168-1024)}, v4
    v_add_u32 v7, {3*(7168-1024)}, v4
    s_mul_i32 s34, {s(S_W)}, {224*896}
    s_lshl_b32 s35, s32, 7
    s_add_u32 s34, s34, s35
    s_lshl_b32 s14, s51, 7
    s_add_u32 s14, s14, {WS_FLAG + 12288}
    """)
    NW0 = opts.get("nw0", 3)
    def wdma(ks):
        p(f"s_add_u32 m0, s53, {ks*4096}")
        for k in range(4):
            p(f"buffer_load_dwordx4 v{4+k}, {s(SRD_O,4)}, s34 offen offset:{k*1024} lds", tag=("dma", [(f"W{ks}", 0), ("X", 1)]))
        p(f"s_add_u32 s34, s34, {4*7168}")
    for ks in range(NW0):
        wdma(ks)
    signal(p, SRD_W, 14, S_W, "o" + name, vt=48, keys=[("U", 0)])
    stamp(p, 13)
    if opts.get("gst"): stamp(p, 9)
    p(f"s_cmp_ge_u32 {s(S_PB)}, 28")
    p(f"s_cbranch_scc1 L_end{name}")
    for ks in range(NW0, 7):
        wdma(ks)
    X1 = 16; GB = 24
    for nl in range(4):
        p(f"s_add_u32 s36, {s(S_W)}, {nl}")
        p(f"s_and_b32 s36, s36, 3")
        p(f"s_lshl_b32 s37, s33, 2")
        p(f"s_add_u32 s36, s36, s37")
        p(f"s_mul_i32 s36, s36, {28*1024}")
        p(f"s_mul_i32 s37, {s(S_W)}, 7168")
        p(f"s_add_u32 s36, s36, s37")
        p(f"s_add_u32 s{4+nl}, s36, {WS_U}")
        p(f"s_add_u32 s{8+nl}, s{4+nl}, 4096")
    p(f"""
    s_lshl_b32 s36, s33, 2
    s_add_u32 s36, s36, {s(S_W)}
    s_mul_i32 s37, s36, {14*1024}
    s_lshl_b32 s38, s32, 11
    s_add_u32 s37, s37, s38
    s_add_u32 s37, s37, {WS_X1}
    buffer_load_dwordx4 {v(X1,4)}, v2, {W4}, s37 offen sc1
    buffer_load_dwordx4 {v(X1+4,4)}, v2, {W4}, s37 offen offset:1024 sc1
    v_lshlrev_b32 v9, 4, v8
    s_lshl_b32 s38, s32, 8
    s_add_u32 s38, s38, {WS_MOD + 5*1792}
    """)
    for ct in range(4):
        p(f"buffer_load_dwordx4 {v(GB+4*ct,4)}, v9, {W4}, s38 offen offset:{64*ct} sc1")
    p(f"""
    v_lshrrev_b32 v3, 2, v1
    v_lshlrev_b32 v3, 7, v3
    v_bfe_u32 v10, v0, 3, 2
    v_lshl_add_u32 v3, v10, 5, v3
    v_and_b32 v10, 3, v0
    v_lshl_add_u32 v3, v10, 3, v3
    v_add_u32 v12, s53, v3
    v_xor_b32 v13, 32, v12
    v_xor_b32 v14, 64, v12
    v_xor_b32 v15, 0x60, v12
    v_mov_b32 v10, 0
    s_lshl_b32 s15, s33, 7
    s_add_u32 s15, s15, {WS_FLAG + 12288}
    """)
    poll(p, SRD_W, 15, 10, 48, "o" + name, 56, 8)
    stamp(p, 14)
    ul = [I(f"buffer_load_dwordx4 {a(A_B + 16*ks + 4*nl, 4)}, v2, {W4}, s{4 + nl + 4*(ks//4)} offen offset:{(ks % 4)*1024}{LD}")
          for ks in range(7) for nl in range(4)]
    p.extend(ul[:16]); ul = ul[16:]
    def rd(f):
        ks, ct = f // 4, f % 4
        return [I(f"ds_read_b64_tr_b16 {a(A_FO + 4*(f % NRO) + 2*e, 2)}, v{12+ct} offset:{ks*4096 + e*2048}",
                  tag=("rd", (f"W{ks}", 0), "private")) for e in range(2)]
    PFO = 4
    for f in range(PFO):
        p.extend(rd(f))
    for f in range(28):
        ks, ct = f // 4, f % 4
        nx = f + PFO
        for nl in range(4):
            D = v(OACC + 16*ct + 4*nl, 4)
            p(f"v_mfma_f32_16x16x32_bf16 {D}, {a(A_FO + 4*(f % NRO), 4)}, {a(A_B + 16*ks + 4*nl, 4)}, {D if ks else 0}")
            if nx < 28 and nl < 2:
                p(rd(nx)[nl])
            if nl == 2 and ul:
                p(ul.pop(0))
            if nl == 3 and f + 1 < 28:
                p(f"WAITFOR {a(A_FO + 4*((f+1) % NRO), 4)}, {a(A_B + 16*((f+1)//4), 16)}")
    p("v_add_u32 v4, s53, v2")
    for nl in range(1, 4):
        p(f"s_sub_u32 s36, {s(S_W)}, {nl}")
        p(f"s_and_b32 s36, s36, 3")
        p(f"s_lshl_b32 s36, s36, 15")
        p(f"v_add_u32 v{4+nl}, s36, v2")
    for ct in range(4):
        for nl in range(1, 4):
            p(f"ds_write_b128 v4, {v(OACC + 16*ct + 4*nl, 4)} offset:{(nl-1)*4096 + ct*1024}", tag=("wr", ("Y", 0)))
    p("s_waitcnt lgkmcnt(0)")
    p("s_barrier")
    for ct in range(4):
        for nl in range(1, 4):
            p(f"ds_read_b128 {v(OACC + 16*ct + 4*nl, 4)}, v{4+nl} offset:{(nl-1)*4096 + ct*1024}", tag=("rd", ("Y", 0)))
    p(f"""
    v_and_b32 v3, 15, v0
    v_mul_u32_u24 v3, 896, v3
    v_lshl_add_u32 v3, v8, 4, v3
    s_lshl_b32 s36, s33, 2
    s_add_u32 s36, s36, {s(S_W)}
    s_mul_i32 s36, s36, {16*896}
    s_lshl_b32 s37, s32, 7
    s_add_u32 s36, s36, s37
    """)
    for ct in range(4):
        X = OACC + 16*ct
        for h in range(2):
            p(f"v_pk_add_f32 {v(X+2*h,2)}, {v(X+2*h,2)}, {v(X+4+2*h,2)}")
            p(f"v_pk_add_f32 {v(X+8+2*h,2)}, {v(X+8+2*h,2)}, {v(X+12+2*h,2)}")
        for h in range(2):
            p(f"v_pk_add_f32 {v(X+2*h,2)}, {v(X+2*h,2)}, {v(X+8+2*h,2)}")
            p(f"v_lshlrev_b32 v{10}, 16, v{X1+2*ct+h}")
            p(f"v_and_b32 v{11}, 0xffff0000, v{X1+2*ct+h}")
            p(f"v_pk_fma_f32 {v(X+2*h,2)}, {v(X+2*h,2)}, {v(GB+4*ct+2*h,2)}, v[10:11]")
        k, odd = ct // 2, ct % 2
        O = 40 + 4*k + 2*odd
        p(f"v_cvt_pk_bf16_f32 v{O}, v{X}, v{X+1}")
        p(f"v_cvt_pk_bf16_f32 v{O+1}, v{X+2}, v{X+3}")
        if odd:
            O = 40 + 4*k
            p(f"v_permlane32_swap_b32 v{O}, v{O+2}")
            p(f"v_permlane32_swap_b32 v{O+1}, v{O+3}")
            p(f"v_permlane16_swap_b32 v{O}, v{O+2}")
            p(f"v_permlane16_swap_b32 v{O+1}, v{O+3}")
            p(f"buffer_store_dwordx4 {v(O,4)}, v3, {s(SRD_Q,4)}, s36 offen offset:{64*k}")
    k_prep.STAMP["on"] = son
    stamp_dump(p, opts.get("slot", 1), NSTAMP, SRD_W, S_W)
    p(f"L_end{name}:")
    p("s_endpgm")
    p.finalize()
    return p


def gen_mega(opts=None):
    p0 = build_mega(opts or {})
    if (opts or {}).get("plain"):
        return p0, "; @launch grid=(256,1,1) block=(256,1,1) lds=163840\n"
    return p0, f"; @launch kernel={p0.name} grid=(256,1,1) block=(256,1,1) lds=163840\n"
```

```python
import sys
sys.path.insert(0, "work")
from k_attn import *
from k_z import gelu_pairs, C1, C2
from k_prep import LOG2E, QSCALE, xreduce
NSTAMP = 16

def build_mega(opts):
    opts = opts or {}
    name = opts.get("name", "adaLN_cond__gqa_block_cached__mixer_gmlp__prompt_kernel")
    p = Prog(name)
    at = Attn(opts)
    LD = opts.get("ld", " sc1")
    thr = opts.get("thr", 0x5f800000)
    SRD_D = 92
    p(f"""
    s_cmp_ge_u32 s2, 256
    s_cbranch_scc1 L_end{name}
    s_load_dwordx4 s[52:55], s[0:1], 80
    s_load_dwordx2 s[50:51], s[0:1], 0
    s_load_dwordx8 s[4:11], s[0:1], 8
    s_load_dwordx4 s[56:59], s[0:1], 104
    v_lshrrev_b32 v1, 6, v0
    v_readfirstlane_b32 {s(S_W)}, v1
    s_and_b32 {s(S_J)}, s2, 7
    s_lshr_b32 {s(S_PB)}, s2, 3
    v_and_b32 v1, 63, v0
    v_lshlrev_b32 {v(V_LIN)}, 4, v1
    s_lshr_b32 {s(S_HD)}, {s(S_W)}, 1
    s_and_b32 s14, {s(S_W)}, 1
    s_lshl_b32 {s(S_QT)}, {s(S_PB)}, 2
    s_lshl_b32 s14, s14, 1
    s_add_u32 {s(S_QT)}, {s(S_QT)}, s14
    v_mov_b32 v2, 0x40000000
    v_cmp_gt_u32 vcc, 56, v1
    v_cndmask_b32 v19, v2, {v(V_LIN)}, vcc
    v_add_u32 v18, 144, v19
    v_add_u32 v17, 288, v19
    v_add_u32 v16, 432, v19
    s_lshl_b32 s14, {s(S_PB)}, 2
    s_add_u32 s14, s14, {s(S_W)}
    s_mul_i32 s14, s14, {16*896}            ; x soffset
    s_mul_i32 s15, {s(S_W)}, {SLOT}
    s_add_u32 s15, s15, {4*SLOT}
    s_waitcnt lgkmcnt(0)
    """)
    stamp(p, 0)
    srd(p, SRD_W, 58, 59, WS_USED)
    srd(p, SRD_D, 56, 57, 256)
    srd(p, SRD_V, 54, 55, 448 * 5376)
    srd(p, SRD_O, 52, 53, 896)
    srd(p, SRD_K, 50, 51, 2048 * 896 + 432)
    p(f"""
    s_sub_u32 {s(SRD_K)}, {s(SRD_K)}, 432
    s_subb_u32 {s(SRD_K+1)}, {s(SRD_K+1)}, 0
    v_lshlrev_b32 v188, 2, v0
    v_mov_b32 v189, 0
    s_mov_b32 s31, 0
    v_mov_b32 v124, 1
    v_mov_b32 v125, 1
    v_mov_b32 v126, 0
    s_cmp_ge_u32 s2, 84
    s_cbranch_scc1 L_mod1r{name}
    """)
    MW = 128; MC = 160; MA = 176; MT = 184
    def raw(txt):
        x = I(txt); x.kind = "salu"; x.writes = []; return x
    p(f"""
    v_and_b32 v{MT}, 3, v0
    v_lshrrev_b32 v{MT+1}, 2, v0
    v_mul_u32_u24 v{MT+2}, 14, v{MT+1}
    v_mul_u32_u24 v{MT+3}, {7*5376}, v{MT+1}
    v_lshl_add_u32 v{MT+3}, v{MT}, 4, v{MT+3}
    s_lshl_b32 s12, s2, 6
    v_and_b32 v{MT+2}, -4, v{MT+2}
    s_sub_u32 s13, s2, 40
    s_lshl_b32 s13, s13, 10
    s_add_u32 s13, s13, {WS_STATS}
    s_sub_u32 s31, s2, 40
    s_cmp_ge_u32 s31, 32
    s_cselect_b32 s13, 0x40000000, s13
    """)
    for i in range(7):
        p(raw(f"buffer_load_dwordx4 {v(MW+4*i,4)}, v{MT+3}, {s(SRD_V,4)}, s12 offen"))
        if i < 6:
            p(f"s_add_u32 s12, s12, 5376")
    p(raw(f"buffer_load_dwordx4 {v(MC+8,4)}, v{MT+2}, {s(SRD_O,4)}, 0 offen"))
    p(raw(f"buffer_store_dword v{MT+5}, v{MT+4}, {s(SRD_W,4)}, s13 offen sc1"))
    p(f"L_mod1r{name}:")
    XK = [(4, -1), (5, -1), (6, -1), (7, -1)]
    NX0 = opts.get("nx0", 8)
    def xdma(ms):
        for m in ms:
            if m % 4 == 0:
                p(f"s_add_u32 m0, s15, {m*1040}")
            p(f"buffer_load_dwordx4 v{16 + m % 4}, {s(SRD_K,4)}, s14 offen offset:{(m % 4)*1040} lds", tag=("dma", XK))
            if m % 4 == 3:
                p(f"s_add_u32 s14, s14, {4*896}")
    xdma(range(NX0))
    p(f"""
    s_cmp_ge_u32 s2, 84
    s_cbranch_scc1 L_mod2r{name}
    s_mov_b32 s13, {f2u(-LOG2E)}
    """)
    if opts.get("pst"): stamp(p, 5)
    p(raw(f"s_waitcnt vmcnt({NX0 + 1})"))
    if opts.get("pst"): stamp(p, 6)
    p(f"v_and_b32 v{MT+1}, 1, v{MT+1}")
    p(f"v_lshlrev_b32 v{MT+1}, 4, v{MT+1}")
    for j in range(4):
        p(f"v_alignbit_b32 v{MC+8+j}, v{MC+8+min(j+1,3)}, v{MC+8+j}, v{MT+1}")
    for i in range(7):
        p(f"v_lshlrev_b32 v{MC+i}, 16, v{MC+8+i//2}" if i % 2 == 0 else f"v_and_b32 v{MC+i}, 0xffff0000, v{MC+8+i//2}")
    for i in range(7):
        p(f"v_mul_f32 v{MC+8+i}, s13, v{MC+i}")
    for i in range(7):
        p(f"v_exp_f32 v{MC+8+i}, v{MC+8+i}")
    for i in range(7):
        p(f"v_add_f32 v{MC+8+i}, 1.0, v{MC+8+i}")
    for i in range(7):
        p(f"v_rcp_f32 v{MC+8+i}, v{MC+8+i}")
    for i in range(7):
        p(f"v_mul_f32 v{MC+8+i}, v{MC+8+i}, v{MC+i}")
        p(f"v_cvt_pk_bf16_f32 v{MC+8+i}, v{MC+8+i}, v{MC+8+i}")
        p(f"v_lshlrev_b32 v{MT+8+2*i}, 16, v{MC+8+i}")
    for i in range(7):
        for d in range(4):
            w = MW + 4*i + d
            t = MC + 2 * d
            p(f"v_lshlrev_b32 v{t}, 16, v{w}")
            p(f"v_and_b32 v{t+1}, 0xffff0000, v{w}")
            if i == 0:
                p(f"v_pk_mul_f32 {v(MA+2*d,2)}, {v(t,2)}, {v(MT+8,2)} op_sel_hi:[1,0]")
            else:
                p(f"v_pk_fma_f32 {v(MA+2*d,2)}, {v(t,2)}, {v(MT+8+2*i,2)}, {v(MA+2*d,2)} op_sel_hi:[1,0,1]")
    for sh in (4, 8):
        for k in range(8):
            p(f"v_add_f32_dpp v{MA+k}, v{MA+k}, v{MA+k} row_ror:{sh} row_mask:0xf bank_mask:0xf")
    if opts.get("pst"): stamp(p, 7)
    p(f"""
    v_lshrrev_b32 v{MT+1}, 4, v0
    v_lshlrev_b32 v{MT+1}, 7, v{MT+1}
    v_lshl_add_u32 v{MT}, v{MT}, 5, v{MT+1}
    v_add_u32 v{MT}, {MODL}, v{MT}
    ds_write_b128 v{MT}, {v(MA,4)}
    ds_write_b128 v{MT}, {v(MA+4,4)} offset:16
    v_add_u32 v{MT+1}, {MODL}, v{MT+4}
    """)
    p(raw(f"s_waitcnt vmcnt({NX0}) lgkmcnt(0)"))
    p(raw("s_barrier"))
    p(f"""
    s_cmp_lg_u32 {s(S_W)}, 0
    s_cbranch_scc1 L_mod2r{name}
    """)
    if opts.get("pst"): stamp(p, 8)
    for i in range(8):
        p(f"ds_read_b32 v{MW+i}, v{MT+1} offset:{256*i}")
    for st in (4, 2, 1):
        for i in range(st):
            p(f"v_add_f32 v{MW+i}, v{MW+i}, v{MW+i+st}")
    p(f"""
    v_mov_b32 v{MW+1}, v{MW}
    v_permlane32_swap_b32 v{MW}, v{MW+1}
    v_add_f32 v{MW}, v{MW}, v{MW+1}
    v_cvt_pk_bf16_f32 v{MW}, v{MW}, v{MW}
    v_lshlrev_b32 v{MW}, 16, v{MW}
    v_add_f32 v{MW+1}, 1.0, v{MW}
    v_cvt_pk_bf16_f32 v{MW+1}, v{MW+1}, v{MW+1}
    v_lshlrev_b32 v{MW+1}, 16, v{MW+1}
    s_mul_i32 s12, s2, 0x4925
    s_lshr_b32 s12, s12, 18
    s_cmp_eq_u32 s12, 1
    s_cselect_b64 vcc, -1, 0
    s_cmp_eq_u32 s12, 4
    s_cselect_b64 vcc, -1, vcc
    v_cndmask_b32 v{MW}, v{MW}, v{MW+1}, vcc
    s_cmp_lt_u32 s12, 2
    s_cselect_b32 s13, {f2u(QSCALE)}, 1.0
    s_cselect_b32 s31, 0, 4
    v_mul_f32 v{MW}, s13, v{MW}
    s_lshl_b32 s12, s2, 7
    v_and_b32 v{MT+4}, 127, v{MT+4}
    v_mov_b32 v{MW+2}, 1
    """)
    p(raw(f"buffer_store_dword v{MW}, v{MT+4}, {s(SRD_W,4)}, s12 offen offset:{WS_MOD} sc1"))
    p(f"L_mod2r{name}:")
    p("s_nop 4")
    xdma(range(NX0, 16))
    p(f"""
    s_cmp_ge_u32 s2, 84
    s_cbranch_scc1 L_mod3r{name}
    s_cmp_lg_u32 {s(S_W)}, 0
    s_cbranch_scc1 L_mod3r{name}
    """)
    p(raw(f"s_waitcnt vmcnt({16 - NX0})"))
    if opts.get("pst"): stamp(p, 9)
    p("s_mov_b64 exec, 1")
    p(raw(f"buffer_atomic_add v124, v126, {s(SRD_D,4)}, s31 offen sc0 sc1"))
    p("s_mov_b64 exec, -1")
    p(f"L_mod3r{name}:")
    srd(p, SRD_Q, 8, 9, 448 * 8192)
    V_MRD = 3
    p(f"""
    s_mul_i32 {s(S_M0V)}, {s(S_W)}, 4160
    s_lshl_b32 {s(S_M0K)}, {s(S_W)}, 12
    s_lshl_b32 {s(S_WBASE)}, {s(S_J)}, 10
    v_lshrrev_b32 v1, 3, v0
    v_min_u32 v1, 13, v1
    v_lshlrev_b32 v1, 13, v1
    v_and_b32 v2, 7, v0
    v_lshl_add_u32 v1, v2, 7, v1
    s_mul_i32 s53, {s(S_PB)}, {14*8192}
    s_add_u32 s53, s53, {s(S_WBASE)}
    buffer_load_dword v{V_O+127}, v1, {s(SRD_Q,4)}, s53 offen
    """)
    code_prefetch(p, name, f"L_end{name}", 22, 1, V_O + 126)
    p(f"""
    v_bfe_u32 v1, v0, 5, 1              ; hh
    v_and_b32 v2, 31, v0
    v_lshlrev_b32 {v(V_TMP)}, 1, v1
    v_xor_b32 v2, v2, {v(V_TMP)}        ; chunk
    v_lshlrev_b32 v1, 3, v1
    v_add_u32 v1, {s(S_W)}, v1          ; 8hh + w
    v_lshlrev_b32 v1, 13, v1
    v_lshl_add_u32 {v(V_WDMA)}, v2, 4, v1
    """)
    for jj in range(1, 4):
        p(f"v_add_u32 {v(V_WDMA+jj)}, {(16*(jj % 2) + 4*(jj//2))*8192 - jj*1024}, {v(V_WDMA)}")
    def emit_wfill(which, st):
        for hf in range(2):
            pre, d = at.wfill(which, st, hf)
            p.extend(pre); p.extend(d)
    p(f"""
    s_lshl_b32 s52, {s(S_W)}, 11
    s_add_u32 s52, s52, {MODL}
    v_bfe_u32 v1, v0, 2, 2
    v_mul_u32_u24 v1, 4160, v1
    v_and_b32 v2, 3, v0
    v_lshl_add_u32 v1, v2, 3, v1
    v_bfe_u32 v2, v0, 4, 2
    v_lshl_add_u32 v1, v2, 9, v1
    v_lshlrev_b32 v{V_MRD}, 5, v2
    v_add_u32 v{V_MRD}, s52, v{V_MRD}
    v_and_b32 v120, 15, v0
    v_mul_u32_u24 v120, 1040, v120
    v_lshl_add_u32 v120, v2, 4, v120
    s_and_b32 s14, {s(S_W)}, 1
    s_mul_i32 s14, s14, {2*SLOT}
    s_mul_i32 s15, {s(S_HD)}, 448
    s_add_u32 s14, s14, s15
    s_add_u32 s14, s14, {4*SLOT}
    v_add_u32 v120, s14, v120
    v_bfe_u32 v2, v0, 4, 1
    v_lshl_add_u32 {v(V_TMP)}, v2, 5, v1
    s_mul_i32 s14, {s(S_HD)}, {SLOT}
    v_add_u32 {v(V_WRD)}, s14, {v(V_TMP)}
    v_xor_b32 {v(V_WRD+1)}, 32, {v(V_WRD)}
    v_add_u32 {v(V_WRD+2)}, {4*SLOT}, {v(V_WRD)}
    v_add_u32 {v(V_WRD+3)}, {4*SLOT}, {v(V_WRD+1)}
    s_lshl_b32 s14, {s(S_W)}, 12
    s_add_u32 s14, s14, {8*SLOT}
    v_add_u32 {v(V_XW)}, s14, {v(V_LIN)}
    v_xor_b32 {v(V_XR)}, 0x2000, {v(V_XW)}
    """)
    NE = opts.get("nearly", 1)
    for st in range(NE):
        emit_wfill("Q", st)
    p(f"""
    s_cmp_ge_u32 s2, 84
    s_cbranch_scc1 L_mod4r{name}
    s_cmp_lg_u32 {s(S_W)}, 0
    s_cbranch_scc1 L_mod4r{name}
    """)
    p(raw(f"s_waitcnt vmcnt({2 + 8 * NE})"))
    if opts.get("pst"): stamp(p, 10)
    p("s_cmp_lg_u32 s31, 0")
    p(f"s_cbranch_scc1 L_mod4r{name}")
    p("v_cmp_eq_u32 vcc, 27, v124")
    p(f"s_cbranch_vccz L_mod4r{name}")
    p("s_mov_b64 exec, 1")
    p(raw(f"buffer_store_dword v125, v126, {s(SRD_D,4)}, 0 offen offset:128 sc1"))
    p("s_mov_b64 exec, -1")
    p(f"L_mod4r{name}:")
    p(I("WAITTAG", tag=XK))
    p("s_barrier")
    for ks in range(7):
        for qt in range(2):
            p(f"ds_read_b128 {v(V_H+8*ks+4*qt,4)}, v120 offset:{qt*SLOT + 64*ks}", tag=("rd", XK))
    if NE < 1: emit_wfill("Q", 0)
    F = V_O
    SA = 112
    for k in range(56):
        qt = (k // 4) % 2
        p(f"v_lshlrev_b32 v{F+2*k}, 16, v{V_H+k}")
        p(f"v_and_b32 v{F+2*k+1}, 0xffff0000, v{V_H+k}")
        if k in (0, 4):
            p(f"v_pk_mul_f32 {v(SA+4+2*qt,2)}, {v(F+2*k,2)}, {v(F+2*k,2)}")
        else:
            p(f"v_pk_add_f32 {v(SA+2*qt,2)}, {v(F+2*k-2,2) if k in (1, 5) else v(SA+2*qt,2)}, {v(F+2*k,2)}")
            p(f"v_pk_fma_f32 {v(SA+4+2*qt,2)}, {v(F+2*k,2)}, {v(F+2*k,2)}, {v(SA+4+2*qt,2)}")
    for k in range(4):
        p(f"v_add_f32 v{SA+k}, v{SA+2*k}, v{SA+2*k+1}")
    for k in range(4):
        xreduce(p, SA + k, 121 + k, "v_add_f32")
    p(f"ds_write_b128 {v(V_XW)}, {v(SA,4)}", tag=("wr", (8, -1)))
    p("s_waitcnt lgkmcnt(0)")
    p("s_barrier")
    p(f"ds_read_b128 {v(SA+4,4)}, {v(V_XR)}", tag=("rd", (8, -1)))
    if NE < 2: emit_wfill("Q", 1)
    for qt in range(2):
        m_, r_ = 120 + 4*qt, 122 + 4*qt
        p(f"v_add_f32 v{SA+qt}, v{SA+qt}, v{SA+4+qt}")
        p(f"v_add_f32 v{SA+2+qt}, v{SA+2+qt}, v{SA+6+qt}")
        p(f"v_mul_f32 v{m_}, {f2u(1.0/448)}, v{SA+qt}")
        p(f"v_mul_f32 v{r_}, {f2u(1.0/448)}, v{SA+2+qt}")
        p(f"v_fma_f32 v{r_}, -v{m_}, v{m_}, v{r_}")
        p(f"v_max_f32 v{r_}, 0, v{r_}")
        p(f"v_add_f32 v{r_}, {f2u(1e-5)}, v{r_}")
        p(f"v_rsq_f32 v{r_}, v{r_}")
        p(f"v_mul_f32 v{m_}, -v{m_}, v{r_}")
    for k in range(56):
        qt = (k // 4) % 2
        p(f"v_pk_fma_f32 {v(F+2*k,2)}, {v(F+2*k,2)}, {v(122+4*qt,2)}, {v(120+4*qt,2)} op_sel_hi:[1,0,0]")
    NPRE = opts.get("npre", 3)
    for st in range(2, NPRE):
        emit_wfill("Q", st)
    p(f"""
    v_mov_b32 v1, 0x80
    s_mov_b32 s14, 0
    s_mul_i32 s53, {s(S_HD)}, 896
    v_add_u32 v2, s52, {v(V_LIN)}
    """)
    if opts.get("pst"): stamp(p, 1)
    p(f"s_cmp_lg_u32 {s(S_W)}, 0")
    p(f"s_cbranch_scc1 L_polled_m{name}")
    poll(p, SRD_D, 14, 1, 120, "m" + name, 56, 1, sleep=opts.get("msleep", 4))
    p("s_barrier")
    if opts.get("pst"): stamp(p, 2)
    p(f"buffer_load_dwordx4 v[120:123], {v(V_LIN)}, {s(SRD_W,4)}, s53 offen offset:{WS_MOD} sc1")
    p(f"buffer_load_dwordx4 v[124:127], {v(V_LIN)}, {s(SRD_W,4)}, s53 offen offset:{WS_MOD + 1792} sc1")
    for st in range(NPRE, 3):
        emit_wfill("Q", st)
    mt = ("wr", ("M", 0), "private")
    p("ds_write_b128 v2, v[120:123]", tag=mt)
    p("ds_write_b128 v2, v[124:127] offset:1024", tag=mt)
    MB = 72
    def modreads(ks):
        M = MB + 16 * (ks % 3)
        rt = ("rd", ("M", 0), "private")
        return [I(f"ds_read_b128 {v(M + 8*k + 4*h, 4)}, v{V_MRD} offset:{1024*(1-k) + 128*ks + 16*h}", tag=rt)
                for k in range(2) for h in range(2)]
    NUP = 7
    p(I("WAITTAG", tag=[("M", 0)]))
    p.extend(modreads(0)); p.extend(modreads(1)); p.extend(modreads(2))
    for ks in range(7):
        M = MB + 16 * (ks % 3)
        for k in range(8*ks, 8*ks + 8):
            d = k % 4
            p(f"v_pk_fma_f32 {v(F+2*k,2)}, {v(F+2*k,2)}, {v(M+2*d,2)}, {v(M+8+2*d,2)}")
            p(f"v_cvt_pk_bf16_f32 v{V_H+k}, v{F+2*k}, v{F+2*k+1}")
        if ks + 3 < 7:
            p.extend(modreads(ks + 3))
    p(f"s_waitcnt vmcnt({8 * max(0, 3 - NPRE)})")
    p("s_barrier")
    stamp(p, 3 if opts.get("pst") else 1)
    srd(p, SRD_O, 10, 11, 4096 * 896)
    p(f"""
    s_lshl_b32 s14, {s(S_J)}, 20
    s_add_u32 {s(SRD_K)}, s4, s14
    s_addc_u32 {s(SRD_K+1)}, s5, 0
    s_mov_b32 {s(SRD_K+2)}, 0x100000
    s_mov_b32 {s(SRD_K+3)}, 0x20000
    s_add_u32 {s(SRD_V)}, s6, s14
    s_addc_u32 {s(SRD_V+1)}, s7, 0
    s_mov_b32 {s(SRD_V+2)}, 0x100000
    s_mov_b32 {s(SRD_V+3)}, 0x20000
    s_mov_b32 {s(S_KOFF)}, 0
    s_mov_b32 {s(S_VOFF)}, 0
    s_mov_b32 {s(S_THR)}, {thr}
    s_lshl_b32 s15, {s(S_W)}, 3
    """)
    setup = f"""
    v_bfe_u32 v1, v0, 5, 1
    v_and_b32 v2, 31, v0
    v_add_u32 v16, s15, v1
    v_lshlrev_b32 v17, 9, v16
    v_and_b32 v16, 15, v16
    v_xor_b32 v16, v16, v2
    v_lshl_add_u32 {v(V_KDMA)}, v16, 4, v17
    v_xor_b32 {v(V_KDMA+1)}, 32, {v(V_KDMA)}
    v_xor_b32 {v(V_KDMA+2)}, 64, {v(V_KDMA)}
    v_xor_b32 {v(V_KDMA+3)}, 96, {v(V_KDMA)}
    v_lshlrev_b32 v16, 2, v1
    v_add_u32 v16, {s(S_W)}, v16
    v_lshlrev_b32 v16, 9, v16
    v_lshlrev_b32 v17, 1, v1
    v_xor_b32 v17, v17, v2
    v_lshl_add_u32 {v(V_VDMA)}, v17, 4, v16
    v_add_u32 {v(V_VDMA+1)}, 3072, {v(V_VDMA)}
    v_add_u32 {v(V_VDMA+2)}, 6144, {v(V_VDMA)}
    v_add_u32 {v(V_VDMA+3)}, 9216, {v(V_VDMA)}
    v_and_b32 v16, 15, v0
    v_bfe_u32 v17, v0, 4, 2
    v_xor_b32 v17, v17, v16
    v_lshlrev_b32 v16, 9, v16
    v_add_u32 v16, {4*SLOT}, v16
    v_lshl_add_u32 {v(V_KRD)}, v17, 4, v16
    v_xor_b32 {v(V_KRD+1)}, 64, {v(V_KRD)}
    v_xor_b32 {v(V_KRD+2)}, 0x80, {v(V_KRD)}
    v_xor_b32 {v(V_KRD+3)}, 0xc0, {v(V_KRD)}
    v_mov_b32 {v(V_VRD)}, {v(V_TMP)}
    v_xor_b32 {v(V_VRD+1)}, 32, {v(V_TMP)}
    v_mov_b32 {v(V_L)}, 0
    v_mov_b32 {v(V_L+1)}, 0
    """
    setup = [I(x.strip()) for x in setup.strip().split("\n")]
    assert (4 * SLOT) % 256 == 0
    def q_mfma(i, t, qt, fr):
        D = v(V_O + 8*t + 4*qt, 4)
        Bop = v(V_H + 8*i + 4*qt, 4) if i < 7 else a(A_HP + 8*(i-7) + 4*qt, 4)
        return f"v_mfma_f32_16x16x32_bf16 {D}, {fr}, {Bop}, {D if i else 0}"
    def q_fills(i):
        st = i + 3
        if i == 0 and NPRE == 4: return []
        if st < 14:
            return [at.wfill("Q", st, hf) + ([],) for hf in range(2)]
        if i == 11: return [at.kvfill("K", 0), at.kvfill("K", 1)]
        if i == 12: return [at.kvfill("K", 2)]
        return [at.kvfill("V", 0), at.kvfill("V", 1, range(at.nafter))]
    def q_bar(i):
        ks = at.wkeys("Q", i + 1) if i < 13 else [at.key("K", 0)]
        i -= 1
        if 0 <= i < 8:
            ks = ks + [(8, i // 2)] if i % 2 == 0 else ks + [("rd", 8, i // 2)]
        return ks
    def q_valu(i):
        out = []
        if i in (8, 9, 10):
            n = len(setup)
            out += setup[(i-8)*n//3:(i-7)*n//3]
        return out
    def q_xds(i):
        out = []
        i -= 1
        if 0 <= i < 8:
            rho = i // 2
            for k in range(4):
                u, qt = 2*rho + k // 2, k % 2
                if u >= 7: continue
                if i % 2 == 0:
                    out.append(I(f"ds_write_b128 {v(V_XW)}, {v(V_H + 8*u + 4*qt, 4)} offset:{1024*k}", tag=("wr", (8, rho))))
                else:
                    out.append(I(f"ds_read_b128 {a(A_HP + 8*u + 4*qt, 4)}, {v(V_XR)} offset:{1024*k}", tag=("rd", (8, rho))))
        return out
    at.gemm_phase(p, "Q", 14, 16, q_mfma, q_fills, q_bar, q_valu, q_xds)
    p("s_load_dwordx4 s[4:7], s[0:1], 48")
    p("s_load_dwordx2 s[8:9], s[0:1], 72")
    p("s_load_dwordx2 s[10:11], s[0:1], 0")
    p("s_waitcnt lgkmcnt(0)")
    srd(p, SRD_Q, 4, 5, 448 * 3584)
    for g in range(at.gB + 1, 64):
        for (f, e, nx) in at.ds.get(g, []):
            p(at.kread(lambda it: 0, 0, f))
    p(f"""
    v_bfe_u32 v1, v0, 5, 1
    v_and_b32 v2, 31, v0
    v_lshlrev_b32 v3, 1, v1
    v_xor_b32 v3, v3, v2
    v_lshlrev_b32 v1, 2, v1
    v_add_u32 v1, {s(S_W)}, v1
    v_mul_u32_u24 v1, 896, v1
    v_lshl_add_u32 v1, v3, 4, v1
    v_mov_b32 v3, 0x40000000
    v_cmp_gt_u32 vcc, 28, v2
    v_cndmask_b32 {v(V_WDMA)}, v3, v1, vcc
    v_add_u32 {v(V_WDMA+1)}, {8*896 - 1024}, {v(V_WDMA)}
    v_add_u32 {v(V_WDMA+2)}, {16*896 - 2048}, {v(V_WDMA)}
    v_add_u32 {v(V_WDMA+3)}, {24*896 - 3072}, {v(V_WDMA)}
    s_mul_i32 {s(S_WBASE)}, {s(S_J)}, {512*896}
    """)
    assert (8 * SLOT) & 0x3fff == (8 * SLOT) % 16384 and ((8 * SLOT) % 16384) + 4096 <= 8192
    p(f"""
    v_mov_b32 v1, 4
    buffer_load_dword v2, v1, {s(SRD_D,4)}, 0 offen sc1
    """)
    for sx in range(8):
        for qt in range(2):
            X = V_O + 16*sx + 4*qt
            Y = X + 8
            p(f"v_cvt_pk_bf16_f32 v{X}, v{X}, v{X+1}")
            p(f"v_cvt_pk_bf16_f32 v{X+1}, v{X+2}, v{X+3}")
            p(f"v_cvt_pk_bf16_f32 v{Y}, v{Y}, v{Y+1}")
            p(f"v_cvt_pk_bf16_f32 v{Y+1}, v{Y+2}, v{Y+3}")
        for qt in range(2):
            X = V_O + 16*sx + 4*qt
            Y = X + 8
            p(f"v_permlane32_swap_b32 v{X}, v{Y}")
            p(f"v_permlane32_swap_b32 v{X+1}, v{Y+1}")
        for qt in range(2):
            X = V_O + 16*sx + 4*qt
            Y = X + 8
            p(f"v_permlane16_swap_b32 v{X}, v{Y}")
            p(f"v_permlane16_swap_b32 v{X+1}, v{Y+1}")
        for qt in range(2):
            X = V_O + 16*sx + 4*qt
            Y = X + 8
            for k, r in enumerate((X, X+1, Y, Y+1)):
                p(f"v_accvgpr_write_b32 a{A_Q + 8*sx + 4*qt + k}, v{r}")
    stamp(p, 4 if opts.get("pst") else 2)
    p(f"""
    v_cmp_gt_u32 vcc, 56, v2
    s_cbranch_vccnz L_mslow{name}
    L_mok{name}:
    """)
    p.begin_side()
    p(f"L_mslow{name}:")
    p("s_mov_b32 s14, 0")
    poll(p, SRD_D, 14, 1, 2, "m2" + name, 56, 56, sleep=4)
    p(f"s_branch L_mok{name}")
    p.end_side()
    lid = [opts.get("lid0", 0)]
    import k_prep
    son = k_prep.STAMP["on"]
    if opts.get("pst"): k_prep.STAMP["on"] = False
    def B(c, fn, aval=None, **kw):
        at.body(p, c, fn, aval=aval, lid=lid[0], **kw)
        if aval != -1:
            at.fallback(p, c % 2, lid[0], aval != 63)
        lid[0] += 1
    B(3, lambda it: -1, aval=-1)
    if opts.get("touch", True):
        p(f"""
        v_min_u32 v1, {223 if opts.get("t64", False) else 111}, v0
        v_lshlrev_b32 v1, {6 if opts.get("t64", False) else 7}, v1
        s_mul_i32 s53, {s(S_PB)}, {112*128}
        s_add_u32 s53, s53, {s(S_WBASE)}
        buffer_load_dword v2, v1, {s(SRD_O,4)}, s53 offen
        """)
    exv = None
    if opts.get("warm", True):
        p(f"""
        v_and_b32 v1, 63, v0
        s_lshl_b32 s14, s2, 15
        s_min_u32 s14, s14, {2048*4096 - 35840}
        s_mul_i32 s15, {s(S_W)}, 640
        s_add_u32 s14, s14, s15
        v_cmp_gt_u32 vcc, 5, v1
        v_cndmask_b32 v3, 0, v1, vcc
        v_lshl_add_u32 v3, v3, 7, s14
        v_mov_b32 v16, s6
        v_mov_b32 v17, s7
        v_mov_b32 v18, 2560
        v_mov_b32 v19, 0
        s_mul_i32 s14, s2, {49*128}
        s_min_u32 s14, s14, {448*3584 - 56*128}
        s_lshl_b32 s15, {s(S_W)}, 7
        s_add_u32 s14, s14, s15
        v_writelane_b32 v3, s14, 5
        v_writelane_b32 v16, s4, 5
        v_writelane_b32 v17, s5, 5
        s_movk_i32 s14, 0x200
        v_writelane_b32 v18, s14, 5
        s_mul_i32 s14, s2, {25*128}
        s_min_u32 s14, s14, {896*896 - 28*128}
        s_and_b32 s15, {s(S_W)}, 1
        s_lshl_b32 s15, s15, 7
        s_add_u32 s14, s14, s15
        v_writelane_b32 v3, s14, 6
        v_writelane_b32 v16, s8, 6
        v_writelane_b32 v17, s9, 6
        s_movk_i32 s14, 0x100
        v_writelane_b32 v18, s14, 6
        v_add_co_u32 v16, vcc, v16, v3
        v_addc_co_u32 v17, vcc, 0, v17, vcc
        """)
        exv = [(at.gB, I("global_load_dword v20, v[16:17], off"))]
        exv2 = [(at.gJ, I("v_lshl_add_u64 v[16:17], v[16:17], 0, v[18:19]"))]
    B(0, lambda it: 0, aval=0, extra_scalar=[(60, I(f"s_mov_b32 {s(S_CNT)}, 14"))])
    p.begin_loop(14)
    p(f"L_loop{name}:")
    for c in range(1, 5):
        ex = [(60, I(f"s_sub_u32 {s(S_CNT)}, {s(S_CNT)}, 1"))] if c == 2 else None
        B(c % 4, (lambda c: lambda it: 4*it + c)(c), extra_scalar=ex,
          extra_valu=(exv if c == 1 else exv2 if c == 3 else None) if exv else None)
    p(f"s_cmp_lg_u32 {s(S_CNT)}, 0")
    p(f"s_cbranch_scc1 L_loop{name}")
    p.end_loop()
    for av in range(57, 64):
        B(av % 4, (lambda av: lambda it: av)(av), aval=av)
    if not opts.get("pst"): stamp(p, 3)
    for qt in range(2):
        at.xreduce(p, V_L + qt, "v_add_f32")
        p(f"v_rcp_f32 v{2+qt}, {v(V_L+qt)}")
    def conv(u):
        out = []
        for qt in range(2):
            X = V_O + 16*u + 4*qt
            Y = X + 8
            for r in (X, X+1, X+2, X+3, Y, Y+1, Y+2, Y+3):
                out.append(I(f"v_mul_f32 v{r}, v{r}, v{2+qt}"))
            out.append(I(f"v_cvt_pk_bf16_f32 v{X}, v{X}, v{X+1}"))
            out.append(I(f"v_cvt_pk_bf16_f32 v{X+1}, v{X+2}, v{X+3}"))
            out.append(I(f"v_cvt_pk_bf16_f32 v{X+2}, v{Y}, v{Y+1}"))
            out.append(I(f"v_cvt_pk_bf16_f32 v{X+3}, v{Y+2}, v{Y+3}"))
        return out
    p.extend(conv(0)); p.extend(conv(1))
    ACC = V_H
    ZD = V_O + 120
    ZT = V_O + 24
    p(f"""
    s_and_b32 s15, {s(S_J)}, 1
    s_lshl_b32 s15, s15, 2
    s_and_b32 s32, {s(S_PB)}, 3
    s_add_u32 s32, s32, s15              ; fb
    s_lshr_b32 s15, {s(S_J)}, 1
    s_lshl_b32 s15, s15, 3
    s_lshr_b32 s33, {s(S_PB)}, 2
    s_add_u32 s33, s33, s15              ; tb
    s_mul_i32 s34, s32, 224
    s_mul_i32 s36, {s(S_W)}, {32*3584}
    s_add_u32 s34, s34, s36
    s_add_u32 s37, s34, 1792
    s_mul_i32 s36, {s(S_W)}, 7168
    s_movk_i32 s31, 0x124a
    s_and_b32 s57, s32, 1
    s_lshl_b32 s57, s57, 1
    v_and_b32 v1, 63, v0
    """)
    zops = []
    for m in range(7):
        zops += [I(f"v_add_u32 v{ZT}, {64*m}, v1"), I(f"v_mul_u32_u24 v{ZT+1}, s31, v{ZT}"), I(f"v_lshrrev_b32 v{ZT+1}, 16, v{ZT+1}"),
                 I(f"v_mul_u32_u24 v{ZT+2}, 14, v{ZT+1}"), I(f"v_sub_u32 v{ZT}, v{ZT}, v{ZT+2}"),
                 I(f"v_add_u32 v{ZT}, s57, v{ZT}"), I(f"v_subrev_u32 v{ZT+2}, 14, v{ZT}"), I(f"v_min_u32 v{ZT}, v{ZT}, v{ZT+2}"),
                 I(f"v_mul_u32_u24 v{ZT+1}, 3584, v{ZT+1}"), I(f"v_lshl_add_u32 v{ZD+m}, v{ZT}, 4, v{ZT+1}")]
        if m % 4:
            zops.append(I(f"v_subrev_u32 v{ZD+m}, {(m % 4)*1024}, v{ZD+m}"))
    ZBASE = [[2 * 2 * SLOT, 3 * 2 * SLOT, 0, 8 * SLOT], [2 * SLOT, 2 * 2 * SLOT, 3 * 2 * SLOT, 8 * SLOT]]
    ZKEYS = [[[(4, 300), (5, 300)], [(6, 300), (7, 300)], [(0, 300), (1, 300)], [(8, 300)]],
             [[(2, 310), (3, 310)], [(4, 310), (5, 310)], [(6, 310), (7, 310)], [(8, 310)]]]
    def zfill(rnd, z1=0):
        gs = []
        so = 34 if z1 else 37
        for hf in range(2):
            pre = [I(f"s_add_u32 m0, s36, {ZBASE[z1][rnd] + hf*4096}")]
            d = [I(f"buffer_load_dwordx4 v{ZD+m}, {s(SRD_Q,4)}, s{so} offen offset:{(m % 4)*1024} lds", tag=("dma", ZKEYS[z1][rnd]))
                 for m in range(4*hf, min(7, 4*hf+4))]
            post = [I(f"s_add_u32 s{so}, s{so}, {4*32*3584}")] if hf else []
            gs.append((pre, d, post))
        return gs
    def flat(gs):
        return [x for g in gs for lst in g for x in lst]
    def o_mfma(i, t, qt, fr):
        D = v(ACC + 8*t + 4*qt, 4)
        Bop = v(V_O + 16*i + 4*qt, 4) if i < 8 else a(A_Q + 8*(i-8) + 4*qt, 4)
        return f"v_mfma_f32_16x16x32_bf16 {D}, {fr}, {Bop}, {D if i else 0}"
    def o_fills(i):
        st = i + 3
        if i >= 13:
            return zfill(i - 13)
        return [at.wfill("O", st, hf) + ([],) for hf in range(2)] if st < 16 else []
    def o_bar(i):
        if i == 15: return []
        ks = at.wkeys("O", i + 1)
        i -= 1
        if 0 <= i < 8:
            ks = ks + [(8, 10 + i // 2)] if i % 2 == 0 else ks + [("rd", 8, 10 + i // 2)]
        return ks
    def o_valu(i):
        if i in (8, 9, 10, 11, 12):
            n = len(zops)
            return zops[(i-8)*n//5:(i-7)*n//5]
        return conv(i + 2) if i + 2 < 8 else []
    def o_xds(i):
        i -= 1
        if i >= 8 or i < 0: return []
        rho = i // 2
        out = []
        for k in range(4):
            u, qt = 2*rho + k // 2, k % 2
            if i % 2 == 0:
                out.append(I(f"ds_write_b128 {v(V_XW)}, {v(V_O + 16*u + 4*qt, 4)} offset:{1024*k}", tag=("wr", (8, 10 + rho))))
            else:
                out.append(I(f"ds_read_b128 {a(A_Q + 8*u + 4*qt, 4)}, {v(V_XR)} offset:{1024*k}", tag=("rd", (8, 10 + rho))))
        return out
    at.gemm_phase(p, "O", 16, 14, o_mfma, o_fills, o_bar, o_valu, o_xds)
    if not opts.get("pst"): stamp(p, 4)
    p(f"""
    s_lshl_b32 s14, {s(S_J)}, 7
    s_add_u32 s14, s14, {s(S_QT)}
    s_mul_i32 s14, s14, {14*1024}
    s_mul_i32 s15, {s(S_HD)}, {7*1024}
    s_add_u32 s14, s14, s15
    s_add_u32 s14, s14, {WS_PART}
    s_add_u32 s15, s14, {14*1024}
    s_add_u32 s50, s14, 4096
    s_add_u32 s51, s15, 4096
    """)
    for uu in range(7):
        for qt in range(2):
            X = ACC + 16*uu + 4*qt
            Y = X + 8
            p(f"v_cvt_pk_bf16_f32 v{X}, v{X}, v{X+1}")
            p(f"v_cvt_pk_bf16_f32 v{X+1}, v{X+2}, v{X+3}")
            p(f"v_cvt_pk_bf16_f32 v{X+2}, v{Y}, v{Y+1}")
            p(f"v_cvt_pk_bf16_f32 v{X+3}, v{Y+2}, v{Y+3}")
            so = (14 + qt) if uu < 4 else (50 + qt)
            p(f"buffer_store_dwordx4 {v(X,4)}, {v(V_LIN)}, {s(SRD_W,4)}, s{so} offen offset:{(uu % 4)*1024} sc1", tag=("wr", ("PT", 0), "private"))

    for gsx in zfill(3):
        for lst in gsx: p.extend(lst)
    srd(p, SRD_K, 10, 11, 2048 * 896)
    emit_red_pre(p, S_W, S_PB, S_J, SRD_W, SRD_K)
    p(f"""
    s_lshl_b32 s14, {s(S_PB)}, 7
    s_add_u32 s14, s14, {WS_FLAG}
    """)
    signal(p, SRD_W, 14, S_W, "r" + name, vt=10, keys=[("PT", 0)])
    stamp(p, 5)
    emit_red(p, S_W, S_PB, SRD_W, 163840 - 512, after_loads=flat(zfill(0, 1)))
    W4 = s(SRD_W, 4)
    ZACC = 128
    NRZ = 16
    A_H = 0
    A_FZ = 64
    VB = 16; RS = 48; VDB = 64; VRB = 72; Z1 = 80; GACC = 128
    RA = 6; A_A = 0; A_MU = 168; PB0 = 131072
    p(f"""
    s_lshr_b32 s15, {s(S_J)}, 1
    s_lshl_b32 s15, s15, 5
    s_add_u32 s14, s14, s15
    s_add_u32 s14, s14, 4096
    v_and_b32 v1, 63, v0
    v_lshlrev_b32 v2, 4, v1
    v_and_b32 v3, 15, v0                 ; n
    v_bfe_u32 v8, v0, 4, 2               ; g
    s_lshl_b32 s58, s33, 2
    s_add_u32 s58, s58, {s(S_W)}
    s_mul_i32 s4, s58, {14*1024}
    s_add_u32 s4, s4, {WS_H2}
    s_add_u32 s5, s4, 4096
    s_add_u32 s12, s4, 8192
    s_add_u32 s13, s4, 12288
    v_lshrrev_b32 v9, 2, v1
    v_mul_u32_u24 v9, 224, v9
    v_and_b32 v12, 3, v0
    v_lshl_add_u32 v12, v12, 3, v9
    v_add_u32 v13, {4*SLOT}, v12
    v_add_u32 v14, {8*SLOT}, v12
    v_mov_b32 v15, 0
    s_lshl_b32 s15, s33, 7
    s_lshl_b32 s50, {s(S_W)}, 5
    s_add_u32 s15, s15, s50
    s_add_u32 s15, s15, {WS_FLAG + 4096}
    """)
    signal(p, SRD_W, 14, S_W, "z" + name, vt=48)
    stamp(p, 7)
    srd(p, SRD_V, 6, 7, 2048 * 4096 + 4096)
    p(f"""
    s_sub_u32 {s(SRD_V)}, {s(SRD_V)}, 4096
    s_subb_u32 {s(SRD_V+1)}, {s(SRD_V+1)}, 0
    s_mov_b32 s50, s32
    s_mov_b32 s51, s33
    v_lshrrev_b32 v9, 3, v1
    v_lshlrev_b32 v9, 12, v9
    v_and_b32 v4, 7, v0
    v_xor_b32 v4, v4, v8
    v_lshl_add_u32 v4, v4, 4, v9
    v_xor_b32 v5, 64, v4
    """)
    for m in range(8):
        nl = m // 2
        if m % 2 == 0:
            p(f"s_add_u32 s52, {s(S_W)}, {nl}")
            p(f"s_and_b32 s52, s52, 3")
            p(f"s_lshl_b32 s52, s52, 16")
        p(f"s_add_u32 s53, s52, {(m % 2)*32768 + 4096 - (m % 4)*1024}")
        p(f"v_add_u32 v{VDB+m}, s53, v{4 + m % 2}")
    p(f"""
    s_lshl_b32 s52, s51, 18
    s_lshl_b32 s53, {s(S_W)}, 10
    s_add_u32 s52, s52, s53
    s_lshl_b32 s54, s50, 6
    s_lshl_b32 s53, {s(S_W)}, 4
    s_add_u32 s54, s54, s53
    s_mul_i32 s54, s54, 7168
    s_add_u32 s54, s54, {WS_ZZ}
    s_add_u32 s55, s54, 4096
    s_lshl_b32 s53, {s(S_W)}, 15
    v_mov_b32 v4, {f2u(C2)}
    v_mov_b32 v6, {f2u(C1)}
    s_lshl_b32 s38, s50, 6
    s_lshr_b32 s39, s58, 1
    s_add_u32 s38, s38, s39
    s_mul_i32 s38, s38, 7168
    s_and_b32 s39, s58, 1
    s_lshl_b32 s39, s39, 9
    s_add_u32 s38, s38, s39
    s_add_u32 s38, s38, {WS_ZZ}
    s_add_u32 s39, s38, 4096
    v_and_b32 v10, 1, v8
    v_lshlrev_b32 v10, 10, v10           ; (g%2)*1024 : second tile of the pair
    v_lshrrev_b32 v11, 1, v8
    v_lshl_add_u32 v10, v11, 8, v10      ; + (g/2)*256
    v_lshl_add_u32 v10, v3, 4, v10       ; + n*16
    v_lshlrev_b32 v11, 20, v10
    v_and_b32 v11, 0x40000000, v11
    v_or_b32 v11, v11, v10
    """)
    ALLS = [(k, 400) for k in range(9)]
    def bdma(dd, half, first=False):
        pre = [I(f"s_add_u32 m0, s53, {(dd % 4)*8192 + half*4096}")]
        tg = ("dma", [(f"B{dd % 4}", dd)] + ALLS) if first else ("dma", (f"B{dd % 4}", dd), "private")
        out = [I(f"buffer_load_dwordx4 v{VDB+4*half+k}, {s(SRD_V,4)}, s52 offen offset:{k*1024} lds", tag=tg) for k in range(4)]
        post = [I("s_add_u32 s52, s52, 128")] if half else []
        return pre, out, post
    LEADZ = 6
    def zreads(z1):
        rds = []
        for u in range(14):
            rnd = u // 4
            ab = ZBASE[z1][rnd] + (u % 4) * 7168
            base, off = (12, ab) if ab < 4 * SLOT else (13, ab - 4 * SLOT) if ab < 8 * SLOT else (14, ab - 8 * SLOT)
            for ft in range(7):
                f = u * 7 + ft + 98 * z1
                rds.append([I(f"ds_read_b64_tr_b16 {a(A_FZ + 4*(f % NRZ) + 2*e, 2)}, v{base} offset:{off + e*3584 + 32*ft}",
                              tag=("rd", ZKEYS[z1][rnd])) for e in range(2)])
        return rds
    def zgemm(z1, rds, acc, hook=None):
        for g in range(98):
            if hook and g == hook[0]:
                hook[1]()
            u, ft = g // 7, g % 7
            f = g + 98 * z1
            D = v(acc + 4*ft, 4)
            Wf = a(A_FZ + 4*(f % NRZ), 4)
            H = a(A_H + 4*u, 4)
            C = D if u else "0"
            p(f"v_mfma_f32_16x16x32_bf16 {D}, {Wf}, {H}, {C}" if z1 else f"v_mfma_f32_16x16x32_bf16 {D}, {H}, {Wf}, {C}")
            if g + 1 < 98 and (g % 2 == 1 or ft == 6):
                ex = f", {a(A_H + 4*(u+1), 4)}" if ft >= 5 and u < 13 else ""
                p(f"WAITFOR {a(A_FZ + 4*((f+1) % NRZ), 4)}, {a(A_FZ + 4*((f+2) % NRZ), 4)}{ex}")
            if g + LEADZ < 98:
                p.extend(rds[g + LEADZ])
    rz = zreads(0)
    for x in rz[:LEADZ]:
        p.extend(x)
    poll(p, SRD_W, 15, 15, 48, "z" + name, 56, 2)
    stamp(p, 8)
    for u in range(14):
        p(f"buffer_load_dwordx4 {a(A_H+4*u,4)}, v2, {W4}, s{[4,5,12,13][u//4]} offen offset:{(u % 4)*1024}{LD}")
    zgemm(0, rz, ZACC)
    p("s_barrier")
    stamp(p, 9)
    def interleave(gl, bl):
        step = max(1, len(gl) // len(bl))
        for k, x in enumerate(gl):
            if k % step == 0 and bl:
                p.extend(bl.pop(0))
            p(x)
        for x in bl:
            p.extend(x)
    def groups(gs):
        out = []
        for pre, o, post in gs:
            for k, x in enumerate(o):
                out.append((pre if k == 0 else []) + [x] + (post if k == len(o) - 1 else []))
        return out
    gp = Prog("tmp")
    gelu_pairs(gp, [ZACC + 2*k for k in range(14)], 24)
    interleave(gp.items, groups(zfill(1, 1) + zfill(2, 1) + zfill(3, 1)))
    for k in range(0, 4, 2):
        p(f"v_pk_add_f32 {v(32+k,2)}, {v(ZACC+k,2)}, {v(ZACC+4+k,2)}")
        p(f"v_pk_mul_f32 {v(36+k,2)}, {v(ZACC+k,2)}, {v(ZACC+k,2)}")
    for ft in range(1, 7):
        for k in range(0, 4, 2):
            if ft >= 2:
                p(f"v_pk_add_f32 {v(32+k,2)}, {v(32+k,2)}, {v(ZACC+4*ft+k,2)}")
            p(f"v_pk_fma_f32 {v(36+k,2)}, {v(ZACC+4*ft+k,2)}, {v(ZACC+4*ft+k,2)}, {v(36+k,2)}")
    zt = ("wr", ("ZZ", 0), "private")
    for pr in range(4):
        X = ZACC + 8*pr
        for k in range(4):
            sx = X + 2*k if pr < 3 else X + 2*(k % 2)
            p(f"v_cvt_pk_bf16_f32 v{40+4*(pr % 2)+k}, v{sx}, v{sx+1}")
        Y = 40 + 4*(pr % 2)
        p(f"v_permlane16_swap_b32 v{Y}, v{Y+2}")
        p(f"v_permlane16_swap_b32 v{Y+1}, v{Y+3}")
        p(f"buffer_store_dwordx4 {v(Y,4)}, v{10 if pr < 3 else 11}, {W4}, s{38 + pr//2} offen offset:{(pr % 2)*2048} sc1", tag=zt)
    for sh in (8, 4, 2, 1):
        for k in range(8):
            p(f"v_add_f32_dpp v{32+k}, v{32+k}, v{32+k} row_ror:{sh} row_mask:0xf bank_mask:0xf")
    p("v_mov_b32 v24, v32")
    for n in range(1, 8):
        srcr = 32 + n // 2 + 4 * (n % 2)
        p(f"v_cmp_eq_u32 vcc, {n}, v3")
        p(f"v_cndmask_b32 v24, v24, v{srcr}, vcc")
    p(f"""
    v_lshlrev_b32 v9, 5, v8
    v_lshl_add_u32 v9, v3, 2, v9
    v_lshlrev_b32 v25, 27, v3
    v_and_b32 v25, 0x40000000, v25
    v_or_b32 v9, v9, v25
    s_lshl_b32 s38, s58, 7
    s_add_u32 s38, s38, {WS_STATS}
    """)
    p(f"buffer_atomic_add_f32 v24, v9, {W4}, s38 offen sc1", tag=zt)
    rz = zreads(1)
    for x in rz[:LEADZ]:
        p.extend(x)
    p(I("WAITTAG", tag=ZKEYS[1][1] + ZKEYS[1][2] + ZKEYS[1][3]))
    p("s_barrier")
    Z1ACC = 160
    p(f"""
    s_lshl_b32 s14, {s(S_PB)}, 7
    s_add_u32 s14, s14, {WS_FLAG + 8192}
    s_mov_b32 s15, {WS_FLAG + 8192}
    """)
    def sig_g():
        signal(p, SRD_W, 14, S_W, "g" + name, vt=48)
        stamp(p, 10)
    zgemm(1, rz, Z1ACC, hook=(opts.get("sigg", 35), sig_g))
    p("s_barrier")
    NB0 = opts.get("nb0", 4)
    gp = Prog("tmp")
    gelu_pairs(gp, [Z1ACC + 2*k for k in range(14)], 96)
    for k in range(14):
        gp(f"v_cvt_pk_bf16_f32 v{Z1+k}, v{Z1ACC+2*k}, v{Z1ACC+2*k+1}")
    interleave(gp.items, groups([bdma(dd, hf, first=True) for dd in range(NB0) for hf in range(2)]))
    p("s_load_dwordx2 s[4:5], s[0:1], 64")
    p("s_load_dwordx2 s[6:7], s[0:1], 96")
    p(f"""
    v_lshlrev_b32 v10, 6, v1
    s_lshl_b32 s34, {s(S_W)}, 12
    s_add_u32 s35, s34, {WS_STATS}
    s_add_u32 s34, s34, {PB0}
    v_lshlrev_b32 v12, 5, v1
    v_add_u32 v12, s34, v12
    v_add_u32 v13, s34, v2
    v_lshlrev_b32 v14, 5, v8
    v_add_u32 v14, s34, v14
    v_and_b32 v15, 1, v0
    v_lshlrev_b32 v15, 10, v15
    v_lshl_add_u32 v15, v8, 4, v15
    v_add_u32 v15, s34, v15
    v_lshrrev_b32 v9, 1, v3
    v_xor_b32 v9, v9, v8
    v_lshlrev_b32 v9, 4, v9
    v_lshl_add_u32 v9, v3, 7, v9
    v_add_u32 v{VRB}, s53, v9
    v_xor_b32 v{VRB+1}, 64, v{VRB}
    v_mov_b32 v11, {f2u(1e-5)}
    s_waitcnt lgkmcnt(0)
    """)
    srd(p, SRD_K, 4, 5, 4096)
    srd(p, SRD_O, 8, 9, 896 * 896)
    srd(p, SRD_Q, 6, 7, 2048 * 896)
    def b_reads(ks):
        dd = ks // 2
        return [I(f"ds_read_b128 {v(VB + 16*(ks % 2) + 4*nl, 4)}, v{VRB + ks % 2} offset:{(dd % 4)*8192 + nl*2048}",
                  tag=("rd", (f"B{dd % 4}", dd), "private")) for nl in range(4)]
    p("v_and_b32 v49, 31, v0")
    p("v_lshlrev_b32 v49, 7, v49")
    poll(p, SRD_W, 15, 49, 48, "g" + name, 56, 8)
    p.extend(b_reads(0))
    stamp(p, 11)
    if opts.get("gst"): stamp(p, 0)
    ST = GACC
    for k in range(4):
        p(f"buffer_load_dwordx4 {v(ST+4*k,4)}, v10, {W4}, s35 offen offset:{16*k} sc1")
    def aload(ks):
        out = [I(f"buffer_load_dwordx4 {a(A_A + 28*(ks % RA) + 4*mt, 4)}, v2, {W4}, s{54 + mt//4} offen offset:{(mt % 4)*1024}{LD}")
               for mt in range(7)]
        post = [I("s_add_u32 s54, s54, 7168"), I("s_add_u32 s55, s55, 7168")]
        return out, post
    NA0 = opts.get("na0", 2)
    for ks in range(NA0):
        o, post = aload(ks); p.extend(o); p.extend(post)
    MU = GACC + 16; R = GACC + 24; T = GACC + 64
    for k in range(8):
        p(f"v_mul_f32 v{MU+k}, {f2u(1.0/896)}, v{ST+2*k}")
        p(f"v_mul_f32 v{R+k}, {f2u(1.0/896)}, v{ST+2*k+1}")
        p(f"v_fma_f32 v{R+k}, -v{MU+k}, v{MU+k}, v{R+k}")
        p(f"v_max_f32 v{R+k}, 0, v{R+k}")
        p(f"v_add_f32 v{R+k}, v11, v{R+k}")
        p(f"v_rsq_f32 v{R+k}, v{R+k}")
    tg = ("wr", ("P", 0), "private")
    p(f"ds_write_b128 v12, {v(R,4)}", tag=tg)
    p(f"ds_write_b128 v12, {v(R+4,4)} offset:16", tag=tg)
    for k in range(4):
        p(f"v_cvt_pk_bf16_f32 v{T+k}, v{MU+2*k}, v{MU+2*k+1}")
        p(f"v_lshlrev_b32 v4, 16, v{T+k}")
        p(f"v_and_b32 v5, 0xffff0000, v{T+k}")
        p(f"v_sub_f32 v4, v{MU+2*k}, v4")
        p(f"v_sub_f32 v5, v{MU+2*k+1}, v5")
        p(f"v_cvt_pk_bf16_f32 v{T+4+k}, v4, v5")
    p(f"ds_write_b128 v13, {v(T,4)} offset:2048", tag=tg)
    p(f"ds_write_b128 v13, {v(T+4,4)} offset:3072", tag=tg)
    o, post = aload(NA0); p.extend(o); p.extend(post)
    p("s_waitcnt lgkmcnt(0)")
    rt = ("rd", ("P", 0), "private")
    def rs_reads(ks):
        return [I(f"ds_read_b128 {v(RS + 8*(ks % 2) + 4*h, 4)}, v14 offset:{128*ks + 16*h}", tag=rt) for h in range(2)]
    def mu_read(ks):
        return I(f"ds_read_b128 {a(A_MU + 4*(ks % 2), 4)}, v15 offset:{2048 + 64*ks}", tag=rt)
    def scale(ks, pk=False):
        out = []
        for nl in range(4):
            for d in range(4):
                x = VB + 16*(ks % 2) + 4*nl + d
                t = 4 + 2 * (d % 4)
                r = RS + 8*(ks % 2) + 2*d
                out.append(I(f"v_lshlrev_b32 v{t}, 16, v{x}"))
                out.append(I(f"v_and_b32 v{t+1}, 0xffff0000, v{x}"))
                if pk:
                    out.append(I(f"v_pk_mul_f32 {v(t,2)}, {v(t,2)}, {v(r,2)}"))
                else:
                    out.append(I(f"v_mul_f32 v{t}, v{t}, v{r}"))
                    out.append(I(f"v_mul_f32 v{t+1}, v{t+1}, v{r+1}"))
                out.append(I(f"v_cvt_pk_bf16_f32 v{x}, v{t}, v{t+1}"))
        return out
    p.extend(rs_reads(0)); p.extend(rs_reads(1)); p(mu_read(0))
    p.extend(scale(0, True))
    nexta = NA0 + 1
    nextb = 2 * NB0
    for ks in range(16):
        if opts.get("gst") and ks in (0, 4, 8, 12):
            stamp(p, 1 + ks // 4)
        SC = [[] for _ in range(33)]
        VE = [[] for _ in range(32)]
        kind = ["m"] * 32
        vm = []
        budget = opts.get("gbud", 11)
        def addb():
            nonlocal nextb, budget
            pre, o, post = bdma(nextb // 2, nextb % 2); nextb += 1; budget -= 4
            vm.extend([(pre if k == 0 else [], x, post if k == 3 else []) for k, x in enumerate(o)])
        def adda():
            nonlocal nexta, budget
            o, post = aload(nexta); nexta += 1; budget -= 7
            vm.extend([([], x, post if k == 6 else []) for k, x in enumerate(o)])
        while True:
            canb = nextb < 16 and nextb <= ks + 6 and budget >= 4
            cana = nexta < 16 and nexta <= ks + opts.get("glead", 3) and budget >= 7
            if canb and (not cana or budget >= 11):
                addb()
            elif cana:
                adda()
            else:
                break
        if ks == 13:
            p(f"""
            s_lshl_b32 s35, s58, 5
            v_lshlrev_b32 v12, 1, v3
            """)
            vm += [([], I(f"buffer_load_ushort v{Z1+14}, v12, {s(SRD_K,4)}, s35 offen"), [])]
        for k, (pre, x, post) in enumerate(vm):
            g = 3 + 2 * k if len(vm) > 11 else 6 + (k * 24) // 11
            kind[g] = "d"; VE[g] = [x]
            SC[g - 1] += pre
            SC[g + 1] += post
        mg = [g for g in range(32) if kind[g] == "m"]
        if ks + 1 < 16:
            if (ks + 1) % 2 == 0:
                SC[0].append(I("WAITTAG", tag=[(f"B{((ks+1)//2) % 4}", (ks+1)//2)]))
            br = b_reads(ks + 1) + [mu_read(ks + 1)] + (rs_reads(ks + 2) if ks + 2 < 16 else [])
            for k, x in enumerate(br):
                VE[mg[k]].append(x)
            ops = scale(ks + 1)
            mv = mg[4:]
            for k, x in enumerate(ops):
                VE[mv[(k * len(mv)) // len(ops)]].append(x)
            SC[mg[-1]].append(I(f"WAITFOR {a(A_A + 28*((ks+1) % RA), 28)}, {a(A_MU + 4*((ks+1) % 2), 4)}"))
        for g in range(32):
            mt, nl = g // 4, g % 4
            D = v(GACC + 16*mt + 4*nl, 4)
            Aop = a(A_A + 28*(ks % RA) + 4*mt, 4) if mt < 7 else a(A_MU + 4*(ks % 2), 4)
            p(f"v_mfma_f32_16x16x32_bf16 {D}, {Aop}, {v(VB + 16*(ks % 2) + 4*nl, 4)}, {D if ks else 0}")
            for x in SC[g] + VE[g]:
                p(x)
            if ks == 15:
                if g == 0:
                    p("v_add_u32 v4, s53, v2")
                g2 = g - 8
                if g2 >= 0 and g2 % 4:
                    p(f"ds_write_b128 v4, {v(GACC + 16*(g2//4) + 4*(g2 % 4), 4)} offset:{(g2 % 4 - 1)*8192 + (g2//4)*1024}", tag=("wr", ("X", 0)))
        assert not SC[32]
    assert nexta == 16 and nextb == 16
    stamp(p, 12)
    if opts.get("gst"): stamp(p, 5)
    for nl in range(1, 4):
        p(f"s_sub_u32 s34, {s(S_W)}, {nl}")
        p(f"s_and_b32 s34, s34, 3")
        p(f"s_lshl_b32 s34, s34, 15")
        p(f"v_add_u32 v{4+nl}, s34, v2")
    for mt in range(6, 8):
        for nl in range(1, 4):
            p(f"ds_write_b128 v4, {v(GACC + 16*mt + 4*nl, 4)} offset:{(nl-1)*8192 + mt*1024}", tag=("wr", ("X", 0)))
    p("s_waitcnt lgkmcnt(0)")
    if opts.get("gst"): stamp(p, 6)
    p("s_barrier")
    if opts.get("gst"): stamp(p, 7)
    for mt in (7, 0, 1, 2, 3, 4, 5, 6):
        for nl in range(1, 4):
            p(f"ds_read_b128 {v(GACC + 16*mt + 4*nl, 4)}, v{4+nl} offset:{(nl-1)*8192 + mt*1024}", tag=("rd", ("X", 0)))
    p(f"""
    s_mul_i32 s34, s58, {28*1024}
    s_add_u32 s34, s34, {WS_U}
    s_mul_i32 s35, s50, 7
    s_add_u32 s36, s35, 1
    s_lshr_b32 s36, s36, 1
    s_lshl_b32 s36, s36, 10
    s_add_u32 s36, s36, s34
    s_and_b32 s37, s50, 1
    s_mul_i32 s37, s37, 4088
    s_sub_u32 s37, s36, s37
    s_add_u32 s37, s37, 3072
    v_lshlrev_b32 v{Z1+14}, 16, v{Z1+14}
    """)
    def red(mt, n=2):
        X = GACC + 16*mt
        for h in range(n):
            p(f"v_pk_add_f32 {v(X+2*h,2)}, {v(X+2*h,2)}, {v(X+4+2*h,2)}")
            p(f"v_pk_add_f32 {v(X+8+2*h,2)}, {v(X+8+2*h,2)}, {v(X+12+2*h,2)}")
        for h in range(n):
            p(f"v_pk_add_f32 {v(X+2*h,2)}, {v(X+2*h,2)}, {v(X+8+2*h,2)}")
    red(7, 1)
    X7 = GACC + 112
    p(f"v_sub_f32 v8, v{Z1+14}, v{X7}")
    p(f"v_sub_f32 v8, v8, v{X7+1}")
    for ft in range(7):
        red(ft)
        X = GACC + 16*ft
        for h in range(2):
            p(f"v_pk_add_f32 {v(X+2*h,2)}, {v(X+2*h,2)}, v[8:9] op_sel_hi:[1,0]")
            p(f"v_lshlrev_b32 v{10+2*h}, 16, v{Z1+2*ft+h}")
            p(f"v_and_b32 v{11+2*h}, 0xffff0000, v{Z1+2*ft+h}")
            p(f"v_pk_mul_f32 {v(X+2*h,2)}, {v(X+2*h,2)}, {v(10+2*h,2)}")
        Y = GACC + 16*(ft & ~1) + 4 + 2*(ft % 2)
        p(f"v_cvt_pk_bf16_f32 v{Y}, v{X}, v{X+1}")
        p(f"v_cvt_pk_bf16_f32 v{Y+1}, v{X+2}, v{X+3}")
        if ft % 2 == 1:
            p(f"buffer_store_dwordx4 {v(Y-2,4)}, v2, {W4}, s36 offen offset:{(ft//2)*1024} sc1", tag=("wr", ("U", 0), "private"))
        if ft == 6:
            p(f"buffer_store_dwordx2 {v(Y,2)}, v2, {W4}, s37 offen sc1", tag=("wr", ("U", 0), "private"))
    if opts.get("gst"): stamp(p, 8)
    p("s_barrier")
    OACC = 64; A_B = 0; A_FO = 112; NRO = 8
    p(f"""
    s_lshl_b32 s33, {s(S_J)}, 2
    s_and_b32 s15, {s(S_PB)}, 3
    s_add_u32 s33, s33, s15              ; tb'
    s_lshr_b32 s32, {s(S_PB)}, 2         ; cb
    v_lshrrev_b32 v3, 3, v1
    v_mul_u32_u24 v3, 896, v3
    v_bfe_u32 v8, v0, 4, 2
    v_lshlrev_b32 v9, 1, v8
    v_and_b32 v10, 7, v0
    v_xor_b32 v9, v9, v10
    v_lshl_add_u32 v4, v9, 4, v3
    v_add_u32 v5, {7168-1024}, v4
    v_add_u32 v6, {2*(7168-1024)}, v4
    v_add_u32 v7, {3*(7168-1024)}, v4
    s_mul_i32 s34, {s(S_W)}, {224*896}
    s_lshl_b32 s35, s32, 7
    s_add_u32 s34, s34, s35
    s_lshl_b32 s14, s51, 7
    s_add_u32 s14, s14, {WS_FLAG + 12288}
    """)
    NW0 = opts.get("nw0", 3)
    def wdma(ks):
        p(f"s_add_u32 m0, s53, {ks*4096}")
        for k in range(4):
            p(f"buffer_load_dwordx4 v{4+k}, {s(SRD_O,4)}, s34 offen offset:{k*1024} lds", tag=("dma", [(f"W{ks}", 0), ("X", 1)]))
        p(f"s_add_u32 s34, s34, {4*7168}")
    for ks in range(NW0):
        wdma(ks)
    signal(p, SRD_W, 14, S_W, "o" + name, vt=48, keys=[("U", 0)])
    stamp(p, 13)
    if opts.get("gst"): stamp(p, 9)
    p(f"s_cmp_ge_u32 {s(S_PB)}, 28")
    p(f"s_cbranch_scc1 L_end{name}")
    for ks in range(NW0, 7):
        wdma(ks)
    X1 = 16; GB = 24
    for nl in range(4):
        p(f"s_add_u32 s36, {s(S_W)}, {nl}")
        p(f"s_and_b32 s36, s36, 3")
        p(f"s_lshl_b32 s37, s33, 2")
        p(f"s_add_u32 s36, s36, s37")
        p(f"s_mul_i32 s36, s36, {28*1024}")
        p(f"s_mul_i32 s37, {s(S_W)}, 7168")
        p(f"s_add_u32 s36, s36, s37")
        p(f"s_add_u32 s{4+nl}, s36, {WS_U}")
        p(f"s_add_u32 s{8+nl}, s{4+nl}, 4096")
    p(f"""
    s_lshl_b32 s36, s33, 2
    s_add_u32 s36, s36, {s(S_W)}
    s_mul_i32 s37, s36, {14*1024}
    s_lshl_b32 s38, s32, 11
    s_add_u32 s37, s37, s38
    s_add_u32 s37, s37, {WS_X1}
    buffer_load_dwordx4 {v(X1,4)}, v2, {W4}, s37 offen sc1
    buffer_load_dwordx4 {v(X1+4,4)}, v2, {W4}, s37 offen offset:1024 sc1
    v_lshlrev_b32 v9, 4, v8
    s_lshl_b32 s38, s32, 8
    s_add_u32 s38, s38, {WS_MOD + 5*1792}
    """)
    for ct in range(4):
        p(f"buffer_load_dwordx4 {v(GB+4*ct,4)}, v9, {W4}, s38 offen offset:{64*ct} sc1")
    p(f"""
    v_lshrrev_b32 v3, 2, v1
    v_lshlrev_b32 v3, 7, v3
    v_bfe_u32 v10, v0, 3, 2
    v_lshl_add_u32 v3, v10, 5, v3
    v_and_b32 v10, 3, v0
    v_lshl_add_u32 v3, v10, 3, v3
    v_add_u32 v12, s53, v3
    v_xor_b32 v13, 32, v12
    v_xor_b32 v14, 64, v12
    v_xor_b32 v15, 0x60, v12
    v_mov_b32 v10, 0
    s_lshl_b32 s15, s33, 7
    s_add_u32 s15, s15, {WS_FLAG + 12288}
    """)
    poll(p, SRD_W, 15, 10, 48, "o" + name, 56, 8)
    stamp(p, 14)
    ul = [I(f"buffer_load_dwordx4 {a(A_B + 16*ks + 4*nl, 4)}, v2, {W4}, s{4 + nl + 4*(ks//4)} offen offset:{(ks % 4)*1024}{LD}")
          for ks in range(7) for nl in range(4)]
    p.extend(ul[:16]); ul = ul[16:]
    def rd(f):
        ks, ct = f // 4, f % 4
        return [I(f"ds_read_b64_tr_b16 {a(A_FO + 4*(f % NRO) + 2*e, 2)}, v{12+ct} offset:{ks*4096 + e*2048}",
                  tag=("rd", (f"W{ks}", 0), "private")) for e in range(2)]
    PFO = 4
    for f in range(PFO):
        p.extend(rd(f))
    for f in range(28):
        ks, ct = f // 4, f % 4
        nx = f + PFO
        for nl in range(4):
            D = v(OACC + 16*ct + 4*nl, 4)
            p(f"v_mfma_f32_16x16x32_bf16 {D}, {a(A_FO + 4*(f % NRO), 4)}, {a(A_B + 16*ks + 4*nl, 4)}, {D if ks else 0}")
            if nx < 28 and nl < 2:
                p(rd(nx)[nl])
            if nl == 2 and ul:
                p(ul.pop(0))
            if nl == 3 and f + 1 < 28:
                p(f"WAITFOR {a(A_FO + 4*((f+1) % NRO), 4)}, {a(A_B + 16*((f+1)//4), 16)}")
    p("v_add_u32 v4, s53, v2")
    for nl in range(1, 4):
        p(f"s_sub_u32 s36, {s(S_W)}, {nl}")
        p(f"s_and_b32 s36, s36, 3")
        p(f"s_lshl_b32 s36, s36, 15")
        p(f"v_add_u32 v{4+nl}, s36, v2")
    for ct in range(4):
        for nl in range(1, 4):
            p(f"ds_write_b128 v4, {v(OACC + 16*ct + 4*nl, 4)} offset:{(nl-1)*4096 + ct*1024}", tag=("wr", ("Y", 0)))
    p("s_waitcnt lgkmcnt(0)")
    p("s_barrier")
    for ct in range(4):
        for nl in range(1, 4):
            p(f"ds_read_b128 {v(OACC + 16*ct + 4*nl, 4)}, v{4+nl} offset:{(nl-1)*4096 + ct*1024}", tag=("rd", ("Y", 0)))
    p(f"""
    v_and_b32 v3, 15, v0
    v_mul_u32_u24 v3, 896, v3
    v_lshl_add_u32 v3, v8, 4, v3
    s_lshl_b32 s36, s33, 2
    s_add_u32 s36, s36, {s(S_W)}
    s_mul_i32 s36, s36, {16*896}
    s_lshl_b32 s37, s32, 7
    s_add_u32 s36, s36, s37
    """)
    for ct in range(4):
        X = OACC + 16*ct
        for h in range(2):
            p(f"v_pk_add_f32 {v(X+2*h,2)}, {v(X+2*h,2)}, {v(X+4+2*h,2)}")
            p(f"v_pk_add_f32 {v(X+8+2*h,2)}, {v(X+8+2*h,2)}, {v(X+12+2*h,2)}")
        for h in range(2):
            p(f"v_pk_add_f32 {v(X+2*h,2)}, {v(X+2*h,2)}, {v(X+8+2*h,2)}")
            p(f"v_lshlrev_b32 v{10}, 16, v{X1+2*ct+h}")
            p(f"v_and_b32 v{11}, 0xffff0000, v{X1+2*ct+h}")
            p(f"v_pk_fma_f32 {v(X+2*h,2)}, {v(X+2*h,2)}, {v(GB+4*ct+2*h,2)}, v[10:11]")
        k, odd = ct // 2, ct % 2
        O = 40 + 4*k + 2*odd
        p(f"v_cvt_pk_bf16_f32 v{O}, v{X}, v{X+1}")
        p(f"v_cvt_pk_bf16_f32 v{O+1}, v{X+2}, v{X+3}")
        if odd:
            O = 40 + 4*k
            p(f"v_permlane32_swap_b32 v{O}, v{O+2}")
            p(f"v_permlane32_swap_b32 v{O+1}, v{O+3}")
            p(f"v_permlane16_swap_b32 v{O}, v{O+2}")
            p(f"v_permlane16_swap_b32 v{O+1}, v{O+3}")
            p(f"buffer_store_dwordx4 {v(O,4)}, v3, {s(SRD_Q,4)}, s36 offen offset:{64*k}")
    k_prep.STAMP["on"] = son
    if opts.get("diag"):
        p("s_waitcnt vmcnt(0)")
        stamp(p, 15)
        p("v_mov_b32 v1, 0")
        p("s_mov_b64 exec, 1")
        p("s_not_b32 s14, s61")
        p("v_mov_b32 v2, s14")
        p(f"buffer_atomic_umax v2, v1, {s(SRD_D,4)}, 0 offen offset:8 sc1")
        for k, st in enumerate((1, 2, 3, 4, 5, 7, 10, 11, 12, 13, 15)):
            p(f"v_mov_b32 v3, s{61+2*st}")
            p(f"buffer_atomic_umax v3, v1, {s(SRD_D,4)}, 0 offen offset:{12+4*k} sc1")
            p("s_nop 1")
        p("s_mov_b64 exec, -1")
        k_prep.STAMP["on"] = False
    stamp_dump(p, opts.get("slot", 1), NSTAMP, SRD_W, S_W)
    p(f"L_end{name}:")
    p("s_endpgm")
    p.finalize()
    return p


def gen_mega(opts=None):
    p0 = build_mega(opts or {})
    if (opts or {}).get("plain"):
        return p0, "; @launch grid=(256,1,1) block=(256,1,1) lds=163840\n"
    return p0, f"; @launch kernel={p0.name} grid=(256,1,1) block=(256,1,1) lds=163840\n"
```

```python
import sys
sys.path.insert(0, "work")
from asmlib import *
from layout import *
from k_prep import srd, f2u, stamp, stamp_dump, code_prefetch, signal, poll
from k_red import emit_red_pre, emit_red

SLOT = 16640
V_WDMA = 4
V_WRD = 8
V_LIN = 12
V_XW = 13; V_XR = 14; V_TMP = 15
V_H = 16
V_O = 128
V_S = [96, 112]
V_NEGM = 80
V_P = [64, 72]
V_E = 56
V_KRD = 40
V_VRD = 48
V_KDMA = 32
V_VDMA = 36
V_L = 50
V_TS = 52
V_T0 = 54; V_T1 = 55
V_T2 = 30; V_T3 = 31
A_Q = 0
A_F = 64
NR = 16
SRD_K, SRD_V, SRD_W, SRD_Q, SRD_O = 16, 20, 24, 40, 44
S_W, S_J, S_PB = 28, 29, 30
S_KOFF, S_VOFF, S_M0K, S_M0V, S_CNT, S_THR = 32, 33, 34, 35, 36, 37
S_WOFF, S_WBASE, S_HD, S_QT = 38, 39, 48, 49
MODL = 9 * SLOT
LDS_BYTES = 9 * SLOT + 8192
A_HP = 128


def make_plan(gJ=24, gB=52, d0=3, e_first=2, e_last=58):
    pl = ["m"] * 64
    for k in range(8):
        pl[(d0 + 8 * k) % 64] = "d"
    assert pl[gJ] == "m" and pl[gB] == "m"
    pl[gJ] = "j"; pl[gB] = "B"
    es = []
    for r in range(16):
        g = gJ + e_first + round(r * (e_last - e_first) / 15)
        while pl[g % 64] != "m":
            g += -1 if r == 15 else 1
        pl[g % 64] = "e"
        es.append(g % 64)
    for i in range(10):
        g = es[(i * 16) // 10] - 1
        while pl[g % 64] != "m":
            g -= 1
        pl[g % 64] = "t"
    return "".join(pl)


def frag(f):
    return A_F + 4 * (f % NR)


def slot_of(kind, t):
    return (t % 4) + (4 if kind == "K" else 0)


class Attn:
    def __init__(self, opts):
        self.o = opts
        self.plan = opts.get("plan", make_plan())
        pl = self.plan
        assert len(pl) == 64
        assert pl.count("e") + pl.count("E") == 16
        assert pl.count("d") == 8 and pl.count("B") == 1 and pl.count("j") == 1
        nds = pl.count("m") + pl.count("E") + 2 * pl.count("t")
        assert nds == 48, nds
        self.gB = pl.index("B"); self.gJ = pl.index("j")
        dsg = []
        for k in range(1, 65):
            g = (self.gB + k) % 64
            if pl[g] in "mE": dsg.append(g)
            if pl[g] == "t": dsg += [g, g]
        ops = [(f, 0) for f in range(16)] + [(f, e) for f in range(16, 32) for e in range(2)]
        self.ds = {}
        leads = []
        for g, (f, e) in zip(dsg, ops):
            nxt = g > self.gB
            assert not (nxt and f >= 16)
            self.ds.setdefault(g, []).append((f, e, nxt))
            leads.append(2 * f + (64 if nxt else 0) - g)
        assert max(leads) < 2 * NR - 2
        self.va = {}
        exps, rest = self.softmax_parts(0)
        done = set()
        ie = ir = 0
        for k in range(1, 64):
            g = (self.gJ + k) % 64
            add = []
            if pl[g] in "eE":
                self.va.setdefault(g, []).append(("e", ie)); add = [ie]; ie += 1
            elif pl[g] == "m":
                if ir < len(rest) and all(d in done for d in rest[ir][1]):
                    self.va.setdefault(g, []).append(("r", ir)); ir += 1
            done.update(add)
        assert ie == 16 and ir == len(rest), (ir, len(rest))
        self.nafter = sum(1 for g in range(64) if pl[g] == "d" and g > self.gB)

    @staticmethod
    def key(kind, t):
        return (slot_of(kind, t), 100 + t)

    def kread(self, tfn, c, f):
        kt, sx = f // 8, f % 8
        return I(f"ds_read_b128 {a(frag(f),4)}, {v(V_KRD + sx % 4)} offset:{(c % 4)*SLOT + kt*8192 + (sx//4)*256}",
                 tag=("rd", lambda it: self.key("K", tfn(it))))

    def vread(self, tfn, c, f, e):
        t = f - 16
        return I(f"ds_read_b64_tr_b16 {a(frag(f)+2*e,2)}, {v(V_VRD + t % 2)} offset:{(c % 4)*SLOT + e*2048 + 64*(t//2)}",
                 tag=("rd", lambda it: self.key("V", tfn(it))))

    def dma(self, kind, tfn, jj):
        tag = ("dma", lambda it: self.key(kind, tfn(it)))
        if kind == "K":
            return I(f"buffer_load_dwordx4 {v(V_KDMA+jj)}, {s(SRD_K,4)}, {s(S_KOFF)} offen offset:{jj*1024}{self.o.get('kvf', ' nt')} lds", tag=tag)
        return I(f"buffer_load_dwordx4 {v(V_VDMA+jj)}, {s(SRD_V,4)}, {s(S_VOFF)} offen offset:{jj*1024}{self.o.get('kvf', ' nt')} lds", tag=tag)

    def m0(self, kind, c):
        if kind == "K":
            return I(f"s_add_u32 m0, {s(S_M0K)}, {slot_of('K', c)*SLOT}")
        return I(f"s_add_u32 m0, {s(S_M0V)}, {slot_of('V', c)*SLOT}")

    def adv(self, kind):
        r = S_KOFF if kind == "K" else S_VOFF
        return I(f"s_add_u32 {s(r)}, {s(r)}, 16384")

    def wfill(self, which, st, hf):
        if which == "Q":
            pair = st % 4
            off = ((st + 7 * hf) % 14) * 32 * 8192 + hf * 512
            srdw = SRD_Q
            gen = st
        else:
            pair = (st + 2) % 4
            off = ((st + 8 * hf) % 16) * 32 * 896 + hf * 448
            srdw = SRD_O
            gen = 200 + st
        slot = 2 * pair + hf
        pre = [I(f"s_add_u32 m0, {s(S_M0V)}, {slot*SLOT}"), I(f"s_add_u32 {s(S_WOFF)}, {s(S_WBASE)}, {off}")]
        d = [I(f"buffer_load_dwordx4 {v(V_WDMA+jj)}, {s(srdw,4)}, {s(S_WOFF)} offen offset:{jj*1024} lds",
               tag=("dma", (slot, gen))) for jj in range(4)]
        return pre, d

    OPAIR = [2, 3, 0]
    WDR = [44, 45, 46, 47, 28, 29, 95]

    def okeys(self, st):
        pr = self.OPAIR[st % 3]
        return [(2 * pr, 200 + st), (2 * pr + 1, 200 + st)]

    def ofill(self, st, hf):
        pr = self.OPAIR[st % 3]
        pre = [I(f"s_add_u32 m0, s59, {2*pr*SLOT + hf*4096}"), I(f"s_add_u32 {s(S_WOFF)}, {s(S_WBASE)}, {st*28672 + hf*4096}")]
        d = [I(f"buffer_load_dwordx4 v{self.WDR[m]}, {s(SRD_O,4)}, {s(S_WOFF)} offen offset:{(m % 4)*1024} lds",
               tag=("dma", self.okeys(st))) for m in range(4*hf, min(7, 4*hf + 4))]
        return pre, d

    def wkeys(self, which, st):
        pair = st % 4 if which == "Q" else (st + 2) % 4
        gen = st if which == "Q" else 200 + st
        return [(2 * pair, gen), (2 * pair + 1, gen)]

    def wread(self, which, st, t, e, f):
        pair = st % 4 if which == "Q" else (st + 2) % 4
        return I(f"ds_read_b64_tr_b16 {a(frag(f)+2*e,2)}, {v(V_WRD + 2*(pair//2) + t % 2)} "
                 f"offset:{(pair % 2)*2*SLOT + e*2048 + 64*(t//2)}", tag=("rd", self.wkeys(which, st)))

    def kvfill(self, kind, t, jjs=range(4)):
        pre = [self.m0(kind, t)]
        d = [self.dma(kind, (lambda t: lambda it: t)(t), jj) for jj in jjs]
        post = [self.adv(kind)] if 3 in jjs else []
        return pre, d, post

    def softmax_parts(self, par):
        S = V_S[par]; P = V_P[par]
        exps = [I(f"v_exp_f32 {v(V_E + r % 8)}, {v(S + r)}") for r in range(16)]
        rest = []
        rest.append((I(f"v_add_f32 {v(V_L)}, {v(V_L)}, {v(V_TS)}"), [], True))
        rest.append((I(f"v_add_f32 {v(V_L+1)}, {v(V_L+1)}, {v(V_TS+1)}"), [], True))
        for q in range(16):
            kt, qt, i = q // 8, (q // 4) % 2, q % 4
            ts = v(V_TS + qt)
            e = v(V_E + q % 8)
            if kt == 0 and i == 0:
                pass
            elif kt == 0 and i == 1:
                rest.append((I(f"v_add_f32 {ts}, {v(V_E + (q-1) % 8)}, {e}"), [q-1, q], False))
            else:
                rest.append((I(f"v_add_f32 {ts}, {ts}, {e}"), [q], False))
            if q == 15:
                rest.append((I(f"v_add_f32 {v(V_T2)}, {v(V_TS)}, {v(V_TS+1)}"), [q], False))
                rest.append((I(f"v_cmp_lt_f32 vcc, {s(S_THR)}, {v(V_T2)}"), [q], False))
            if q % 2 == 1:
                rest.append((I(f"v_cvt_pk_bf16_f32 {v(P + 4*qt + 2*kt + i // 2)}, {v(V_E + (q-1) % 8)}, {e}"), [q-1, q], False))
        return exps, rest

    def softmax_linear(self, par):
        exps, rest = self.softmax_parts(par)
        out = []
        ir = 2
        for r in range(16):
            out.append(exps[r])
            while ir < len(rest) and max(rest[ir][1]) < r:
                out.append(rest[ir][0]); ir += 1
        out += [x[0] for x in rest[ir:]]
        return out

    def body(self, p, c, A, aval=None, lid=None, extra_scalar=None, extra_valu=None):
        pl = self.plan
        par = c % 2
        gB, gJ = self.gB, self.gJ
        first = aval == -1
        do_pv = not first
        do_qk = aval is None or aval + 1 <= 63
        next_k = aval is None or aval + 2 <= 63
        SC = [[] for _ in range(64)]
        VE = [[] for _ in range(64)]
        cur = self.softmax_parts(par)
        nxt = self.softmax_parts(1 - par)
        late = []
        for g in range(64):
            for (f, e, nx) in self.ds.get(g, []):
                if nx:
                    if next_k:
                        VE[g].append(self.kread(lambda it: A(it)+2, c+2, f))
                elif f < 16:
                    if do_qk:
                        VE[g].append(self.kread(lambda it: A(it)+1, c+1, f))
                else:
                    if do_pv:
                        VE[g].append(self.vread(A, c, f, e))
            for kind, idx in self.va.get(g, []):
                if g < gJ:
                    if do_pv:
                        VE[g].append(cur[0][idx] if kind == "e" else cur[1][idx][0])
                else:
                    if kind == "r" and nxt[1][idx][2]:
                        if do_pv:
                            VE[g].append(nxt[1][idx][0])
                    elif do_qk:
                        x = nxt[0][idx] if kind == "e" else nxt[1][idx][0]
                        if first and g < 32:
                            late.append(x)
                        else:
                            VE[g].append(x)
        if do_pv:
            VE[gJ].append(I(f"s_cbranch_vccnz L_fb{lid}"))
            VE[gJ].append(I(f"L_ret{lid}:"))
        def bartags(it):
            av = A(it)
            ks = []
            if av + 2 <= 63: ks.append(self.key("K", av + 2))
            if av + 1 <= 63: ks.append(self.key("V", av + 1))
            if av == 63: ks += self.okeys(0)
            return ks
        VE[gB].append(I("WAITTAG", tag=bartags))
        VE[gB].append(I("s_barrier"))
        for g, x in (extra_valu or []):
            VE[g].append(x)
        dg = [g for g in range(64) if pl[g] == "d"]
        after = [g for g in dg if g > gB]
        before = [g for g in dg if g < gB]
        def free_sc(g, step):
            while pl[g % 64] in "dBj" or SC[g % 64]:
                g += step
            assert 0 <= g < 64
            return g
        seq = [("V", 3, jj) for jj in range(4)] + [("K", 5, jj) for jj in range(4)]
        for i, g in enumerate(after + before):
            kind, off, jj = seq[i]
            if g < gB:
                off -= 1
            if aval is not None and aval + off > 63:
                t = aval + off
                m = {("K", 65): (0, 0), ("V", 64): (0, 1), ("V", 65): (1, 0), ("K", 67): (1, 1)}.get((kind, t))
                if m is None:
                    continue
                pre, d = self.ofill(m[0], m[1])
                if jj >= len(d):
                    continue
                VE[g].append(d[jj])
                if jj == 0:
                    for x in pre:
                        SC[free_sc(g - 1, -1)].append(x)
                continue
            VE[g].append(self.dma(kind, (lambda off: lambda it: A(it) + off)(off), jj))
            if jj == 0:
                SC[free_sc(g - 1, -1)].append(self.m0(kind, c + off))
            if jj == 3:
                SC[free_sc(g + 1, 1)].append(self.adv(kind))
        for g, x in (extra_scalar or []):
            SC[free_sc(g, -1)].append(x)
        WG = 2
        for f0 in range(0, 32, WG):
            fs = list(range(f0, f0 + WG))
            if f0 == 0:
                if not next_k: continue
                g = free_sc(63, -1)
            else:
                if (f0 < 16 and not do_qk) or (f0 >= 16 and not do_pv): continue
                g = free_sc(2 * f0 - 1, -1)
            SC[g].append(I("WAITFOR " + ", ".join(a(frag(f), 4) for f in fs)))
        for g in range(64):
            f, qt = g // 2, g % 2
            if self.o.get("gray") and f >= 16 and f % 2:
                qt = 1 - qt
            fr = a(frag(f), 4)
            if f < 16 and do_qk:
                Sx = V_S[1-par]
                kt, sx = f // 8, f % 8
                D = v(Sx + 8*kt + 4*qt, 4)
                C = D if sx else ("0" if first else v(V_NEGM + 4*qt, 4))
                p(f"v_mfma_f32_16x16x32_bf16 {D}, {fr}, {a(A_Q + 8*sx + 4*qt, 4)}, {C}")
            if f >= 16 and do_pv:
                O = v(V_O + 8*(f-16) + 4*qt, 4)
                C = "0" if aval == 0 else O
                p(f"v_mfma_f32_16x16x32_bf16 {O}, {fr}, {v(V_P[par] + 4*qt, 4)}, {C}")
            for x in SC[g] + VE[g]:
                p(x)
            if g == 31 and first:
                S0 = V_S[1-par]
                self.tile_max(p, S0)
                self.apply_delta(p, S0, None, init=True)
                for x in late:
                    p(x)

    def tile_max(self, p, S):
        for qt in range(2):
            T = V_T0 + qt
            rs = [S + 4*qt + i for i in range(4)] + [S + 8 + 4*qt + i for i in range(4)]
            p(f"v_max3_f32 {v(T)}, {v(rs[0])}, {v(rs[1])}, {v(rs[2])}")
            p(f"v_max3_f32 {v(T)}, {v(T)}, {v(rs[3])}, {v(rs[4])}")
            p(f"v_max3_f32 {v(T)}, {v(T)}, {v(rs[5])}, {v(rs[6])}")
            p(f"v_max_f32 {v(T)}, {v(T)}, {v(rs[7])}")
            self.xreduce(p, T, "v_max_f32")

    def xreduce(self, p, T, op):
        p(f"v_mov_b32 {v(V_T3)}, {v(T)}")
        p(f"v_permlane32_swap_b32 {v(T)}, {v(V_T3)}")
        p(f"{op} {v(T)}, {v(T)}, {v(V_T3)}")
        p(f"v_mov_b32 {v(V_T3)}, {v(T)}")
        p(f"v_permlane16_swap_b32 {v(T)}, {v(V_T3)}")
        p(f"{op} {v(T)}, {v(T)}, {v(V_T3)}")

    def apply_delta(self, p, S, Sn, init=False):
        T = lambda r: v(V_T0 + (r // 4) % 2)
        for r in range(8):
            src = "0" if init else v(V_NEGM + r)
            p(f"v_sub_f32 {v(V_NEGM+r)}, {src}, {T(r)}")
        for r in range(16):
            p(f"v_sub_f32 {v(S+r)}, {v(S+r)}, {T(r)}")
        if Sn is not None:
            for r in range(16):
                p(f"v_sub_f32 {v(Sn+r)}, {v(Sn+r)}, {T(r)}")

    def fallback(self, p, par, lid, has_next):
        p.begin_side()
        p(f"L_fb{lid}:")
        p("s_nop 15")
        S = V_S[par]; Sn = V_S[1-par]
        self.tile_max(p, S)
        for qt in range(2):
            p(f"v_max_f32 {v(V_T0+qt)}, 0, {v(V_T0+qt)}")
        self.apply_delta(p, S, Sn if has_next else None)
        for qt in range(2):
            p(f"v_sub_f32 {v(V_T0+qt)}, 0, {v(V_T0+qt)}")
            p(f"v_exp_f32 {v(V_T0+qt)}, {v(V_T0+qt)}")
            p(f"v_mul_f32 {v(V_L+qt)}, {v(V_L+qt)}, {v(V_T0+qt)}")
        for r in range(128):
            p(f"v_mul_f32 {v(V_O+r)}, {v(V_O+r)}, {v(V_T0 + (r // 4) % 2)}")
        for x in self.softmax_linear(par):
            p(x)
        p("s_nop 1")
        p(f"s_branch L_ret{lid}")
        p.end_side()

    def gemm_phase(self, p, which, nst, nm, mfma_fn, fills, bartags, valu, xds):
        LEAD = self.o.get("lead", 18)
        SP = self.o.get("sp", 3)
        G = 2 * nm
        N = nst * G
        gb = G - LEAD - 1
        kindg = ["m"] * (N + 64)
        SC = [[] for _ in range(N + 64)]
        VE = [[] for _ in range(N + 64)]
        tail = []
        for i in range(nst):
            bt = bartags(i)
            if bt is not None:
                g = i * G + gb
                kindg[g] = "B"
                VE[g] = [I("WAITTAG", tag=bt), I("s_barrier")]
        for i in range(nst):
            k = 0
            for pre, d, post in fills(i):
                for jj, x in enumerate(d):
                    g = i * G + gb + 3 + k * SP
                    k += 1
                    if g >= N:
                        if jj == 0: tail += pre
                        tail.append(x)
                        if jj == len(d) - 1: tail += post
                        continue
                    assert kindg[g] == "m" and kindg[g-1] == "m" and kindg[g-2] == "m", (i, g)
                    kindg[g] = "d"
                    VE[g] = [x]
                    if jj == 0:
                        for kk, y in enumerate(pre):
                            SC[g - len(pre) + kk].append(y)
                    if jj == len(d) - 1:
                        if g + 1 < N: SC[g + 1] += post
                        else: tail += post
        dsq = []
        for i in range(nst):
            for t in range(nm):
                f = i * nm + t
                for e in range(2):
                    dsq.append((i * G + 2 * t + e - LEAD, self.wread(which, i, t, e, f), i * G + 2 * t))
        for i in range(nst):
            xs = xds(i)
            lo = max(0, (i - 1) * G + gb + 1); hi = i * G + gb - 4
            for k, x in enumerate(xs):
                g = lo + (k * (hi - lo)) // len(xs)
                if x.kind == "ds_write":
                    while kindg[g] != "m": g += 1
                    kindg[g] = "x"
                    VE[g] = [x]
                else:
                    dsq.append((g, x, i * G + gb + 6))
        dsq.sort(key=lambda z: z[0])
        for (g, x, c) in dsq:
            if g < 0: p(x)
        dsq = [z for z in dsq if z[0] >= 0]
        nds = [0] * (N + 64)
        q = 0
        minlead = 99
        for g in range(N):
            if kindg[g] != "m":
                continue
            while q < len(dsq) and dsq[q][0] <= g and nds[g] < 2:
                VE[g].append(dsq[q][1]); nds[g] += 1
                minlead = min(minlead, dsq[q][2] - g)
                q += 1
        assert q == len(dsq)
        assert minlead >= 7, minlead
        for i in range(nst):
            ops = valu(i)
            slots = []
            for g in range(i * G, (i + 1) * G):
                if kindg[g] == "m":
                    slots += [g] * (2 - nds[g])
            mg = [g for g in range(i * G, (i + 1) * G) if kindg[g] == "m"]
            k = 0
            while len(slots) < len(ops):
                slots.append(mg[(k * 7) % len(mg)]); k += 1
            slots.sort()
            for k, x in enumerate(ops):
                VE[slots[(k * len(slots)) // len(ops)]].append(x)
        for f0 in range(2, nst * nm, 2):
            g = 2 * f0 - 1
            while kindg[g] in "dB" or SC[g]:
                g -= 1
            SC[g].append(I("WAITFOR " + ", ".join(a(frag(f), 4) for f in (f0, f0 + 1))))
        for g in range(N):
            i, t, qt = g // G, (g % G) // 2, g % 2
            p(mfma_fn(i, t, qt, a(frag(i * nm + t), 4)))
            abl = self.o.get("gabl", "")
            for x in SC[g] + VE[g]:
                if "D" in abl and x.kind == "dma": continue
                if "B" in abl and x.kind == "barrier": continue
                if "R" in abl and x.kind == "ds_read": continue
                if "W" in abl and x.kind == "ds_write": continue
                if "V" in abl and x.kind == "valu" and (x.mn == "v_mul_f32" or "cvt" in x.mn): continue
                p(x)
        for x in tail:
            p(x)


def gen_attn(opts=None):
    opts = opts or {}
    name = opts.get("name", "attn_kernel")
    p = Prog(name)
    at = Attn(opts)
    thr = opts.get("thr", 0x5f800000)
    p(f"""
    s_cmp_ge_u32 s2, 256
    s_cbranch_scc1 L_end{name}
    s_load_dwordx8 s[4:11], s[0:1], 8
    s_load_dwordx2 s[12:13], s[0:1], 112
    v_lshrrev_b32 v1, 6, v0
    v_readfirstlane_b32 {s(S_W)}, v1
    s_and_b32 {s(S_J)}, s2, 7
    s_lshr_b32 {s(S_PB)}, s2, 3
    v_and_b32 v1, 63, v0
    v_lshlrev_b32 {v(V_LIN)}, 4, v1
    s_lshr_b32 {s(S_HD)}, {s(S_W)}, 1
    s_and_b32 s14, {s(S_W)}, 1
    s_lshl_b32 {s(S_QT)}, {s(S_PB)}, 2
    s_lshl_b32 s14, s14, 1
    s_add_u32 {s(S_QT)}, {s(S_QT)}, s14
    s_waitcnt lgkmcnt(0)
    """)
    stamp(p, 0)
    srd(p, SRD_W, 12, 13, WS_USED)
    srd(p, SRD_Q, 8, 9, 448 * 8192)
    def extras():
        if opts.get("touch", True):
            p(f"""
            v_lshrrev_b32 v1, {4 if opts.get("t64", False) else 3}, v0
            v_min_u32 v1, 13, v1
            v_lshlrev_b32 v1, 13, v1
            v_and_b32 v2, {15 if opts.get("t64", False) else 7}, v0
            v_lshl_add_u32 v1, v2, {6 if opts.get("t64", False) else 7}, v1
            s_mul_i32 s53, {s(S_PB)}, {14*8192}
            s_add_u32 s53, s53, {s(S_WBASE)}
            buffer_load_dword v{V_O+127}, v1, {s(SRD_Q,4)}, s53 offen
            """)
        if opts.get("cpf", True):
            code_prefetch(p, name, f"L_end{name}", 12, 1, V_O + 126)
    p(f"s_lshl_b32 {s(S_WBASE)}, {s(S_J)}, 10")
    extras()
    V_MRD = 3
    p(f"""
    s_mul_i32 s14, {s(S_QT)}, {14*1024}
    s_mul_i32 s15, {s(S_HD)}, {7*1024}
    s_add_u32 s14, s14, s15
    s_add_u32 s14, s14, {WS_XN}
    s_add_u32 s15, s14, {14*1024}
    s_add_u32 s50, s14, 4096
    s_add_u32 s51, s15, 4096
    s_lshl_b32 s52, {s(S_W)}, 11
    s_add_u32 s52, s52, {MODL}
    s_mov_b32 m0, s52
    s_mul_i32 s53, {s(S_HD)}, 896
    s_add_u32 s54, s53, {WS_MOD + 1792 - 1024}
    """)
    mt = ("dma", ("M", 0), "private")
    p(f"buffer_load_dwordx4 {v(V_LIN)}, {s(SRD_W,4)}, s53 offen offset:{WS_MOD} lds", tag=mt)
    p(f"buffer_load_dwordx4 {v(V_LIN)}, {s(SRD_W,4)}, s54 offen offset:1024 lds", tag=mt)
    for ks in range(7):
        for qt in range(2):
            so = (14 + qt) if ks < 4 else (50 + qt)
            p(f"buffer_load_dwordx4 {v(V_H+8*ks+4*qt,4)}, {v(V_LIN)}, {s(SRD_W,4)}, s{so} offen offset:{(ks % 4)*1024}")
    p(f"""
    s_mul_i32 {s(S_M0V)}, {s(S_W)}, 4160
    s_lshl_b32 {s(S_M0K)}, {s(S_W)}, 12
    s_lshl_b32 {s(S_WBASE)}, {s(S_J)}, 10
    v_bfe_u32 v1, v0, 5, 1              ; hh
    v_and_b32 v2, 31, v0
    v_lshlrev_b32 {v(V_TMP)}, 1, v1
    v_xor_b32 v2, v2, {v(V_TMP)}        ; chunk
    v_lshlrev_b32 v1, 3, v1
    v_add_u32 v1, {s(S_W)}, v1          ; 8hh + w
    v_lshlrev_b32 v1, 13, v1
    v_lshl_add_u32 {v(V_WDMA)}, v2, 4, v1
    """)
    for jj in range(1, 4):
        p(f"v_add_u32 {v(V_WDMA+jj)}, {(16*(jj % 2) + 4*(jj//2))*8192 - jj*1024}, {v(V_WDMA)}")
    def emit_wfill(which, st):
        for hf in range(2):
            pre, d = at.wfill(which, st, hf)
            p.extend(pre); p.extend(d)
    emit_wfill("Q", 0)
    p(f"""
    v_bfe_u32 v1, v0, 2, 2
    v_mul_u32_u24 v1, 4160, v1
    v_and_b32 v2, 3, v0
    v_lshl_add_u32 v1, v2, 3, v1
    v_bfe_u32 v2, v0, 4, 2
    v_lshl_add_u32 v1, v2, 9, v1
    v_lshlrev_b32 v{V_MRD}, 5, v2
    v_add_u32 v{V_MRD}, s52, v{V_MRD}
    v_bfe_u32 v2, v0, 4, 1
    v_lshl_add_u32 {v(V_TMP)}, v2, 5, v1
    s_mul_i32 s14, {s(S_HD)}, {SLOT}
    v_add_u32 {v(V_WRD)}, s14, {v(V_TMP)}
    v_xor_b32 {v(V_WRD+1)}, 32, {v(V_WRD)}
    v_add_u32 {v(V_WRD+2)}, {4*SLOT}, {v(V_WRD)}
    v_add_u32 {v(V_WRD+3)}, {4*SLOT}, {v(V_WRD+1)}
    s_lshl_b32 s14, {s(S_W)}, 12
    s_add_u32 s14, s14, {8*SLOT}
    v_add_u32 {v(V_XW)}, s14, {v(V_LIN)}
    v_xor_b32 {v(V_XR)}, 0x2000, {v(V_XW)}
    """)
    MB = 72
    TM = 120
    def modreads(ks):
        M = MB + 16 * (ks % 3)
        rt = ("rd", ("M", 0), "private")
        return [I(f"ds_read_b128 {v(M + 8*k + 4*h, 4)}, v{V_MRD} offset:{1024*(1-k) + 128*ks + 16*h}", tag=rt)
                for k in range(2) for h in range(2)]
    def modulate(ks, pk):
        M = MB + 16 * (ks % 3)
        out = []
        for qt in range(2):
            for d in range(4):
                x = V_H + 8*ks + 4*qt + d
                t = TM + 2 * d
                out.append(I(f"v_lshlrev_b32 v{t}, 16, v{x}"))
                out.append(I(f"v_and_b32 v{t+1}, 0xffff0000, v{x}"))
                if pk:
                    out.append(I(f"v_pk_fma_f32 {v(t,2)}, {v(t,2)}, {v(M+2*d,2)}, {v(M+8+2*d,2)}"))
                else:
                    out.append(I(f"v_fma_f32 v{t}, v{t}, v{M+2*d}, v{M+8+2*d}"))
                    out.append(I(f"v_fma_f32 v{t+1}, v{t+1}, v{M+2*d+1}, v{M+8+2*d+1}"))
                out.append(I(f"v_cvt_pk_bf16_f32 v{x}, v{t}, v{t+1}"))
        return out
    NUP = opts.get("nup", 4)
    stamp(p, 1)
    p(I("WAITTAG", tag=[("M", 0)]))
    stamp(p, 2)
    p.extend(modreads(0)); p.extend(modreads(1)); p.extend(modreads(2))
    assert NUP >= 4
    for ks in range(NUP):
        p.extend(modulate(ks, True))
        if ks + 3 < 7:
            p.extend(modreads(ks + 3))
        if ks == 0:
            emit_wfill("Q", 1)
        if ks == 2:
            emit_wfill("Q", 2)
    stamp(p, 3)
    p(I("WAITTAG", tag=at.wkeys("Q", 0)))
    p("s_barrier")
    stamp(p, 4)
    srd(p, SRD_O, 10, 11, 4096 * 896)
    p(f"""
    s_lshl_b32 s14, {s(S_J)}, 20
    s_add_u32 {s(SRD_K)}, s4, s14
    s_addc_u32 {s(SRD_K+1)}, s5, 0
    s_mov_b32 {s(SRD_K+2)}, 0x100000
    s_mov_b32 {s(SRD_K+3)}, 0x20000
    s_add_u32 {s(SRD_V)}, s6, s14
    s_addc_u32 {s(SRD_V+1)}, s7, 0
    s_mov_b32 {s(SRD_V+2)}, 0x100000
    s_mov_b32 {s(SRD_V+3)}, 0x20000
    s_mov_b32 {s(S_KOFF)}, 0
    s_mov_b32 {s(S_VOFF)}, 0
    s_mov_b32 {s(S_THR)}, {thr}
    s_lshl_b32 s15, {s(S_W)}, 3
    """)
    setup = f"""
    v_bfe_u32 v1, v0, 5, 1
    v_and_b32 v2, 31, v0
    v_add_u32 v16, s15, v1
    v_lshlrev_b32 v17, 9, v16
    v_and_b32 v16, 15, v16
    v_xor_b32 v16, v16, v2
    v_lshl_add_u32 {v(V_KDMA)}, v16, 4, v17
    v_xor_b32 {v(V_KDMA+1)}, 32, {v(V_KDMA)}
    v_xor_b32 {v(V_KDMA+2)}, 64, {v(V_KDMA)}
    v_xor_b32 {v(V_KDMA+3)}, 96, {v(V_KDMA)}
    v_lshlrev_b32 v16, 2, v1
    v_add_u32 v16, {s(S_W)}, v16
    v_lshlrev_b32 v16, 9, v16
    v_lshlrev_b32 v17, 1, v1
    v_xor_b32 v17, v17, v2
    v_lshl_add_u32 {v(V_VDMA)}, v17, 4, v16
    v_add_u32 {v(V_VDMA+1)}, 3072, {v(V_VDMA)}
    v_add_u32 {v(V_VDMA+2)}, 6144, {v(V_VDMA)}
    v_add_u32 {v(V_VDMA+3)}, 9216, {v(V_VDMA)}
    v_and_b32 v16, 15, v0
    v_bfe_u32 v17, v0, 4, 2
    v_xor_b32 v17, v17, v16
    v_lshlrev_b32 v16, 9, v16
    v_add_u32 v16, {4*SLOT}, v16
    v_lshl_add_u32 {v(V_KRD)}, v17, 4, v16
    v_xor_b32 {v(V_KRD+1)}, 64, {v(V_KRD)}
    v_xor_b32 {v(V_KRD+2)}, 0x80, {v(V_KRD)}
    v_xor_b32 {v(V_KRD+3)}, 0xc0, {v(V_KRD)}
    v_mov_b32 {v(V_VRD)}, {v(V_TMP)}
    v_xor_b32 {v(V_VRD+1)}, 32, {v(V_TMP)}
    v_mov_b32 {v(V_L)}, 0
    v_mov_b32 {v(V_L+1)}, 0
    """
    setup = [I(x.strip()) for x in setup.strip().split("\n")]
    assert (4 * SLOT) % 256 == 0
    def q_mfma(i, t, qt, fr):
        D = v(V_O + 8*t + 4*qt, 4)
        Bop = v(V_H + 8*i + 4*qt, 4) if i < 7 else a(A_HP + 8*(i-7) + 4*qt, 4)
        return f"v_mfma_f32_16x16x32_bf16 {D}, {fr}, {Bop}, {D if i else 0}"
    def q_fills(i):
        st = i + 3
        if st < 14:
            return [at.wfill("Q", st, hf) + ([],) for hf in range(2)]
        if i == 11: return [at.kvfill("K", 0), at.kvfill("K", 1)]
        if i == 12: return [at.kvfill("K", 2)]
        return [at.kvfill("V", 0), at.kvfill("V", 1, range(at.nafter))]
    def q_bar(i):
        ks = at.wkeys("Q", i + 1) if i < 13 else [at.key("K", 0)]
        i -= 1
        if 0 <= i < 8:
            ks = ks + [(8, i // 2)] if i % 2 == 0 else ks + [("rd", 8, i // 2)]
        return ks
    def q_valu(i):
        out = []
        if NUP + i < 7:
            out += modulate(NUP + i, False)
        if i in (8, 9, 10):
            n = len(setup)
            out += setup[(i-8)*n//3:(i-7)*n//3]
        return out
    def q_xds(i):
        out = []
        i -= 1
        if 0 <= i < 8:
            rho = i // 2
            for k in range(4):
                u, qt = 2*rho + k // 2, k % 2
                if u >= 7: continue
                if i % 2 == 0:
                    out.append(I(f"ds_write_b128 {v(V_XW)}, {v(V_H + 8*u + 4*qt, 4)} offset:{1024*k}", tag=("wr", (8, rho))))
                else:
                    out.append(I(f"ds_read_b128 {a(A_HP + 8*u + 4*qt, 4)}, {v(V_XR)} offset:{1024*k}", tag=("rd", (8, rho))))
        return out
    at.gemm_phase(p, "Q", 14, 16, q_mfma, q_fills, q_bar, q_valu, q_xds)
    stamp(p, 5)
    p("s_load_dwordx4 s[4:7], s[0:1], 48")
    p("s_load_dwordx2 s[8:9], s[0:1], 72")
    p("s_waitcnt lgkmcnt(0)")
    for g in range(at.gB + 1, 64):
        for (f, e, nx) in at.ds.get(g, []):
            p(at.kread(lambda it: 0, 0, f))
    p(f"""
    v_bfe_u32 v1, v0, 5, 1
    v_and_b32 v2, 31, v0
    v_lshlrev_b32 v3, 1, v1
    v_xor_b32 v3, v3, v2
    v_lshlrev_b32 v1, 2, v1
    v_add_u32 v1, {s(S_W)}, v1
    v_mul_u32_u24 v1, 896, v1
    v_lshl_add_u32 v1, v3, 4, v1
    v_mov_b32 v3, 0x40000000
    v_cmp_gt_u32 vcc, 28, v2
    v_cndmask_b32 {v(V_WDMA)}, v3, v1, vcc
    v_add_u32 {v(V_WDMA+1)}, {8*896 - 1024}, {v(V_WDMA)}
    v_add_u32 {v(V_WDMA+2)}, {16*896 - 2048}, {v(V_WDMA)}
    v_add_u32 {v(V_WDMA+3)}, {24*896 - 3072}, {v(V_WDMA)}
    s_mul_i32 {s(S_WBASE)}, {s(S_J)}, {512*896}
    """)
    assert (8 * SLOT) & 0x3fff == (8 * SLOT) % 16384 and ((8 * SLOT) % 16384) + 4096 <= 8192
    for sx in range(8):
        for qt in range(2):
            X = V_O + 16*sx + 4*qt
            Y = X + 8
            p(f"v_cvt_pk_bf16_f32 v{X}, v{X}, v{X+1}")
            p(f"v_cvt_pk_bf16_f32 v{X+1}, v{X+2}, v{X+3}")
            p(f"v_cvt_pk_bf16_f32 v{Y}, v{Y}, v{Y+1}")
            p(f"v_cvt_pk_bf16_f32 v{Y+1}, v{Y+2}, v{Y+3}")
        for qt in range(2):
            X = V_O + 16*sx + 4*qt
            Y = X + 8
            p(f"v_permlane32_swap_b32 v{X}, v{Y}")
            p(f"v_permlane32_swap_b32 v{X+1}, v{Y+1}")
        for qt in range(2):
            X = V_O + 16*sx + 4*qt
            Y = X + 8
            p(f"v_permlane16_swap_b32 v{X}, v{Y}")
            p(f"v_permlane16_swap_b32 v{X+1}, v{Y+1}")
        for qt in range(2):
            X = V_O + 16*sx + 4*qt
            Y = X + 8
            for k, r in enumerate((X, X+1, Y, Y+1)):
                p(f"v_accvgpr_write_b32 a{A_Q + 8*sx + 4*qt + k}, v{r}")
    stamp(p, 6)
    lid = [opts.get("lid0", 0)]
    def B(c, fn, aval=None, **kw):
        at.body(p, c, fn, aval=aval, lid=lid[0], **kw)
        if aval != -1:
            at.fallback(p, c % 2, lid[0], aval != 63)
        lid[0] += 1
    B(3, lambda it: -1, aval=-1)
    if opts.get("touch", True):
        p(f"""
        v_min_u32 v1, {223 if opts.get("t64", False) else 111}, v0
        v_lshlrev_b32 v1, {6 if opts.get("t64", False) else 7}, v1
        s_mul_i32 s53, {s(S_PB)}, {112*128}
        s_add_u32 s53, s53, {s(S_WBASE)}
        buffer_load_dword v2, v1, {s(SRD_O,4)}, s53 offen
        """)
    exv = None
    if opts.get("warm", True) and opts.get("wloop", False):
        srd(p, 52, 6, 7, 2048 * 4096)
        p(f"""
        v_and_b32 v16, 63, v0
        v_min_u32 v16, 4, v16
        s_mul_i32 s14, {s(S_W)}, 640
        s_lshl_b32 s59, s2, 15
        s_add_u32 s59, s59, s14
        v_lshlrev_b32 v16, 7, v16
        """)
        exv = [(at.gB, I("buffer_load_dword v17, v16, s[52:55], s59 offen"))]
    B(0, lambda it: 0, aval=0, extra_scalar=[(60, I(f"s_mov_b32 {s(S_CNT)}, 14"))])
    p.begin_loop(14)
    p(f"L_loop{name}:")
    for c in range(1, 5):
        ex = [(60, I(f"s_sub_u32 {s(S_CNT)}, {s(S_CNT)}, 1"))] if c == 2 else None
        if c == 3 and exv: ex = [(60, I("s_add_u32 s59, s59, 2560"))]
        B(c % 4, (lambda c: lambda it: 4*it + c)(c), extra_scalar=ex, extra_valu=exv if c == 1 else None)
    p(f"s_cmp_lg_u32 {s(S_CNT)}, 0")
    p(f"s_cbranch_scc1 L_loop{name}")
    p.end_loop()
    for av in range(57, 64):
        B(av % 4, (lambda av: lambda it: av)(av), aval=av)
    stamp(p, 7)
    for qt in range(2):
        at.xreduce(p, V_L + qt, "v_add_f32")
        p(f"v_rcp_f32 v{2+qt}, {v(V_L+qt)}")
    def conv(u):
        out = []
        for qt in range(2):
            X = V_O + 16*u + 4*qt
            Y = X + 8
            for r in (X, X+1, X+2, X+3, Y, Y+1, Y+2, Y+3):
                out.append(I(f"v_mul_f32 v{r}, v{r}, v{2+qt}"))
            out.append(I(f"v_cvt_pk_bf16_f32 v{X}, v{X}, v{X+1}"))
            out.append(I(f"v_cvt_pk_bf16_f32 v{X+1}, v{X+2}, v{X+3}"))
            out.append(I(f"v_cvt_pk_bf16_f32 v{X+2}, v{Y}, v{Y+1}"))
            out.append(I(f"v_cvt_pk_bf16_f32 v{X+3}, v{Y+2}, v{Y+3}"))
        return out
    p.extend(conv(0)); p.extend(conv(1))
    ACC = V_H
    WV = V_O + 8
    p(f"""
    s_mul_i32 s14, s2, {49*128}
    s_mul_i32 s15, s2, {25*128}
    s_lshl_b32 s59, s2, 8
    """)
    p("s_lshl_b32 s58, s2, 15")
    wops = [I(x) for x in (f"v_lshl_add_u32 v{WV}, v0, 7, s58", f"v_min_u32 v{WV+1}, 48, v0", f"v_lshl_add_u32 v{WV+1}, v{WV+1}, 7, s14",
                           f"v_min_u32 v{WV+2}, 24, v0", f"v_lshl_add_u32 v{WV+2}, v{WV+2}, 7, s15",
                           f"v_min_u32 v{WV+2}, {896*896-4}, v{WV+2}")]
    if opts.get("tail_code"):
        l0, l1 = opts["tail_code"]
        p("s_getpc_b64 s[10:11]")
        p(f"L_tc{name}:")
        wops += [I(x) for x in (f"v_min_u32 v{WV+3}, 1, v0", f"v_lshl_add_u32 v{WV+3}, v{WV+3}, 7, s59",
                                f"v_min_u32 v{WV+3}, {l1}-{l0}-4, v{WV+3}", f"v_add_u32 v{WV+3}, {l0}-L_tc{name}, v{WV+3}")]
    def o_mfma(i, t, qt, fr):
        D = v(ACC + 8*t + 4*qt, 4)
        Bop = v(V_O + 16*i + 4*qt, 4) if i < 8 else a(A_Q + 8*(i-8) + 4*qt, 4)
        return f"v_mfma_f32_16x16x32_bf16 {D}, {fr}, {Bop}, {D if i else 0}"
    def o_fills(i):
        st = i + 3
        if i == 13 and opts.get("warm", True):
            ld = [I(f"global_load_dword v{WV+5}, v{WV+1}, s[4:5]"),
                  I(f"global_load_dword v{WV+6}, v{WV+2}, s[8:9]")]
            if not opts.get("wloop", False):
                ld.append(I(f"global_load_dword v{WV+4}, v{WV}, s[6:7]"))
            if opts.get("tail_code"):
                ld.append(I(f"global_load_dword v{WV+7}, v{WV+3}, s[10:11]"))
            return [([], ld, [])]
        return [at.wfill("O", st, hf) + ([],) for hf in range(2)] if st < 16 else []
    def o_bar(i):
        if i == 15: return None
        ks = at.wkeys("O", i + 1)
        i -= 1
        if 0 <= i < 8:
            ks = ks + [(8, 10 + i // 2)] if i % 2 == 0 else ks + [("rd", 8, 10 + i // 2)]
        return ks
    def o_valu(i):
        if i == 12 and opts.get("warm", True):
            return wops
        return conv(i + 2) if i + 2 < 8 else []
    def o_xds(i):
        i -= 1
        if i >= 8 or i < 0: return []
        rho = i // 2
        out = []
        for k in range(4):
            u, qt = 2*rho + k // 2, k % 2
            if i % 2 == 0:
                out.append(I(f"ds_write_b128 {v(V_XW)}, {v(V_O + 16*u + 4*qt, 4)} offset:{1024*k}", tag=("wr", (8, 10 + rho))))
            else:
                out.append(I(f"ds_read_b128 {a(A_Q + 8*u + 4*qt, 4)}, {v(V_XR)} offset:{1024*k}", tag=("rd", (8, 10 + rho))))
        return out
    at.gemm_phase(p, "O", 16, 14, o_mfma, o_fills, o_bar, o_valu, o_xds)
    stamp(p, 8)
    p(f"""
    s_lshl_b32 s14, {s(S_J)}, 7
    s_add_u32 s14, s14, {s(S_QT)}
    s_mul_i32 s14, s14, {14*1024}
    s_mul_i32 s15, {s(S_HD)}, {7*1024}
    s_add_u32 s14, s14, s15
    s_add_u32 s14, s14, {WS_PART}
    s_add_u32 s15, s14, {14*1024}
    s_add_u32 s50, s14, 4096
    s_add_u32 s51, s15, 4096
    """)
    for uu in range(7):
        for qt in range(2):
            X = ACC + 16*uu + 4*qt
            Y = X + 8
            p(f"v_cvt_pk_bf16_f32 v{X}, v{X}, v{X+1}")
            p(f"v_cvt_pk_bf16_f32 v{X+1}, v{X+2}, v{X+3}")
            p(f"v_cvt_pk_bf16_f32 v{X+2}, v{Y}, v{Y+1}")
            p(f"v_cvt_pk_bf16_f32 v{X+3}, v{Y+2}, v{Y+3}")
            so = (14 + qt) if uu < 4 else (50 + qt)
            p(f"buffer_store_dwordx4 {v(X,4)}, {v(V_LIN)}, {s(SRD_W,4)}, s{so} offen offset:{(uu % 4)*1024}" + (" sc1" if opts.get("fuse") else ""))
    nst = 10
    if opts.get("fuse"):
        p("s_load_dwordx2 s[4:5], s[0:1], 0")
        p("s_waitcnt lgkmcnt(0)")
        srd(p, SRD_K, 4, 5, 2048 * 896)
        p(f"""
        s_lshl_b32 s14, {s(S_PB)}, 7
        s_lshl_b32 s15, {s(S_J)}, 2
        s_add_u32 s14, s14, s15
        s_add_u32 s14, s14, {WS_FLAG}
        """)
        signal(p, SRD_W, 14, S_W, "r" + name)
        stamp(p, 9)
        emit_red_pre(p, S_W, S_PB, S_J, SRD_W, SRD_K)
        emit_red(p, S_W, S_PB, SRD_W, MODL)
        nst = 13
    stamp_dump(p, opts.get("slot", 1), nst, SRD_W, S_W)
    p(f"L_end{name}:")
    p("s_endpgm")
    if opts.get("gabl"):
        p.check_lds = lambda: None
    p.finalize()
    return p, f"; @launch kernel={name} grid=(256,1,1) block=(256,1,1) lds={LDS_BYTES}\n"
```

```python
import sys
sys.path.insert(0, "work")
from asmlib import *
from layout import *
import struct
def f2u(x): return struct.unpack("<I", struct.pack("<f", x))[0]
LOG2E = 1.4426950408889634
QSCALE = LOG2E / 16.0

def srd(p, d, lo, hi, nbytes):
    p(f"s_mov_b32 s{d}, s{lo}")
    p(f"s_mov_b32 s{d+1}, s{hi}")
    p(f"s_mov_b32 s{d+2}, {nbytes}")
    p(f"s_mov_b32 s{d+3}, 0x20000")

def xreduce(p, T, tmp, op):
    p(f"v_mov_b32 {v(tmp)}, {v(T)}")
    p(f"v_permlane32_swap_b32 {v(T)}, {v(tmp)}")
    p(f"{op} {v(T)}, {v(T)}, {v(tmp)}")
    p(f"v_mov_b32 {v(tmp)}, {v(T)}")
    p(f"v_permlane16_swap_b32 {v(T)}, {v(tmp)}")
    p(f"{op} {v(T)}, {v(T)}, {v(tmp)}")

PREP_GRID = 74
STAMP = {"on": False}

def code_prefetch(p, tag, endlabel, lines_per_wg, vt, vd, sp=(56, 57)):
    p(f"s_getpc_b64 s[{sp[0]}:{sp[1]}]")
    p(f"L_pf_{tag}:")
    p(f"s_lshr_b32 s58, s2, 3")
    p(f"s_mul_i32 s58, s58, {lines_per_wg * 128}")
    p(f"v_min_u32 v{vt}, {lines_per_wg - 1}, v0")
    p(f"v_lshlrev_b32 v{vt}, 7, v{vt}")
    p(f"v_add_u32 v{vt}, s58, v{vt}")
    p(f"v_min_u32 v{vt}, {endlabel}-L_pf_{tag}-4, v{vt}")
    p(f"global_load_dword v{vd}, v{vt}, s[{sp[0]}:{sp[1]}]")

def signal(p, srdw, soff, swave, tag, vt=1, keys=None, val="1"):
    if keys is None:
        p("s_waitcnt vmcnt(0)")
    else:
        p(I("WAITTAG", tag=keys))
    p("s_barrier")
    p(f"s_cmp_lg_u32 s{swave}, 0")
    p(f"s_cbranch_scc1 L_sig_{tag}")
    p(f"v_mov_b32 v{vt}, {val}")
    p(f"v_mov_b32 v{vt+1}, 0")
    p("s_mov_b64 exec, 1")
    x = I(f"buffer_atomic_add v{vt}, v{vt+1}, s[{srdw}:{srdw+3}], s{soff} offen sc1")
    x.kind = "salu"
    p(x)
    p("s_mov_b64 exec, -1")
    p(f"L_sig_{tag}:")

def poll(p, srdw, soff, vaddr, vd, tag, scnt, expect, sleep=1, mask=None):
    p(f"s_mov_b32 s{scnt}, 0x100000")
    p(f"L_poll_{tag}:")
    p(f"buffer_load_dword v{vd}, v{vaddr}, s[{srdw}:{srdw+3}], s{soff} offen sc1")
    p("s_waitcnt vmcnt(0)")
    if mask is not None:
        p(f"v_and_b32 v{vd}, {mask}, v{vd}")
    p(f"v_cmp_gt_u32 vcc, {expect}, v{vd}")
    p(f"s_cbranch_vccz L_polled_{tag}")
    p(f"s_sleep {sleep}")
    p(f"s_sub_u32 s{scnt}, s{scnt}, 1")
    p(f"s_cmp_lg_u32 s{scnt}, 0")
    p(f"s_cbranch_scc1 L_poll_{tag}")
    p(f"L_polled_{tag}:")

def stamp(p, k):
    if STAMP["on"]:
        p(f"s_memtime s[96:97]")
        p(f"s_memrealtime s[98:99]")
        p("s_waitcnt lgkmcnt(0)")
        p(f"s_mov_b32 s{60+2*k}, s96")
        p(f"s_mov_b32 s{61+2*k}, s98")

def stamp_dump(p, slot, n, srdw, swave, wshift=2):
    if not STAMP["on"]:
        return
    p("s_waitcnt vmcnt(0)")
    stamp(p, n - 1)
    p(f"""
    s_lshl_b32 s13, s2, 2
    s_and_b32 s14, s{swave}, 3
    s_add_u32 s13, s13, s14
    s_lshl_b32 s13, s13, 7
    s_add_u32 s13, s13, {WS_STAMP + 131072 * slot}
    v_mov_b32 v1, 0
    """)
    for k in range(n):
        p(f"v_mov_b32 v2, s{60+2*k}")
        p(f"v_mov_b32 v3, s{61+2*k}")
        p(f"buffer_store_dwordx2 v[2:3], v1, s[{srdw}:{srdw+3}], s13 offen offset:{8*k}")

def gen_prep(code=None):
    p = Prog("prep_kernel")
    p(f"""
    s_cmp_ge_u32 s2, {PREP_GRID}
    s_cbranch_scc1 L_prep_end
    s_cmp_ge_u32 s2, 74
    s_cbranch_scc1 L_prep_warm
    s_load_dwordx2 s[4:5], s[0:1], 0
    s_load_dwordx4 s[8:11], s[0:1], 80
    s_load_dwordx2 s[6:7], s[0:1], 112
    s_waitcnt lgkmcnt(0)
    """)
    stamp(p, 0)
    p("v_lshrrev_b32 v6, 6, v0")
    p("v_readfirstlane_b32 s40, v6")
    srd(p, 16, 4, 5, 2048 * 896)
    srd(p, 20, 8, 9, 896)
    srd(p, 24, 10, 11, 448 * 5376)
    srd(p, 28, 6, 7, WS_USED)
    p("s_cmp_ge_u32 s2, 42")
    p("s_cbranch_scc1 L_prep_ln")
    p(f"""
    v_and_b32 v1, 7, v0
    v_lshrrev_b32 v2, 3, v0
    v_lshlrev_b32 v3, 1, v2
    v_mul_u32_u24 v4, 5376, v2
    v_lshl_add_u32 v4, v1, 4, v4
    s_lshl_b32 s12, s2, 7
    """)
    for i in range(14):
        p(f"buffer_load_ushort v{16+i}, v3, s[20:23], 0 offen offset:{64*i}")
    for i in range(14):
        p(f"buffer_load_dwordx4 {v(32+4*i,4)}, v4, s[24:27], s12 offen")
        if i < 13:
            p(f"s_add_u32 s12, s12, {32*5376}")
    p(f"s_mov_b32 s13, {f2u(-LOG2E)}")
    for i in range(14):
        x = 16 + i
        p(f"v_lshlrev_b32 v{x}, 16, v{x}")
        p(f"v_mul_f32 v5, s13, v{x}")
        p(f"v_exp_f32 v5, v5")
        p(f"v_add_f32 v5, 1.0, v5")
        p(f"v_rcp_f32 v5, v5")
        p(f"v_mul_f32 v5, v5, v{x}")
        p(f"v_cvt_pk_bf16_f32 v5, v5, v5")
        p(f"v_lshlrev_b32 v{x}, 16, v5")
    for r in range(8):
        p(f"v_mov_b32 v{8+r}, 0")
    for i in range(14):
        for d in range(4):
            w = 32 + 4*i + d
            p(f"v_lshlrev_b32 v5, 16, v{w}")
            p(f"v_and_b32 v6, 0xffff0000, v{w}")
            p(f"v_fmac_f32 v{8+2*d}, v5, v{16+i}")
            p(f"v_fmac_f32 v{9+2*d}, v6, v{16+i}")
    p(f"""
    v_lshlrev_b32 v5, 5, v0
    ds_write_b128 v5, v[8:11]
    ds_write_b128 v5, v[12:15] offset:16
    s_waitcnt lgkmcnt(0)
    s_barrier
    v_lshrrev_b32 v6, 6, v0
    v_readfirstlane_b32 s14, v6
    s_cmp_lg_u32 s14, 0
    s_cbranch_scc1 L_prep_end
    v_lshlrev_b32 v5, 2, v0
    """)
    for i in range(32):
        p(f"ds_read_b32 v{32+i}, v5 offset:{256*i}")
    for st in (16, 8, 4, 2, 1):
        for i in range(st):
            p(f"v_add_f32 v{32+i}, v{32+i}, v{32+i+st}")
    p(f"""
    v_cvt_pk_bf16_f32 v32, v32, v32
    v_lshlrev_b32 v32, 16, v32
    s_mul_i32 s14, s2, 37
    s_lshr_b32 s14, s14, 8
    s_cmp_eq_u32 s14, 1
    s_cselect_b32 s15, 1, 0
    s_cmp_eq_u32 s14, 4
    s_cselect_b32 s15, 1, s15
    s_cmp_eq_u32 s15, 0
    s_cbranch_scc1 L_prep_no1
    v_add_f32 v32, 1.0, v32
    v_cvt_pk_bf16_f32 v32, v32, v32
    v_lshlrev_b32 v32, 16, v32
    L_prep_no1:
    s_cmp_lt_u32 s14, 2
    s_cselect_b32 s15, {f2u(QSCALE)}, 1.0
    v_mul_f32 v32, s15, v32
    s_lshl_b32 s12, s2, 8
    buffer_store_dword v32, v5, s[28:31], s12 offen offset:{WS_MOD}
    """)
    stamp_dump(p, 0, 2, 28, 40)
    p("s_endpgm")
    p(f"""
    L_prep_ln:
    v_lshrrev_b32 v6, 6, v0
    v_readfirstlane_b32 s14, v6
    s_sub_u32 s12, s2, 42
    s_lshl_b32 s12, s12, 2
    s_add_u32 s12, s12, s14          ; q-tile
    v_and_b32 v1, 15, v0
    v_bfe_u32 v2, v0, 4, 2
    v_mul_u32_u24 v3, 896, v1
    v_lshl_add_u32 v3, v2, 4, v3
    s_mul_i32 s13, s12, {16*896}
    """)
    X = 16
    F = 72
    for ks in range(14):
        p(f"buffer_load_dwordx4 {v(X+4*ks,4)}, v3, s[16:19], s13 offen offset:{64*ks}")
    p(f"""
    v_and_b32 v4, 63, v0
    v_lshlrev_b32 v5, 2, v4
    v_mov_b32 v6, 0
    s_lshl_b32 s14, s12, 8
    s_add_u32 s14, s14, {WS_STATS}
    buffer_store_dword v6, v5, s[28:31], s14 offen
    v_lshlrev_b32 v4, 4, v4
    v_mov_b32 v8, 0
    v_mov_b32 v9, 0
    """)
    for d in range(56):
        p(f"v_lshlrev_b32 v{F+2*d}, 16, v{X+d}")
        p(f"v_and_b32 v{F+2*d+1}, 0xffff0000, v{X+d}")
        p(f"v_pk_add_f32 v[8:9], v[8:9], {v(F+2*d,2)}")
    p("v_add_f32 v8, v8, v9")
    xreduce(p, 8, 10, "v_add_f32")
    p(f"v_mul_f32 v8, {f2u(-1.0/448)}, v8")
    p("v_mov_b32 v10, 0")
    p("v_mov_b32 v11, 0")
    for d in range(56):
        p(f"v_pk_add_f32 {v(F+2*d,2)}, {v(F+2*d,2)}, v[8:9] op_sel_hi:[1,0]")
        p(f"v_pk_fma_f32 v[10:11], {v(F+2*d,2)}, {v(F+2*d,2)}, v[10:11]")
    p("v_add_f32 v10, v10, v11")
    xreduce(p, 10, 12, "v_add_f32")
    p(f"""
    v_mov_b32 v12, {f2u(1e-5)}
    v_fmac_f32 v12, {f2u(1.0/448)}, v10
    v_rsq_f32 v12, v12
    s_mul_i32 s13, s12, {14*1024}
    s_add_u32 s13, s13, {WS_XN}
    """)
    for ks in range(14):
        for d in range(4*ks, 4*ks+4):
            p(f"v_pk_mul_f32 {v(F+2*d,2)}, {v(F+2*d,2)}, v[12:13] op_sel_hi:[1,0]")
            p(f"v_cvt_pk_bf16_f32 v{X+d}, v{F+2*d}, v{F+2*d+1}")
        p(f"buffer_store_dwordx4 {v(X+4*ks,4)}, v4, s[28:31], s13 offen offset:{(ks % 4)*1024}")
        if ks % 4 == 3:
            p("s_add_u32 s13, s13, 4096")
    stamp_dump(p, 0, 2, 28, 40)
    p("s_endpgm")
    p(f"""
    L_prep_warm:
    s_load_dwordx2 s[4:5], s[0:1], 24
    s_load_dwordx4 s[8:11], s[0:1], 48
    s_load_dwordx2 s[6:7], s[0:1], 72
    s_sub_u32 s12, s2, 74
    s_lshl_b32 s12, s12, 15
    v_lshl_add_u32 v1, v0, 7, s12
    s_waitcnt lgkmcnt(0)
    """)
    srd(p, 16, 4, 5, 448 * 8192)
    srd(p, 20, 8, 9, 448 * 3584)
    srd(p, 24, 10, 11, 2048 * 4096)
    srd(p, 28, 6, 7, 896 * 896)
    NL = 182 * 256 * 128
    p(f"""
    buffer_load_dword v2, v1, s[16:19], 0 offen
    v_subrev_u32 v3, {448*8192}, v1
    buffer_load_dword v4, v3, s[20:23], 0 offen
    buffer_load_dword v5, v1, s[24:27], 0 offen
    v_add_u32 v6, {NL}, v1
    buffer_load_dword v7, v6, s[24:27], 0 offen
    v_subrev_u32 v8, {2048*4096 - NL}, v1
    buffer_load_dword v9, v8, s[28:31], 0 offen
    """)
    if code:
        p(f"""
        s_getpc_b64 s[14:15]
        L_prep_pc:
        v_subrev_u32 v10, {NL - 131072}, v1
        v_cmp_gt_u32 vcc, {code[1]}-{code[0]}, v10
        v_add_u32 v10, {code[0]}-L_prep_pc, v10
        s_and_saveexec_b64 s[34:35], vcc
        s_cbranch_execz L_prep_end
        global_load_dword v11, v10, s[14:15]
        """)
    p("L_prep_end:")
    p("s_endpgm")
    p.finalize()
    return p, f"; @launch kernel=prep_kernel grid=({PREP_GRID},1,1) block=(256,1,1) lds=8192\n"
```

```python
import sys
sys.path.insert(0, "work")
from asmlib import *
from layout import *
from k_prep import srd, f2u, stamp, stamp_dump, signal, poll

def lane_reduce_345(p, T, tmp):
    p(f"v_add_f32_dpp {v(T)}, {v(T)}, {v(T)} row_ror:8 row_mask:0xf bank_mask:0xf")
    p(f"v_mov_b32 {v(tmp)}, {v(T)}")
    p(f"v_permlane32_swap_b32 {v(T)}, {v(tmp)}")
    p(f"v_add_f32 {v(T)}, {v(T)}, {v(tmp)}")
    p(f"v_mov_b32 {v(tmp)}, {v(T)}")
    p(f"v_permlane16_swap_b32 {v(T)}, {v(tmp)}")
    p(f"v_add_f32 {v(T)}, {v(T)}, {v(tmp)}")

def gen_red():
    p = Prog("red_kernel")
    p(f"""
    s_cmp_ge_u32 s2, 256
    s_cbranch_scc1 L_red_end
    s_load_dwordx2 s[4:5], s[0:1], 0
    s_load_dwordx2 s[6:7], s[0:1], 112
    v_lshrrev_b32 v1, 6, v0
    v_readfirstlane_b32 s12, v1
    v_and_b32 v1, 7, v0                  ; n8
    v_bfe_u32 v2, v0, 3, 2               ; g
    v_bfe_u32 v3, v0, 5, 1               ; uu
    v_lshlrev_b32 v4, 10, v3
    v_lshl_add_u32 v4, v2, 8, v4
    v_lshl_add_u32 v4, v1, 4, v4
    s_lshr_b32 s13, s2, 1                ; q-tile
    s_and_b32 s14, s2, 1                 ; half
    s_mul_i32 s15, s13, {14*1024}
    s_lshl_b32 s32, s14, 7
    s_add_u32 s15, s15, s32
    s_lshl_b32 s32, s12, 11
    s_add_u32 s15, s15, s32
    s_waitcnt lgkmcnt(0)
    """)
    stamp(p, 0)
    srd(p, 16, 4, 5, 2048 * 896)
    srd(p, 28, 6, 7, WS_USED)
    p(f"s_add_u32 s32, s15, {WS_PART}")
    for j in range(8):
        p(f"buffer_load_dwordx4 {v(32+4*j,4)}, v4, s[28:31], s32 offen")
        if j < 7:
            p(f"s_add_u32 s32, s32, {128*14*1024}")
    p(f"""
    v_mul_u32_u24 v5, 896, v1
    v_lshl_add_u32 v5, v3, 6, v5
    v_lshl_add_u32 v5, v2, 3, v5
    s_mul_i32 s33, s2, {8*896}
    s_lshl_b32 s34, s12, 7
    s_add_u32 s33, s33, s34
    buffer_load_dwordx2 v[64:65], v5, s[16:19], s33 offen
    buffer_load_dwordx2 v[66:67], v5, s[16:19], s33 offen offset:32
    v_lshlrev_b32 v6, 7, v3
    v_lshl_add_u32 v6, v2, 4, v6         ; (32uu + 4g)*4
    s_lshl_b32 s34, s12, 8
    s_add_u32 s34, s34, {WS_MOD + 2*1792}
    """)
    for k, sec in enumerate((0, 1, 2)):
        for e in range(2):
            p(f"buffer_load_dwordx4 {v(72+8*k+4*e,4)}, v6, s[28:31], s34 offen offset:{sec*1792 + 64*e}")
    A = 16
    for j in range(8):
        for d in range(4):
            x = 32 + 4*j + d
            if j == 0:
                p(f"v_lshlrev_b32 v{A+2*d}, 16, v{x}")
                p(f"v_and_b32 v{A+2*d+1}, 0xffff0000, v{x}")
            else:
                t = 8 + 2 * (d % 2)
                p(f"v_lshlrev_b32 v{t}, 16, v{x}")
                p(f"v_and_b32 v{t+1}, 0xffff0000, v{x}")
                p(f"v_pk_add_f32 {v(A+2*d,2)}, {v(A+2*d,2)}, {v(t,2)}")
    X1 = 24
    stamp(p, 1)
    for d in range(4):
        t = 8 + 2 * (d % 2)
        p(f"v_lshlrev_b32 v{t}, 16, v{64+d}")
        p(f"v_and_b32 v{t+1}, 0xffff0000, v{64+d}")
        p(f"v_pk_fma_f32 {v(A+2*d,2)}, {v(A+2*d,2)}, {v(72+2*d,2)}, {v(t,2)}")
        p(f"v_cvt_pk_bf16_f32 v{X1+d}, v{A+2*d}, v{A+2*d+1}")
        p(f"v_lshlrev_b32 v{A+2*d}, 16, v{X1+d}")
        p(f"v_and_b32 v{A+2*d+1}, 0xffff0000, v{X1+d}")
    p(f"""
    s_add_u32 s32, s15, {WS_X1}
    buffer_store_dwordx4 {v(X1,4)}, v4, s[28:31], s32 offen
    v_pk_add_f32 v[8:9], {v(A,2)}, {v(A+2,2)}
    v_pk_add_f32 v[10:11], {v(A+4,2)}, {v(A+6,2)}
    v_pk_add_f32 v[8:9], v[8:9], v[10:11]
    v_add_f32 v8, v8, v9
    """)
    lane_reduce_345(p, 8, 9)
    p(f"""
    s_lshl_b32 s33, s12, 5
    v_lshlrev_b32 v12, 2, v1
    v_add_u32 v13, s33, v12
    ds_write_b32 v13, v8
    s_waitcnt lgkmcnt(0)
    s_barrier
    """)
    def gather(off):
        for w in range(7):
            p(f"ds_read_b32 v{32+w}, v12 offset:{off + 32*w}")
        p("v_add_f32 v32, v32, v33")
        p("v_add_f32 v34, v34, v35")
        p("v_add_f32 v36, v36, v37")
        p("v_add_f32 v32, v32, v38")
        p("v_add_f32 v34, v34, v36")
        p("v_add_f32 v8, v32, v34")
    gather(0)
    p(f"v_mul_f32 v8, {f2u(-1.0/448)}, v8")
    for d in range(4):
        p(f"v_pk_add_f32 {v(A+2*d,2)}, {v(A+2*d,2)}, v[8:9] op_sel_hi:[1,0]")
    p(f"v_pk_mul_f32 v[10:11], {v(A,2)}, {v(A,2)}")
    for d in range(1, 4):
        p(f"v_pk_fma_f32 v[10:11], {v(A+2*d,2)}, {v(A+2*d,2)}, v[10:11]")
    p("v_add_f32 v8, v10, v11")
    lane_reduce_345(p, 8, 9)
    p(f"""
    ds_write_b32 v13, v8 offset:256
    s_waitcnt lgkmcnt(0)
    s_barrier
    """)
    gather(256)
    p(f"""
    v_mov_b32 v10, {f2u(1e-5)}
    v_fmac_f32 v10, {f2u(1.0/448)}, v8
    v_rsq_f32 v10, v10
    """)
    for d in range(4):
        p(f"v_pk_mul_f32 {v(A+2*d,2)}, {v(A+2*d,2)}, v[10:11] op_sel_hi:[1,0]")
        p(f"v_pk_fma_f32 {v(A+2*d,2)}, {v(A+2*d,2)}, {v(88+2*d,2)}, {v(80+2*d,2)}")
        p(f"v_cvt_pk_bf16_f32 v{28+d}, v{A+2*d}, v{A+2*d+1}")
    p(f"""
    s_add_u32 s32, s15, {WS_H2}
    buffer_store_dwordx4 v[28:31], v4, s[28:31], s32 offen
    """)
    stamp(p, 2)
    stamp_dump(p, 2, 4, 28, 12)
    p("L_red_end:")
    p("s_endpgm")
    p.finalize()
    return p, "; @launch kernel=red_kernel grid=(256,1,1) block=(448,1,1) lds=512\n"


def emit_red_pre(p, S_W, S_PB, S_J, SRD_W, SRD_X, B=128):
    p(f"""
    v_and_b32 v1, 7, v0                  ; n8
    v_bfe_u32 v2, v0, 3, 2               ; g
    v_bfe_u32 v3, v0, 5, 1               ; uu
    v_lshlrev_b32 v4, 10, v3
    v_lshl_add_u32 v4, v2, 8, v4
    v_lshl_add_u32 v4, v1, 4, v4
    s_lshl_b32 s50, s{S_PB}, 3
    s_add_u32 s50, s50, s{S_J}
    s_lshr_b32 s51, s50, 1
    s_mul_i32 s51, s51, {14*1024}
    s_and_b32 s52, s50, 1
    s_lshl_b32 s52, s52, 7
    s_add_u32 s51, s51, s52
    s_lshl_b32 s52, s{S_W}, 11
    s_add_u32 s51, s51, s52
    s_cmp_eq_u32 s{S_W}, 3
    s_cselect_b32 s53, 0x40000000, 0
    s_cselect_b32 s54, 0, 1.0
    v_add_u32 v5, s53, v4
    v_add_u32 v5, 8192, v5
    v_mul_u32_u24 v6, 896, v1
    v_lshl_add_u32 v6, v3, 6, v6
    v_lshl_add_u32 v6, v2, 3, v6
    v_add_u32 v7, s53, v6
    s_mul_i32 s55, s50, {8*896}
    s_lshl_b32 s52, s{S_W}, 7
    s_add_u32 s55, s55, s52
    v_lshlrev_b32 v8, 7, v3
    v_lshl_add_u32 v8, v2, 4, v8
    v_add_u32 v9, s53, v8
    v_add_u32 v9, 1024, v9
    s_lshl_b32 s52, s{S_W}, 8
    s_add_u32 s52, s52, {WS_MOD + 2*1792}
    """)
    for h in range(2):
        for e in range(2):
            p(f"buffer_load_dwordx2 {v(B+4*h+2*e,2)}, v{6+h}, s[{SRD_X}:{SRD_X+3}], s55 offen offset:{512*h + 32*e}")
    for h in range(2):
        for k in range(3):
            for e in range(2):
                p(f"buffer_load_dwordx4 {v(B+8+24*h+8*k+4*e,4)}, v{8+h}, s[{SRD_W}:{SRD_W+3}], s52 offen offset:{k*1792 + 64*e} sc1")

def emit_red(p, S_W, S_PB, SRD_W, ldsoff, idle=(), B=128, S_J=29):
    PR = 16
    A = 80
    X1 = 116
    p(f"""
    v_mov_b32 v10, 0
    s_lshl_b32 s52, s{S_PB}, 7
    s_add_u32 s52, s52, {WS_FLAG}
    """)
    def raw(txt):
        x = I(txt); x.kind = "salu"; x.writes = []; return x
    nm = p.name
    for d in range(16):
        p(f"v_mov_b32 v{A+d}, 0")
    p(f"""
    s_mov_b32 s56, 0x100000
    s_mov_b32 s12, 0                     ; issued
    s_mov_b32 s13, 0                     ; pending
    s_add_u32 s55, s51, {WS_PART}
    s_mov_b32 s54, 0
    L_rl{nm}:
    buffer_load_dword v11, v10, s[{SRD_W}:{SRD_W+3}], s52 offen sc1
    s_waitcnt vmcnt(0)
    v_readfirstlane_b32 s53, v11
    s_bitset1_b32 s53, s{S_J}
    s_andn2_b32 s53, s53, s12            ; new
    s_and_b32 s53, s53, 0xff
    s_cbranch_scc0 L_rn{nm}
    """)
    for j in range(8):
        p(f"s_bitcmp1_b32 s53, {j}")
        p(f"s_cbranch_scc0 L_ri{j}{nm}")
        p(f"s_add_u32 s15, s55, {j*128*14*1024}")
        for h in range(2):
            p(raw(f"buffer_load_dwordx4 {v(PR+8*j+4*h,4)}, v{4+h}, s[{SRD_W}:{SRD_W+3}], s15 offen sc1"))
        p(f"L_ri{j}{nm}:")
    p(f"L_rn{nm}:")
    p("s_cmp_eq_u32 s13, 0")
    p(f"s_cbranch_scc1 L_ra{nm}")
    for j in range(8):
        p(f"s_bitcmp1_b32 s13, {j}")
        p(f"s_cbranch_scc0 L_rp{j}{nm}")
        for d in range(8):
            x = PR + 8*j + d
            t = 104 + 2 * (d % 4)
            p(f"v_lshlrev_b32 v{t}, 16, v{x}")
            p(f"v_and_b32 v{t+1}, 0xffff0000, v{x}")
            p(f"v_pk_add_f32 {v(A+2*d,2)}, {v(A+2*d,2)}, {v(t,2)}")
        p(f"L_rp{j}{nm}:")
    p(f"""
    L_ra{nm}:
    s_mov_b32 s13, s53
    s_or_b32 s12, s12, s53
    s_xor_b32 s15, s12, 0xff
    s_or_b32 s15, s15, s13
    s_cbranch_scc0 L_rd{nm}
    s_cmp_eq_u32 s12, 0xff
    s_cbranch_scc1 L_rk{nm}
    s_cmp_lg_u32 s54, 0
    s_cbranch_scc1 L_rk{nm}
    s_mov_b32 s54, 1
    """)
    for x in idle:
        y = I(x.text)
        if y.kind == "dma":
            p("s_nop 0")
            y = raw(x.text)
        p(y)
    p(f"""
    L_rk{nm}:
    s_sub_u32 s56, s56, 1
    s_cmp_lg_u32 s56, 0
    s_cbranch_scc1 L_rl{nm}
    L_rd{nm}:
    s_waitcnt vmcnt(0)
    """)
    stamp(p, 6)
    M = lambda d, k: B + 8 + 24*(d//4) + 8*k + 2*(d % 4)
    for d in range(8):
        t = 104 + 2 * (d % 4)
        p(f"v_lshlrev_b32 v{t}, 16, v{B+d}")
        p(f"v_and_b32 v{t+1}, 0xffff0000, v{B+d}")
        p(f"v_pk_fma_f32 {v(A+2*d,2)}, {v(A+2*d,2)}, {v(M(d,0),2)}, {v(t,2)}")
        p(f"v_cvt_pk_bf16_f32 v{X1+d}, v{A+2*d}, v{A+2*d+1}")
        p(f"v_lshlrev_b32 v{A+2*d}, 16, v{X1+d}")
        p(f"v_and_b32 v{A+2*d+1}, 0xffff0000, v{X1+d}")
    p(f"s_add_u32 s52, s51, {WS_X1}")
    for h in range(2):
        p(f"buffer_store_dwordx4 {v(X1+4*h,4)}, v{4+h}, s[{SRD_W}:{SRD_W+3}], s52 offen sc1")
    p(f"v_pk_add_f32 v[104:105], {v(A,2)}, {v(A+2,2)}")
    p(f"v_pk_mul_f32 v[106:107], {v(A,2)}, {v(A,2)}")
    for d in range(1, 8):
        if d >= 2:
            p(f"v_pk_add_f32 v[104:105], v[104:105], {v(A+2*d,2)}")
        p(f"v_pk_fma_f32 v[106:107], {v(A+2*d,2)}, {v(A+2*d,2)}, v[106:107]")
    p("v_add_f32 v104, v104, v105")
    p("v_add_f32 v105, v106, v107")
    lane_reduce_345(p, 104, 106)
    lane_reduce_345(p, 105, 107)
    p(f"""
    s_lshl_b32 s52, s{S_W}, 6
    v_lshlrev_b32 v12, 3, v1
    v_add_u32 v12, {ldsoff}, v12
    v_add_u32 v13, s52, v12
    ds_write_b64 v13, v[104:105]
    s_waitcnt lgkmcnt(0)
    s_barrier
    """)
    for w in range(4):
        p(f"ds_read_b64 {v(108+2*w,2)}, v12 offset:{64*w}")
    p(f"""
    v_pk_add_f32 v[108:109], v[108:109], v[110:111]
    v_pk_add_f32 v[112:113], v[112:113], v[114:115]
    v_pk_add_f32 v[104:105], v[108:109], v[112:113]
    v_mul_f32 v104, {f2u(1.0/448)}, v104
    v_mul_f32 v106, {f2u(1.0/448)}, v105
    v_fma_f32 v106, -v104, v104, v106
    v_max_f32 v106, 0, v106
    v_add_f32 v106, {f2u(1e-5)}, v106
    v_rsq_f32 v106, v106
    v_mul_f32 v104, -v104, v106
    """)
    for d in range(8):
        p(f"v_pk_fma_f32 {v(A+2*d,2)}, {v(A+2*d,2)}, v[106:107], v[104:105] op_sel_hi:[1,0,0]")
        p(f"v_pk_fma_f32 {v(A+2*d,2)}, {v(A+2*d,2)}, {v(M(d,2),2)}, {v(M(d,1),2)}")
        p(f"v_cvt_pk_bf16_f32 v{PR+d}, v{A+2*d}, v{A+2*d+1}")
    p(f"s_add_u32 s52, s51, {WS_H2}")
    for h in range(2):
        p(f"buffer_store_dwordx4 {v(PR+4*h,4)}, v{4+h}, s[{SRD_W}:{SRD_W+3}], s52 offen sc1", tag=("wr", ("H2", 0), "private"))
```

```python
import sys
sys.path.insert(0, "work")
from k_attn import *
from k_z import gelu_pairs, C1, C2
from k_prep import LOG2E, QSCALE, xreduce
NSTAMP = 16

def build_mega(opts):
    opts = opts or {}
    name = opts.get("name", "adaLN_cond__gqa_block_cached__mixer_gmlp__prompt_kernel")
    p = Prog(name)
    at = Attn(opts)
    LD = opts.get("ld", " sc1")
    thr = opts.get("thr", 0x5f800000)
    SRD_D = 92
    p(f"""
    s_cmp_ge_u32 s2, 256
    s_cbranch_scc1 L_end{name}
    s_load_dwordx4 s[52:55], s[0:1], 80
    s_load_dwordx2 s[50:51], s[0:1], 0
    s_load_dwordx8 s[4:11], s[0:1], 8
    s_load_dwordx4 s[56:59], s[0:1], 104
    v_lshrrev_b32 v1, 6, v0
    v_readfirstlane_b32 {s(S_W)}, v1
    s_and_b32 {s(S_J)}, s2, 7
    s_lshr_b32 {s(S_PB)}, s2, 3
    v_and_b32 v1, 63, v0
    v_lshlrev_b32 {v(V_LIN)}, 4, v1
    s_lshr_b32 {s(S_HD)}, {s(S_W)}, 1
    s_and_b32 s14, {s(S_W)}, 1
    s_lshl_b32 {s(S_QT)}, {s(S_PB)}, 2
    s_lshl_b32 s14, s14, 1
    s_add_u32 {s(S_QT)}, {s(S_QT)}, s14
    v_mov_b32 v2, 0x40000000
    v_cmp_gt_u32 vcc, 56, v1
    v_cndmask_b32 v19, v2, {v(V_LIN)}, vcc
    v_add_u32 v18, 144, v19
    v_add_u32 v17, 288, v19
    v_add_u32 v16, 432, v19
    s_lshl_b32 s14, {s(S_PB)}, 2
    s_add_u32 s14, s14, {s(S_W)}
    s_mul_i32 s14, s14, {16*896}            ; x soffset
    s_mul_i32 s15, {s(S_W)}, {SLOT}
    s_add_u32 s15, s15, {4*SLOT}
    s_waitcnt lgkmcnt(0)
    """)
    stamp(p, 0)
    srd(p, SRD_W, 58, 59, WS_USED)
    srd(p, SRD_D, 56, 57, 256)
    srd(p, SRD_V, 54, 55, 448 * 5376)
    srd(p, SRD_O, 52, 53, 896)
    srd(p, SRD_K, 50, 51, 2048 * 896 + 432)
    p(f"""
    s_sub_u32 {s(SRD_K)}, {s(SRD_K)}, 432
    s_subb_u32 {s(SRD_K+1)}, {s(SRD_K+1)}, 0
    v_lshlrev_b32 v188, 2, v0
    v_mov_b32 v189, 0
    s_mov_b32 s31, 0
    v_mov_b32 v124, 1
    v_mov_b32 v125, 1
    v_mov_b32 v126, 0
    s_cmp_ge_u32 s2, 84
    s_cbranch_scc1 L_mod1r{name}
    """)
    MW = 128; MC = 160; MA = 176; MT = 184
    def raw(txt):
        x = I(txt); x.kind = "salu"; x.writes = []; return x
    p(f"""
    v_and_b32 v{MT}, 3, v0
    v_lshrrev_b32 v{MT+1}, 2, v0
    v_mul_u32_u24 v{MT+2}, 14, v{MT+1}
    v_mul_u32_u24 v{MT+3}, {7*5376}, v{MT+1}
    v_lshl_add_u32 v{MT+3}, v{MT}, 4, v{MT+3}
    s_lshl_b32 s12, s2, 6
    v_and_b32 v{MT+2}, -4, v{MT+2}
    s_sub_u32 s13, s2, 40
    s_lshl_b32 s13, s13, 10
    s_add_u32 s13, s13, {WS_STATS}
    s_sub_u32 s31, s2, 40
    s_cmp_ge_u32 s31, 32
    s_cselect_b32 s13, 0x40000000, s13
    """)
    for i in range(7):
        p(raw(f"buffer_load_dwordx4 {v(MW+4*i,4)}, v{MT+3}, {s(SRD_V,4)}, s12 offen"))
        if i < 6:
            p(f"s_add_u32 s12, s12, 5376")
    p(raw(f"buffer_load_dwordx4 {v(MC+8,4)}, v{MT+2}, {s(SRD_O,4)}, 0 offen"))
    p(raw(f"buffer_store_dword v{MT+5}, v{MT+4}, {s(SRD_W,4)}, s13 offen sc1"))
    p(f"L_mod1r{name}:")
    XK = [(4, -1), (5, -1), (6, -1), (7, -1)]
    NX0 = opts.get("nx0", 8)
    def xdma(ms):
        for m in ms:
            if m % 4 == 0:
                p(f"s_add_u32 m0, s15, {m*1040}")
            p(f"buffer_load_dwordx4 v{16 + m % 4}, {s(SRD_K,4)}, s14 offen offset:{(m % 4)*1040} lds", tag=("dma", XK))
            if m % 4 == 3:
                p(f"s_add_u32 s14, s14, {4*896}")
    xdma(range(NX0))
    p(f"""
    s_cmp_ge_u32 s2, 84
    s_cbranch_scc1 L_mod2r{name}
    s_mov_b32 s13, {f2u(-LOG2E)}
    """)
    if opts.get("pst"): stamp(p, 5)
    p(raw(f"s_waitcnt vmcnt({NX0 + 1})"))
    if opts.get("pst"): stamp(p, 6)
    p(f"v_and_b32 v{MT+1}, 1, v{MT+1}")
    p(f"v_lshlrev_b32 v{MT+1}, 4, v{MT+1}")
    for j in range(4):
        p(f"v_alignbit_b32 v{MC+8+j}, v{MC+8+min(j+1,3)}, v{MC+8+j}, v{MT+1}")
    for i in range(7):
        p(f"v_lshlrev_b32 v{MC+i}, 16, v{MC+8+i//2}" if i % 2 == 0 else f"v_and_b32 v{MC+i}, 0xffff0000, v{MC+8+i//2}")
    for i in range(7):
        p(f"v_mul_f32 v{MC+8+i}, s13, v{MC+i}")
    for i in range(7):
        p(f"v_exp_f32 v{MC+8+i}, v{MC+8+i}")
    for i in range(7):
        p(f"v_add_f32 v{MC+8+i}, 1.0, v{MC+8+i}")
    for i in range(7):
        p(f"v_rcp_f32 v{MC+8+i}, v{MC+8+i}")
    for i in range(7):
        p(f"v_mul_f32 v{MC+8+i}, v{MC+8+i}, v{MC+i}")
        p(f"v_cvt_pk_bf16_f32 v{MC+8+i}, v{MC+8+i}, v{MC+8+i}")
        p(f"v_lshlrev_b32 v{MT+8+2*i}, 16, v{MC+8+i}")
    for i in range(7):
        for d in range(4):
            w = MW + 4*i + d
            t = MC + 2 * d
            p(f"v_lshlrev_b32 v{t}, 16, v{w}")
            p(f"v_and_b32 v{t+1}, 0xffff0000, v{w}")
            if i == 0:
                p(f"v_pk_mul_f32 {v(MA+2*d,2)}, {v(t,2)}, {v(MT+8,2)} op_sel_hi:[1,0]")
            else:
                p(f"v_pk_fma_f32 {v(MA+2*d,2)}, {v(t,2)}, {v(MT+8+2*i,2)}, {v(MA+2*d,2)} op_sel_hi:[1,0,1]")
    for sh in (4, 8):
        for k in range(8):
            p(f"v_add_f32_dpp v{MA+k}, v{MA+k}, v{MA+k} row_ror:{sh} row_mask:0xf bank_mask:0xf")
    if opts.get("pst"): stamp(p, 7)
    p(f"""
    v_lshrrev_b32 v{MT+1}, 4, v0
    v_lshlrev_b32 v{MT+1}, 7, v{MT+1}
    v_lshl_add_u32 v{MT}, v{MT}, 5, v{MT+1}
    v_add_u32 v{MT}, {MODL}, v{MT}
    ds_write_b128 v{MT}, {v(MA,4)}
    ds_write_b128 v{MT}, {v(MA+4,4)} offset:16
    v_add_u32 v{MT+1}, {MODL}, v{MT+4}
    """)
    p(raw(f"s_waitcnt vmcnt({NX0}) lgkmcnt(0)"))
    p(raw("s_barrier"))
    p(f"""
    s_cmp_lg_u32 {s(S_W)}, 0
    s_cbranch_scc1 L_mod2r{name}
    """)
    if opts.get("pst"): stamp(p, 8)
    for i in range(8):
        p(f"ds_read_b32 v{MW+i}, v{MT+1} offset:{256*i}")
    for st in (4, 2, 1):
        for i in range(st):
            p(f"v_add_f32 v{MW+i}, v{MW+i}, v{MW+i+st}")
    p(f"""
    v_mov_b32 v{MW+1}, v{MW}
    v_permlane32_swap_b32 v{MW}, v{MW+1}
    v_add_f32 v{MW}, v{MW}, v{MW+1}
    v_cvt_pk_bf16_f32 v{MW}, v{MW}, v{MW}
    v_lshlrev_b32 v{MW}, 16, v{MW}
    v_add_f32 v{MW+1}, 1.0, v{MW}
    v_cvt_pk_bf16_f32 v{MW+1}, v{MW+1}, v{MW+1}
    v_lshlrev_b32 v{MW+1}, 16, v{MW+1}
    s_mul_i32 s12, s2, 0x4925
    s_lshr_b32 s12, s12, 18
    s_cmp_eq_u32 s12, 1
    s_cselect_b64 vcc, -1, 0
    s_cmp_eq_u32 s12, 4
    s_cselect_b64 vcc, -1, vcc
    v_cndmask_b32 v{MW}, v{MW}, v{MW+1}, vcc
    s_cmp_lt_u32 s12, 2
    s_cselect_b32 s13, {f2u(QSCALE)}, 1.0
    s_cselect_b32 s31, 0, 4
    v_mul_f32 v{MW}, s13, v{MW}
    s_lshl_b32 s12, s2, 7
    v_and_b32 v{MT+4}, 127, v{MT+4}
    v_mov_b32 v{MW+2}, 1
    """)
    p(raw(f"buffer_store_dword v{MW}, v{MT+4}, {s(SRD_W,4)}, s12 offen offset:{WS_MOD} sc1"))
    p(f"L_mod2r{name}:")
    p("s_nop 4")
    xdma(range(NX0, 16))
    p(f"""
    s_cmp_ge_u32 s2, 84
    s_cbranch_scc1 L_mod3r{name}
    s_cmp_lg_u32 {s(S_W)}, 0
    s_cbranch_scc1 L_mod3r{name}
    """)
    p(raw(f"s_waitcnt vmcnt({16 - NX0})"))
    if opts.get("pst"): stamp(p, 9)
    p("s_mov_b64 exec, 1")
    p(raw(f"buffer_atomic_add v124, v126, {s(SRD_D,4)}, s31 offen sc0 sc1"))
    p("s_mov_b64 exec, -1")
    p(f"L_mod3r{name}:")
    srd(p, SRD_Q, 8, 9, 448 * 8192)
    V_MRD = 3
    p(f"""
    s_mul_i32 {s(S_M0V)}, {s(S_W)}, 4160
    s_lshl_b32 {s(S_M0K)}, {s(S_W)}, 12
    s_lshl_b32 {s(S_WBASE)}, {s(S_J)}, 10
    v_lshrrev_b32 v1, 3, v0
    v_min_u32 v1, 13, v1
    v_lshlrev_b32 v1, 13, v1
    v_and_b32 v2, 7, v0
    v_lshl_add_u32 v1, v2, 7, v1
    s_mul_i32 s53, {s(S_PB)}, {14*8192}
    s_add_u32 s53, s53, {s(S_WBASE)}
    buffer_load_dword v{V_O+127}, v1, {s(SRD_Q,4)}, s53 offen
    """)
    code_prefetch(p, name, f"L_end{name}", 22, 1, V_O + 126)
    p(f"""
    v_bfe_u32 v1, v0, 5, 1              ; hh
    v_and_b32 v2, 31, v0
    v_lshlrev_b32 {v(V_TMP)}, 1, v1
    v_xor_b32 v2, v2, {v(V_TMP)}        ; chunk
    v_lshlrev_b32 v1, 3, v1
    v_add_u32 v1, {s(S_W)}, v1          ; 8hh + w
    v_lshlrev_b32 v1, 13, v1
    v_lshl_add_u32 {v(V_WDMA)}, v2, 4, v1
    """)
    for jj in range(1, 4):
        p(f"v_add_u32 {v(V_WDMA+jj)}, {(16*(jj % 2) + 4*(jj//2))*8192 - jj*1024}, {v(V_WDMA)}")
    def emit_wfill(which, st):
        for hf in range(2):
            pre, d = at.wfill(which, st, hf)
            p.extend(pre); p.extend(d)
    p(f"""
    s_lshl_b32 s52, {s(S_W)}, 11
    s_add_u32 s52, s52, {MODL}
    v_bfe_u32 v1, v0, 2, 2
    v_mul_u32_u24 v1, 4160, v1
    v_and_b32 v2, 3, v0
    v_lshl_add_u32 v1, v2, 3, v1
    v_bfe_u32 v2, v0, 4, 2
    v_lshl_add_u32 v1, v2, 9, v1
    v_lshlrev_b32 v{V_MRD}, 5, v2
    v_add_u32 v{V_MRD}, s52, v{V_MRD}
    v_and_b32 v120, 15, v0
    v_mul_u32_u24 v120, 1040, v120
    v_lshl_add_u32 v120, v2, 4, v120
    s_and_b32 s14, {s(S_W)}, 1
    s_mul_i32 s14, s14, {2*SLOT}
    s_mul_i32 s15, {s(S_HD)}, 448
    s_add_u32 s14, s14, s15
    s_add_u32 s14, s14, {4*SLOT}
    v_add_u32 v120, s14, v120
    v_bfe_u32 v2, v0, 4, 1
    v_lshl_add_u32 {v(V_TMP)}, v2, 5, v1
    s_mul_i32 s14, {s(S_HD)}, {SLOT}
    v_add_u32 {v(V_WRD)}, s14, {v(V_TMP)}
    v_xor_b32 {v(V_WRD+1)}, 32, {v(V_WRD)}
    v_add_u32 {v(V_WRD+2)}, {4*SLOT}, {v(V_WRD)}
    v_add_u32 {v(V_WRD+3)}, {4*SLOT}, {v(V_WRD+1)}
    s_lshl_b32 s14, {s(S_W)}, 12
    s_add_u32 s14, s14, {8*SLOT}
    v_add_u32 {v(V_XW)}, s14, {v(V_LIN)}
    v_xor_b32 {v(V_XR)}, 0x2000, {v(V_XW)}
    """)
    NE = opts.get("nearly", 1)
    for st in range(NE):
        emit_wfill("Q", st)
    p(f"""
    s_cmp_ge_u32 s2, 84
    s_cbranch_scc1 L_mod4r{name}
    s_cmp_lg_u32 {s(S_W)}, 0
    s_cbranch_scc1 L_mod4r{name}
    """)
    p(raw(f"s_waitcnt vmcnt({2 + 8 * NE})"))
    if opts.get("pst"): stamp(p, 10)
    p("s_cmp_lg_u32 s31, 0")
    p(f"s_cbranch_scc1 L_mod4r{name}")
    p("v_cmp_eq_u32 vcc, 27, v124")
    p(f"s_cbranch_vccz L_mod4r{name}")
    p("s_mov_b64 exec, 1")
    p(raw(f"buffer_store_dword v125, v126, {s(SRD_D,4)}, 0 offen offset:128 sc1"))
    p("s_mov_b64 exec, -1")
    p(f"L_mod4r{name}:")
    p(I("WAITTAG", tag=XK))
    p("s_barrier")
    for ks in range(7):
        for qt in range(2):
            p(f"ds_read_b128 {v(V_H+8*ks+4*qt,4)}, v120 offset:{qt*SLOT + 64*ks}", tag=("rd", XK))
    if NE < 1: emit_wfill("Q", 0)
    F = V_O
    SA = 112
    for k in range(56):
        qt = (k // 4) % 2
        p(f"v_lshlrev_b32 v{F+2*k}, 16, v{V_H+k}")
        p(f"v_and_b32 v{F+2*k+1}, 0xffff0000, v{V_H+k}")
        if k in (0, 4):
            p(f"v_pk_mul_f32 {v(SA+4+2*qt,2)}, {v(F+2*k,2)}, {v(F+2*k,2)}")
        else:
            p(f"v_pk_add_f32 {v(SA+2*qt,2)}, {v(F+2*k-2,2) if k in (1, 5) else v(SA+2*qt,2)}, {v(F+2*k,2)}")
            p(f"v_pk_fma_f32 {v(SA+4+2*qt,2)}, {v(F+2*k,2)}, {v(F+2*k,2)}, {v(SA+4+2*qt,2)}")
    for k in range(4):
        p(f"v_add_f32 v{SA+k}, v{SA+2*k}, v{SA+2*k+1}")
    for k in range(4):
        xreduce(p, SA + k, 121 + k, "v_add_f32")
    p(f"ds_write_b128 {v(V_XW)}, {v(SA,4)}", tag=("wr", (8, -1)))
    p("s_waitcnt lgkmcnt(0)")
    p("s_barrier")
    p(f"ds_read_b128 {v(SA+4,4)}, {v(V_XR)}", tag=("rd", (8, -1)))
    if NE < 2: emit_wfill("Q", 1)
    for qt in range(2):
        m_, r_ = 120 + 4*qt, 122 + 4*qt
        p(f"v_add_f32 v{SA+qt}, v{SA+qt}, v{SA+4+qt}")
        p(f"v_add_f32 v{SA+2+qt}, v{SA+2+qt}, v{SA+6+qt}")
        p(f"v_mul_f32 v{m_}, {f2u(1.0/448)}, v{SA+qt}")
        p(f"v_mul_f32 v{r_}, {f2u(1.0/448)}, v{SA+2+qt}")
        p(f"v_fma_f32 v{r_}, -v{m_}, v{m_}, v{r_}")
        p(f"v_max_f32 v{r_}, 0, v{r_}")
        p(f"v_add_f32 v{r_}, {f2u(1e-5)}, v{r_}")
        p(f"v_rsq_f32 v{r_}, v{r_}")
        p(f"v_mul_f32 v{m_}, -v{m_}, v{r_}")
    for k in range(56):
        qt = (k // 4) % 2
        p(f"v_pk_fma_f32 {v(F+2*k,2)}, {v(F+2*k,2)}, {v(122+4*qt,2)}, {v(120+4*qt,2)} op_sel_hi:[1,0,0]")
    NPRE = opts.get("npre", 3)
    for st in range(2, NPRE):
        emit_wfill("Q", st)
    p(f"""
    v_mov_b32 v1, 0x80
    s_mov_b32 s14, 0
    s_mul_i32 s53, {s(S_HD)}, 896
    v_add_u32 v2, s52, {v(V_LIN)}
    """)
    if opts.get("pst"): stamp(p, 1)
    p(f"s_cmp_lg_u32 {s(S_W)}, 0")
    p(f"s_cbranch_scc1 L_polled_m{name}")
    poll(p, SRD_D, 14, 1, 120, "m" + name, 56, 1, sleep=opts.get("msleep", 4))
    p("s_barrier")
    if opts.get("pst"): stamp(p, 2)
    p(f"buffer_load_dwordx4 v[120:123], {v(V_LIN)}, {s(SRD_W,4)}, s53 offen offset:{WS_MOD} sc1")
    p(f"buffer_load_dwordx4 v[124:127], {v(V_LIN)}, {s(SRD_W,4)}, s53 offen offset:{WS_MOD + 1792} sc1")
    for st in range(NPRE, 3):
        emit_wfill("Q", st)
    mt = ("wr", ("M", 0), "private")
    p("ds_write_b128 v2, v[120:123]", tag=mt)
    p("ds_write_b128 v2, v[124:127] offset:1024", tag=mt)
    MB = 72
    def modreads(ks):
        M = MB + 16 * (ks % 3)
        rt = ("rd", ("M", 0), "private")
        return [I(f"ds_read_b128 {v(M + 8*k + 4*h, 4)}, v{V_MRD} offset:{1024*(1-k) + 128*ks + 16*h}", tag=rt)
                for k in range(2) for h in range(2)]
    NUP = 7
    p(I("WAITTAG", tag=[("M", 0)]))
    p.extend(modreads(0)); p.extend(modreads(1)); p.extend(modreads(2))
    for ks in range(7):
        M = MB + 16 * (ks % 3)
        for k in range(8*ks, 8*ks + 8):
            d = k % 4
            p(f"v_pk_fma_f32 {v(F+2*k,2)}, {v(F+2*k,2)}, {v(M+2*d,2)}, {v(M+8+2*d,2)}")
            p(f"v_cvt_pk_bf16_f32 v{V_H+k}, v{F+2*k}, v{F+2*k+1}")
        if ks + 3 < 7:
            p.extend(modreads(ks + 3))
    p(f"s_waitcnt vmcnt({8 * max(0, 3 - NPRE)})")
    p("s_barrier")
    stamp(p, 3 if opts.get("pst") else 1)
    srd(p, SRD_O, 10, 11, 4096 * 896)
    p(f"""
    s_lshl_b32 s14, {s(S_J)}, 20
    s_add_u32 {s(SRD_K)}, s4, s14
    s_addc_u32 {s(SRD_K+1)}, s5, 0
    s_mov_b32 {s(SRD_K+2)}, 0x100000
    s_mov_b32 {s(SRD_K+3)}, 0x20000
    s_add_u32 {s(SRD_V)}, s6, s14
    s_addc_u32 {s(SRD_V+1)}, s7, 0
    s_mov_b32 {s(SRD_V+2)}, 0x100000
    s_mov_b32 {s(SRD_V+3)}, 0x20000
    s_mov_b32 {s(S_KOFF)}, 0
    s_mov_b32 {s(S_VOFF)}, 0
    s_mov_b32 {s(S_THR)}, {thr}
    s_lshl_b32 s15, {s(S_W)}, 3
    """)
    setup = f"""
    v_bfe_u32 v1, v0, 5, 1
    v_and_b32 v2, 31, v0
    v_add_u32 v16, s15, v1
    v_lshlrev_b32 v17, 9, v16
    v_and_b32 v16, 15, v16
    v_xor_b32 v16, v16, v2
    v_lshl_add_u32 {v(V_KDMA)}, v16, 4, v17
    v_xor_b32 {v(V_KDMA+1)}, 32, {v(V_KDMA)}
    v_xor_b32 {v(V_KDMA+2)}, 64, {v(V_KDMA)}
    v_xor_b32 {v(V_KDMA+3)}, 96, {v(V_KDMA)}
    v_lshlrev_b32 v16, 2, v1
    v_add_u32 v16, {s(S_W)}, v16
    v_lshlrev_b32 v16, 9, v16
    v_lshlrev_b32 v17, 1, v1
    v_xor_b32 v17, v17, v2
    v_lshl_add_u32 {v(V_VDMA)}, v17, 4, v16
    v_add_u32 {v(V_VDMA+1)}, 3072, {v(V_VDMA)}
    v_add_u32 {v(V_VDMA+2)}, 6144, {v(V_VDMA)}
    v_add_u32 {v(V_VDMA+3)}, 9216, {v(V_VDMA)}
    v_and_b32 v16, 15, v0
    v_bfe_u32 v17, v0, 4, 2
    v_xor_b32 v17, v17, v16
    v_lshlrev_b32 v16, 9, v16
    v_add_u32 v16, {4*SLOT}, v16
    v_lshl_add_u32 {v(V_KRD)}, v17, 4, v16
    v_xor_b32 {v(V_KRD+1)}, 64, {v(V_KRD)}
    v_xor_b32 {v(V_KRD+2)}, 0x80, {v(V_KRD)}
    v_xor_b32 {v(V_KRD+3)}, 0xc0, {v(V_KRD)}
    v_mov_b32 {v(V_VRD)}, {v(V_TMP)}
    v_xor_b32 {v(V_VRD+1)}, 32, {v(V_TMP)}
    v_mov_b32 {v(V_L)}, 0
    v_mov_b32 {v(V_L+1)}, 0
    """
    setup = [I(x.strip()) for x in setup.strip().split("\n")]
    WRA = 21; WRB = 88
    p(f"""
    s_movk_i32 s31, 0x493
    s_and_b32 s12, {s(S_W)}, 1
    s_mul_i32 s13, {s(S_W)}, 7
    """)
    setup.append(I("v_and_b32 v1, 63, v0"))
    for m in range(7):
        setup += [I(f"v_add_u32 v16, {64*m}, v1"), I("v_mul_u32_u24 v16, s31, v16"), I("v_bfe_u32 v16, v16, 17, 2"),
                  I("v_lshlrev_b32 v16, 5, v16"), I(f"v_xor_b32 v{at.WDR[m]}, v16, {v(V_LIN)}")]
    setup += [I("v_lshrrev_b32 v16, 2, v1"), I("v_mul_u32_u24 v16, 896, v16"), I("v_and_b32 v17, 3, v0"),
              I("v_lshl_add_u32 v16, v17, 3, v16"), I("v_bfe_u32 v17, v0, 3, 2")]
    for mt in range(7):
        if mt < 6:
            p(f"s_add_u32 s{52+mt}, s13, s12")
            p(f"s_add_u32 s{52+mt}, s{52+mt}, {mt}")
        else:
            p(f"s_mul_i32 s58, s12, 6")
            p(f"s_sub_u32 s58, s13, s58")
            p(f"s_add_u32 s58, s58, 6")
        setup += [I(f"v_xor_b32 v18, s{52+mt}, v17"), I(f"v_lshl_add_u32 v{WRB+mt}, v18, 5, v16"),
                  I(f"v_add_u32 v{WRA+mt}, {4*SLOT}, v{WRB+mt}")]
    assert (4 * SLOT) % 256 == 0
    def q_mfma(i, t, qt, fr):
        D = v(V_O + 8*t + 4*qt, 4)
        Bop = v(V_H + 8*i + 4*qt, 4) if i < 7 else a(A_HP + 8*(i-7) + 4*qt, 4)
        return f"v_mfma_f32_16x16x32_bf16 {D}, {fr}, {Bop}, {D if i else 0}"
    def q_fills(i):
        st = i + 3
        if i == 0 and NPRE == 4: return []
        if st < 14:
            return [at.wfill("Q", st, hf) + ([],) for hf in range(2)]
        if i == 11: return [at.kvfill("K", 0), at.kvfill("K", 1)]
        if i == 12: return [at.kvfill("K", 2)]
        return [at.kvfill("V", 0), at.kvfill("V", 1, range(at.nafter))]
    def q_bar(i):
        ks = at.wkeys("Q", i + 1) if i < 13 else [at.key("K", 0)]
        i -= 1
        if 0 <= i < 8:
            ks = ks + [(8, i // 2)] if i % 2 == 0 else ks + [("rd", 8, i // 2)]
        return ks
    def q_valu(i):
        out = []
        if i in (8, 9, 10):
            n = 33
            out += setup[(i-8)*n//3:(i-7)*n//3]
        if i in (11, 12, 13):
            n = len(setup) - 33
            out += setup[33+(i-11)*n//3:33+(i-10)*n//3]
        return out
    def q_xds(i):
        out = []
        i -= 1
        if 0 <= i < 8:
            rho = i // 2
            for k in range(4):
                u, qt = 2*rho + k // 2, k % 2
                if u >= 7: continue
                if i % 2 == 0:
                    out.append(I(f"ds_write_b128 {v(V_XW)}, {v(V_H + 8*u + 4*qt, 4)} offset:{1024*k}", tag=("wr", (8, rho))))
                else:
                    out.append(I(f"ds_read_b128 {a(A_HP + 8*u + 4*qt, 4)}, {v(V_XR)} offset:{1024*k}", tag=("rd", (8, rho))))
        return out
    at.gemm_phase(p, "Q", 14, 16, q_mfma, q_fills, q_bar, q_valu, q_xds)
    p("s_load_dwordx4 s[4:7], s[0:1], 48")
    p("s_load_dwordx2 s[8:9], s[0:1], 72")
    p("s_load_dwordx2 s[10:11], s[0:1], 0")
    p("s_waitcnt lgkmcnt(0)")
    srd(p, SRD_Q, 4, 5, 448 * 3584)
    for g in range(at.gB + 1, 64):
        for (f, e, nx) in at.ds.get(g, []):
            p(at.kread(lambda it: 0, 0, f))
    p(f"""
    s_mul_i32 s53, {s(S_J)}, {512*896}
    s_mul_i32 s59, {s(S_W)}, 7168
    s_add_u32 {s(S_WBASE)}, s53, s59
    """)
    assert (8 * SLOT) & 0x3fff == (8 * SLOT) % 16384 and ((8 * SLOT) % 16384) + 4096 <= 8192
    p(f"""
    v_mov_b32 v1, 4
    buffer_load_dword v2, v1, {s(SRD_D,4)}, 0 offen sc1
    """)
    for sx in range(8):
        for qt in range(2):
            X = V_O + 16*sx + 4*qt
            Y = X + 8
            p(f"v_cvt_pk_bf16_f32 v{X}, v{X}, v{X+1}")
            p(f"v_cvt_pk_bf16_f32 v{X+1}, v{X+2}, v{X+3}")
            p(f"v_cvt_pk_bf16_f32 v{Y}, v{Y}, v{Y+1}")
            p(f"v_cvt_pk_bf16_f32 v{Y+1}, v{Y+2}, v{Y+3}")
        for qt in range(2):
            X = V_O + 16*sx + 4*qt
            Y = X + 8
            p(f"v_permlane32_swap_b32 v{X}, v{Y}")
            p(f"v_permlane32_swap_b32 v{X+1}, v{Y+1}")
        for qt in range(2):
            X = V_O + 16*sx + 4*qt
            Y = X + 8
            p(f"v_permlane16_swap_b32 v{X}, v{Y}")
            p(f"v_permlane16_swap_b32 v{X+1}, v{Y+1}")
        for qt in range(2):
            X = V_O + 16*sx + 4*qt
            Y = X + 8
            for k, r in enumerate((X, X+1, Y, Y+1)):
                p(f"v_accvgpr_write_b32 a{A_Q + 8*sx + 4*qt + k}, v{r}")
    stamp(p, 4 if opts.get("pst") else 2)
    p(f"""
    v_cmp_gt_u32 vcc, 56, v2
    s_cbranch_vccnz L_mslow{name}
    L_mok{name}:
    """)
    p.begin_side()
    p(f"L_mslow{name}:")
    p("s_mov_b32 s14, 0")
    poll(p, SRD_D, 14, 1, 2, "m2" + name, 56, 56, sleep=4)
    p(f"s_branch L_mok{name}")
    p.end_side()
    lid = [opts.get("lid0", 0)]
    import k_prep
    son = k_prep.STAMP["on"]
    if opts.get("pst"): k_prep.STAMP["on"] = False
    def B(c, fn, aval=None, **kw):
        at.body(p, c, fn, aval=aval, lid=lid[0], **kw)
        if aval != -1:
            at.fallback(p, c % 2, lid[0], aval != 63)
        lid[0] += 1
    B(3, lambda it: -1, aval=-1)
    if opts.get("touch", True):
        p(f"""
        v_min_u32 v1, {223 if opts.get("t64", False) else 111}, v0
        v_lshlrev_b32 v1, {6 if opts.get("t64", False) else 7}, v1
        s_mul_i32 s54, {s(S_PB)}, {112*128}
        s_add_u32 s53, s53, s54
        buffer_load_dword v2, v1, {s(SRD_O,4)}, s53 offen
        """)
    exv = None
    if opts.get("warm", True):
        p(f"""
        v_and_b32 v1, 63, v0
        s_lshl_b32 s14, {s(S_J)}, 5
        s_add_u32 s14, s14, {s(S_PB)}
        s_lshl_b32 s14, s14, 15
        s_min_u32 s14, s14, {2048*4096 - 35840}
        s_mul_i32 s15, {s(S_W)}, 640
        s_add_u32 s14, s14, s15
        v_cmp_gt_u32 vcc, 5, v1
        v_cndmask_b32 v3, 0, v1, vcc
        v_lshl_add_u32 v3, v3, 7, s14
        v_mov_b32 v16, s6
        v_mov_b32 v17, s7
        v_mov_b32 v18, 2560
        v_mov_b32 v19, 0
        s_mul_i32 s14, {s(S_PB)}, {14*3584}
        s_mul_i32 s15, {s(S_HD)}, 1792
        s_add_u32 s14, s14, s15
        s_and_b32 s15, {s(S_J)}, 1
        s_mul_i32 s15, s15, 896
        s_add_u32 s14, s14, s15
        s_and_b32 s15, {s(S_W)}, 1
        s_mul_i32 s15, s15, 384
        s_add_u32 s14, s14, s15
        s_mov_b64 exec, 0xf00
        v_and_b32 v3, 3, v1
        v_lshl_add_u32 v3, v3, 7, s14
        v_mov_b32 v16, s4
        v_mov_b32 v17, s5
        v_mov_b32 v18, 3584
        s_mov_b64 exec, -1
        s_mul_i32 s14, s2, {25*128}
        s_min_u32 s14, s14, {896*896 - 28*128}
        s_and_b32 s15, {s(S_W)}, 1
        s_lshl_b32 s15, s15, 7
        s_add_u32 s14, s14, s15
        v_writelane_b32 v3, s14, 6
        v_writelane_b32 v16, s8, 6
        v_writelane_b32 v17, s9, 6
        s_movk_i32 s14, 0x100
        v_writelane_b32 v18, s14, 6
        v_add_co_u32 v16, vcc, v16, v3
        v_addc_co_u32 v17, vcc, 0, v17, vcc
        """)
        exv = [(at.gB, I("global_load_dword v20, v[16:17], off"))]
        exv2 = [(at.gJ, I("v_lshl_add_u64 v[16:17], v[16:17], 0, v[18:19]"))]
    B(0, lambda it: 0, aval=0, extra_scalar=[(60, I(f"s_mov_b32 {s(S_CNT)}, 14"))])
    p.begin_loop(14)
    p(f"L_loop{name}:")
    for c in range(1, 5):
        ex = [(60, I(f"s_sub_u32 {s(S_CNT)}, {s(S_CNT)}, 1"))] if c == 2 else None
        B(c % 4, (lambda c: lambda it: 4*it + c)(c), extra_scalar=ex,
          extra_valu=(exv if c == 1 else exv2 if c == 3 else None) if exv else None)
    p(f"s_cmp_lg_u32 {s(S_CNT)}, 0")
    p(f"s_cbranch_scc1 L_loop{name}")
    p.end_loop()
    ZD = 96
    ZT = 103
    zops = []
    for m in range(7):
        zops += [I(f"v_add_u32 v{ZT}, {64*m}, v1"), I(f"v_mul_u32_u24 v{ZT+1}, s31, v{ZT}"), I(f"v_lshrrev_b32 v{ZT+1}, 16, v{ZT+1}"),
                 I(f"v_mul_u32_u24 v{ZT+2}, 14, v{ZT+1}"), I(f"v_sub_u32 v{ZT}, v{ZT}, v{ZT+2}"),
                 I(f"v_add_u32 v{ZT}, s57, v{ZT}"), I(f"v_subrev_u32 v{ZT+2}, 14, v{ZT}"), I(f"v_min_u32 v{ZT}, v{ZT}, v{ZT+2}"),
                 I(f"v_mul_u32_u24 v{ZT+1}, 3584, v{ZT+1}"), I(f"v_lshl_add_u32 v{ZD+m}, v{ZT}, 4, v{ZT+1}")]
        if m % 4:
            zops.append(I(f"v_subrev_u32 v{ZD+m}, {(m % 4)*1024}, v{ZD+m}"))
    ZBASE = [[2 * SLOT, 3 * 2 * SLOT, 0, 8 * SLOT], [2 * 2 * SLOT, 2 * SLOT, 3 * 2 * SLOT, 8 * SLOT]]
    ZKEYS = [[[(2, 300), (3, 300)], [(6, 300), (7, 300)], [(0, 300), (1, 300)], [(8, 300)]],
             [[(4, 310), (5, 310)], [(2, 310), (3, 310)], [(6, 310), (7, 310)], [(8, 310)]]]
    def zfill(rnd, z1=0):
        gs = []
        so = 34 if z1 else 37
        for hf in range(2):
            pre = [I(f"s_add_u32 m0, s36, {ZBASE[z1][rnd] + hf*4096}")]
            d = [I(f"buffer_load_dwordx4 v{ZD+m}, {s(SRD_Q,4)}, s{so} offen offset:{(m % 4)*1024} lds", tag=("dma", ZKEYS[z1][rnd]))
                 for m in range(4*hf, min(7, 4*hf+4))]
            post = [I(f"s_add_u32 s{so}, s{so}, {4*32*3584}")] if hf else []
            gs.append((pre, d, post))
        return gs
    def flat(gs):
        return [x for g in gs for lst in g for x in lst]
    p(f"""
    s_movk_i32 s31, 0x124a
    s_and_b32 s57, {s(S_PB)}, 1
    s_lshl_b32 s57, s57, 1
    v_and_b32 v1, 63, v0
    """)
    for av in range(57, 64):
        B(av % 4, (lambda av: lambda it: av)(av), aval=av,
          extra_valu=[(1 + (k * 30) // len(zops), x) for k, x in enumerate(zops)] if av == 63 else None)
    if not opts.get("pst"): stamp(p, 3)
    for qt in range(2):
        at.xreduce(p, V_L + qt, "v_add_f32")
        p(f"v_rcp_f32 v{2+qt}, {v(V_L+qt)}")
    X1B = 28672; X2B = 8 * SLOT
    def xaddr(ks, q):
        return X1B + (4*ks + q) * 1024 if ks < 9 else X2B + (4*(ks-9) + q) * 1024
    XKEY = [(2, 250), (3, 250), (8, 250), ("T", 250)]
    p(f"""
    s_and_b32 s14, {s(S_W)}, 1
    s_lshl_b32 s14, s14, 11
    s_mul_i32 s15, {s(S_HD)}, 32768
    s_add_u32 s15, s15, s14
    s_add_u32 s15, s15, {X1B}
    v_add_u32 v4, s15, {v(V_LIN)}
    s_mul_i32 s15, {s(S_HD)}, {X2B - X1B - 4096}
    s_add_u32 s15, s15, s14
    s_add_u32 s15, s15, {X1B}
    v_add_u32 v5, s15, {v(V_LIN)}
    v_add_u32 v6, {X1B}, {v(V_LIN)}
    v_add_u32 v7, {X2B}, {v(V_LIN)}
    s_barrier
    """)
    for u in range(8):
        for qt in range(2):
            X = V_O + 16*u + 4*qt
            Y = X + 8
            sel = "op_sel_hi:[1,0]" if qt == 0 else "op_sel:[0,1] op_sel_hi:[1,1]"
            for r in (X, X+2, Y, Y+2):
                p(f"v_pk_mul_f32 {v(r,2)}, {v(r,2)}, v[2:3] {sel}")
            p(f"v_cvt_pk_bf16_f32 v{X}, v{X}, v{X+1}")
            p(f"v_cvt_pk_bf16_f32 v{X+1}, v{X+2}, v{X+3}")
            p(f"v_cvt_pk_bf16_f32 v{X+2}, v{Y}, v{Y+1}")
            p(f"v_cvt_pk_bf16_f32 v{X+3}, v{Y+2}, v{Y+3}")
            p(f"ds_write_b128 v{4 if u == 0 else 5}, {v(X,4)} offset:{4096*u + 1024*qt}", tag=("wr", XKEY))
    ACC = V_O
    p(f"""
    s_and_b32 s15, {s(S_J)}, 1
    s_lshl_b32 s15, s15, 2
    s_and_b32 s32, {s(S_PB)}, 3
    s_add_u32 s32, s32, s15              ; fb
    s_lshr_b32 s15, {s(S_J)}, 1
    s_lshl_b32 s15, s15, 3
    s_lshr_b32 s33, {s(S_PB)}, 2
    s_add_u32 s33, s33, s15              ; tb
    s_mul_i32 s34, s32, 224
    s_mul_i32 s36, {s(S_W)}, {32*3584}
    s_add_u32 s34, s34, s36
    s_add_u32 s37, s34, 1792
    s_mul_i32 s36, {s(S_W)}, 7168
    """)
    A_OB = 0
    NRW = 8
    def wrd(st, mt):
        pr = at.OPAIR[st % 3]
        reg, off = (WRB + mt, 0) if pr == 0 else (WRA + mt, (pr - 2) * 2 * SLOT)
        f = st * 7 + mt
        return [I(f"ds_read_b64_tr_b16 {a(A_F + 4*(f % NRW) + 2*e, 2)}, v{reg} offset:{off + e*14336}", tag=("rd", at.okeys(st))) for e in range(2)]
    def brd(st):
        ky = [(2, 250), (3, 250), ("T", 250)] if st < 9 else [(8, 250)]
        return [I(f"ds_read_b128 {a(A_OB + 16*(st % 2) + 4*q, 4)}, v{6 if st < 9 else 7} offset:{xaddr(st, q) - (X1B if st < 9 else X2B)}",
                  tag=("rd", ky)) for q in range(4)]
    LF = opts.get("lf", 2)
    for f in range(LF):
        p.extend(wrd(0, f))
    p("s_waitcnt lgkmcnt(0)")
    p("s_barrier")
    if opts.get("ost"): stamp(p, 4)
    p.extend(brd(0))
    G = 28
    gb = G - 4 * LF - 1
    for st in range(16):
        kind = ["m"] * G
        SC = [[] for _ in range(G + 1)]
        VE = [[] for _ in range(G)]
        if st < 15:
            kind[gb] = "B"
            VE[gb] = [I("WAITTAG", tag=at.okeys(st + 1)), I("s_barrier")]
        if 0 < st < 15:
            kind[0] = "B"
            VE[0] = [I("s_barrier")]
        if st + 2 < 16:
            new = [at.ofill(st + 2, hf) + ([],) for hf in range(2)]
        else:
            new = zfill(st - 14)
        newl = []
        for pre, d, post in new:
            for k, x in enumerate(d):
                newl.append((pre if k == 0 else [], x, post if k == len(d) - 1 else []))
        dpos = [3, 5, 7, 9, 12, 14, 16]
        for g, it in zip(dpos, newl):
            pre, x, post = it
            kind[g] = "d"; VE[g] = [x]
            for k, y in enumerate(pre):
                SC[g - len(pre) + k].append(y)
            SC[g + 1] += post
        dsq = []
        for mt in range(7):
            nf = mt + LF
            if nf < 7: rr = wrd(st, nf)
            elif st < 15: rr = wrd(st + 1, nf - 7)
            else: rr = []
            dsq += [(4*mt + k, x) for k, x in enumerate(rr)]
        if st < 15:
            dsq += [(17 + k, x) for k, x in enumerate(brd(st + 1))]
        dsq.sort(key=lambda z: z[0])
        nds = [0] * G
        q = 0
        for g in range(G):
            while kind[g] == "m" and q < len(dsq) and dsq[q][0] <= g and nds[g] < (2 if dsq[q][0] <= g - 2 else 1):
                VE[g].append(dsq[q][1]); nds[g] += 1; q += 1
        assert q == len(dsq)
        ops = []
        mg = [g for g in range(G) if kind[g] == "m" and nds[g] < 2]
        for k, x in enumerate(ops):
            VE[mg[(k * len(mg)) // len(ops)]].append(x)
        for mt in range(1, 8):
            if mt == 7 and st == 15: continue
            g = 4*mt - 1
            while kind[g] != "m" or SC[g]: g -= 1
            ex = f", {a(A_OB + 16*((st+1) % 2), 16)}" if mt == 7 else ""
            SC[g].append(I(f"WAITFOR {a(A_F + 4*((st*7 + mt) % NRW), 4)}{ex}"))
        for g in range(G):
            mt, q = g // 4, g % 4
            D = v(ACC + 16*mt + 4*q, 4)
            p(f"v_mfma_f32_16x16x32_bf16 {D}, {a(A_F + 4*((st*7 + mt) % NRW), 4)}, {a(A_OB + 16*(st % 2) + 4*q, 4)}, {D if st else 0}")
            oabl = opts.get("oabl", "")
            p.extend([x for x in SC[g] + VE[g] if not (("D" in oabl and x.kind == "dma" and st < 14) or ("B" in oabl and x.kind == "barrier")
                                                       or ("R" in oabl and x.kind == "ds_read"))])
        p.extend(SC[G])
        if opts.get("ost") and st in (3, 7, 11): stamp(p, [5, 6, 7][st // 4])
    if opts.get("ost"):
        stamp(p, 8)
        k_prep.STAMP["on"] = False
    if not opts.get("pst"): stamp(p, 4)
    p(f"""
    s_lshl_b32 s14, {s(S_J)}, 7
    s_lshl_b32 s15, {s(S_PB)}, 2
    s_add_u32 s14, s14, s15
    s_mul_i32 s14, s14, {14*1024}
    s_mul_i32 s15, {s(S_W)}, 7
    s_add_u32 s15, s15, 1
    s_lshr_b32 s15, s15, 1
    s_lshl_b32 s15, s15, 10
    s_add_u32 s14, s14, s15
    s_add_u32 s14, s14, {WS_PART}
    s_and_b32 s50, {s(S_W)}, 1
    s_mul_i32 s15, s50, {2*14*1024 - 4096}
    s_add_u32 s15, s15, s14
    s_add_u32 s15, s15, 3072
    s_mul_i32 s51, {s(S_HD)}, {2*SLOT}
    s_add_u32 s51, s51, {4*SLOT + 28672}
    s_lshl_b32 s52, s50, 3
    s_add_u32 s52, s52, s51
    v_add_u32 v4, s52, {v(V_LIN)}
    s_lshl_b32 s52, s50, 11
    s_add_u32 s52, s52, s51
    v_add_u32 v5, s52, {v(V_LIN)}
    """)
    pt = ("wr", ("PT", 0), "private")
    for q in range(4):
        X = ACC + 96 + 4*q
        p(f"v_cvt_pk_bf16_f32 v{X}, v{X}, v{X+1}")
        p(f"v_cvt_pk_bf16_f32 v{X+1}, v{X+2}, v{X+3}")
        p(f"ds_write_b64 v4, {v(X,2)} offset:{1024*q}", tag=("wr", ("MG", 0)))
    for q in range(4):
        for pr in range(3):
            X = ACC + 32*pr + 4*q
            Y = X + 16
            p(f"v_cvt_pk_bf16_f32 v{X}, v{X}, v{X+1}")
            p(f"v_cvt_pk_bf16_f32 v{X+1}, v{X+2}, v{X+3}")
            p(f"v_cvt_pk_bf16_f32 v{X+2}, v{Y}, v{Y+1}")
            p(f"v_cvt_pk_bf16_f32 v{X+3}, v{Y+2}, v{Y+3}")
            p(f"buffer_store_dwordx4 {v(X,4)}, {v(V_LIN)}, {s(SRD_W,4)}, s14 offen offset:{pr*1024} sc1", tag=pt)
        if q < 3:
            p(f"s_add_u32 s14, s14, {14*1024}")
        if q == 0:
            p("s_waitcnt lgkmcnt(0)")
            p("s_barrier")
            for k in range(2):
                p(f"ds_read_b128 {v(ACC+112+4*k,4)}, v5 offset:{1024*k}", tag=("rd", ("MG", 0)))
    for k in range(2):
        p(f"buffer_store_dwordx4 {v(ACC+112+4*k,4)}, {v(V_LIN)}, {s(SRD_W,4)}, s15 offen sc1", tag=pt)
        p(f"s_add_u32 s15, s15, {14*1024}")
    srd(p, SRD_K, 10, 11, 2048 * 896)
    emit_red_pre(p, S_W, S_PB, S_J, SRD_W, SRD_K, B=184)
    p(f"""
    s_lshl_b32 s14, {s(S_PB)}, 7
    s_add_u32 s14, s14, {WS_FLAG}
    """)
    p(f"s_lshl_b32 s15, 1, {s(S_J)}")
    signal(p, SRD_W, 14, S_W, "r" + name, vt=10, keys=[("PT", 0)], val="s15")
    stamp(p, 5)
    zl = [zfill(2), zfill(3), zfill(0, 1)]
    zl = flat(sum(zl, []))
    emit_red(p, S_W, S_PB, SRD_W, 163840 - 512, B=184, idle=zl)
    W4 = s(SRD_W, 4)
    ZACC = 128
    NRZ = 16
    A_H = 0
    A_FZ = 64
    VB = 16; RS = 48; VDB = 64; VRB = 72; Z1 = 80; GACC = 128
    RA = 6; A_A = 0; A_MU = 168; PB0 = 131072
    p(f"""
    s_lshr_b32 s15, {s(S_J)}, 1
    s_lshl_b32 s15, s15, 5
    s_add_u32 s14, s14, s15
    s_add_u32 s14, s14, 4096
    v_and_b32 v1, 63, v0
    v_lshlrev_b32 v2, 4, v1
    v_and_b32 v3, 15, v0                 ; n
    v_bfe_u32 v8, v0, 4, 2               ; g
    s_lshl_b32 s58, s33, 2
    s_add_u32 s58, s58, {s(S_W)}
    s_mul_i32 s4, s58, {14*1024}
    s_add_u32 s4, s4, {WS_H2}
    s_add_u32 s5, s4, 4096
    s_add_u32 s12, s4, 8192
    s_add_u32 s13, s4, 12288
    v_lshrrev_b32 v9, 2, v1
    v_mul_u32_u24 v9, 224, v9
    v_and_b32 v12, 3, v0
    v_lshl_add_u32 v12, v12, 3, v9
    v_add_u32 v13, {4*SLOT}, v12
    v_add_u32 v14, {8*SLOT}, v12
    v_mov_b32 v15, 0
    s_lshl_b32 s15, s33, 7
    s_lshl_b32 s50, {s(S_W)}, 5
    s_add_u32 s15, s15, s50
    s_add_u32 s15, s15, {WS_FLAG + 4096}
    """)
    signal(p, SRD_W, 14, S_W, "z" + name, vt=48, keys=[("H2", 0)])
    stamp(p, 7)
    p("s_cmp_lg_u32 s54, 0")
    p(f"s_cbranch_scc1 L_zf{name}")
    p.extend(zl)
    p(f"L_zf{name}:")
    srd(p, SRD_V, 6, 7, 2048 * 4096 + 4096)
    p(f"""
    s_sub_u32 {s(SRD_V)}, {s(SRD_V)}, 4096
    s_subb_u32 {s(SRD_V+1)}, {s(SRD_V+1)}, 0
    s_mov_b32 s50, s32
    s_mov_b32 s51, s33
    v_lshrrev_b32 v9, 3, v1
    v_lshlrev_b32 v9, 12, v9
    v_and_b32 v4, 7, v0
    v_xor_b32 v4, v4, v8
    v_lshl_add_u32 v4, v4, 4, v9
    v_xor_b32 v5, 64, v4
    """)
    for m in range(8):
        nl = m // 2
        if m % 2 == 0:
            p(f"s_add_u32 s52, {s(S_W)}, {nl}")
            p(f"s_and_b32 s52, s52, 3")
            p(f"s_lshl_b32 s52, s52, 16")
        p(f"s_add_u32 s53, s52, {(m % 2)*32768 + 4096 - (m % 4)*1024}")
        p(f"v_add_u32 v{VDB+m}, s53, v{4 + m % 2}")
    p(f"""
    s_lshl_b32 s52, s51, 18
    s_lshl_b32 s53, {s(S_W)}, 10
    s_add_u32 s52, s52, s53
    s_lshl_b32 s54, s50, 6
    s_lshl_b32 s53, {s(S_W)}, 4
    s_add_u32 s54, s54, s53
    s_mul_i32 s54, s54, 7168
    s_add_u32 s54, s54, {WS_ZZ}
    s_add_u32 s55, s54, 4096
    s_lshl_b32 s53, {s(S_W)}, 15
    v_mov_b32 v4, {f2u(C2)}
    v_mov_b32 v6, {f2u(C1)}
    s_lshl_b32 s38, s50, 6
    s_lshr_b32 s39, s58, 1
    s_add_u32 s38, s38, s39
    s_mul_i32 s38, s38, 7168
    s_and_b32 s39, s58, 1
    s_lshl_b32 s39, s39, 9
    s_add_u32 s38, s38, s39
    s_add_u32 s38, s38, {WS_ZZ}
    s_add_u32 s39, s38, 4096
    v_and_b32 v10, 1, v8
    v_lshlrev_b32 v10, 10, v10           ; (g%2)*1024 : second tile of the pair
    v_lshrrev_b32 v11, 1, v8
    v_lshl_add_u32 v10, v11, 8, v10      ; + (g/2)*256
    v_lshl_add_u32 v10, v3, 4, v10       ; + n*16
    v_lshlrev_b32 v11, 20, v10
    v_and_b32 v11, 0x40000000, v11
    v_or_b32 v11, v11, v10
    """)
    ALLS = [(k, 400) for k in range(9)]
    def bdma(dd, half, first=False):
        pre = [I(f"s_add_u32 m0, s53, {(dd % 4)*8192 + half*4096}")]
        tg = ("dma", [(f"B{dd % 4}", dd)] + ALLS) if first else ("dma", (f"B{dd % 4}", dd), "private")
        out = [I(f"buffer_load_dwordx4 v{VDB+4*half+k}, {s(SRD_V,4)}, s52 offen offset:{k*1024} lds", tag=tg) for k in range(4)]
        post = [I("s_add_u32 s52, s52, 128")] if half else []
        return pre, out, post
    LEADZ = 6
    def zreads(z1):
        rds = []
        for u in range(14):
            rnd = u // 4
            ab = ZBASE[z1][rnd] + (u % 4) * 7168
            base, off = (12, ab) if ab < 4 * SLOT else (13, ab - 4 * SLOT) if ab < 8 * SLOT else (14, ab - 8 * SLOT)
            for ft in range(7):
                f = u * 7 + ft + 98 * z1
                rds.append([I(f"ds_read_b64_tr_b16 {a(A_FZ + 4*(f % NRZ) + 2*e, 2)}, v{base} offset:{off + e*3584 + 32*ft}",
                              tag=("rd", ZKEYS[z1][rnd])) for e in range(2)])
        return rds
    def zgemm(z1, rds, acc, hook=None):
        for g in range(98):
            if hook and g == hook[0]:
                hook[1]()
            u, ft = g // 7, g % 7
            f = g + 98 * z1
            D = v(acc + 4*ft, 4)
            Wf = a(A_FZ + 4*(f % NRZ), 4)
            H = a(A_H + 4*u, 4)
            C = D if u else "0"
            p(f"v_mfma_f32_16x16x32_bf16 {D}, {Wf}, {H}, {C}" if z1 else f"v_mfma_f32_16x16x32_bf16 {D}, {H}, {Wf}, {C}")
            if g + 1 < 98 and (g % 2 == 1 or ft == 6):
                ex = f", {a(A_H + 4*(u+1), 4)}" if ft >= 5 and u < 13 else ""
                p(f"WAITFOR {a(A_FZ + 4*((f+1) % NRZ), 4)}, {a(A_FZ + 4*((f+2) % NRZ), 4)}{ex}")
            if g + LEADZ < 98:
                p.extend(rds[g + LEADZ])
    rz = zreads(0)
    for x in rz[:LEADZ]:
        p.extend(x)
    poll(p, SRD_W, 15, 15, 48, "z" + name, 56, 2)
    stamp(p, 8)
    for u in range(14):
        p(f"buffer_load_dwordx4 {a(A_H+4*u,4)}, v2, {W4}, s{[4,5,12,13][u//4]} offen offset:{(u % 4)*1024}{LD}")
    zgemm(0, rz, ZACC, hook=(28, lambda: p("s_barrier")))
    p("s_barrier")
    stamp(p, 9)
    def interleave(gl, bl):
        step = max(1, len(gl) // len(bl))
        for k, x in enumerate(gl):
            if k % step == 0 and bl:
                p.extend(bl.pop(0))
            p(x)
        for x in bl:
            p.extend(x)
    def groups(gs):
        out = []
        for pre, o, post in gs:
            for k, x in enumerate(o):
                out.append((pre if k == 0 else []) + [x] + (post if k == len(o) - 1 else []))
        return out
    gp = Prog("tmp")
    gelu_pairs(gp, [ZACC + 2*k for k in range(14)], 24)
    interleave(gp.items, groups(zfill(1, 1) + zfill(2, 1) + zfill(3, 1)))
    for k in range(0, 4, 2):
        p(f"v_pk_add_f32 {v(32+k,2)}, {v(ZACC+k,2)}, {v(ZACC+4+k,2)}")
        p(f"v_pk_mul_f32 {v(36+k,2)}, {v(ZACC+k,2)}, {v(ZACC+k,2)}")
    for ft in range(1, 7):
        for k in range(0, 4, 2):
            if ft >= 2:
                p(f"v_pk_add_f32 {v(32+k,2)}, {v(32+k,2)}, {v(ZACC+4*ft+k,2)}")
            p(f"v_pk_fma_f32 {v(36+k,2)}, {v(ZACC+4*ft+k,2)}, {v(ZACC+4*ft+k,2)}, {v(36+k,2)}")
    zt = ("wr", ("ZZ", 0), "private")
    for pr in range(4):
        X = ZACC + 8*pr
        for k in range(4):
            sx = X + 2*k if pr < 3 else X + 2*(k % 2)
            p(f"v_cvt_pk_bf16_f32 v{40+4*(pr % 2)+k}, v{sx}, v{sx+1}")
        Y = 40 + 4*(pr % 2)
        p(f"v_permlane16_swap_b32 v{Y}, v{Y+2}")
        p(f"v_permlane16_swap_b32 v{Y+1}, v{Y+3}")
        p(f"buffer_store_dwordx4 {v(Y,4)}, v{10 if pr < 3 else 11}, {W4}, s{38 + pr//2} offen offset:{(pr % 2)*2048} sc1", tag=zt)
    for sh in (8, 4, 2, 1):
        for k in range(8):
            p(f"v_add_f32_dpp v{32+k}, v{32+k}, v{32+k} row_ror:{sh} row_mask:0xf bank_mask:0xf")
    p("v_mov_b32 v24, v32")
    for n in range(1, 8):
        srcr = 32 + n // 2 + 4 * (n % 2)
        p(f"v_cmp_eq_u32 vcc, {n}, v3")
        p(f"v_cndmask_b32 v24, v24, v{srcr}, vcc")
    p(f"""
    v_lshlrev_b32 v9, 5, v8
    v_lshl_add_u32 v9, v3, 2, v9
    v_lshlrev_b32 v25, 27, v3
    v_and_b32 v25, 0x40000000, v25
    v_or_b32 v9, v9, v25
    s_lshl_b32 s38, s58, 7
    s_add_u32 s38, s38, {WS_STATS}
    """)
    p(f"buffer_atomic_add_f32 v24, v9, {W4}, s38 offen sc1", tag=zt)
    rz = zreads(1)
    for x in rz[:LEADZ]:
        p.extend(x)
    p(I("WAITTAG", tag=ZKEYS[1][1] + ZKEYS[1][2] + ZKEYS[1][3]))
    p("s_barrier")
    Z1ACC = 160
    p(f"""
    s_lshl_b32 s14, s51, 7
    s_add_u32 s14, s14, {WS_FLAG + 8192}
    s_lshl_b32 s15, {s(S_W)}, 10
    s_add_u32 s15, s15, {WS_FLAG + 8192}
    """)
    def sig_g():
        signal(p, SRD_W, 14, S_W, "g" + name, vt=48)
        stamp(p, 10)
    zgemm(1, rz, Z1ACC, hook=(opts.get("sigg", 35), sig_g))
    p("s_barrier")
    NB0 = opts.get("nb0", 4)
    gp = Prog("tmp")
    gelu_pairs(gp, [Z1ACC + 2*k for k in range(14)], 96)
    for k in range(14):
        gp(f"v_cvt_pk_bf16_f32 v{Z1+k}, v{Z1ACC+2*k}, v{Z1ACC+2*k+1}")
    interleave(gp.items, groups([bdma(dd, hf, first=True) for dd in range(NB0) for hf in range(2)]))
    p("s_load_dwordx2 s[4:5], s[0:1], 64")
    p("s_load_dwordx2 s[6:7], s[0:1], 96")
    p(f"""
    v_lshlrev_b32 v10, 6, v1
    s_lshl_b32 s34, {s(S_W)}, 12
    s_add_u32 s35, s34, {WS_STATS}
    s_add_u32 s34, s34, {PB0}
    v_lshlrev_b32 v12, 5, v1
    v_add_u32 v12, s34, v12
    v_add_u32 v13, s34, v2
    v_lshlrev_b32 v14, 5, v8
    v_add_u32 v14, s34, v14
    v_and_b32 v15, 1, v0
    v_lshlrev_b32 v15, 10, v15
    v_lshl_add_u32 v15, v8, 4, v15
    v_add_u32 v15, s34, v15
    v_lshrrev_b32 v9, 1, v3
    v_xor_b32 v9, v9, v8
    v_lshlrev_b32 v9, 4, v9
    v_lshl_add_u32 v9, v3, 7, v9
    v_add_u32 v{VRB}, s53, v9
    v_xor_b32 v{VRB+1}, 64, v{VRB}
    v_mov_b32 v11, {f2u(1e-5)}
    s_waitcnt lgkmcnt(0)
    """)
    srd(p, SRD_K, 4, 5, 4096)
    srd(p, SRD_O, 8, 9, 896 * 896)
    srd(p, SRD_Q, 6, 7, 2048 * 896)
    def b_reads(ks):
        dd = ks // 2
        return [I(f"ds_read_b128 {v(VB + 16*(ks % 2) + 4*nl, 4)}, v{VRB + ks % 2} offset:{(dd % 4)*8192 + nl*2048}",
                  tag=("rd", (f"B{dd % 4}", dd), "private")) for nl in range(4)]
    p("v_and_b32 v49, 7, v0")
    p("v_lshlrev_b32 v49, 7, v49")
    poll(p, SRD_W, 15, 49, 48, "g" + name, 56, 8)
    p.extend(b_reads(0))
    stamp(p, 11)
    if opts.get("gst"): stamp(p, 0)
    ST = GACC
    for k in range(4):
        p(f"buffer_load_dwordx4 {v(ST+4*k,4)}, v10, {W4}, s35 offen offset:{16*k} sc1")
    def aload(ks):
        out = [I(f"buffer_load_dwordx4 {a(A_A + 28*(ks % RA) + 4*mt, 4)}, v2, {W4}, s{54 + mt//4} offen offset:{(mt % 4)*1024}{LD}")
               for mt in range(7)]
        post = [I("s_add_u32 s54, s54, 7168"), I("s_add_u32 s55, s55, 7168")]
        return out, post
    NA0 = opts.get("na0", 2)
    for ks in range(NA0):
        o, post = aload(ks); p.extend(o); p.extend(post)
    MU = GACC + 16; R = GACC + 24; T = GACC + 64
    for k in range(8):
        p(f"v_mul_f32 v{MU+k}, {f2u(1.0/896)}, v{ST+2*k}")
        p(f"v_mul_f32 v{R+k}, {f2u(1.0/896)}, v{ST+2*k+1}")
        p(f"v_fma_f32 v{R+k}, -v{MU+k}, v{MU+k}, v{R+k}")
        p(f"v_max_f32 v{R+k}, 0, v{R+k}")
        p(f"v_add_f32 v{R+k}, v11, v{R+k}")
        p(f"v_rsq_f32 v{R+k}, v{R+k}")
    tg = ("wr", ("P", 0), "private")
    p(f"ds_write_b128 v12, {v(R,4)}", tag=tg)
    p(f"ds_write_b128 v12, {v(R+4,4)} offset:16", tag=tg)
    for k in range(4):
        p(f"v_cvt_pk_bf16_f32 v{T+k}, v{MU+2*k}, v{MU+2*k+1}")
        p(f"v_lshlrev_b32 v4, 16, v{T+k}")
        p(f"v_and_b32 v5, 0xffff0000, v{T+k}")
        p(f"v_sub_f32 v4, v{MU+2*k}, v4")
        p(f"v_sub_f32 v5, v{MU+2*k+1}, v5")
        p(f"v_cvt_pk_bf16_f32 v{T+4+k}, v4, v5")
    p(f"ds_write_b128 v13, {v(T,4)} offset:2048", tag=tg)
    p(f"ds_write_b128 v13, {v(T+4,4)} offset:3072", tag=tg)
    o, post = aload(NA0); p.extend(o); p.extend(post)
    p("s_waitcnt lgkmcnt(0)")
    rt = ("rd", ("P", 0), "private")
    def rs_reads(ks):
        return [I(f"ds_read_b128 {v(RS + 8*(ks % 2) + 4*h, 4)}, v14 offset:{128*ks + 16*h}", tag=rt) for h in range(2)]
    def mu_read(ks):
        return I(f"ds_read_b128 {a(A_MU + 4*(ks % 2), 4)}, v15 offset:{2048 + 64*ks}", tag=rt)
    def scale(ks, pk=False):
        out = []
        for nl in range(4):
            for d in range(4):
                x = VB + 16*(ks % 2) + 4*nl + d
                t = 4 + 2 * (d % 4)
                r = RS + 8*(ks % 2) + 2*d
                out.append(I(f"v_lshlrev_b32 v{t}, 16, v{x}"))
                out.append(I(f"v_and_b32 v{t+1}, 0xffff0000, v{x}"))
                if pk:
                    out.append(I(f"v_pk_mul_f32 {v(t,2)}, {v(t,2)}, {v(r,2)}"))
                else:
                    out.append(I(f"v_mul_f32 v{t}, v{t}, v{r}"))
                    out.append(I(f"v_mul_f32 v{t+1}, v{t+1}, v{r+1}"))
                out.append(I(f"v_cvt_pk_bf16_f32 v{x}, v{t}, v{t+1}"))
        return out
    p.extend(rs_reads(0)); p.extend(rs_reads(1)); p(mu_read(0))
    p.extend(scale(0, True))
    nexta = NA0 + 1
    nextb = 2 * NB0
    for ks in range(16):
        if opts.get("gst") and ks in (0, 4, 8, 12):
            stamp(p, 1 + ks // 4)
        SC = [[] for _ in range(33)]
        VE = [[] for _ in range(32)]
        kind = ["m"] * 32
        vm = []
        budget = opts.get("gbud", 11)
        def addb():
            nonlocal nextb, budget
            pre, o, post = bdma(nextb // 2, nextb % 2); nextb += 1; budget -= 4
            vm.extend([(pre if k == 0 else [], x, post if k == 3 else []) for k, x in enumerate(o)])
        def adda():
            nonlocal nexta, budget
            o, post = aload(nexta); nexta += 1; budget -= 7
            vm.extend([([], x, post if k == 6 else []) for k, x in enumerate(o)])
        while True:
            canb = nextb < 16 and nextb <= ks + 6 and budget >= 4
            cana = nexta < 16 and nexta <= ks + opts.get("glead", 3) and budget >= 7
            if canb and (not cana or budget >= 11):
                addb()
            elif cana:
                adda()
            else:
                break
        if ks == 13:
            p(f"""
            s_lshl_b32 s35, s58, 5
            v_lshlrev_b32 v12, 1, v3
            """)
            vm += [([], I(f"buffer_load_ushort v{Z1+14}, v12, {s(SRD_K,4)}, s35 offen"), [])]
        for k, (pre, x, post) in enumerate(vm):
            g = 3 + 2 * k if len(vm) > 11 else 6 + (k * 24) // 11
            kind[g] = "d"; VE[g] = [x]
            SC[g - 1] += pre
            SC[g + 1] += post
        mg = [g for g in range(32) if kind[g] == "m"]
        if ks + 1 < 16:
            if (ks + 1) % 2 == 0:
                SC[0].append(I("WAITTAG", tag=[(f"B{((ks+1)//2) % 4}", (ks+1)//2)]))
            br = b_reads(ks + 1) + [mu_read(ks + 1)] + (rs_reads(ks + 2) if ks + 2 < 16 else [])
            for k, x in enumerate(br):
                VE[mg[k]].append(x)
            ops = scale(ks + 1)
            mv = mg[4:]
            for k, x in enumerate(ops):
                VE[mv[(k * len(mv)) // len(ops)]].append(x)
            SC[mg[-1]].append(I(f"WAITFOR {a(A_A + 28*((ks+1) % RA), 28)}, {a(A_MU + 4*((ks+1) % 2), 4)}"))
        for g in range(32):
            mt, nl = g // 4, g % 4
            D = v(GACC + 16*mt + 4*nl, 4)
            Aop = a(A_A + 28*(ks % RA) + 4*mt, 4) if mt < 7 else a(A_MU + 4*(ks % 2), 4)
            p(f"v_mfma_f32_16x16x32_bf16 {D}, {Aop}, {v(VB + 16*(ks % 2) + 4*nl, 4)}, {D if ks else 0}")
            for x in SC[g] + VE[g]:
                p(x)
            if ks == 15:
                if g == 0:
                    p("v_add_u32 v4, s53, v2")
                g2 = g - 8
                if g2 >= 0 and g2 % 4:
                    p(f"ds_write_b128 v4, {v(GACC + 16*(g2//4) + 4*(g2 % 4), 4)} offset:{(g2 % 4 - 1)*8192 + (g2//4)*1024}", tag=("wr", ("X", 0)))
        assert not SC[32]
    assert nexta == 16 and nextb == 16
    stamp(p, 12)
    if opts.get("gst"): stamp(p, 5)
    for nl in range(1, 4):
        p(f"s_sub_u32 s34, {s(S_W)}, {nl}")
        p(f"s_and_b32 s34, s34, 3")
        p(f"s_lshl_b32 s34, s34, 15")
        p(f"v_add_u32 v{4+nl}, s34, v2")
    for mt in range(6, 8):
        for nl in range(1, 4):
            p(f"ds_write_b128 v4, {v(GACC + 16*mt + 4*nl, 4)} offset:{(nl-1)*8192 + mt*1024}", tag=("wr", ("X", 0)))
    p("s_waitcnt lgkmcnt(0)")
    if opts.get("gst"): stamp(p, 6)
    p("s_barrier")
    if opts.get("gst"): stamp(p, 7)
    for mt in (7, 0, 1, 2, 3, 4, 5, 6):
        for nl in range(1, 4):
            p(f"ds_read_b128 {v(GACC + 16*mt + 4*nl, 4)}, v{4+nl} offset:{(nl-1)*8192 + mt*1024}", tag=("rd", ("X", 0)))
    p(f"""
    s_mul_i32 s34, s58, {28*1024}
    s_add_u32 s34, s34, {WS_U}
    s_mul_i32 s35, s50, 7
    s_add_u32 s36, s35, 1
    s_lshr_b32 s36, s36, 1
    s_lshl_b32 s36, s36, 10
    s_add_u32 s36, s36, s34
    s_and_b32 s37, s50, 1
    s_mul_i32 s37, s37, {4096 - 512}
    s_sub_u32 s37, s36, s37
    s_add_u32 s37, s37, 3072
    v_lshlrev_b32 v14, 3, v1
    v_lshlrev_b32 v{Z1+14}, 16, v{Z1+14}
    """)
    def red(mt, n=2):
        X = GACC + 16*mt
        for h in range(n):
            p(f"v_pk_add_f32 {v(X+2*h,2)}, {v(X+2*h,2)}, {v(X+4+2*h,2)}")
            p(f"v_pk_add_f32 {v(X+8+2*h,2)}, {v(X+8+2*h,2)}, {v(X+12+2*h,2)}")
        for h in range(n):
            p(f"v_pk_add_f32 {v(X+2*h,2)}, {v(X+2*h,2)}, {v(X+8+2*h,2)}")
    red(7, 1)
    X7 = GACC + 112
    p(f"v_sub_f32 v8, v{Z1+14}, v{X7}")
    p(f"v_sub_f32 v8, v8, v{X7+1}")
    for ft in range(7):
        red(ft)
        X = GACC + 16*ft
        for h in range(2):
            p(f"v_pk_add_f32 {v(X+2*h,2)}, {v(X+2*h,2)}, v[8:9] op_sel_hi:[1,0]")
            p(f"v_lshlrev_b32 v{10+2*h}, 16, v{Z1+2*ft+h}")
            p(f"v_and_b32 v{11+2*h}, 0xffff0000, v{Z1+2*ft+h}")
            p(f"v_pk_mul_f32 {v(X+2*h,2)}, {v(X+2*h,2)}, {v(10+2*h,2)}")
        Y = GACC + 16*(ft & ~1) + 4 + 2*(ft % 2)
        p(f"v_cvt_pk_bf16_f32 v{Y}, v{X}, v{X+1}")
        p(f"v_cvt_pk_bf16_f32 v{Y+1}, v{X+2}, v{X+3}")
        if ft % 2 == 1:
            p(f"buffer_store_dwordx4 {v(Y-2,4)}, v2, {W4}, s36 offen offset:{(ft//2)*1024} sc1", tag=("wr", ("U", 0), "private"))
        if ft == 6:
            p(f"buffer_store_dwordx2 {v(Y,2)}, v14, {W4}, s37 offen sc1", tag=("wr", ("U", 0), "private"))
    if opts.get("gst"): stamp(p, 8)
    p("s_barrier")
    OACC = 64; A_B = 0; A_FO = 112; NRO = 8
    p(f"""
    s_lshl_b32 s33, {s(S_J)}, 2
    s_and_b32 s15, {s(S_PB)}, 3
    s_add_u32 s33, s33, s15              ; tb'
    s_lshr_b32 s32, {s(S_PB)}, 2         ; cb
    v_lshrrev_b32 v3, 3, v1
    v_mul_u32_u24 v3, 896, v3
    v_bfe_u32 v8, v0, 4, 2
    v_lshlrev_b32 v9, 1, v8
    v_and_b32 v10, 7, v0
    v_xor_b32 v9, v9, v10
    v_lshl_add_u32 v4, v9, 4, v3
    v_add_u32 v5, {7168-1024}, v4
    v_add_u32 v6, {2*(7168-1024)}, v4
    v_add_u32 v7, {3*(7168-1024)}, v4
    s_mul_i32 s34, {s(S_W)}, {224*896}
    s_lshl_b32 s35, s32, 7
    s_add_u32 s34, s34, s35
    s_lshl_b32 s14, s51, 7
    s_add_u32 s14, s14, {WS_FLAG + 12288}
    """)
    NW0 = opts.get("nw0", 3)
    def wdma(ks):
        p(f"s_add_u32 m0, s53, {ks*4096}")
        for k in range(4):
            p(f"buffer_load_dwordx4 v{4+k}, {s(SRD_O,4)}, s34 offen offset:{k*1024} lds", tag=("dma", [(f"W{ks}", 0), ("X", 1)]))
        p(f"s_add_u32 s34, s34, {4*7168}")
    for ks in range(NW0):
        wdma(ks)
    p("s_lshl_b32 s15, 1, s50")
    signal(p, SRD_W, 14, S_W, "o" + name, vt=48, keys=[("U", 0)], val="s15")
    stamp(p, 13)
    if opts.get("gst"): stamp(p, 9)
    p(f"s_cmp_ge_u32 {s(S_PB)}, 28")
    p(f"s_cbranch_scc1 L_end{name}")
    for ks in range(NW0, 7):
        wdma(ks)
    X1 = 16; GB = 24
    for nl in range(4):
        p(f"s_add_u32 s36, {s(S_W)}, {nl}")
        p(f"s_and_b32 s36, s36, 3")
        p(f"s_lshl_b32 s37, s33, 2")
        p(f"s_add_u32 s36, s36, s37")
        p(f"s_mul_i32 s36, s36, {28*1024}")
        p(f"s_mul_i32 s37, {s(S_W)}, 7168")
        p(f"s_add_u32 s36, s36, s37")
        p(f"s_add_u32 s{4+nl}, s36, {WS_U}")
        p(f"s_add_u32 s{8+nl}, s{4+nl}, 4096")
    p(f"""
    s_lshl_b32 s36, s33, 2
    s_add_u32 s36, s36, {s(S_W)}
    s_mul_i32 s37, s36, {14*1024}
    s_lshl_b32 s38, s32, 11
    s_add_u32 s37, s37, s38
    s_add_u32 s37, s37, {WS_X1}
    buffer_load_dwordx4 {v(X1,4)}, v2, {W4}, s37 offen sc1
    buffer_load_dwordx4 {v(X1+4,4)}, v2, {W4}, s37 offen offset:1024 sc1
    v_lshlrev_b32 v9, 4, v8
    s_lshl_b32 s38, s32, 8
    s_add_u32 s38, s38, {WS_MOD + 5*1792}
    """)
    for ct in range(4):
        p(f"buffer_load_dwordx4 {v(GB+4*ct,4)}, v9, {W4}, s38 offen offset:{64*ct} sc1")
    p(f"""
    v_lshrrev_b32 v3, 2, v1
    v_lshlrev_b32 v3, 7, v3
    v_bfe_u32 v10, v0, 3, 2
    v_lshl_add_u32 v3, v10, 5, v3
    v_and_b32 v10, 3, v0
    v_lshl_add_u32 v3, v10, 3, v3
    v_add_u32 v12, s53, v3
    v_xor_b32 v13, 32, v12
    v_xor_b32 v14, 64, v12
    v_xor_b32 v15, 0x60, v12
    v_mov_b32 v10, 0
    v_lshlrev_b32 v11, 3, v1
    s_lshl_b32 s15, s33, 7
    s_add_u32 s15, s15, {WS_FLAG + 12288}
    """)
    p(f"s_lshl_b32 s36, {s(S_W)}, 1")
    p("s_lshl_b32 s36, 3, s36")
    poll(p, SRD_W, 15, 10, 48, "o" + name, 56, "s36", mask="s36")
    stamp(p, 14)
    ul = [I(f"buffer_load_dwordx4 {a(A_B + 16*ks + 4*nl, 4)}, v2, {W4}, s{4 + nl + 4*(ks//4)} offen offset:{(ks % 4)*1024}{LD}")
          for ks in range(7) for nl in range(4)]
    ul[12:16] = [I(f"buffer_load_dwordx2 {a(A_B + 48 + 4*nl + 2*h, 2)}, v11, {W4}, s{4 + nl} offen offset:{3072 + 512*h}{LD}")
                 for nl in range(4) for h in range(2)]
    p.extend(ul[:20]); ul = ul[20:]
    def rd(f):
        ks, ct = f // 4, f % 4
        return [I(f"ds_read_b64_tr_b16 {a(A_FO + 4*(f % NRO) + 2*e, 2)}, v{12+ct} offset:{ks*4096 + e*2048}",
                  tag=("rd", (f"W{ks}", 0), "private")) for e in range(2)]
    PFO = 4
    for f in range(PFO):
        p.extend(rd(f))
    for f in range(28):
        ks, ct = f // 4, f % 4
        nx = f + PFO
        for nl in range(4):
            D = v(OACC + 16*ct + 4*nl, 4)
            p(f"v_mfma_f32_16x16x32_bf16 {D}, {a(A_FO + 4*(f % NRO), 4)}, {a(A_B + 16*ks + 4*nl, 4)}, {D if ks else 0}")
            if nx < 28 and nl < 2:
                p(rd(nx)[nl])
            if nl == 2 and ul:
                p(ul.pop(0))
            if nl == 3 and f + 1 < 28:
                p(f"WAITFOR {a(A_FO + 4*((f+1) % NRO), 4)}, {a(A_B + 16*((f+1)//4), 16)}")
    p("v_add_u32 v4, s53, v2")
    for nl in range(1, 4):
        p(f"s_sub_u32 s36, {s(S_W)}, {nl}")
        p(f"s_and_b32 s36, s36, 3")
        p(f"s_lshl_b32 s36, s36, 15")
        p(f"v_add_u32 v{4+nl}, s36, v2")
    for ct in range(4):
        for nl in range(1, 4):
            p(f"ds_write_b128 v4, {v(OACC + 16*ct + 4*nl, 4)} offset:{(nl-1)*4096 + ct*1024}", tag=("wr", ("Y", 0)))
    p("s_waitcnt lgkmcnt(0)")
    p("s_barrier")
    for ct in range(4):
        for nl in range(1, 4):
            p(f"ds_read_b128 {v(OACC + 16*ct + 4*nl, 4)}, v{4+nl} offset:{(nl-1)*4096 + ct*1024}", tag=("rd", ("Y", 0)))
    p(f"""
    v_and_b32 v3, 15, v0
    v_mul_u32_u24 v3, 896, v3
    v_lshl_add_u32 v3, v8, 4, v3
    s_lshl_b32 s36, s33, 2
    s_add_u32 s36, s36, {s(S_W)}
    s_mul_i32 s36, s36, {16*896}
    s_lshl_b32 s37, s32, 7
    s_add_u32 s36, s36, s37
    """)
    for ct in range(4):
        X = OACC + 16*ct
        for h in range(2):
            p(f"v_pk_add_f32 {v(X+2*h,2)}, {v(X+2*h,2)}, {v(X+4+2*h,2)}")
            p(f"v_pk_add_f32 {v(X+8+2*h,2)}, {v(X+8+2*h,2)}, {v(X+12+2*h,2)}")
        for h in range(2):
            p(f"v_pk_add_f32 {v(X+2*h,2)}, {v(X+2*h,2)}, {v(X+8+2*h,2)}")
            p(f"v_lshlrev_b32 v{10}, 16, v{X1+2*ct+h}")
            p(f"v_and_b32 v{11}, 0xffff0000, v{X1+2*ct+h}")
            p(f"v_pk_fma_f32 {v(X+2*h,2)}, {v(X+2*h,2)}, {v(GB+4*ct+2*h,2)}, v[10:11]")
        k, odd = ct // 2, ct % 2
        O = 40 + 4*k + 2*odd
        p(f"v_cvt_pk_bf16_f32 v{O}, v{X}, v{X+1}")
        p(f"v_cvt_pk_bf16_f32 v{O+1}, v{X+2}, v{X+3}")
        if odd:
            O = 40 + 4*k
            p(f"v_permlane32_swap_b32 v{O}, v{O+2}")
            p(f"v_permlane32_swap_b32 v{O+1}, v{O+3}")
            p(f"v_permlane16_swap_b32 v{O}, v{O+2}")
            p(f"v_permlane16_swap_b32 v{O+1}, v{O+3}")
            p(f"buffer_store_dwordx4 {v(O,4)}, v3, {s(SRD_Q,4)}, s36 offen offset:{64*k}")
    k_prep.STAMP["on"] = son
    if opts.get("diag"):
        p("s_waitcnt vmcnt(0)")
        stamp(p, 15)
        p("v_mov_b32 v1, 0")
        p("s_mov_b64 exec, 1")
        p("s_not_b32 s14, s61")
        p("v_mov_b32 v2, s14")
        p(f"buffer_atomic_umax v2, v1, {s(SRD_D,4)}, 0 offen offset:8 sc1")
        for k, st in enumerate((1, 2, 3, 4, 5, 7, 10, 11, 12, 13, 15)):
            p(f"v_mov_b32 v3, s{61+2*st}")
            p(f"buffer_atomic_umax v3, v1, {s(SRD_D,4)}, 0 offen offset:{12+4*k} sc1")
            p("s_nop 1")
        p("s_mov_b64 exec, -1")
        k_prep.STAMP["on"] = False
    stamp_dump(p, opts.get("slot", 1), NSTAMP, SRD_W, S_W)
    p(f"L_end{name}:")
    p("s_endpgm")
    if opts.get("gabl") or opts.get("oabl"):
        p.check_lds = lambda: None
    p.finalize()
    return p


def gen_mega(opts=None):
    p0 = build_mega(opts or {})
    if (opts or {}).get("plain"):
        return p0, "; @launch grid=(256,1,1) block=(256,1,1) lds=163840\n"
    return p0, f"; @launch kernel={p0.name} grid=(256,1,1) block=(256,1,1) lds=163840\n"
```

```python
import sys
sys.path.insert(0, "work")
from asmlib import *
from layout import *
from k_prep import srd, f2u, stamp, stamp_dump, signal, poll

def lane_reduce_345(p, T, tmp):
    p(f"v_add_f32_dpp {v(T)}, {v(T)}, {v(T)} row_ror:8 row_mask:0xf bank_mask:0xf")
    p(f"v_mov_b32 {v(tmp)}, {v(T)}")
    p(f"v_permlane32_swap_b32 {v(T)}, {v(tmp)}")
    p(f"v_add_f32 {v(T)}, {v(T)}, {v(tmp)}")
    p(f"v_mov_b32 {v(tmp)}, {v(T)}")
    p(f"v_permlane16_swap_b32 {v(T)}, {v(tmp)}")
    p(f"v_add_f32 {v(T)}, {v(T)}, {v(tmp)}")

def gen_red():
    p = Prog("red_kernel")
    p(f"""
    s_cmp_ge_u32 s2, 256
    s_cbranch_scc1 L_red_end
    s_load_dwordx2 s[4:5], s[0:1], 0
    s_load_dwordx2 s[6:7], s[0:1], 112
    v_lshrrev_b32 v1, 6, v0
    v_readfirstlane_b32 s12, v1
    v_and_b32 v1, 7, v0                  ; n8
    v_bfe_u32 v2, v0, 3, 2               ; g
    v_bfe_u32 v3, v0, 5, 1               ; uu
    v_lshlrev_b32 v4, 10, v3
    v_lshl_add_u32 v4, v2, 8, v4
    v_lshl_add_u32 v4, v1, 4, v4
    s_lshr_b32 s13, s2, 1                ; q-tile
    s_and_b32 s14, s2, 1                 ; half
    s_mul_i32 s15, s13, {14*1024}
    s_lshl_b32 s32, s14, 7
    s_add_u32 s15, s15, s32
    s_lshl_b32 s32, s12, 11
    s_add_u32 s15, s15, s32
    s_waitcnt lgkmcnt(0)
    """)
    stamp(p, 0)
    srd(p, 16, 4, 5, 2048 * 896)
    srd(p, 28, 6, 7, WS_USED)
    p(f"s_add_u32 s32, s15, {WS_PART}")
    for j in range(8):
        p(f"buffer_load_dwordx4 {v(32+4*j,4)}, v4, s[28:31], s32 offen")
        if j < 7:
            p(f"s_add_u32 s32, s32, {128*14*1024}")
    p(f"""
    v_mul_u32_u24 v5, 896, v1
    v_lshl_add_u32 v5, v3, 6, v5
    v_lshl_add_u32 v5, v2, 3, v5
    s_mul_i32 s33, s2, {8*896}
    s_lshl_b32 s34, s12, 7
    s_add_u32 s33, s33, s34
    buffer_load_dwordx2 v[64:65], v5, s[16:19], s33 offen
    buffer_load_dwordx2 v[66:67], v5, s[16:19], s33 offen offset:32
    v_lshlrev_b32 v6, 7, v3
    v_lshl_add_u32 v6, v2, 4, v6         ; (32uu + 4g)*4
    s_lshl_b32 s34, s12, 8
    s_add_u32 s34, s34, {WS_MOD + 2*1792}
    """)
    for k, sec in enumerate((0, 1, 2)):
        for e in range(2):
            p(f"buffer_load_dwordx4 {v(72+8*k+4*e,4)}, v6, s[28:31], s34 offen offset:{sec*1792 + 64*e}")
    A = 16
    for j in range(8):
        for d in range(4):
            x = 32 + 4*j + d
            if j == 0:
                p(f"v_lshlrev_b32 v{A+2*d}, 16, v{x}")
                p(f"v_and_b32 v{A+2*d+1}, 0xffff0000, v{x}")
            else:
                t = 8 + 2 * (d % 2)
                p(f"v_lshlrev_b32 v{t}, 16, v{x}")
                p(f"v_and_b32 v{t+1}, 0xffff0000, v{x}")
                p(f"v_pk_add_f32 {v(A+2*d,2)}, {v(A+2*d,2)}, {v(t,2)}")
    X1 = 24
    stamp(p, 1)
    for d in range(4):
        t = 8 + 2 * (d % 2)
        p(f"v_lshlrev_b32 v{t}, 16, v{64+d}")
        p(f"v_and_b32 v{t+1}, 0xffff0000, v{64+d}")
        p(f"v_pk_fma_f32 {v(A+2*d,2)}, {v(A+2*d,2)}, {v(72+2*d,2)}, {v(t,2)}")
        p(f"v_cvt_pk_bf16_f32 v{X1+d}, v{A+2*d}, v{A+2*d+1}")
        p(f"v_lshlrev_b32 v{A+2*d}, 16, v{X1+d}")
        p(f"v_and_b32 v{A+2*d+1}, 0xffff0000, v{X1+d}")
    p(f"""
    s_add_u32 s32, s15, {WS_X1}
    buffer_store_dwordx4 {v(X1,4)}, v4, s[28:31], s32 offen
    v_pk_add_f32 v[8:9], {v(A,2)}, {v(A+2,2)}
    v_pk_add_f32 v[10:11], {v(A+4,2)}, {v(A+6,2)}
    v_pk_add_f32 v[8:9], v[8:9], v[10:11]
    v_add_f32 v8, v8, v9
    """)
    lane_reduce_345(p, 8, 9)
    p(f"""
    s_lshl_b32 s33, s12, 5
    v_lshlrev_b32 v12, 2, v1
    v_add_u32 v13, s33, v12
    ds_write_b32 v13, v8
    s_waitcnt lgkmcnt(0)
    s_barrier
    """)
    def gather(off):
        for w in range(7):
            p(f"ds_read_b32 v{32+w}, v12 offset:{off + 32*w}")
        p("v_add_f32 v32, v32, v33")
        p("v_add_f32 v34, v34, v35")
        p("v_add_f32 v36, v36, v37")
        p("v_add_f32 v32, v32, v38")
        p("v_add_f32 v34, v34, v36")
        p("v_add_f32 v8, v32, v34")
    gather(0)
    p(f"v_mul_f32 v8, {f2u(-1.0/448)}, v8")
    for d in range(4):
        p(f"v_pk_add_f32 {v(A+2*d,2)}, {v(A+2*d,2)}, v[8:9] op_sel_hi:[1,0]")
    p(f"v_pk_mul_f32 v[10:11], {v(A,2)}, {v(A,2)}")
    for d in range(1, 4):
        p(f"v_pk_fma_f32 v[10:11], {v(A+2*d,2)}, {v(A+2*d,2)}, v[10:11]")
    p("v_add_f32 v8, v10, v11")
    lane_reduce_345(p, 8, 9)
    p(f"""
    ds_write_b32 v13, v8 offset:256
    s_waitcnt lgkmcnt(0)
    s_barrier
    """)
    gather(256)
    p(f"""
    v_mov_b32 v10, {f2u(1e-5)}
    v_fmac_f32 v10, {f2u(1.0/448)}, v8
    v_rsq_f32 v10, v10
    """)
    for d in range(4):
        p(f"v_pk_mul_f32 {v(A+2*d,2)}, {v(A+2*d,2)}, v[10:11] op_sel_hi:[1,0]")
        p(f"v_pk_fma_f32 {v(A+2*d,2)}, {v(A+2*d,2)}, {v(88+2*d,2)}, {v(80+2*d,2)}")
        p(f"v_cvt_pk_bf16_f32 v{28+d}, v{A+2*d}, v{A+2*d+1}")
    p(f"""
    s_add_u32 s32, s15, {WS_H2}
    buffer_store_dwordx4 v[28:31], v4, s[28:31], s32 offen
    """)
    stamp(p, 2)
    stamp_dump(p, 2, 4, 28, 12)
    p("L_red_end:")
    p("s_endpgm")
    p.finalize()
    return p, "; @launch kernel=red_kernel grid=(256,1,1) block=(448,1,1) lds=512\n"


def emit_red_pre(p, S_W, S_PB, S_J, SRD_W, SRD_X, B=128):
    p(f"""
    v_and_b32 v1, 7, v0                  ; n8
    v_bfe_u32 v2, v0, 3, 2               ; g
    v_bfe_u32 v3, v0, 5, 1               ; uu
    v_lshlrev_b32 v4, 10, v3
    v_lshl_add_u32 v4, v2, 8, v4
    v_lshl_add_u32 v4, v1, 4, v4
    s_lshl_b32 s50, s{S_PB}, 3
    s_add_u32 s50, s50, s{S_J}
    s_lshr_b32 s51, s50, 1
    s_mul_i32 s51, s51, {14*1024}
    s_and_b32 s52, s50, 1
    s_lshl_b32 s52, s52, 7
    s_add_u32 s51, s51, s52
    s_lshl_b32 s52, s{S_W}, 11
    s_add_u32 s51, s51, s52
    s_cmp_eq_u32 s{S_W}, 3
    s_cselect_b32 s53, 0x40000000, 0
    s_cselect_b32 s54, 0, 1.0
    v_add_u32 v5, s53, v4
    v_add_u32 v5, 8192, v5
    v_mul_u32_u24 v6, 896, v1
    v_lshl_add_u32 v6, v3, 6, v6
    v_lshl_add_u32 v6, v2, 3, v6
    v_add_u32 v7, s53, v6
    s_mul_i32 s55, s50, {8*896}
    s_lshl_b32 s52, s{S_W}, 7
    s_add_u32 s55, s55, s52
    v_lshlrev_b32 v8, 7, v3
    v_lshl_add_u32 v8, v2, 4, v8
    v_add_u32 v9, s53, v8
    v_add_u32 v9, 1024, v9
    s_lshl_b32 s52, s{S_W}, 8
    s_add_u32 s52, s52, {WS_MOD + 2*1792}
    """)
    for h in range(2):
        for e in range(2):
            p(f"buffer_load_dwordx2 {v(B+4*h+2*e,2)}, v{6+h}, s[{SRD_X}:{SRD_X+3}], s55 offen offset:{512*h + 32*e}")
    for h in range(2):
        for k in range(3):
            for e in range(2):
                p(f"buffer_load_dwordx4 {v(B+8+24*h+8*k+4*e,4)}, v{8+h}, s[{SRD_W}:{SRD_W+3}], s52 offen offset:{k*1792 + 64*e} sc1")

def emit_red_early(p, SRD_W, vflag):
    PR = 16
    nm = p.name
    def raw(txt):
        x = I(txt); x.kind = "salu"; x.writes = []; return x
    p(f"""
    v_readfirstlane_b32 s12, v{vflag}
    s_and_b32 s12, s12, 0xff
    s_mov_b32 s13, s12
    s_add_u32 s55, s51, {WS_PART}
    """)
    for j in range(8):
        p(f"s_bitcmp1_b32 s12, {j}")
        p(f"s_cbranch_scc0 L_re{j}{nm}")
        p(f"s_add_u32 s15, s55, {j*128*14*1024}")
        for h in range(2):
            p(raw(f"buffer_load_dwordx4 {v(PR+8*j+4*h,4)}, v{4+h}, s[{SRD_W}:{SRD_W+3}], s15 offen sc1"))
        p(f"L_re{j}{nm}:")

def emit_red(p, S_W, S_PB, SRD_W, ldsoff, idle=(), B=128, S_J=29):
    PR = 16
    A = 80
    X1 = 116
    p(f"""
    v_mov_b32 v10, 0
    s_lshl_b32 s52, s{S_PB}, 7
    s_add_u32 s52, s52, {WS_FLAG}
    """)
    def raw(txt):
        x = I(txt); x.kind = "salu"; x.writes = []; return x
    nm = p.name
    for d in range(16):
        p(f"v_mov_b32 v{A+d}, 0")
    p(f"""
    s_mov_b32 s56, 0x100000
    s_mov_b32 s54, 0
    s_lshl_b32 s53, 1, s{S_J}
    s_waitcnt vmcnt(1)
    s_cmp_eq_u32 s{S_W}, 0
    s_cbranch_scc1 L_rj{nm}
    s_waitcnt vmcnt(0)
    s_branch L_rj{nm}
    L_rl{nm}:
    buffer_load_dword v11, v10, s[{SRD_W}:{SRD_W+3}], s52 offen sc1
    s_waitcnt vmcnt(0)
    v_readfirstlane_b32 s53, v11
    s_andn2_b32 s53, s53, s12            ; new
    s_and_b32 s53, s53, 0xff
    s_cbranch_scc0 L_rn{nm}
    L_rj{nm}:
    """)
    for j in range(8):
        p(f"s_bitcmp1_b32 s53, {j}")
        p(f"s_cbranch_scc0 L_ri{j}{nm}")
        p(f"s_add_u32 s15, s55, {j*128*14*1024}")
        for h in range(2):
            p(raw(f"buffer_load_dwordx4 {v(PR+8*j+4*h,4)}, v{4+h}, s[{SRD_W}:{SRD_W+3}], s15 offen sc1"))
        p(f"L_ri{j}{nm}:")
    p(f"L_rn{nm}:")
    p("s_cmp_eq_u32 s13, 0")
    p(f"s_cbranch_scc1 L_ra{nm}")
    for j in range(8):
        p(f"s_bitcmp1_b32 s13, {j}")
        p(f"s_cbranch_scc0 L_rp{j}{nm}")
        for d in range(8):
            x = PR + 8*j + d
            t = 104 + 2 * (d % 4)
            p(f"v_lshlrev_b32 v{t}, 16, v{x}")
            p(f"v_and_b32 v{t+1}, 0xffff0000, v{x}")
            p(f"v_pk_add_f32 {v(A+2*d,2)}, {v(A+2*d,2)}, {v(t,2)}")
        p(f"L_rp{j}{nm}:")
    p(f"""
    L_ra{nm}:
    s_mov_b32 s13, s53
    s_or_b32 s12, s12, s53
    s_xor_b32 s15, s12, 0xff
    s_or_b32 s15, s15, s13
    s_cbranch_scc0 L_rd{nm}
    s_cmp_eq_u32 s12, 0xff
    s_cbranch_scc1 L_rk{nm}
    s_cmp_lg_u32 s54, 0
    s_cbranch_scc1 L_rk{nm}
    s_cmp_lg_u32 s53, 0
    s_cbranch_scc1 L_rk{nm}
    s_mov_b32 s54, 1
    """)
    for x in idle:
        y = I(x.text)
        if y.kind == "dma":
            p("s_nop 0")
            y = raw(x.text)
        p(y)
    p(f"""
    L_rk{nm}:
    s_sub_u32 s56, s56, 1
    s_cmp_lg_u32 s56, 0
    s_cbranch_scc1 L_rl{nm}
    L_rd{nm}:
    s_waitcnt vmcnt(0)
    """)
    stamp(p, 6)
    M = lambda d, k: B + 8 + 24*(d//4) + 8*k + 2*(d % 4)
    for d in range(8):
        t = 104 + 2 * (d % 4)
        p(f"v_lshlrev_b32 v{t}, 16, v{B+d}")
        p(f"v_and_b32 v{t+1}, 0xffff0000, v{B+d}")
        p(f"v_pk_fma_f32 {v(A+2*d,2)}, {v(A+2*d,2)}, {v(M(d,0),2)}, {v(t,2)}")
        p(f"v_cvt_pk_bf16_f32 v{X1+d}, v{A+2*d}, v{A+2*d+1}")
        p(f"v_lshlrev_b32 v{A+2*d}, 16, v{X1+d}")
        p(f"v_and_b32 v{A+2*d+1}, 0xffff0000, v{X1+d}")
    p(f"s_add_u32 s52, s51, {WS_X1}")
    for h in range(2):
        p(f"buffer_store_dwordx4 {v(X1+4*h,4)}, v{4+h}, s[{SRD_W}:{SRD_W+3}], s52 offen sc1")
    p(f"v_pk_add_f32 v[104:105], {v(A,2)}, {v(A+2,2)}")
    p(f"v_pk_mul_f32 v[106:107], {v(A,2)}, {v(A,2)}")
    for d in range(1, 8):
        if d >= 2:
            p(f"v_pk_add_f32 v[104:105], v[104:105], {v(A+2*d,2)}")
        p(f"v_pk_fma_f32 v[106:107], {v(A+2*d,2)}, {v(A+2*d,2)}, v[106:107]")
    p("v_add_f32 v104, v104, v105")
    p("v_add_f32 v105, v106, v107")
    lane_reduce_345(p, 104, 106)
    lane_reduce_345(p, 105, 107)
    p(f"""
    s_lshl_b32 s52, s{S_W}, 6
    v_lshlrev_b32 v12, 3, v1
    v_add_u32 v12, {ldsoff}, v12
    v_add_u32 v13, s52, v12
    ds_write_b64 v13, v[104:105]
    s_waitcnt lgkmcnt(0)
    s_barrier
    """)
    for w in range(4):
        p(f"ds_read_b64 {v(108+2*w,2)}, v12 offset:{64*w}")
    p(f"""
    v_pk_add_f32 v[108:109], v[108:109], v[110:111]
    v_pk_add_f32 v[112:113], v[112:113], v[114:115]
    v_pk_add_f32 v[104:105], v[108:109], v[112:113]
    v_mul_f32 v104, {f2u(1.0/448)}, v104
    v_mul_f32 v106, {f2u(1.0/448)}, v105
    v_fma_f32 v106, -v104, v104, v106
    v_max_f32 v106, 0, v106
    v_add_f32 v106, {f2u(1e-5)}, v106
    v_rsq_f32 v106, v106
    v_mul_f32 v104, -v104, v106
    """)
    for d in range(8):
        p(f"v_pk_fma_f32 {v(A+2*d,2)}, {v(A+2*d,2)}, v[106:107], v[104:105] op_sel_hi:[1,0,0]")
        p(f"v_pk_fma_f32 {v(A+2*d,2)}, {v(A+2*d,2)}, {v(M(d,2),2)}, {v(M(d,1),2)}")
        p(f"v_cvt_pk_bf16_f32 v{PR+d}, v{A+2*d}, v{A+2*d+1}")
    p(f"s_add_u32 s52, s51, {WS_H2}")
    for h in range(2):
        p(f"buffer_store_dwordx4 {v(PR+4*h,4)}, v{4+h}, s[{SRD_W}:{SRD_W+3}], s52 offen sc1", tag=("wr", ("H2", 0), "private"))
```

```python
MB = 1 << 20
WS_MOD   = 0
WS_STATS = 64 * 1024
WS_EP    = 32 * 1024
WS_MG    = 16 * 1024
WS_ST2   = 128 * 1024
WS_FLAG  = 112 * 1024
WS_XN    = 1 * MB
WS_PART  = 4 * MB
WS_X1    = 20 * MB
WS_H2    = WS_X1 + 1835008
WS_Z1    = 34 * MB
WS_ZZ    = 30 * MB
WS_U     = WS_H2 + 1835008
WS_STAMP = 38 * MB
WS_QTEST = 40 * MB
WS_OTEST = 40 * MB + 16 * MB
WS_USED  = 40 * MB
```

```python
import sys
sys.path.insert(0, "work")
from k_attn import *
from k_z import gelu_pairs, C1, C2
from k_prep import LOG2E, QSCALE, xreduce
from k_red import emit_red_early
NSTAMP = 16

def build_mega(opts):
    opts = opts or {}
    name = opts.get("name", "adaLN_cond__gqa_block_cached__mixer_gmlp__prompt_kernel")
    p = Prog(name)
    at = Attn(opts)
    LD = opts.get("ld", " sc1")
    thr = opts.get("thr", 0x5f800000)
    SRD_D = 92
    p(f"""
    s_cmp_ge_u32 s2, 256
    s_cbranch_scc1 L_end{name}
    s_load_dwordx4 s[52:55], s[0:1], 80
    s_load_dwordx2 s[50:51], s[0:1], 0
    s_load_dwordx8 s[4:11], s[0:1], 8
    s_load_dwordx4 s[56:59], s[0:1], 104
    v_lshrrev_b32 v1, 6, v0
    v_readfirstlane_b32 {s(S_W)}, v1
    s_and_b32 {s(S_J)}, s2, 7
    s_lshr_b32 {s(S_PB)}, s2, 3
    v_and_b32 v1, 63, v0
    v_lshlrev_b32 {v(V_LIN)}, 4, v1
    s_lshr_b32 {s(S_HD)}, {s(S_W)}, 1
    s_and_b32 s14, {s(S_W)}, 1
    s_lshl_b32 {s(S_QT)}, {s(S_PB)}, 2
    s_lshl_b32 s14, s14, 1
    s_add_u32 {s(S_QT)}, {s(S_QT)}, s14
    v_mov_b32 v2, 0x40000000
    v_cmp_gt_u32 vcc, 56, v1
    v_cndmask_b32 v19, v2, {v(V_LIN)}, vcc
    v_add_u32 v18, 144, v19
    v_add_u32 v17, 288, v19
    v_add_u32 v16, 432, v19
    s_lshl_b32 s14, {s(S_PB)}, 2
    s_add_u32 s14, s14, {s(S_W)}
    s_mul_i32 s14, s14, {16*896}            ; x soffset
    s_mul_i32 s15, {s(S_W)}, {SLOT}
    s_add_u32 s15, s15, {4*SLOT}
    s_waitcnt lgkmcnt(0)
    """)
    stamp(p, 0)
    ep = I(f"s_load_dwordx2 s[100:101], s[58:59], {WS_EP}"); ep.kind = "salu"
    p(ep)
    srd(p, SRD_W, 58, 59, WS_USED)
    srd(p, SRD_D, 56, 57, 256)
    srd(p, SRD_V, 54, 55, 448 * 5376)
    srd(p, SRD_O, 52, 53, 896)
    srd(p, SRD_K, 50, 51, 2048 * 896 + 432)
    p(f"""
    s_sub_u32 {s(SRD_K)}, {s(SRD_K)}, 432
    s_subb_u32 {s(SRD_K+1)}, {s(SRD_K+1)}, 0
    s_mov_b32 s31, 0
    v_and_b32 v127, 31, v0
    v_lshlrev_b32 v125, 3, v127
    s_mov_b32 s32, 0x40000000
    s_mov_b32 s33, 0x40000000
    """)
    MW = 72; CR = 100; MC = 20; MA = 36; MT = 44
    def raw(txt):
        x = I(txt); x.kind = "salu"; x.writes = []; return x
    p(f"""
    v_and_b32 v{MT}, 3, v0
    v_lshrrev_b32 v{MT+1}, 2, v0
    v_mul_u32_u24 v{MT+2}, 14, v{MT+1}
    v_mul_u32_u24 v{MT+3}, {7*5376}, v{MT+1}
    v_lshl_add_u32 v{MT+3}, v{MT}, 4, v{MT+3}
    s_lshl_b32 s12, s2, 6
    v_and_b32 v{MT+2}, -4, v{MT+2}
    s_cmp_ge_u32 s2, 28
    s_cbranch_scc1 L_mod1r{name}
    """)
    def wloads(f):
        for i in range(7):
            p(f(f"buffer_load_dwordx4 {v(MW+4*i,4)}, v{MT+3}, {s(SRD_V,4)}, s12 offen"))
            if i < 6:
                p(f"s_add_u32 s12, s12, 5376")
        p(f(f"buffer_load_dwordx4 {v(CR,4)}, v{MT+2}, {s(SRD_O,4)}, 0 offen"))
    wloads(raw)
    p(f"L_mod1r{name}:")
    XK = [(4, -1), (5, -1), (6, -1), (7, -1)]
    NX0 = opts.get("nx0", 16)
    def xdma(ms):
        for m in ms:
            if m % 4 == 0:
                p(f"s_add_u32 m0, s15, {m*1040}")
            p(f"buffer_load_dwordx4 v{16 + m % 4}, {s(SRD_K,4)}, s14 offen offset:{(m % 4)*1040} lds", tag=("dma", XK))
            if m % 4 == 3:
                p(f"s_add_u32 s14, s14, {4*896}")
    xdma(range(NX0))
    def modblock(urgent, MW=MW, CR=CR, MC=MC, MA=MA, MT=MT, pre=()):
        tg = ("u" if urgent else "n") + name
        st_ = opts.get("pst") and urgent
        if urgent:
            p("s_cmp_ge_u32 s2, 28")
        else:
            p("s_sub_u32 s12, s2, 28")
            p("s_cmp_ge_u32 s12, 56")
        p(f"s_cbranch_scc1 L_mod2r{tg}")
        p.extend(pre)
        p(f"s_mov_b32 s13, {f2u(-LOG2E)}")
        p(f"v_bfe_u32 v{MT+1}, v0, 2, 1")
        p(f"v_lshlrev_b32 v{MT+1}, 4, v{MT+1}")
        if st_: stamp(p, 5)
        if urgent:
            p(raw(f"s_waitcnt vmcnt({NX0})"))
        if st_: stamp(p, 6)
        for j in range(4):
            p(f"v_alignbit_b32 v{CR+j}, v{CR+min(j+1,3)}, v{CR+j}, v{MT+1}")
        for i in range(7):
            p(f"v_lshlrev_b32 v{MC+i}, 16, v{CR+i//2}" if i % 2 == 0 else f"v_and_b32 v{MC+i}, 0xffff0000, v{CR+i//2}")
        for i in range(7):
            p(f"v_mul_f32 v{MC+8+i}, s13, v{MC+i}")
        for i in range(7):
            p(f"v_exp_f32 v{MC+8+i}, v{MC+8+i}")
        for i in range(7):
            p(f"v_add_f32 v{MC+8+i}, 1.0, v{MC+8+i}")
        for i in range(7):
            p(f"v_rcp_f32 v{MC+8+i}, v{MC+8+i}")
        for i in range(7):
            p(f"v_mul_f32 v{MC+8+i}, v{MC+8+i}, v{MC+i}")
            p(f"v_cvt_pk_bf16_f32 v{MC+8+i}, v{MC+8+i}, v{MC+8+i}")
            p(f"v_lshlrev_b32 v{MT+8+2*i}, 16, v{MC+8+i}")
        for i in range(7):
            for d in range(4):
                w = MW + 4*i + d
                t = MC + 2 * d
                p(f"v_lshlrev_b32 v{t}, 16, v{w}")
                p(f"v_and_b32 v{t+1}, 0xffff0000, v{w}")
                if i == 0:
                    p(f"v_pk_mul_f32 {v(MA+2*d,2)}, {v(t,2)}, {v(MT+8,2)} op_sel_hi:[1,0]")
                else:
                    p(f"v_pk_fma_f32 {v(MA+2*d,2)}, {v(t,2)}, {v(MT+8+2*i,2)}, {v(MA+2*d,2)} op_sel_hi:[1,0,1]")
        for sh in (4, 8):
            for k in range(8):
                p(f"v_add_f32_dpp v{MA+k}, v{MA+k}, v{MA+k} row_ror:{sh} row_mask:0xf bank_mask:0xf")
        if st_: stamp(p, 7)
        p(f"""
        v_lshrrev_b32 v{MT+1}, 4, v0
        v_lshlrev_b32 v{MT+1}, 7, v{MT+1}
        v_and_b32 v{MT}, 3, v0
        v_lshl_add_u32 v{MT}, v{MT}, 5, v{MT+1}
        v_add_u32 v{MT}, {MODL + 4096}, v{MT}
        ds_write_b128 v{MT}, {v(MA,4)}
        ds_write_b128 v{MT}, {v(MA+4,4)} offset:16
        v_lshlrev_b32 v{MT+1}, 2, v0
        v_add_u32 v{MT+1}, {MODL + 4096}, v{MT+1}
        """)
        p(raw("s_waitcnt lgkmcnt(0)"))
        p(raw("s_barrier"))
        p(f"s_cmp_lg_u32 {s(S_W)}, 0")
        p(f"s_cbranch_scc1 L_mod2r{tg}")
        if st_: stamp(p, 8)
        for i in range(8):
            p(f"ds_read_b32 v{MW+i}, v{MT+1} offset:{256*i}")
        for st in (4, 2, 1):
            for i in range(st):
                p(f"v_add_f32 v{MW+i}, v{MW+i}, v{MW+i+st}")
        p(f"""
        v_mov_b32 v{MW+1}, v{MW}
        v_permlane32_swap_b32 v{MW}, v{MW+1}
        v_add_f32 v{MW}, v{MW}, v{MW+1}
        v_cvt_pk_bf16_f32 v{MW}, v{MW}, v{MW}
        v_lshlrev_b32 v{MW}, 16, v{MW}
        v_add_f32 v{MW+1}, 1.0, v{MW}
        v_cvt_pk_bf16_f32 v{MW+1}, v{MW+1}, v{MW+1}
        v_lshlrev_b32 v{MW+1}, 16, v{MW+1}
        s_sub_u32 s12, s2, {14 if urgent else 56}
        s_cmp_lt_u32 s12, 14
        s_cselect_b64 vcc, -1, 0
        v_cndmask_b32 v{MW}, v{MW}, v{MW+1}, vcc
        """)
        if urgent:
            p(f"""
            s_add_u32 s12, s100, 1
            s_add_u32 s13, s101, 1
            s_and_b32 s13, s13, 0xffff
            v_or_b32 v{MW}, s13, v{MW}
            v_mov_b32 v{MW+1}, s12
            s_lshl_b32 s33, s2, 8
            s_add_u32 s33, s33, {WS_MG}
            L_mod2r{tg}:
            buffer_store_dwordx2 {v(MW,2)}, v125, {s(SRD_W,4)}, s33 offen sc1
            """)
        else:
            p(f"""
            s_lshl_b32 s12, s2, 7
            v_and_b32 v{MT}, 31, v0
            v_lshlrev_b32 v{MT}, 2, v{MT}
            s_mov_b32 s31, 1
            """)
            p(raw(f"buffer_store_dword v{MW}, v{MT}, {s(SRD_W,4)}, s12 offen offset:{WS_MOD} sc1"))
            p(f"L_mod2r{tg}:")
    assert NX0 == 16
    V_MRD = 3
    p(f"s_mul_i32 {s(S_M0V)}, {s(S_W)}, 4160")
    p(f"""
    v_bfe_u32 v1, v0, 5, 1              ; hh
    v_and_b32 v2, 31, v0
    v_lshlrev_b32 {v(V_TMP)}, 1, v1
    v_xor_b32 v2, v2, {v(V_TMP)}        ; chunk
    v_lshlrev_b32 v1, 3, v1
    v_add_u32 v1, {s(S_W)}, v1          ; 8hh + w
    v_lshlrev_b32 v1, 13, v1
    v_lshl_add_u32 {v(V_WDMA)}, v2, 4, v1
    """)
    for jj in range(1, 4):
        p(f"v_add_u32 {v(V_WDMA+jj)}, {(16*(jj % 2) + 4*(jj//2))*8192 - jj*1024}, {v(V_WDMA)}")
    def emit_wfill(which, st):
        for hf in range(2):
            pre, d = at.wfill(which, st, hf)
            p.extend(pre); p.extend(d)
    p(f"""
    s_mul_i32 s52, {s(S_HD)}, 896
    s_add_u32 s52, s52, {MODL}
    v_bfe_u32 v1, v0, 2, 2
    v_mul_u32_u24 v1, 4160, v1
    v_and_b32 v2, 3, v0
    v_lshl_add_u32 v1, v2, 3, v1
    v_bfe_u32 v2, v0, 4, 2
    v_lshl_add_u32 v1, v2, 9, v1
    v_lshlrev_b32 v{V_MRD}, 5, v2
    v_add_u32 v{V_MRD}, s52, v{V_MRD}
    v_and_b32 v120, 15, v0
    v_mul_u32_u24 v120, 1040, v120
    v_lshl_add_u32 v120, v2, 4, v120
    s_and_b32 s14, {s(S_W)}, 1
    s_mul_i32 s14, s14, {2*SLOT}
    s_mul_i32 s15, {s(S_HD)}, 448
    s_add_u32 s14, s14, s15
    s_add_u32 s14, s14, {4*SLOT}
    v_add_u32 v120, s14, v120
    v_bfe_u32 v2, v0, 4, 1
    v_lshl_add_u32 {v(V_TMP)}, v2, 5, v1
    s_mul_i32 s14, {s(S_HD)}, {SLOT}
    v_add_u32 {v(V_WRD)}, s14, {v(V_TMP)}
    v_xor_b32 {v(V_WRD+1)}, 32, {v(V_WRD)}
    v_add_u32 {v(V_WRD+2)}, {4*SLOT}, {v(V_WRD)}
    v_add_u32 {v(V_WRD+3)}, {4*SLOT}, {v(V_WRD+1)}
    s_lshl_b32 s14, {s(S_W)}, 12
    s_add_u32 s14, s14, {8*SLOT}
    v_add_u32 {v(V_XW)}, s14, {v(V_LIN)}
    v_xor_b32 {v(V_XR)}, 0x2000, {v(V_XW)}
    """)
    modblock(True)
    if opts.get("pst"): stamp(p, 9)
    xdma(range(NX0, 16))
    srd(p, SRD_Q, 8, 9, 448 * 8192)
    V_MRD = 3
    p(f"""
    s_mul_i32 {s(S_M0V)}, {s(S_W)}, 4160
    s_lshl_b32 {s(S_M0K)}, {s(S_W)}, 12
    s_lshl_b32 {s(S_WBASE)}, {s(S_J)}, 10
    v_lshrrev_b32 v1, 3, v0
    v_min_u32 v1, 13, v1
    v_lshlrev_b32 v1, 13, v1
    v_and_b32 v2, 7, v0
    v_lshl_add_u32 v1, v2, 7, v1
    s_mul_i32 s53, {s(S_PB)}, {14*8192}
    s_add_u32 s53, s53, {s(S_WBASE)}
    buffer_load_dword v{V_O+127}, v1, {s(SRD_Q,4)}, s53 offen
    """)
    code_prefetch(p, name, f"L_end{name}", 22, 1, V_O + 126)
    if opts.get("wmt", True):
        p(f"""
        v_subrev_u32 v1, 192, v0
        v_lshrrev_b32 v2, 5, v1
        v_mul_u32_u24 v2, 5376, v2
        v_and_b32 v1, 31, v1
        v_min_u32 v1, 27, v1
        v_lshl_add_u32 v1, v1, 7, v2
        v_mov_b32 v2, 0x40000000
        v_cmp_lt_u32 vcc, 191, v0
        v_cndmask_b32 v1, v2, v1, vcc
        s_sub_u32 s53, s2, 28
        s_min_u32 s53, s53, 0x1000
        s_mul_i32 s53, s53, {2*5376}
        buffer_load_dword v{V_O+125}, v1, {s(SRD_V,4)}, s53 offen offset:1792
        """)
    NE = opts.get("nearly", 1)
    for st in range(NE):
        emit_wfill("Q", st)
    p(I("WAITTAG", tag=XK))
    p("s_barrier")
    for ks in range(7):
        for qt in range(2):
            p(f"ds_read_b128 {v(V_H+8*ks+4*qt,4)}, v120 offset:{qt*SLOT + 64*ks}", tag=("rd", XK))
    if NE < 1: emit_wfill("Q", 0)
    F = V_O
    SA = 112
    for k in range(56):
        qt = (k // 4) % 2
        p(f"v_lshlrev_b32 v{F+2*k}, 16, v{V_H+k}")
        p(f"v_and_b32 v{F+2*k+1}, 0xffff0000, v{V_H+k}")
        if k in (0, 4):
            p(f"v_pk_mul_f32 {v(SA+4+2*qt,2)}, {v(F+2*k,2)}, {v(F+2*k,2)}")
        else:
            p(f"v_pk_add_f32 {v(SA+2*qt,2)}, {v(F+2*k-2,2) if k in (1, 5) else v(SA+2*qt,2)}, {v(F+2*k,2)}")
            p(f"v_pk_fma_f32 {v(SA+4+2*qt,2)}, {v(F+2*k,2)}, {v(F+2*k,2)}, {v(SA+4+2*qt,2)}")
    for k in range(4):
        p(f"v_add_f32 v{SA+k}, v{SA+2*k}, v{SA+2*k+1}")
    for k in range(4):
        xreduce(p, SA + k, 121 + k, "v_add_f32")
    p(f"ds_write_b128 {v(V_XW)}, {v(SA,4)}", tag=("wr", (8, -1)))
    p("s_waitcnt lgkmcnt(0)")
    p("s_barrier")
    p(f"ds_read_b128 {v(SA+4,4)}, {v(V_XR)}", tag=("rd", (8, -1)))
    if NE < 2: emit_wfill("Q", 1)
    for qt in range(2):
        m_, r_ = 120 + 4*qt, 122 + 4*qt
        p(f"v_add_f32 v{SA+qt}, v{SA+qt}, v{SA+4+qt}")
        p(f"v_add_f32 v{SA+2+qt}, v{SA+2+qt}, v{SA+6+qt}")
        p(f"v_mul_f32 v{m_}, {f2u(1.0/448)}, v{SA+qt}")
        p(f"v_mul_f32 v{r_}, {f2u(1.0/448)}, v{SA+2+qt}")
        p(f"v_fma_f32 v{r_}, -v{m_}, v{m_}, v{r_}")
        p(f"v_max_f32 v{r_}, 0, v{r_}")
        p(f"v_add_f32 v{r_}, {f2u(1e-5)}, v{r_}")
        p(f"v_rsq_f32 v{r_}, v{r_}")
        p(f"v_mul_f32 v{m_}, -v{m_}, v{r_}")
    for k in range(56):
        qt = (k // 4) % 2
        p(f"v_pk_fma_f32 {v(F+2*k,2)}, {v(F+2*k,2)}, {v(122+4*qt,2)}, {v(120+4*qt,2)} op_sel_hi:[1,0,0]")
    NPRE = opts.get("npre", 3)
    for st in range(2, NPRE):
        emit_wfill("Q", st)
    p(f"""
    v_min_u32 v1, {55*16}, {v(V_LIN)}
    s_mul_i32 s14, {s(S_W)}, 1792
    s_add_u32 s14, s14, {WS_MG}
    s_add_u32 s12, s100, 1
    s_add_u32 s13, s101, 1
    s_and_b32 s13, s13, 0xffff
    s_mul_i32 s53, {s(S_W)}, 896
    s_add_u32 s53, s53, {MODL}
    v_lshrrev_b32 v2, 1, v1
    v_add_u32 v2, s53, v2
    s_mov_b32 s56, 0x100000
    """)
    if opts.get("pst"): stamp(p, 1)
    p(f"""
    L_mp{name}:
    buffer_load_dwordx4 v[120:123], v1, {s(SRD_W,4)}, s14 offen sc1
    buffer_load_dwordx4 v[124:127], v1, {s(SRD_W,4)}, s14 offen offset:896 sc1
    s_waitcnt vmcnt(0)
    v_xor_b32 v112, s13, v120
    v_xor_b32 v113, s13, v122
    v_xor_b32 v114, s13, v124
    v_xor_b32 v115, s13, v126
    v_or3_b32 v116, v112, v113, v114
    v_or_b32 v116, v116, v115
    v_and_b32 v116, 0xffff, v116
    v_xor_b32 v117, s12, v121
    v_xor_b32 v118, s12, v123
    v_or3_b32 v116, v116, v117, v118
    v_xor_b32 v117, s12, v125
    v_xor_b32 v118, s12, v127
    v_or3_b32 v116, v116, v117, v118
    v_cmp_ne_u32 vcc, 0, v116
    s_cbranch_vccz L_mq{name}
    s_sleep {opts.get("msleep", 2)}
    s_sub_u32 s56, s56, 1
    s_cmp_lg_u32 s56, 0
    s_cbranch_scc1 L_mp{name}
    L_mq{name}:
    """)
    if opts.get("pst"): stamp(p, 2)
    for k in range(4):
        p(f"v_mul_f32 v{112+k}, {f2u(QSCALE)}, v{112+k}")
    mt = ("wr", ("M", 0))
    p("ds_write_b64 v2, v[112:113]", tag=mt)
    p("ds_write_b64 v2, v[114:115] offset:448", tag=mt)
    for st in range(NPRE, 3):
        emit_wfill("Q", st)
    MB = 72
    def modreads(ks):
        M = MB + 16 * (ks % 3)
        rt = ("rd", ("M", 0))
        return [I(f"ds_read_b128 {v(M + 8*k + 4*h, 4)}, v{V_MRD} offset:{1792*(1-k) + 128*ks + 16*h}", tag=rt)
                for k in range(2) for h in range(2)]
    NUP = 7
    p(I("WAITTAG", tag=[("M", 0)]))
    p("s_barrier")
    p.extend(modreads(0)); p.extend(modreads(1)); p.extend(modreads(2))
    for ks in range(7):
        M = MB + 16 * (ks % 3)
        for k in range(8*ks, 8*ks + 8):
            d = k % 4
            p(f"v_pk_fma_f32 {v(F+2*k,2)}, {v(F+2*k,2)}, {v(M+2*d,2)}, {v(M+8+2*d,2)}")
            p(f"v_cvt_pk_bf16_f32 v{V_H+k}, v{F+2*k}, v{F+2*k+1}")
        if ks + 3 < 7:
            p.extend(modreads(ks + 3))
    stamp(p, 3 if opts.get("pst") else 1)
    srd(p, SRD_O, 10, 11, 4096 * 896)
    p(f"""
    s_lshl_b32 s14, {s(S_J)}, 20
    s_add_u32 {s(SRD_K)}, s4, s14
    s_addc_u32 {s(SRD_K+1)}, s5, 0
    s_mov_b32 {s(SRD_K+2)}, 0x100000
    s_mov_b32 {s(SRD_K+3)}, 0x20000
    s_add_u32 {s(SRD_V)}, s6, s14
    s_addc_u32 {s(SRD_V+1)}, s7, 0
    s_mov_b32 {s(SRD_V+2)}, 0x100000
    s_mov_b32 {s(SRD_V+3)}, 0x20000
    s_mov_b32 {s(S_KOFF)}, 0
    s_mov_b32 {s(S_VOFF)}, 0
    s_mov_b32 {s(S_THR)}, {thr}
    s_lshl_b32 s15, {s(S_W)}, 3
    """)
    setup = f"""
    v_bfe_u32 v1, v0, 5, 1
    v_and_b32 v2, 31, v0
    v_add_u32 v16, s15, v1
    v_lshlrev_b32 v17, 9, v16
    v_and_b32 v16, 15, v16
    v_xor_b32 v16, v16, v2
    v_lshl_add_u32 {v(V_KDMA)}, v16, 4, v17
    v_xor_b32 {v(V_KDMA+1)}, 32, {v(V_KDMA)}
    v_xor_b32 {v(V_KDMA+2)}, 64, {v(V_KDMA)}
    v_xor_b32 {v(V_KDMA+3)}, 96, {v(V_KDMA)}
    v_lshlrev_b32 v16, 2, v1
    v_add_u32 v16, {s(S_W)}, v16
    v_lshlrev_b32 v16, 9, v16
    v_lshlrev_b32 v17, 1, v1
    v_xor_b32 v17, v17, v2
    v_lshl_add_u32 {v(V_VDMA)}, v17, 4, v16
    v_add_u32 {v(V_VDMA+1)}, 3072, {v(V_VDMA)}
    v_add_u32 {v(V_VDMA+2)}, 6144, {v(V_VDMA)}
    v_add_u32 {v(V_VDMA+3)}, 9216, {v(V_VDMA)}
    v_and_b32 v16, 15, v0
    v_bfe_u32 v17, v0, 4, 2
    v_xor_b32 v17, v17, v16
    v_lshlrev_b32 v16, 9, v16
    v_add_u32 v16, {4*SLOT}, v16
    v_lshl_add_u32 {v(V_KRD)}, v17, 4, v16
    v_xor_b32 {v(V_KRD+1)}, 64, {v(V_KRD)}
    v_xor_b32 {v(V_KRD+2)}, 0x80, {v(V_KRD)}
    v_xor_b32 {v(V_KRD+3)}, 0xc0, {v(V_KRD)}
    v_mov_b32 {v(V_VRD)}, {v(V_TMP)}
    v_xor_b32 {v(V_VRD+1)}, 32, {v(V_TMP)}
    v_mov_b32 {v(V_L)}, 0
    v_mov_b32 {v(V_L+1)}, 0
    """
    setup = [I(x.strip()) for x in setup.strip().split("\n")]
    WRA = 21; WRB = 88
    p(f"""
    s_movk_i32 s31, 0x493
    s_and_b32 s12, {s(S_W)}, 1
    s_mul_i32 s13, {s(S_W)}, 7
    """)
    setup.append(I("v_and_b32 v1, 63, v0"))
    for m in range(7):
        setup += [I(f"v_add_u32 v16, {64*m}, v1"), I("v_mul_u32_u24 v16, s31, v16"), I("v_bfe_u32 v16, v16, 17, 2"),
                  I("v_lshlrev_b32 v16, 5, v16"), I(f"v_xor_b32 v{at.WDR[m]}, v16, {v(V_LIN)}")]
    setup += [I("v_lshrrev_b32 v16, 2, v1"), I("v_mul_u32_u24 v16, 896, v16"), I("v_and_b32 v17, 3, v0"),
              I("v_lshl_add_u32 v16, v17, 3, v16"), I("v_bfe_u32 v17, v0, 3, 2")]
    for mt in range(7):
        if mt < 6:
            p(f"s_add_u32 s{52+mt}, s13, s12")
            p(f"s_add_u32 s{52+mt}, s{52+mt}, {mt}")
        else:
            p(f"s_mul_i32 s58, s12, 6")
            p(f"s_sub_u32 s58, s13, s58")
            p(f"s_add_u32 s58, s58, 6")
        setup += [I(f"v_xor_b32 v18, s{52+mt}, v17"), I(f"v_lshl_add_u32 v{WRB+mt}, v18, 5, v16"),
                  I(f"v_add_u32 v{WRA+mt}, {4*SLOT}, v{WRB+mt}")]
    assert (4 * SLOT) % 256 == 0
    def q_mfma(i, t, qt, fr):
        D = v(V_O + 8*t + 4*qt, 4)
        Bop = v(V_H + 8*i + 4*qt, 4) if i < 7 else a(A_HP + 8*(i-7) + 4*qt, 4)
        return f"v_mfma_f32_16x16x32_bf16 {D}, {fr}, {Bop}, {D if i else 0}"
    def q_fills(i):
        st = i + 3
        if i == 0 and NPRE == 4: return []
        if st < 14:
            return [at.wfill("Q", st, hf) + ([],) for hf in range(2)]
        if i == 11: return [at.kvfill("K", 0), at.kvfill("K", 1)]
        if i == 12: return [at.kvfill("K", 2)]
        return [at.kvfill("V", 0), at.kvfill("V", 1, range(at.nafter))]
    def q_bar(i):
        ks = at.wkeys("Q", i + 1) if i < 13 else [at.key("K", 0)]
        i -= 1
        if 0 <= i < 8:
            ks = ks + [(8, i // 2)] if i % 2 == 0 else ks + [("rd", 8, i // 2)]
        return ks
    def q_valu(i):
        out = []
        if i in (8, 9, 10):
            n = 33
            out += setup[(i-8)*n//3:(i-7)*n//3]
        if i in (11, 12, 13):
            n = len(setup) - 33
            out += setup[33+(i-11)*n//3:33+(i-10)*n//3]
        return out
    def q_xds(i):
        out = []
        i -= 1
        if 0 <= i < 8:
            rho = i // 2
            for k in range(4):
                u, qt = 2*rho + k // 2, k % 2
                if u >= 7: continue
                if i % 2 == 0:
                    out.append(I(f"ds_write_b128 {v(V_XW)}, {v(V_H + 8*u + 4*qt, 4)} offset:{1024*k}", tag=("wr", (8, rho))))
                else:
                    out.append(I(f"ds_read_b128 {a(A_HP + 8*u + 4*qt, 4)}, {v(V_XR)} offset:{1024*k}", tag=("rd", (8, rho))))
        return out
    at.gemm_phase(p, "Q", 14, 16, q_mfma, q_fills, q_bar, q_valu, q_xds)
    p("s_load_dwordx4 s[4:7], s[0:1], 48")
    p("s_load_dwordx2 s[8:9], s[0:1], 72")
    p("s_load_dwordx2 s[10:11], s[0:1], 0")
    p("s_load_dwordx2 s[54:55], s[0:1], 80")
    p("s_load_dwordx2 s[56:57], s[0:1], 88")
    p("s_waitcnt lgkmcnt(0)")
    srd(p, SRD_Q, 4, 5, 448 * 3584)
    for g in range(at.gB + 1, 64):
        for (f, e, nx) in at.ds.get(g, []):
            p(at.kread(lambda it: 0, 0, f))
    p(f"""
    s_mul_i32 s53, {s(S_J)}, {512*896}
    s_mul_i32 s59, {s(S_W)}, 7168
    s_add_u32 {s(S_WBASE)}, s53, s59
    """)
    assert (8 * SLOT) & 0x3fff == (8 * SLOT) % 16384 and ((8 * SLOT) % 16384) + 4096 <= 8192
    AW = 184
    p(f"""
    s_mov_b32 s31, 0
    s_sub_u32 s12, s2, 28
    s_cmp_ge_u32 s12, 56
    s_cbranch_scc1 L_nl{name}
    v_and_b32 v1, 3, v0
    v_lshrrev_b32 v2, 2, v0
    v_mul_u32_u24 v3, 14, v2
    v_mul_u32_u24 v2, {7*5376}, v2
    v_lshl_add_u32 v2, v1, 4, v2
    s_lshl_b32 s12, s2, 6
    v_add_u32 v2, s12, v2
    v_and_b32 v3, -4, v3
    s_sub_u32 s13, s2, 40
    s_lshl_b32 s13, s13, 12
    s_add_u32 s13, s13, {WS_FLAG}
    v_lshlrev_b32 v1, 4, v0
    v_mov_b32 v4, 0
    v_mov_b32 v5, 0
    v_mov_b32 v6, 0
    v_mov_b32 v7, 0
    s_sub_u32 s12, s2, 40
    s_cmp_ge_u32 s12, 36
    s_cselect_b32 s13, 0x40000000, s13
    """)
    p(raw(f"buffer_store_dwordx4 v[4:7], v1, {s(SRD_W,4)}, s13 offen sc1"))
    for i in range(7):
        x = raw(f"global_load_dwordx4 {a(AW+4*i,4)}, v2, s[56:57]"); x.reads += regs_of(a(AW+4*i,4)); p(x)
        if i < 6:
            p("v_add_u32 v2, 5376, v2")
    x = raw(f"global_load_dwordx4 {a(AW+28,4)}, v3, s[54:55]"); x.reads += regs_of(a(AW+28,4)); p(x)
    p(f"L_nl{name}:")
    for sx in range(8):
        for qt in range(2):
            X = V_O + 16*sx + 4*qt
            Y = X + 8
            p(f"v_cvt_pk_bf16_f32 v{X}, v{X}, v{X+1}")
            p(f"v_cvt_pk_bf16_f32 v{X+1}, v{X+2}, v{X+3}")
            p(f"v_cvt_pk_bf16_f32 v{Y}, v{Y}, v{Y+1}")
            p(f"v_cvt_pk_bf16_f32 v{Y+1}, v{Y+2}, v{Y+3}")
        for qt in range(2):
            X = V_O + 16*sx + 4*qt
            Y = X + 8
            p(f"v_permlane32_swap_b32 v{X}, v{Y}")
            p(f"v_permlane32_swap_b32 v{X+1}, v{Y+1}")
        for qt in range(2):
            X = V_O + 16*sx + 4*qt
            Y = X + 8
            p(f"v_permlane16_swap_b32 v{X}, v{Y}")
            p(f"v_permlane16_swap_b32 v{X+1}, v{Y+1}")
        for qt in range(2):
            X = V_O + 16*sx + 4*qt
            Y = X + 8
            for k, r in enumerate((X, X+1, Y, Y+1)):
                p(f"v_accvgpr_write_b32 a{A_Q + 8*sx + 4*qt + k}, v{r}")
    stamp(p, 4 if opts.get("pst") else 2)
    lid = [opts.get("lid0", 0)]
    import k_prep
    son = k_prep.STAMP["on"]
    if opts.get("pst"): k_prep.STAMP["on"] = False
    def B(c, fn, aval=None, **kw):
        at.body(p, c, fn, aval=aval, lid=lid[0], **kw)
        if aval != -1:
            at.fallback(p, c % 2, lid[0], aval != 63)
        lid[0] += 1
    B(3, lambda it: -1, aval=-1)
    p("s_waitcnt lgkmcnt(0)")
    modblock(False, MW=128, CR=156, MC=160, MA=176, MT=184,
             pre=[raw("s_waitcnt vmcnt(8)")] + [I(f"v_accvgpr_read_b32 v{128+k}, a{AW+k}") for k in range(32)])
    if opts.get("touch", True):
        p(f"""
        v_min_u32 v1, {223 if opts.get("t64", False) else 111}, v0
        v_lshlrev_b32 v1, {6 if opts.get("t64", False) else 7}, v1
        s_mul_i32 s54, {s(S_PB)}, {112*128}
        s_add_u32 s53, s53, s54
        buffer_load_dword v2, v1, {s(SRD_O,4)}, s53 offen
        """)
    exv = None
    if opts.get("warm", True):
        p(f"""
        v_and_b32 v1, 63, v0
        s_lshl_b32 s14, {s(S_J)}, 5
        s_add_u32 s14, s14, {s(S_PB)}
        s_lshl_b32 s14, s14, 15
        s_min_u32 s14, s14, {2048*4096 - 35840}
        s_mul_i32 s15, {s(S_W)}, 640
        s_add_u32 s14, s14, s15
        v_cmp_gt_u32 vcc, 5, v1
        v_cndmask_b32 v3, 0, v1, vcc
        v_lshl_add_u32 v3, v3, 7, s14
        v_mov_b32 v16, s6
        v_mov_b32 v17, s7
        v_mov_b32 v18, 2560
        v_mov_b32 v19, 0
        s_mul_i32 s14, {s(S_PB)}, {14*3584}
        s_mul_i32 s15, {s(S_HD)}, 1792
        s_add_u32 s14, s14, s15
        s_and_b32 s15, {s(S_J)}, 1
        s_mul_i32 s15, s15, 896
        s_add_u32 s14, s14, s15
        s_and_b32 s15, {s(S_W)}, 1
        s_mul_i32 s15, s15, 384
        s_add_u32 s14, s14, s15
        s_mov_b64 exec, 0xf00
        v_and_b32 v3, 3, v1
        v_lshl_add_u32 v3, v3, 7, s14
        v_mov_b32 v16, s4
        v_mov_b32 v17, s5
        v_mov_b32 v18, 3584
        s_mov_b64 exec, -1
        s_mul_i32 s14, s2, {25*128}
        s_min_u32 s14, s14, {896*896 - 28*128}
        s_and_b32 s15, {s(S_W)}, 1
        s_lshl_b32 s15, s15, 7
        s_add_u32 s14, s14, s15
        v_writelane_b32 v3, s14, 6
        v_writelane_b32 v16, s8, 6
        v_writelane_b32 v17, s9, 6
        s_movk_i32 s14, 0x100
        v_writelane_b32 v18, s14, 6
        v_add_co_u32 v16, vcc, v16, v3
        v_addc_co_u32 v17, vcc, 0, v17, vcc
        """)
        exv = [(at.gB, I("global_load_dword v20, v[16:17], off"))]
        exv2 = [(at.gJ, I("v_lshl_add_u64 v[16:17], v[16:17], 0, v[18:19]"))]
    B(0, lambda it: 0, aval=0, extra_scalar=[(60, I(f"s_mov_b32 {s(S_CNT)}, 14"))])
    p(f"""
    s_cmp_eq_u32 s31, 0
    s_cbranch_scc1 L_na{name}
    v_mov_b32 v1, 1
    v_mov_b32 v3, 0
    """)
    p(raw("s_waitcnt vmcnt(8)"))
    p("s_mov_b64 exec, 1")
    p(raw(f"buffer_atomic_add v1, v3, {s(SRD_D,4)}, 0 offen offset:4 sc1"))
    p("s_mov_b64 exec, -1")
    p(f"L_na{name}:")
    p.begin_loop(14)
    p(f"L_loop{name}:")
    for c in range(1, 5):
        ex = [(60, I(f"s_sub_u32 {s(S_CNT)}, {s(S_CNT)}, 1"))] if c == 2 else None
        B(c % 4, (lambda c: lambda it: 4*it + c)(c), extra_scalar=ex,
          extra_valu=(exv if c == 1 else exv2 if c == 3 else None) if exv else None)
    p(f"s_cmp_lg_u32 {s(S_CNT)}, 0")
    p(f"s_cbranch_scc1 L_loop{name}")
    p.end_loop()
    ZD = 96
    ZT = 103
    zops = []
    for m in range(7):
        zops += [I(f"v_add_u32 v{ZT}, {64*m}, v1"), I(f"v_mul_u32_u24 v{ZT+1}, s31, v{ZT}"), I(f"v_lshrrev_b32 v{ZT+1}, 16, v{ZT+1}"),
                 I(f"v_mul_u32_u24 v{ZT+2}, 14, v{ZT+1}"), I(f"v_sub_u32 v{ZT}, v{ZT}, v{ZT+2}"),
                 I(f"v_add_u32 v{ZT}, s57, v{ZT}"), I(f"v_subrev_u32 v{ZT+2}, 14, v{ZT}"), I(f"v_min_u32 v{ZT}, v{ZT}, v{ZT+2}"),
                 I(f"v_mul_u32_u24 v{ZT+1}, 3584, v{ZT+1}"), I(f"v_lshl_add_u32 v{ZD+m}, v{ZT}, 4, v{ZT+1}")]
        if m % 4:
            zops.append(I(f"v_subrev_u32 v{ZD+m}, {(m % 4)*1024}, v{ZD+m}"))
    ZBASE = [[2 * SLOT, 3 * 2 * SLOT, 0, 8 * SLOT], [2 * 2 * SLOT, 2 * SLOT, 3 * 2 * SLOT, 8 * SLOT]]
    ZKEYS = [[[(2, 300), (3, 300)], [(6, 300), (7, 300)], [(0, 300), (1, 300)], [(8, 300)]],
             [[(4, 310), (5, 310)], [(2, 310), (3, 310)], [(6, 310), (7, 310)], [(8, 310)]]]
    def zfill(rnd, z1=0):
        gs = []
        so = 34 if z1 else 37
        for hf in range(2):
            pre = [I(f"s_add_u32 m0, s36, {ZBASE[z1][rnd] + hf*4096}")]
            d = [I(f"buffer_load_dwordx4 v{ZD+m}, {s(SRD_Q,4)}, s{so} offen offset:{(m % 4)*1024} lds", tag=("dma", ZKEYS[z1][rnd]))
                 for m in range(4*hf, min(7, 4*hf+4))]
            post = [I(f"s_add_u32 s{so}, s{so}, {4*32*3584}")] if hf else []
            gs.append((pre, d, post))
        return gs
    def flat(gs):
        return [x for g in gs for lst in g for x in lst]
    p(f"""
    v_mov_b32 v8, 4
    buffer_load_dword v9, v8, {s(SRD_D,4)}, 0 offen sc1
    s_movk_i32 s31, 0x124a
    s_and_b32 s57, {s(S_PB)}, 1
    s_lshl_b32 s57, s57, 1
    v_and_b32 v1, 63, v0
    """)
    for av in range(57, 64):
        B(av % 4, (lambda av: lambda it: av)(av), aval=av,
          extra_valu=[(1 + (k * 30) // len(zops), x) for k, x in enumerate(zops)] if av == 63 else None)
    if not opts.get("pst"): stamp(p, 3)
    p(f"""
    v_cmp_gt_u32 vcc, 56, v9
    s_cbranch_vccnz L_mslow{name}
    L_mok{name}:
    """)
    p.begin_side()
    p(f"L_mslow{name}:")
    p("s_mov_b32 s14, 0")
    poll(p, SRD_D, 14, 8, 9, "m2" + name, 56, 56, sleep=4)
    p(f"s_branch L_mok{name}")
    p.end_side()
    for qt in range(2):
        at.xreduce(p, V_L + qt, "v_add_f32")
        p(f"v_rcp_f32 v{2+qt}, {v(V_L+qt)}")
    X1B = 28672; X2B = 8 * SLOT
    def xaddr(ks, q):
        return X1B + (4*ks + q) * 1024 if ks < 9 else X2B + (4*(ks-9) + q) * 1024
    XKEY = [(2, 250), (3, 250), (8, 250), ("T", 250)]
    p(f"""
    s_and_b32 s14, {s(S_W)}, 1
    s_lshl_b32 s14, s14, 11
    s_mul_i32 s15, {s(S_HD)}, 32768
    s_add_u32 s15, s15, s14
    s_add_u32 s15, s15, {X1B}
    v_add_u32 v4, s15, {v(V_LIN)}
    s_mul_i32 s15, {s(S_HD)}, {X2B - X1B - 4096}
    s_add_u32 s15, s15, s14
    s_add_u32 s15, s15, {X1B}
    v_add_u32 v5, s15, {v(V_LIN)}
    v_add_u32 v6, {X1B}, {v(V_LIN)}
    v_add_u32 v7, {X2B}, {v(V_LIN)}
    s_lshl_b32 s14, {s(S_PB)}, 7
    s_add_u32 s14, s14, {WS_FLAG}
    v_mov_b32 v13, s14
    s_barrier
    """)
    for u in range(8):
        for qt in range(2):
            X = V_O + 16*u + 4*qt
            Y = X + 8
            sel = "op_sel_hi:[1,0]" if qt == 0 else "op_sel:[0,1] op_sel_hi:[1,1]"
            for r in (X, X+2, Y, Y+2):
                p(f"v_pk_mul_f32 {v(r,2)}, {v(r,2)}, v[2:3] {sel}")
            p(f"v_cvt_pk_bf16_f32 v{X}, v{X}, v{X+1}")
            p(f"v_cvt_pk_bf16_f32 v{X+1}, v{X+2}, v{X+3}")
            p(f"v_cvt_pk_bf16_f32 v{X+2}, v{Y}, v{Y+1}")
            p(f"v_cvt_pk_bf16_f32 v{X+3}, v{Y+2}, v{Y+3}")
            p(f"ds_write_b128 v{4 if u == 0 else 5}, {v(X,4)} offset:{4096*u + 1024*qt}", tag=("wr", XKEY))
    ACC = V_O
    p(f"""
    s_and_b32 s15, {s(S_J)}, 1
    s_lshl_b32 s15, s15, 2
    s_and_b32 s32, {s(S_PB)}, 3
    s_add_u32 s32, s32, s15              ; fb
    s_lshr_b32 s15, {s(S_J)}, 1
    s_lshl_b32 s15, s15, 3
    s_lshr_b32 s33, {s(S_PB)}, 2
    s_add_u32 s33, s33, s15              ; tb
    s_mul_i32 s34, s32, 224
    s_mul_i32 s36, {s(S_W)}, {32*3584}
    s_add_u32 s34, s34, s36
    s_add_u32 s37, s34, 1792
    s_mul_i32 s36, {s(S_W)}, 7168
    """)
    A_OB = 0
    NRW = 8
    def wrd(st, mt):
        pr = at.OPAIR[st % 3]
        reg, off = (WRB + mt, 0) if pr == 0 else (WRA + mt, (pr - 2) * 2 * SLOT)
        f = st * 7 + mt
        return [I(f"ds_read_b64_tr_b16 {a(A_F + 4*(f % NRW) + 2*e, 2)}, v{reg} offset:{off + e*14336}", tag=("rd", at.okeys(st))) for e in range(2)]
    def brd(st):
        ky = [(2, 250), (3, 250), ("T", 250)] if st < 9 else [(8, 250)]
        return [I(f"ds_read_b128 {a(A_OB + 16*(st % 2) + 4*q, 4)}, v{6 if st < 9 else 7} offset:{xaddr(st, q) - (X1B if st < 9 else X2B)}",
                  tag=("rd", ky)) for q in range(4)]
    LF = opts.get("lf", 2)
    for f in range(LF):
        p.extend(wrd(0, f))
    p("s_waitcnt lgkmcnt(0)")
    p("s_barrier")
    if opts.get("ost"): stamp(p, 4)
    p.extend(brd(0))
    G = 28
    gb = G - 4 * LF - 1
    for st in range(16):
        kind = ["m"] * G
        SC = [[] for _ in range(G + 1)]
        VE = [[] for _ in range(G)]
        if st < 15:
            kind[gb] = "B"
            VE[gb] = [I("WAITTAG", tag=at.okeys(st + 1)), I("s_barrier")]
        if 0 < st < 15:
            kind[0] = "B"
            VE[0] = [I("s_barrier")]
        if st + 2 < 16:
            new = [at.ofill(st + 2, hf) + ([],) for hf in range(2)]
        else:
            new = zfill(st - 14)
        newl = []
        for pre, d, post in new:
            for k, x in enumerate(d):
                newl.append((pre if k == 0 else [], x, post if k == len(d) - 1 else []))
        dpos = [3, 5, 7, 9, 12, 14, 16, 20]
        if st == opts.get("eflag", 15):
            newl.append(([], I(f"buffer_load_dword v14, v13, {s(SRD_W,4)}, 0 offen sc1"), []))
        for g, it in zip(dpos, newl):
            pre, x, post = it
            kind[g] = "d"; VE[g] = [x]
            for k, y in enumerate(pre):
                SC[g - len(pre) + k].append(y)
            SC[g + 1] += post
        dsq = []
        for mt in range(7):
            nf = mt + LF
            if nf < 7: rr = wrd(st, nf)
            elif st < 15: rr = wrd(st + 1, nf - 7)
            else: rr = []
            dsq += [(4*mt + k, x) for k, x in enumerate(rr)]
        if st < 15:
            dsq += [(17 + k, x) for k, x in enumerate(brd(st + 1))]
        dsq.sort(key=lambda z: z[0])
        nds = [0] * G
        q = 0
        for g in range(G):
            while kind[g] == "m" and q < len(dsq) and dsq[q][0] <= g and nds[g] < (2 if dsq[q][0] <= g - 2 else 1):
                VE[g].append(dsq[q][1]); nds[g] += 1; q += 1
        assert q == len(dsq)
        ops = []
        mg = [g for g in range(G) if kind[g] == "m" and nds[g] < 2]
        for k, x in enumerate(ops):
            VE[mg[(k * len(mg)) // len(ops)]].append(x)
        for mt in range(1, 8):
            if mt == 7 and st == 15: continue
            g = 4*mt - 1
            while kind[g] != "m" or SC[g]: g -= 1
            ex = f", {a(A_OB + 16*((st+1) % 2), 16)}" if mt == 7 else ""
            SC[g].append(I(f"WAITFOR {a(A_F + 4*((st*7 + mt) % NRW), 4)}{ex}"))
        for g in range(G):
            mt, q = g // 4, g % 4
            D = v(ACC + 16*mt + 4*q, 4)
            p(f"v_mfma_f32_16x16x32_bf16 {D}, {a(A_F + 4*((st*7 + mt) % NRW), 4)}, {a(A_OB + 16*(st % 2) + 4*q, 4)}, {D if st else 0}")
            oabl = opts.get("oabl", "")
            p.extend([x for x in SC[g] + VE[g] if not (("D" in oabl and x.kind == "dma" and st < 14) or ("B" in oabl and x.kind == "barrier")
                                                       or ("R" in oabl and x.kind == "ds_read"))])
        p.extend(SC[G])
        if opts.get("ost") and st in (3, 7, 11): stamp(p, [5, 6, 7][st // 4])
    if opts.get("ost"):
        stamp(p, 8)
        k_prep.STAMP["on"] = False
    if not opts.get("pst"): stamp(p, 4)
    p(f"""
    s_lshl_b32 s14, {s(S_J)}, 7
    s_lshl_b32 s15, {s(S_PB)}, 2
    s_add_u32 s14, s14, s15
    s_mul_i32 s14, s14, {14*1024}
    s_mul_i32 s15, {s(S_W)}, 7
    s_add_u32 s15, s15, 1
    s_lshr_b32 s15, s15, 1
    s_lshl_b32 s15, s15, 10
    s_add_u32 s14, s14, s15
    s_add_u32 s14, s14, {WS_PART}
    s_and_b32 s50, {s(S_W)}, 1
    s_mul_i32 s15, s50, {2*14*1024 - 4096}
    s_add_u32 s15, s15, s14
    s_add_u32 s15, s15, 3072
    s_mul_i32 s51, {s(S_HD)}, {2*SLOT}
    s_add_u32 s51, s51, {4*SLOT + 28672}
    s_lshl_b32 s52, s50, 3
    s_add_u32 s52, s52, s51
    v_add_u32 v4, s52, {v(V_LIN)}
    s_lshl_b32 s52, s50, 11
    s_add_u32 s52, s52, s51
    v_add_u32 v5, s52, {v(V_LIN)}
    """)
    pt = ("wr", ("PT", 0), "private")
    for q in range(4):
        X = ACC + 96 + 4*q
        p(f"v_cvt_pk_bf16_f32 v{X}, v{X}, v{X+1}")
        p(f"v_cvt_pk_bf16_f32 v{X+1}, v{X+2}, v{X+3}")
        p(f"ds_write_b64 v4, {v(X,2)} offset:{1024*q}", tag=("wr", ("MG", 0)))
    for q in range(4):
        for pr in range(3):
            X = ACC + 32*pr + 4*q
            Y = X + 16
            p(f"v_cvt_pk_bf16_f32 v{X}, v{X}, v{X+1}")
            p(f"v_cvt_pk_bf16_f32 v{X+1}, v{X+2}, v{X+3}")
            p(f"v_cvt_pk_bf16_f32 v{X+2}, v{Y}, v{Y+1}")
            p(f"v_cvt_pk_bf16_f32 v{X+3}, v{Y+2}, v{Y+3}")
            p(f"buffer_store_dwordx4 {v(X,4)}, {v(V_LIN)}, {s(SRD_W,4)}, s14 offen offset:{pr*1024} sc1", tag=pt)
        if q < 3:
            p(f"s_add_u32 s14, s14, {14*1024}")
        if q == 0:
            p("s_waitcnt lgkmcnt(0)")
            p("s_barrier")
            for k in range(2):
                p(f"ds_read_b128 {v(ACC+112+4*k,4)}, v5 offset:{1024*k}", tag=("rd", ("MG", 0)))
    for k in range(2):
        p(f"buffer_store_dwordx4 {v(ACC+112+4*k,4)}, {v(V_LIN)}, {s(SRD_W,4)}, s15 offen sc1", tag=pt)
        p(f"s_add_u32 s15, s15, {14*1024}")
    srd(p, SRD_K, 10, 11, 2048 * 896)
    emit_red_pre(p, S_W, S_PB, S_J, SRD_W, SRD_K, B=184)
    emit_red_early(p, SRD_W, 14)
    p(f"""
    s_lshl_b32 s14, {s(S_PB)}, 7
    s_add_u32 s14, s14, {WS_FLAG}
    """)
    p(f"s_lshl_b32 s15, 1, {s(S_J)}")
    signal(p, SRD_W, 14, S_W, "r" + name, vt=10, keys=[("PT", 0)], val="s15")
    stamp(p, 5)
    zl = [zfill(2), zfill(3), zfill(0, 1)]
    zl = flat(sum(zl, []))
    emit_red(p, S_W, S_PB, SRD_W, 163840 - 512, B=184, idle=zl)
    W4 = s(SRD_W, 4)
    ZACC = 128
    NRZ = 16
    A_H = 0
    A_FZ = 64
    VB = 16; RS = 48; VDB = 64; VRB = 72; Z1 = 80; GACC = 128
    RA = 6; A_A = 0; A_MU = 168; PB0 = 131072
    p(f"""
    s_lshr_b32 s15, {s(S_J)}, 1
    s_lshl_b32 s15, s15, 5
    s_add_u32 s14, s14, s15
    s_add_u32 s14, s14, 4096
    v_and_b32 v1, 63, v0
    v_lshlrev_b32 v2, 4, v1
    v_and_b32 v3, 15, v0                 ; n
    v_bfe_u32 v8, v0, 4, 2               ; g
    s_lshl_b32 s58, s33, 2
    s_add_u32 s58, s58, {s(S_W)}
    s_mul_i32 s4, s58, {14*1024}
    s_add_u32 s4, s4, {WS_H2}
    s_add_u32 s5, s4, 4096
    s_add_u32 s12, s4, 8192
    s_add_u32 s13, s4, 12288
    v_lshrrev_b32 v9, 2, v1
    v_mul_u32_u24 v9, 224, v9
    v_and_b32 v12, 3, v0
    v_lshl_add_u32 v12, v12, 3, v9
    v_add_u32 v13, {4*SLOT}, v12
    v_add_u32 v14, {8*SLOT}, v12
    v_mov_b32 v15, 0
    s_lshl_b32 s15, s33, 7
    s_lshl_b32 s50, {s(S_W)}, 5
    s_add_u32 s15, s15, s50
    s_add_u32 s15, s15, {WS_FLAG + 4096}
    """)
    signal(p, SRD_W, 14, S_W, "z" + name, vt=48, keys=[("H2", 0)])
    stamp(p, 7)
    p("s_cmp_lg_u32 s54, 0")
    p(f"s_cbranch_scc1 L_zf{name}")
    p.extend(zl)
    p(f"L_zf{name}:")
    srd(p, SRD_V, 6, 7, 2048 * 4096 + 4096)
    p(f"""
    s_sub_u32 {s(SRD_V)}, {s(SRD_V)}, 4096
    s_subb_u32 {s(SRD_V+1)}, {s(SRD_V+1)}, 0
    s_mov_b32 s50, s32
    s_mov_b32 s51, s33
    v_lshrrev_b32 v9, 3, v1
    v_lshlrev_b32 v9, 12, v9
    v_and_b32 v4, 7, v0
    v_xor_b32 v4, v4, v8
    v_lshl_add_u32 v4, v4, 4, v9
    v_xor_b32 v5, 64, v4
    """)
    for m in range(8):
        nl = m // 2
        if m % 2 == 0:
            p(f"s_add_u32 s52, {s(S_W)}, {nl}")
            p(f"s_and_b32 s52, s52, 3")
            p(f"s_lshl_b32 s52, s52, 16")
        p(f"s_add_u32 s53, s52, {(m % 2)*32768 + 4096 - (m % 4)*1024}")
        p(f"v_add_u32 v{VDB+m}, s53, v{4 + m % 2}")
    p(f"""
    s_lshl_b32 s52, s51, 18
    s_lshl_b32 s53, {s(S_W)}, 10
    s_add_u32 s52, s52, s53
    s_lshl_b32 s54, s50, 6
    s_lshl_b32 s53, {s(S_W)}, 4
    s_add_u32 s54, s54, s53
    s_mul_i32 s54, s54, 7168
    s_add_u32 s54, s54, {WS_ZZ}
    s_add_u32 s55, s54, 4096
    s_lshl_b32 s53, {s(S_W)}, 13
    v_mov_b32 v4, {f2u(C2)}
    v_mov_b32 v6, {f2u(C1)}
    s_lshl_b32 s38, s50, 6
    s_lshr_b32 s39, s58, 1
    s_add_u32 s38, s38, s39
    s_mul_i32 s38, s38, 7168
    s_and_b32 s39, s58, 1
    s_lshl_b32 s39, s39, 9
    s_add_u32 s38, s38, s39
    s_add_u32 s38, s38, {WS_ZZ}
    s_add_u32 s39, s38, 4096
    v_and_b32 v10, 1, v8
    v_lshlrev_b32 v10, 10, v10           ; (g%2)*1024 : second tile of the pair
    v_lshrrev_b32 v11, 1, v8
    v_lshl_add_u32 v10, v11, 8, v10      ; + (g/2)*256
    v_lshl_add_u32 v10, v3, 4, v10       ; + n*16
    v_lshlrev_b32 v11, 20, v10
    v_and_b32 v11, 0x40000000, v11
    v_or_b32 v11, v11, v10
    """)
    BSL = [0, 2, 1, 3, 4]
    BOV = {0: [0, 1], 1: [2, 3], 2: [4, 5], 3: [6, 7], 4: [8]}
    def bdma(dd, half, first=False):
        pre = [I(f"s_add_u32 m0, s53, {BSL[dd % 5]*32768 + half*4096}")]
        tg = ("dma", [(f"B{dd % 5}", dd)] + [(k, 400) for k in BOV[BSL[dd % 5]]]) if first else ("dma", (f"B{dd % 5}", dd), "private")
        out = [I(f"buffer_load_dwordx4 v{VDB+4*half+k}, {s(SRD_V,4)}, s52 offen offset:{k*1024} lds", tag=tg) for k in range(4)]
        post = [I("s_add_u32 s52, s52, 128")] if half else []
        return pre, out, post
    LEADZ = 6
    def zreads(z1):
        rds = []
        for u in range(14):
            rnd = u // 4
            ab = ZBASE[z1][rnd] + (u % 4) * 7168
            base, off = (12, ab) if ab < 4 * SLOT else (13, ab - 4 * SLOT) if ab < 8 * SLOT else (14, ab - 8 * SLOT)
            for ft in range(7):
                f = u * 7 + ft + 98 * z1
                rds.append([I(f"ds_read_b64_tr_b16 {a(A_FZ + 4*(f % NRZ) + 2*e, 2)}, v{base} offset:{off + e*3584 + 32*ft}",
                              tag=("rd", ZKEYS[z1][rnd])) for e in range(2)])
        return rds
    def zgemm(z1, rds, acc, hook=None):
        for g in range(98):
            for hk in (hook or {}).get(g, []):
                p(hk)
            u, ft = g // 7, g % 7
            f = g + 98 * z1
            D = v(acc + 4*ft, 4)
            Wf = a(A_FZ + 4*(f % NRZ), 4)
            H = a(A_H + 4*u, 4)
            C = D if u else "0"
            p(f"v_mfma_f32_16x16x32_bf16 {D}, {Wf}, {H}, {C}" if z1 else f"v_mfma_f32_16x16x32_bf16 {D}, {H}, {Wf}, {C}")
            if g + 1 < 98 and (g % 2 == 1 or ft == 6):
                ex = f", {a(A_H + 4*(u+1), 4)}" if ft >= 5 and u < 13 else ""
                p(f"WAITFOR {a(A_FZ + 4*((f+1) % NRZ), 4)}, {a(A_FZ + 4*((f+2) % NRZ), 4)}{ex}")
            if g + LEADZ < 98:
                p.extend(rds[g + LEADZ])
    rz = zreads(0)
    for x in rz[:LEADZ]:
        p.extend(x)
    poll(p, SRD_W, 15, 15, 48, "z" + name, 56, 2)
    stamp(p, 8)
    for u in range(14):
        p(f"buffer_load_dwordx4 {a(A_H+4*u,4)}, v2, {W4}, s{[4,5,12,13][u//4]} offen offset:{(u % 4)*1024}{LD}")
    zgemm(0, rz, ZACC, hook={28: ["s_barrier"]})
    p("s_barrier")
    if not opts.get("zst"): stamp(p, 9)
    def interleave(gl, bl):
        step = max(1, len(gl) // len(bl))
        for k, x in enumerate(gl):
            if k % step == 0 and bl:
                p.extend(bl.pop(0))
            p(x)
        for x in bl:
            p.extend(x)
    def groups(gs):
        out = []
        for pre, o, post in gs:
            for k, x in enumerate(o):
                out.append((pre if k == 0 else []) + [x] + (post if k == len(o) - 1 else []))
        return out
    gp = Prog("tmp")
    gelu_pairs(gp, [ZACC + 2*k for k in range(14)], 24)
    interleave(gp.items, groups(zfill(1, 1) + zfill(2, 1) + zfill(3, 1)))
    for k in range(0, 4, 2):
        p(f"v_pk_add_f32 {v(32+k,2)}, {v(ZACC+k,2)}, {v(ZACC+4+k,2)}")
        p(f"v_pk_mul_f32 {v(36+k,2)}, {v(ZACC+k,2)}, {v(ZACC+k,2)}")
    for ft in range(1, 7):
        for k in range(0, 4, 2):
            if ft >= 2:
                p(f"v_pk_add_f32 {v(32+k,2)}, {v(32+k,2)}, {v(ZACC+4*ft+k,2)}")
            p(f"v_pk_fma_f32 {v(36+k,2)}, {v(ZACC+4*ft+k,2)}, {v(ZACC+4*ft+k,2)}, {v(36+k,2)}")
    for sh in (8, 4, 2, 1):
        for k in range(8):
            p(f"v_add_f32_dpp v{32+k}, v{32+k}, v{32+k} row_ror:{sh} row_mask:0xf bank_mask:0xf")
    p(f"""
    v_cmp_eq_u32 vcc, 0, v3
    v_cndmask_b32 v40, v34, v32, vcc
    v_cndmask_b32 v41, v38, v36, vcc
    v_cndmask_b32 v42, v35, v33, vcc
    v_cndmask_b32 v43, v39, v37, vcc
    v_or_b32 v41, 0x80000000, v41
    v_or_b32 v43, 0x80000000, v43
    v_lshlrev_b32 v9, 5, v8
    v_lshl_add_u32 v9, v3, 4, v9
    v_mov_b32 v25, 0x40000000
    v_cmp_gt_u32 vcc, 2, v3
    v_cndmask_b32 v9, v25, v9, vcc
    s_lshl_b32 s12, s58, 10
    s_add_u32 s12, s12, {WS_ST2}
    s_lshl_b32 s13, s50, 7
    s_add_u32 s13, s13, s12
    buffer_store_dwordx4 v[40:43], v9, {W4}, s13 offen sc1
    v_and_b32 v9, 7, v3
    v_lshlrev_b32 v9, 7, v9
    v_lshl_add_u32 v9, v8, 5, v9
    v_lshrrev_b32 v25, 3, v3
    v_lshl_add_u32 v9, v25, 4, v9
    """)
    rz = zreads(1)
    for x in rz[:LEADZ]:
        p.extend(x)
    p(I("WAITTAG", tag=ZKEYS[1][1] + ZKEYS[1][2] + ZKEYS[1][3]))
    p("s_barrier")
    Z1ACC = 160
    p(f"""
    s_lshl_b32 s15, s50, 9
    s_add_u32 s15, s15, {WS_FLAG + 8192}
    s_lshr_b32 s14, s51, 3
    s_lshl_b32 s14, s14, 7
    s_add_u32 s14, s14, s15
    s_lshl_b32 s13, {s(S_W)}, 7
    s_add_u32 s15, s15, s13
    """)
    hk = {}
    NBZ = opts.get("nbz", 2)
    for dd in range(NBZ):
        g0 = 28 * dd + 2
        if dd: hk.setdefault(g0 - 1, []).append("s_barrier")
        for k, x in enumerate(groups([bdma(dd, hf, first=True) for hf in range(2)])):
            hk.setdefault(g0 + 3 * k, []).extend(x)
    hk.setdefault(opts.get("spoll", 76), []).append(f"buffer_load_dwordx4 v[32:35], v9, {W4}, s12 offen sc1")
    zgemm(1, rz, Z1ACC, hook=hk)
    p(f"""
    s_mov_b32 s56, 0x100000
    s_waitcnt vmcnt(0)
    s_branch L_sp2{name}
    L_sp1{name}:
    buffer_load_dwordx4 v[32:35], v9, {W4}, s12 offen sc1
    s_waitcnt vmcnt(0)
    L_sp2{name}:
    v_and_b32 v36, v33, v35
    v_cmp_le_i32 vcc, 0, v36
    s_cbranch_vccz L_sp3{name}
    s_sub_u32 s56, s56, 1
    s_cmp_lg_u32 s56, 0
    s_cbranch_scc1 L_sp1{name}
    L_sp3{name}:
    """)
    for ctl in ("quad_perm:[1,0,3,2]", "quad_perm:[2,3,0,1]", "row_half_mirror"):
        for k in range(4):
            p(f"v_add_f32_dpp v{32+k}, v{32+k}, v{32+k} {ctl} row_mask:0xf bank_mask:0xf")
    for k in range(2):
        p(f"v_mul_f32 v{38+k}, {f2u(1.0/896)}, v{32+2*k}")
        p(f"v_mul_f32 v{36+k}, {f2u(-1.0/896)}, v{33+2*k}")
        p(f"v_fma_f32 v{36+k}, -v{38+k}, v{38+k}, v{36+k}")
        p(f"v_max_f32 v{36+k}, 0, v{36+k}")
        p(f"v_add_f32 v{36+k}, {f2u(1e-5)}, v{36+k}")
        p(f"v_rsq_f32 v{36+k}, v{36+k}")
        p(f"v_mul_f32 v{38+k}, -v{38+k}, v{36+k}")
    for k in range(4):
        p(f"v_mov_b32 v{40+k}, v{36+k}")
        p(f"v_mov_b32 v{44+k}, v{36+k}")
    for k in range(4):
        p(f"v_mov_b32_dpp v{40+k}, v{36+k} row_ror:8 row_mask:0xf bank_mask:0xc")
        p(f"v_mov_b32_dpp v{44+k}, v{36+k} row_ror:8 row_mask:0xf bank_mask:0x3")
    zt = ("wr", ("ZZ", 0), "private")
    for pr in range(4):
        X = ZACC + 8*pr
        for k in range(4 if pr < 3 else 2):
            c = 40 + 4*(k % 2)
            p(f"v_pk_fma_f32 {v(X+2*k,2)}, {v(X+2*k,2)}, {v(c,2)}, {v(c+2,2)}")
        Y = 24 + 4*(pr % 2)
        for k in range(4):
            sx = X + 2*k if pr < 3 else X + 2*(k % 2)
            p(f"v_cvt_pk_bf16_f32 v{Y+k}, v{sx}, v{sx+1}")
        p(f"v_permlane16_swap_b32 v{Y}, v{Y+2}")
        p(f"v_permlane16_swap_b32 v{Y+1}, v{Y+3}")
        p(f"buffer_store_dwordx4 {v(Y,4)}, v{10 if pr < 3 else 11}, {W4}, s{38 + pr//2} offen offset:{(pr % 2)*2048} sc1", tag=zt)
    if opts.get("zst"): stamp(p, 9)
    p("s_barrier")
    gp = Prog("tmp")
    gelu_pairs(gp, [Z1ACC + 2*k for k in range(14)], 96)
    for k in range(14):
        gp(f"v_cvt_pk_bf16_f32 v{Z1+k}, v{Z1ACC+2*k}, v{Z1ACC+2*k+1}")
    NB1 = opts.get("nb1", 4)
    interleave(gp.items, groups([bdma(dd, hf, first=True) for dd in range(NBZ, NB1) for hf in range(2)]))
    signal(p, SRD_W, 14, S_W, "g" + name, vt=48, keys=[("ZZ", 0)])
    stamp(p, 10)
    RA = 5; A_A = 0; A_BR = 144
    p("s_load_dwordx2 s[4:5], s[0:1], 64")
    p("s_load_dwordx2 s[6:7], s[0:1], 96")
    p.extend(flat([bdma(dd, hf, first=True) for dd in range(NB1, 5) for hf in range(2)]))
    p(f"""
    v_lshrrev_b32 v9, 1, v3
    v_xor_b32 v9, v9, v8
    v_lshlrev_b32 v9, 4, v9
    v_lshl_add_u32 v9, v3, 7, v9
    v_add_u32 v{VRB}, s53, v9
    v_xor_b32 v{VRB+1}, 64, v{VRB}
    v_add_u32 v{VRB+2}, 0x10000, v{VRB}
    v_add_u32 v{VRB+3}, 0x10000, v{VRB+1}
    v_add_u32 v{VRB+4}, 0x20000, v{VRB}
    v_add_u32 v{VRB+5}, 0x20000, v{VRB+1}
    s_lshl_b32 s35, s58, 5
    v_lshlrev_b32 v12, 1, v3
    v_mov_b32 v49, 0
    s_waitcnt lgkmcnt(0)
    """)
    srd(p, SRD_K, 4, 5, 4096)
    srd(p, SRD_O, 8, 9, 896 * 896)
    srd(p, SRD_Q, 6, 7, 2048 * 896)
    p(f"buffer_load_ushort v{Z1+14}, v12, {s(SRD_K,4)}, s35 offen")
    def breg(ks, nl):
        return a(A_BR + 16*ks + 4*nl, 4) if ks < 6 else v(VB + 16*(ks % 2) + 4*nl, 4)
    def b_reads(ks):
        dd = ks // 2
        sl = BSL[dd % 5]
        return [I(f"ds_read_b128 {breg(ks, nl)}, v{VRB + 2*(sl//2) + ks % 2} offset:{(sl % 2)*32768 + nl*2048}",
                  tag=("rd", (f"B{dd % 5}", dd), "private")) for nl in range(4)]
    NB2 = opts.get("nb2", 8)
    for dd in range(3):
        p(I("WAITTAG", tag=[(f"B{dd}", dd)]))
        p.extend(b_reads(2*dd) + b_reads(2*dd + 1))
    for dd in range(5, NB2):
        p(I("WAITTAG", tag=[("rd", f"B{dd % 5}", dd - 5)]))
        p.extend(flat([bdma(dd, hf) for hf in range(2)]))
    poll(p, SRD_W, 15, 49, 48, "g" + name, 56, 8)
    stamp(p, 11)
    def aload(ks):
        out = [I(f"buffer_load_dwordx4 {a(A_A + 28*(ks % RA) + 4*mt, 4)}, v2, {W4}, s{54 + mt//4} offen offset:{(mt % 4)*1024}{LD}")
               for mt in range(7)]
        post = [I("s_add_u32 s54, s54, 7168"), I("s_add_u32 s55, s55, 7168")]
        return out, post
    NA0 = opts.get("na0", 3)
    for ks in range(NA0):
        o, post = aload(ks); p.extend(o); p.extend(post)
    nexta = NA0
    nextb = 2 * NB2
    for ks in range(16):
        SC = [[] for _ in range(29)]
        VE = [[] for _ in range(28)]
        kind = ["m"] * 28
        vm = []
        while nexta < 16 and nexta <= ks + RA - 1 and len(vm) < (8 if ks == 0 else 1):
            o, post = aload(nexta); nexta += 1
            vm.extend([([], x, post if k == 6 else []) for k, x in enumerate(o)])
        if ks >= 2 and nextb < 16:
            pre, o, post = bdma(nextb // 2, nextb % 2); nextb += 1
            vm.extend([(pre if k == 0 else [], x, post if k == 3 else []) for k, x in enumerate(o)])
        for k, (pre, x, post) in enumerate(vm):
            g = 2 * k if len(vm) > 9 else 1 + 3 * k
            kind[g] = "d"; VE[g] = [x]
            if pre: SC[g - 1] += pre
            SC[g + 1] += post
        mg = [g for g in range(28) if kind[g] == "m"]
        if 6 <= ks + 1 < 16:
            if (ks + 1) % 2 == 0:
                SC[mg[0]].insert(0, I("WAITTAG", tag=[(f"B{((ks+1)//2) % 5}", (ks+1)//2)]))
            for k, x in enumerate(b_reads(ks + 1)):
                VE[mg[k + 1]].append(x)
        for mt in range(1, 8):
            if mt == 7 and ks == 15: continue
            g = 4*mt - 1
            while kind[g] != "m": g -= 1
            k2, m2 = (ks, mt) if mt < 7 else (ks + 1, 0)
            ex = "".join(", " + breg(ks + 1, nl) for nl in range(4)) if mt == 7 else ""
            SC[g].append(I(f"WAITFOR {a(A_A + 28*(k2 % RA) + 4*m2, 4)}{ex}"))
        for g in range(28):
            mt, nl = g // 4, g % 4
            D = v(GACC + 16*mt + 4*nl, 4)
            p(f"v_mfma_f32_16x16x32_bf16 {D}, {a(A_A + 28*(ks % RA) + 4*mt, 4)}, {breg(ks, nl)}, {D if ks else 0}")
            for x in SC[g] + VE[g]:
                p(x)
            if ks == 15:
                if g == 0:
                    p("v_add_u32 v4, s53, v2")
                    p("v_add_u32 v13, 0x10000, v4")
                g2 = g - 8
                if g2 >= 0 and g2 % 4:
                    p(f"ds_write_b128 v{13 if g2 % 4 == 3 else 4}, {v(GACC + 16*(g2//4) + 4*(g2 % 4), 4)} offset:{((g2 % 4 - 1) % 2)*32768 + (g2//4)*1024}", tag=("wr", ("X", 0)))
        assert not SC[28]
    assert nexta == 16 and nextb == 16
    stamp(p, 12)
    for nl in range(1, 4):
        p(f"s_sub_u32 s34, {s(S_W)}, {nl}")
        p(f"s_and_b32 s34, s34, 3")
        p(f"s_lshl_b32 s34, s34, 13")
        p(f"s_add_u32 s34, s34, {(nl-1)*32768}")
        p(f"v_add_u32 v{4+nl}, s34, v2")
    for mt in range(5, 7):
        for nl in range(1, 4):
            p(f"ds_write_b128 v{13 if nl == 3 else 4}, {v(GACC + 16*mt + 4*nl, 4)} offset:{((nl-1) % 2)*32768 + mt*1024}", tag=("wr", ("X", 0)))
    p("s_waitcnt lgkmcnt(0)")
    p("s_barrier")
    for mt in range(7):
        for nl in range(1, 4):
            p(f"ds_read_b128 {v(GACC + 16*mt + 4*nl, 4)}, v{4+nl} offset:{mt*1024}", tag=("rd", ("X", 0)))
    p(f"""
    s_mul_i32 s34, s58, {28*1024}
    s_add_u32 s34, s34, {WS_U}
    s_mul_i32 s35, s50, 7
    s_add_u32 s36, s35, 1
    s_lshr_b32 s36, s36, 1
    s_lshl_b32 s36, s36, 10
    s_add_u32 s36, s36, s34
    s_and_b32 s37, s50, 1
    s_mul_i32 s37, s37, {4096 - 512}
    s_sub_u32 s37, s36, s37
    s_add_u32 s37, s37, 3072
    v_lshlrev_b32 v14, 3, v1
    v_lshlrev_b32 v{Z1+14}, 16, v{Z1+14}
    """)
    def red(mt, n=2):
        X = GACC + 16*mt
        for h in range(n):
            p(f"v_pk_add_f32 {v(X+2*h,2)}, {v(X+2*h,2)}, {v(X+4+2*h,2)}")
            p(f"v_pk_add_f32 {v(X+8+2*h,2)}, {v(X+8+2*h,2)}, {v(X+12+2*h,2)}")
        for h in range(n):
            p(f"v_pk_add_f32 {v(X+2*h,2)}, {v(X+2*h,2)}, {v(X+8+2*h,2)}")
    p(f"v_mov_b32 v8, v{Z1+14}")
    for ft in range(7):
        red(ft)
        X = GACC + 16*ft
        for h in range(2):
            p(f"v_pk_add_f32 {v(X+2*h,2)}, {v(X+2*h,2)}, v[8:9] op_sel_hi:[1,0]")
            p(f"v_lshlrev_b32 v{10+2*h}, 16, v{Z1+2*ft+h}")
            p(f"v_and_b32 v{11+2*h}, 0xffff0000, v{Z1+2*ft+h}")
            p(f"v_pk_mul_f32 {v(X+2*h,2)}, {v(X+2*h,2)}, {v(10+2*h,2)}")
        Y = GACC + 16*(ft & ~1) + 4 + 2*(ft % 2)
        p(f"v_cvt_pk_bf16_f32 v{Y}, v{X}, v{X+1}")
        p(f"v_cvt_pk_bf16_f32 v{Y+1}, v{X+2}, v{X+3}")
        if ft % 2 == 1:
            p(f"buffer_store_dwordx4 {v(Y-2,4)}, v2, {W4}, s36 offen offset:{(ft//2)*1024} sc1", tag=("wr", ("U", 0), "private"))
        if ft == 6:
            p(f"buffer_store_dwordx2 {v(Y,2)}, v14, {W4}, s37 offen sc1", tag=("wr", ("U", 0), "private"))
    p("s_barrier")
    OACC = 64; A_B = 0; A_FO = 112; NRO = 8
    p(f"s_mul_i32 s53, {s(S_W)}, 40960")
    p(f"""
    s_lshl_b32 s33, {s(S_J)}, 2
    s_and_b32 s15, {s(S_PB)}, 3
    s_add_u32 s33, s33, s15              ; tb'
    s_lshr_b32 s32, {s(S_PB)}, 2         ; cb
    v_lshrrev_b32 v3, 3, v1
    v_mul_u32_u24 v3, 896, v3
    v_bfe_u32 v8, v0, 4, 2
    v_lshlrev_b32 v9, 1, v8
    v_and_b32 v10, 7, v0
    v_xor_b32 v9, v9, v10
    v_lshl_add_u32 v4, v9, 4, v3
    v_add_u32 v5, {7168-1024}, v4
    v_add_u32 v6, {2*(7168-1024)}, v4
    v_add_u32 v7, {3*(7168-1024)}, v4
    s_mul_i32 s34, {s(S_W)}, {224*896}
    s_lshl_b32 s35, s32, 7
    s_add_u32 s34, s34, s35
    s_lshl_b32 s14, s51, 7
    s_add_u32 s14, s14, {WS_FLAG + 12288}
    """)
    NW0 = opts.get("nw0", 3)
    def wdma(ks):
        p(f"s_add_u32 m0, s53, {ks*4096}")
        for k in range(4):
            p(f"buffer_load_dwordx4 v{4+k}, {s(SRD_O,4)}, s34 offen offset:{k*1024} lds", tag=("dma", [(f"W{ks}", 0), ("X", 1)]))
        p(f"s_add_u32 s34, s34, {4*7168}")
    for ks in range(NW0):
        wdma(ks)
    p("s_lshl_b32 s15, 1, s50")
    signal(p, SRD_W, 14, S_W, "o" + name, vt=48, keys=[("U", 0)], val="s15")
    stamp(p, 13)
    p(f"s_cmp_ge_u32 {s(S_PB)}, 28")
    p(f"s_cbranch_scc1 L_bump{name}")
    p.begin_side()
    p(f"""
    L_bump{name}:
    s_cmp_lg_u32 s2, 255
    s_cbranch_scc1 L_end{name}
    s_add_u32 s12, s100, 1
    s_add_u32 s13, s101, 1
    v_mov_b32 v4, s12
    v_mov_b32 v5, s13
    v_mov_b32 v6, {WS_EP}
    buffer_store_dwordx2 v[4:5], v6, {W4}, 0 offen sc1
    s_endpgm
    """)
    p.end_side()
    for ks in range(NW0, 7):
        wdma(ks)
    X1 = 16; GB = 24
    for nl in range(4):
        p(f"s_add_u32 s36, {s(S_W)}, {nl}")
        p(f"s_and_b32 s36, s36, 3")
        p(f"s_lshl_b32 s37, s33, 2")
        p(f"s_add_u32 s36, s36, s37")
        p(f"s_mul_i32 s36, s36, {28*1024}")
        p(f"s_mul_i32 s37, {s(S_W)}, 7168")
        p(f"s_add_u32 s36, s36, s37")
        p(f"s_add_u32 s{4+nl}, s36, {WS_U}")
        p(f"s_add_u32 s{8+nl}, s{4+nl}, 4096")
    p(f"""
    s_lshl_b32 s36, s33, 2
    s_add_u32 s36, s36, {s(S_W)}
    s_mul_i32 s37, s36, {14*1024}
    s_lshl_b32 s38, s32, 11
    s_add_u32 s37, s37, s38
    s_add_u32 s37, s37, {WS_X1}
    buffer_load_dwordx4 {v(X1,4)}, v2, {W4}, s37 offen sc1
    buffer_load_dwordx4 {v(X1+4,4)}, v2, {W4}, s37 offen offset:1024 sc1
    v_lshlrev_b32 v9, 4, v8
    s_lshl_b32 s38, s32, 8
    s_add_u32 s38, s38, {WS_MOD + 5*1792}
    """)
    for ct in range(4):
        p(f"buffer_load_dwordx4 {v(GB+4*ct,4)}, v9, {W4}, s38 offen offset:{64*ct} sc1")
    p(f"""
    v_lshrrev_b32 v3, 2, v1
    v_lshlrev_b32 v3, 7, v3
    v_bfe_u32 v10, v0, 3, 2
    v_lshl_add_u32 v3, v10, 5, v3
    v_and_b32 v10, 3, v0
    v_lshl_add_u32 v3, v10, 3, v3
    v_add_u32 v12, s53, v3
    v_xor_b32 v13, 32, v12
    v_xor_b32 v14, 64, v12
    v_xor_b32 v15, 0x60, v12
    v_mov_b32 v10, 0
    v_lshlrev_b32 v11, 3, v1
    s_lshl_b32 s15, s33, 7
    s_add_u32 s15, s15, {WS_FLAG + 12288}
    """)
    p(f"s_lshl_b32 s36, {s(S_W)}, 1")
    p("s_lshl_b32 s36, 3, s36")
    poll(p, SRD_W, 15, 10, 48, "o" + name, 56, "s36", mask="s36")
    stamp(p, 14)
    ul = [I(f"buffer_load_dwordx4 {a(A_B + 16*ks + 4*nl, 4)}, v2, {W4}, s{4 + nl + 4*(ks//4)} offen offset:{(ks % 4)*1024}{LD}")
          for ks in range(7) for nl in range(4)]
    ul[12:16] = [I(f"buffer_load_dwordx2 {a(A_B + 48 + 4*nl + 2*h, 2)}, v11, {W4}, s{4 + nl} offen offset:{3072 + 512*h}{LD}")
                 for nl in range(4) for h in range(2)]
    p.extend(ul[:20]); ul = ul[20:]
    def rd(f):
        ks, ct = f // 4, f % 4
        return [I(f"ds_read_b64_tr_b16 {a(A_FO + 4*(f % NRO) + 2*e, 2)}, v{12+ct} offset:{ks*4096 + e*2048}",
                  tag=("rd", (f"W{ks}", 0), "private")) for e in range(2)]
    PFO = 4
    for f in range(PFO):
        p.extend(rd(f))
    for f in range(28):
        ks, ct = f // 4, f % 4
        nx = f + PFO
        for nl in range(4):
            D = v(OACC + 16*ct + 4*nl, 4)
            p(f"v_mfma_f32_16x16x32_bf16 {D}, {a(A_FO + 4*(f % NRO), 4)}, {a(A_B + 16*ks + 4*nl, 4)}, {D if ks else 0}")
            if nx < 28 and nl < 2:
                p(rd(nx)[nl])
            if nl == 2 and ul:
                p(ul.pop(0))
            if nl == 3 and f + 1 < 28:
                p(f"WAITFOR {a(A_FO + 4*((f+1) % NRO), 4)}, {a(A_B + 16*((f+1)//4), 16)}")
    p("v_add_u32 v4, s53, v2")
    for nl in range(1, 4):
        p(f"s_sub_u32 s36, {s(S_W)}, {nl}")
        p(f"s_and_b32 s36, s36, 3")
        p(f"s_mul_i32 s36, s36, 40960")
        p(f"v_add_u32 v{4+nl}, s36, v2")
    for ct in range(4):
        for nl in range(1, 4):
            p(f"ds_write_b128 v4, {v(OACC + 16*ct + 4*nl, 4)} offset:{(nl-1)*4096 + ct*1024}", tag=("wr", ("Y", 0)))
    p("s_waitcnt lgkmcnt(0)")
    p("s_barrier")
    for ct in range(4):
        for nl in range(1, 4):
            p(f"ds_read_b128 {v(OACC + 16*ct + 4*nl, 4)}, v{4+nl} offset:{(nl-1)*4096 + ct*1024}", tag=("rd", ("Y", 0)))
    p(f"""
    v_and_b32 v3, 15, v0
    v_mul_u32_u24 v3, 896, v3
    v_lshl_add_u32 v3, v8, 4, v3
    s_lshl_b32 s36, s33, 2
    s_add_u32 s36, s36, {s(S_W)}
    s_mul_i32 s36, s36, {16*896}
    s_lshl_b32 s37, s32, 7
    s_add_u32 s36, s36, s37
    """)
    for ct in range(4):
        X = OACC + 16*ct
        for h in range(2):
            p(f"v_pk_add_f32 {v(X+2*h,2)}, {v(X+2*h,2)}, {v(X+4+2*h,2)}")
            p(f"v_pk_add_f32 {v(X+8+2*h,2)}, {v(X+8+2*h,2)}, {v(X+12+2*h,2)}")
        for h in range(2):
            p(f"v_pk_add_f32 {v(X+2*h,2)}, {v(X+2*h,2)}, {v(X+8+2*h,2)}")
            p(f"v_lshlrev_b32 v{10}, 16, v{X1+2*ct+h}")
            p(f"v_and_b32 v{11}, 0xffff0000, v{X1+2*ct+h}")
            p(f"v_pk_fma_f32 {v(X+2*h,2)}, {v(X+2*h,2)}, {v(GB+4*ct+2*h,2)}, v[10:11]")
        k, odd = ct // 2, ct % 2
        O = 40 + 4*k + 2*odd
        p(f"v_cvt_pk_bf16_f32 v{O}, v{X}, v{X+1}")
        p(f"v_cvt_pk_bf16_f32 v{O+1}, v{X+2}, v{X+3}")
        if odd:
            O = 40 + 4*k
            p(f"v_permlane32_swap_b32 v{O}, v{O+2}")
            p(f"v_permlane32_swap_b32 v{O+1}, v{O+3}")
            p(f"v_permlane16_swap_b32 v{O}, v{O+2}")
            p(f"v_permlane16_swap_b32 v{O+1}, v{O+3}")
            p(f"buffer_store_dwordx4 {v(O,4)}, v3, {s(SRD_Q,4)}, s36 offen offset:{64*k}")
    k_prep.STAMP["on"] = son
    if opts.get("diag"):
        p("s_waitcnt vmcnt(0)")
        stamp(p, 15)
        p("v_mov_b32 v1, 0")
        p("s_mov_b64 exec, 1")
        p("s_not_b32 s14, s61")
        p("v_mov_b32 v2, s14")
        p(f"buffer_atomic_umax v2, v1, {s(SRD_D,4)}, 0 offen offset:8 sc1")
        for k, st in enumerate((1, 2, 3, 4, 5, 7, 10, 11, 12, 13, 15)):
            p(f"v_mov_b32 v3, s{61+2*st}")
            p(f"buffer_atomic_umax v3, v1, {s(SRD_D,4)}, 0 offen offset:{12+4*k} sc1")
            p("s_nop 1")
        p("s_mov_b64 exec, -1")
        k_prep.STAMP["on"] = False
    stamp_dump(p, opts.get("slot", 1), NSTAMP, SRD_W, S_W)
    p(f"L_end{name}:")
    p("s_endpgm")
    if opts.get("gabl") or opts.get("oabl"):
        p.check_lds = lambda: None
    p.finalize()
    return p


def gen_mega(opts=None):
    p0 = build_mega(opts or {})
    if (opts or {}).get("plain"):
        return p0, "; @launch grid=(256,1,1) block=(256,1,1) lds=163840\n"
    return p0, f"; @launch kernel={p0.name} grid=(256,1,1) block=(256,1,1) lds=163840\n"
```

```python
import sys
sys.path.insert(0, "work")
from asmlib import *
from layout import *
from k_prep import srd, f2u, stamp, stamp_dump, code_prefetch, signal, poll
from k_red import emit_red_pre, emit_red

SLOT = 16640
V_WDMA = 4
V_WRD = 8
V_LIN = 12
V_XW = 13; V_XR = 14; V_TMP = 15
V_H = 16
V_O = 128
V_S = [96, 112]
V_NEGM = 80
V_P = [64, 72]
V_E = 56
V_KRD = 40
V_VRD = 48
V_KDMA = 32
V_VDMA = 36
V_L = 50
V_TS = 52
V_T0 = 54; V_T1 = 55
V_T2 = 30; V_T3 = 31
A_Q = 0
A_F = 64
NR = 16
SRD_K, SRD_V, SRD_W, SRD_Q, SRD_O = 16, 20, 24, 40, 44
S_W, S_J, S_PB = 28, 29, 30
S_KOFF, S_VOFF, S_M0K, S_M0V, S_CNT, S_THR = 32, 33, 34, 35, 36, 37
S_WOFF, S_WBASE, S_HD, S_QT = 38, 39, 48, 49
MODL = 9 * SLOT
LDS_BYTES = 9 * SLOT + 8192
A_HP = 128


def make_plan(gJ=24, gB=52, d0=3, e_first=2, e_last=58):
    pl = ["m"] * 64
    for k in range(8):
        pl[(d0 + 8 * k) % 64] = "d"
    assert pl[gJ] == "m" and pl[gB] == "m"
    pl[gJ] = "j"; pl[gB] = "B"
    es = []
    for r in range(16):
        g = gJ + e_first + round(r * (e_last - e_first) / 15)
        while pl[g % 64] != "m":
            g += -1 if r == 15 else 1
        pl[g % 64] = "e"
        es.append(g % 64)
    for i in range(10):
        g = es[(i * 16) // 10] - 1
        while pl[g % 64] != "m":
            g -= 1
        pl[g % 64] = "t"
    return "".join(pl)


def frag(f):
    return A_F + 4 * (f % NR)


def slot_of(kind, t):
    return (t % 4) + (4 if kind == "K" else 0)


class Attn:
    def __init__(self, opts):
        self.o = opts
        self.sxm = opts.get("sxm", True)
        self.plan = opts.get("plan", make_plan(gJ=31, gB=52, d0=1, e_first=5, e_last=58) if self.sxm else make_plan())
        pl = self.plan
        assert len(pl) == 64
        assert pl.count("e") + pl.count("E") == 16
        assert pl.count("d") == 8 and pl.count("B") == 1 and pl.count("j") == 1
        nds = pl.count("m") + pl.count("E") + 2 * pl.count("t")
        assert nds == 48, nds
        self.gB = pl.index("B"); self.gJ = pl.index("j")
        dsg = []
        for k in range(1, 65):
            g = (self.gB + k) % 64
            if pl[g] in "mE": dsg.append(g)
            if pl[g] == "t": dsg += [g, g]
        ops = [(f, 0) for f in range(16)] + [(f, e) for f in range(16, 32) for e in range(2)]
        self.ds = {}
        leads = []
        for g, (f, e) in zip(dsg, ops):
            nxt = g > self.gB
            assert not (nxt and f >= 16)
            self.ds.setdefault(g, []).append((f, e, nxt))
            leads.append(2 * f + (64 if nxt else 0) - g)
        assert max(leads) < 2 * NR - 2
        self.va = {}
        exps, rest = self.softmax_parts(0)
        done = set()
        ie = ir = 0
        for k in range(1, 64):
            g = (self.gJ + k) % 64
            add = []
            if pl[g] in "eE":
                self.va.setdefault(g, []).append(("e", ie)); add = [ie]; ie += 1
            elif pl[g] == "m":
                if ir < len(rest) and all(d in done for d in rest[ir][1]):
                    self.va.setdefault(g, []).append(("r", ir)); ir += 1
            done.update(add)
        assert ie == 16 and ir == len(rest), (ir, len(rest))
        pos = lambda g: (g - self.gJ) % 64
        epos = {i: pos(g) for g, l in self.va.items() for k, i in l if k == "e"}
        for g, l in self.va.items():
            for k, i in l:
                if k == "r":
                    for d in rest[i][1]:
                        assert d + 8 > 15 or pos(g) < epos[d + 8], "E ring overrun"
        self.leads = (min(leads), max(leads))
        self.nafter = sum(1 for g in range(64) if pl[g] == "d" and g > self.gB)

    @staticmethod
    def key(kind, t):
        return (slot_of(kind, t), 100 + t)

    def kread(self, tfn, c, f):
        kt, sx = (f % 2, f // 2) if self.sxm else (f // 8, f % 8)
        return I(f"ds_read_b128 {a(frag(f),4)}, {v(V_KRD + sx % 4)} offset:{(c % 4)*SLOT + kt*8192 + (sx//4)*256}",
                 tag=("rd", lambda it: self.key("K", tfn(it))))

    def vread(self, tfn, c, f, e):
        t = f - 16
        return I(f"ds_read_b64_tr_b16 {a(frag(f)+2*e,2)}, {v(V_VRD + t % 2)} offset:{(c % 4)*SLOT + e*2048 + 64*(t//2)}",
                 tag=("rd", lambda it: self.key("V", tfn(it))))

    def dma(self, kind, tfn, jj):
        tag = ("dma", lambda it: self.key(kind, tfn(it)))
        if kind == "K":
            return I(f"buffer_load_dwordx4 {v(V_KDMA+jj)}, {s(SRD_K,4)}, {s(S_KOFF)} offen offset:{jj*1024}{self.o.get('kvf', ' nt')} lds", tag=tag)
        return I(f"buffer_load_dwordx4 {v(V_VDMA+jj)}, {s(SRD_V,4)}, {s(S_VOFF)} offen offset:{jj*1024}{self.o.get('kvf', ' nt')} lds", tag=tag)

    def m0(self, kind, c):
        if kind == "K":
            return I(f"s_add_u32 m0, {s(S_M0K)}, {slot_of('K', c)*SLOT}")
        return I(f"s_add_u32 m0, {s(S_M0V)}, {slot_of('V', c)*SLOT}")

    def adv(self, kind):
        r = S_KOFF if kind == "K" else S_VOFF
        return I(f"s_add_u32 {s(r)}, {s(r)}, 16384")

    def wfill(self, which, st, hf):
        if which == "Q":
            pair = st % 4
            off = ((st + 7 * hf) % 14) * 32 * 8192 + hf * 512
            srdw = SRD_Q
            gen = st
        else:
            pair = (st + 2) % 4
            off = ((st + 8 * hf) % 16) * 32 * 896 + hf * 448
            srdw = SRD_O
            gen = 200 + st
        slot = 2 * pair + hf
        pre = [I(f"s_add_u32 m0, {s(S_M0V)}, {slot*SLOT}"), I(f"s_add_u32 {s(S_WOFF)}, {s(S_WBASE)}, {off}")]
        d = [I(f"buffer_load_dwordx4 {v(V_WDMA+jj)}, {s(srdw,4)}, {s(S_WOFF)} offen offset:{jj*1024} lds",
               tag=("dma", (slot, gen))) for jj in range(4)]
        return pre, d

    OPAIR = [2, 3, 0]
    WDR = [44, 45, 46, 47, 28, 29, 95]

    def okeys(self, st):
        pr = self.OPAIR[st % 3]
        return [(2 * pr, 200 + st), (2 * pr + 1, 200 + st)]

    def ofill(self, st, hf):
        pr = self.OPAIR[st % 3]
        pre = [I(f"s_add_u32 m0, s59, {2*pr*SLOT + hf*4096}"), I(f"s_add_u32 {s(S_WOFF)}, {s(S_WBASE)}, {st*28672 + hf*4096}")]
        d = [I(f"buffer_load_dwordx4 v{self.WDR[m]}, {s(SRD_O,4)}, {s(S_WOFF)} offen offset:{(m % 4)*1024} lds",
               tag=("dma", self.okeys(st))) for m in range(4*hf, min(7, 4*hf + 4))]
        return pre, d

    def wkeys(self, which, st):
        pair = st % 4 if which == "Q" else (st + 2) % 4
        gen = st if which == "Q" else 200 + st
        return [(2 * pair, gen), (2 * pair + 1, gen)]

    def wread(self, which, st, t, e, f):
        pair = st % 4 if which == "Q" else (st + 2) % 4
        return I(f"ds_read_b64_tr_b16 {a(frag(f)+2*e,2)}, {v(V_WRD + 2*(pair//2) + t % 2)} "
                 f"offset:{(pair % 2)*2*SLOT + e*2048 + 64*(t//2)}", tag=("rd", self.wkeys(which, st)))

    def kvfill(self, kind, t, jjs=range(4)):
        pre = [self.m0(kind, t)]
        d = [self.dma(kind, (lambda t: lambda it: t)(t), jj) for jj in jjs]
        post = [self.adv(kind)] if 3 in jjs else []
        return pre, d, post

    def softmax_parts(self, par):
        S = V_S[par]; P = V_P[par]
        exps = [I(f"v_exp_f32 {v(V_E + r % 8)}, {v(S + r)}") for r in range(16)]
        rest = []
        rest.append((I(f"v_add_f32 {v(V_L)}, {v(V_L)}, {v(V_TS)}"), [], True))
        rest.append((I(f"v_add_f32 {v(V_L+1)}, {v(V_L+1)}, {v(V_TS+1)}"), [], True))
        for q in range(16):
            kt, qt, i = q // 8, (q // 4) % 2, q % 4
            ts = v(V_TS + qt)
            e = v(V_E + q % 8)
            if kt == 0 and i == 0:
                pass
            elif kt == 0 and i == 1:
                rest.append((I(f"v_add_f32 {ts}, {v(V_E + (q-1) % 8)}, {e}"), [q-1, q], False))
            else:
                rest.append((I(f"v_add_f32 {ts}, {ts}, {e}"), [q], False))
            if q == 15:
                rest.append((I(f"v_add_f32 {v(V_T2)}, {v(V_TS)}, {v(V_TS+1)}"), [q], False))
                rest.append((I(f"v_cmp_lt_f32 vcc, {s(S_THR)}, {v(V_T2)}"), [q], False))
            if q % 2 == 1:
                rest.append((I(f"v_cvt_pk_bf16_f32 {v(P + 4*qt + 2*kt + i // 2)}, {v(V_E + (q-1) % 8)}, {e}"), [q-1, q], False))
        return exps, rest

    def softmax_linear(self, par):
        exps, rest = self.softmax_parts(par)
        out = []
        ir = 2
        for r in range(16):
            out.append(exps[r])
            while ir < len(rest) and max(rest[ir][1]) < r:
                out.append(rest[ir][0]); ir += 1
        out += [x[0] for x in rest[ir:]]
        return out

    def body(self, p, c, A, aval=None, lid=None, extra_scalar=None, extra_valu=None):
        pl = self.plan
        par = c % 2
        gB, gJ = self.gB, self.gJ
        first = aval == -1
        do_pv = not first
        do_qk = aval is None or aval + 1 <= 63
        next_k = aval is None or aval + 2 <= 63
        SC = [[] for _ in range(64)]
        VE = [[] for _ in range(64)]
        cur = self.softmax_parts(par)
        nxt = self.softmax_parts(1 - par)
        late = []
        for g in range(64):
            for (f, e, nx) in self.ds.get(g, []):
                if nx:
                    if next_k:
                        VE[g].append(self.kread(lambda it: A(it)+2, c+2, f))
                elif f < 16:
                    if do_qk:
                        VE[g].append(self.kread(lambda it: A(it)+1, c+1, f))
                else:
                    if do_pv:
                        VE[g].append(self.vread(A, c, f, e))
            for kind, idx in self.va.get(g, []):
                if g < gJ:
                    if do_pv:
                        VE[g].append(cur[0][idx] if kind == "e" else cur[1][idx][0])
                else:
                    if kind == "r" and nxt[1][idx][2]:
                        if do_pv:
                            VE[g].append(nxt[1][idx][0])
                    elif do_qk:
                        x = nxt[0][idx] if kind == "e" else nxt[1][idx][0]
                        if first and g < 32:
                            late.append(x)
                        else:
                            VE[g].append(x)
        if do_pv:
            VE[gJ].append(I(f"s_cbranch_vccnz L_fb{lid}"))
            VE[gJ].append(I(f"L_ret{lid}:"))
        def bartags(it):
            av = A(it)
            ks = []
            if av + 2 <= 63: ks.append(self.key("K", av + 2))
            if av + 1 <= 63: ks.append(self.key("V", av + 1))
            if av == 63: ks += self.okeys(0)
            return ks
        VE[gB].append(I("WAITTAG", tag=bartags))
        VE[gB].append(I("s_barrier"))
        for g, x in (extra_valu or []):
            VE[g].append(x)
        dg = [g for g in range(64) if pl[g] == "d"]
        after = [g for g in dg if g > gB]
        before = [g for g in dg if g < gB]
        def free_sc(g, step):
            while pl[g % 64] in "dBj" or SC[g % 64]:
                g += step
            assert 0 <= g < 64
            return g
        seq = [("V", 3, jj) for jj in range(4)] + [("K", 5, jj) for jj in range(4)]
        for i, g in enumerate(after + before):
            kind, off, jj = seq[i]
            if g < gB:
                off -= 1
            if aval is not None and aval + off > 63:
                t = aval + off
                m = {("K", 65): (0, 0), ("V", 64): (0, 1), ("V", 65): (1, 0), ("K", 67): (1, 1)}.get((kind, t))
                if m is None:
                    continue
                pre, d = self.ofill(m[0], m[1])
                if jj >= len(d):
                    continue
                VE[g].append(d[jj])
                if jj == 0:
                    for x in pre:
                        SC[free_sc(g - 1, -1)].append(x)
                continue
            VE[g].append(self.dma(kind, (lambda off: lambda it: A(it) + off)(off), jj))
            if jj == 0:
                SC[free_sc(g - 1, -1)].append(self.m0(kind, c + off))
            if jj == 3:
                SC[free_sc(g + 1, 1)].append(self.adv(kind))
        for g, x in (extra_scalar or []):
            SC[free_sc(g, -1)].append(x)
        WG = 2
        for f0 in range(0, 32, WG):
            fs = list(range(f0, f0 + WG))
            if f0 == 0:
                if not next_k: continue
                g = free_sc(63, -1)
            else:
                if (f0 < 16 and not do_qk) or (f0 >= 16 and not do_pv): continue
                g = free_sc(2 * f0 - 1, -1)
            SC[g].append(I("WAITFOR " + ", ".join(a(frag(f), 4) for f in fs)))
        for g in range(64):
            f, qt = g // 2, g % 2
            if self.o.get("gray") and f >= 16 and f % 2:
                qt = 1 - qt
            fr = a(frag(f), 4)
            if f < 16 and do_qk:
                Sx = V_S[1-par]
                kt, sx = (f % 2, f // 2) if self.sxm else (f // 8, f % 8)
                if self.sxm and kt: qt = 1 - qt
                D = v(Sx + 8*kt + 4*qt, 4)
                C = D if sx else ("0" if first else v(V_NEGM + 4*qt, 4))
                p(f"v_mfma_f32_16x16x32_bf16 {D}, {fr}, {a(A_Q + 8*sx + 4*qt, 4)}, {C}")
            if f >= 16 and do_pv:
                O = v(V_O + 8*(f-16) + 4*qt, 4)
                C = "0" if aval == 0 else O
                p(f"v_mfma_f32_16x16x32_bf16 {O}, {fr}, {v(V_P[par] + 4*qt, 4)}, {C}")
            for x in SC[g] + VE[g]:
                p(x)
            if g == 31 and first:
                S0 = V_S[1-par]
                self.tile_max(p, S0)
                self.apply_delta(p, S0, None, init=True)
                for x in late:
                    p(x)

    def tile_max(self, p, S):
        for qt in range(2):
            T = V_T0 + qt
            rs = [S + 4*qt + i for i in range(4)] + [S + 8 + 4*qt + i for i in range(4)]
            p(f"v_max3_f32 {v(T)}, {v(rs[0])}, {v(rs[1])}, {v(rs[2])}")
            p(f"v_max3_f32 {v(T)}, {v(T)}, {v(rs[3])}, {v(rs[4])}")
            p(f"v_max3_f32 {v(T)}, {v(T)}, {v(rs[5])}, {v(rs[6])}")
            p(f"v_max_f32 {v(T)}, {v(T)}, {v(rs[7])}")
            self.xreduce(p, T, "v_max_f32")

    def xreduce(self, p, T, op):
        p(f"v_mov_b32 {v(V_T3)}, {v(T)}")
        p(f"v_permlane32_swap_b32 {v(T)}, {v(V_T3)}")
        p(f"{op} {v(T)}, {v(T)}, {v(V_T3)}")
        p(f"v_mov_b32 {v(V_T3)}, {v(T)}")
        p(f"v_permlane16_swap_b32 {v(T)}, {v(V_T3)}")
        p(f"{op} {v(T)}, {v(T)}, {v(V_T3)}")

    def apply_delta(self, p, S, Sn, init=False):
        T = lambda r: v(V_T0 + (r // 4) % 2)
        for r in range(8):
            src = "0" if init else v(V_NEGM + r)
            p(f"v_sub_f32 {v(V_NEGM+r)}, {src}, {T(r)}")
        for r in range(16):
            p(f"v_sub_f32 {v(S+r)}, {v(S+r)}, {T(r)}")
        if Sn is not None:
            for r in range(16):
                p(f"v_sub_f32 {v(Sn+r)}, {v(Sn+r)}, {T(r)}")

    def fallback(self, p, par, lid, has_next):
        p.begin_side()
        p(f"L_fb{lid}:")
        p("s_nop 15")
        S = V_S[par]; Sn = V_S[1-par]
        self.tile_max(p, S)
        for qt in range(2):
            p(f"v_max_f32 {v(V_T0+qt)}, 0, {v(V_T0+qt)}")
        self.apply_delta(p, S, Sn if has_next else None)
        for qt in range(2):
            p(f"v_sub_f32 {v(V_T0+qt)}, 0, {v(V_T0+qt)}")
            p(f"v_exp_f32 {v(V_T0+qt)}, {v(V_T0+qt)}")
            p(f"v_mul_f32 {v(V_L+qt)}, {v(V_L+qt)}, {v(V_T0+qt)}")
        for r in range(128):
            p(f"v_mul_f32 {v(V_O+r)}, {v(V_O+r)}, {v(V_T0 + (r // 4) % 2)}")
        for x in self.softmax_linear(par):
            p(x)
        p("s_nop 1")
        p(f"s_branch L_ret{lid}")
        p.end_side()

    def gemm_phase(self, p, which, nst, nm, mfma_fn, fills, bartags, valu, xds):
        LEAD = self.o.get("lead", 18)
        SP = self.o.get("sp", 3)
        G = 2 * nm
        N = nst * G
        gb = G - LEAD - 1
        kindg = ["m"] * (N + 64)
        SC = [[] for _ in range(N + 64)]
        VE = [[] for _ in range(N + 64)]
        tail = []
        for i in range(nst):
            bt = bartags(i)
            if bt is not None:
                g = i * G + gb
                kindg[g] = "B"
                VE[g] = [I("WAITTAG", tag=bt), I("s_barrier")]
        for i in range(nst):
            k = 0
            for pre, d, post in fills(i):
                for jj, x in enumerate(d):
                    g = i * G + gb + 3 + k * SP
                    k += 1
                    if g >= N:
                        if jj == 0: tail += pre
                        tail.append(x)
                        if jj == len(d) - 1: tail += post
                        continue
                    assert kindg[g] == "m" and kindg[g-1] == "m" and kindg[g-2] == "m", (i, g)
                    kindg[g] = "d"
                    VE[g] = [x]
                    if jj == 0:
                        for kk, y in enumerate(pre):
                            SC[g - len(pre) + kk].append(y)
                    if jj == len(d) - 1:
                        if g + 1 < N: SC[g + 1] += post
                        else: tail += post
        dsq = []
        for i in range(nst):
            for t in range(nm):
                f = i * nm + t
                for e in range(2):
                    dsq.append((i * G + 2 * t + e - LEAD, self.wread(which, i, t, e, f), i * G + 2 * t))
        for i in range(nst):
            xs = xds(i)
            lo = max(0, (i - 1) * G + gb + 1); hi = i * G + gb - 4
            for k, x in enumerate(xs):
                g = lo + (k * (hi - lo)) // len(xs)
                if x.kind == "ds_write":
                    while kindg[g] != "m": g += 1
                    kindg[g] = "x"
                    VE[g] = [x]
                else:
                    dsq.append((g, x, i * G + gb + 6))
        dsq.sort(key=lambda z: z[0])
        for (g, x, c) in dsq:
            if g < 0: p(x)
        dsq = [z for z in dsq if z[0] >= 0]
        nds = [0] * (N + 64)
        q = 0
        minlead = 99
        for g in range(N):
            if kindg[g] != "m":
                continue
            while q < len(dsq) and dsq[q][0] <= g and nds[g] < 2:
                VE[g].append(dsq[q][1]); nds[g] += 1
                minlead = min(minlead, dsq[q][2] - g)
                q += 1
        assert q == len(dsq)
        assert minlead >= 7, minlead
        for i in range(nst):
            ops = valu(i)
            slots = []
            for g in range(i * G, (i + 1) * G):
                if kindg[g] == "m":
                    slots += [g] * (2 - nds[g])
            mg = [g for g in range(i * G, (i + 1) * G) if kindg[g] == "m"]
            k = 0
            while len(slots) < len(ops):
                slots.append(mg[(k * 7) % len(mg)]); k += 1
            slots.sort()
            for k, x in enumerate(ops):
                VE[slots[(k * len(slots)) // len(ops)]].append(x)
        for f0 in range(2, nst * nm, 2):
            g = 2 * f0 - 1
            while kindg[g] in "dB" or SC[g]:
                g -= 1
            SC[g].append(I("WAITFOR " + ", ".join(a(frag(f), 4) for f in (f0, f0 + 1))))
        for g in range(N):
            i, t, qt = g // G, (g % G) // 2, g % 2
            p(mfma_fn(i, t, qt, a(frag(i * nm + t), 4)))
            abl = self.o.get("gabl", "")
            for x in SC[g] + VE[g]:
                if "D" in abl and x.kind == "dma": continue
                if "B" in abl and x.kind == "barrier": continue
                if "R" in abl and x.kind == "ds_read": continue
                if "W" in abl and x.kind == "ds_write": continue
                if "V" in abl and x.kind == "valu" and (x.mn == "v_mul_f32" or "cvt" in x.mn): continue
                p(x)
        for x in tail:
            p(x)


def gen_attn(opts=None):
    opts = opts or {}
    name = opts.get("name", "attn_kernel")
    p = Prog(name)
    at = Attn(opts)
    thr = opts.get("thr", 0x5f800000)
    p(f"""
    s_cmp_ge_u32 s2, 256
    s_cbranch_scc1 L_end{name}
    s_load_dwordx8 s[4:11], s[0:1], 8
    s_load_dwordx2 s[12:13], s[0:1], 112
    v_lshrrev_b32 v1, 6, v0
    v_readfirstlane_b32 {s(S_W)}, v1
    s_and_b32 {s(S_J)}, s2, 7
    s_lshr_b32 {s(S_PB)}, s2, 3
    v_and_b32 v1, 63, v0
    v_lshlrev_b32 {v(V_LIN)}, 4, v1
    s_lshr_b32 {s(S_HD)}, {s(S_W)}, 1
    s_and_b32 s14, {s(S_W)}, 1
    s_lshl_b32 {s(S_QT)}, {s(S_PB)}, 2
    s_lshl_b32 s14, s14, 1
    s_add_u32 {s(S_QT)}, {s(S_QT)}, s14
    s_waitcnt lgkmcnt(0)
    """)
    stamp(p, 0)
    srd(p, SRD_W, 12, 13, WS_USED)
    srd(p, SRD_Q, 8, 9, 448 * 8192)
    def extras():
        if opts.get("touch", True):
            p(f"""
            v_lshrrev_b32 v1, {4 if opts.get("t64", False) else 3}, v0
            v_min_u32 v1, 13, v1
            v_lshlrev_b32 v1, 13, v1
            v_and_b32 v2, {15 if opts.get("t64", False) else 7}, v0
            v_lshl_add_u32 v1, v2, {6 if opts.get("t64", False) else 7}, v1
            s_mul_i32 s53, {s(S_PB)}, {14*8192}
            s_add_u32 s53, s53, {s(S_WBASE)}
            buffer_load_dword v{V_O+127}, v1, {s(SRD_Q,4)}, s53 offen
            """)
        if opts.get("cpf", True):
            code_prefetch(p, name, f"L_end{name}", 12, 1, V_O + 126)
    p(f"s_lshl_b32 {s(S_WBASE)}, {s(S_J)}, 10")
    extras()
    V_MRD = 3
    p(f"""
    s_mul_i32 s14, {s(S_QT)}, {14*1024}
    s_mul_i32 s15, {s(S_HD)}, {7*1024}
    s_add_u32 s14, s14, s15
    s_add_u32 s14, s14, {WS_XN}
    s_add_u32 s15, s14, {14*1024}
    s_add_u32 s50, s14, 4096
    s_add_u32 s51, s15, 4096
    s_lshl_b32 s52, {s(S_W)}, 11
    s_add_u32 s52, s52, {MODL}
    s_mov_b32 m0, s52
    s_mul_i32 s53, {s(S_HD)}, 896
    s_add_u32 s54, s53, {WS_MOD + 1792 - 1024}
    """)
    mt = ("dma", ("M", 0), "private")
    p(f"buffer_load_dwordx4 {v(V_LIN)}, {s(SRD_W,4)}, s53 offen offset:{WS_MOD} lds", tag=mt)
    p(f"buffer_load_dwordx4 {v(V_LIN)}, {s(SRD_W,4)}, s54 offen offset:1024 lds", tag=mt)
    for ks in range(7):
        for qt in range(2):
            so = (14 + qt) if ks < 4 else (50 + qt)
            p(f"buffer_load_dwordx4 {v(V_H+8*ks+4*qt,4)}, {v(V_LIN)}, {s(SRD_W,4)}, s{so} offen offset:{(ks % 4)*1024}")
    p(f"""
    s_mul_i32 {s(S_M0V)}, {s(S_W)}, 4160
    s_lshl_b32 {s(S_M0K)}, {s(S_W)}, 12
    s_lshl_b32 {s(S_WBASE)}, {s(S_J)}, 10
    v_bfe_u32 v1, v0, 5, 1              ; hh
    v_and_b32 v2, 31, v0
    v_lshlrev_b32 {v(V_TMP)}, 1, v1
    v_xor_b32 v2, v2, {v(V_TMP)}        ; chunk
    v_lshlrev_b32 v1, 3, v1
    v_add_u32 v1, {s(S_W)}, v1          ; 8hh + w
    v_lshlrev_b32 v1, 13, v1
    v_lshl_add_u32 {v(V_WDMA)}, v2, 4, v1
    """)
    for jj in range(1, 4):
        p(f"v_add_u32 {v(V_WDMA+jj)}, {(16*(jj % 2) + 4*(jj//2))*8192 - jj*1024}, {v(V_WDMA)}")
    def emit_wfill(which, st):
        for hf in range(2):
            pre, d = at.wfill(which, st, hf)
            p.extend(pre); p.extend(d)
    emit_wfill("Q", 0)
    p(f"""
    v_bfe_u32 v1, v0, 2, 2
    v_mul_u32_u24 v1, 4160, v1
    v_and_b32 v2, 3, v0
    v_lshl_add_u32 v1, v2, 3, v1
    v_bfe_u32 v2, v0, 4, 2
    v_lshl_add_u32 v1, v2, 9, v1
    v_lshlrev_b32 v{V_MRD}, 5, v2
    v_add_u32 v{V_MRD}, s52, v{V_MRD}
    v_bfe_u32 v2, v0, 4, 1
    v_lshl_add_u32 {v(V_TMP)}, v2, 5, v1
    s_mul_i32 s14, {s(S_HD)}, {SLOT}
    v_add_u32 {v(V_WRD)}, s14, {v(V_TMP)}
    v_xor_b32 {v(V_WRD+1)}, 32, {v(V_WRD)}
    v_add_u32 {v(V_WRD+2)}, {4*SLOT}, {v(V_WRD)}
    v_add_u32 {v(V_WRD+3)}, {4*SLOT}, {v(V_WRD+1)}
    s_lshl_b32 s14, {s(S_W)}, 12
    s_add_u32 s14, s14, {8*SLOT}
    v_add_u32 {v(V_XW)}, s14, {v(V_LIN)}
    v_xor_b32 {v(V_XR)}, 0x2000, {v(V_XW)}
    """)
    MB = 72
    TM = 120
    def modreads(ks):
        M = MB + 16 * (ks % 3)
        rt = ("rd", ("M", 0), "private")
        return [I(f"ds_read_b128 {v(M + 8*k + 4*h, 4)}, v{V_MRD} offset:{1024*(1-k) + 128*ks + 16*h}", tag=rt)
                for k in range(2) for h in range(2)]
    def modulate(ks, pk):
        M = MB + 16 * (ks % 3)
        out = []
        for qt in range(2):
            for d in range(4):
                x = V_H + 8*ks + 4*qt + d
                t = TM + 2 * d
                out.append(I(f"v_lshlrev_b32 v{t}, 16, v{x}"))
                out.append(I(f"v_and_b32 v{t+1}, 0xffff0000, v{x}"))
                if pk:
                    out.append(I(f"v_pk_fma_f32 {v(t,2)}, {v(t,2)}, {v(M+2*d,2)}, {v(M+8+2*d,2)}"))
                else:
                    out.append(I(f"v_fma_f32 v{t}, v{t}, v{M+2*d}, v{M+8+2*d}"))
                    out.append(I(f"v_fma_f32 v{t+1}, v{t+1}, v{M+2*d+1}, v{M+8+2*d+1}"))
                out.append(I(f"v_cvt_pk_bf16_f32 v{x}, v{t}, v{t+1}"))
        return out
    NUP = opts.get("nup", 4)
    stamp(p, 1)
    p(I("WAITTAG", tag=[("M", 0)]))
    stamp(p, 2)
    p.extend(modreads(0)); p.extend(modreads(1)); p.extend(modreads(2))
    assert NUP >= 4
    for ks in range(NUP):
        p.extend(modulate(ks, True))
        if ks + 3 < 7:
            p.extend(modreads(ks + 3))
        if ks == 0:
            emit_wfill("Q", 1)
        if ks == 2:
            emit_wfill("Q", 2)
    stamp(p, 3)
    p(I("WAITTAG", tag=at.wkeys("Q", 0)))
    p("s_barrier")
    stamp(p, 4)
    srd(p, SRD_O, 10, 11, 4096 * 896)
    p(f"""
    s_lshl_b32 s14, {s(S_J)}, 20
    s_add_u32 {s(SRD_K)}, s4, s14
    s_addc_u32 {s(SRD_K+1)}, s5, 0
    s_mov_b32 {s(SRD_K+2)}, 0x100000
    s_mov_b32 {s(SRD_K+3)}, 0x20000
    s_add_u32 {s(SRD_V)}, s6, s14
    s_addc_u32 {s(SRD_V+1)}, s7, 0
    s_mov_b32 {s(SRD_V+2)}, 0x100000
    s_mov_b32 {s(SRD_V+3)}, 0x20000
    s_mov_b32 {s(S_KOFF)}, 0
    s_mov_b32 {s(S_VOFF)}, 0
    s_mov_b32 {s(S_THR)}, {thr}
    s_lshl_b32 s15, {s(S_W)}, 3
    """)
    setup = f"""
    v_bfe_u32 v1, v0, 5, 1
    v_and_b32 v2, 31, v0
    v_add_u32 v16, s15, v1
    v_lshlrev_b32 v17, 9, v16
    v_and_b32 v16, 15, v16
    v_xor_b32 v16, v16, v2
    v_lshl_add_u32 {v(V_KDMA)}, v16, 4, v17
    v_xor_b32 {v(V_KDMA+1)}, 32, {v(V_KDMA)}
    v_xor_b32 {v(V_KDMA+2)}, 64, {v(V_KDMA)}
    v_xor_b32 {v(V_KDMA+3)}, 96, {v(V_KDMA)}
    v_lshlrev_b32 v16, 2, v1
    v_add_u32 v16, {s(S_W)}, v16
    v_lshlrev_b32 v16, 9, v16
    v_lshlrev_b32 v17, 1, v1
    v_xor_b32 v17, v17, v2
    v_lshl_add_u32 {v(V_VDMA)}, v17, 4, v16
    v_add_u32 {v(V_VDMA+1)}, 3072, {v(V_VDMA)}
    v_add_u32 {v(V_VDMA+2)}, 6144, {v(V_VDMA)}
    v_add_u32 {v(V_VDMA+3)}, 9216, {v(V_VDMA)}
    v_and_b32 v16, 15, v0
    v_bfe_u32 v17, v0, 4, 2
    v_xor_b32 v17, v17, v16
    v_lshlrev_b32 v16, 9, v16
    v_add_u32 v16, {4*SLOT}, v16
    v_lshl_add_u32 {v(V_KRD)}, v17, 4, v16
    v_xor_b32 {v(V_KRD+1)}, 64, {v(V_KRD)}
    v_xor_b32 {v(V_KRD+2)}, 0x80, {v(V_KRD)}
    v_xor_b32 {v(V_KRD+3)}, 0xc0, {v(V_KRD)}
    v_mov_b32 {v(V_VRD)}, {v(V_TMP)}
    v_xor_b32 {v(V_VRD+1)}, 32, {v(V_TMP)}
    v_mov_b32 {v(V_L)}, 0
    v_mov_b32 {v(V_L+1)}, 0
    """
    setup = [I(x.strip()) for x in setup.strip().split("\n")]
    assert (4 * SLOT) % 256 == 0
    def q_mfma(i, t, qt, fr):
        D = v(V_O + 8*t + 4*qt, 4)
        Bop = v(V_H + 8*i + 4*qt, 4) if i < 7 else a(A_HP + 8*(i-7) + 4*qt, 4)
        return f"v_mfma_f32_16x16x32_bf16 {D}, {fr}, {Bop}, {D if i else 0}"
    def q_fills(i):
        st = i + 3
        if st < 14:
            return [at.wfill("Q", st, hf) + ([],) for hf in range(2)]
        if i == 11: return [at.kvfill("K", 0), at.kvfill("K", 1)]
        if i == 12: return [at.kvfill("K", 2)]
        return [at.kvfill("V", 0), at.kvfill("V", 1, range(at.nafter))]
    def q_bar(i):
        ks = at.wkeys("Q", i + 1) if i < 13 else [at.key("K", 0)]
        i -= 1
        if 0 <= i < 8:
            ks = ks + [(8, i // 2)] if i % 2 == 0 else ks + [("rd", 8, i // 2)]
        return ks
    def q_valu(i):
        out = []
        if NUP + i < 7:
            out += modulate(NUP + i, False)
        if i in (8, 9, 10):
            n = len(setup)
            out += setup[(i-8)*n//3:(i-7)*n//3]
        return out
    def q_xds(i):
        out = []
        i -= 1
        if 0 <= i < 8:
            rho = i // 2
            for k in range(4):
                u, qt = 2*rho + k // 2, k % 2
                if u >= 7: continue
                if i % 2 == 0:
                    out.append(I(f"ds_write_b128 {v(V_XW)}, {v(V_H + 8*u + 4*qt, 4)} offset:{1024*k}", tag=("wr", (8, rho))))
                else:
                    out.append(I(f"ds_read_b128 {a(A_HP + 8*u + 4*qt, 4)}, {v(V_XR)} offset:{1024*k}", tag=("rd", (8, rho))))
        return out
    at.gemm_phase(p, "Q", 14, 16, q_mfma, q_fills, q_bar, q_valu, q_xds)
    stamp(p, 5)
    p("s_load_dwordx4 s[4:7], s[0:1], 48")
    p("s_load_dwordx2 s[8:9], s[0:1], 72")
    p("s_waitcnt lgkmcnt(0)")
    for g in range(at.gB + 1, 64):
        for (f, e, nx) in at.ds.get(g, []):
            p(at.kread(lambda it: 0, 0, f))
    p(f"""
    v_bfe_u32 v1, v0, 5, 1
    v_and_b32 v2, 31, v0
    v_lshlrev_b32 v3, 1, v1
    v_xor_b32 v3, v3, v2
    v_lshlrev_b32 v1, 2, v1
    v_add_u32 v1, {s(S_W)}, v1
    v_mul_u32_u24 v1, 896, v1
    v_lshl_add_u32 v1, v3, 4, v1
    v_mov_b32 v3, 0x40000000
    v_cmp_gt_u32 vcc, 28, v2
    v_cndmask_b32 {v(V_WDMA)}, v3, v1, vcc
    v_add_u32 {v(V_WDMA+1)}, {8*896 - 1024}, {v(V_WDMA)}
    v_add_u32 {v(V_WDMA+2)}, {16*896 - 2048}, {v(V_WDMA)}
    v_add_u32 {v(V_WDMA+3)}, {24*896 - 3072}, {v(V_WDMA)}
    s_mul_i32 {s(S_WBASE)}, {s(S_J)}, {512*896}
    """)
    assert (8 * SLOT) & 0x3fff == (8 * SLOT) % 16384 and ((8 * SLOT) % 16384) + 4096 <= 8192
    for sx in range(8):
        for qt in range(2):
            X = V_O + 16*sx + 4*qt
            Y = X + 8
            p(f"v_cvt_pk_bf16_f32 v{X}, v{X}, v{X+1}")
            p(f"v_cvt_pk_bf16_f32 v{X+1}, v{X+2}, v{X+3}")
            p(f"v_cvt_pk_bf16_f32 v{Y}, v{Y}, v{Y+1}")
            p(f"v_cvt_pk_bf16_f32 v{Y+1}, v{Y+2}, v{Y+3}")
        for qt in range(2):
            X = V_O + 16*sx + 4*qt
            Y = X + 8
            p(f"v_permlane32_swap_b32 v{X}, v{Y}")
            p(f"v_permlane32_swap_b32 v{X+1}, v{Y+1}")
        for qt in range(2):
            X = V_O + 16*sx + 4*qt
            Y = X + 8
            p(f"v_permlane16_swap_b32 v{X}, v{Y}")
            p(f"v_permlane16_swap_b32 v{X+1}, v{Y+1}")
        for qt in range(2):
            X = V_O + 16*sx + 4*qt
            Y = X + 8
            for k, r in enumerate((X, X+1, Y, Y+1)):
                p(f"v_accvgpr_write_b32 a{A_Q + 8*sx + 4*qt + k}, v{r}")
    stamp(p, 6)
    lid = [opts.get("lid0", 0)]
    def B(c, fn, aval=None, **kw):
        at.body(p, c, fn, aval=aval, lid=lid[0], **kw)
        if aval != -1:
            at.fallback(p, c % 2, lid[0], aval != 63)
        lid[0] += 1
    B(3, lambda it: -1, aval=-1)
    if opts.get("touch", True):
        p(f"""
        v_min_u32 v1, {223 if opts.get("t64", False) else 111}, v0
        v_lshlrev_b32 v1, {6 if opts.get("t64", False) else 7}, v1
        s_mul_i32 s53, {s(S_PB)}, {112*128}
        s_add_u32 s53, s53, {s(S_WBASE)}
        buffer_load_dword v2, v1, {s(SRD_O,4)}, s53 offen
        """)
    exv = None
    if opts.get("warm", True) and opts.get("wloop", False):
        srd(p, 52, 6, 7, 2048 * 4096)
        p(f"""
        v_and_b32 v16, 63, v0
        v_min_u32 v16, 4, v16
        s_mul_i32 s14, {s(S_W)}, 640
        s_lshl_b32 s59, s2, 15
        s_add_u32 s59, s59, s14
        v_lshlrev_b32 v16, 7, v16
        """)
        exv = [(at.gB, I("buffer_load_dword v17, v16, s[52:55], s59 offen"))]
    B(0, lambda it: 0, aval=0, extra_scalar=[(60, I(f"s_mov_b32 {s(S_CNT)}, 14"))])
    p.begin_loop(14)
    p(f"L_loop{name}:")
    for c in range(1, 5):
        ex = [(60, I(f"s_sub_u32 {s(S_CNT)}, {s(S_CNT)}, 1"))] if c == 2 else None
        if c == 3 and exv: ex = [(60, I("s_add_u32 s59, s59, 2560"))]
        B(c % 4, (lambda c: lambda it: 4*it + c)(c), extra_scalar=ex, extra_valu=exv if c == 1 else None)
    p(f"s_cmp_lg_u32 {s(S_CNT)}, 0")
    p(f"s_cbranch_scc1 L_loop{name}")
    p.end_loop()
    for av in range(57, 64):
        B(av % 4, (lambda av: lambda it: av)(av), aval=av)
    stamp(p, 7)
    for qt in range(2):
        at.xreduce(p, V_L + qt, "v_add_f32")
        p(f"v_rcp_f32 v{2+qt}, {v(V_L+qt)}")
    def conv(u):
        out = []
        for qt in range(2):
            X = V_O + 16*u + 4*qt
            Y = X + 8
            for r in (X, X+1, X+2, X+3, Y, Y+1, Y+2, Y+3):
                out.append(I(f"v_mul_f32 v{r}, v{r}, v{2+qt}"))
            out.append(I(f"v_cvt_pk_bf16_f32 v{X}, v{X}, v{X+1}"))
            out.append(I(f"v_cvt_pk_bf16_f32 v{X+1}, v{X+2}, v{X+3}"))
            out.append(I(f"v_cvt_pk_bf16_f32 v{X+2}, v{Y}, v{Y+1}"))
            out.append(I(f"v_cvt_pk_bf16_f32 v{X+3}, v{Y+2}, v{Y+3}"))
        return out
    p.extend(conv(0)); p.extend(conv(1))
    ACC = V_H
    WV = V_O + 8
    p(f"""
    s_mul_i32 s14, s2, {49*128}
    s_mul_i32 s15, s2, {25*128}
    s_lshl_b32 s59, s2, 8
    """)
    p("s_lshl_b32 s58, s2, 15")
    wops = [I(x) for x in (f"v_lshl_add_u32 v{WV}, v0, 7, s58", f"v_min_u32 v{WV+1}, 48, v0", f"v_lshl_add_u32 v{WV+1}, v{WV+1}, 7, s14",
                           f"v_min_u32 v{WV+2}, 24, v0", f"v_lshl_add_u32 v{WV+2}, v{WV+2}, 7, s15",
                           f"v_min_u32 v{WV+2}, {896*896-4}, v{WV+2}")]
    if opts.get("tail_code"):
        l0, l1 = opts["tail_code"]
        p("s_getpc_b64 s[10:11]")
        p(f"L_tc{name}:")
        wops += [I(x) for x in (f"v_min_u32 v{WV+3}, 1, v0", f"v_lshl_add_u32 v{WV+3}, v{WV+3}, 7, s59",
                                f"v_min_u32 v{WV+3}, {l1}-{l0}-4, v{WV+3}", f"v_add_u32 v{WV+3}, {l0}-L_tc{name}, v{WV+3}")]
    def o_mfma(i, t, qt, fr):
        D = v(ACC + 8*t + 4*qt, 4)
        Bop = v(V_O + 16*i + 4*qt, 4) if i < 8 else a(A_Q + 8*(i-8) + 4*qt, 4)
        return f"v_mfma_f32_16x16x32_bf16 {D}, {fr}, {Bop}, {D if i else 0}"
    def o_fills(i):
        st = i + 3
        if i == 13 and opts.get("warm", True):
            ld = [I(f"global_load_dword v{WV+5}, v{WV+1}, s[4:5]"),
                  I(f"global_load_dword v{WV+6}, v{WV+2}, s[8:9]")]
            if not opts.get("wloop", False):
                ld.append(I(f"global_load_dword v{WV+4}, v{WV}, s[6:7]"))
            if opts.get("tail_code"):
                ld.append(I(f"global_load_dword v{WV+7}, v{WV+3}, s[10:11]"))
            return [([], ld, [])]
        return [at.wfill("O", st, hf) + ([],) for hf in range(2)] if st < 16 else []
    def o_bar(i):
        if i == 15: return None
        ks = at.wkeys("O", i + 1)
        i -= 1
        if 0 <= i < 8:
            ks = ks + [(8, 10 + i // 2)] if i % 2 == 0 else ks + [("rd", 8, 10 + i // 2)]
        return ks
    def o_valu(i):
        if i == 12 and opts.get("warm", True):
            return wops
        return conv(i + 2) if i + 2 < 8 else []
    def o_xds(i):
        i -= 1
        if i >= 8 or i < 0: return []
        rho = i // 2
        out = []
        for k in range(4):
            u, qt = 2*rho + k // 2, k % 2
            if i % 2 == 0:
                out.append(I(f"ds_write_b128 {v(V_XW)}, {v(V_O + 16*u + 4*qt, 4)} offset:{1024*k}", tag=("wr", (8, 10 + rho))))
            else:
                out.append(I(f"ds_read_b128 {a(A_Q + 8*u + 4*qt, 4)}, {v(V_XR)} offset:{1024*k}", tag=("rd", (8, 10 + rho))))
        return out
    at.gemm_phase(p, "O", 16, 14, o_mfma, o_fills, o_bar, o_valu, o_xds)
    stamp(p, 8)
    p(f"""
    s_lshl_b32 s14, {s(S_J)}, 7
    s_add_u32 s14, s14, {s(S_QT)}
    s_mul_i32 s14, s14, {14*1024}
    s_mul_i32 s15, {s(S_HD)}, {7*1024}
    s_add_u32 s14, s14, s15
    s_add_u32 s14, s14, {WS_PART}
    s_add_u32 s15, s14, {14*1024}
    s_add_u32 s50, s14, 4096
    s_add_u32 s51, s15, 4096
    """)
    for uu in range(7):
        for qt in range(2):
            X = ACC + 16*uu + 4*qt
            Y = X + 8
            p(f"v_cvt_pk_bf16_f32 v{X}, v{X}, v{X+1}")
            p(f"v_cvt_pk_bf16_f32 v{X+1}, v{X+2}, v{X+3}")
            p(f"v_cvt_pk_bf16_f32 v{X+2}, v{Y}, v{Y+1}")
            p(f"v_cvt_pk_bf16_f32 v{X+3}, v{Y+2}, v{Y+3}")
            so = (14 + qt) if uu < 4 else (50 + qt)
            p(f"buffer_store_dwordx4 {v(X,4)}, {v(V_LIN)}, {s(SRD_W,4)}, s{so} offen offset:{(uu % 4)*1024}" + (" sc1" if opts.get("fuse") else ""))
    nst = 10
    if opts.get("fuse"):
        p("s_load_dwordx2 s[4:5], s[0:1], 0")
        p("s_waitcnt lgkmcnt(0)")
        srd(p, SRD_K, 4, 5, 2048 * 896)
        p(f"""
        s_lshl_b32 s14, {s(S_PB)}, 7
        s_lshl_b32 s15, {s(S_J)}, 2
        s_add_u32 s14, s14, s15
        s_add_u32 s14, s14, {WS_FLAG}
        """)
        signal(p, SRD_W, 14, S_W, "r" + name)
        stamp(p, 9)
        emit_red_pre(p, S_W, S_PB, S_J, SRD_W, SRD_K)
        emit_red(p, S_W, S_PB, SRD_W, MODL)
        nst = 13
    stamp_dump(p, opts.get("slot", 1), nst, SRD_W, S_W)
    p(f"L_end{name}:")
    p("s_endpgm")
    if opts.get("gabl"):
        p.check_lds = lambda: None
    p.finalize()
    return p, f"; @launch kernel={name} grid=(256,1,1) block=(256,1,1) lds={LDS_BYTES}\n"
```

```python
import sys
sys.path.insert(0, "work")
from k_attn import *
from k_z import gelu_pairs, C1, C2
from k_prep import LOG2E, QSCALE, xreduce
from k_red import emit_red_early
NSTAMP = 16

def build_mega(opts):
    opts = opts or {}
    name = opts.get("name", "adaLN_cond__gqa_block_cached__mixer_gmlp__prompt_kernel")
    p = Prog(name)
    at = Attn(opts)
    LD = opts.get("ld", " sc1")
    thr = opts.get("thr", 0x5f800000)
    SRD_D = 92
    p(f"""
    s_cmp_ge_u32 s2, 256
    s_cbranch_scc1 L_end{name}
    s_load_dwordx4 s[52:55], s[0:1], 80
    s_load_dwordx2 s[50:51], s[0:1], 0
    s_load_dwordx8 s[4:11], s[0:1], 8
    s_load_dwordx4 s[56:59], s[0:1], 104
    v_lshrrev_b32 v1, 6, v0
    v_readfirstlane_b32 {s(S_W)}, v1
    s_and_b32 {s(S_J)}, s2, 7
    s_lshr_b32 {s(S_PB)}, s2, 3
    v_and_b32 v1, 63, v0
    v_lshlrev_b32 {v(V_LIN)}, 4, v1
    s_lshr_b32 {s(S_HD)}, {s(S_W)}, 1
    s_and_b32 s14, {s(S_W)}, 1
    s_lshl_b32 {s(S_QT)}, {s(S_PB)}, 2
    s_lshl_b32 s14, s14, 1
    s_add_u32 {s(S_QT)}, {s(S_QT)}, s14
    v_mov_b32 v2, 0x40000000
    v_cmp_gt_u32 vcc, 56, v1
    v_cndmask_b32 v19, v2, {v(V_LIN)}, vcc
    v_add_u32 v18, 144, v19
    v_add_u32 v17, 288, v19
    v_add_u32 v16, 432, v19
    s_lshl_b32 s14, {s(S_PB)}, 2
    s_add_u32 s14, s14, {s(S_W)}
    s_mul_i32 s14, s14, {16*896}            ; x soffset
    s_mul_i32 s15, {s(S_W)}, {SLOT}
    s_add_u32 s15, s15, {4*SLOT}
    s_waitcnt lgkmcnt(0)
    """)
    stamp(p, 0)
    ep = I(f"s_load_dwordx2 s[100:101], s[58:59], {WS_EP}"); ep.kind = "salu"
    p(ep)
    srd(p, SRD_W, 58, 59, WS_USED)
    srd(p, SRD_D, 56, 57, 256)
    srd(p, SRD_V, 54, 55, 448 * 5376)
    srd(p, SRD_O, 52, 53, 896)
    srd(p, SRD_K, 50, 51, 2048 * 896 + 432)
    p(f"""
    s_sub_u32 {s(SRD_K)}, {s(SRD_K)}, 432
    s_subb_u32 {s(SRD_K+1)}, {s(SRD_K+1)}, 0
    s_mov_b32 s31, 0
    v_and_b32 v127, 31, v0
    v_lshlrev_b32 v125, 3, v127
    s_mov_b32 s32, 0x40000000
    s_mov_b32 s33, 0x40000000
    """)
    MW = 72; CR = 100; MC = 20; MA = 36; MT = 44
    def raw(txt):
        x = I(txt); x.kind = "salu"; x.writes = []; return x
    p(f"""
    v_and_b32 v{MT}, 3, v0
    v_lshrrev_b32 v{MT+1}, 2, v0
    v_mul_u32_u24 v{MT+2}, 14, v{MT+1}
    v_mul_u32_u24 v{MT+3}, {7*5376}, v{MT+1}
    v_lshl_add_u32 v{MT+3}, v{MT}, 4, v{MT+3}
    s_lshl_b32 s12, s2, 6
    v_and_b32 v{MT+2}, -4, v{MT+2}
    s_cmp_ge_u32 s2, 28
    s_cbranch_scc1 L_mod1r{name}
    """)
    def wloads(f):
        for i in range(7):
            p(f(f"buffer_load_dwordx4 {v(MW+4*i,4)}, v{MT+3}, {s(SRD_V,4)}, s12 offen"))
            if i < 6:
                p(f"s_add_u32 s12, s12, 5376")
        p(f(f"buffer_load_dwordx4 {v(CR,4)}, v{MT+2}, {s(SRD_O,4)}, 0 offen"))
    wloads(raw)
    p(f"L_mod1r{name}:")
    XK = [(4, -1), (5, -1), (6, -1), (7, -1)]
    NX0 = opts.get("nx0", 16)
    def xdma(ms):
        for m in ms:
            if m % 4 == 0:
                p(f"s_add_u32 m0, s15, {m*1040}")
            p(f"buffer_load_dwordx4 v{16 + m % 4}, {s(SRD_K,4)}, s14 offen offset:{(m % 4)*1040} lds", tag=("dma", XK))
            if m % 4 == 3:
                p(f"s_add_u32 s14, s14, {4*896}")
    xdma(range(NX0))
    def modblock(urgent, MW=MW, CR=CR, MC=MC, MA=MA, MT=MT, pre=()):
        tg = ("u" if urgent else "n") + name
        st_ = opts.get("pst") and urgent
        if urgent:
            p("s_cmp_ge_u32 s2, 28")
        else:
            p("s_sub_u32 s12, s2, 28")
            p("s_cmp_ge_u32 s12, 56")
        p(f"s_cbranch_scc1 L_mod2r{tg}")
        p.extend(pre)
        p(f"s_mov_b32 s13, {f2u(-LOG2E)}")
        p(f"v_bfe_u32 v{MT+1}, v0, 2, 1")
        p(f"v_lshlrev_b32 v{MT+1}, 4, v{MT+1}")
        if st_: stamp(p, 5)
        if urgent:
            p(raw(f"s_waitcnt vmcnt({NX0})"))
        if st_: stamp(p, 6)
        for j in range(4):
            p(f"v_alignbit_b32 v{CR+j}, v{CR+min(j+1,3)}, v{CR+j}, v{MT+1}")
        for i in range(7):
            p(f"v_lshlrev_b32 v{MC+i}, 16, v{CR+i//2}" if i % 2 == 0 else f"v_and_b32 v{MC+i}, 0xffff0000, v{CR+i//2}")
        for i in range(7):
            p(f"v_mul_f32 v{MC+8+i}, s13, v{MC+i}")
        for i in range(7):
            p(f"v_exp_f32 v{MC+8+i}, v{MC+8+i}")
        for i in range(7):
            p(f"v_add_f32 v{MC+8+i}, 1.0, v{MC+8+i}")
        for i in range(7):
            p(f"v_rcp_f32 v{MC+8+i}, v{MC+8+i}")
        for i in range(7):
            p(f"v_mul_f32 v{MC+8+i}, v{MC+8+i}, v{MC+i}")
            p(f"v_cvt_pk_bf16_f32 v{MC+8+i}, v{MC+8+i}, v{MC+8+i}")
            p(f"v_lshlrev_b32 v{MT+8+2*i}, 16, v{MC+8+i}")
        for i in range(7):
            for d in range(4):
                w = MW + 4*i + d
                t = MC + 2 * d
                p(f"v_lshlrev_b32 v{t}, 16, v{w}")
                p(f"v_and_b32 v{t+1}, 0xffff0000, v{w}")
                if i == 0:
                    p(f"v_pk_mul_f32 {v(MA+2*d,2)}, {v(t,2)}, {v(MT+8,2)} op_sel_hi:[1,0]")
                else:
                    p(f"v_pk_fma_f32 {v(MA+2*d,2)}, {v(t,2)}, {v(MT+8+2*i,2)}, {v(MA+2*d,2)} op_sel_hi:[1,0,1]")
        for sh in (4, 8):
            for k in range(8):
                p(f"v_add_f32_dpp v{MA+k}, v{MA+k}, v{MA+k} row_ror:{sh} row_mask:0xf bank_mask:0xf")
        if st_: stamp(p, 7)
        p(f"""
        v_lshrrev_b32 v{MT+1}, 4, v0
        v_lshlrev_b32 v{MT+1}, 7, v{MT+1}
        v_and_b32 v{MT}, 3, v0
        v_lshl_add_u32 v{MT}, v{MT}, 5, v{MT+1}
        v_add_u32 v{MT}, {MODL + 4096}, v{MT}
        ds_write_b128 v{MT}, {v(MA,4)}
        ds_write_b128 v{MT}, {v(MA+4,4)} offset:16
        v_lshlrev_b32 v{MT+1}, 2, v0
        v_add_u32 v{MT+1}, {MODL + 4096}, v{MT+1}
        """)
        p(raw("s_waitcnt lgkmcnt(0)"))
        p(raw("s_barrier"))
        p(f"s_cmp_lg_u32 {s(S_W)}, 0")
        p(f"s_cbranch_scc1 L_mod2r{tg}")
        if st_: stamp(p, 8)
        for i in range(8):
            p(f"ds_read_b32 v{MW+i}, v{MT+1} offset:{256*i}")
        for st in (4, 2, 1):
            for i in range(st):
                p(f"v_add_f32 v{MW+i}, v{MW+i}, v{MW+i+st}")
        p(f"""
        v_mov_b32 v{MW+1}, v{MW}
        v_permlane32_swap_b32 v{MW}, v{MW+1}
        v_add_f32 v{MW}, v{MW}, v{MW+1}
        v_cvt_pk_bf16_f32 v{MW}, v{MW}, v{MW}
        v_lshlrev_b32 v{MW}, 16, v{MW}
        v_add_f32 v{MW+1}, 1.0, v{MW}
        v_cvt_pk_bf16_f32 v{MW+1}, v{MW+1}, v{MW+1}
        v_lshlrev_b32 v{MW+1}, 16, v{MW+1}
        s_sub_u32 s12, s2, {14 if urgent else 56}
        s_cmp_lt_u32 s12, 14
        s_cselect_b64 vcc, -1, 0
        v_cndmask_b32 v{MW}, v{MW}, v{MW+1}, vcc
        """)
        if urgent:
            p(f"""
            s_add_u32 s12, s100, 1
            s_add_u32 s13, s101, 1
            s_and_b32 s13, s13, 0xffff
            v_or_b32 v{MW}, s13, v{MW}
            v_mov_b32 v{MW+1}, s12
            s_lshl_b32 s33, s2, 8
            s_add_u32 s33, s33, {WS_MG}
            L_mod2r{tg}:
            buffer_store_dwordx2 {v(MW,2)}, v125, {s(SRD_W,4)}, s33 offen sc1
            """)
        else:
            p(f"""
            s_lshl_b32 s12, s2, 7
            v_and_b32 v{MT}, 31, v0
            v_lshlrev_b32 v{MT}, 2, v{MT}
            s_mov_b32 s31, 1
            """)
            p(raw(f"buffer_store_dword v{MW}, v{MT}, {s(SRD_W,4)}, s12 offen offset:{WS_MOD} sc1"))
            p(f"L_mod2r{tg}:")
    assert NX0 == 16
    V_MRD = 3
    p(f"s_mul_i32 {s(S_M0V)}, {s(S_W)}, 4160")
    p(f"""
    v_bfe_u32 v1, v0, 5, 1              ; hh
    v_and_b32 v2, 31, v0
    v_lshlrev_b32 {v(V_TMP)}, 1, v1
    v_xor_b32 v2, v2, {v(V_TMP)}        ; chunk
    v_lshlrev_b32 v1, 3, v1
    v_add_u32 v1, {s(S_W)}, v1          ; 8hh + w
    v_lshlrev_b32 v1, 13, v1
    v_lshl_add_u32 {v(V_WDMA)}, v2, 4, v1
    """)
    for jj in range(1, 4):
        p(f"v_add_u32 {v(V_WDMA+jj)}, {(16*(jj % 2) + 4*(jj//2))*8192 - jj*1024}, {v(V_WDMA)}")
    def emit_wfill(which, st):
        for hf in range(2):
            pre, d = at.wfill(which, st, hf)
            p.extend(pre); p.extend(d)
    p(f"""
    s_mul_i32 s52, {s(S_HD)}, 896
    s_add_u32 s52, s52, {MODL}
    v_bfe_u32 v1, v0, 2, 2
    v_mul_u32_u24 v1, 4160, v1
    v_and_b32 v2, 3, v0
    v_lshl_add_u32 v1, v2, 3, v1
    v_bfe_u32 v2, v0, 4, 2
    v_lshl_add_u32 v1, v2, 9, v1
    v_lshlrev_b32 v{V_MRD}, 5, v2
    v_add_u32 v{V_MRD}, s52, v{V_MRD}
    v_and_b32 v120, 15, v0
    v_mul_u32_u24 v120, 1040, v120
    v_lshl_add_u32 v120, v2, 4, v120
    s_and_b32 s14, {s(S_W)}, 1
    s_mul_i32 s14, s14, {2*SLOT}
    s_mul_i32 s15, {s(S_HD)}, 448
    s_add_u32 s14, s14, s15
    s_add_u32 s14, s14, {4*SLOT}
    v_add_u32 v120, s14, v120
    v_bfe_u32 v2, v0, 4, 1
    v_lshl_add_u32 {v(V_TMP)}, v2, 5, v1
    s_mul_i32 s14, {s(S_HD)}, {SLOT}
    v_add_u32 {v(V_WRD)}, s14, {v(V_TMP)}
    v_xor_b32 {v(V_WRD+1)}, 32, {v(V_WRD)}
    v_add_u32 {v(V_WRD+2)}, {4*SLOT}, {v(V_WRD)}
    v_add_u32 {v(V_WRD+3)}, {4*SLOT}, {v(V_WRD+1)}
    s_lshl_b32 s14, {s(S_W)}, 12
    s_add_u32 s14, s14, {8*SLOT}
    v_add_u32 {v(V_XW)}, s14, {v(V_LIN)}
    v_xor_b32 {v(V_XR)}, 0x2000, {v(V_XW)}
    """)
    modblock(True)
    if opts.get("pst"): stamp(p, 9)
    xdma(range(NX0, 16))
    srd(p, SRD_Q, 8, 9, 448 * 8192)
    V_MRD = 3
    p(f"""
    s_mul_i32 {s(S_M0V)}, {s(S_W)}, 4160
    s_lshl_b32 {s(S_M0K)}, {s(S_W)}, 12
    s_lshl_b32 {s(S_WBASE)}, {s(S_J)}, 10
    v_lshrrev_b32 v1, 3, v0
    v_min_u32 v1, 13, v1
    v_lshlrev_b32 v1, 13, v1
    v_and_b32 v2, 7, v0
    v_lshl_add_u32 v1, v2, 7, v1
    s_mul_i32 s53, {s(S_PB)}, {14*8192}
    s_add_u32 s53, s53, {s(S_WBASE)}
    buffer_load_dword v{V_O+127}, v1, {s(SRD_Q,4)}, s53 offen
    """)
    code_prefetch(p, name, f"L_end{name}", 22, 1, V_O + 126)
    if opts.get("wmt", True):
        p(f"""
        v_subrev_u32 v1, 192, v0
        v_lshrrev_b32 v2, 5, v1
        v_mul_u32_u24 v2, 5376, v2
        v_and_b32 v1, 31, v1
        v_min_u32 v1, 27, v1
        v_lshl_add_u32 v1, v1, 7, v2
        v_mov_b32 v2, 0x40000000
        v_cmp_lt_u32 vcc, 191, v0
        v_cndmask_b32 v1, v2, v1, vcc
        s_sub_u32 s53, s2, 28
        s_min_u32 s53, s53, 0x1000
        s_mul_i32 s53, s53, {2*5376}
        buffer_load_dword v{V_O+125}, v1, {s(SRD_V,4)}, s53 offen offset:1792
        """)
    NE = opts.get("nearly", 1)
    for st in range(NE):
        emit_wfill("Q", st)
    p(I("WAITTAG", tag=XK))
    p("s_barrier")
    for ks in range(7):
        for qt in range(2):
            p(f"ds_read_b128 {v(V_H+8*ks+4*qt,4)}, v120 offset:{qt*SLOT + 64*ks}", tag=("rd", XK))
    if NE < 1: emit_wfill("Q", 0)
    F = V_O
    SA = 112
    for k in range(56):
        qt = (k // 4) % 2
        p(f"v_lshlrev_b32 v{F+2*k}, 16, v{V_H+k}")
        p(f"v_and_b32 v{F+2*k+1}, 0xffff0000, v{V_H+k}")
        if k in (0, 4):
            p(f"v_pk_mul_f32 {v(SA+4+2*qt,2)}, {v(F+2*k,2)}, {v(F+2*k,2)}")
        else:
            p(f"v_pk_add_f32 {v(SA+2*qt,2)}, {v(F+2*k-2,2) if k in (1, 5) else v(SA+2*qt,2)}, {v(F+2*k,2)}")
            p(f"v_pk_fma_f32 {v(SA+4+2*qt,2)}, {v(F+2*k,2)}, {v(F+2*k,2)}, {v(SA+4+2*qt,2)}")
    for k in range(4):
        p(f"v_add_f32 v{SA+k}, v{SA+2*k}, v{SA+2*k+1}")
    for k in range(4):
        xreduce(p, SA + k, 121 + k, "v_add_f32")
    p(f"ds_write_b128 {v(V_XW)}, {v(SA,4)}", tag=("wr", (8, -1)))
    p("s_waitcnt lgkmcnt(0)")
    p("s_barrier")
    p(f"ds_read_b128 {v(SA+4,4)}, {v(V_XR)}", tag=("rd", (8, -1)))
    if NE < 2: emit_wfill("Q", 1)
    for qt in range(2):
        m_, r_ = 120 + 4*qt, 122 + 4*qt
        p(f"v_add_f32 v{SA+qt}, v{SA+qt}, v{SA+4+qt}")
        p(f"v_add_f32 v{SA+2+qt}, v{SA+2+qt}, v{SA+6+qt}")
        p(f"v_mul_f32 v{m_}, {f2u(1.0/448)}, v{SA+qt}")
        p(f"v_mul_f32 v{r_}, {f2u(1.0/448)}, v{SA+2+qt}")
        p(f"v_fma_f32 v{r_}, -v{m_}, v{m_}, v{r_}")
        p(f"v_max_f32 v{r_}, 0, v{r_}")
        p(f"v_add_f32 v{r_}, {f2u(1e-5)}, v{r_}")
        p(f"v_rsq_f32 v{r_}, v{r_}")
        p(f"v_mul_f32 v{m_}, -v{m_}, v{r_}")
    for k in range(56):
        qt = (k // 4) % 2
        p(f"v_pk_fma_f32 {v(F+2*k,2)}, {v(F+2*k,2)}, {v(122+4*qt,2)}, {v(120+4*qt,2)} op_sel_hi:[1,0,0]")
    NPRE = opts.get("npre", 3)
    for st in range(2, NPRE):
        emit_wfill("Q", st)
    p(f"""
    v_min_u32 v1, {55*16}, {v(V_LIN)}
    s_mul_i32 s14, {s(S_W)}, 1792
    s_add_u32 s14, s14, {WS_MG}
    s_add_u32 s12, s100, 1
    s_add_u32 s13, s101, 1
    s_and_b32 s13, s13, 0xffff
    s_mul_i32 s53, {s(S_W)}, 896
    s_add_u32 s53, s53, {MODL}
    v_lshrrev_b32 v2, 1, v1
    v_add_u32 v2, s53, v2
    s_mov_b32 s56, 0x100000
    """)
    if opts.get("pst"): stamp(p, 1)
    p(f"""
    L_mp{name}:
    buffer_load_dwordx4 v[120:123], v1, {s(SRD_W,4)}, s14 offen sc1
    buffer_load_dwordx4 v[124:127], v1, {s(SRD_W,4)}, s14 offen offset:896 sc1
    s_waitcnt vmcnt(0)
    v_xor_b32 v112, s13, v120
    v_xor_b32 v113, s13, v122
    v_xor_b32 v114, s13, v124
    v_xor_b32 v115, s13, v126
    v_or3_b32 v116, v112, v113, v114
    v_or_b32 v116, v116, v115
    v_and_b32 v116, 0xffff, v116
    v_xor_b32 v117, s12, v121
    v_xor_b32 v118, s12, v123
    v_or3_b32 v116, v116, v117, v118
    v_xor_b32 v117, s12, v125
    v_xor_b32 v118, s12, v127
    v_or3_b32 v116, v116, v117, v118
    v_cmp_ne_u32 vcc, 0, v116
    s_cbranch_vccz L_mq{name}
    s_sleep {opts.get("msleep", 2)}
    s_sub_u32 s56, s56, 1
    s_cmp_lg_u32 s56, 0
    s_cbranch_scc1 L_mp{name}
    L_mq{name}:
    """)
    if opts.get("pst"): stamp(p, 2)
    for k in range(4):
        p(f"v_mul_f32 v{112+k}, {f2u(QSCALE)}, v{112+k}")
    mt = ("wr", ("M", 0))
    p("ds_write_b64 v2, v[112:113]", tag=mt)
    p("ds_write_b64 v2, v[114:115] offset:448", tag=mt)
    for st in range(NPRE, 3):
        emit_wfill("Q", st)
    MB = 72
    def modreads(ks):
        M = MB + 16 * (ks % 3)
        rt = ("rd", ("M", 0))
        return [I(f"ds_read_b128 {v(M + 8*k + 4*h, 4)}, v{V_MRD} offset:{1792*(1-k) + 128*ks + 16*h}", tag=rt)
                for k in range(2) for h in range(2)]
    NUP = 7
    p(I("WAITTAG", tag=[("M", 0)]))
    p("s_barrier")
    p.extend(modreads(0)); p.extend(modreads(1)); p.extend(modreads(2))
    for ks in range(7):
        M = MB + 16 * (ks % 3)
        for k in range(8*ks, 8*ks + 8):
            d = k % 4
            p(f"v_pk_fma_f32 {v(F+2*k,2)}, {v(F+2*k,2)}, {v(M+2*d,2)}, {v(M+8+2*d,2)}")
            p(f"v_cvt_pk_bf16_f32 v{V_H+k}, v{F+2*k}, v{F+2*k+1}")
        if ks + 3 < 7:
            p.extend(modreads(ks + 3))
    stamp(p, 3 if opts.get("pst") else 1)
    srd(p, SRD_O, 10, 11, 4096 * 896)
    p(f"""
    s_lshl_b32 s14, {s(S_J)}, 20
    s_add_u32 {s(SRD_K)}, s4, s14
    s_addc_u32 {s(SRD_K+1)}, s5, 0
    s_mov_b32 {s(SRD_K+2)}, 0x100000
    s_mov_b32 {s(SRD_K+3)}, 0x20000
    s_add_u32 {s(SRD_V)}, s6, s14
    s_addc_u32 {s(SRD_V+1)}, s7, 0
    s_mov_b32 {s(SRD_V+2)}, 0x100000
    s_mov_b32 {s(SRD_V+3)}, 0x20000
    s_mov_b32 {s(S_KOFF)}, 0
    s_mov_b32 {s(S_VOFF)}, 0
    s_mov_b32 {s(S_THR)}, {thr}
    s_lshl_b32 s15, {s(S_W)}, 3
    """)
    setup = f"""
    v_bfe_u32 v1, v0, 5, 1
    v_and_b32 v2, 31, v0
    v_add_u32 v16, s15, v1
    v_lshlrev_b32 v17, 9, v16
    v_and_b32 v16, 15, v16
    v_xor_b32 v16, v16, v2
    v_lshl_add_u32 {v(V_KDMA)}, v16, 4, v17
    v_xor_b32 {v(V_KDMA+1)}, 32, {v(V_KDMA)}
    v_xor_b32 {v(V_KDMA+2)}, 64, {v(V_KDMA)}
    v_xor_b32 {v(V_KDMA+3)}, 96, {v(V_KDMA)}
    v_lshlrev_b32 v16, 2, v1
    v_add_u32 v16, {s(S_W)}, v16
    v_lshlrev_b32 v16, 9, v16
    v_lshlrev_b32 v17, 1, v1
    v_xor_b32 v17, v17, v2
    v_lshl_add_u32 {v(V_VDMA)}, v17, 4, v16
    v_add_u32 {v(V_VDMA+1)}, 3072, {v(V_VDMA)}
    v_add_u32 {v(V_VDMA+2)}, 6144, {v(V_VDMA)}
    v_add_u32 {v(V_VDMA+3)}, 9216, {v(V_VDMA)}
    v_and_b32 v16, 15, v0
    v_bfe_u32 v17, v0, 4, 2
    v_xor_b32 v17, v17, v16
    v_lshlrev_b32 v16, 9, v16
    v_add_u32 v16, {4*SLOT}, v16
    v_lshl_add_u32 {v(V_KRD)}, v17, 4, v16
    v_xor_b32 {v(V_KRD+1)}, 64, {v(V_KRD)}
    v_xor_b32 {v(V_KRD+2)}, 0x80, {v(V_KRD)}
    v_xor_b32 {v(V_KRD+3)}, 0xc0, {v(V_KRD)}
    v_mov_b32 {v(V_VRD)}, {v(V_TMP)}
    v_xor_b32 {v(V_VRD+1)}, 32, {v(V_TMP)}
    v_mov_b32 {v(V_L)}, 0
    v_mov_b32 {v(V_L+1)}, 0
    """
    setup = [I(x.strip()) for x in setup.strip().split("\n")]
    WRA = 21; WRB = 88
    p(f"""
    s_movk_i32 s31, 0x493
    s_and_b32 s12, {s(S_W)}, 1
    s_mul_i32 s13, {s(S_W)}, 7
    """)
    setup.append(I("v_and_b32 v1, 63, v0"))
    for m in range(7):
        setup += [I(f"v_add_u32 v16, {64*m}, v1"), I("v_mul_u32_u24 v16, s31, v16"), I("v_bfe_u32 v16, v16, 17, 2"),
                  I("v_lshlrev_b32 v16, 5, v16"), I(f"v_xor_b32 v{at.WDR[m]}, v16, {v(V_LIN)}")]
    setup += [I("v_lshrrev_b32 v16, 2, v1"), I("v_mul_u32_u24 v16, 896, v16"), I("v_and_b32 v17, 3, v0"),
              I("v_lshl_add_u32 v16, v17, 3, v16"), I("v_bfe_u32 v17, v0, 3, 2")]
    for mt in range(7):
        if mt < 6:
            p(f"s_add_u32 s{52+mt}, s13, s12")
            p(f"s_add_u32 s{52+mt}, s{52+mt}, {mt}")
        else:
            p(f"s_mul_i32 s58, s12, 6")
            p(f"s_sub_u32 s58, s13, s58")
            p(f"s_add_u32 s58, s58, 6")
        setup += [I(f"v_xor_b32 v18, s{52+mt}, v17"), I(f"v_lshl_add_u32 v{WRB+mt}, v18, 5, v16"),
                  I(f"v_add_u32 v{WRA+mt}, {4*SLOT}, v{WRB+mt}")]
    assert (4 * SLOT) % 256 == 0
    def q_mfma(i, t, qt, fr):
        D = v(V_O + 8*t + 4*qt, 4)
        Bop = v(V_H + 8*i + 4*qt, 4) if i < 7 else a(A_HP + 8*(i-7) + 4*qt, 4)
        return f"v_mfma_f32_16x16x32_bf16 {D}, {fr}, {Bop}, {D if i else 0}"
    def q_fills(i):
        st = i + 3
        if i == 0 and NPRE == 4: return []
        if st < 14:
            return [at.wfill("Q", st, hf) + ([],) for hf in range(2)]
        if i == 11: return [at.kvfill("K", 0), at.kvfill("K", 1)]
        if i == 12: return [at.kvfill("K", 2)]
        return [at.kvfill("V", 0), at.kvfill("V", 1, range(at.nafter))]
    def q_bar(i):
        ks = at.wkeys("Q", i + 1) if i < 13 else [at.key("K", 0)]
        i -= 1
        if 0 <= i < 8:
            ks = ks + [(8, i // 2)] if i % 2 == 0 else ks + [("rd", 8, i // 2)]
        return ks
    def q_valu(i):
        out = []
        if i in (8, 9, 10):
            n = 33
            out += setup[(i-8)*n//3:(i-7)*n//3]
        if i in (11, 12, 13):
            n = len(setup) - 33
            out += setup[33+(i-11)*n//3:33+(i-10)*n//3]
        return out
    def q_xds(i):
        out = []
        i -= 1
        if 0 <= i < 8:
            rho = i // 2
            for k in range(4):
                u, qt = 2*rho + k // 2, k % 2
                if u >= 7: continue
                if i % 2 == 0:
                    out.append(I(f"ds_write_b128 {v(V_XW)}, {v(V_H + 8*u + 4*qt, 4)} offset:{1024*k}", tag=("wr", (8, rho))))
                else:
                    out.append(I(f"ds_read_b128 {a(A_HP + 8*u + 4*qt, 4)}, {v(V_XR)} offset:{1024*k}", tag=("rd", (8, rho))))
        return out
    at.gemm_phase(p, "Q", 14, 16, q_mfma, q_fills, q_bar, q_valu, q_xds)
    p("s_load_dwordx4 s[4:7], s[0:1], 48")
    p("s_load_dwordx2 s[8:9], s[0:1], 72")
    p("s_load_dwordx2 s[10:11], s[0:1], 0")
    p("s_load_dwordx2 s[54:55], s[0:1], 80")
    p("s_load_dwordx2 s[56:57], s[0:1], 88")
    p("s_waitcnt lgkmcnt(0)")
    srd(p, SRD_Q, 4, 5, 448 * 3584)
    for g in range(at.gB + 1, 64):
        for (f, e, nx) in at.ds.get(g, []):
            p(at.kread(lambda it: 0, 0, f))
    p(f"""
    s_mul_i32 s53, {s(S_J)}, {512*896}
    s_mul_i32 s59, {s(S_W)}, 7168
    s_add_u32 {s(S_WBASE)}, s53, s59
    """)
    assert (8 * SLOT) & 0x3fff == (8 * SLOT) % 16384 and ((8 * SLOT) % 16384) + 4096 <= 8192
    AW = 184
    p(f"""
    s_mov_b32 s31, 0
    s_sub_u32 s12, s2, 28
    s_cmp_ge_u32 s12, 56
    s_cbranch_scc1 L_nl{name}
    v_and_b32 v1, 3, v0
    v_lshrrev_b32 v2, 2, v0
    v_mul_u32_u24 v3, 14, v2
    v_mul_u32_u24 v2, {7*5376}, v2
    v_lshl_add_u32 v2, v1, 4, v2
    s_lshl_b32 s12, s2, 6
    v_add_u32 v2, s12, v2
    v_and_b32 v3, -4, v3
    s_sub_u32 s13, s2, 40
    s_lshl_b32 s13, s13, 12
    s_add_u32 s13, s13, {WS_FLAG}
    v_lshlrev_b32 v1, 4, v0
    v_mov_b32 v4, 0
    v_mov_b32 v5, 0
    v_mov_b32 v6, 0
    v_mov_b32 v7, 0
    s_sub_u32 s12, s2, 40
    s_cmp_ge_u32 s12, 36
    s_cselect_b32 s13, 0x40000000, s13
    """)
    p(raw(f"buffer_store_dwordx4 v[4:7], v1, {s(SRD_W,4)}, s13 offen sc1"))
    for i in range(7):
        x = raw(f"global_load_dwordx4 {a(AW+4*i,4)}, v2, s[56:57]"); x.reads += regs_of(a(AW+4*i,4)); p(x)
        if i < 6:
            p("v_add_u32 v2, 5376, v2")
    x = raw(f"global_load_dwordx4 {a(AW+28,4)}, v3, s[54:55]"); x.reads += regs_of(a(AW+28,4)); p(x)
    p(f"L_nl{name}:")
    for sx in range(8):
        for qt in range(2):
            X = V_O + 16*sx + 4*qt
            Y = X + 8
            p(f"v_cvt_pk_bf16_f32 v{X}, v{X}, v{X+1}")
            p(f"v_cvt_pk_bf16_f32 v{X+1}, v{X+2}, v{X+3}")
            p(f"v_cvt_pk_bf16_f32 v{Y}, v{Y}, v{Y+1}")
            p(f"v_cvt_pk_bf16_f32 v{Y+1}, v{Y+2}, v{Y+3}")
        for qt in range(2):
            X = V_O + 16*sx + 4*qt
            Y = X + 8
            p(f"v_permlane32_swap_b32 v{X}, v{Y}")
            p(f"v_permlane32_swap_b32 v{X+1}, v{Y+1}")
        for qt in range(2):
            X = V_O + 16*sx + 4*qt
            Y = X + 8
            p(f"v_permlane16_swap_b32 v{X}, v{Y}")
            p(f"v_permlane16_swap_b32 v{X+1}, v{Y+1}")
        for qt in range(2):
            X = V_O + 16*sx + 4*qt
            Y = X + 8
            for k, r in enumerate((X, X+1, Y, Y+1)):
                p(f"v_accvgpr_write_b32 a{A_Q + 8*sx + 4*qt + k}, v{r}")
    stamp(p, 4 if opts.get("pst") else 2)
    lid = [opts.get("lid0", 0)]
    import k_prep
    son = k_prep.STAMP["on"]
    if opts.get("pst"): k_prep.STAMP["on"] = False
    def B(c, fn, aval=None, **kw):
        at.body(p, c, fn, aval=aval, lid=lid[0], **kw)
        if aval != -1:
            at.fallback(p, c % 2, lid[0], aval != 63)
        lid[0] += 1
    B(3, lambda it: -1, aval=-1)
    p("s_waitcnt lgkmcnt(0)")
    if opts.get("skipnu"):
        p(f"""
        s_sub_u32 s12, s2, 28
        s_cmp_lt_u32 s12, 56
        s_cselect_b32 s31, 1, 0
        s_cmp_eq_u32 {s(S_W)}, 0
        s_cselect_b32 s31, s31, 0
        """)
    else:
      modblock(False, MW=128, CR=156, MC=160, MA=176, MT=184,
             pre=[raw("s_waitcnt vmcnt(8)")] + [I(f"v_accvgpr_read_b32 v{128+k}, a{AW+k}") for k in range(32)])
    if opts.get("touch", True):
        p(f"""
        v_min_u32 v1, {223 if opts.get("t64", False) else 111}, v0
        v_lshlrev_b32 v1, {6 if opts.get("t64", False) else 7}, v1
        s_mul_i32 s54, {s(S_PB)}, {112*128}
        s_add_u32 s53, s53, s54
        buffer_load_dword v2, v1, {s(SRD_O,4)}, s53 offen
        """)
    exv = None
    if opts.get("warm", True):
        p(f"""
        v_and_b32 v1, 63, v0
        s_lshl_b32 s14, {s(S_J)}, 5
        s_add_u32 s14, s14, {s(S_PB)}
        s_lshl_b32 s14, s14, 15
        s_min_u32 s14, s14, {2048*4096 - 35840}
        s_mul_i32 s15, {s(S_W)}, 640
        s_add_u32 s14, s14, s15
        v_cmp_gt_u32 vcc, 5, v1
        v_cndmask_b32 v3, 0, v1, vcc
        v_lshl_add_u32 v3, v3, 7, s14
        v_mov_b32 v16, s6
        v_mov_b32 v17, s7
        v_mov_b32 v18, 2560
        v_mov_b32 v19, 0
        s_mul_i32 s14, {s(S_PB)}, {14*3584}
        s_mul_i32 s15, {s(S_HD)}, 1792
        s_add_u32 s14, s14, s15
        s_and_b32 s15, {s(S_J)}, 1
        s_mul_i32 s15, s15, 896
        s_add_u32 s14, s14, s15
        s_and_b32 s15, {s(S_W)}, 1
        s_mul_i32 s15, s15, 384
        s_add_u32 s14, s14, s15
        s_mov_b64 exec, 0xf00
        v_and_b32 v3, 3, v1
        v_lshl_add_u32 v3, v3, 7, s14
        v_mov_b32 v16, s4
        v_mov_b32 v17, s5
        v_mov_b32 v18, 3584
        s_mov_b64 exec, -1
        s_mul_i32 s14, s2, {25*128}
        s_min_u32 s14, s14, {896*896 - 28*128}
        s_and_b32 s15, {s(S_W)}, 1
        s_lshl_b32 s15, s15, 7
        s_add_u32 s14, s14, s15
        v_writelane_b32 v3, s14, 6
        v_writelane_b32 v16, s8, 6
        v_writelane_b32 v17, s9, 6
        s_movk_i32 s14, 0x100
        v_writelane_b32 v18, s14, 6
        v_add_co_u32 v16, vcc, v16, v3
        v_addc_co_u32 v17, vcc, 0, v17, vcc
        """)
        exv = [(at.gB, I("global_load_dword v20, v[16:17], off"))]
        exv2 = [(at.gJ, I("v_lshl_add_u64 v[16:17], v[16:17], 0, v[18:19]"))]
    B(0, lambda it: 0, aval=0, extra_scalar=[(60, I(f"s_mov_b32 {s(S_CNT)}, 14"))])
    p(f"""
    s_cmp_eq_u32 s31, 0
    s_cbranch_scc1 L_na{name}
    v_mov_b32 v1, 1
    v_mov_b32 v3, 0
    """)
    p(raw("s_waitcnt vmcnt(8)"))
    p("s_mov_b64 exec, 1")
    p(raw(f"buffer_atomic_add v1, v3, {s(SRD_D,4)}, 0 offen offset:4 sc1"))
    p("s_mov_b64 exec, -1")
    p(f"L_na{name}:")
    p.begin_loop(14)
    p(f"L_loop{name}:")
    for c in range(1, 5):
        ex = [(60, I(f"s_sub_u32 {s(S_CNT)}, {s(S_CNT)}, 1"))] if c == 2 else None
        B(c % 4, (lambda c: lambda it: 4*it + c)(c), extra_scalar=ex,
          extra_valu=(exv if c == 1 else exv2 if c == 3 else None) if exv else None)
    p(f"s_cmp_lg_u32 {s(S_CNT)}, 0")
    p(f"s_cbranch_scc1 L_loop{name}")
    p.end_loop()
    ZD = 96
    ZT = 103
    zops = []
    for m in range(7):
        zops += [I(f"v_add_u32 v{ZT}, {64*m}, v1"), I(f"v_mul_u32_u24 v{ZT+1}, s31, v{ZT}"), I(f"v_lshrrev_b32 v{ZT+1}, 16, v{ZT+1}"),
                 I(f"v_mul_u32_u24 v{ZT+2}, 14, v{ZT+1}"), I(f"v_sub_u32 v{ZT}, v{ZT}, v{ZT+2}"),
                 I(f"v_add_u32 v{ZT}, s57, v{ZT}"), I(f"v_subrev_u32 v{ZT+2}, 14, v{ZT}"), I(f"v_min_u32 v{ZT}, v{ZT}, v{ZT+2}"),
                 I(f"v_mul_u32_u24 v{ZT+1}, 3584, v{ZT+1}"), I(f"v_lshl_add_u32 v{ZD+m}, v{ZT}, 4, v{ZT+1}")]
        if m % 4:
            zops.append(I(f"v_subrev_u32 v{ZD+m}, {(m % 4)*1024}, v{ZD+m}"))
    ZBASE = [[2 * SLOT, 3 * 2 * SLOT, 0, 8 * SLOT], [2 * 2 * SLOT, 2 * SLOT, 3 * 2 * SLOT, 8 * SLOT]]
    ZKEYS = [[[(2, 300), (3, 300)], [(6, 300), (7, 300)], [(0, 300), (1, 300)], [(8, 300)]],
             [[(4, 310), (5, 310)], [(2, 310), (3, 310)], [(6, 310), (7, 310)], [(8, 310)]]]
    def zfill(rnd, z1=0):
        gs = []
        so = 34 if z1 else 37
        for hf in range(2):
            pre = [I(f"s_add_u32 m0, s36, {ZBASE[z1][rnd] + hf*4096}")]
            d = [I(f"buffer_load_dwordx4 v{ZD+m}, {s(SRD_Q,4)}, s{so} offen offset:{(m % 4)*1024} lds", tag=("dma", ZKEYS[z1][rnd]))
                 for m in range(4*hf, min(7, 4*hf+4))]
            post = [I(f"s_add_u32 s{so}, s{so}, {4*32*3584}")] if hf else []
            gs.append((pre, d, post))
        return gs
    def flat(gs):
        return [x for g in gs for lst in g for x in lst]
    p(f"""
    v_mov_b32 v8, 4
    buffer_load_dword v9, v8, {s(SRD_D,4)}, 0 offen sc1
    s_movk_i32 s31, 0x124a
    s_and_b32 s57, {s(S_PB)}, 1
    s_lshl_b32 s57, s57, 1
    v_and_b32 v1, 63, v0
    """)
    for av in range(57, 64):
        B(av % 4, (lambda av: lambda it: av)(av), aval=av,
          extra_valu=[(1 + (k * 30) // len(zops), x) for k, x in enumerate(zops)] if av == 63 else None)
    if not opts.get("pst"): stamp(p, 3)
    p(f"""
    v_cmp_gt_u32 vcc, 56, v9
    s_cbranch_vccnz L_mslow{name}
    L_mok{name}:
    """)
    p.begin_side()
    p(f"L_mslow{name}:")
    p("s_mov_b32 s14, 0")
    poll(p, SRD_D, 14, 8, 9, "m2" + name, 56, 56, sleep=4)
    p(f"s_branch L_mok{name}")
    p.end_side()
    for qt in range(2):
        at.xreduce(p, V_L + qt, "v_add_f32")
        p(f"v_rcp_f32 v{2+qt}, {v(V_L+qt)}")
    X1B = 28672; X2B = 8 * SLOT
    def xaddr(ks, q):
        return X1B + (4*ks + q) * 1024 if ks < 9 else X2B + (4*(ks-9) + q) * 1024
    XKEY = [(2, 250), (3, 250), (8, 250), ("T", 250)]
    p(f"""
    s_and_b32 s14, {s(S_W)}, 1
    s_lshl_b32 s14, s14, 11
    s_mul_i32 s15, {s(S_HD)}, 32768
    s_add_u32 s15, s15, s14
    s_add_u32 s15, s15, {X1B}
    v_add_u32 v4, s15, {v(V_LIN)}
    s_mul_i32 s15, {s(S_HD)}, {X2B - X1B - 4096}
    s_add_u32 s15, s15, s14
    s_add_u32 s15, s15, {X1B}
    v_add_u32 v5, s15, {v(V_LIN)}
    v_add_u32 v6, {X1B}, {v(V_LIN)}
    v_add_u32 v7, {X2B}, {v(V_LIN)}
    s_lshl_b32 s14, {s(S_PB)}, 7
    s_add_u32 s14, s14, {WS_FLAG}
    v_mov_b32 v13, s14
    s_barrier
    """)
    for u in range(8):
        for qt in range(2):
            X = V_O + 16*u + 4*qt
            Y = X + 8
            sel = "op_sel_hi:[1,0]" if qt == 0 else "op_sel:[0,1] op_sel_hi:[1,1]"
            for r in (X, X+2, Y, Y+2):
                p(f"v_pk_mul_f32 {v(r,2)}, {v(r,2)}, v[2:3] {sel}")
            p(f"v_cvt_pk_bf16_f32 v{X}, v{X}, v{X+1}")
            p(f"v_cvt_pk_bf16_f32 v{X+1}, v{X+2}, v{X+3}")
            p(f"v_cvt_pk_bf16_f32 v{X+2}, v{Y}, v{Y+1}")
            p(f"v_cvt_pk_bf16_f32 v{X+3}, v{Y+2}, v{Y+3}")
            p(f"ds_write_b128 v{4 if u == 0 else 5}, {v(X,4)} offset:{4096*u + 1024*qt}", tag=("wr", XKEY))
    ACC = V_O
    p(f"""
    s_and_b32 s15, {s(S_J)}, 1
    s_lshl_b32 s15, s15, 2
    s_and_b32 s32, {s(S_PB)}, 3
    s_add_u32 s32, s32, s15              ; fb
    s_lshr_b32 s15, {s(S_J)}, 1
    s_lshl_b32 s15, s15, 3
    s_lshr_b32 s33, {s(S_PB)}, 2
    s_add_u32 s33, s33, s15              ; tb
    s_mul_i32 s34, s32, 224
    s_mul_i32 s36, {s(S_W)}, {32*3584}
    s_add_u32 s34, s34, s36
    s_add_u32 s37, s34, 1792
    s_mul_i32 s36, {s(S_W)}, 7168
    """)
    A_OB = 0
    NRW = 8
    def wrd(st, mt):
        pr = at.OPAIR[st % 3]
        reg, off = (WRB + mt, 0) if pr == 0 else (WRA + mt, (pr - 2) * 2 * SLOT)
        f = st * 7 + mt
        return [I(f"ds_read_b64_tr_b16 {a(A_F + 4*(f % NRW) + 2*e, 2)}, v{reg} offset:{off + e*14336}", tag=("rd", at.okeys(st))) for e in range(2)]
    def brd(st):
        ky = [(2, 250), (3, 250), ("T", 250)] if st < 9 else [(8, 250)]
        return [I(f"ds_read_b128 {a(A_OB + 16*(st % 2) + 4*q, 4)}, v{6 if st < 9 else 7} offset:{xaddr(st, q) - (X1B if st < 9 else X2B)}",
                  tag=("rd", ky)) for q in range(4)]
    LF = opts.get("lf", 2)
    for f in range(LF):
        p.extend(wrd(0, f))
    p("s_waitcnt lgkmcnt(0)")
    p("s_barrier")
    if opts.get("ost"): stamp(p, 4)
    p.extend(brd(0))
    G = 28
    gb = G - 4 * LF - 1
    for st in range(16):
        kind = ["m"] * G
        SC = [[] for _ in range(G + 1)]
        VE = [[] for _ in range(G)]
        if st < 15:
            kind[gb] = "B"
            VE[gb] = [I("WAITTAG", tag=at.okeys(st + 1)), I("s_barrier")]
        if 0 < st < 15:
            kind[0] = "B"
            VE[0] = [I("s_barrier")]
        if st + 2 < 16:
            new = [at.ofill(st + 2, hf) + ([],) for hf in range(2)]
        else:
            new = zfill(st - 14)
        newl = []
        for pre, d, post in new:
            for k, x in enumerate(d):
                newl.append((pre if k == 0 else [], x, post if k == len(d) - 1 else []))
        dpos = [3, 5, 7, 9, 12, 14, 16, 20]
        if st == opts.get("eflag", 15):
            newl.append(([], I(f"buffer_load_dword v14, v13, {s(SRD_W,4)}, 0 offen sc1"), []))
        for g, it in zip(dpos, newl):
            pre, x, post = it
            kind[g] = "d"; VE[g] = [x]
            for k, y in enumerate(pre):
                SC[g - len(pre) + k].append(y)
            SC[g + 1] += post
        dsq = []
        for mt in range(7):
            nf = mt + LF
            if nf < 7: rr = wrd(st, nf)
            elif st < 15: rr = wrd(st + 1, nf - 7)
            else: rr = []
            dsq += [(4*mt + k, x) for k, x in enumerate(rr)]
        if st < 15:
            dsq += [(17 + k, x) for k, x in enumerate(brd(st + 1))]
        dsq.sort(key=lambda z: z[0])
        nds = [0] * G
        q = 0
        for g in range(G):
            while kind[g] == "m" and q < len(dsq) and dsq[q][0] <= g and nds[g] < (2 if dsq[q][0] <= g - 2 else 1):
                VE[g].append(dsq[q][1]); nds[g] += 1; q += 1
        assert q == len(dsq)
        ops = []
        mg = [g for g in range(G) if kind[g] == "m" and nds[g] < 2]
        for k, x in enumerate(ops):
            VE[mg[(k * len(mg)) // len(ops)]].append(x)
        for mt in range(1, 8):
            if mt == 7 and st == 15: continue
            g = 4*mt - 1
            while kind[g] != "m" or SC[g]: g -= 1
            ex = f", {a(A_OB + 16*((st+1) % 2), 16)}" if mt == 7 else ""
            SC[g].append(I(f"WAITFOR {a(A_F + 4*((st*7 + mt) % NRW), 4)}{ex}"))
        for g in range(G):
            mt, q = g // 4, g % 4
            D = v(ACC + 16*mt + 4*q, 4)
            p(f"v_mfma_f32_16x16x32_bf16 {D}, {a(A_F + 4*((st*7 + mt) % NRW), 4)}, {a(A_OB + 16*(st % 2) + 4*q, 4)}, {D if st else 0}")
            oabl = opts.get("oabl", "")
            p.extend([x for x in SC[g] + VE[g] if not (("D" in oabl and x.kind == "dma" and st < 14) or ("B" in oabl and x.kind == "barrier")
                                                       or ("R" in oabl and x.kind == "ds_read"))])
        p.extend(SC[G])
        if opts.get("ost") and st in (3, 7, 11): stamp(p, [5, 6, 7][st // 4])
    if opts.get("ost"):
        stamp(p, 8)
        k_prep.STAMP["on"] = False
    if not opts.get("pst"): stamp(p, 4)
    p(f"""
    s_lshl_b32 s14, {s(S_J)}, 7
    s_lshl_b32 s15, {s(S_PB)}, 2
    s_add_u32 s14, s14, s15
    s_mul_i32 s14, s14, {14*1024}
    s_mul_i32 s15, {s(S_W)}, 7
    s_add_u32 s15, s15, 1
    s_lshr_b32 s15, s15, 1
    s_lshl_b32 s15, s15, 10
    s_add_u32 s14, s14, s15
    s_add_u32 s14, s14, {WS_PART}
    s_and_b32 s50, {s(S_W)}, 1
    s_mul_i32 s15, s50, {2*14*1024 - 4096}
    s_add_u32 s15, s15, s14
    s_add_u32 s15, s15, 3072
    s_mul_i32 s51, {s(S_HD)}, {2*SLOT}
    s_add_u32 s51, s51, {4*SLOT + 28672}
    s_lshl_b32 s52, s50, 3
    s_add_u32 s52, s52, s51
    v_add_u32 v4, s52, {v(V_LIN)}
    s_lshl_b32 s52, s50, 11
    s_add_u32 s52, s52, s51
    v_add_u32 v5, s52, {v(V_LIN)}
    """)
    pt = ("wr", ("PT", 0), "private")
    for q in range(4):
        X = ACC + 96 + 4*q
        p(f"v_cvt_pk_bf16_f32 v{X}, v{X}, v{X+1}")
        p(f"v_cvt_pk_bf16_f32 v{X+1}, v{X+2}, v{X+3}")
        p(f"ds_write_b64 v4, {v(X,2)} offset:{1024*q}", tag=("wr", ("MG", 0)))
    for q in range(4):
        for pr in range(3):
            X = ACC + 32*pr + 4*q
            Y = X + 16
            p(f"v_cvt_pk_bf16_f32 v{X}, v{X}, v{X+1}")
            p(f"v_cvt_pk_bf16_f32 v{X+1}, v{X+2}, v{X+3}")
            p(f"v_cvt_pk_bf16_f32 v{X+2}, v{Y}, v{Y+1}")
            p(f"v_cvt_pk_bf16_f32 v{X+3}, v{Y+2}, v{Y+3}")
            p(f"buffer_store_dwordx4 {v(X,4)}, {v(V_LIN)}, {s(SRD_W,4)}, s14 offen offset:{pr*1024} sc1", tag=pt)
        if q < 3:
            p(f"s_add_u32 s14, s14, {14*1024}")
        if q == 0:
            p("s_waitcnt lgkmcnt(0)")
            p("s_barrier")
            for k in range(2):
                p(f"ds_read_b128 {v(ACC+112+4*k,4)}, v5 offset:{1024*k}", tag=("rd", ("MG", 0)))
    for k in range(2):
        p(f"buffer_store_dwordx4 {v(ACC+112+4*k,4)}, {v(V_LIN)}, {s(SRD_W,4)}, s15 offen sc1", tag=pt)
        p(f"s_add_u32 s15, s15, {14*1024}")
    srd(p, SRD_K, 10, 11, 2048 * 896)
    emit_red_pre(p, S_W, S_PB, S_J, SRD_W, SRD_K, B=184)
    emit_red_early(p, SRD_W, 14)
    p(f"""
    s_lshl_b32 s14, {s(S_PB)}, 7
    s_add_u32 s14, s14, {WS_FLAG}
    """)
    p(f"s_lshl_b32 s15, 1, {s(S_J)}")
    signal(p, SRD_W, 14, S_W, "r" + name, vt=10, keys=[("PT", 0)], val="s15")
    stamp(p, 5)
    zl = [zfill(2), zfill(3), zfill(0, 1)]
    zl = flat(sum(zl, []))
    emit_red(p, S_W, S_PB, SRD_W, 163840 - 512, B=184, idle=zl)
    W4 = s(SRD_W, 4)
    ZACC = 128
    NRZ = 16
    A_H = 0
    A_FZ = 64
    VB = 16; RS = 48; VDB = 64; VRB = 72; Z1 = 80; GACC = 128
    RA = 6; A_A = 0; A_MU = 168; PB0 = 131072
    p(f"""
    s_lshr_b32 s15, {s(S_J)}, 1
    s_lshl_b32 s15, s15, 5
    s_add_u32 s14, s14, s15
    s_add_u32 s14, s14, 4096
    v_and_b32 v1, 63, v0
    v_lshlrev_b32 v2, 4, v1
    v_and_b32 v3, 15, v0                 ; n
    v_bfe_u32 v8, v0, 4, 2               ; g
    s_lshl_b32 s58, s33, 2
    s_add_u32 s58, s58, {s(S_W)}
    s_mul_i32 s4, s58, {14*1024}
    s_add_u32 s4, s4, {WS_H2}
    s_add_u32 s5, s4, 4096
    s_add_u32 s12, s4, 8192
    s_add_u32 s13, s4, 12288
    v_lshrrev_b32 v9, 2, v1
    v_mul_u32_u24 v9, 224, v9
    v_and_b32 v12, 3, v0
    v_lshl_add_u32 v12, v12, 3, v9
    v_add_u32 v13, {4*SLOT}, v12
    v_add_u32 v14, {8*SLOT}, v12
    v_mov_b32 v15, 0
    s_lshl_b32 s15, s33, 7
    s_lshl_b32 s50, {s(S_W)}, 5
    s_add_u32 s15, s15, s50
    s_add_u32 s15, s15, {WS_FLAG + 4096}
    """)
    signal(p, SRD_W, 14, S_W, "z" + name, vt=48, keys=[("H2", 0)])
    stamp(p, 7)
    p("s_cmp_lg_u32 s54, 0")
    p(f"s_cbranch_scc1 L_zf{name}")
    p.extend(zl)
    p(f"L_zf{name}:")
    srd(p, SRD_V, 6, 7, 2048 * 4096 + 4096)
    p(f"""
    s_sub_u32 {s(SRD_V)}, {s(SRD_V)}, 4096
    s_subb_u32 {s(SRD_V+1)}, {s(SRD_V+1)}, 0
    s_mov_b32 s50, s32
    s_mov_b32 s51, s33
    v_lshrrev_b32 v9, 3, v1
    v_lshlrev_b32 v9, 12, v9
    v_and_b32 v4, 7, v0
    v_xor_b32 v4, v4, v8
    v_lshl_add_u32 v4, v4, 4, v9
    v_xor_b32 v5, 64, v4
    """)
    for m in range(8):
        nl = m // 2
        if m % 2 == 0:
            p(f"s_add_u32 s52, {s(S_W)}, {nl}")
            p(f"s_and_b32 s52, s52, 3")
            p(f"s_lshl_b32 s52, s52, 16")
        p(f"s_add_u32 s53, s52, {(m % 2)*32768 + 4096 - (m % 4)*1024}")
        p(f"v_add_u32 v{VDB+m}, s53, v{4 + m % 2}")
    p(f"""
    s_lshl_b32 s52, s51, 18
    s_lshl_b32 s53, {s(S_W)}, 10
    s_add_u32 s52, s52, s53
    s_lshl_b32 s54, s50, 6
    s_lshl_b32 s53, {s(S_W)}, 4
    s_add_u32 s54, s54, s53
    s_mul_i32 s54, s54, 7168
    s_add_u32 s54, s54, {WS_ZZ}
    s_add_u32 s55, s54, 4096
    s_lshl_b32 s53, {s(S_W)}, 13
    v_mov_b32 v4, {f2u(C2)}
    v_mov_b32 v6, {f2u(C1)}
    s_lshl_b32 s38, s50, 6
    s_lshr_b32 s39, s58, 1
    s_add_u32 s38, s38, s39
    s_mul_i32 s38, s38, 7168
    s_and_b32 s39, s58, 1
    s_lshl_b32 s39, s39, 9
    s_add_u32 s38, s38, s39
    s_add_u32 s38, s38, {WS_ZZ}
    s_add_u32 s39, s38, 4096
    v_and_b32 v10, 1, v8
    v_lshlrev_b32 v10, 10, v10           ; (g%2)*1024 : second tile of the pair
    v_lshrrev_b32 v11, 1, v8
    v_lshl_add_u32 v10, v11, 8, v10      ; + (g/2)*256
    v_lshl_add_u32 v10, v3, 4, v10       ; + n*16
    v_lshlrev_b32 v11, 20, v10
    v_and_b32 v11, 0x40000000, v11
    v_or_b32 v11, v11, v10
    """)
    BSL = [0, 2, 1, 3, 4]
    BOV = {0: [0, 1], 1: [2, 3], 2: [4, 5], 3: [6, 7], 4: [8]}
    def bdma(dd, half, first=False):
        pre = [I(f"s_add_u32 m0, s53, {BSL[dd % 5]*32768 + half*4096}")]
        tg = ("dma", [(f"B{dd % 5}", dd)] + [(k, 400) for k in BOV[BSL[dd % 5]]]) if first else ("dma", (f"B{dd % 5}", dd), "private")
        out = [I(f"buffer_load_dwordx4 v{VDB+4*half+k}, {s(SRD_V,4)}, s52 offen offset:{k*1024} lds", tag=tg) for k in range(4)]
        post = [I("s_add_u32 s52, s52, 128")] if half else []
        return pre, out, post
    LEADZ = 6
    def zreads(z1):
        rds = []
        for u in range(14):
            rnd = u // 4
            ab = ZBASE[z1][rnd] + (u % 4) * 7168
            base, off = (12, ab) if ab < 4 * SLOT else (13, ab - 4 * SLOT) if ab < 8 * SLOT else (14, ab - 8 * SLOT)
            for ft in range(7):
                f = u * 7 + ft + 98 * z1
                rds.append([I(f"ds_read_b64_tr_b16 {a(A_FZ + 4*(f % NRZ) + 2*e, 2)}, v{base} offset:{off + e*3584 + 32*ft}",
                              tag=("rd", ZKEYS[z1][rnd])) for e in range(2)])
        return rds
    def zgemm(z1, rds, acc, hook=None):
        for g in range(98):
            for hk in (hook or {}).get(g, []):
                p(hk)
            u, ft = g // 7, g % 7
            f = g + 98 * z1
            D = v(acc + 4*ft, 4)
            Wf = a(A_FZ + 4*(f % NRZ), 4)
            H = a(A_H + 4*u, 4)
            C = D if u else "0"
            p(f"v_mfma_f32_16x16x32_bf16 {D}, {Wf}, {H}, {C}" if z1 else f"v_mfma_f32_16x16x32_bf16 {D}, {H}, {Wf}, {C}")
            if g + 1 < 98 and (g % 2 == 1 or ft == 6):
                ex = f", {a(A_H + 4*(u+1), 4)}" if ft >= 5 and u < 13 else ""
                p(f"WAITFOR {a(A_FZ + 4*((f+1) % NRZ), 4)}, {a(A_FZ + 4*((f+2) % NRZ), 4)}{ex}")
            if g + LEADZ < 98:
                p.extend(rds[g + LEADZ])
    def interleave(gl, bl):
        step = max(1, len(gl) // len(bl))
        for k, x in enumerate(gl):
            if k % step == 0 and bl:
                p.extend(bl.pop(0))
            p(x)
        for x in bl:
            p.extend(x)
    def groups(gs):
        out = []
        for pre, o, post in gs:
            for k, x in enumerate(o):
                out.append((pre if k == 0 else []) + [x] + (post if k == len(o) - 1 else []))
        return out
    rz = zreads(0)
    for x in rz[:LEADZ]:
        p.extend(x)
    poll(p, SRD_W, 15, 15, 48, "z" + name, 56, 2)
    stamp(p, 8)
    for u in range(14):
        p(f"buffer_load_dwordx4 {a(A_H+4*u,4)}, v2, {W4}, s{[4,5,12,13][u//4]} offen offset:{(u % 4)*1024}{LD}")
    hk = {29: ["s_barrier"]}
    NZI = opts.get("nzi", 1)
    for r in range(NZI):
        g0 = 28 * (r + 1) + 2
        if r: hk.setdefault(g0 - 1, []).append("s_barrier")
        for k, x in enumerate(groups(zfill(r + 1, 1))):
            hk.setdefault(g0 + 3 * k, []).extend(x)
    zgemm(0, rz, ZACC, hook=hk)
    p("s_barrier")
    if not opts.get("zst"): stamp(p, 9)
    gp = Prog("tmp")
    gelu_pairs(gp, [ZACC + 2*k for k in range(14)], 24)
    interleave(gp.items, groups(sum([zfill(r, 1) for r in range(NZI + 1, 4)], [])))
    for k in range(0, 4, 2):
        p(f"v_pk_add_f32 {v(32+k,2)}, {v(ZACC+k,2)}, {v(ZACC+4+k,2)}")
        p(f"v_pk_mul_f32 {v(36+k,2)}, {v(ZACC+k,2)}, {v(ZACC+k,2)}")
    for ft in range(1, 7):
        for k in range(0, 4, 2):
            if ft >= 2:
                p(f"v_pk_add_f32 {v(32+k,2)}, {v(32+k,2)}, {v(ZACC+4*ft+k,2)}")
            p(f"v_pk_fma_f32 {v(36+k,2)}, {v(ZACC+4*ft+k,2)}, {v(ZACC+4*ft+k,2)}, {v(36+k,2)}")
    for sh in (8, 4, 2, 1):
        for k in range(8):
            p(f"v_add_f32_dpp v{32+k}, v{32+k}, v{32+k} row_ror:{sh} row_mask:0xf bank_mask:0xf")
    p(f"""
    v_cmp_eq_u32 vcc, 0, v3
    v_cndmask_b32 v40, v34, v32, vcc
    v_cndmask_b32 v41, v38, v36, vcc
    v_cndmask_b32 v42, v35, v33, vcc
    v_cndmask_b32 v43, v39, v37, vcc
    v_or_b32 v41, 0x80000000, v41
    v_or_b32 v43, 0x80000000, v43
    v_lshlrev_b32 v9, 5, v8
    v_lshl_add_u32 v9, v3, 4, v9
    v_mov_b32 v25, 0x40000000
    v_cmp_gt_u32 vcc, 2, v3
    v_cndmask_b32 v9, v25, v9, vcc
    s_lshl_b32 s12, s58, 10
    s_add_u32 s12, s12, {WS_ST2}
    s_lshl_b32 s13, s50, 7
    s_add_u32 s13, s13, s12
    buffer_store_dwordx4 v[40:43], v9, {W4}, s13 offen sc1
    v_and_b32 v9, 7, v3
    v_lshlrev_b32 v9, 7, v9
    v_lshl_add_u32 v9, v8, 5, v9
    v_lshrrev_b32 v25, 3, v3
    v_lshl_add_u32 v9, v25, 4, v9
    """)
    rz = zreads(1)
    for x in rz[:LEADZ]:
        p.extend(x)
    p(I("WAITTAG", tag=ZKEYS[1][1] + ZKEYS[1][2]))
    p("s_barrier")
    Z1ACC = 160
    p(f"""
    s_lshl_b32 s15, s50, 9
    s_add_u32 s15, s15, {WS_FLAG + 8192}
    s_lshr_b32 s14, s51, 3
    s_lshl_b32 s14, s14, 7
    s_add_u32 s14, s14, s15
    s_lshl_b32 s13, {s(S_W)}, 7
    s_add_u32 s15, s15, s13
    """)
    hk = {}
    NBZ = opts.get("nbz", 2)
    for dd in range(NBZ):
        g0 = 28 * dd + 2
        if dd: hk.setdefault(g0 - 1, []).extend([I("WAITTAG", tag=ZKEYS[1][3]), "s_barrier"])
        for k, x in enumerate(groups([bdma(dd, hf, first=True) for hf in range(2)])):
            hk.setdefault(g0 + 3 * k, []).extend(x)
    hk.setdefault(opts.get("spoll", 76), []).append(f"buffer_load_dwordx4 v[32:35], v9, {W4}, s12 offen sc1")
    zgemm(1, rz, Z1ACC, hook=hk)
    p(f"""
    s_mov_b32 s56, 0x100000
    s_waitcnt vmcnt(0)
    s_branch L_sp2{name}
    L_sp1{name}:
    buffer_load_dwordx4 v[32:35], v9, {W4}, s12 offen sc1
    s_waitcnt vmcnt(0)
    L_sp2{name}:
    v_and_b32 v36, v33, v35
    v_cmp_le_i32 vcc, 0, v36
    s_cbranch_vccz L_sp3{name}
    s_sub_u32 s56, s56, 1
    s_cmp_lg_u32 s56, 0
    s_cbranch_scc1 L_sp1{name}
    L_sp3{name}:
    """)
    for ctl in ("quad_perm:[1,0,3,2]", "quad_perm:[2,3,0,1]", "row_half_mirror"):
        for k in range(4):
            p(f"v_add_f32_dpp v{32+k}, v{32+k}, v{32+k} {ctl} row_mask:0xf bank_mask:0xf")
    for k in range(2):
        p(f"v_mul_f32 v{38+k}, {f2u(1.0/896)}, v{32+2*k}")
        p(f"v_mul_f32 v{36+k}, {f2u(-1.0/896)}, v{33+2*k}")
        p(f"v_fma_f32 v{36+k}, -v{38+k}, v{38+k}, v{36+k}")
        p(f"v_max_f32 v{36+k}, 0, v{36+k}")
        p(f"v_add_f32 v{36+k}, {f2u(1e-5)}, v{36+k}")
        p(f"v_rsq_f32 v{36+k}, v{36+k}")
        p(f"v_mul_f32 v{38+k}, -v{38+k}, v{36+k}")
    for k in range(4):
        p(f"v_mov_b32 v{40+k}, v{36+k}")
        p(f"v_mov_b32 v{44+k}, v{36+k}")
    for k in range(4):
        p(f"v_mov_b32_dpp v{40+k}, v{36+k} row_ror:8 row_mask:0xf bank_mask:0xc")
        p(f"v_mov_b32_dpp v{44+k}, v{36+k} row_ror:8 row_mask:0xf bank_mask:0x3")
    zt = ("wr", ("ZZ", 0), "private")
    for pr in range(4):
        X = ZACC + 8*pr
        for k in range(4 if pr < 3 else 2):
            c = 40 + 4*(k % 2)
            p(f"v_pk_fma_f32 {v(X+2*k,2)}, {v(X+2*k,2)}, {v(c,2)}, {v(c+2,2)}")
        Y = 24 + 4*(pr % 2)
        for k in range(4):
            sx = X + 2*k if pr < 3 else X + 2*(k % 2)
            p(f"v_cvt_pk_bf16_f32 v{Y+k}, v{sx}, v{sx+1}")
        p(f"v_permlane16_swap_b32 v{Y}, v{Y+2}")
        p(f"v_permlane16_swap_b32 v{Y+1}, v{Y+3}")
        p(f"buffer_store_dwordx4 {v(Y,4)}, v{10 if pr < 3 else 11}, {W4}, s{38 + pr//2} offen offset:{(pr % 2)*2048} sc1", tag=zt)
    if opts.get("zst"): stamp(p, 9)
    p("s_barrier")
    gp = Prog("tmp")
    gelu_pairs(gp, [Z1ACC + 2*k for k in range(14)], 96)
    for k in range(14):
        gp(f"v_cvt_pk_bf16_f32 v{Z1+k}, v{Z1ACC+2*k}, v{Z1ACC+2*k+1}")
    NB1 = opts.get("nb1", 4)
    interleave(gp.items, groups([bdma(dd, hf, first=True) for dd in range(NBZ, NB1) for hf in range(2)]))
    signal(p, SRD_W, 14, S_W, "g" + name, vt=48, keys=[("ZZ", 0)])
    stamp(p, 10)
    RA = 5; A_A = 0; A_BR = 144
    p("s_load_dwordx2 s[4:5], s[0:1], 64")
    p("s_load_dwordx2 s[6:7], s[0:1], 96")
    p.extend(flat([bdma(dd, hf, first=True) for dd in range(NB1, 5) for hf in range(2)]))
    p(f"""
    v_lshrrev_b32 v9, 1, v3
    v_xor_b32 v9, v9, v8
    v_lshlrev_b32 v9, 4, v9
    v_lshl_add_u32 v9, v3, 7, v9
    v_add_u32 v{VRB}, s53, v9
    v_xor_b32 v{VRB+1}, 64, v{VRB}
    v_add_u32 v{VRB+2}, 0x10000, v{VRB}
    v_add_u32 v{VRB+3}, 0x10000, v{VRB+1}
    v_add_u32 v{VRB+4}, 0x20000, v{VRB}
    v_add_u32 v{VRB+5}, 0x20000, v{VRB+1}
    s_lshl_b32 s35, s58, 5
    v_lshlrev_b32 v12, 1, v3
    v_mov_b32 v49, 0
    s_waitcnt lgkmcnt(0)
    """)
    srd(p, SRD_K, 4, 5, 4096)
    srd(p, SRD_O, 8, 9, 896 * 896)
    srd(p, SRD_Q, 6, 7, 2048 * 896)
    p(f"buffer_load_ushort v{Z1+14}, v12, {s(SRD_K,4)}, s35 offen")
    p(f"""
    s_lshl_b32 s33, {s(S_J)}, 2
    s_and_b32 s32, {s(S_PB)}, 3
    s_add_u32 s33, s33, s32              ; tb'
    s_lshr_b32 s32, {s(S_PB)}, 2         ; cb
    v_lshrrev_b32 v54, 3, v1
    v_mul_u32_u24 v54, 896, v54
    v_lshlrev_b32 v55, 1, v8
    v_and_b32 v50, 7, v0
    v_xor_b32 v55, v55, v50
    v_lshl_add_u32 v50, v55, 4, v54
    v_add_u32 v51, {7168-1024}, v50
    v_add_u32 v52, {2*(7168-1024)}, v50
    v_add_u32 v53, {3*(7168-1024)}, v50
    s_mul_i32 s59, {s(S_W)}, {224*896}
    s_lshl_b32 s57, s32, 7
    s_add_u32 s59, s59, s57
    """)
    WOFFS = [98304, 102400, 131072, 135168, 0, 4096, 32768]
    def wdma(ks):
        tg = ("dma", [(f"W{ks}", 0), (f"B{3 + ks // 2}", 90)], "private") if ks < 4 else ("dma", [(f"W{ks}", 0), ("X", 1)])
        return ([I(f"s_add_u32 m0, s53, {WOFFS[ks]}")],
                [I(f"buffer_load_dwordx4 v{50+k}, {s(SRD_O,4)}, s59 offen offset:{k*1024} lds", tag=tg) for k in range(4)],
                [I(f"s_add_u32 s59, s59, {4*7168}")])
    def breg(ks, nl):
        return a(A_BR + 16*ks + 4*nl, 4) if ks < 6 else v(VB + 16*(ks % 2) + 4*nl, 4)
    def b_reads(ks):
        dd = ks // 2
        sl = BSL[dd % 5]
        return [I(f"ds_read_b128 {breg(ks, nl)}, v{VRB + 2*(sl//2) + ks % 2} offset:{(sl % 2)*32768 + nl*2048}",
                  tag=("rd", (f"B{dd % 5}", dd), "private")) for nl in range(4)]
    NB2 = opts.get("nb2", 8)
    for dd in range(3):
        p(I("WAITTAG", tag=[(f"B{dd}", dd)]))
        p.extend(b_reads(2*dd) + b_reads(2*dd + 1))
    for dd in range(5, NB2):
        p(I("WAITTAG", tag=[("rd", f"B{dd % 5}", dd - 5)]))
        p.extend(flat([bdma(dd, hf) for hf in range(2)]))
    poll(p, SRD_W, 15, 49, 48, "g" + name, 56, 8)
    stamp(p, 11)
    def aload(ks):
        out = [I(f"buffer_load_dwordx4 {a(A_A + 28*(ks % RA) + 4*mt, 4)}, v2, {W4}, s{54 + mt//4} offen offset:{(mt % 4)*1024}{LD}")
               for mt in range(7)]
        post = [I("s_add_u32 s54, s54, 7168"), I("s_add_u32 s55, s55, 7168")]
        return out, post
    NA0 = opts.get("na0", 3)
    for ks in range(NA0):
        o, post = aload(ks); p.extend(o); p.extend(post)
    nexta = NA0
    nextb = 2 * NB2
    for ks in range(16):
        SC = [[] for _ in range(29)]
        VE = [[] for _ in range(28)]
        kind = ["m"] * 28
        vm = []
        while nexta < 16 and nexta <= ks + RA - 1 and len(vm) < (8 if ks == 0 else 1):
            o, post = aload(nexta); nexta += 1
            vm.extend([([], x, post if k == 6 else []) for k, x in enumerate(o)])
        if ks >= 2 and nextb < 16:
            pre, o, post = bdma(nextb // 2, nextb % 2); nextb += 1
            vm.extend([(pre if k == 0 else [], x, post if k == 3 else []) for k, x in enumerate(o)])
        if ks in (12, 13):
            for kk in (2*(ks-12), 2*(ks-12)+1):
                pre, o, post = wdma(kk)
                vm.extend([(pre if k == 0 else [], x, post if k == 3 else []) for k, x in enumerate(o)])
        for k, (pre, x, post) in enumerate(vm):
            g = 2 * k if len(vm) > 9 else 1 + 3 * k
            kind[g] = "d"; VE[g] = [x]
            if pre: SC[g - 1] += pre
            SC[g + 1] += post
        mg = [g for g in range(28) if kind[g] == "m"]
        if 6 <= ks + 1 < 16:
            if (ks + 1) % 2 == 0:
                SC[mg[0]].insert(0, I("WAITTAG", tag=[(f"B{((ks+1)//2) % 5}", (ks+1)//2)]))
            for k, x in enumerate(b_reads(ks + 1)):
                VE[mg[k + 1]].append(x)
        for mt in range(1, 8):
            if mt == 7 and ks == 15: continue
            g = 4*mt - 1
            while kind[g] != "m": g -= 1
            k2, m2 = (ks, mt) if mt < 7 else (ks + 1, 0)
            ex = "".join(", " + breg(ks + 1, nl) for nl in range(4)) if mt == 7 else ""
            SC[g].append(I(f"WAITFOR {a(A_A + 28*(k2 % RA) + 4*m2, 4)}{ex}"))
        for g in range(28):
            mt, nl = g // 4, g % 4
            D = v(GACC + 16*mt + 4*nl, 4)
            p(f"v_mfma_f32_16x16x32_bf16 {D}, {a(A_A + 28*(ks % RA) + 4*mt, 4)}, {breg(ks, nl)}, {D if ks else 0}")
            for x in SC[g] + VE[g]:
                p(x)
            if ks == 15:
                if g == 0:
                    p("v_add_u32 v4, s53, v2")
                    p("v_add_u32 v13, 0x10000, v4")
                g2 = g - 8
                if g2 >= 0 and g2 % 4:
                    p(f"ds_write_b128 v{13 if g2 % 4 == 3 else 4}, {v(GACC + 16*(g2//4) + 4*(g2 % 4), 4)} offset:{((g2 % 4 - 1) % 2)*32768 + (g2//4)*1024}", tag=("wr", ("X", 0)))
        assert not SC[28]
    assert nexta == 16 and nextb == 16
    stamp(p, 12)
    for nl in range(1, 4):
        p(f"s_sub_u32 s34, {s(S_W)}, {nl}")
        p(f"s_and_b32 s34, s34, 3")
        p(f"s_lshl_b32 s34, s34, 13")
        p(f"s_add_u32 s34, s34, {(nl-1)*32768}")
        p(f"v_add_u32 v{4+nl}, s34, v2")
    for mt in range(5, 7):
        for nl in range(1, 4):
            p(f"ds_write_b128 v{13 if nl == 3 else 4}, {v(GACC + 16*mt + 4*nl, 4)} offset:{((nl-1) % 2)*32768 + mt*1024}", tag=("wr", ("X", 0)))
    p("s_waitcnt lgkmcnt(0)")
    p("s_barrier")
    for mt in range(7):
        for nl in range(1, 4):
            p(f"ds_read_b128 {v(GACC + 16*mt + 4*nl, 4)}, v{4+nl} offset:{mt*1024}", tag=("rd", ("X", 0)))
    p(f"""
    s_mul_i32 s34, s58, {28*1024}
    s_add_u32 s34, s34, {WS_U}
    s_mul_i32 s35, s50, 7
    s_add_u32 s36, s35, 1
    s_lshr_b32 s36, s36, 1
    s_lshl_b32 s36, s36, 10
    s_add_u32 s36, s36, s34
    s_and_b32 s37, s50, 1
    s_mul_i32 s37, s37, {4096 - 512}
    s_sub_u32 s37, s36, s37
    s_add_u32 s37, s37, 3072
    v_lshlrev_b32 v14, 3, v1
    v_lshlrev_b32 v{Z1+14}, 16, v{Z1+14}
    """)
    def red(mt, n=2):
        X = GACC + 16*mt
        for h in range(n):
            p(f"v_pk_add_f32 {v(X+2*h,2)}, {v(X+2*h,2)}, {v(X+4+2*h,2)}")
            p(f"v_pk_add_f32 {v(X+8+2*h,2)}, {v(X+8+2*h,2)}, {v(X+12+2*h,2)}")
        for h in range(n):
            p(f"v_pk_add_f32 {v(X+2*h,2)}, {v(X+2*h,2)}, {v(X+8+2*h,2)}")
    p(f"v_mov_b32 v8, v{Z1+14}")
    for ft in range(7):
        red(ft)
        X = GACC + 16*ft
        for h in range(2):
            p(f"v_pk_add_f32 {v(X+2*h,2)}, {v(X+2*h,2)}, v[8:9] op_sel_hi:[1,0]")
            p(f"v_lshlrev_b32 v{10+2*h}, 16, v{Z1+2*ft+h}")
            p(f"v_and_b32 v{11+2*h}, 0xffff0000, v{Z1+2*ft+h}")
            p(f"v_pk_mul_f32 {v(X+2*h,2)}, {v(X+2*h,2)}, {v(10+2*h,2)}")
        Y = GACC + 16*(ft & ~1) + 4 + 2*(ft % 2)
        p(f"v_cvt_pk_bf16_f32 v{Y}, v{X}, v{X+1}")
        p(f"v_cvt_pk_bf16_f32 v{Y+1}, v{X+2}, v{X+3}")
        if ft % 2 == 1:
            p(f"buffer_store_dwordx4 {v(Y-2,4)}, v2, {W4}, s36 offen offset:{(ft//2)*1024} sc1", tag=("wr", ("U", 0), "private"))
        if ft == 6:
            p(f"buffer_store_dwordx2 {v(Y,2)}, v14, {W4}, s37 offen sc1", tag=("wr", ("U", 0), "private"))
    p("s_barrier")
    OACC = 64; A_B = 0; A_FO = 112; NRO = 8
    p(f"""
    v_bfe_u32 v8, v0, 4, 2
    s_lshl_b32 s14, s51, 7
    s_add_u32 s14, s14, {WS_FLAG + 12288}
    """)
    NW0 = opts.get("nw0", 5)
    for ks in range(4, NW0):
        p.extend(flat([wdma(ks)]))
    p("s_lshl_b32 s15, 1, s50")
    signal(p, SRD_W, 14, S_W, "o" + name, vt=48, keys=[("U", 0)], val="s15")
    stamp(p, 13)
    p(f"s_cmp_ge_u32 {s(S_PB)}, 28")
    p(f"s_cbranch_scc1 L_bump{name}")
    p.begin_side()
    p(f"""
    L_bump{name}:
    s_cmp_lg_u32 s2, 255
    s_cbranch_scc1 L_end{name}
    s_add_u32 s12, s100, 1
    s_add_u32 s13, s101, 1
    v_mov_b32 v4, s12
    v_mov_b32 v5, s13
    v_mov_b32 v6, {WS_EP}
    buffer_store_dwordx2 v[4:5], v6, {W4}, 0 offen sc1
    s_endpgm
    """)
    p.end_side()
    for ks in range(NW0, 7):
        p.extend(flat([wdma(ks)]))
    X1 = 16; GB = 24
    for nl in range(4):
        p(f"s_add_u32 s36, {s(S_W)}, {nl}")
        p(f"s_and_b32 s36, s36, 3")
        p(f"s_lshl_b32 s37, s33, 2")
        p(f"s_add_u32 s36, s36, s37")
        p(f"s_mul_i32 s36, s36, {28*1024}")
        p(f"s_mul_i32 s37, {s(S_W)}, 7168")
        p(f"s_add_u32 s36, s36, s37")
        p(f"s_add_u32 s{4+nl}, s36, {WS_U}")
        p(f"s_add_u32 s{8+nl}, s{4+nl}, 4096")
    p(f"""
    s_lshl_b32 s36, s33, 2
    s_add_u32 s36, s36, {s(S_W)}
    s_mul_i32 s37, s36, {14*1024}
    s_lshl_b32 s38, s32, 11
    s_add_u32 s37, s37, s38
    s_add_u32 s37, s37, {WS_X1}
    buffer_load_dwordx4 {v(X1,4)}, v2, {W4}, s37 offen sc1
    buffer_load_dwordx4 {v(X1+4,4)}, v2, {W4}, s37 offen offset:1024 sc1
    v_lshlrev_b32 v9, 4, v8
    s_lshl_b32 s38, s32, 8
    s_add_u32 s38, s38, {WS_MOD + 5*1792}
    """)
    for ct in range(4):
        p(f"buffer_load_dwordx4 {v(GB+4*ct,4)}, v9, {W4}, s38 offen offset:{64*ct} sc1")
    p(f"""
    v_lshrrev_b32 v3, 2, v1
    v_lshlrev_b32 v3, 7, v3
    v_bfe_u32 v10, v0, 3, 2
    v_lshl_add_u32 v3, v10, 5, v3
    v_and_b32 v10, 3, v0
    v_lshl_add_u32 v3, v10, 3, v3
    v_add_u32 v12, s53, v3
    v_xor_b32 v13, 32, v12
    v_xor_b32 v14, 64, v12
    v_xor_b32 v15, 0x60, v12
    v_add_u32 v56, 98304, v12
    v_add_u32 v57, 98304, v13
    v_add_u32 v58, 98304, v14
    v_add_u32 v59, 98304, v15
    v_mov_b32 v10, 0
    v_lshlrev_b32 v11, 3, v1
    s_lshl_b32 s15, s33, 7
    s_add_u32 s15, s15, {WS_FLAG + 12288}
    """)
    p(f"s_lshl_b32 s36, {s(S_W)}, 1")
    p("s_lshl_b32 s36, 3, s36")
    poll(p, SRD_W, 15, 10, 48, "o" + name, 56, "s36", mask="s36")
    stamp(p, 14)
    ul = [I(f"buffer_load_dwordx4 {a(A_B + 16*ks + 4*nl, 4)}, v2, {W4}, s{4 + nl + 4*(ks//4)} offen offset:{(ks % 4)*1024}{LD}")
          for ks in range(7) for nl in range(4)]
    ul[12:16] = [I(f"buffer_load_dwordx2 {a(A_B + 48 + 4*nl + 2*h, 2)}, v11, {W4}, s{4 + nl} offen offset:{3072 + 512*h}{LD}")
                 for nl in range(4) for h in range(2)]
    p.extend(ul[:20]); ul = ul[20:]
    def rd(f):
        ks, ct = f // 4, f % 4
        return [I(f"ds_read_b64_tr_b16 {a(A_FO + 4*(f % NRO) + 2*e, 2)}, v{(56 if ks < 4 else 12)+ct} offset:{WOFFS[ks] - (98304 if ks < 4 else 0) + e*2048}",
                  tag=("rd", (f"W{ks}", 0), "private")) for e in range(2)]
    PFO = 4
    YO = [0, 0, 4096, 32768]
    for f in range(PFO):
        p.extend(rd(f))
    for f in range(28):
        ks, ct = f // 4, f % 4
        nx = f + PFO
        for nl in range(4):
            D = v(OACC + 16*ct + 4*nl, 4)
            p(f"v_mfma_f32_16x16x32_bf16 {D}, {a(A_FO + 4*(f % NRO), 4)}, {a(A_B + 16*ks + 4*nl, 4)}, {D if ks else 0}")
            if nx < 28 and nl < 2:
                p(rd(nx)[nl])
            if nl == 2 and ul:
                p(ul.pop(0))
            if nl == 3 and f + 1 < 28:
                p(f"WAITFOR {a(A_FO + 4*((f+1) % NRO), 4)}, {a(A_B + 16*((f+1)//4), 16)}")
            if f == 20 and nl == 2:
                p("v_add_u32 v4, s53, v2")
                p("v_add_u32 v4, 98304, v4")
            if f >= 26 and nl:
                p(f"ds_write_b128 v4, {v(OACC + 16*(f-26) + 4*nl, 4)} offset:{YO[nl] + (f-26)*1024}", tag=("wr", ("Y", 0)))
    for nl in range(1, 4):
        p(f"s_sub_u32 s36, {s(S_W)}, {nl}")
        p(f"s_and_b32 s36, s36, 3")
        p(f"s_lshl_b32 s36, s36, 13")
        p(f"s_add_u32 s36, s36, 98304")
        p(f"v_add_u32 v{4+nl}, s36, v2")
    for ct in range(2, 4):
        for nl in range(1, 4):
            p(f"ds_write_b128 v4, {v(OACC + 16*ct + 4*nl, 4)} offset:{YO[nl] + ct*1024}", tag=("wr", ("Y", 0)))
    p("s_waitcnt lgkmcnt(0)")
    p("s_barrier")
    for ct in range(4):
        for nl in range(1, 4):
            p(f"ds_read_b128 {v(OACC + 16*ct + 4*nl, 4)}, v{4+nl} offset:{YO[nl] + ct*1024}", tag=("rd", ("Y", 0)))
    p(f"""
    v_and_b32 v3, 15, v0
    v_mul_u32_u24 v3, 896, v3
    v_lshl_add_u32 v3, v8, 4, v3
    s_lshl_b32 s36, s33, 2
    s_add_u32 s36, s36, {s(S_W)}
    s_mul_i32 s36, s36, {16*896}
    s_lshl_b32 s37, s32, 7
    s_add_u32 s36, s36, s37
    """)
    for ct in range(4):
        X = OACC + 16*ct
        for h in range(2):
            p(f"v_pk_add_f32 {v(X+2*h,2)}, {v(X+2*h,2)}, {v(X+4+2*h,2)}")
            p(f"v_pk_add_f32 {v(X+8+2*h,2)}, {v(X+8+2*h,2)}, {v(X+12+2*h,2)}")
        for h in range(2):
            p(f"v_pk_add_f32 {v(X+2*h,2)}, {v(X+2*h,2)}, {v(X+8+2*h,2)}")
            p(f"v_lshlrev_b32 v{10}, 16, v{X1+2*ct+h}")
            p(f"v_and_b32 v{11}, 0xffff0000, v{X1+2*ct+h}")
            p(f"v_pk_fma_f32 {v(X+2*h,2)}, {v(X+2*h,2)}, {v(GB+4*ct+2*h,2)}, v[10:11]")
        k, odd = ct // 2, ct % 2
        O = 40 + 4*k + 2*odd
        p(f"v_cvt_pk_bf16_f32 v{O}, v{X}, v{X+1}")
        p(f"v_cvt_pk_bf16_f32 v{O+1}, v{X+2}, v{X+3}")
        if odd:
            O = 40 + 4*k
            p(f"v_permlane32_swap_b32 v{O}, v{O+2}")
            p(f"v_permlane32_swap_b32 v{O+1}, v{O+3}")
            p(f"v_permlane16_swap_b32 v{O}, v{O+2}")
            p(f"v_permlane16_swap_b32 v{O+1}, v{O+3}")
            p(f"buffer_store_dwordx4 {v(O,4)}, v3, {s(SRD_Q,4)}, s36 offen offset:{64*k}")
    k_prep.STAMP["on"] = son
    if opts.get("diag"):
        p("s_waitcnt vmcnt(0)")
        stamp(p, 15)
        p("v_mov_b32 v1, 0")
        p("s_mov_b64 exec, 1")
        p("s_not_b32 s14, s61")
        p("v_mov_b32 v2, s14")
        p(f"buffer_atomic_umax v2, v1, {s(SRD_D,4)}, 0 offen offset:8 sc1")
        for k, st in enumerate((1, 2, 3, 4, 5, 7, 10, 11, 12, 13, 15)):
            p(f"v_mov_b32 v3, s{61+2*st}")
            p(f"buffer_atomic_umax v3, v1, {s(SRD_D,4)}, 0 offen offset:{12+4*k} sc1")
            p("s_nop 1")
        p("s_mov_b64 exec, -1")
        k_prep.STAMP["on"] = False
    stamp_dump(p, opts.get("slot", 1), NSTAMP, SRD_W, S_W)
    p(f"L_end{name}:")
    p("s_endpgm")
    if opts.get("gabl") or opts.get("oabl"):
        p.check_lds = lambda: None
    p.finalize()
    return p


def gen_mega(opts=None):
    p0 = build_mega(opts or {})
    if (opts or {}).get("plain"):
        return p0, "; @launch grid=(256,1,1) block=(256,1,1) lds=163840\n"
    return p0, f"; @launch kernel={p0.name} grid=(256,1,1) block=(256,1,1) lds=163840\n"
```

```python
import sys
sys.path.insert(0, "work")
from k_attn import *
from k_z import gelu_pairs, C1, C2
from k_prep import LOG2E, QSCALE, xreduce
from k_red import emit_red_early
NSTAMP = 16

def build_mega(opts):
    opts = opts or {}
    name = opts.get("name", "adaLN_cond__gqa_block_cached__mixer_gmlp__prompt_kernel")
    p = Prog(name)
    at = Attn(opts)
    LD = opts.get("ld", " sc1")
    thr = opts.get("thr", 0x5f800000)
    SRD_D = 92
    p(f"""
    s_cmp_ge_u32 s2, 256
    s_cbranch_scc1 L_end{name}
    s_load_dwordx4 s[52:55], s[0:1], 80
    s_load_dwordx2 s[50:51], s[0:1], 0
    s_load_dwordx8 s[4:11], s[0:1], 8
    s_load_dwordx4 s[56:59], s[0:1], 104
    v_lshrrev_b32 v1, 6, v0
    v_readfirstlane_b32 {s(S_W)}, v1
    s_and_b32 {s(S_J)}, s2, 7
    s_lshr_b32 {s(S_PB)}, s2, 3
    v_and_b32 v1, 63, v0
    v_lshlrev_b32 {v(V_LIN)}, 4, v1
    s_lshr_b32 {s(S_HD)}, {s(S_W)}, 1
    s_and_b32 s14, {s(S_W)}, 1
    s_lshl_b32 {s(S_QT)}, {s(S_PB)}, 2
    s_lshl_b32 s14, s14, 1
    s_add_u32 {s(S_QT)}, {s(S_QT)}, s14
    v_mov_b32 v2, 0x40000000
    v_cmp_gt_u32 vcc, 56, v1
    v_cndmask_b32 v19, v2, {v(V_LIN)}, vcc
    v_add_u32 v18, 144, v19
    v_add_u32 v17, 288, v19
    v_add_u32 v16, 432, v19
    s_lshl_b32 s14, {s(S_PB)}, 2
    s_add_u32 s14, s14, {s(S_W)}
    s_mul_i32 s14, s14, {16*896}            ; x soffset
    s_mul_i32 s15, {s(S_W)}, {SLOT}
    s_add_u32 s15, s15, {4*SLOT}
    s_waitcnt lgkmcnt(0)
    """)
    stamp(p, 0)
    ep = I(f"s_load_dwordx2 s[100:101], s[58:59], {WS_EP}"); ep.kind = "salu"
    p(ep)
    srd(p, SRD_W, 58, 59, WS_USED)
    srd(p, SRD_D, 56, 57, 256)
    srd(p, SRD_V, 54, 55, 448 * 5376)
    srd(p, SRD_O, 52, 53, 896)
    srd(p, SRD_K, 50, 51, 2048 * 896 + 432)
    p(f"""
    s_sub_u32 {s(SRD_K)}, {s(SRD_K)}, 432
    s_subb_u32 {s(SRD_K+1)}, {s(SRD_K+1)}, 0
    s_mov_b32 s31, 0
    v_and_b32 v127, 31, v0
    v_lshlrev_b32 v125, 3, v127
    s_mov_b32 s32, 0x40000000
    s_mov_b32 s33, 0x40000000
    """)
    MW = 72; CR = 100; MC = 20; MA = 36; MT = 44
    def raw(txt):
        x = I(txt); x.kind = "salu"; x.writes = []; return x
    p(f"""
    v_and_b32 v{MT}, 3, v0
    v_lshrrev_b32 v{MT+1}, 2, v0
    v_mul_u32_u24 v{MT+2}, 14, v{MT+1}
    v_mul_u32_u24 v{MT+3}, {7*5376}, v{MT+1}
    v_lshl_add_u32 v{MT+3}, v{MT}, 4, v{MT+3}
    s_lshl_b32 s12, s2, 6
    v_and_b32 v{MT+2}, -4, v{MT+2}
    s_cmp_ge_u32 s2, 28
    s_cbranch_scc1 L_mod1r{name}
    """)
    def wloads(f):
        for i in range(7):
            p(f(f"buffer_load_dwordx4 {v(MW+4*i,4)}, v{MT+3}, {s(SRD_V,4)}, s12 offen"))
            if i < 6:
                p(f"s_add_u32 s12, s12, 5376")
        p(f(f"buffer_load_dwordx4 {v(CR,4)}, v{MT+2}, {s(SRD_O,4)}, 0 offen"))
    wloads(raw)
    p(f"L_mod1r{name}:")
    XK = [(4, -1), (5, -1), (6, -1), (7, -1)]
    NX0 = opts.get("nx0", 16)
    def xdma(ms):
        for m in ms:
            if m % 4 == 0:
                p(f"s_add_u32 m0, s15, {m*1040}")
            p(f"buffer_load_dwordx4 v{16 + m % 4}, {s(SRD_K,4)}, s14 offen offset:{(m % 4)*1040} lds", tag=("dma", XK))
            if m % 4 == 3:
                p(f"s_add_u32 s14, s14, {4*896}")
    xdma(range(NX0))
    def modblock(urgent, MW=MW, CR=CR, MC=MC, MA=MA, MT=MT, MS=MT+8, scr=MODL+4096, pre=()):
        tg = ("u" if urgent else "n") + name
        st_ = opts.get("pst") and urgent
        if urgent:
            p("s_cmp_ge_u32 s2, 28")
        else:
            p("s_cmp_ge_u32 s58, 56")
        p(f"s_cbranch_scc1 L_mod2r{tg}")
        p.extend(pre)
        p(f"s_mov_b32 s13, {f2u(-LOG2E)}")
        p(f"v_bfe_u32 v{MT+1}, v0, 2, 1")
        p(f"v_lshlrev_b32 v{MT+1}, 4, v{MT+1}")
        if st_: stamp(p, 5)
        if urgent:
            p(raw(f"s_waitcnt vmcnt({NX0 + NYG})"))
        if st_: stamp(p, 6)
        for j in range(4):
            p(f"v_alignbit_b32 v{CR+j}, v{CR+min(j+1,3)}, v{CR+j}, v{MT+1}")
        for i in range(7):
            p(f"v_lshlrev_b32 v{MC+i}, 16, v{CR+i//2}" if i % 2 == 0 else f"v_and_b32 v{MC+i}, 0xffff0000, v{CR+i//2}")
        for i in range(7):
            p(f"v_mul_f32 v{MC+8+i}, s13, v{MC+i}")
        for i in range(7):
            p(f"v_exp_f32 v{MC+8+i}, v{MC+8+i}")
        for i in range(7):
            p(f"v_add_f32 v{MC+8+i}, 1.0, v{MC+8+i}")
        for i in range(7):
            p(f"v_rcp_f32 v{MC+8+i}, v{MC+8+i}")
        for i in range(7):
            p(f"v_mul_f32 v{MC+8+i}, v{MC+8+i}, v{MC+i}")
            p(f"v_cvt_pk_bf16_f32 v{MC+8+i}, v{MC+8+i}, v{MC+8+i}")
            p(f"v_lshlrev_b32 v{MS+2*i}, 16, v{MC+8+i}")
        for i in range(7):
            for d in range(4):
                w = MW + 4*i + d
                t = MC + 2 * d
                p(f"v_lshlrev_b32 v{t}, 16, v{w}")
                p(f"v_and_b32 v{t+1}, 0xffff0000, v{w}")
                if i == 0:
                    p(f"v_pk_mul_f32 {v(MA+2*d,2)}, {v(t,2)}, {v(MS,2)} op_sel_hi:[1,0]")
                else:
                    p(f"v_pk_fma_f32 {v(MA+2*d,2)}, {v(t,2)}, {v(MS+2*i,2)}, {v(MA+2*d,2)} op_sel_hi:[1,0,1]")
        for sh in (4, 8):
            for k in range(8):
                p(f"v_add_f32_dpp v{MA+k}, v{MA+k}, v{MA+k} row_ror:{sh} row_mask:0xf bank_mask:0xf")
        if st_: stamp(p, 7)
        p(f"""
        v_lshrrev_b32 v{MT+1}, 4, v0
        v_lshlrev_b32 v{MT+1}, 7, v{MT+1}
        v_and_b32 v{MT}, 3, v0
        v_lshl_add_u32 v{MT}, v{MT}, 5, v{MT+1}
        v_add_u32 v{MT}, {scr}, v{MT}
        ds_write_b128 v{MT}, {v(MA,4)}
        ds_write_b128 v{MT}, {v(MA+4,4)} offset:16
        v_lshlrev_b32 v{MT+1}, 2, v0
        v_add_u32 v{MT+1}, {scr}, v{MT+1}
        """)
        p(raw("s_waitcnt lgkmcnt(0)"))
        p(raw("s_barrier"))
        p(f"s_cmp_lg_u32 {s(S_W)}, 0")
        p(f"s_cbranch_scc1 L_mod2r{tg}")
        if st_: stamp(p, 8)
        for i in range(8):
            p(f"ds_read_b32 v{MW+i}, v{MT+1} offset:{256*i}")
        for st in (4, 2, 1):
            for i in range(st):
                p(f"v_add_f32 v{MW+i}, v{MW+i}, v{MW+i+st}")
        p(f"""
        v_mov_b32 v{MW+1}, v{MW}
        v_permlane32_swap_b32 v{MW}, v{MW+1}
        v_add_f32 v{MW}, v{MW}, v{MW+1}
        v_cvt_pk_bf16_f32 v{MW}, v{MW}, v{MW}
        v_lshlrev_b32 v{MW}, 16, v{MW}
        v_add_f32 v{MW+1}, 1.0, v{MW}
        v_cvt_pk_bf16_f32 v{MW+1}, v{MW+1}, v{MW+1}
        v_lshlrev_b32 v{MW+1}, 16, v{MW+1}
        s_sub_u32 s12, {'s2' if urgent else 's58'}, {14 if urgent else 28}
        s_cmp_lt_u32 s12, 14
        s_cselect_b64 vcc, -1, 0
        v_cndmask_b32 v{MW}, v{MW}, v{MW+1}, vcc
        """)
        if urgent:
            p(f"""
            s_add_u32 s12, s100, 1
            s_add_u32 s13, s101, 1
            s_and_b32 s13, s13, 0xffff
            v_or_b32 v{MW}, s13, v{MW}
            v_mov_b32 v{MW+1}, s12
            s_lshl_b32 s33, s2, 8
            s_add_u32 s33, s33, {WS_MG}
            L_mod2r{tg}:
            buffer_store_dwordx2 {v(MW,2)}, v125, {s(SRD_W,4)}, s33 offen sc1
            """)
        else:
            p(f"""
            s_lshl_b32 s12, s58, 7
            v_and_b32 v{MT}, 31, v0
            v_lshlrev_b32 v{MT}, 2, v{MT}
            s_mov_b32 s57, 0
            """)
            p(raw(f"buffer_store_dword v{MW}, v{MT}, {s(SRD_W,4)}, s12 offen offset:{WS_MOD + 28*128} sc1"))
            p(f"L_mod2r{tg}:")
    assert NX0 == 16
    V_MRD = 3
    p(f"s_mul_i32 {s(S_M0V)}, {s(S_W)}, 4160")
    p(f"""
    v_bfe_u32 v1, v0, 5, 1              ; hh
    v_and_b32 v2, 31, v0
    v_lshlrev_b32 {v(V_TMP)}, 1, v1
    v_xor_b32 v2, v2, {v(V_TMP)}        ; chunk
    v_lshlrev_b32 v1, 3, v1
    v_add_u32 v1, {s(S_W)}, v1          ; 8hh + w
    v_lshlrev_b32 v1, 13, v1
    v_lshl_add_u32 {v(V_WDMA)}, v2, 4, v1
    """)
    for jj in range(1, 4):
        p(f"v_add_u32 {v(V_WDMA+jj)}, {(16*(jj % 2) + 4*(jj//2))*8192 - jj*1024}, {v(V_WDMA)}")
    def emit_wfill(which, st):
        for hf in range(2):
            pre, d = at.wfill(which, st, hf)
            p.extend(pre); p.extend(d)
    p(f"""
    s_mul_i32 s52, {s(S_HD)}, 896
    s_add_u32 s52, s52, {MODL}
    v_bfe_u32 v1, v0, 2, 2
    v_mul_u32_u24 v1, 4160, v1
    v_and_b32 v2, 3, v0
    v_lshl_add_u32 v1, v2, 3, v1
    v_bfe_u32 v2, v0, 4, 2
    v_lshl_add_u32 v1, v2, 9, v1
    v_lshlrev_b32 v{V_MRD}, 5, v2
    v_add_u32 v{V_MRD}, s52, v{V_MRD}
    v_and_b32 v120, 15, v0
    v_mul_u32_u24 v120, 1040, v120
    v_lshl_add_u32 v120, v2, 4, v120
    s_and_b32 s14, {s(S_W)}, 1
    s_mul_i32 s14, s14, {2*SLOT}
    s_mul_i32 s15, {s(S_HD)}, 448
    s_add_u32 s14, s14, s15
    s_add_u32 s14, s14, {4*SLOT}
    v_add_u32 v120, s14, v120
    v_bfe_u32 v2, v0, 4, 1
    v_lshl_add_u32 {v(V_TMP)}, v2, 5, v1
    s_mul_i32 s14, {s(S_HD)}, {SLOT}
    v_add_u32 {v(V_WRD)}, s14, {v(V_TMP)}
    v_xor_b32 {v(V_WRD+1)}, 32, {v(V_WRD)}
    v_add_u32 {v(V_WRD+2)}, {4*SLOT}, {v(V_WRD)}
    v_add_u32 {v(V_WRD+3)}, {4*SLOT}, {v(V_WRD+1)}
    s_lshl_b32 s14, {s(S_W)}, 12
    s_add_u32 s14, s14, {8*SLOT}
    v_add_u32 {v(V_XW)}, s14, {v(V_LIN)}
    v_xor_b32 {v(V_XR)}, 0x2000, {v(V_XW)}
    """)
    MBP = opts.get("mbp", 0)
    NYG = [0, 2, 2 + 8 * opts.get("nearly", 1)][MBP]
    if MBP == 0: modblock(True)
    srd(p, SRD_Q, 8, 9, 448 * 8192)
    V_MRD = 3
    p(f"""
    s_mul_i32 {s(S_M0V)}, {s(S_W)}, 4160
    s_lshl_b32 {s(S_M0K)}, {s(S_W)}, 12
    s_lshl_b32 {s(S_WBASE)}, {s(S_J)}, 10
    v_lshrrev_b32 v1, 3, v0
    v_min_u32 v1, 13, v1
    v_lshlrev_b32 v1, 13, v1
    v_and_b32 v2, 7, v0
    v_lshl_add_u32 v1, v2, 7, v1
    s_mul_i32 s53, {s(S_PB)}, {14*8192}
    s_add_u32 s53, s53, {s(S_WBASE)}
    buffer_load_dword v{V_O+127}, v1, {s(SRD_Q,4)}, s53 offen
    """)
    code_prefetch(p, name, f"L_end{name}", 22, 1, V_O + 126)
    if MBP == 1: modblock(True)
    NE = opts.get("nearly", 1)
    for st in range(NE):
        emit_wfill("Q", st)
    if MBP == 2: modblock(True)
    if opts.get("pst"): stamp(p, 9)
    p(I("WAITTAG", tag=XK))
    p("s_barrier")
    for ks in range(7):
        for qt in range(2):
            p(f"ds_read_b128 {v(V_H+8*ks+4*qt,4)}, v120 offset:{qt*SLOT + 64*ks}", tag=("rd", XK))
    if NE < 1: emit_wfill("Q", 0)
    F = V_O
    SA = 112
    for k in range(56):
        qt = (k // 4) % 2
        p(f"v_lshlrev_b32 v{F+2*k}, 16, v{V_H+k}")
        p(f"v_and_b32 v{F+2*k+1}, 0xffff0000, v{V_H+k}")
        if k in (0, 4):
            p(f"v_pk_mul_f32 {v(SA+4+2*qt,2)}, {v(F+2*k,2)}, {v(F+2*k,2)}")
        else:
            p(f"v_pk_add_f32 {v(SA+2*qt,2)}, {v(F+2*k-2,2) if k in (1, 5) else v(SA+2*qt,2)}, {v(F+2*k,2)}")
            p(f"v_pk_fma_f32 {v(SA+4+2*qt,2)}, {v(F+2*k,2)}, {v(F+2*k,2)}, {v(SA+4+2*qt,2)}")
    for k in range(4):
        p(f"v_add_f32 v{SA+k}, v{SA+2*k}, v{SA+2*k+1}")
    for k in range(4):
        xreduce(p, SA + k, 121 + k, "v_add_f32")
    p(f"ds_write_b128 {v(V_XW)}, {v(SA,4)}", tag=("wr", (8, -1)))
    p("s_waitcnt lgkmcnt(0)")
    p("s_barrier")
    p(f"ds_read_b128 {v(SA+4,4)}, {v(V_XR)}", tag=("rd", (8, -1)))
    if NE < 2: emit_wfill("Q", 1)
    for qt in range(2):
        m_, r_ = 120 + 4*qt, 122 + 4*qt
        p(f"v_add_f32 v{SA+qt}, v{SA+qt}, v{SA+4+qt}")
        p(f"v_add_f32 v{SA+2+qt}, v{SA+2+qt}, v{SA+6+qt}")
        p(f"v_mul_f32 v{m_}, {f2u(1.0/448)}, v{SA+qt}")
        p(f"v_mul_f32 v{r_}, {f2u(1.0/448)}, v{SA+2+qt}")
        p(f"v_fma_f32 v{r_}, -v{m_}, v{m_}, v{r_}")
        p(f"v_max_f32 v{r_}, 0, v{r_}")
        p(f"v_add_f32 v{r_}, {f2u(1e-5)}, v{r_}")
        p(f"v_rsq_f32 v{r_}, v{r_}")
        p(f"v_mul_f32 v{m_}, -v{m_}, v{r_}")
    for k in range(56):
        qt = (k // 4) % 2
        p(f"v_pk_fma_f32 {v(F+2*k,2)}, {v(F+2*k,2)}, {v(122+4*qt,2)}, {v(120+4*qt,2)} op_sel_hi:[1,0,0]")
    NPRE = opts.get("npre", 3)
    for st in range(2, NPRE):
        emit_wfill("Q", st)
    p(f"""
    v_min_u32 v1, {55*16}, {v(V_LIN)}
    s_mul_i32 s14, {s(S_W)}, 1792
    s_add_u32 s14, s14, {WS_MG}
    s_add_u32 s12, s100, 1
    s_add_u32 s13, s101, 1
    s_and_b32 s13, s13, 0xffff
    s_mul_i32 s53, {s(S_W)}, 896
    s_add_u32 s53, s53, {MODL}
    v_lshrrev_b32 v2, 1, v1
    v_add_u32 v2, s53, v2
    s_mov_b32 s56, 0x100000
    """)
    if opts.get("pst"): stamp(p, 1)
    p(f"""
    L_mp{name}:
    buffer_load_dwordx4 v[120:123], v1, {s(SRD_W,4)}, s14 offen sc1
    buffer_load_dwordx4 v[124:127], v1, {s(SRD_W,4)}, s14 offen offset:896 sc1
    s_waitcnt vmcnt(0)
    v_xor_b32 v112, s13, v120
    v_xor_b32 v113, s13, v122
    v_xor_b32 v114, s13, v124
    v_xor_b32 v115, s13, v126
    v_or3_b32 v116, v112, v113, v114
    v_or_b32 v116, v116, v115
    v_and_b32 v116, 0xffff, v116
    v_xor_b32 v117, s12, v121
    v_xor_b32 v118, s12, v123
    v_or3_b32 v116, v116, v117, v118
    v_xor_b32 v117, s12, v125
    v_xor_b32 v118, s12, v127
    v_or3_b32 v116, v116, v117, v118
    v_cmp_ne_u32 vcc, 0, v116
    s_cbranch_vccz L_mq{name}
    s_sleep {opts.get("msleep", 2)}
    s_sub_u32 s56, s56, 1
    s_cmp_lg_u32 s56, 0
    s_cbranch_scc1 L_mp{name}
    L_mq{name}:
    """)
    if opts.get("pst"): stamp(p, 2)
    for k in range(4):
        p(f"v_mul_f32 v{112+k}, {f2u(QSCALE)}, v{112+k}")
    mt = ("wr", ("M", 0))
    p("ds_write_b64 v2, v[112:113]", tag=mt)
    p("ds_write_b64 v2, v[114:115] offset:448", tag=mt)
    for st in range(NPRE, 3):
        emit_wfill("Q", st)
    MB = 72
    def modreads(ks):
        M = MB + 16 * (ks % 3)
        rt = ("rd", ("M", 0))
        return [I(f"ds_read_b128 {v(M + 8*k + 4*h, 4)}, v{V_MRD} offset:{1792*(1-k) + 128*ks + 16*h}", tag=rt)
                for k in range(2) for h in range(2)]
    NUP = 7
    p(I("WAITTAG", tag=[("M", 0)]))
    p("s_barrier")
    p.extend(modreads(0)); p.extend(modreads(1)); p.extend(modreads(2))
    for ks in range(7):
        M = MB + 16 * (ks % 3)
        for k in range(8*ks, 8*ks + 8):
            d = k % 4
            p(f"v_pk_fma_f32 {v(F+2*k,2)}, {v(F+2*k,2)}, {v(M+2*d,2)}, {v(M+8+2*d,2)}")
            p(f"v_cvt_pk_bf16_f32 v{V_H+k}, v{F+2*k}, v{F+2*k+1}")
        if ks + 3 < 7:
            p.extend(modreads(ks + 3))
    stamp(p, 3 if opts.get("pst") else 1)
    srd(p, SRD_O, 10, 11, 4096 * 896)
    p(f"""
    s_lshl_b32 s14, {s(S_J)}, 20
    s_add_u32 {s(SRD_K)}, s4, s14
    s_addc_u32 {s(SRD_K+1)}, s5, 0
    s_mov_b32 {s(SRD_K+2)}, 0x100000
    s_mov_b32 {s(SRD_K+3)}, 0x20000
    s_add_u32 {s(SRD_V)}, s6, s14
    s_addc_u32 {s(SRD_V+1)}, s7, 0
    s_mov_b32 {s(SRD_V+2)}, 0x100000
    s_mov_b32 {s(SRD_V+3)}, 0x20000
    s_mov_b32 {s(S_KOFF)}, 0
    s_mov_b32 {s(S_VOFF)}, 0
    s_mov_b32 {s(S_THR)}, {thr}
    s_lshl_b32 s15, {s(S_W)}, 3
    """)
    setup = f"""
    v_bfe_u32 v1, v0, 5, 1
    v_and_b32 v2, 31, v0
    v_add_u32 v16, s15, v1
    v_lshlrev_b32 v17, 9, v16
    v_and_b32 v16, 15, v16
    v_xor_b32 v16, v16, v2
    v_lshl_add_u32 {v(V_KDMA)}, v16, 4, v17
    v_xor_b32 {v(V_KDMA+1)}, 32, {v(V_KDMA)}
    v_xor_b32 {v(V_KDMA+2)}, 64, {v(V_KDMA)}
    v_xor_b32 {v(V_KDMA+3)}, 96, {v(V_KDMA)}
    v_lshlrev_b32 v16, 2, v1
    v_add_u32 v16, {s(S_W)}, v16
    v_lshlrev_b32 v16, 9, v16
    v_lshlrev_b32 v17, 1, v1
    v_xor_b32 v17, v17, v2
    v_lshl_add_u32 {v(V_VDMA)}, v17, 4, v16
    v_add_u32 {v(V_VDMA+1)}, 3072, {v(V_VDMA)}
    v_add_u32 {v(V_VDMA+2)}, 6144, {v(V_VDMA)}
    v_add_u32 {v(V_VDMA+3)}, 9216, {v(V_VDMA)}
    v_and_b32 v16, 15, v0
    v_bfe_u32 v17, v0, 4, 2
    v_xor_b32 v17, v17, v16
    v_lshlrev_b32 v16, 9, v16
    v_add_u32 v16, {4*SLOT}, v16
    v_lshl_add_u32 {v(V_KRD)}, v17, 4, v16
    v_xor_b32 {v(V_KRD+1)}, 64, {v(V_KRD)}
    v_xor_b32 {v(V_KRD+2)}, 0x80, {v(V_KRD)}
    v_xor_b32 {v(V_KRD+3)}, 0xc0, {v(V_KRD)}
    v_mov_b32 {v(V_VRD)}, {v(V_TMP)}
    v_xor_b32 {v(V_VRD+1)}, 32, {v(V_TMP)}
    v_mov_b32 {v(V_L)}, 0
    v_mov_b32 {v(V_L+1)}, 0
    """
    setup = [I(x.strip()) for x in setup.strip().split("\n")]
    WRA = 21; WRB = 88
    p(f"""
    s_movk_i32 s31, 0x493
    s_and_b32 s12, {s(S_W)}, 1
    s_mul_i32 s13, {s(S_W)}, 7
    """)
    setup.append(I("v_and_b32 v1, 63, v0"))
    for m in range(7):
        setup += [I(f"v_add_u32 v16, {64*m}, v1"), I("v_mul_u32_u24 v16, s31, v16"), I("v_bfe_u32 v16, v16, 17, 2"),
                  I("v_lshlrev_b32 v16, 5, v16"), I(f"v_xor_b32 v{at.WDR[m]}, v16, {v(V_LIN)}")]
    setup += [I("v_lshrrev_b32 v16, 2, v1"), I("v_mul_u32_u24 v16, 896, v16"), I("v_and_b32 v17, 3, v0"),
              I("v_lshl_add_u32 v16, v17, 3, v16"), I("v_bfe_u32 v17, v0, 3, 2")]
    for mt in range(7):
        if mt < 6:
            p(f"s_add_u32 s{52+mt}, s13, s12")
            p(f"s_add_u32 s{52+mt}, s{52+mt}, {mt}")
        else:
            p(f"s_mul_i32 s58, s12, 6")
            p(f"s_sub_u32 s58, s13, s58")
            p(f"s_add_u32 s58, s58, 6")
        setup += [I(f"v_xor_b32 v18, s{52+mt}, v17"), I(f"v_lshl_add_u32 v{WRB+mt}, v18, 5, v16"),
                  I(f"v_add_u32 v{WRA+mt}, {4*SLOT}, v{WRB+mt}")]
    assert (4 * SLOT) % 256 == 0
    def q_mfma(i, t, qt, fr):
        D = v(V_O + 8*t + 4*qt, 4)
        Bop = v(V_H + 8*i + 4*qt, 4) if i < 7 else a(A_HP + 8*(i-7) + 4*qt, 4)
        return f"v_mfma_f32_16x16x32_bf16 {D}, {fr}, {Bop}, {D if i else 0}"
    def q_fills(i):
        st = i + 3
        if i == 0 and NPRE == 4: return []
        if st < 14:
            return [at.wfill("Q", st, hf) + ([],) for hf in range(2)]
        if i == 11: return [at.kvfill("K", 0), at.kvfill("K", 1)]
        if i == 12: return [at.kvfill("K", 2)]
        return [at.kvfill("V", 0), at.kvfill("V", 1, range(at.nafter))]
    def q_bar(i):
        ks = at.wkeys("Q", i + 1) if i < 13 else [at.key("K", 0)]
        i -= 1
        if 0 <= i < 8:
            ks = ks + [(8, i // 2)] if i % 2 == 0 else ks + [("rd", 8, i // 2)]
        return ks
    def q_valu(i):
        out = []
        if i in (8, 9, 10):
            n = 33
            out += setup[(i-8)*n//3:(i-7)*n//3]
        if i in (11, 12, 13):
            n = len(setup) - 33
            out += setup[33+(i-11)*n//3:33+(i-10)*n//3]
        return out
    def q_xds(i):
        out = []
        i -= 1
        if 0 <= i < 8:
            rho = i // 2
            for k in range(4):
                u, qt = 2*rho + k // 2, k % 2
                if u >= 7: continue
                if i % 2 == 0:
                    out.append(I(f"ds_write_b128 {v(V_XW)}, {v(V_H + 8*u + 4*qt, 4)} offset:{1024*k}", tag=("wr", (8, rho))))
                else:
                    out.append(I(f"ds_read_b128 {a(A_HP + 8*u + 4*qt, 4)}, {v(V_XR)} offset:{1024*k}", tag=("rd", (8, rho))))
        return out
    at.gemm_phase(p, "Q", 14, 16, q_mfma, q_fills, q_bar, q_valu, q_xds)
    p("s_load_dwordx4 s[4:7], s[0:1], 48")
    p("s_load_dwordx2 s[8:9], s[0:1], 72")
    p("s_load_dwordx2 s[10:11], s[0:1], 0")
    p("s_load_dwordx2 s[54:55], s[0:1], 80")
    p("s_load_dwordx2 s[56:57], s[0:1], 88")
    p("s_waitcnt lgkmcnt(0)")
    srd(p, SRD_Q, 4, 5, 448 * 3584)
    for g in range(at.gB + 1, 64):
        for (f, e, nx) in at.ds.get(g, []):
            p(at.kread(lambda it: 0, 0, f))
    p(f"""
    s_mul_i32 s53, {s(S_J)}, {512*896}
    s_mul_i32 s59, {s(S_W)}, 7168
    s_add_u32 {s(S_WBASE)}, s53, s59
    """)
    assert (8 * SLOT) & 0x3fff == (8 * SLOT) % 16384 and ((8 * SLOT) % 16384) + 4096 <= 8192
    AW = 184
    p(f"""
    s_sub_u32 s13, s2, 40
    s_lshl_b32 s13, s13, 12
    s_add_u32 s13, s13, {WS_FLAG}
    v_lshlrev_b32 v1, 4, v0
    v_mov_b32 v4, 0
    v_mov_b32 v5, 0
    v_mov_b32 v6, 0
    v_mov_b32 v7, 0
    s_sub_u32 s12, s2, 40
    s_cmp_ge_u32 s12, 36
    s_cselect_b32 s13, 0x40000000, s13
    s_cselect_b32 s31, 0, 1
    s_cmp_eq_u32 {s(S_W)}, 0
    s_cselect_b32 s31, s31, 0
    """)
    p(f"buffer_store_dwordx4 v[4:7], v1, {s(SRD_W,4)}, s13 offen sc1", tag=("wr", ("ZERO", 0), "private"))
    for sx in range(8):
        for qt in range(2):
            X = V_O + 16*sx + 4*qt
            Y = X + 8
            p(f"v_cvt_pk_bf16_f32 v{X}, v{X}, v{X+1}")
            p(f"v_cvt_pk_bf16_f32 v{X+1}, v{X+2}, v{X+3}")
            p(f"v_cvt_pk_bf16_f32 v{Y}, v{Y}, v{Y+1}")
            p(f"v_cvt_pk_bf16_f32 v{Y+1}, v{Y+2}, v{Y+3}")
        for qt in range(2):
            X = V_O + 16*sx + 4*qt
            Y = X + 8
            p(f"v_permlane32_swap_b32 v{X}, v{Y}")
            p(f"v_permlane32_swap_b32 v{X+1}, v{Y+1}")
        for qt in range(2):
            X = V_O + 16*sx + 4*qt
            Y = X + 8
            p(f"v_permlane16_swap_b32 v{X}, v{Y}")
            p(f"v_permlane16_swap_b32 v{X+1}, v{Y+1}")
        for qt in range(2):
            X = V_O + 16*sx + 4*qt
            Y = X + 8
            for k, r in enumerate((X, X+1, Y, Y+1)):
                p(f"v_accvgpr_write_b32 a{A_Q + 8*sx + 4*qt + k}, v{r}")
    stamp(p, 4 if opts.get("pst") else 2)
    lid = [opts.get("lid0", 0)]
    import k_prep
    son = k_prep.STAMP["on"]
    if opts.get("pst"): k_prep.STAMP["on"] = False
    def B(c, fn, aval=None, **kw):
        at.body(p, c, fn, aval=aval, lid=lid[0], **kw)
        if aval != -1:
            at.fallback(p, c % 2, lid[0], aval != 63)
        lid[0] += 1
    B(3, lambda it: -1, aval=-1)
    p("s_mov_b64 s[12:13], s[54:55]")
    p(I("WAITTAG", tag=[("ZERO", 0)]))
    if opts.get("touch", True):
        p(f"""
        v_min_u32 v1, {223 if opts.get("t64", False) else 111}, v0
        v_lshlrev_b32 v1, {6 if opts.get("t64", False) else 7}, v1
        s_mul_i32 s54, {s(S_PB)}, {112*128}
        s_add_u32 s53, s53, s54
        buffer_load_dword v2, v1, {s(SRD_O,4)}, s53 offen
        """)
    exv = None
    if opts.get("warm", True):
        p(f"""
        v_and_b32 v1, 63, v0
        s_lshl_b32 s14, {s(S_J)}, 5
        s_add_u32 s14, s14, {s(S_PB)}
        s_lshl_b32 s14, s14, 15
        s_min_u32 s14, s14, {2048*4096 - 35840}
        s_mul_i32 s15, {s(S_W)}, 640
        s_add_u32 s14, s14, s15
        v_cmp_gt_u32 vcc, 5, v1
        v_cndmask_b32 v3, 0, v1, vcc
        v_lshl_add_u32 v3, v3, 7, s14
        v_mov_b32 v16, s6
        v_mov_b32 v17, s7
        v_mov_b32 v18, 2560
        v_mov_b32 v19, 0
        s_mul_i32 s14, {s(S_PB)}, {14*3584}
        s_mul_i32 s15, {s(S_HD)}, 1792
        s_add_u32 s14, s14, s15
        s_and_b32 s15, {s(S_J)}, 1
        s_mul_i32 s15, s15, 896
        s_add_u32 s14, s14, s15
        s_and_b32 s15, {s(S_W)}, 1
        s_mul_i32 s15, s15, 384
        s_add_u32 s14, s14, s15
        s_mov_b64 exec, 0xf00
        v_and_b32 v3, 3, v1
        v_lshl_add_u32 v3, v3, 7, s14
        v_mov_b32 v16, s4
        v_mov_b32 v17, s5
        v_mov_b32 v18, 3584
        s_mov_b64 exec, -1
        s_mul_i32 s14, s2, {25*128}
        s_min_u32 s14, s14, {896*896 - 28*128}
        s_and_b32 s15, {s(S_W)}, 1
        s_lshl_b32 s15, s15, 7
        s_add_u32 s14, s14, s15
        v_writelane_b32 v3, s14, 6
        v_writelane_b32 v16, s8, 6
        v_writelane_b32 v17, s9, 6
        s_movk_i32 s14, 0x100
        v_writelane_b32 v18, s14, 6
        s_min_u32 s14, s2, 223
        s_lshl_b32 s14, s14, 1
        s_add_u32 s14, s14, {s(S_HD)}
        s_mul_i32 s14, s14, 5376
        s_and_b32 s15, {s(S_W)}, 1
        s_add_u32 s15, s15, 1
        s_mul_i32 s15, s15, 1792
        s_add_u32 s14, s14, s15
        v_writelane_b32 v3, s14, 7
        v_writelane_b32 v16, s56, 7
        v_writelane_b32 v17, s57, 7
        s_movk_i32 s14, 0x80
        v_writelane_b32 v18, s14, 7
        v_add_co_u32 v16, vcc, v16, v3
        v_addc_co_u32 v17, vcc, 0, v17, vcc
        """)
        exv = [(at.gB, I("global_load_dword v20, v[16:17], off"))]
        exv2 = [(at.gJ, I("v_lshl_add_u64 v[16:17], v[16:17], 0, v[18:19]"))]
    B(0, lambda it: 0, aval=0, extra_scalar=[(60, I(f"s_mov_b32 {s(S_CNT)}, 14"))])
    p(f"""
    s_cmp_eq_u32 s31, 0
    s_cbranch_scc1 L_na{name}
    v_mov_b32 v1, 1
    v_mov_b32 v3, 0
    """)
    p("s_mov_b64 exec, 1")
    p(raw(f"buffer_atomic_add v1, v3, {s(SRD_D,4)}, 0 offen offset:4 sc1"))
    p("s_mov_b64 exec, -1")
    p(f"L_na{name}:")
    srd(p, 52, 56, 57, 448 * 5376)
    p(f"""
    v_and_b32 v1, 3, v0
    v_lshrrev_b32 v4, 2, v0
    v_mul_u32_u24 v5, 14, v4
    v_and_b32 v5, -4, v5
    v_mul_u32_u24 v4, {7*5376}, v4
    v_lshl_add_u32 v4, v1, 4, v4
    v_mov_b32 v10, 1
    v_mov_b32 v11, 0x40000000
    v_cmp_ne_u32 vcc, 0, v0
    v_cndmask_b32 v11, 0, v11, vcc
    v_lshlrev_b32 v6, 2, v0
    v_add_u32 v6, {MODL}, v6
    v_mov_b32 v7, {MODL}
    """)
    p.begin_loop(14)
    p(f"L_loop{name}:")
    for c in range(1, 5):
        ex = [(60, I(f"s_sub_u32 {s(S_CNT)}, {s(S_CNT)}, 1"))] if c == 2 else None
        B(c % 4, (lambda c: lambda it: 4*it + c)(c), extra_scalar=ex,
          extra_valu=(exv if c == 1 else exv2 if c == 3 else None) if exv else None)
    p(f"s_cmp_lg_u32 {s(S_CNT)}, 0")
    p(f"s_cbranch_scc1 L_loop{name}")
    p.end_loop()
    ZD = 96
    ZT = 103
    zops = []
    for m in range(7):
        zops += [I(f"v_add_u32 v{ZT}, {64*m}, v1"), I(f"v_mul_u32_u24 v{ZT+1}, s31, v{ZT}"), I(f"v_lshrrev_b32 v{ZT+1}, 16, v{ZT+1}"),
                 I(f"v_mul_u32_u24 v{ZT+2}, 14, v{ZT+1}"), I(f"v_sub_u32 v{ZT}, v{ZT}, v{ZT+2}"),
                 I(f"v_add_u32 v{ZT}, s57, v{ZT}"), I(f"v_subrev_u32 v{ZT+2}, 14, v{ZT}"), I(f"v_min_u32 v{ZT}, v{ZT}, v{ZT+2}"),
                 I(f"v_mul_u32_u24 v{ZT+1}, 3584, v{ZT+1}"), I(f"v_lshl_add_u32 v{ZD+m}, v{ZT}, 4, v{ZT+1}")]
        if m % 4:
            zops.append(I(f"v_subrev_u32 v{ZD+m}, {(m % 4)*1024}, v{ZD+m}"))
    ZBASE = [[2 * SLOT, 3 * 2 * SLOT, 0, 8 * SLOT], [2 * 2 * SLOT, 2 * SLOT, 3 * 2 * SLOT, 8 * SLOT]]
    ZKEYS = [[[(2, 300), (3, 300)], [(6, 300), (7, 300)], [(0, 300), (1, 300)], [(8, 300)]],
             [[(4, 310), (5, 310)], [(2, 310), (3, 310)], [(6, 310), (7, 310)], [(8, 310)]]]
    def zfill(rnd, z1=0):
        gs = []
        so = 34 if z1 else 37
        for hf in range(2):
            pre = [I(f"s_add_u32 m0, s36, {ZBASE[z1][rnd] + hf*4096}")]
            d = [I(f"buffer_load_dwordx4 v{ZD+m}, {s(SRD_Q,4)}, s{so} offen offset:{(m % 4)*1024} lds", tag=("dma", ZKEYS[z1][rnd]))
                 for m in range(4*hf, min(7, 4*hf+4))]
            post = [I(f"s_add_u32 s{so}, s{so}, {4*32*3584}")] if hf else []
            gs.append((pre, d, post))
        return gs
    def flat(gs):
        return [x for g in gs for lst in g for x in lst]
    p(f"""
    v_mov_b32 v8, 4
    buffer_load_dword v9, v8, {s(SRD_D,4)}, 0 offen sc1
    s_movk_i32 s31, 0x124a
    s_and_b32 s57, {s(S_PB)}, 1
    s_lshl_b32 s57, s57, 1
    v_and_b32 v1, 63, v0
    """)
    for av in range(57, 64):
        exx = None
        if av == 59:
            p(f"""
            v_readfirstlane_b32 s14, v9
            s_cmp_lt_u32 s14, 36
            s_cbranch_scc1 L_mslow{name}
            L_mok{name}:
            """)
            p.begin_side()
            p(f"L_mslow{name}:")
            p("s_mov_b32 s14, 0")
            poll(p, SRD_D, 14, 8, 9, "m2" + name, 56, 36, sleep=4)
            p(f"s_branch L_mok{name}")
            p.end_side()
            p(f"s_lshl_b32 s14, {s(S_PB)}, 7")
            p(f"s_add_u32 s14, s14, {WS_FLAG + 4096 + 16}")
            exx = [(2, I(f"buffer_atomic_add v10, v11, {s(SRD_W,4)}, s14 offen sc0 sc1"))]
        if av == 61:
            exx = [(at.gJ, I("ds_write_b32 v6, v10", tag=("wr", ("TK", 0))))]
        if av == 62:
            exx = [(at.gJ, I("ds_read_b32 v10, v7", tag=("rd", ("TK", 0))))]
        if av == 63:
            p(f"""
            v_readfirstlane_b32 s58, v10
            s_cmp_ge_u32 s58, 2
            s_cselect_b32 s58, 64, s58
            s_lshl_b32 s14, {s(S_PB)}, 1
            s_add_u32 s58, s58, s14
            s_lshl_b32 s14, s58, 6
            s_add_u32 s14, s14, {28*64}
            s_cmp_ge_u32 s58, 56
            s_cselect_b32 s14, 0x40000000, s14
            """)
            exx = [(1 + (k * 30) // len(zops), x) for k, x in enumerate(zops)]
            for i in range(7):
                exx += [(2 + 3*i, I(f"buffer_load_dwordx4 {a(AW+4*i,4)}, v4, s[52:55], s14 offen")), (2 + 3*i, I("s_add_u32 s14, s14, 5376"))]
            exx += [(24, I(f"global_load_dwordx4 {a(AW+28,4)}, v5, s[12:13]"))]
        B(av % 4, (lambda av: lambda it: av)(av), aval=av, extra_valu=exx)
    if not opts.get("pst"): stamp(p, 3)
    for qt in range(2):
        at.xreduce(p, V_L + qt, "v_add_f32")
        p(f"v_rcp_f32 v{2+qt}, {v(V_L+qt)}")
    p("s_mov_b32 s57, 0x40000000")
    p(f"WAITFOR {a(AW,32)}")
    p("s_waitcnt lgkmcnt(0)")
    modblock(False, MW=48, CR=76, MC=104, MA=80, MT=120, MS=30, scr=161792,
             pre=[I(f"v_accvgpr_read_b32 v{48+k}, a{AW+k}") for k in range(32)])
    X1B = 28672; X2B = 8 * SLOT
    def xaddr(ks, q):
        return X1B + (4*ks + q) * 1024 if ks < 9 else X2B + (4*(ks-9) + q) * 1024
    XKEY = [(2, 250), (3, 250), (8, 250), ("T", 250)]
    p(f"""
    s_and_b32 s14, {s(S_W)}, 1
    s_lshl_b32 s14, s14, 11
    s_mul_i32 s15, {s(S_HD)}, 32768
    s_add_u32 s15, s15, s14
    s_add_u32 s15, s15, {X1B}
    v_add_u32 v4, s15, {v(V_LIN)}
    s_mul_i32 s15, {s(S_HD)}, {X2B - X1B - 4096}
    s_add_u32 s15, s15, s14
    s_add_u32 s15, s15, {X1B}
    v_add_u32 v5, s15, {v(V_LIN)}
    v_add_u32 v6, {X1B}, {v(V_LIN)}
    v_add_u32 v7, {X2B}, {v(V_LIN)}
    s_lshl_b32 s14, {s(S_PB)}, 7
    s_add_u32 s14, s14, {WS_FLAG}
    v_mov_b32 v13, s14
    v_mov_b32 v10, 1
    v_mov_b32 v9, 12
    s_barrier
    """)
    for u in range(8):
        for qt in range(2):
            X = V_O + 16*u + 4*qt
            Y = X + 8
            sel = "op_sel_hi:[1,0]" if qt == 0 else "op_sel:[0,1] op_sel_hi:[1,1]"
            for r in (X, X+2, Y, Y+2):
                p(f"v_pk_mul_f32 {v(r,2)}, {v(r,2)}, v[2:3] {sel}")
            p(f"v_cvt_pk_bf16_f32 v{X}, v{X}, v{X+1}")
            p(f"v_cvt_pk_bf16_f32 v{X+1}, v{X+2}, v{X+3}")
            p(f"v_cvt_pk_bf16_f32 v{X+2}, v{Y}, v{Y+1}")
            p(f"v_cvt_pk_bf16_f32 v{X+3}, v{Y+2}, v{Y+3}")
            p(f"ds_write_b128 v{4 if u == 0 else 5}, {v(X,4)} offset:{4096*u + 1024*qt}", tag=("wr", XKEY))
    ACC = V_O
    p(f"""
    s_and_b32 s15, {s(S_J)}, 1
    s_lshl_b32 s15, s15, 2
    s_and_b32 s32, {s(S_PB)}, 3
    s_add_u32 s32, s32, s15              ; fb
    s_lshr_b32 s15, {s(S_J)}, 1
    s_lshl_b32 s15, s15, 3
    s_lshr_b32 s33, {s(S_PB)}, 2
    s_add_u32 s33, s33, s15              ; tb
    s_mul_i32 s34, s32, 224
    s_mul_i32 s36, {s(S_W)}, {32*3584}
    s_add_u32 s34, s34, s36
    s_add_u32 s37, s34, 1792
    s_mul_i32 s36, {s(S_W)}, 7168
    """)
    A_OB = 0
    NRW = 8
    def wrd(st, mt):
        pr = at.OPAIR[st % 3]
        reg, off = (WRB + mt, 0) if pr == 0 else (WRA + mt, (pr - 2) * 2 * SLOT)
        f = st * 7 + mt
        return [I(f"ds_read_b64_tr_b16 {a(A_F + 4*(f % NRW) + 2*e, 2)}, v{reg} offset:{off + e*14336}", tag=("rd", at.okeys(st))) for e in range(2)]
    def brd(st):
        ky = [(2, 250), (3, 250), ("T", 250)] if st < 9 else [(8, 250)]
        return [I(f"ds_read_b128 {a(A_OB + 16*(st % 2) + 4*q, 4)}, v{6 if st < 9 else 7} offset:{xaddr(st, q) - (X1B if st < 9 else X2B)}",
                  tag=("rd", ky)) for q in range(4)]
    LF = opts.get("lf", 2)
    for f in range(LF):
        p.extend(wrd(0, f))
    p("s_waitcnt lgkmcnt(0)")
    p("s_barrier")
    if opts.get("ost"): stamp(p, 4)
    p.extend(brd(0))
    G = 28
    gb = G - 4 * LF - 1
    for st in range(16):
        kind = ["m"] * G
        SC = [[] for _ in range(G + 1)]
        VE = [[] for _ in range(G)]
        if st < 15:
            kind[gb] = "B"
            VE[gb] = [I("WAITTAG", tag=at.okeys(st + 1)), I("s_barrier")]
        if 0 < st < 15:
            kind[0] = "B"
            VE[0] = [I("s_barrier")]
        if st + 2 < 16:
            new = [at.ofill(st + 2, hf) + ([],) for hf in range(2)]
        else:
            new = zfill(st - 14)
        newl = []
        for pre, d, post in new:
            for k, x in enumerate(d):
                newl.append((pre if k == 0 else [], x, post if k == len(d) - 1 else []))
        dpos = [3, 5, 7, 9, 12, 14, 16, 20]
        if st == 4:
            newl.append(([], I(f"buffer_atomic_add v10, v11, {s(SRD_D,4)}, s57 offen offset:12 sc1"), []))
        if st == 14:
            newl.append(([], I(f"buffer_load_dword v15, v9, {s(SRD_D,4)}, 0 offen sc1"), []))
        if st == opts.get("eflag", 15):
            newl.append(([], I(f"buffer_load_dword v14, v13, {s(SRD_W,4)}, 0 offen sc1"), []))
        for g, it in zip(dpos, newl):
            pre, x, post = it
            kind[g] = "d"; VE[g] = [x]
            for k, y in enumerate(pre):
                SC[g - len(pre) + k].append(y)
            SC[g + 1] += post
        dsq = []
        for mt in range(7):
            nf = mt + LF
            if nf < 7: rr = wrd(st, nf)
            elif st < 15: rr = wrd(st + 1, nf - 7)
            else: rr = []
            dsq += [(4*mt + k, x) for k, x in enumerate(rr)]
        if st < 15:
            dsq += [(17 + k, x) for k, x in enumerate(brd(st + 1))]
        dsq.sort(key=lambda z: z[0])
        nds = [0] * G
        q = 0
        for g in range(G):
            while kind[g] == "m" and q < len(dsq) and dsq[q][0] <= g and nds[g] < (2 if dsq[q][0] <= g - 2 else 1):
                VE[g].append(dsq[q][1]); nds[g] += 1; q += 1
        assert q == len(dsq)
        ops = []
        mg = [g for g in range(G) if kind[g] == "m" and nds[g] < 2]
        for k, x in enumerate(ops):
            VE[mg[(k * len(mg)) // len(ops)]].append(x)
        for mt in range(1, 8):
            if mt == 7 and st == 15: continue
            g = 4*mt - 1
            while kind[g] != "m" or SC[g]: g -= 1
            ex = f", {a(A_OB + 16*((st+1) % 2), 16)}" if mt == 7 else ""
            SC[g].append(I(f"WAITFOR {a(A_F + 4*((st*7 + mt) % NRW), 4)}{ex}"))
        for g in range(G):
            mt, q = g // 4, g % 4
            D = v(ACC + 16*mt + 4*q, 4)
            p(f"v_mfma_f32_16x16x32_bf16 {D}, {a(A_F + 4*((st*7 + mt) % NRW), 4)}, {a(A_OB + 16*(st % 2) + 4*q, 4)}, {D if st else 0}")
            oabl = opts.get("oabl", "")
            p.extend([x for x in SC[g] + VE[g] if not (("D" in oabl and x.kind == "dma" and st < 14) or ("B" in oabl and x.kind == "barrier")
                                                       or ("R" in oabl and x.kind == "ds_read"))])
        p.extend(SC[G])
        if opts.get("ost") and st in (3, 7, 11): stamp(p, [5, 6, 7][st // 4])
    if opts.get("ost"):
        stamp(p, 8)
        k_prep.STAMP["on"] = False
    if not opts.get("pst"): stamp(p, 4)
    p(f"""
    s_lshl_b32 s14, {s(S_J)}, 7
    s_lshl_b32 s15, {s(S_PB)}, 2
    s_add_u32 s14, s14, s15
    s_mul_i32 s14, s14, {14*1024}
    s_mul_i32 s15, {s(S_W)}, 7
    s_add_u32 s15, s15, 1
    s_lshr_b32 s15, s15, 1
    s_lshl_b32 s15, s15, 10
    s_add_u32 s14, s14, s15
    s_add_u32 s14, s14, {WS_PART}
    s_and_b32 s50, {s(S_W)}, 1
    s_mul_i32 s15, s50, {2*14*1024 - 4096}
    s_add_u32 s15, s15, s14
    s_add_u32 s15, s15, 3072
    s_mul_i32 s51, {s(S_HD)}, {2*SLOT}
    s_add_u32 s51, s51, {4*SLOT + 28672}
    s_lshl_b32 s52, s50, 3
    s_add_u32 s52, s52, s51
    v_add_u32 v4, s52, {v(V_LIN)}
    s_lshl_b32 s52, s50, 11
    s_add_u32 s52, s52, s51
    v_add_u32 v5, s52, {v(V_LIN)}
    """)
    pt = ("wr", ("PT", 0), "private")
    for q in range(4):
        X = ACC + 96 + 4*q
        p(f"v_cvt_pk_bf16_f32 v{X}, v{X}, v{X+1}")
        p(f"v_cvt_pk_bf16_f32 v{X+1}, v{X+2}, v{X+3}")
        p(f"ds_write_b64 v4, {v(X,2)} offset:{1024*q}", tag=("wr", ("MG", 0)))
    for q in range(4):
        for pr in range(3):
            X = ACC + 32*pr + 4*q
            Y = X + 16
            p(f"v_cvt_pk_bf16_f32 v{X}, v{X}, v{X+1}")
            p(f"v_cvt_pk_bf16_f32 v{X+1}, v{X+2}, v{X+3}")
            p(f"v_cvt_pk_bf16_f32 v{X+2}, v{Y}, v{Y+1}")
            p(f"v_cvt_pk_bf16_f32 v{X+3}, v{Y+2}, v{Y+3}")
            p(f"buffer_store_dwordx4 {v(X,4)}, {v(V_LIN)}, {s(SRD_W,4)}, s14 offen offset:{pr*1024} sc1", tag=pt)
        if q < 3:
            p(f"s_add_u32 s14, s14, {14*1024}")
        if q == 0:
            p("s_waitcnt lgkmcnt(0)")
            p("s_barrier")
            for k in range(2):
                p(f"ds_read_b128 {v(ACC+112+4*k,4)}, v5 offset:{1024*k}", tag=("rd", ("MG", 0)))
    for k in range(2):
        p(f"buffer_store_dwordx4 {v(ACC+112+4*k,4)}, {v(V_LIN)}, {s(SRD_W,4)}, s15 offen sc1", tag=pt)
        p(f"s_add_u32 s15, s15, {14*1024}")
    p(f"""
    v_cmp_gt_u32 vcc, 56, v15
    s_cbranch_vccnz L_nslow{name}
    L_nok{name}:
    """)
    p.begin_side()
    p(f"L_nslow{name}:")
    p("s_mov_b32 s14, 0")
    poll(p, SRD_D, 14, 9, 15, "m3" + name, 56, 56, sleep=8)
    p(f"s_branch L_nok{name}")
    p.end_side()
    srd(p, SRD_K, 10, 11, 2048 * 896)
    emit_red_pre(p, S_W, S_PB, S_J, SRD_W, SRD_K, B=184)
    emit_red_early(p, SRD_W, 14)
    p(f"""
    s_lshl_b32 s14, {s(S_PB)}, 7
    s_add_u32 s14, s14, {WS_FLAG}
    """)
    p(f"s_lshl_b32 s15, 1, {s(S_J)}")
    signal(p, SRD_W, 14, S_W, "r" + name, vt=10, keys=[("PT", 0)], val="s15")
    stamp(p, 5)
    zl = [zfill(2), zfill(3), zfill(0, 1)]
    zl = flat(sum(zl, []))
    emit_red(p, S_W, S_PB, SRD_W, 163840 - 512, B=184, idle=zl)
    W4 = s(SRD_W, 4)
    ZACC = 128
    NRZ = 16
    A_H = 0
    A_FZ = 64
    VB = 16; RS = 48; VDB = 64; VRB = 72; Z1 = 80; GACC = 128
    RA = 6; A_A = 0; A_MU = 168; PB0 = 131072
    p(f"""
    s_lshr_b32 s15, {s(S_J)}, 1
    s_lshl_b32 s15, s15, 5
    s_add_u32 s14, s14, s15
    s_add_u32 s14, s14, 4096
    v_and_b32 v1, 63, v0
    v_lshlrev_b32 v2, 4, v1
    v_and_b32 v3, 15, v0                 ; n
    v_bfe_u32 v8, v0, 4, 2               ; g
    s_lshl_b32 s58, s33, 2
    s_add_u32 s58, s58, {s(S_W)}
    s_mul_i32 s4, s58, {14*1024}
    s_add_u32 s4, s4, {WS_H2}
    s_add_u32 s5, s4, 4096
    s_add_u32 s12, s4, 8192
    s_add_u32 s13, s4, 12288
    v_lshrrev_b32 v9, 2, v1
    v_mul_u32_u24 v9, 224, v9
    v_and_b32 v12, 3, v0
    v_lshl_add_u32 v12, v12, 3, v9
    v_add_u32 v13, {4*SLOT}, v12
    v_add_u32 v14, {8*SLOT}, v12
    v_mov_b32 v15, 0
    s_lshl_b32 s15, s33, 7
    s_lshl_b32 s50, {s(S_W)}, 5
    s_add_u32 s15, s15, s50
    s_add_u32 s15, s15, {WS_FLAG + 4096}
    """)
    signal(p, SRD_W, 14, S_W, "z" + name, vt=48, keys=[("H2", 0)])
    stamp(p, 7)
    p("s_cmp_lg_u32 s54, 0")
    p(f"s_cbranch_scc1 L_zf{name}")
    p.extend(zl)
    p(f"L_zf{name}:")
    srd(p, SRD_V, 6, 7, 2048 * 4096 + 4096)
    p(f"""
    s_sub_u32 {s(SRD_V)}, {s(SRD_V)}, 4096
    s_subb_u32 {s(SRD_V+1)}, {s(SRD_V+1)}, 0
    s_mov_b32 s50, s32
    s_mov_b32 s51, s33
    v_lshrrev_b32 v9, 3, v1
    v_lshlrev_b32 v9, 12, v9
    v_and_b32 v4, 7, v0
    v_xor_b32 v4, v4, v8
    v_lshl_add_u32 v4, v4, 4, v9
    v_xor_b32 v5, 64, v4
    """)
    for m in range(8):
        nl = m // 2
        if m % 2 == 0:
            p(f"s_add_u32 s52, {s(S_W)}, {nl}")
            p(f"s_and_b32 s52, s52, 3")
            p(f"s_lshl_b32 s52, s52, 16")
        p(f"s_add_u32 s53, s52, {(m % 2)*32768 + 4096 - (m % 4)*1024}")
        p(f"v_add_u32 v{VDB+m}, s53, v{4 + m % 2}")
    p(f"""
    s_lshl_b32 s52, s51, 18
    s_lshl_b32 s53, {s(S_W)}, 10
    s_add_u32 s52, s52, s53
    s_lshl_b32 s54, s50, 6
    s_lshl_b32 s53, {s(S_W)}, 4
    s_add_u32 s54, s54, s53
    s_mul_i32 s54, s54, 7168
    s_add_u32 s54, s54, {WS_ZZ}
    s_add_u32 s55, s54, 4096
    s_lshl_b32 s53, {s(S_W)}, 13
    v_mov_b32 v4, {f2u(C2)}
    v_mov_b32 v6, {f2u(C1)}
    s_lshl_b32 s38, s50, 6
    s_lshr_b32 s39, s58, 1
    s_add_u32 s38, s38, s39
    s_mul_i32 s38, s38, 7168
    s_and_b32 s39, s58, 1
    s_lshl_b32 s39, s39, 9
    s_add_u32 s38, s38, s39
    s_add_u32 s38, s38, {WS_ZZ}
    s_add_u32 s39, s38, 4096
    v_and_b32 v10, 1, v8
    v_lshlrev_b32 v10, 10, v10           ; (g%2)*1024 : second tile of the pair
    v_lshrrev_b32 v11, 1, v8
    v_lshl_add_u32 v10, v11, 8, v10      ; + (g/2)*256
    v_lshl_add_u32 v10, v3, 4, v10       ; + n*16
    v_lshlrev_b32 v11, 20, v10
    v_and_b32 v11, 0x40000000, v11
    v_or_b32 v11, v11, v10
    """)
    BSL = [0, 2, 1, 3, 4]
    BOV = {0: [0, 1], 1: [2, 3], 2: [4, 5], 3: [6, 7], 4: [8]}
    def bdma(dd, half, first=False):
        pre = [I(f"s_add_u32 m0, s53, {BSL[dd % 5]*32768 + half*4096}")]
        tg = ("dma", [(f"B{dd % 5}", dd)] + [(k, 400) for k in BOV[BSL[dd % 5]]]) if first else ("dma", (f"B{dd % 5}", dd), "private")
        out = [I(f"buffer_load_dwordx4 v{VDB+4*half+k}, {s(SRD_V,4)}, s52 offen offset:{k*1024} lds", tag=tg) for k in range(4)]
        post = [I("s_add_u32 s52, s52, 128")] if half else []
        return pre, out, post
    LEADZ = 6
    def zreads(z1):
        rds = []
        for u in range(14):
            rnd = u // 4
            ab = ZBASE[z1][rnd] + (u % 4) * 7168
            base, off = (12, ab) if ab < 4 * SLOT else (13, ab - 4 * SLOT) if ab < 8 * SLOT else (14, ab - 8 * SLOT)
            for ft in range(7):
                f = u * 7 + ft + 98 * z1
                rds.append([I(f"ds_read_b64_tr_b16 {a(A_FZ + 4*(f % NRZ) + 2*e, 2)}, v{base} offset:{off + e*3584 + 32*ft}",
                              tag=("rd", ZKEYS[z1][rnd])) for e in range(2)])
        return rds
    def zgemm(z1, rds, acc, hook=None):
        for g in range(98):
            for hk in (hook or {}).get(g, []):
                p(hk)
            u, ft = g // 7, g % 7
            f = g + 98 * z1
            D = v(acc + 4*ft, 4)
            Wf = a(A_FZ + 4*(f % NRZ), 4)
            H = a(A_H + 4*u, 4)
            C = D if u else "0"
            p(f"v_mfma_f32_16x16x32_bf16 {D}, {Wf}, {H}, {C}" if z1 else f"v_mfma_f32_16x16x32_bf16 {D}, {H}, {Wf}, {C}")
            if g + 1 < 98 and (g % 2 == 1 or ft == 6):
                ex = f", {a(A_H + 4*(u+1), 4)}" if ft >= 5 and u < 13 else ""
                p(f"WAITFOR {a(A_FZ + 4*((f+1) % NRZ), 4)}, {a(A_FZ + 4*((f+2) % NRZ), 4)}{ex}")
            if g + LEADZ < 98:
                p.extend(rds[g + LEADZ])
    def interleave(gl, bl):
        step = max(1, len(gl) // len(bl))
        for k, x in enumerate(gl):
            if k % step == 0 and bl:
                p.extend(bl.pop(0))
            p(x)
        for x in bl:
            p.extend(x)
    def groups(gs):
        out = []
        for pre, o, post in gs:
            for k, x in enumerate(o):
                out.append((pre if k == 0 else []) + [x] + (post if k == len(o) - 1 else []))
        return out
    rz = zreads(0)
    for x in rz[:LEADZ]:
        p.extend(x)
    poll(p, SRD_W, 15, 15, 48, "z" + name, 56, 2)
    stamp(p, 8)
    for u in range(14):
        p(f"buffer_load_dwordx4 {a(A_H+4*u,4)}, v2, {W4}, s{[4,5,12,13][u//4]} offen offset:{(u % 4)*1024}{LD}")
    hk = {29: ["s_barrier"]}
    NZI = opts.get("nzi", 1)
    for r in range(NZI):
        g0 = 28 * (r + 1) + 2
        if r: hk.setdefault(g0 - 1, []).append("s_barrier")
        for k, x in enumerate(groups(zfill(r + 1, 1))):
            hk.setdefault(g0 + 3 * k, []).extend(x)
    zgemm(0, rz, ZACC, hook=hk)
    p("s_barrier")
    if not opts.get("zst"): stamp(p, 9)
    gp = Prog("tmp")
    gelu_pairs(gp, [ZACC + 2*k for k in range(14)], 24)
    interleave(gp.items, groups(sum([zfill(r, 1) for r in range(NZI + 1, 4)], [])))
    for k in range(0, 4, 2):
        p(f"v_pk_add_f32 {v(32+k,2)}, {v(ZACC+k,2)}, {v(ZACC+4+k,2)}")
        p(f"v_pk_mul_f32 {v(36+k,2)}, {v(ZACC+k,2)}, {v(ZACC+k,2)}")
    for ft in range(1, 7):
        for k in range(0, 4, 2):
            if ft >= 2:
                p(f"v_pk_add_f32 {v(32+k,2)}, {v(32+k,2)}, {v(ZACC+4*ft+k,2)}")
            p(f"v_pk_fma_f32 {v(36+k,2)}, {v(ZACC+4*ft+k,2)}, {v(ZACC+4*ft+k,2)}, {v(36+k,2)}")
    for sh in (8, 4, 2, 1):
        for k in range(8):
            p(f"v_add_f32_dpp v{32+k}, v{32+k}, v{32+k} row_ror:{sh} row_mask:0xf bank_mask:0xf")
    p(f"""
    v_cmp_eq_u32 vcc, 0, v3
    v_cndmask_b32 v40, v34, v32, vcc
    v_cndmask_b32 v41, v38, v36, vcc
    v_cndmask_b32 v42, v35, v33, vcc
    v_cndmask_b32 v43, v39, v37, vcc
    v_or_b32 v41, 0x80000000, v41
    v_or_b32 v43, 0x80000000, v43
    v_lshlrev_b32 v9, 5, v8
    v_lshl_add_u32 v9, v3, 4, v9
    v_mov_b32 v25, 0x40000000
    v_cmp_gt_u32 vcc, 2, v3
    v_cndmask_b32 v9, v25, v9, vcc
    s_lshl_b32 s12, s58, 10
    s_add_u32 s12, s12, {WS_ST2}
    s_lshl_b32 s13, s50, 7
    s_add_u32 s13, s13, s12
    buffer_store_dwordx4 v[40:43], v9, {W4}, s13 offen sc1
    v_and_b32 v9, 7, v3
    v_lshlrev_b32 v9, 7, v9
    v_lshl_add_u32 v9, v8, 5, v9
    v_lshrrev_b32 v25, 3, v3
    v_lshl_add_u32 v9, v25, 4, v9
    """)
    rz = zreads(1)
    for x in rz[:LEADZ]:
        p.extend(x)
    p(I("WAITTAG", tag=ZKEYS[1][1] + ZKEYS[1][2]))
    p("s_barrier")
    Z1ACC = 160
    p(f"""
    s_lshl_b32 s15, s50, 9
    s_add_u32 s15, s15, {WS_FLAG + 8192}
    s_lshr_b32 s14, s51, 3
    s_lshl_b32 s14, s14, 7
    s_add_u32 s14, s14, s15
    s_lshl_b32 s13, {s(S_W)}, 7
    s_add_u32 s15, s15, s13
    """)
    hk = {}
    NBZ = opts.get("nbz", 2)
    for dd in range(NBZ):
        g0 = 28 * dd + 2
        if dd: hk.setdefault(g0 - 1, []).extend([I("WAITTAG", tag=ZKEYS[1][3]), "s_barrier"])
        for k, x in enumerate(groups([bdma(dd, hf, first=True) for hf in range(2)])):
            hk.setdefault(g0 + 3 * k, []).extend(x)
    hk.setdefault(opts.get("spoll", 76), []).append(f"buffer_load_dwordx4 v[32:35], v9, {W4}, s12 offen sc1")
    zgemm(1, rz, Z1ACC, hook=hk)
    p(f"""
    s_mov_b32 s56, 0x100000
    s_waitcnt vmcnt(0)
    s_branch L_sp2{name}
    L_sp1{name}:
    buffer_load_dwordx4 v[32:35], v9, {W4}, s12 offen sc1
    s_waitcnt vmcnt(0)
    L_sp2{name}:
    v_and_b32 v36, v33, v35
    v_cmp_le_i32 vcc, 0, v36
    s_cbranch_vccz L_sp3{name}
    s_sub_u32 s56, s56, 1
    s_cmp_lg_u32 s56, 0
    s_cbranch_scc1 L_sp1{name}
    L_sp3{name}:
    """)
    for ctl in ("quad_perm:[1,0,3,2]", "quad_perm:[2,3,0,1]", "row_half_mirror"):
        for k in range(4):
            p(f"v_add_f32_dpp v{32+k}, v{32+k}, v{32+k} {ctl} row_mask:0xf bank_mask:0xf")
    for k in range(2):
        p(f"v_mul_f32 v{38+k}, {f2u(1.0/896)}, v{32+2*k}")
        p(f"v_mul_f32 v{36+k}, {f2u(-1.0/896)}, v{33+2*k}")
        p(f"v_fma_f32 v{36+k}, -v{38+k}, v{38+k}, v{36+k}")
        p(f"v_max_f32 v{36+k}, 0, v{36+k}")
        p(f"v_add_f32 v{36+k}, {f2u(1e-5)}, v{36+k}")
        p(f"v_rsq_f32 v{36+k}, v{36+k}")
        p(f"v_mul_f32 v{38+k}, -v{38+k}, v{36+k}")
    for k in range(4):
        p(f"v_mov_b32 v{40+k}, v{36+k}")
        p(f"v_mov_b32 v{44+k}, v{36+k}")
    for k in range(4):
        p(f"v_mov_b32_dpp v{40+k}, v{36+k} row_ror:8 row_mask:0xf bank_mask:0xc")
        p(f"v_mov_b32_dpp v{44+k}, v{36+k} row_ror:8 row_mask:0xf bank_mask:0x3")
    zt = ("wr", ("ZZ", 0), "private")
    for pr in range(4):
        X = ZACC + 8*pr
        for k in range(4 if pr < 3 else 2):
            c = 40 + 4*(k % 2)
            p(f"v_pk_fma_f32 {v(X+2*k,2)}, {v(X+2*k,2)}, {v(c,2)}, {v(c+2,2)}")
        Y = 24 + 4*(pr % 2)
        for k in range(4):
            sx = X + 2*k if pr < 3 else X + 2*(k % 2)
            p(f"v_cvt_pk_bf16_f32 v{Y+k}, v{sx}, v{sx+1}")
        p(f"v_permlane16_swap_b32 v{Y}, v{Y+2}")
        p(f"v_permlane16_swap_b32 v{Y+1}, v{Y+3}")
        p(f"buffer_store_dwordx4 {v(Y,4)}, v{10 if pr < 3 else 11}, {W4}, s{38 + pr//2} offen offset:{(pr % 2)*2048} sc1", tag=zt)
    if opts.get("zst"): stamp(p, 9)
    p("s_barrier")
    gp = Prog("tmp")
    gelu_pairs(gp, [Z1ACC + 2*k for k in range(14)], 96)
    for k in range(14):
        gp(f"v_cvt_pk_bf16_f32 v{Z1+k}, v{Z1ACC+2*k}, v{Z1ACC+2*k+1}")
    NB1 = opts.get("nb1", 4)
    interleave(gp.items, groups([bdma(dd, hf, first=True) for dd in range(NBZ, NB1) for hf in range(2)]))
    signal(p, SRD_W, 14, S_W, "g" + name, vt=48, keys=[("ZZ", 0)])
    stamp(p, 10)
    RA = 5; A_A = 0; A_BR = 144
    p("s_load_dwordx2 s[4:5], s[0:1], 64")
    p("s_load_dwordx2 s[6:7], s[0:1], 96")
    p.extend(flat([bdma(dd, hf, first=True) for dd in range(NB1, 5) for hf in range(2)]))
    p(f"""
    v_lshrrev_b32 v9, 1, v3
    v_xor_b32 v9, v9, v8
    v_lshlrev_b32 v9, 4, v9
    v_lshl_add_u32 v9, v3, 7, v9
    v_add_u32 v{VRB}, s53, v9
    v_xor_b32 v{VRB+1}, 64, v{VRB}
    v_add_u32 v{VRB+2}, 0x10000, v{VRB}
    v_add_u32 v{VRB+3}, 0x10000, v{VRB+1}
    v_add_u32 v{VRB+4}, 0x20000, v{VRB}
    v_add_u32 v{VRB+5}, 0x20000, v{VRB+1}
    s_lshl_b32 s35, s58, 5
    v_lshlrev_b32 v12, 1, v3
    v_mov_b32 v49, 0
    s_waitcnt lgkmcnt(0)
    """)
    srd(p, SRD_K, 4, 5, 4096)
    srd(p, SRD_O, 8, 9, 896 * 896)
    srd(p, SRD_Q, 6, 7, 2048 * 896)
    p(f"buffer_load_ushort v{Z1+14}, v12, {s(SRD_K,4)}, s35 offen")
    p(f"""
    s_lshl_b32 s33, {s(S_J)}, 2
    s_and_b32 s32, {s(S_PB)}, 3
    s_add_u32 s33, s33, s32              ; tb'
    s_lshr_b32 s32, {s(S_PB)}, 2         ; cb
    v_lshrrev_b32 v54, 3, v1
    v_mul_u32_u24 v54, 896, v54
    v_lshlrev_b32 v55, 1, v8
    v_and_b32 v50, 7, v0
    v_xor_b32 v55, v55, v50
    v_lshl_add_u32 v50, v55, 4, v54
    v_add_u32 v51, {7168-1024}, v50
    v_add_u32 v52, {2*(7168-1024)}, v50
    v_add_u32 v53, {3*(7168-1024)}, v50
    s_mul_i32 s59, {s(S_W)}, {224*896}
    s_lshl_b32 s57, s32, 7
    s_add_u32 s59, s59, s57
    """)
    WOFFS = [98304, 102400, 131072, 135168, 0, 4096, 32768]
    def wdma(ks):
        tg = ("dma", [(f"W{ks}", 0), (f"B{3 + ks // 2}", 90)], "private") if ks < 4 else ("dma", [(f"W{ks}", 0), ("X", 1)])
        return ([I(f"s_add_u32 m0, s53, {WOFFS[ks]}")],
                [I(f"buffer_load_dwordx4 v{50+k}, {s(SRD_O,4)}, s59 offen offset:{k*1024} lds", tag=tg) for k in range(4)],
                [I(f"s_add_u32 s59, s59, {4*7168}")])
    def breg(ks, nl):
        return a(A_BR + 16*ks + 4*nl, 4) if ks < 6 else v(VB + 16*(ks % 2) + 4*nl, 4)
    def b_reads(ks):
        dd = ks // 2
        sl = BSL[dd % 5]
        return [I(f"ds_read_b128 {breg(ks, nl)}, v{VRB + 2*(sl//2) + ks % 2} offset:{(sl % 2)*32768 + nl*2048}",
                  tag=("rd", (f"B{dd % 5}", dd), "private")) for nl in range(4)]
    NB2 = opts.get("nb2", 8)
    for dd in range(3):
        p(I("WAITTAG", tag=[(f"B{dd}", dd)]))
        p.extend(b_reads(2*dd) + b_reads(2*dd + 1))
    for dd in range(5, NB2):
        p(I("WAITTAG", tag=[("rd", f"B{dd % 5}", dd - 5)]))
        p.extend(flat([bdma(dd, hf) for hf in range(2)]))
    poll(p, SRD_W, 15, 49, 48, "g" + name, 56, 8)
    stamp(p, 11)
    def aload(ks):
        out = [I(f"buffer_load_dwordx4 {a(A_A + 28*(ks % RA) + 4*mt, 4)}, v2, {W4}, s{54 + mt//4} offen offset:{(mt % 4)*1024}{LD}")
               for mt in range(7)]
        post = [I("s_add_u32 s54, s54, 7168"), I("s_add_u32 s55, s55, 7168")]
        return out, post
    NA0 = opts.get("na0", 3)
    for ks in range(NA0):
        o, post = aload(ks); p.extend(o); p.extend(post)
    nexta = NA0
    nextb = 2 * NB2
    for ks in range(16):
        SC = [[] for _ in range(29)]
        VE = [[] for _ in range(28)]
        kind = ["m"] * 28
        vm = []
        while nexta < 16 and nexta <= ks + RA - 1 and len(vm) < (8 if ks == 0 else 1):
            o, post = aload(nexta); nexta += 1
            vm.extend([([], x, post if k == 6 else []) for k, x in enumerate(o)])
        if ks >= 2 and nextb < 16:
            pre, o, post = bdma(nextb // 2, nextb % 2); nextb += 1
            vm.extend([(pre if k == 0 else [], x, post if k == 3 else []) for k, x in enumerate(o)])
        if ks in (12, 13):
            for kk in (2*(ks-12), 2*(ks-12)+1):
                pre, o, post = wdma(kk)
                vm.extend([(pre if k == 0 else [], x, post if k == 3 else []) for k, x in enumerate(o)])
        for k, (pre, x, post) in enumerate(vm):
            g = 2 * k if len(vm) > 9 else 1 + 3 * k
            kind[g] = "d"; VE[g] = [x]
            if pre: SC[g - 1] += pre
            SC[g + 1] += post
        mg = [g for g in range(28) if kind[g] == "m"]
        if 6 <= ks + 1 < 16:
            if (ks + 1) % 2 == 0:
                SC[mg[0]].insert(0, I("WAITTAG", tag=[(f"B{((ks+1)//2) % 5}", (ks+1)//2)]))
            for k, x in enumerate(b_reads(ks + 1)):
                VE[mg[k + 1]].append(x)
        for mt in range(1, 8):
            if mt == 7 and ks == 15: continue
            g = 4*mt - 1
            while kind[g] != "m": g -= 1
            k2, m2 = (ks, mt) if mt < 7 else (ks + 1, 0)
            ex = "".join(", " + breg(ks + 1, nl) for nl in range(4)) if mt == 7 else ""
            SC[g].append(I(f"WAITFOR {a(A_A + 28*(k2 % RA) + 4*m2, 4)}{ex}"))
        for g in range(28):
            mt, nl = g // 4, g % 4
            D = v(GACC + 16*mt + 4*nl, 4)
            p(f"v_mfma_f32_16x16x32_bf16 {D}, {a(A_A + 28*(ks % RA) + 4*mt, 4)}, {breg(ks, nl)}, {D if ks else 0}")
            for x in SC[g] + VE[g]:
                p(x)
            if ks == 15:
                if g == 0:
                    p("v_add_u32 v4, s53, v2")
                    p("v_add_u32 v13, 0x10000, v4")
                g2 = g - 8
                if g2 >= 0 and g2 % 4:
                    p(f"ds_write_b128 v{13 if g2 % 4 == 3 else 4}, {v(GACC + 16*(g2//4) + 4*(g2 % 4), 4)} offset:{((g2 % 4 - 1) % 2)*32768 + (g2//4)*1024}", tag=("wr", ("X", 0)))
        assert not SC[28]
    assert nexta == 16 and nextb == 16
    stamp(p, 12)
    for nl in range(1, 4):
        p(f"s_sub_u32 s34, {s(S_W)}, {nl}")
        p(f"s_and_b32 s34, s34, 3")
        p(f"s_lshl_b32 s34, s34, 13")
        p(f"s_add_u32 s34, s34, {(nl-1)*32768}")
        p(f"v_add_u32 v{4+nl}, s34, v2")
    for mt in range(5, 7):
        for nl in range(1, 4):
            p(f"ds_write_b128 v{13 if nl == 3 else 4}, {v(GACC + 16*mt + 4*nl, 4)} offset:{((nl-1) % 2)*32768 + mt*1024}", tag=("wr", ("X", 0)))
    p("s_waitcnt lgkmcnt(0)")
    p("s_barrier")
    for mt in range(7):
        for nl in range(1, 4):
            p(f"ds_read_b128 {v(GACC + 16*mt + 4*nl, 4)}, v{4+nl} offset:{mt*1024}", tag=("rd", ("X", 0)))
    p(f"""
    s_mul_i32 s34, s58, {28*1024}
    s_add_u32 s34, s34, {WS_U}
    s_mul_i32 s35, s50, 7
    s_add_u32 s36, s35, 1
    s_lshr_b32 s36, s36, 1
    s_lshl_b32 s36, s36, 10
    s_add_u32 s36, s36, s34
    s_and_b32 s37, s50, 1
    s_mul_i32 s37, s37, {4096 - 512}
    s_sub_u32 s37, s36, s37
    s_add_u32 s37, s37, 3072
    v_lshlrev_b32 v14, 3, v1
    v_lshlrev_b32 v{Z1+14}, 16, v{Z1+14}
    """)
    def red(mt, n=2):
        X = GACC + 16*mt
        for h in range(n):
            p(f"v_pk_add_f32 {v(X+2*h,2)}, {v(X+2*h,2)}, {v(X+4+2*h,2)}")
            p(f"v_pk_add_f32 {v(X+8+2*h,2)}, {v(X+8+2*h,2)}, {v(X+12+2*h,2)}")
        for h in range(n):
            p(f"v_pk_add_f32 {v(X+2*h,2)}, {v(X+2*h,2)}, {v(X+8+2*h,2)}")
    p(f"v_mov_b32 v8, v{Z1+14}")
    for ft in range(7):
        red(ft)
        X = GACC + 16*ft
        for h in range(2):
            p(f"v_pk_add_f32 {v(X+2*h,2)}, {v(X+2*h,2)}, v[8:9] op_sel_hi:[1,0]")
            p(f"v_lshlrev_b32 v{10+2*h}, 16, v{Z1+2*ft+h}")
            p(f"v_and_b32 v{11+2*h}, 0xffff0000, v{Z1+2*ft+h}")
            p(f"v_pk_mul_f32 {v(X+2*h,2)}, {v(X+2*h,2)}, {v(10+2*h,2)}")
        Y = GACC + 16*(ft & ~1) + 4 + 2*(ft % 2)
        p(f"v_cvt_pk_bf16_f32 v{Y}, v{X}, v{X+1}")
        p(f"v_cvt_pk_bf16_f32 v{Y+1}, v{X+2}, v{X+3}")
        if ft % 2 == 1:
            p(f"buffer_store_dwordx4 {v(Y-2,4)}, v2, {W4}, s36 offen offset:{(ft//2)*1024} sc1", tag=("wr", ("U", 0), "private"))
        if ft == 6:
            p(f"buffer_store_dwordx2 {v(Y,2)}, v14, {W4}, s37 offen sc1", tag=("wr", ("U", 0), "private"))
    p("s_barrier")
    OACC = 64; A_B = 0; A_FO = 112; NRO = 8
    p(f"""
    v_bfe_u32 v8, v0, 4, 2
    s_lshl_b32 s14, s51, 7
    s_add_u32 s14, s14, {WS_FLAG + 12288}
    """)
    NW0 = opts.get("nw0", 5)
    for ks in range(4, NW0):
        p.extend(flat([wdma(ks)]))
    p("s_lshl_b32 s15, 1, s50")
    signal(p, SRD_W, 14, S_W, "o" + name, vt=48, keys=[("U", 0)], val="s15")
    stamp(p, 13)
    p(f"s_cmp_ge_u32 {s(S_PB)}, 28")
    p(f"s_cbranch_scc1 L_bump{name}")
    p.begin_side()
    p(f"""
    L_bump{name}:
    s_cmp_lg_u32 s2, 255
    s_cbranch_scc1 L_end{name}
    s_add_u32 s12, s100, 1
    s_add_u32 s13, s101, 1
    v_mov_b32 v4, s12
    v_mov_b32 v5, s13
    v_mov_b32 v6, {WS_EP}
    buffer_store_dwordx2 v[4:5], v6, {W4}, 0 offen sc1
    s_endpgm
    """)
    p.end_side()
    for ks in range(NW0, 7):
        p.extend(flat([wdma(ks)]))
    X1 = 16; GB = 24
    for nl in range(4):
        p(f"s_add_u32 s36, {s(S_W)}, {nl}")
        p(f"s_and_b32 s36, s36, 3")
        p(f"s_lshl_b32 s37, s33, 2")
        p(f"s_add_u32 s36, s36, s37")
        p(f"s_mul_i32 s36, s36, {28*1024}")
        p(f"s_mul_i32 s37, {s(S_W)}, 7168")
        p(f"s_add_u32 s36, s36, s37")
        p(f"s_add_u32 s{4+nl}, s36, {WS_U}")
        p(f"s_add_u32 s{8+nl}, s{4+nl}, 4096")
    p(f"""
    s_lshl_b32 s36, s33, 2
    s_add_u32 s36, s36, {s(S_W)}
    s_mul_i32 s37, s36, {14*1024}
    s_lshl_b32 s38, s32, 11
    s_add_u32 s37, s37, s38
    s_add_u32 s37, s37, {WS_X1}
    buffer_load_dwordx4 {v(X1,4)}, v2, {W4}, s37 offen sc1
    buffer_load_dwordx4 {v(X1+4,4)}, v2, {W4}, s37 offen offset:1024 sc1
    v_lshlrev_b32 v9, 4, v8
    s_lshl_b32 s38, s32, 8
    s_add_u32 s38, s38, {WS_MOD + 5*1792}
    """)
    for ct in range(4):
        p(f"buffer_load_dwordx4 {v(GB+4*ct,4)}, v9, {W4}, s38 offen offset:{64*ct} sc1")
    p(f"""
    v_lshrrev_b32 v3, 2, v1
    v_lshlrev_b32 v3, 7, v3
    v_bfe_u32 v10, v0, 3, 2
    v_lshl_add_u32 v3, v10, 5, v3
    v_and_b32 v10, 3, v0
    v_lshl_add_u32 v3, v10, 3, v3
    v_add_u32 v12, s53, v3
    v_xor_b32 v13, 32, v12
    v_xor_b32 v14, 64, v12
    v_xor_b32 v15, 0x60, v12
    v_add_u32 v56, 98304, v12
    v_add_u32 v57, 98304, v13
    v_add_u32 v58, 98304, v14
    v_add_u32 v59, 98304, v15
    v_mov_b32 v10, 0
    v_lshlrev_b32 v11, 3, v1
    s_lshl_b32 s15, s33, 7
    s_add_u32 s15, s15, {WS_FLAG + 12288}
    """)
    p(f"s_lshl_b32 s36, {s(S_W)}, 1")
    p("s_lshl_b32 s36, 3, s36")
    poll(p, SRD_W, 15, 10, 48, "o" + name, 56, "s36", mask="s36")
    stamp(p, 14)
    ul = [I(f"buffer_load_dwordx4 {a(A_B + 16*ks + 4*nl, 4)}, v2, {W4}, s{4 + nl + 4*(ks//4)} offen offset:{(ks % 4)*1024}{LD}")
          for ks in range(7) for nl in range(4)]
    ul[12:16] = [I(f"buffer_load_dwordx2 {a(A_B + 48 + 4*nl + 2*h, 2)}, v11, {W4}, s{4 + nl} offen offset:{3072 + 512*h}{LD}")
                 for nl in range(4) for h in range(2)]
    p.extend(ul[:20]); ul = ul[20:]
    def rd(f):
        ks, ct = f // 4, f % 4
        return [I(f"ds_read_b64_tr_b16 {a(A_FO + 4*(f % NRO) + 2*e, 2)}, v{(56 if ks < 4 else 12)+ct} offset:{WOFFS[ks] - (98304 if ks < 4 else 0) + e*2048}",
                  tag=("rd", (f"W{ks}", 0), "private")) for e in range(2)]
    PFO = 4
    YO = [0, 0, 4096, 32768]
    for f in range(PFO):
        p.extend(rd(f))
    for f in range(28):
        ks, ct = f // 4, f % 4
        nx = f + PFO
        for nl in range(4):
            D = v(OACC + 16*ct + 4*nl, 4)
            p(f"v_mfma_f32_16x16x32_bf16 {D}, {a(A_FO + 4*(f % NRO), 4)}, {a(A_B + 16*ks + 4*nl, 4)}, {D if ks else 0}")
            if nx < 28 and nl < 2:
                p(rd(nx)[nl])
            if nl == 2 and ul:
                p(ul.pop(0))
            if nl == 3 and f + 1 < 28:
                p(f"WAITFOR {a(A_FO + 4*((f+1) % NRO), 4)}, {a(A_B + 16*((f+1)//4), 16)}")
            if f == 20 and nl == 2:
                p("v_add_u32 v4, s53, v2")
                p("v_add_u32 v4, 98304, v4")
            if f >= 26 and nl:
                p(f"ds_write_b128 v4, {v(OACC + 16*(f-26) + 4*nl, 4)} offset:{YO[nl] + (f-26)*1024}", tag=("wr", ("Y", 0)))
    for nl in range(1, 4):
        p(f"s_sub_u32 s36, {s(S_W)}, {nl}")
        p(f"s_and_b32 s36, s36, 3")
        p(f"s_lshl_b32 s36, s36, 13")
        p(f"s_add_u32 s36, s36, 98304")
        p(f"v_add_u32 v{4+nl}, s36, v2")
    for ct in range(2, 4):
        for nl in range(1, 4):
            p(f"ds_write_b128 v4, {v(OACC + 16*ct + 4*nl, 4)} offset:{YO[nl] + ct*1024}", tag=("wr", ("Y", 0)))
    p("s_waitcnt lgkmcnt(0)")
    p("s_barrier")
    for ct in range(4):
        for nl in range(1, 4):
            p(f"ds_read_b128 {v(OACC + 16*ct + 4*nl, 4)}, v{4+nl} offset:{YO[nl] + ct*1024}", tag=("rd", ("Y", 0)))
    p(f"""
    v_and_b32 v3, 15, v0
    v_mul_u32_u24 v3, 896, v3
    v_lshl_add_u32 v3, v8, 4, v3
    s_lshl_b32 s36, s33, 2
    s_add_u32 s36, s36, {s(S_W)}
    s_mul_i32 s36, s36, {16*896}
    s_lshl_b32 s37, s32, 7
    s_add_u32 s36, s36, s37
    """)
    for ct in range(4):
        X = OACC + 16*ct
        for h in range(2):
            p(f"v_pk_add_f32 {v(X+2*h,2)}, {v(X+2*h,2)}, {v(X+4+2*h,2)}")
            p(f"v_pk_add_f32 {v(X+8+2*h,2)}, {v(X+8+2*h,2)}, {v(X+12+2*h,2)}")
        for h in range(2):
            p(f"v_pk_add_f32 {v(X+2*h,2)}, {v(X+2*h,2)}, {v(X+8+2*h,2)}")
            p(f"v_lshlrev_b32 v{10}, 16, v{X1+2*ct+h}")
            p(f"v_and_b32 v{11}, 0xffff0000, v{X1+2*ct+h}")
            p(f"v_pk_fma_f32 {v(X+2*h,2)}, {v(X+2*h,2)}, {v(GB+4*ct+2*h,2)}, v[10:11]")
        k, odd = ct // 2, ct % 2
        O = 40 + 4*k + 2*odd
        p(f"v_cvt_pk_bf16_f32 v{O}, v{X}, v{X+1}")
        p(f"v_cvt_pk_bf16_f32 v{O+1}, v{X+2}, v{X+3}")
        if odd:
            O = 40 + 4*k
            p(f"v_permlane32_swap_b32 v{O}, v{O+2}")
            p(f"v_permlane32_swap_b32 v{O+1}, v{O+3}")
            p(f"v_permlane16_swap_b32 v{O}, v{O+2}")
            p(f"v_permlane16_swap_b32 v{O+1}, v{O+3}")
            p(f"buffer_store_dwordx4 {v(O,4)}, v3, {s(SRD_Q,4)}, s36 offen offset:{64*k}")
    k_prep.STAMP["on"] = son
    if opts.get("diag"):
        p("s_waitcnt vmcnt(0)")
        stamp(p, 15)
        p("v_mov_b32 v1, 0")
        p("s_mov_b64 exec, 1")
        p("s_not_b32 s14, s61")
        p("v_mov_b32 v2, s14")
        p(f"buffer_atomic_umax v2, v1, {s(SRD_D,4)}, 0 offen offset:8 sc1")
        for k, st in enumerate((1, 2, 3, 4, 5, 7, 10, 11, 12, 13, 15)):
            p(f"v_mov_b32 v3, s{61+2*st}")
            p(f"buffer_atomic_umax v3, v1, {s(SRD_D,4)}, 0 offen offset:{12+4*k} sc1")
            p("s_nop 1")
        p("s_mov_b64 exec, -1")
        k_prep.STAMP["on"] = False
    stamp_dump(p, opts.get("slot", 1), NSTAMP, SRD_W, S_W)
    p(f"L_end{name}:")
    p("s_endpgm")
    if opts.get("gabl") or opts.get("oabl"):
        p.check_lds = lambda: None
    p.finalize()
    return p


def gen_mega(opts=None):
    p0 = build_mega(opts or {})
    if (opts or {}).get("plain"):
        return p0, "; @launch grid=(256,1,1) block=(256,1,1) lds=163840\n"
    return p0, f"; @launch kernel={p0.name} grid=(256,1,1) block=(256,1,1) lds=163840\n"
```

```python
import sys
sys.path.insert(0, "work")
from k_attn import *
from k_z import gelu_pairs, C1, C2
from k_prep import LOG2E, QSCALE, xreduce
from k_red import emit_red_early
NSTAMP = 16

def build_mega(opts):
    opts = opts or {}
    name = opts.get("name", "adaLN_cond__gqa_block_cached__mixer_gmlp__prompt_kernel")
    p = Prog(name)
    at = Attn(opts)
    LD = opts.get("ld", " sc1")
    thr = opts.get("thr", 0x5f800000)
    SRD_D = 92
    p(f"""
    s_cmp_ge_u32 s2, 256
    s_cbranch_scc1 L_end{name}
    s_load_dwordx4 s[52:55], s[0:1], 80
    s_load_dwordx2 s[50:51], s[0:1], 0
    s_load_dwordx8 s[4:11], s[0:1], 8
    s_load_dwordx4 s[56:59], s[0:1], 104
    v_lshrrev_b32 v1, 6, v0
    v_readfirstlane_b32 {s(S_W)}, v1
    s_and_b32 {s(S_J)}, s2, 7
    s_lshr_b32 {s(S_PB)}, s2, 3
    v_and_b32 v1, 63, v0
    v_lshlrev_b32 {v(V_LIN)}, 4, v1
    s_lshr_b32 {s(S_HD)}, {s(S_W)}, 1
    s_and_b32 s14, {s(S_W)}, 1
    s_lshl_b32 {s(S_QT)}, {s(S_PB)}, 2
    s_lshl_b32 s14, s14, 1
    s_add_u32 {s(S_QT)}, {s(S_QT)}, s14
    v_mov_b32 v2, 0x40000000
    v_cmp_gt_u32 vcc, 56, v1
    v_cndmask_b32 v19, v2, {v(V_LIN)}, vcc
    v_add_u32 v18, 144, v19
    v_add_u32 v17, 288, v19
    v_add_u32 v16, 432, v19
    s_lshl_b32 s14, {s(S_PB)}, 2
    s_add_u32 s14, s14, {s(S_W)}
    s_mul_i32 s14, s14, {16*896}            ; x soffset
    s_mul_i32 s15, {s(S_W)}, {SLOT}
    s_add_u32 s15, s15, {4*SLOT}
    s_waitcnt lgkmcnt(0)
    """)
    stamp(p, 0)
    ep = I(f"s_load_dwordx2 s[100:101], s[58:59], {WS_EP}"); ep.kind = "salu"
    p(ep)
    srd(p, SRD_W, 58, 59, WS_USED)
    srd(p, SRD_D, 56, 57, 256)
    srd(p, SRD_V, 54, 55, 448 * 5376)
    srd(p, SRD_O, 52, 53, 896)
    srd(p, SRD_K, 50, 51, 2048 * 896 + 432)
    p(f"""
    s_sub_u32 {s(SRD_K)}, {s(SRD_K)}, 432
    s_subb_u32 {s(SRD_K+1)}, {s(SRD_K+1)}, 0
    s_mov_b32 s31, 0
    v_and_b32 v127, 31, v0
    v_lshlrev_b32 v125, 3, v127
    s_mov_b32 s32, 0x40000000
    s_mov_b32 s33, 0x40000000
    """)
    MW = 72; CR = 100; MC = 20; MA = 36; MT = 44
    def raw(txt):
        x = I(txt); x.kind = "salu"; x.writes = []; return x
    p(f"""
    v_and_b32 v{MT}, 3, v0
    v_lshrrev_b32 v{MT+1}, 2, v0
    v_mul_u32_u24 v{MT+2}, 14, v{MT+1}
    v_mul_u32_u24 v{MT+3}, {7*5376}, v{MT+1}
    v_lshl_add_u32 v{MT+3}, v{MT}, 4, v{MT+3}
    s_lshl_b32 s12, s2, 6
    v_and_b32 v{MT+2}, -4, v{MT+2}
    s_cmp_ge_u32 s2, 28
    s_cbranch_scc1 L_mod1r{name}
    """)
    def wloads(f):
        for i in range(7):
            p(f(f"buffer_load_dwordx4 {v(MW+4*i,4)}, v{MT+3}, {s(SRD_V,4)}, s12 offen"))
            if i < 6:
                p(f"s_add_u32 s12, s12, 5376")
        p(f(f"buffer_load_dwordx4 {v(CR,4)}, v{MT+2}, {s(SRD_O,4)}, 0 offen"))
    wloads(raw)
    p(f"L_mod1r{name}:")
    XK = [(4, -1), (5, -1), (6, -1), (7, -1)]
    NX0 = opts.get("nx0", 16)
    def xdma(ms):
        for m in ms:
            if m % 4 == 0:
                p(f"s_add_u32 m0, s15, {m*1040}")
            p(f"buffer_load_dwordx4 v{16 + m % 4}, {s(SRD_K,4)}, s14 offen offset:{(m % 4)*1040} lds", tag=("dma", XK))
            if m % 4 == 3:
                p(f"s_add_u32 s14, s14, {4*896}")
    xdma(range(NX0))
    def modblock(urgent, MW=MW, CR=CR, MC=MC, MA=MA, MT=MT, MS=MT+8, scr=MODL+4096, pre=()):
        tg = ("u" if urgent else "n") + name
        st_ = opts.get("pst") and urgent
        if urgent:
            p("s_cmp_ge_u32 s2, 28")
        else:
            p("s_cmp_ge_u32 s58, 56")
        p(f"s_cbranch_scc1 L_mod2r{tg}")
        p.extend(pre)
        p(f"s_mov_b32 s13, {f2u(-LOG2E)}")
        p(f"v_bfe_u32 v{MT+1}, v0, 2, 1")
        p(f"v_lshlrev_b32 v{MT+1}, 4, v{MT+1}")
        if st_: stamp(p, 5)
        if urgent:
            p(raw(f"s_waitcnt vmcnt({NX0 + NYG})"))
        if st_: stamp(p, 6)
        for j in range(4):
            p(f"v_alignbit_b32 v{CR+j}, v{CR+min(j+1,3)}, v{CR+j}, v{MT+1}")
        for i in range(7):
            p(f"v_lshlrev_b32 v{MC+i}, 16, v{CR+i//2}" if i % 2 == 0 else f"v_and_b32 v{MC+i}, 0xffff0000, v{CR+i//2}")
        for i in range(7):
            p(f"v_mul_f32 v{MC+8+i}, s13, v{MC+i}")
        for i in range(7):
            p(f"v_exp_f32 v{MC+8+i}, v{MC+8+i}")
        for i in range(7):
            p(f"v_add_f32 v{MC+8+i}, 1.0, v{MC+8+i}")
        for i in range(7):
            p(f"v_rcp_f32 v{MC+8+i}, v{MC+8+i}")
        for i in range(7):
            p(f"v_mul_f32 v{MC+8+i}, v{MC+8+i}, v{MC+i}")
            p(f"v_cvt_pk_bf16_f32 v{MC+8+i}, v{MC+8+i}, v{MC+8+i}")
            p(f"v_lshlrev_b32 v{MS+2*i}, 16, v{MC+8+i}")
        for i in range(7):
            for d in range(4):
                w = MW + 4*i + d
                t = MC + 2 * d
                p(f"v_lshlrev_b32 v{t}, 16, v{w}")
                p(f"v_and_b32 v{t+1}, 0xffff0000, v{w}")
                if i == 0:
                    p(f"v_pk_mul_f32 {v(MA+2*d,2)}, {v(t,2)}, {v(MS,2)} op_sel_hi:[1,0]")
                else:
                    p(f"v_pk_fma_f32 {v(MA+2*d,2)}, {v(t,2)}, {v(MS+2*i,2)}, {v(MA+2*d,2)} op_sel_hi:[1,0,1]")
        for sh in (4, 8):
            for k in range(8):
                p(f"v_add_f32_dpp v{MA+k}, v{MA+k}, v{MA+k} row_ror:{sh} row_mask:0xf bank_mask:0xf")
        if st_: stamp(p, 7)
        p(f"""
        v_lshrrev_b32 v{MT+1}, 4, v0
        v_lshlrev_b32 v{MT+1}, 7, v{MT+1}
        v_and_b32 v{MT}, 3, v0
        v_lshl_add_u32 v{MT}, v{MT}, 5, v{MT+1}
        v_add_u32 v{MT}, {scr}, v{MT}
        ds_write_b128 v{MT}, {v(MA,4)}
        ds_write_b128 v{MT}, {v(MA+4,4)} offset:16
        v_lshlrev_b32 v{MT+1}, 2, v0
        v_add_u32 v{MT+1}, {scr}, v{MT+1}
        """)
        p(raw("s_waitcnt lgkmcnt(0)"))
        p(raw("s_barrier"))
        p(f"s_cmp_lg_u32 {s(S_W)}, 0")
        p(f"s_cbranch_scc1 L_mod2r{tg}")
        if st_: stamp(p, 8)
        for i in range(8):
            p(f"ds_read_b32 v{MW+i}, v{MT+1} offset:{256*i}")
        for st in (4, 2, 1):
            for i in range(st):
                p(f"v_add_f32 v{MW+i}, v{MW+i}, v{MW+i+st}")
        p(f"""
        v_mov_b32 v{MW+1}, v{MW}
        v_permlane32_swap_b32 v{MW}, v{MW+1}
        v_add_f32 v{MW}, v{MW}, v{MW+1}
        v_cvt_pk_bf16_f32 v{MW}, v{MW}, v{MW}
        v_lshlrev_b32 v{MW}, 16, v{MW}
        v_add_f32 v{MW+1}, 1.0, v{MW}
        v_cvt_pk_bf16_f32 v{MW+1}, v{MW+1}, v{MW+1}
        v_lshlrev_b32 v{MW+1}, 16, v{MW+1}
        s_sub_u32 s12, {'s2' if urgent else 's58'}, {14 if urgent else 28}
        s_cmp_lt_u32 s12, 14
        s_cselect_b64 vcc, -1, 0
        v_cndmask_b32 v{MW}, v{MW}, v{MW+1}, vcc
        """)
        if urgent:
            p(f"""
            s_add_u32 s12, s100, 1
            s_add_u32 s13, s101, 1
            s_and_b32 s13, s13, 0xffff
            v_or_b32 v{MW}, s13, v{MW}
            v_mov_b32 v{MW+1}, s12
            s_lshl_b32 s33, s2, 8
            s_add_u32 s33, s33, {WS_MG}
            L_mod2r{tg}:
            buffer_store_dwordx2 {v(MW,2)}, v125, {s(SRD_W,4)}, s33 offen sc1
            """)
        else:
            p(f"""
            s_lshl_b32 s12, s58, 7
            v_and_b32 v{MT}, 31, v0
            v_lshlrev_b32 v{MT}, 2, v{MT}
            s_mov_b32 s57, 0
            """)
            p(raw(f"buffer_store_dword v{MW}, v{MT}, {s(SRD_W,4)}, s12 offen offset:{WS_MOD + 28*128} sc1"))
            p(f"L_mod2r{tg}:")
    assert NX0 == 16
    V_MRD = 3
    p(f"s_mul_i32 {s(S_M0V)}, {s(S_W)}, 4160")
    p(f"""
    v_bfe_u32 v1, v0, 5, 1              ; hh
    v_and_b32 v2, 31, v0
    v_lshlrev_b32 {v(V_TMP)}, 1, v1
    v_xor_b32 v2, v2, {v(V_TMP)}        ; chunk
    v_lshlrev_b32 v1, 3, v1
    v_add_u32 v1, {s(S_W)}, v1          ; 8hh + w
    v_lshlrev_b32 v1, 13, v1
    v_lshl_add_u32 {v(V_WDMA)}, v2, 4, v1
    """)
    for jj in range(1, 4):
        p(f"v_add_u32 {v(V_WDMA+jj)}, {(16*(jj % 2) + 4*(jj//2))*8192 - jj*1024}, {v(V_WDMA)}")
    def emit_wfill(which, st):
        for hf in range(2):
            pre, d = at.wfill(which, st, hf)
            p.extend(pre); p.extend(d)
    p(f"""
    s_mul_i32 s52, {s(S_HD)}, 896
    s_add_u32 s52, s52, {MODL}
    v_bfe_u32 v1, v0, 2, 2
    v_mul_u32_u24 v1, 4160, v1
    v_and_b32 v2, 3, v0
    v_lshl_add_u32 v1, v2, 3, v1
    v_bfe_u32 v2, v0, 4, 2
    v_lshl_add_u32 v1, v2, 9, v1
    v_lshlrev_b32 v{V_MRD}, 5, v2
    v_add_u32 v{V_MRD}, s52, v{V_MRD}
    v_and_b32 v120, 15, v0
    v_mul_u32_u24 v120, 1040, v120
    v_lshl_add_u32 v120, v2, 4, v120
    s_and_b32 s14, {s(S_W)}, 1
    s_mul_i32 s14, s14, {2*SLOT}
    s_mul_i32 s15, {s(S_HD)}, 448
    s_add_u32 s14, s14, s15
    s_add_u32 s14, s14, {4*SLOT}
    v_add_u32 v120, s14, v120
    v_bfe_u32 v2, v0, 4, 1
    v_lshl_add_u32 {v(V_TMP)}, v2, 5, v1
    s_mul_i32 s14, {s(S_HD)}, {SLOT}
    v_add_u32 {v(V_WRD)}, s14, {v(V_TMP)}
    v_xor_b32 {v(V_WRD+1)}, 32, {v(V_WRD)}
    v_add_u32 {v(V_WRD+2)}, {4*SLOT}, {v(V_WRD)}
    v_add_u32 {v(V_WRD+3)}, {4*SLOT}, {v(V_WRD+1)}
    s_lshl_b32 s14, {s(S_W)}, 12
    s_add_u32 s14, s14, {8*SLOT}
    v_add_u32 {v(V_XW)}, s14, {v(V_LIN)}
    v_xor_b32 {v(V_XR)}, 0x2000, {v(V_XW)}
    """)
    MBP = opts.get("mbp", 0)
    NYG = [0, 2, 2 + 8 * opts.get("nearly", 1)][MBP]
    if MBP == 0: modblock(True)
    srd(p, SRD_Q, 8, 9, 448 * 8192)
    V_MRD = 3
    p(f"""
    s_mul_i32 {s(S_M0V)}, {s(S_W)}, 4160
    s_lshl_b32 {s(S_M0K)}, {s(S_W)}, 12
    s_lshl_b32 {s(S_WBASE)}, {s(S_J)}, 10
    v_lshrrev_b32 v1, 3, v0
    v_min_u32 v1, 13, v1
    v_lshlrev_b32 v1, 13, v1
    v_and_b32 v2, 7, v0
    v_lshl_add_u32 v1, v2, 7, v1
    s_mul_i32 s53, {s(S_PB)}, {14*8192}
    s_add_u32 s53, s53, {s(S_WBASE)}
    buffer_load_dword v{V_O+127}, v1, {s(SRD_Q,4)}, s53 offen
    """)
    code_prefetch(p, name, f"L_end{name}", 22, 1, V_O + 126)
    if MBP == 1: modblock(True)
    NE = opts.get("nearly", 1)
    for st in range(NE):
        emit_wfill("Q", st)
    if MBP == 2: modblock(True)
    if opts.get("pst"): stamp(p, 9)
    p(I("WAITTAG", tag=XK))
    p("s_barrier")
    for ks in range(7):
        for qt in range(2):
            p(f"ds_read_b128 {v(V_H+8*ks+4*qt,4)}, v120 offset:{qt*SLOT + 64*ks}", tag=("rd", XK))
    if NE < 1: emit_wfill("Q", 0)
    F = V_O
    SA = 112
    for k in range(56):
        qt = (k // 4) % 2
        p(f"v_lshlrev_b32 v{F+2*k}, 16, v{V_H+k}")
        p(f"v_and_b32 v{F+2*k+1}, 0xffff0000, v{V_H+k}")
        if k in (0, 4):
            p(f"v_pk_mul_f32 {v(SA+4+2*qt,2)}, {v(F+2*k,2)}, {v(F+2*k,2)}")
        else:
            p(f"v_pk_add_f32 {v(SA+2*qt,2)}, {v(F+2*k-2,2) if k in (1, 5) else v(SA+2*qt,2)}, {v(F+2*k,2)}")
            p(f"v_pk_fma_f32 {v(SA+4+2*qt,2)}, {v(F+2*k,2)}, {v(F+2*k,2)}, {v(SA+4+2*qt,2)}")
    for k in range(4):
        p(f"v_add_f32 v{SA+k}, v{SA+2*k}, v{SA+2*k+1}")
    for k in range(4):
        xreduce(p, SA + k, 121 + k, "v_add_f32")
    p(f"ds_write_b128 {v(V_XW)}, {v(SA,4)}", tag=("wr", (8, -1)))
    p("s_waitcnt lgkmcnt(0)")
    p("s_barrier")
    p(f"ds_read_b128 {v(SA+4,4)}, {v(V_XR)}", tag=("rd", (8, -1)))
    if NE < 2: emit_wfill("Q", 1)
    for qt in range(2):
        m_, r_ = 120 + 4*qt, 122 + 4*qt
        p(f"v_add_f32 v{SA+qt}, v{SA+qt}, v{SA+4+qt}")
        p(f"v_add_f32 v{SA+2+qt}, v{SA+2+qt}, v{SA+6+qt}")
        p(f"v_mul_f32 v{m_}, {f2u(1.0/448)}, v{SA+qt}")
        p(f"v_mul_f32 v{r_}, {f2u(1.0/448)}, v{SA+2+qt}")
        p(f"v_fma_f32 v{r_}, -v{m_}, v{m_}, v{r_}")
        p(f"v_max_f32 v{r_}, 0, v{r_}")
        p(f"v_add_f32 v{r_}, {f2u(1e-5)}, v{r_}")
        p(f"v_rsq_f32 v{r_}, v{r_}")
        p(f"v_mul_f32 v{m_}, -v{m_}, v{r_}")
    for k in range(56):
        qt = (k // 4) % 2
        p(f"v_pk_fma_f32 {v(F+2*k,2)}, {v(F+2*k,2)}, {v(122+4*qt,2)}, {v(120+4*qt,2)} op_sel_hi:[1,0,0]")
    NPRE = opts.get("npre", 3)
    for st in range(2, NPRE):
        emit_wfill("Q", st)
    p(f"""
    v_min_u32 v1, {55*16}, {v(V_LIN)}
    s_mul_i32 s14, {s(S_W)}, 1792
    s_add_u32 s14, s14, {WS_MG}
    s_add_u32 s12, s100, 1
    s_add_u32 s13, s101, 1
    s_and_b32 s13, s13, 0xffff
    s_mul_i32 s53, {s(S_W)}, 896
    s_add_u32 s53, s53, {MODL}
    v_lshrrev_b32 v2, 1, v1
    v_add_u32 v2, s53, v2
    s_mov_b32 s56, 0x100000
    """)
    if opts.get("pst"): stamp(p, 1)
    p(f"""
    L_mp{name}:
    buffer_load_dwordx4 v[120:123], v1, {s(SRD_W,4)}, s14 offen sc1
    buffer_load_dwordx4 v[124:127], v1, {s(SRD_W,4)}, s14 offen offset:896 sc1
    s_waitcnt vmcnt(0)
    v_xor_b32 v112, s13, v120
    v_xor_b32 v113, s13, v122
    v_xor_b32 v114, s13, v124
    v_xor_b32 v115, s13, v126
    v_or3_b32 v116, v112, v113, v114
    v_or_b32 v116, v116, v115
    v_and_b32 v116, 0xffff, v116
    v_xor_b32 v117, s12, v121
    v_xor_b32 v118, s12, v123
    v_or3_b32 v116, v116, v117, v118
    v_xor_b32 v117, s12, v125
    v_xor_b32 v118, s12, v127
    v_or3_b32 v116, v116, v117, v118
    v_cmp_ne_u32 vcc, 0, v116
    s_cbranch_vccz L_mq{name}
    s_sleep {opts.get("msleep", 2)}
    s_sub_u32 s56, s56, 1
    s_cmp_lg_u32 s56, 0
    s_cbranch_scc1 L_mp{name}
    L_mq{name}:
    """)
    if opts.get("pst"): stamp(p, 2)
    for k in range(4):
        p(f"v_mul_f32 v{112+k}, {f2u(QSCALE)}, v{112+k}")
    mt = ("wr", ("M", 0))
    p("ds_write_b64 v2, v[112:113]", tag=mt)
    p("ds_write_b64 v2, v[114:115] offset:448", tag=mt)
    for st in range(NPRE, 3):
        emit_wfill("Q", st)
    MB = 72
    def modreads(ks):
        M = MB + 16 * (ks % 3)
        rt = ("rd", ("M", 0))
        return [I(f"ds_read_b128 {v(M + 8*k + 4*h, 4)}, v{V_MRD} offset:{1792*(1-k) + 128*ks + 16*h}", tag=rt)
                for k in range(2) for h in range(2)]
    NUP = 7
    p(I("WAITTAG", tag=[("M", 0)]))
    p("s_barrier")
    p.extend(modreads(0)); p.extend(modreads(1)); p.extend(modreads(2))
    for ks in range(7):
        M = MB + 16 * (ks % 3)
        for k in range(8*ks, 8*ks + 8):
            d = k % 4
            p(f"v_pk_fma_f32 {v(F+2*k,2)}, {v(F+2*k,2)}, {v(M+2*d,2)}, {v(M+8+2*d,2)}")
            p(f"v_cvt_pk_bf16_f32 v{V_H+k}, v{F+2*k}, v{F+2*k+1}")
        if ks + 3 < 7:
            p.extend(modreads(ks + 3))
    stamp(p, 3 if opts.get("pst") else 1)
    srd(p, SRD_O, 10, 11, 4096 * 896)
    p(f"""
    s_lshl_b32 s14, {s(S_J)}, 20
    s_add_u32 {s(SRD_K)}, s4, s14
    s_addc_u32 {s(SRD_K+1)}, s5, 0
    s_mov_b32 {s(SRD_K+2)}, 0x100000
    s_mov_b32 {s(SRD_K+3)}, 0x20000
    s_add_u32 {s(SRD_V)}, s6, s14
    s_addc_u32 {s(SRD_V+1)}, s7, 0
    s_mov_b32 {s(SRD_V+2)}, 0x100000
    s_mov_b32 {s(SRD_V+3)}, 0x20000
    s_mov_b32 {s(S_KOFF)}, 0
    s_mov_b32 {s(S_VOFF)}, 0
    s_mov_b32 {s(S_THR)}, {thr}
    s_lshl_b32 s15, {s(S_W)}, 3
    """)
    setup = f"""
    v_bfe_u32 v1, v0, 5, 1
    v_and_b32 v2, 31, v0
    v_add_u32 v16, s15, v1
    v_lshlrev_b32 v17, 9, v16
    v_and_b32 v16, 15, v16
    v_xor_b32 v16, v16, v2
    v_lshl_add_u32 {v(V_KDMA)}, v16, 4, v17
    v_xor_b32 {v(V_KDMA+1)}, 32, {v(V_KDMA)}
    v_xor_b32 {v(V_KDMA+2)}, 64, {v(V_KDMA)}
    v_xor_b32 {v(V_KDMA+3)}, 96, {v(V_KDMA)}
    v_lshlrev_b32 v16, 2, v1
    v_add_u32 v16, {s(S_W)}, v16
    v_lshlrev_b32 v16, 9, v16
    v_lshlrev_b32 v17, 1, v1
    v_xor_b32 v17, v17, v2
    v_lshl_add_u32 {v(V_VDMA)}, v17, 4, v16
    v_add_u32 {v(V_VDMA+1)}, 3072, {v(V_VDMA)}
    v_add_u32 {v(V_VDMA+2)}, 6144, {v(V_VDMA)}
    v_add_u32 {v(V_VDMA+3)}, 9216, {v(V_VDMA)}
    v_and_b32 v16, 15, v0
    v_bfe_u32 v17, v0, 4, 2
    v_xor_b32 v17, v17, v16
    v_lshlrev_b32 v16, 9, v16
    v_add_u32 v16, {4*SLOT}, v16
    v_lshl_add_u32 {v(V_KRD)}, v17, 4, v16
    v_xor_b32 {v(V_KRD+1)}, 64, {v(V_KRD)}
    v_xor_b32 {v(V_KRD+2)}, 0x80, {v(V_KRD)}
    v_xor_b32 {v(V_KRD+3)}, 0xc0, {v(V_KRD)}
    v_mov_b32 {v(V_VRD)}, {v(V_TMP)}
    v_xor_b32 {v(V_VRD+1)}, 32, {v(V_TMP)}
    v_mov_b32 {v(V_L)}, 0
    v_mov_b32 {v(V_L+1)}, 0
    """
    setup = [I(x.strip()) for x in setup.strip().split("\n")]
    WRA = 21; WRB = 88
    p(f"""
    s_movk_i32 s31, 0x493
    s_and_b32 s12, {s(S_W)}, 1
    s_mul_i32 s13, {s(S_W)}, 7
    """)
    setup.append(I("v_and_b32 v1, 63, v0"))
    for m in range(7):
        setup += [I(f"v_add_u32 v16, {64*m}, v1"), I("v_mul_u32_u24 v16, s31, v16"), I("v_bfe_u32 v16, v16, 17, 2"),
                  I("v_lshlrev_b32 v16, 5, v16"), I(f"v_xor_b32 v{at.WDR[m]}, v16, {v(V_LIN)}")]
    setup += [I("v_lshrrev_b32 v16, 2, v1"), I("v_mul_u32_u24 v16, 896, v16"), I("v_and_b32 v17, 3, v0"),
              I("v_lshl_add_u32 v16, v17, 3, v16"), I("v_bfe_u32 v17, v0, 3, 2")]
    for mt in range(7):
        if mt < 6:
            p(f"s_add_u32 s{52+mt}, s13, s12")
            p(f"s_add_u32 s{52+mt}, s{52+mt}, {mt}")
        else:
            p(f"s_mul_i32 s58, s12, 6")
            p(f"s_sub_u32 s58, s13, s58")
            p(f"s_add_u32 s58, s58, 6")
        setup += [I(f"v_xor_b32 v18, s{52+mt}, v17"), I(f"v_lshl_add_u32 v{WRB+mt}, v18, 5, v16"),
                  I(f"v_add_u32 v{WRA+mt}, {4*SLOT}, v{WRB+mt}")]
    assert (4 * SLOT) % 256 == 0
    def q_mfma(i, t, qt, fr):
        D = v(V_O + 8*t + 4*qt, 4)
        Bop = v(V_H + 8*i + 4*qt, 4) if i < 7 else a(A_HP + 8*(i-7) + 4*qt, 4)
        return f"v_mfma_f32_16x16x32_bf16 {D}, {fr}, {Bop}, {D if i else 0}"
    def q_fills(i):
        st = i + 3
        if i == 0 and NPRE == 4: return []
        if st < 14:
            return [at.wfill("Q", st, hf) + ([],) for hf in range(2)]
        if i == 11: return [at.kvfill("K", 0), at.kvfill("K", 1)]
        if i == 12: return [at.kvfill("K", 2)]
        return [at.kvfill("V", 0), at.kvfill("V", 1, range(at.nafter))]
    def q_bar(i):
        ks = at.wkeys("Q", i + 1) if i < 13 else [at.key("K", 0)]
        i -= 1
        if 0 <= i < 8:
            ks = ks + [(8, i // 2)] if i % 2 == 0 else ks + [("rd", 8, i // 2)]
        return ks
    def q_valu(i):
        out = []
        if i in (8, 9, 10):
            n = 33
            out += setup[(i-8)*n//3:(i-7)*n//3]
        if i in (11, 12, 13):
            n = len(setup) - 33
            out += setup[33+(i-11)*n//3:33+(i-10)*n//3]
        return out
    def q_xds(i):
        out = []
        i -= 1
        if 0 <= i < 8:
            rho = i // 2
            for k in range(4):
                u, qt = 2*rho + k // 2, k % 2
                if u >= 7: continue
                if i % 2 == 0:
                    out.append(I(f"ds_write_b128 {v(V_XW)}, {v(V_H + 8*u + 4*qt, 4)} offset:{1024*k}", tag=("wr", (8, rho))))
                else:
                    out.append(I(f"ds_read_b128 {a(A_HP + 8*u + 4*qt, 4)}, {v(V_XR)} offset:{1024*k}", tag=("rd", (8, rho))))
        return out
    at.gemm_phase(p, "Q", 14, 16, q_mfma, q_fills, q_bar, q_valu, q_xds)
    p("s_load_dwordx4 s[4:7], s[0:1], 48")
    p("s_load_dwordx2 s[8:9], s[0:1], 72")
    p("s_load_dwordx2 s[10:11], s[0:1], 0")
    p("s_load_dwordx2 s[54:55], s[0:1], 80")
    p("s_load_dwordx2 s[56:57], s[0:1], 88")
    p("s_waitcnt lgkmcnt(0)")
    srd(p, SRD_Q, 4, 5, 448 * 3584)
    for g in range(at.gB + 1, 64):
        for (f, e, nx) in at.ds.get(g, []):
            p(at.kread(lambda it: 0, 0, f))
    p(f"""
    s_mul_i32 s53, {s(S_J)}, {512*896}
    s_mul_i32 s59, {s(S_W)}, 7168
    s_add_u32 {s(S_WBASE)}, s53, s59
    """)
    assert (8 * SLOT) & 0x3fff == (8 * SLOT) % 16384 and ((8 * SLOT) % 16384) + 4096 <= 8192
    AW = 184
    p(f"""
    s_sub_u32 s13, s2, 40
    s_lshl_b32 s13, s13, 12
    s_add_u32 s13, s13, {WS_FLAG}
    v_lshlrev_b32 v1, 4, v0
    v_mov_b32 v4, 0
    v_mov_b32 v5, 0
    v_mov_b32 v6, 0
    v_mov_b32 v7, 0
    s_sub_u32 s12, s2, 40
    s_cmp_ge_u32 s12, 36
    s_cselect_b32 s13, 0x40000000, s13
    s_cselect_b32 s31, 0, 1
    s_cmp_eq_u32 {s(S_W)}, 0
    s_cselect_b32 s31, s31, 0
    """)
    p(f"buffer_store_dwordx4 v[4:7], v1, {s(SRD_W,4)}, s13 offen sc1", tag=("wr", ("ZERO", 0), "private"))
    for sx in range(8):
        for qt in range(2):
            X = V_O + 16*sx + 4*qt
            Y = X + 8
            p(f"v_cvt_pk_bf16_f32 v{X}, v{X}, v{X+1}")
            p(f"v_cvt_pk_bf16_f32 v{X+1}, v{X+2}, v{X+3}")
            p(f"v_cvt_pk_bf16_f32 v{Y}, v{Y}, v{Y+1}")
            p(f"v_cvt_pk_bf16_f32 v{Y+1}, v{Y+2}, v{Y+3}")
        for qt in range(2):
            X = V_O + 16*sx + 4*qt
            Y = X + 8
            p(f"v_permlane32_swap_b32 v{X}, v{Y}")
            p(f"v_permlane32_swap_b32 v{X+1}, v{Y+1}")
        for qt in range(2):
            X = V_O + 16*sx + 4*qt
            Y = X + 8
            p(f"v_permlane16_swap_b32 v{X}, v{Y}")
            p(f"v_permlane16_swap_b32 v{X+1}, v{Y+1}")
        for qt in range(2):
            X = V_O + 16*sx + 4*qt
            Y = X + 8
            for k, r in enumerate((X, X+1, Y, Y+1)):
                p(f"v_accvgpr_write_b32 a{A_Q + 8*sx + 4*qt + k}, v{r}")
    stamp(p, 4 if opts.get("pst") else 2)
    lid = [opts.get("lid0", 0)]
    import k_prep
    son = k_prep.STAMP["on"]
    if opts.get("pst"): k_prep.STAMP["on"] = False
    def B(c, fn, aval=None, **kw):
        at.body(p, c, fn, aval=aval, lid=lid[0], **kw)
        if aval != -1:
            at.fallback(p, c % 2, lid[0], aval != 63)
        lid[0] += 1
    B(3, lambda it: -1, aval=-1)
    p("s_mov_b64 s[12:13], s[54:55]")
    p(I("WAITTAG", tag=[("ZERO", 0)]))
    if opts.get("touch", True):
        p(f"""
        v_min_u32 v1, {223 if opts.get("t64", False) else 111}, v0
        v_lshlrev_b32 v1, {6 if opts.get("t64", False) else 7}, v1
        s_mul_i32 s54, {s(S_PB)}, {112*128}
        s_add_u32 s53, s53, s54
        buffer_load_dword v2, v1, {s(SRD_O,4)}, s53 offen
        """)
    exv = None
    if opts.get("warm", True):
        p(f"""
        v_and_b32 v1, 63, v0
        s_lshl_b32 s14, {s(S_J)}, 5
        s_add_u32 s14, s14, {s(S_PB)}
        s_lshl_b32 s14, s14, 15
        s_min_u32 s14, s14, {2048*4096 - 35840}
        s_mul_i32 s15, {s(S_W)}, 640
        s_add_u32 s14, s14, s15
        v_cmp_gt_u32 vcc, 5, v1
        v_cndmask_b32 v3, 0, v1, vcc
        v_lshl_add_u32 v3, v3, 7, s14
        v_mov_b32 v16, s6
        v_mov_b32 v17, s7
        v_mov_b32 v18, 2560
        v_mov_b32 v19, 0
        s_mul_i32 s14, {s(S_PB)}, {14*3584}
        s_mul_i32 s15, {s(S_HD)}, 1792
        s_add_u32 s14, s14, s15
        s_and_b32 s15, {s(S_J)}, 1
        s_mul_i32 s15, s15, 896
        s_add_u32 s14, s14, s15
        s_and_b32 s15, {s(S_W)}, 1
        s_mul_i32 s15, s15, 384
        s_add_u32 s14, s14, s15
        s_mov_b64 exec, 0xf00
        v_and_b32 v3, 3, v1
        v_lshl_add_u32 v3, v3, 7, s14
        v_mov_b32 v16, s4
        v_mov_b32 v17, s5
        v_mov_b32 v18, 3584
        s_mov_b64 exec, -1
        s_mul_i32 s14, s2, {25*128}
        s_min_u32 s14, s14, {896*896 - 28*128}
        s_and_b32 s15, {s(S_W)}, 1
        s_lshl_b32 s15, s15, 7
        s_add_u32 s14, s14, s15
        v_writelane_b32 v3, s14, 6
        v_writelane_b32 v16, s8, 6
        v_writelane_b32 v17, s9, 6
        s_movk_i32 s14, 0x100
        v_writelane_b32 v18, s14, 6
        s_min_u32 s14, s2, 223
        s_lshl_b32 s14, s14, 1
        s_add_u32 s14, s14, {s(S_HD)}
        s_mul_i32 s14, s14, 5376
        s_and_b32 s15, {s(S_W)}, 1
        s_add_u32 s15, s15, 1
        s_mul_i32 s15, s15, 1792
        s_add_u32 s14, s14, s15
        v_writelane_b32 v3, s14, 7
        v_writelane_b32 v16, s56, 7
        v_writelane_b32 v17, s57, 7
        s_movk_i32 s14, 0x80
        v_writelane_b32 v18, s14, 7
        v_add_co_u32 v16, vcc, v16, v3
        v_addc_co_u32 v17, vcc, 0, v17, vcc
        """)
        exv = [(at.gB, I("global_load_dword v20, v[16:17], off"))]
        exv2 = [(at.gJ, I("v_lshl_add_u64 v[16:17], v[16:17], 0, v[18:19]"))]
    B(0, lambda it: 0, aval=0, extra_scalar=[(60, I(f"s_mov_b32 {s(S_CNT)}, 14"))])
    p(f"""
    s_cmp_eq_u32 s31, 0
    s_cbranch_scc1 L_na{name}
    v_mov_b32 v1, 1
    v_mov_b32 v3, 0
    """)
    p("s_mov_b64 exec, 1")
    p(raw(f"buffer_atomic_add v1, v3, {s(SRD_D,4)}, 0 offen offset:4 sc1"))
    p("s_mov_b64 exec, -1")
    p(f"L_na{name}:")
    srd(p, 52, 56, 57, 448 * 5376)
    p(f"""
    v_and_b32 v1, 3, v0
    v_lshrrev_b32 v4, 2, v0
    v_mul_u32_u24 v5, 14, v4
    v_and_b32 v5, -4, v5
    v_mul_u32_u24 v4, {7*5376}, v4
    v_lshl_add_u32 v4, v1, 4, v4
    v_mov_b32 v10, 1
    v_mov_b32 v11, 0x40000000
    v_cmp_ne_u32 vcc, 0, v0
    v_cndmask_b32 v11, 0, v11, vcc
    v_lshlrev_b32 v6, 2, v0
    v_add_u32 v6, {MODL}, v6
    v_mov_b32 v7, {MODL}
    """)
    p.begin_loop(14)
    p(f"L_loop{name}:")
    for c in range(1, 5):
        ex = [(60, I(f"s_sub_u32 {s(S_CNT)}, {s(S_CNT)}, 1"))] if c == 2 else None
        B(c % 4, (lambda c: lambda it: 4*it + c)(c), extra_scalar=ex,
          extra_valu=(exv if c == 1 else exv2 if c == 3 else None) if exv else None)
    p(f"s_cmp_lg_u32 {s(S_CNT)}, 0")
    p(f"s_cbranch_scc1 L_loop{name}")
    p.end_loop()
    ZD = 96
    ZT = 103
    zops = []
    for m in range(7):
        zops += [I(f"v_add_u32 v{ZT}, {64*m}, v1"), I(f"v_mul_u32_u24 v{ZT+1}, s31, v{ZT}"), I(f"v_lshrrev_b32 v{ZT+1}, 16, v{ZT+1}"),
                 I(f"v_mul_u32_u24 v{ZT+2}, 14, v{ZT+1}"), I(f"v_sub_u32 v{ZT}, v{ZT}, v{ZT+2}"),
                 I(f"v_add_u32 v{ZT}, s57, v{ZT}"), I(f"v_subrev_u32 v{ZT+2}, 14, v{ZT}"), I(f"v_min_u32 v{ZT}, v{ZT}, v{ZT+2}"),
                 I(f"v_mul_u32_u24 v{ZT+1}, 3584, v{ZT+1}"), I(f"v_lshl_add_u32 v{ZD+m}, v{ZT}, 4, v{ZT+1}")]
        if m % 4:
            zops.append(I(f"v_subrev_u32 v{ZD+m}, {(m % 4)*1024}, v{ZD+m}"))
    ZBASE = [[2 * SLOT, 3 * 2 * SLOT, 0, 8 * SLOT], [2 * 2 * SLOT, 2 * SLOT, 3 * 2 * SLOT, 8 * SLOT]]
    ZKEYS = [[[(2, 300), (3, 300)], [(6, 300), (7, 300)], [(0, 300), (1, 300)], [(8, 300)]],
             [[(4, 310), (5, 310)], [(2, 310), (3, 310)], [(6, 310), (7, 310)], [(8, 310)]]]
    def zfill(rnd, z1=0):
        gs = []
        so = 34 if z1 else 37
        for hf in range(2):
            pre = [I(f"s_add_u32 m0, s36, {ZBASE[z1][rnd] + hf*4096}")]
            d = [I(f"buffer_load_dwordx4 v{ZD+m}, {s(SRD_Q,4)}, s{so} offen offset:{(m % 4)*1024} lds", tag=("dma", ZKEYS[z1][rnd]))
                 for m in range(4*hf, min(7, 4*hf+4))]
            post = [I(f"s_add_u32 s{so}, s{so}, {4*32*3584}")] if hf else []
            gs.append((pre, d, post))
        return gs
    def flat(gs):
        return [x for g in gs for lst in g for x in lst]
    p(f"""
    v_mov_b32 v8, 4
    buffer_load_dword v9, v8, {s(SRD_D,4)}, 0 offen sc1
    s_movk_i32 s31, 0x124a
    s_and_b32 s57, {s(S_PB)}, 1
    s_lshl_b32 s57, s57, 1
    v_and_b32 v1, 63, v0
    """)
    for av in range(57, 64):
        exx = None
        if av == 59:
            p(f"""
            v_readfirstlane_b32 s14, v9
            s_cmp_lt_u32 s14, 36
            s_cbranch_scc1 L_mslow{name}
            L_mok{name}:
            """)
            p.begin_side()
            p(f"L_mslow{name}:")
            p("s_mov_b32 s14, 0")
            poll(p, SRD_D, 14, 8, 9, "m2" + name, 56, 36, sleep=4)
            p(f"s_branch L_mok{name}")
            p.end_side()
            p(f"s_lshl_b32 s14, {s(S_PB)}, 7")
            p(f"s_add_u32 s14, s14, {WS_FLAG + 4096 + 16}")
            exx = [(2, I(f"buffer_atomic_add v10, v11, {s(SRD_W,4)}, s14 offen sc0 sc1"))]
        if av == 61:
            exx = [(at.gJ, I("ds_write_b32 v6, v10", tag=("wr", ("TK", 0))))]
        if av == 62:
            exx = [(at.gJ, I("ds_read_b32 v10, v7", tag=("rd", ("TK", 0))))]
        if av == 63:
            p(f"""
            v_readfirstlane_b32 s58, v10
            s_cmp_ge_u32 s58, 2
            s_cselect_b32 s58, 64, s58
            s_lshl_b32 s14, {s(S_PB)}, 1
            s_add_u32 s58, s58, s14
            s_lshl_b32 s14, s58, 6
            s_add_u32 s14, s14, {28*64}
            s_cmp_ge_u32 s58, 56
            s_cselect_b32 s14, 0x40000000, s14
            """)
            exx = [(1 + (k * 30) // len(zops), x) for k, x in enumerate(zops)]
            for i in range(7):
                exx += [(2 + 3*i, I(f"buffer_load_dwordx4 {a(AW+4*i,4)}, v4, s[52:55], s14 offen")), (2 + 3*i, I("s_add_u32 s14, s14, 5376"))]
            exx += [(24, I(f"global_load_dwordx4 {a(AW+28,4)}, v5, s[12:13]"))]
        B(av % 4, (lambda av: lambda it: av)(av), aval=av, extra_valu=exx)
    if not opts.get("pst"): stamp(p, 3)
    for qt in range(2):
        at.xreduce(p, V_L + qt, "v_add_f32")
        p(f"v_rcp_f32 v{2+qt}, {v(V_L+qt)}")
    p("s_mov_b32 s57, 0x40000000")
    p(f"WAITFOR {a(AW,32)}")
    p("s_waitcnt lgkmcnt(0)")
    modblock(False, MW=48, CR=76, MC=104, MA=80, MT=120, MS=30, scr=161792,
             pre=[I(f"v_accvgpr_read_b32 v{48+k}, a{AW+k}") for k in range(32)])
    X1B = 28672; X2B = 8 * SLOT
    def xaddr(ks, q):
        return X1B + (4*ks + q) * 1024 if ks < 9 else X2B + (4*(ks-9) + q) * 1024
    XKEY = [(2, 250), (3, 250), (8, 250), ("T", 250)]
    p(f"""
    s_and_b32 s14, {s(S_W)}, 1
    s_lshl_b32 s14, s14, 11
    s_mul_i32 s15, {s(S_HD)}, 32768
    s_add_u32 s15, s15, s14
    s_add_u32 s15, s15, {X1B}
    v_add_u32 v4, s15, {v(V_LIN)}
    s_mul_i32 s15, {s(S_HD)}, {X2B - X1B - 4096}
    s_add_u32 s15, s15, s14
    s_add_u32 s15, s15, {X1B}
    v_add_u32 v5, s15, {v(V_LIN)}
    v_add_u32 v6, {X1B}, {v(V_LIN)}
    v_add_u32 v7, {X2B}, {v(V_LIN)}
    s_lshl_b32 s14, {s(S_PB)}, 7
    s_add_u32 s14, s14, {WS_FLAG}
    v_mov_b32 v13, s14
    v_mov_b32 v10, 1
    v_mov_b32 v9, 12
    s_barrier
    """)
    for u in range(8):
        for qt in range(2):
            X = V_O + 16*u + 4*qt
            Y = X + 8
            sel = "op_sel_hi:[1,0]" if qt == 0 else "op_sel:[0,1] op_sel_hi:[1,1]"
            for r in (X, X+2, Y, Y+2):
                p(f"v_pk_mul_f32 {v(r,2)}, {v(r,2)}, v[2:3] {sel}")
            p(f"v_cvt_pk_bf16_f32 v{X}, v{X}, v{X+1}")
            p(f"v_cvt_pk_bf16_f32 v{X+1}, v{X+2}, v{X+3}")
            p(f"v_cvt_pk_bf16_f32 v{X+2}, v{Y}, v{Y+1}")
            p(f"v_cvt_pk_bf16_f32 v{X+3}, v{Y+2}, v{Y+3}")
            p(f"ds_write_b128 v{4 if u == 0 else 5}, {v(X,4)} offset:{4096*u + 1024*qt}", tag=("wr", XKEY))
    ACC = V_O
    p(f"""
    s_and_b32 s15, {s(S_J)}, 1
    s_lshl_b32 s15, s15, 2
    s_and_b32 s32, {s(S_PB)}, 3
    s_add_u32 s32, s32, s15              ; fb
    s_lshr_b32 s15, {s(S_J)}, 1
    s_lshl_b32 s15, s15, 3
    s_lshr_b32 s33, {s(S_PB)}, 2
    s_add_u32 s33, s33, s15              ; tb
    s_mul_i32 s34, s32, 224
    s_mul_i32 s36, {s(S_W)}, {32*3584}
    s_add_u32 s34, s34, s36
    s_add_u32 s37, s34, 1792
    s_mul_i32 s36, {s(S_W)}, 7168
    """)
    A_OB = 0
    NRW = 8
    def wrd(st, mt):
        pr = at.OPAIR[st % 3]
        reg, off = (WRB + mt, 0) if pr == 0 else (WRA + mt, (pr - 2) * 2 * SLOT)
        f = st * 7 + mt
        return [I(f"ds_read_b64_tr_b16 {a(A_F + 4*(f % NRW) + 2*e, 2)}, v{reg} offset:{off + e*14336}", tag=("rd", at.okeys(st))) for e in range(2)]
    def brd(st):
        ky = [(2, 250), (3, 250), ("T", 250)] if st < 9 else [(8, 250)]
        return [I(f"ds_read_b128 {a(A_OB + 16*(st % 2) + 4*q, 4)}, v{6 if st < 9 else 7} offset:{xaddr(st, q) - (X1B if st < 9 else X2B)}",
                  tag=("rd", ky)) for q in range(4)]
    LF = opts.get("lf", 2)
    for f in range(LF):
        p.extend(wrd(0, f))
    p("s_waitcnt lgkmcnt(0)")
    p("s_barrier")
    if opts.get("ost"): stamp(p, 4)
    p.extend(brd(0))
    G = 28
    gb = G - 4 * LF - 1
    for st in range(16):
        kind = ["m"] * G
        SC = [[] for _ in range(G + 1)]
        VE = [[] for _ in range(G)]
        if st < 15:
            kind[gb] = "B"
            VE[gb] = [I("WAITTAG", tag=at.okeys(st + 1)), I("s_barrier")]
        if 0 < st < 15:
            kind[0] = "B"
            VE[0] = [I("s_barrier")]
        if st + 2 < 16:
            new = [at.ofill(st + 2, hf) + ([],) for hf in range(2)]
        else:
            new = zfill(st - 14)
        newl = []
        for pre, d, post in new:
            for k, x in enumerate(d):
                newl.append((pre if k == 0 else [], x, post if k == len(d) - 1 else []))
        dpos = [3, 5, 7, 9, 12, 14, 16, 20]
        if st == 4:
            newl.append(([], I(f"buffer_atomic_add v10, v11, {s(SRD_D,4)}, s57 offen offset:12 sc1"), []))
        if st == 14:
            newl.append(([], I(f"buffer_load_dword v15, v9, {s(SRD_D,4)}, 0 offen sc1"), []))
        if st == opts.get("eflag", 15):
            newl.append(([], I(f"buffer_load_dword v14, v13, {s(SRD_W,4)}, 0 offen sc1"), []))
        for g, it in zip(dpos, newl):
            pre, x, post = it
            kind[g] = "d"; VE[g] = [x]
            for k, y in enumerate(pre):
                SC[g - len(pre) + k].append(y)
            SC[g + 1] += post
        dsq = []
        for mt in range(7):
            nf = mt + LF
            if nf < 7: rr = wrd(st, nf)
            elif st < 15: rr = wrd(st + 1, nf - 7)
            else: rr = []
            dsq += [(4*mt + k, x) for k, x in enumerate(rr)]
        if st < 15:
            dsq += [(17 + k, x) for k, x in enumerate(brd(st + 1))]
        dsq.sort(key=lambda z: z[0])
        nds = [0] * G
        q = 0
        for g in range(G):
            while kind[g] == "m" and q < len(dsq) and dsq[q][0] <= g and nds[g] < (2 if dsq[q][0] <= g - 2 else 1):
                VE[g].append(dsq[q][1]); nds[g] += 1; q += 1
        assert q == len(dsq)
        ops = []
        mg = [g for g in range(G) if kind[g] == "m" and nds[g] < 2]
        for k, x in enumerate(ops):
            VE[mg[(k * len(mg)) // len(ops)]].append(x)
        for mt in range(1, 8):
            if mt == 7 and st == 15: continue
            g = 4*mt - 1
            while kind[g] != "m" or SC[g]: g -= 1
            ex = f", {a(A_OB + 16*((st+1) % 2), 16)}" if mt == 7 else ""
            SC[g].append(I(f"WAITFOR {a(A_F + 4*((st*7 + mt) % NRW), 4)}{ex}"))
        for g in range(G):
            mt, q = g // 4, g % 4
            D = v(ACC + 16*mt + 4*q, 4)
            p(f"v_mfma_f32_16x16x32_bf16 {D}, {a(A_F + 4*((st*7 + mt) % NRW), 4)}, {a(A_OB + 16*(st % 2) + 4*q, 4)}, {D if st else 0}")
            oabl = opts.get("oabl", "")
            p.extend([x for x in SC[g] + VE[g] if not (("D" in oabl and x.kind == "dma" and st < 14) or ("B" in oabl and x.kind == "barrier")
                                                       or ("R" in oabl and x.kind == "ds_read"))])
        p.extend(SC[G])
        if opts.get("ost") and st in (3, 7, 11): stamp(p, [5, 6, 7][st // 4])
    if opts.get("ost"):
        stamp(p, 8)
        k_prep.STAMP["on"] = False
    if not opts.get("pst"): stamp(p, 4)
    p(f"""
    s_lshl_b32 s14, {s(S_J)}, 7
    s_lshl_b32 s15, {s(S_PB)}, 2
    s_add_u32 s14, s14, s15
    s_mul_i32 s14, s14, {14*1024}
    s_mul_i32 s15, {s(S_W)}, 7
    s_add_u32 s15, s15, 1
    s_lshr_b32 s15, s15, 1
    s_lshl_b32 s15, s15, 10
    s_add_u32 s14, s14, s15
    s_add_u32 s14, s14, {WS_PART}
    s_and_b32 s50, {s(S_W)}, 1
    s_mul_i32 s15, s50, {2*14*1024 - 4096}
    s_add_u32 s15, s15, s14
    s_add_u32 s15, s15, 3072
    s_mul_i32 s51, {s(S_HD)}, {2*SLOT}
    s_add_u32 s51, s51, {4*SLOT + 28672}
    s_lshl_b32 s52, s50, 3
    s_add_u32 s52, s52, s51
    v_add_u32 v4, s52, {v(V_LIN)}
    s_lshl_b32 s52, s50, 11
    s_add_u32 s52, s52, s51
    v_add_u32 v5, s52, {v(V_LIN)}
    """)
    pt = ("wr", ("PT", 0), "private")
    for q in range(4):
        X = ACC + 96 + 4*q
        p(f"v_cvt_pk_bf16_f32 v{X}, v{X}, v{X+1}")
        p(f"v_cvt_pk_bf16_f32 v{X+1}, v{X+2}, v{X+3}")
        p(f"ds_write_b64 v4, {v(X,2)} offset:{1024*q}", tag=("wr", ("MG", 0)))
    for q in range(4):
        for pr in range(3):
            X = ACC + 32*pr + 4*q
            Y = X + 16
            p(f"v_cvt_pk_bf16_f32 v{X}, v{X}, v{X+1}")
            p(f"v_cvt_pk_bf16_f32 v{X+1}, v{X+2}, v{X+3}")
            p(f"v_cvt_pk_bf16_f32 v{X+2}, v{Y}, v{Y+1}")
            p(f"v_cvt_pk_bf16_f32 v{X+3}, v{Y+2}, v{Y+3}")
            p(f"buffer_store_dwordx4 {v(X,4)}, {v(V_LIN)}, {s(SRD_W,4)}, s14 offen offset:{pr*1024} sc1", tag=pt)
        if q < 3:
            p(f"s_add_u32 s14, s14, {14*1024}")
        if q == 0:
            p("s_waitcnt lgkmcnt(0)")
            p("s_barrier")
            for k in range(2):
                p(f"ds_read_b128 {v(ACC+112+4*k,4)}, v5 offset:{1024*k}", tag=("rd", ("MG", 0)))
    for k in range(2):
        p(f"buffer_store_dwordx4 {v(ACC+112+4*k,4)}, {v(V_LIN)}, {s(SRD_W,4)}, s15 offen sc1", tag=pt)
        p(f"s_add_u32 s15, s15, {14*1024}")
    p(f"""
    v_cmp_gt_u32 vcc, 56, v15
    s_cbranch_vccnz L_nslow{name}
    L_nok{name}:
    """)
    p.begin_side()
    p(f"L_nslow{name}:")
    p("s_mov_b32 s14, 0")
    poll(p, SRD_D, 14, 9, 15, "m3" + name, 56, 56, sleep=8)
    p(f"s_branch L_nok{name}")
    p.end_side()
    srd(p, SRD_K, 10, 11, 2048 * 896)
    emit_red_pre(p, S_W, S_PB, S_J, SRD_W, SRD_K, B=184)
    emit_red_early(p, SRD_W, 14)
    p(f"""
    s_lshl_b32 s14, {s(S_PB)}, 7
    s_add_u32 s14, s14, {WS_FLAG}
    """)
    p(f"s_lshl_b32 s15, 1, {s(S_J)}")
    signal(p, SRD_W, 14, S_W, "r" + name, vt=10, keys=[("PT", 0)], val="s15")
    stamp(p, 5)
    zl = [zfill(2), zfill(3), zfill(0, 1)]
    zl = flat(sum(zl, []))
    emit_red(p, S_W, S_PB, SRD_W, 163840 - 512, B=184, idle=zl)
    W4 = s(SRD_W, 4)
    ZACC = 128
    NRZ = 16
    A_H = 0
    A_FZ = 64
    VB = 16; RS = 48; VDB = 64; VRB = 72; Z1 = 80; GACC = 128
    RA = 6; A_A = 0; A_MU = 168; PB0 = 131072
    p(f"""
    s_lshr_b32 s15, {s(S_J)}, 1
    s_lshl_b32 s15, s15, 5
    s_add_u32 s14, s14, s15
    s_add_u32 s14, s14, 4096
    v_and_b32 v1, 63, v0
    v_lshlrev_b32 v2, 4, v1
    v_and_b32 v3, 15, v0                 ; n
    v_bfe_u32 v8, v0, 4, 2               ; g
    s_lshl_b32 s58, s33, 2
    s_add_u32 s58, s58, {s(S_W)}
    s_mul_i32 s4, s58, {14*1024}
    s_add_u32 s4, s4, {WS_H2}
    s_add_u32 s5, s4, 4096
    s_add_u32 s12, s4, 8192
    s_add_u32 s13, s4, 12288
    v_lshrrev_b32 v9, 2, v1
    v_mul_u32_u24 v9, 224, v9
    v_and_b32 v12, 3, v0
    v_lshl_add_u32 v12, v12, 3, v9
    v_add_u32 v13, {4*SLOT}, v12
    v_add_u32 v14, {8*SLOT}, v12
    v_mov_b32 v15, 0
    s_lshl_b32 s15, s33, 7
    s_lshl_b32 s50, {s(S_W)}, 5
    s_add_u32 s15, s15, s50
    s_add_u32 s15, s15, {WS_FLAG + 4096}
    """)
    signal(p, SRD_W, 14, S_W, "z" + name, vt=48, keys=[("H2", 0)])
    stamp(p, 7)
    p("s_cmp_lg_u32 s54, 0")
    p(f"s_cbranch_scc1 L_zf{name}")
    p.extend(zl)
    p(f"L_zf{name}:")
    srd(p, SRD_V, 6, 7, 2048 * 4096 + 4096)
    p(f"""
    s_sub_u32 {s(SRD_V)}, {s(SRD_V)}, 4096
    s_subb_u32 {s(SRD_V+1)}, {s(SRD_V+1)}, 0
    s_mov_b32 s50, s32
    s_mov_b32 s51, s33
    v_lshrrev_b32 v9, 3, v1
    v_lshlrev_b32 v9, 12, v9
    v_and_b32 v4, 7, v0
    v_xor_b32 v4, v4, v8
    v_lshl_add_u32 v4, v4, 4, v9
    v_xor_b32 v5, 64, v4
    """)
    for m in range(8):
        nl = m // 2
        if m % 2 == 0:
            p(f"s_add_u32 s52, {s(S_W)}, {nl}")
            p(f"s_and_b32 s52, s52, 3")
            p(f"s_lshl_b32 s52, s52, 16")
        p(f"s_add_u32 s53, s52, {(m % 2)*32768 + 4096 - (m % 4)*1024}")
        p(f"v_add_u32 v{VDB+m}, s53, v{4 + m % 2}")
    p(f"""
    s_lshl_b32 s52, s51, 18
    s_lshl_b32 s53, {s(S_W)}, 10
    s_add_u32 s52, s52, s53
    s_lshl_b32 s54, s50, 6
    s_lshl_b32 s53, {s(S_W)}, 4
    s_add_u32 s54, s54, s53
    s_mul_i32 s54, s54, 7168
    s_add_u32 s54, s54, {WS_ZZ}
    s_add_u32 s55, s54, 4096
    s_lshl_b32 s53, {s(S_W)}, 13
    v_mov_b32 v4, {f2u(C2)}
    v_mov_b32 v6, {f2u(C1)}
    s_lshl_b32 s38, s50, 6
    s_lshr_b32 s39, s58, 1
    s_add_u32 s38, s38, s39
    s_mul_i32 s38, s38, 7168
    s_and_b32 s39, s58, 1
    s_lshl_b32 s39, s39, 9
    s_add_u32 s38, s38, s39
    s_add_u32 s38, s38, {WS_ZZ}
    s_add_u32 s39, s38, 4096
    v_and_b32 v10, 1, v8
    v_lshlrev_b32 v10, 10, v10           ; (g%2)*1024 : second tile of the pair
    v_lshrrev_b32 v11, 1, v8
    v_lshl_add_u32 v10, v11, 8, v10      ; + (g/2)*256
    v_lshl_add_u32 v10, v3, 4, v10       ; + n*16
    v_lshlrev_b32 v11, 20, v10
    v_and_b32 v11, 0x40000000, v11
    v_or_b32 v11, v11, v10
    """)
    BSL = [0, 2, 1, 3, 4]
    BOV = {0: [0, 1], 1: [2, 3], 2: [4, 5], 3: [6, 7], 4: [8]}
    def bdma(dd, half, first=False):
        pre = [I(f"s_add_u32 m0, s53, {BSL[dd % 5]*32768 + half*4096}")]
        tg = ("dma", [(f"B{dd % 5}", dd)] + [(k, 400) for k in BOV[BSL[dd % 5]]]) if first else ("dma", (f"B{dd % 5}", dd), "private")
        out = [I(f"buffer_load_dwordx4 v{VDB+4*half+k}, {s(SRD_V,4)}, s52 offen offset:{k*1024} lds", tag=tg) for k in range(4)]
        post = [I("s_add_u32 s52, s52, 128")] if half else []
        return pre, out, post
    LEADZ = 6
    def zreads(z1):
        rds = []
        for u in range(14):
            rnd = u // 4
            ab = ZBASE[z1][rnd] + (u % 4) * 7168
            base, off = (12, ab) if ab < 4 * SLOT else (13, ab - 4 * SLOT) if ab < 8 * SLOT else (14, ab - 8 * SLOT)
            for ft in range(7):
                f = u * 7 + ft + 98 * z1
                rds.append([I(f"ds_read_b64_tr_b16 {a(A_FZ + 4*(f % NRZ) + 2*e, 2)}, v{base} offset:{off + e*3584 + 32*ft}",
                              tag=("rd", ZKEYS[z1][rnd])) for e in range(2)])
        return rds
    def zgemm(z1, rds, acc, hook=None):
        for g in range(98):
            for hk in (hook or {}).get(g, []):
                p(hk)
            u, ft = g // 7, g % 7
            f = g + 98 * z1
            D = v(acc + 4*ft, 4)
            Wf = a(A_FZ + 4*(f % NRZ), 4)
            H = a(A_H + 4*u, 4)
            C = D if u else "0"
            p(f"v_mfma_f32_16x16x32_bf16 {D}, {Wf}, {H}, {C}" if z1 else f"v_mfma_f32_16x16x32_bf16 {D}, {H}, {Wf}, {C}")
            if g + 1 < 98 and (g % 2 == 1 or ft == 6):
                ex = f", {a(A_H + 4*(u+1), 4)}" if ft >= 5 and u < 13 else ""
                p(f"WAITFOR {a(A_FZ + 4*((f+1) % NRZ), 4)}, {a(A_FZ + 4*((f+2) % NRZ), 4)}{ex}")
            if g + LEADZ < 98:
                p.extend(rds[g + LEADZ])
    def interleave(gl, bl):
        step = max(1, len(gl) // len(bl))
        for k, x in enumerate(gl):
            if k % step == 0 and bl:
                p.extend(bl.pop(0))
            p(x)
        for x in bl:
            p.extend(x)
    def groups(gs):
        out = []
        for pre, o, post in gs:
            for k, x in enumerate(o):
                out.append((pre if k == 0 else []) + [x] + (post if k == len(o) - 1 else []))
        return out
    rz = zreads(0)
    for x in rz[:LEADZ]:
        p.extend(x)
    poll(p, SRD_W, 15, 15, 48, "z" + name, 56, 2)
    stamp(p, 8)
    for u in range(14):
        p(f"buffer_load_dwordx4 {a(A_H+4*u,4)}, v2, {W4}, s{[4,5,12,13][u//4]} offen offset:{(u % 4)*1024}{LD}")
    hk = {29: ["s_barrier"]}
    NZI = opts.get("nzi", 1)
    for r in range(NZI):
        g0 = 28 * (r + 1) + 2
        if r: hk.setdefault(g0 - 1, []).append("s_barrier")
        for k, x in enumerate(groups(zfill(r + 1, 1))):
            hk.setdefault(g0 + 3 * k, []).extend(x)
    zgemm(0, rz, ZACC, hook=hk)
    p("s_barrier")
    if not opts.get("zst"): stamp(p, 9)
    gp = Prog("tmp")
    gelu_pairs(gp, [ZACC + 2*k for k in range(14)], 24)
    interleave(gp.items, groups(sum([zfill(r, 1) for r in range(NZI + 1, 4)], [])))
    for k in range(0, 4, 2):
        p(f"v_pk_add_f32 {v(32+k,2)}, {v(ZACC+k,2)}, {v(ZACC+4+k,2)}")
        p(f"v_pk_mul_f32 {v(36+k,2)}, {v(ZACC+k,2)}, {v(ZACC+k,2)}")
    for ft in range(1, 7):
        for k in range(0, 4, 2):
            if ft >= 2:
                p(f"v_pk_add_f32 {v(32+k,2)}, {v(32+k,2)}, {v(ZACC+4*ft+k,2)}")
            p(f"v_pk_fma_f32 {v(36+k,2)}, {v(ZACC+4*ft+k,2)}, {v(ZACC+4*ft+k,2)}, {v(36+k,2)}")
    for sh in (8, 4, 2, 1):
        for k in range(8):
            p(f"v_add_f32_dpp v{32+k}, v{32+k}, v{32+k} row_ror:{sh} row_mask:0xf bank_mask:0xf")
    p(f"""
    v_cmp_eq_u32 vcc, 0, v3
    v_cndmask_b32 v40, v34, v32, vcc
    v_cndmask_b32 v41, v38, v36, vcc
    v_cndmask_b32 v42, v35, v33, vcc
    v_cndmask_b32 v43, v39, v37, vcc
    v_or_b32 v41, 0x80000000, v41
    v_or_b32 v43, 0x80000000, v43
    v_lshlrev_b32 v9, 5, v8
    v_lshl_add_u32 v9, v3, 4, v9
    v_mov_b32 v25, 0x40000000
    v_cmp_gt_u32 vcc, 2, v3
    v_cndmask_b32 v9, v25, v9, vcc
    s_lshl_b32 s12, s58, 10
    s_add_u32 s12, s12, {WS_ST2}
    s_lshl_b32 s13, s50, 7
    s_add_u32 s13, s13, s12
    buffer_store_dwordx4 v[40:43], v9, {W4}, s13 offen sc1
    v_and_b32 v9, 7, v3
    v_lshlrev_b32 v9, 7, v9
    v_lshl_add_u32 v9, v8, 5, v9
    v_lshrrev_b32 v25, 3, v3
    v_lshl_add_u32 v9, v25, 4, v9
    """)
    rz = zreads(1)
    for x in rz[:LEADZ]:
        p.extend(x)
    p(I("WAITTAG", tag=ZKEYS[1][1] + ZKEYS[1][2]))
    p("s_barrier")
    Z1ACC = 160
    p(f"""
    s_lshl_b32 s15, s50, 9
    s_add_u32 s15, s15, {WS_FLAG + 8192}
    s_lshr_b32 s14, s51, 3
    s_lshl_b32 s14, s14, 7
    s_add_u32 s14, s14, s15
    s_lshl_b32 s13, {s(S_W)}, 7
    s_add_u32 s15, s15, s13
    """)
    hk = {}
    NBZ = opts.get("nbz", 2)
    for dd in range(NBZ):
        g0 = 28 * dd + 2
        if dd: hk.setdefault(g0 - 1, []).extend([I("WAITTAG", tag=ZKEYS[1][3]), "s_barrier"])
        for k, x in enumerate(groups([bdma(dd, hf, first=True) for hf in range(2)])):
            hk.setdefault(g0 + 3 * k, []).extend(x)
    hk.setdefault(opts.get("spoll", 76), []).append(f"buffer_load_dwordx4 v[32:35], v9, {W4}, s12 offen sc1")
    zgemm(1, rz, Z1ACC, hook=hk)
    p(f"""
    s_mov_b32 s56, 0x100000
    s_waitcnt vmcnt(0)
    s_branch L_sp2{name}
    L_sp1{name}:
    buffer_load_dwordx4 v[32:35], v9, {W4}, s12 offen sc1
    s_waitcnt vmcnt(0)
    L_sp2{name}:
    v_and_b32 v36, v33, v35
    v_cmp_le_i32 vcc, 0, v36
    s_cbranch_vccz L_sp3{name}
    s_sub_u32 s56, s56, 1
    s_cmp_lg_u32 s56, 0
    s_cbranch_scc1 L_sp1{name}
    L_sp3{name}:
    """)
    for ctl in ("quad_perm:[1,0,3,2]", "quad_perm:[2,3,0,1]", "row_half_mirror"):
        for k in range(4):
            p(f"v_add_f32_dpp v{32+k}, v{32+k}, v{32+k} {ctl} row_mask:0xf bank_mask:0xf")
    for k in range(2):
        p(f"v_mul_f32 v{38+k}, {f2u(1.0/896)}, v{32+2*k}")
        p(f"v_mul_f32 v{36+k}, {f2u(-1.0/896)}, v{33+2*k}")
        p(f"v_fma_f32 v{36+k}, -v{38+k}, v{38+k}, v{36+k}")
        p(f"v_max_f32 v{36+k}, 0, v{36+k}")
        p(f"v_add_f32 v{36+k}, {f2u(1e-5)}, v{36+k}")
        p(f"v_rsq_f32 v{36+k}, v{36+k}")
        p(f"v_mul_f32 v{38+k}, -v{38+k}, v{36+k}")
    for k in range(4):
        p(f"v_mov_b32 v{40+k}, v{36+k}")
        p(f"v_mov_b32 v{44+k}, v{36+k}")
    for k in range(4):
        p(f"v_mov_b32_dpp v{40+k}, v{36+k} row_ror:8 row_mask:0xf bank_mask:0xc")
        p(f"v_mov_b32_dpp v{44+k}, v{36+k} row_ror:8 row_mask:0xf bank_mask:0x3")
    zt = ("wr", ("ZZ", 0), "private")
    for pr in range(4):
        X = ZACC + 8*pr
        for k in range(4 if pr < 3 else 2):
            c = 40 + 4*(k % 2)
            p(f"v_pk_fma_f32 {v(X+2*k,2)}, {v(X+2*k,2)}, {v(c,2)}, {v(c+2,2)}")
        Y = 24 + 4*(pr % 2)
        for k in range(4):
            sx = X + 2*k if pr < 3 else X + 2*(k % 2)
            p(f"v_cvt_pk_bf16_f32 v{Y+k}, v{sx}, v{sx+1}")
        p(f"v_permlane16_swap_b32 v{Y}, v{Y+2}")
        p(f"v_permlane16_swap_b32 v{Y+1}, v{Y+3}")
        p(f"buffer_store_dwordx4 {v(Y,4)}, v{10 if pr < 3 else 11}, {W4}, s{38 + pr//2} offen offset:{(pr % 2)*2048} sc1", tag=zt)
    if opts.get("zst"): stamp(p, 9)
    p("s_barrier")
    gp = Prog("tmp")
    gelu_pairs(gp, [Z1ACC + 2*k for k in range(14)], 96)
    for k in range(14):
        gp(f"v_cvt_pk_bf16_f32 v{Z1+k}, v{Z1ACC+2*k}, v{Z1ACC+2*k+1}")
    NB1 = opts.get("nb1", 4)
    interleave(gp.items, groups([bdma(dd, hf, first=True) for dd in range(NBZ, NB1) for hf in range(2)]))
    signal(p, SRD_W, 14, S_W, "g" + name, vt=48, keys=[("ZZ", 0)])
    stamp(p, 10)
    RA = 5; A_A = 0; A_BR = 144
    p("s_load_dwordx2 s[4:5], s[0:1], 64")
    p("s_load_dwordx2 s[6:7], s[0:1], 96")
    p.extend(flat([bdma(dd, hf, first=True) for dd in range(NB1, 5) for hf in range(2)]))
    p(f"""
    v_lshrrev_b32 v9, 1, v3
    v_xor_b32 v9, v9, v8
    v_lshlrev_b32 v9, 4, v9
    v_lshl_add_u32 v9, v3, 7, v9
    v_add_u32 v{VRB}, s53, v9
    v_xor_b32 v{VRB+1}, 64, v{VRB}
    v_add_u32 v{VRB+2}, 0x10000, v{VRB}
    v_add_u32 v{VRB+3}, 0x10000, v{VRB+1}
    v_add_u32 v{VRB+4}, 0x20000, v{VRB}
    v_add_u32 v{VRB+5}, 0x20000, v{VRB+1}
    s_lshl_b32 s35, s58, 5
    v_lshlrev_b32 v12, 1, v3
    v_mov_b32 v49, 0
    s_waitcnt lgkmcnt(0)
    """)
    srd(p, SRD_K, 4, 5, 4096)
    srd(p, SRD_O, 8, 9, 896 * 896)
    srd(p, SRD_Q, 6, 7, 2048 * 896)
    p(f"buffer_load_ushort v{Z1+14}, v12, {s(SRD_K,4)}, s35 offen")
    p(f"""
    s_lshl_b32 s33, {s(S_J)}, 2
    s_and_b32 s32, {s(S_PB)}, 3
    s_add_u32 s33, s33, s32              ; tb'
    s_lshr_b32 s32, {s(S_PB)}, 2         ; cb
    v_lshrrev_b32 v54, 3, v1
    v_mul_u32_u24 v54, 896, v54
    v_lshlrev_b32 v55, 1, v8
    v_and_b32 v50, 7, v0
    v_xor_b32 v55, v55, v50
    v_lshl_add_u32 v50, v55, 4, v54
    v_add_u32 v51, {7168-1024}, v50
    v_add_u32 v52, {2*(7168-1024)}, v50
    v_add_u32 v53, {3*(7168-1024)}, v50
    s_mul_i32 s59, {s(S_W)}, {224*896}
    s_lshl_b32 s57, s32, 7
    s_add_u32 s59, s59, s57
    """)
    WOFFS = [98304, 102400, 131072, 135168, 0, 4096, 32768]
    def wdma(ks):
        tg = ("dma", [(f"W{ks}", 0), (f"B{3 + ks // 2}", 90)], "private") if ks < 4 else ("dma", [(f"W{ks}", 0), ("X", 1)])
        return ([I(f"s_add_u32 m0, s53, {WOFFS[ks]}")],
                [I(f"buffer_load_dwordx4 v{50+k}, {s(SRD_O,4)}, s59 offen offset:{k*1024} lds", tag=tg) for k in range(4)],
                [I(f"s_add_u32 s59, s59, {4*7168}")])
    def breg(ks, nl):
        return a(A_BR + 16*ks + 4*nl, 4) if ks < 6 else v(VB + 16*(ks % 2) + 4*nl, 4)
    def b_reads(ks):
        dd = ks // 2
        sl = BSL[dd % 5]
        return [I(f"ds_read_b128 {breg(ks, nl)}, v{VRB + 2*(sl//2) + ks % 2} offset:{(sl % 2)*32768 + nl*2048}",
                  tag=("rd", (f"B{dd % 5}", dd), "private")) for nl in range(4)]
    NB2 = opts.get("nb2", 8)
    for dd in range(3):
        p(I("WAITTAG", tag=[(f"B{dd}", dd)]))
        p.extend(b_reads(2*dd) + b_reads(2*dd + 1))
    for dd in range(5, NB2):
        p(I("WAITTAG", tag=[("rd", f"B{dd % 5}", dd - 5)]))
        p.extend(flat([bdma(dd, hf) for hf in range(2)]))
    poll(p, SRD_W, 15, 49, 48, "g" + name, 56, 8)
    stamp(p, 11)
    def aload(ks):
        out = [I(f"buffer_load_dwordx4 {a(A_A + 28*(ks % RA) + 4*mt, 4)}, v2, {W4}, s{54 + mt//4} offen offset:{(mt % 4)*1024}{LD}")
               for mt in range(7)]
        post = [I("s_add_u32 s54, s54, 7168"), I("s_add_u32 s55, s55, 7168")]
        return out, post
    NA0 = opts.get("na0", 3)
    for ks in range(NA0):
        o, post = aload(ks); p.extend(o); p.extend(post)
    nexta = NA0
    nextb = 2 * NB2
    for ks in range(16):
        SC = [[] for _ in range(29)]
        VE = [[] for _ in range(28)]
        kind = ["m"] * 28
        vm = []
        while nexta < 16 and nexta <= ks + RA - 1 and len(vm) < (8 if ks == 0 else 1):
            o, post = aload(nexta); nexta += 1
            vm.extend([([], x, post if k == 6 else []) for k, x in enumerate(o)])
        if ks >= 2 and nextb < 16:
            pre, o, post = bdma(nextb // 2, nextb % 2); nextb += 1
            vm.extend([(pre if k == 0 else [], x, post if k == 3 else []) for k, x in enumerate(o)])
        if ks in (12, 13):
            for kk in (2*(ks-12), 2*(ks-12)+1):
                pre, o, post = wdma(kk)
                vm.extend([(pre if k == 0 else [], x, post if k == 3 else []) for k, x in enumerate(o)])
        for k, (pre, x, post) in enumerate(vm):
            g = 2 * k if len(vm) > 9 else 1 + 3 * k
            kind[g] = "d"; VE[g] = [x]
            if pre: SC[g - 1] += pre
            SC[g + 1] += post
        mg = [g for g in range(28) if kind[g] == "m"]
        if 6 <= ks + 1 < 16:
            if (ks + 1) % 2 == 0:
                SC[mg[0]].insert(0, I("WAITTAG", tag=[(f"B{((ks+1)//2) % 5}", (ks+1)//2)]))
            for k, x in enumerate(b_reads(ks + 1)):
                VE[mg[k + 1]].append(x)
        for mt in range(1, 8):
            if mt == 7 and ks == 15: continue
            g = 4*mt - 1
            while kind[g] != "m": g -= 1
            k2, m2 = (ks, mt) if mt < 7 else (ks + 1, 0)
            ex = "".join(", " + breg(ks + 1, nl) for nl in range(4)) if mt == 7 else ""
            SC[g].append(I(f"WAITFOR {a(A_A + 28*(k2 % RA) + 4*m2, 4)}{ex}"))
        for g in range(28):
            mt, nl = g // 4, g % 4
            D = v(GACC + 16*mt + 4*nl, 4)
            p(f"v_mfma_f32_16x16x32_bf16 {D}, {a(A_A + 28*(ks % RA) + 4*mt, 4)}, {breg(ks, nl)}, {D if ks else 0}")
            for x in SC[g] + VE[g]:
                p(x)
            if ks == 15:
                if g == 0:
                    p("v_add_u32 v4, s53, v2")
                    p("v_add_u32 v13, 0x10000, v4")
                g2 = g - 8
                if g2 >= 0 and g2 % 4:
                    p(f"ds_write_b128 v{13 if g2 % 4 == 3 else 4}, {v(GACC + 16*(g2//4) + 4*(g2 % 4), 4)} offset:{((g2 % 4 - 1) % 2)*32768 + (g2//4)*1024}", tag=("wr", ("X", 0)))
        assert not SC[28]
    assert nexta == 16 and nextb == 16
    stamp(p, 12)
    for nl in range(1, 4):
        p(f"s_sub_u32 s34, {s(S_W)}, {nl}")
        p(f"s_and_b32 s34, s34, 3")
        p(f"s_lshl_b32 s34, s34, 13")
        p(f"s_add_u32 s34, s34, {(nl-1)*32768}")
        p(f"v_add_u32 v{4+nl}, s34, v2")
    for mt in range(5, 7):
        for nl in range(1, 4):
            p(f"ds_write_b128 v{13 if nl == 3 else 4}, {v(GACC + 16*mt + 4*nl, 4)} offset:{((nl-1) % 2)*32768 + mt*1024}", tag=("wr", ("X", 0)))
    p("s_waitcnt lgkmcnt(0)")
    p("s_barrier")
    for mt in range(7):
        for nl in range(1, 4):
            p(f"ds_read_b128 {v(GACC + 16*mt + 4*nl, 4)}, v{4+nl} offset:{mt*1024}", tag=("rd", ("X", 0)))
    p(f"""
    s_mul_i32 s34, s58, {28*1024}
    s_add_u32 s34, s34, {WS_U}
    s_mul_i32 s35, s50, 7
    s_add_u32 s36, s35, 1
    s_lshr_b32 s36, s36, 1
    s_lshl_b32 s36, s36, 10
    s_add_u32 s36, s36, s34
    s_and_b32 s37, s50, 1
    s_mul_i32 s37, s37, {4096 - 512}
    s_sub_u32 s37, s36, s37
    s_add_u32 s37, s37, 3072
    v_lshlrev_b32 v14, 3, v1
    v_lshlrev_b32 v{Z1+14}, 16, v{Z1+14}
    """)
    def red(mt, n=2):
        X = GACC + 16*mt
        for h in range(n):
            p(f"v_pk_add_f32 {v(X+2*h,2)}, {v(X+2*h,2)}, {v(X+4+2*h,2)}")
            p(f"v_pk_add_f32 {v(X+8+2*h,2)}, {v(X+8+2*h,2)}, {v(X+12+2*h,2)}")
        for h in range(n):
            p(f"v_pk_add_f32 {v(X+2*h,2)}, {v(X+2*h,2)}, {v(X+8+2*h,2)}")
    p(f"v_mov_b32 v8, v{Z1+14}")
    for ft in range(7):
        red(ft)
        X = GACC + 16*ft
        for h in range(2):
            p(f"v_pk_add_f32 {v(X+2*h,2)}, {v(X+2*h,2)}, v[8:9] op_sel_hi:[1,0]")
            p(f"v_lshlrev_b32 v{10+2*h}, 16, v{Z1+2*ft+h}")
            p(f"v_and_b32 v{11+2*h}, 0xffff0000, v{Z1+2*ft+h}")
            p(f"v_pk_mul_f32 {v(X+2*h,2)}, {v(X+2*h,2)}, {v(10+2*h,2)}")
        Y = GACC + 16*(ft & ~1) + 4 + 2*(ft % 2)
        p(f"v_cvt_pk_bf16_f32 v{Y}, v{X}, v{X+1}")
        p(f"v_cvt_pk_bf16_f32 v{Y+1}, v{X+2}, v{X+3}")
        if ft % 2 == 1:
            p(f"buffer_store_dwordx4 {v(Y-2,4)}, v2, {W4}, s36 offen offset:{(ft//2)*1024} sc1", tag=("wr", ("U", 0), "private"))
        if ft == 6:
            p(f"buffer_store_dwordx2 {v(Y,2)}, v14, {W4}, s37 offen sc1", tag=("wr", ("U", 0), "private"))
    p("s_barrier")
    OACC = 64; A_B = 0; A_FO = 112; NRO = 8
    p(f"""
    v_bfe_u32 v8, v0, 4, 2
    s_lshl_b32 s14, s51, 7
    s_add_u32 s14, s14, {WS_FLAG + 12288}
    """)
    NW0 = opts.get("nw0", 5)
    for ks in range(4, NW0):
        p.extend(flat([wdma(ks)]))
    p("s_lshl_b32 s15, 1, s50")
    signal(p, SRD_W, 14, S_W, "o" + name, vt=48, keys=[("U", 0)], val="s15")
    stamp(p, 13)
    p(f"s_cmp_ge_u32 {s(S_PB)}, 28")
    p(f"s_cbranch_scc1 L_bump{name}")
    p.begin_side()
    p(f"""
    L_bump{name}:
    s_cmp_lg_u32 s2, 255
    s_cbranch_scc1 L_end{name}
    s_add_u32 s12, s100, 1
    s_add_u32 s13, s101, 1
    v_mov_b32 v4, s12
    v_mov_b32 v5, s13
    v_mov_b32 v6, {WS_EP}
    buffer_store_dwordx2 v[4:5], v6, {W4}, 0 offen sc1
    s_endpgm
    """)
    p.end_side()
    for ks in range(NW0, 7):
        p.extend(flat([wdma(ks)]))
    X1 = 16; GB = 24
    for nl in range(4):
        p(f"s_add_u32 s36, {s(S_W)}, {nl}")
        p(f"s_and_b32 s36, s36, 3")
        p(f"s_lshl_b32 s37, s33, 2")
        p(f"s_add_u32 s36, s36, s37")
        p(f"s_mul_i32 s36, s36, {28*1024}")
        p(f"s_mul_i32 s37, {s(S_W)}, 7168")
        p(f"s_add_u32 s36, s36, s37")
        p(f"s_add_u32 s{4+nl}, s36, {WS_U}")
        p(f"s_add_u32 s{8+nl}, s{4+nl}, 4096")
    p(f"""
    s_lshl_b32 s36, s33, 2
    s_add_u32 s36, s36, {s(S_W)}
    s_mul_i32 s37, s36, {14*1024}
    s_lshl_b32 s38, s32, 11
    s_add_u32 s37, s37, s38
    s_add_u32 s37, s37, {WS_X1}
    buffer_load_dwordx4 {v(X1,4)}, v2, {W4}, s37 offen sc1
    buffer_load_dwordx4 {v(X1+4,4)}, v2, {W4}, s37 offen offset:1024 sc1
    v_lshlrev_b32 v9, 4, v8
    s_lshl_b32 s38, s32, 8
    s_add_u32 s38, s38, {WS_MOD + 5*1792}
    """)
    for ct in range(4):
        p(f"buffer_load_dwordx4 {v(GB+4*ct,4)}, v9, {W4}, s38 offen offset:{64*ct} sc1")
    p(f"""
    v_lshrrev_b32 v3, 2, v1
    v_lshlrev_b32 v3, 7, v3
    v_bfe_u32 v10, v0, 3, 2
    v_lshl_add_u32 v3, v10, 5, v3
    v_and_b32 v10, 3, v0
    v_lshl_add_u32 v3, v10, 3, v3
    v_add_u32 v12, s53, v3
    v_xor_b32 v13, 32, v12
    v_xor_b32 v14, 64, v12
    v_xor_b32 v15, 0x60, v12
    v_add_u32 v56, 98304, v12
    v_add_u32 v57, 98304, v13
    v_add_u32 v58, 98304, v14
    v_add_u32 v59, 98304, v15
    v_mov_b32 v10, 0
    v_lshlrev_b32 v11, 3, v1
    s_lshl_b32 s15, s33, 7
    s_add_u32 s15, s15, {WS_FLAG + 12288}
    """)
    p(f"s_lshl_b32 s36, {s(S_W)}, 1")
    p("s_lshl_b32 s36, 3, s36")
    poll(p, SRD_W, 15, 10, 48, "o" + name, 56, "s36", mask="s36")
    stamp(p, 14)
    ul = [I(f"buffer_load_dwordx4 {a(A_B + 16*ks + 4*nl, 4)}, v2, {W4}, s{4 + nl + 4*(ks//4)} offen offset:{(ks % 4)*1024}{LD}")
          for ks in range(7) for nl in range(4)]
    ul[12:16] = [I(f"buffer_load_dwordx2 {a(A_B + 48 + 4*nl + 2*h, 2)}, v11, {W4}, s{4 + nl} offen offset:{3072 + 512*h}{LD}")
                 for nl in range(4) for h in range(2)]
    p.extend(ul[:20]); ul = ul[20:]
    def rd(f):
        ks, ct = f // 4, f % 4
        return [I(f"ds_read_b64_tr_b16 {a(A_FO + 4*(f % NRO) + 2*e, 2)}, v{(56 if ks < 4 else 12)+ct} offset:{WOFFS[ks] - (98304 if ks < 4 else 0) + e*2048}",
                  tag=("rd", (f"W{ks}", 0), "private")) for e in range(2)]
    PFO = 4
    YO = [0, 0, 4096, 32768]
    for f in range(PFO):
        p.extend(rd(f))
    for f in range(28):
        ks, ct = f // 4, f % 4
        nx = f + PFO
        for nl in range(4):
            D = v(OACC + 16*ct + 4*nl, 4)
            p(f"v_mfma_f32_16x16x32_bf16 {D}, {a(A_FO + 4*(f % NRO), 4)}, {a(A_B + 16*ks + 4*nl, 4)}, {D if ks else 0}")
            if nx < 28 and nl < 2:
                p(rd(nx)[nl])
            if nl == 2 and ul:
                p(ul.pop(0))
            if nl == 3 and f + 1 < 28:
                p(f"WAITFOR {a(A_FO + 4*((f+1) % NRO), 4)}, {a(A_B + 16*((f+1)//4), 16)}")
            if f == 20 and nl == 2:
                p("v_add_u32 v4, s53, v2")
                p("v_add_u32 v4, 98304, v4")
            if f >= 26 and nl:
                p(f"ds_write_b128 v4, {v(OACC + 16*(f-26) + 4*nl, 4)} offset:{YO[nl] + (f-26)*1024}", tag=("wr", ("Y", 0)))
    for nl in range(1, 4):
        p(f"s_sub_u32 s36, {s(S_W)}, {nl}")
        p(f"s_and_b32 s36, s36, 3")
        p(f"s_lshl_b32 s36, s36, 13")
        p(f"s_add_u32 s36, s36, 98304")
        p(f"v_add_u32 v{4+nl}, s36, v2")
    for ct in range(2, 4):
        for nl in range(1, 4):
            p(f"ds_write_b128 v4, {v(OACC + 16*ct + 4*nl, 4)} offset:{YO[nl] + ct*1024}", tag=("wr", ("Y", 0)))
    p("s_waitcnt lgkmcnt(0)")
    p("s_barrier")
    for ct in range(4):
        for nl in range(1, 4):
            p(f"ds_read_b128 {v(OACC + 16*ct + 4*nl, 4)}, v{4+nl} offset:{YO[nl] + ct*1024}", tag=("rd", ("Y", 0)))
    p(f"""
    v_and_b32 v3, 15, v0
    v_mul_u32_u24 v3, 896, v3
    v_lshl_add_u32 v3, v8, 4, v3
    s_lshl_b32 s36, s33, 2
    s_add_u32 s36, s36, {s(S_W)}
    s_mul_i32 s36, s36, {16*896}
    s_lshl_b32 s37, s32, 7
    s_add_u32 s36, s36, s37
    """)
    for ct in range(4):
        X = OACC + 16*ct
        for h in range(2):
            p(f"v_pk_add_f32 {v(X+2*h,2)}, {v(X+2*h,2)}, {v(X+4+2*h,2)}")
            p(f"v_pk_add_f32 {v(X+8+2*h,2)}, {v(X+8+2*h,2)}, {v(X+12+2*h,2)}")
        for h in range(2):
            p(f"v_pk_add_f32 {v(X+2*h,2)}, {v(X+2*h,2)}, {v(X+8+2*h,2)}")
            p(f"v_lshlrev_b32 v{10}, 16, v{X1+2*ct+h}")
            p(f"v_and_b32 v{11}, 0xffff0000, v{X1+2*ct+h}")
            p(f"v_pk_fma_f32 {v(X+2*h,2)}, {v(X+2*h,2)}, {v(GB+4*ct+2*h,2)}, v[10:11]")
        k, odd = ct // 2, ct % 2
        O = 40 + 4*k + 2*odd
        p(f"v_cvt_pk_bf16_f32 v{O}, v{X}, v{X+1}")
        p(f"v_cvt_pk_bf16_f32 v{O+1}, v{X+2}, v{X+3}")
        if odd:
            O = 40 + 4*k
            p(f"v_permlane32_swap_b32 v{O}, v{O+2}")
            p(f"v_permlane32_swap_b32 v{O+1}, v{O+3}")
            p(f"v_permlane16_swap_b32 v{O}, v{O+2}")
            p(f"v_permlane16_swap_b32 v{O+1}, v{O+3}")
            p(f"buffer_store_dwordx4 {v(O,4)}, v3, {s(SRD_Q,4)}, s36 offen offset:{64*k}{opts.get('of', '')}")
    k_prep.STAMP["on"] = son
    if opts.get("amp"):
        a0, a1, mul = opts["amp"]
        p("s_waitcnt vmcnt(0)")
        stamp(p, 15)
        p(f"""
        s_sub_u32 s14, s{61+2*a1}, s{61+2*a0}
        s_mul_i32 s14, s14, {mul}
        L_amp{name}:
        s_memrealtime s[98:99]
        s_waitcnt lgkmcnt(0)
        s_sub_u32 s15, s98, s91
        s_cmp_lt_u32 s15, s14
        s_cbranch_scc1 L_amp{name}
        """)
        k_prep.STAMP["on"] = False
    if opts.get("diag"):
        p("s_waitcnt vmcnt(0)")
        stamp(p, 15)
        p("v_mov_b32 v1, 0")
        p("s_mov_b64 exec, 1")
        p("s_not_b32 s14, s61")
        p("v_mov_b32 v2, s14")
        p(f"buffer_atomic_umax v2, v1, {s(SRD_D,4)}, 0 offen offset:8 sc1")
        for k, st in enumerate((1, 2, 3, 4, 5, 7, 10, 11, 12, 13, 15)):
            p(f"v_mov_b32 v3, s{61+2*st}")
            p(f"buffer_atomic_umax v3, v1, {s(SRD_D,4)}, 0 offen offset:{12+4*k} sc1")
            p("s_nop 1")
        p("s_mov_b64 exec, -1")
        k_prep.STAMP["on"] = False
    stamp_dump(p, opts.get("slot", 1), NSTAMP, SRD_W, S_W)
    p(f"L_end{name}:")
    p("s_endpgm")
    if opts.get("gabl") or opts.get("oabl"):
        p.check_lds = lambda: None
    p.finalize()
    return p


def gen_mega(opts=None):
    p0 = build_mega(opts or {})
    if (opts or {}).get("plain"):
        return p0, "; @launch grid=(256,1,1) block=(256,1,1) lds=163840\n"
    return p0, f"; @launch kernel={p0.name} grid=(256,1,1) block=(256,1,1) lds=163840\n"
```

```python
import sys
sys.path.insert(0, "work")
from k_attn import *
from k_z import gelu_pairs, C1, C2
from k_prep import LOG2E, QSCALE, xreduce
from k_red import emit_red_early
NSTAMP = 16

def build_mega(opts):
    opts = opts or {}
    name = opts.get("name", "adaLN_cond__gqa_block_cached__mixer_gmlp__prompt_kernel")
    p = Prog(name)
    at = Attn(opts)
    LD = opts.get("ld", " sc1")
    thr = opts.get("thr", 0x5f800000)
    SRD_D = 92
    if opts.get("t0"):
        x = I("s_memrealtime s[88:89]"); x.kind = "salu"; p(x)
    p(f"""
    s_cmp_ge_u32 s2, 256
    s_cbranch_scc1 L_end{name}
    s_load_dwordx4 s[52:55], s[0:1], 80
    s_load_dwordx2 s[50:51], s[0:1], 0
    s_load_dwordx8 s[4:11], s[0:1], 8
    s_load_dwordx4 s[56:59], s[0:1], 104
    v_lshrrev_b32 v1, 6, v0
    v_readfirstlane_b32 {s(S_W)}, v1
    s_and_b32 {s(S_J)}, s2, 7
    s_lshr_b32 {s(S_PB)}, s2, 3
    v_and_b32 v1, 63, v0
    v_lshlrev_b32 {v(V_LIN)}, 4, v1
    s_lshr_b32 {s(S_HD)}, {s(S_W)}, 1
    s_and_b32 s14, {s(S_W)}, 1
    s_lshl_b32 {s(S_QT)}, {s(S_PB)}, 2
    s_lshl_b32 s14, s14, 1
    s_add_u32 {s(S_QT)}, {s(S_QT)}, s14
    v_mov_b32 v2, 0x40000000
    v_cmp_gt_u32 vcc, 56, v1
    v_cndmask_b32 v19, v2, {v(V_LIN)}, vcc
    v_add_u32 v18, 144, v19
    v_add_u32 v17, 288, v19
    v_add_u32 v16, 432, v19
    s_lshl_b32 s14, {s(S_PB)}, 2
    s_add_u32 s14, s14, {s(S_W)}
    s_mul_i32 s14, s14, {16*896}            ; x soffset
    s_mul_i32 s15, {s(S_W)}, {SLOT}
    s_add_u32 s15, s15, {4*SLOT}
    s_waitcnt lgkmcnt(0)
    """)
    stamp(p, 0)
    if opts.get("t0"): p("s_mov_b32 s3, s88")
    ep = I(f"s_load_dwordx2 s[100:101], s[58:59], {WS_EP}"); ep.kind = "salu"
    p(ep)
    srd(p, SRD_W, 58, 59, WS_USED)
    srd(p, SRD_D, 56, 57, 256)
    srd(p, SRD_V, 54, 55, 448 * 5376)
    srd(p, SRD_O, 52, 53, 896)
    srd(p, SRD_K, 50, 51, 2048 * 896 + 432)
    p(f"""
    s_sub_u32 {s(SRD_K)}, {s(SRD_K)}, 432
    s_subb_u32 {s(SRD_K+1)}, {s(SRD_K+1)}, 0
    s_mov_b32 s31, 0
    v_and_b32 v127, 31, v0
    v_lshlrev_b32 v125, 3, v127
    s_mov_b32 s32, 0x40000000
    s_mov_b32 s33, 0x40000000
    """)
    MW = 72; CR = 100; MC = 20; MA = 36; MT = 44
    def raw(txt):
        x = I(txt); x.kind = "salu"; x.writes = []; return x
    p(f"""
    v_and_b32 v{MT}, 3, v0
    v_lshrrev_b32 v{MT+1}, 2, v0
    v_mul_u32_u24 v{MT+2}, 14, v{MT+1}
    v_mul_u32_u24 v{MT+3}, {7*5376}, v{MT+1}
    v_lshl_add_u32 v{MT+3}, v{MT}, 4, v{MT+3}
    s_lshl_b32 s12, s2, 6
    v_and_b32 v{MT+2}, -4, v{MT+2}
    s_cmp_ge_u32 s2, 28
    s_cbranch_scc1 L_mod1r{name}
    """)
    def wloads(f):
        for i in range(7):
            p(f(f"buffer_load_dwordx4 {v(MW+4*i,4)}, v{MT+3}, {s(SRD_V,4)}, s12 offen"))
            if i < 6:
                p(f"s_add_u32 s12, s12, 5376")
        p(f(f"buffer_load_dwordx4 {v(CR,4)}, v{MT+2}, {s(SRD_O,4)}, 0 offen"))
    wloads(raw)
    p(f"L_mod1r{name}:")
    XK = [(4, -1), (5, -1), (6, -1), (7, -1)]
    NX0 = opts.get("nx0", 16)
    def xdma(ms):
        for m in ms:
            if m % 4 == 0:
                p(f"s_add_u32 m0, s15, {m*1040}")
            p(f"buffer_load_dwordx4 v{16 + m % 4}, {s(SRD_K,4)}, s14 offen offset:{(m % 4)*1040} lds", tag=("dma", XK))
            if m % 4 == 3:
                p(f"s_add_u32 s14, s14, {4*896}")
    xdma(range(NX0))
    def modblock(urgent, MW=MW, CR=CR, MC=MC, MA=MA, MT=MT, MS=MT+8, scr=MODL+4096, pre=()):
        tg = ("u" if urgent else "n") + name
        st_ = opts.get("pst") and urgent
        if urgent:
            p("s_cmp_ge_u32 s2, 28")
        else:
            p("s_cmp_ge_u32 s58, 56")
        p(f"s_cbranch_scc1 L_mod2r{tg}")
        p.extend(pre)
        p(f"s_mov_b32 s13, {f2u(-LOG2E)}")
        p(f"v_bfe_u32 v{MT+1}, v0, 2, 1")
        p(f"v_lshlrev_b32 v{MT+1}, 4, v{MT+1}")
        if st_: stamp(p, 5)
        if urgent:
            p(raw(f"s_waitcnt vmcnt({NX0 + NYG})"))
        if st_: stamp(p, 6)
        for j in range(4):
            p(f"v_alignbit_b32 v{CR+j}, v{CR+min(j+1,3)}, v{CR+j}, v{MT+1}")
        for i in range(7):
            p(f"v_lshlrev_b32 v{MC+i}, 16, v{CR+i//2}" if i % 2 == 0 else f"v_and_b32 v{MC+i}, 0xffff0000, v{CR+i//2}")
        for i in range(7):
            p(f"v_mul_f32 v{MC+8+i}, s13, v{MC+i}")
        for i in range(7):
            p(f"v_exp_f32 v{MC+8+i}, v{MC+8+i}")
        for i in range(7):
            p(f"v_add_f32 v{MC+8+i}, 1.0, v{MC+8+i}")
        for i in range(7):
            p(f"v_rcp_f32 v{MC+8+i}, v{MC+8+i}")
        for i in range(7):
            p(f"v_mul_f32 v{MC+8+i}, v{MC+8+i}, v{MC+i}")
            p(f"v_cvt_pk_bf16_f32 v{MC+8+i}, v{MC+8+i}, v{MC+8+i}")
            p(f"v_lshlrev_b32 v{MS+2*i}, 16, v{MC+8+i}")
        for i in range(7):
            for d in range(4):
                w = MW + 4*i + d
                t = MC + 2 * d
                p(f"v_lshlrev_b32 v{t}, 16, v{w}")
                p(f"v_and_b32 v{t+1}, 0xffff0000, v{w}")
                if i == 0:
                    p(f"v_pk_mul_f32 {v(MA+2*d,2)}, {v(t,2)}, {v(MS,2)} op_sel_hi:[1,0]")
                else:
                    p(f"v_pk_fma_f32 {v(MA+2*d,2)}, {v(t,2)}, {v(MS+2*i,2)}, {v(MA+2*d,2)} op_sel_hi:[1,0,1]")
        for sh in (4, 8):
            for k in range(8):
                p(f"v_add_f32_dpp v{MA+k}, v{MA+k}, v{MA+k} row_ror:{sh} row_mask:0xf bank_mask:0xf")
        if st_: stamp(p, 7)
        p(f"""
        v_lshrrev_b32 v{MT+1}, 4, v0
        v_lshlrev_b32 v{MT+1}, 7, v{MT+1}
        v_and_b32 v{MT}, 3, v0
        v_lshl_add_u32 v{MT}, v{MT}, 5, v{MT+1}
        v_add_u32 v{MT}, {scr}, v{MT}
        ds_write_b128 v{MT}, {v(MA,4)}
        ds_write_b128 v{MT}, {v(MA+4,4)} offset:16
        v_lshlrev_b32 v{MT+1}, 2, v0
        v_add_u32 v{MT+1}, {scr}, v{MT+1}
        """)
        p(raw("s_waitcnt lgkmcnt(0)"))
        p(raw("s_barrier"))
        p(f"s_cmp_lg_u32 {s(S_W)}, 0")
        p(f"s_cbranch_scc1 L_mod2r{tg}")
        if st_: stamp(p, 8)
        for i in range(8):
            p(f"ds_read_b32 v{MW+i}, v{MT+1} offset:{256*i}")
        for st in (4, 2, 1):
            for i in range(st):
                p(f"v_add_f32 v{MW+i}, v{MW+i}, v{MW+i+st}")
        p(f"""
        v_mov_b32 v{MW+1}, v{MW}
        v_permlane32_swap_b32 v{MW}, v{MW+1}
        v_add_f32 v{MW}, v{MW}, v{MW+1}
        v_cvt_pk_bf16_f32 v{MW}, v{MW}, v{MW}
        v_lshlrev_b32 v{MW}, 16, v{MW}
        v_add_f32 v{MW+1}, 1.0, v{MW}
        v_cvt_pk_bf16_f32 v{MW+1}, v{MW+1}, v{MW+1}
        v_lshlrev_b32 v{MW+1}, 16, v{MW+1}
        s_sub_u32 s12, {'s2' if urgent else 's58'}, {14 if urgent else 28}
        s_cmp_lt_u32 s12, 14
        s_cselect_b64 vcc, -1, 0
        v_cndmask_b32 v{MW}, v{MW}, v{MW+1}, vcc
        """)
        if urgent:
            p(f"""
            s_add_u32 s12, s100, 1
            s_add_u32 s13, s101, 1
            s_and_b32 s13, s13, 0xffff
            v_or_b32 v{MW}, s13, v{MW}
            v_mov_b32 v{MW+1}, s12
            s_lshl_b32 s33, s2, 8
            s_add_u32 s33, s33, {WS_MG}
            L_mod2r{tg}:
            buffer_store_dwordx2 {v(MW,2)}, v125, {s(SRD_W,4)}, s33 offen sc1
            """)
        else:
            p(f"""
            s_lshl_b32 s12, s58, 7
            v_and_b32 v{MT}, 31, v0
            v_lshlrev_b32 v{MT}, 2, v{MT}
            s_mov_b32 s57, 0
            """)
            p(raw(f"buffer_store_dword v{MW}, v{MT}, {s(SRD_W,4)}, s12 offen offset:{WS_MOD + 28*128} sc1"))
            p(f"L_mod2r{tg}:")
    assert NX0 == 16
    V_MRD = 3
    p(f"s_mul_i32 {s(S_M0V)}, {s(S_W)}, 4160")
    p(f"""
    v_bfe_u32 v1, v0, 5, 1              ; hh
    v_and_b32 v2, 31, v0
    v_lshlrev_b32 {v(V_TMP)}, 1, v1
    v_xor_b32 v2, v2, {v(V_TMP)}        ; chunk
    v_lshlrev_b32 v1, 3, v1
    v_add_u32 v1, {s(S_W)}, v1          ; 8hh + w
    v_lshlrev_b32 v1, 13, v1
    v_lshl_add_u32 {v(V_WDMA)}, v2, 4, v1
    """)
    for jj in range(1, 4):
        p(f"v_add_u32 {v(V_WDMA+jj)}, {(16*(jj % 2) + 4*(jj//2))*8192 - jj*1024}, {v(V_WDMA)}")
    def emit_wfill(which, st):
        for hf in range(2):
            pre, d = at.wfill(which, st, hf)
            p.extend(pre); p.extend(d)
    p(f"""
    s_mul_i32 s52, {s(S_HD)}, 896
    s_add_u32 s52, s52, {MODL}
    v_bfe_u32 v1, v0, 2, 2
    v_mul_u32_u24 v1, 4160, v1
    v_and_b32 v2, 3, v0
    v_lshl_add_u32 v1, v2, 3, v1
    v_bfe_u32 v2, v0, 4, 2
    v_lshl_add_u32 v1, v2, 9, v1
    v_lshlrev_b32 v{V_MRD}, 5, v2
    v_add_u32 v{V_MRD}, s52, v{V_MRD}
    v_and_b32 v120, 15, v0
    v_mul_u32_u24 v120, 1040, v120
    v_lshl_add_u32 v120, v2, 4, v120
    s_and_b32 s14, {s(S_W)}, 1
    s_mul_i32 s14, s14, {2*SLOT}
    s_mul_i32 s15, {s(S_HD)}, 448
    s_add_u32 s14, s14, s15
    s_add_u32 s14, s14, {4*SLOT}
    v_add_u32 v120, s14, v120
    v_bfe_u32 v2, v0, 4, 1
    v_lshl_add_u32 {v(V_TMP)}, v2, 5, v1
    s_mul_i32 s14, {s(S_HD)}, {SLOT}
    v_add_u32 {v(V_WRD)}, s14, {v(V_TMP)}
    v_xor_b32 {v(V_WRD+1)}, 32, {v(V_WRD)}
    v_add_u32 {v(V_WRD+2)}, {4*SLOT}, {v(V_WRD)}
    v_add_u32 {v(V_WRD+3)}, {4*SLOT}, {v(V_WRD+1)}
    s_lshl_b32 s14, {s(S_W)}, 12
    s_add_u32 s14, s14, {8*SLOT}
    v_add_u32 {v(V_XW)}, s14, {v(V_LIN)}
    v_xor_b32 {v(V_XR)}, 0x2000, {v(V_XW)}
    """)
    MBP = opts.get("mbp", 0)
    NYG = [0, 2, 2 + 8 * opts.get("nearly", 1)][MBP]
    if MBP == 0: modblock(True)
    srd(p, SRD_Q, 8, 9, 448 * 8192)
    V_MRD = 3
    p(f"""
    s_mul_i32 {s(S_M0V)}, {s(S_W)}, 4160
    s_lshl_b32 {s(S_M0K)}, {s(S_W)}, 12
    s_lshl_b32 {s(S_WBASE)}, {s(S_J)}, 10
    v_lshrrev_b32 v1, 3, v0
    v_min_u32 v1, 13, v1
    v_lshlrev_b32 v1, 13, v1
    v_and_b32 v2, 7, v0
    v_lshl_add_u32 v1, v2, 7, v1
    s_mul_i32 s53, {s(S_PB)}, {14*8192}
    s_add_u32 s53, s53, {s(S_WBASE)}
    buffer_load_dword v{V_O+127}, v1, {s(SRD_Q,4)}, s53 offen
    """)
    code_prefetch(p, name, f"L_end{name}", 22, 1, V_O + 126)
    if MBP == 1: modblock(True)
    NE = opts.get("nearly", 1)
    for st in range(NE):
        emit_wfill("Q", st)
    if MBP == 2: modblock(True)
    if opts.get("pst"): stamp(p, 9)
    p(I("WAITTAG", tag=XK))
    p("s_barrier")
    for ks in range(7):
        for qt in range(2):
            p(f"ds_read_b128 {v(V_H+8*ks+4*qt,4)}, v120 offset:{qt*SLOT + 64*ks}", tag=("rd", XK))
    if NE < 1: emit_wfill("Q", 0)
    F = V_O
    SA = 112
    for k in range(56):
        qt = (k // 4) % 2
        p(f"v_lshlrev_b32 v{F+2*k}, 16, v{V_H+k}")
        p(f"v_and_b32 v{F+2*k+1}, 0xffff0000, v{V_H+k}")
        if k in (0, 4):
            p(f"v_pk_mul_f32 {v(SA+4+2*qt,2)}, {v(F+2*k,2)}, {v(F+2*k,2)}")
        else:
            p(f"v_pk_add_f32 {v(SA+2*qt,2)}, {v(F+2*k-2,2) if k in (1, 5) else v(SA+2*qt,2)}, {v(F+2*k,2)}")
            p(f"v_pk_fma_f32 {v(SA+4+2*qt,2)}, {v(F+2*k,2)}, {v(F+2*k,2)}, {v(SA+4+2*qt,2)}")
    for k in range(4):
        p(f"v_add_f32 v{SA+k}, v{SA+2*k}, v{SA+2*k+1}")
    for k in range(4):
        xreduce(p, SA + k, 121 + k, "v_add_f32")
    p(f"ds_write_b128 {v(V_XW)}, {v(SA,4)}", tag=("wr", (8, -1)))
    p("s_waitcnt lgkmcnt(0)")
    p("s_barrier")
    p(f"ds_read_b128 {v(SA+4,4)}, {v(V_XR)}", tag=("rd", (8, -1)))
    if NE < 2: emit_wfill("Q", 1)
    for qt in range(2):
        m_, r_ = 120 + 4*qt, 122 + 4*qt
        p(f"v_add_f32 v{SA+qt}, v{SA+qt}, v{SA+4+qt}")
        p(f"v_add_f32 v{SA+2+qt}, v{SA+2+qt}, v{SA+6+qt}")
        p(f"v_mul_f32 v{m_}, {f2u(1.0/448)}, v{SA+qt}")
        p(f"v_mul_f32 v{r_}, {f2u(1.0/448)}, v{SA+2+qt}")
        p(f"v_fma_f32 v{r_}, -v{m_}, v{m_}, v{r_}")
        p(f"v_max_f32 v{r_}, 0, v{r_}")
        p(f"v_add_f32 v{r_}, {f2u(1e-5)}, v{r_}")
        p(f"v_rsq_f32 v{r_}, v{r_}")
        p(f"v_mul_f32 v{m_}, -v{m_}, v{r_}")
    for k in range(56):
        qt = (k // 4) % 2
        p(f"v_pk_fma_f32 {v(F+2*k,2)}, {v(F+2*k,2)}, {v(122+4*qt,2)}, {v(120+4*qt,2)} op_sel_hi:[1,0,0]")
    NPRE = opts.get("npre", 3)
    for st in range(2, NPRE):
        emit_wfill("Q", st)
    p(f"""
    v_min_u32 v1, {55*16}, {v(V_LIN)}
    s_mul_i32 s14, {s(S_W)}, 1792
    s_add_u32 s14, s14, {WS_MG}
    s_add_u32 s12, s100, 1
    s_add_u32 s13, s101, 1
    s_and_b32 s13, s13, 0xffff
    s_mul_i32 s53, {s(S_W)}, 896
    s_add_u32 s53, s53, {MODL}
    v_lshrrev_b32 v2, 1, v1
    v_add_u32 v2, s53, v2
    s_mov_b32 s56, 0x100000
    """)
    if opts.get("pst"): stamp(p, 1)
    p(f"""
    L_mp{name}:
    buffer_load_dwordx4 v[120:123], v1, {s(SRD_W,4)}, s14 offen sc1
    buffer_load_dwordx4 v[124:127], v1, {s(SRD_W,4)}, s14 offen offset:896 sc1
    s_waitcnt vmcnt(0)
    v_xor_b32 v112, s13, v120
    v_xor_b32 v113, s13, v122
    v_xor_b32 v114, s13, v124
    v_xor_b32 v115, s13, v126
    v_or3_b32 v116, v112, v113, v114
    v_or_b32 v116, v116, v115
    v_and_b32 v116, 0xffff, v116
    v_xor_b32 v117, s12, v121
    v_xor_b32 v118, s12, v123
    v_or3_b32 v116, v116, v117, v118
    v_xor_b32 v117, s12, v125
    v_xor_b32 v118, s12, v127
    v_or3_b32 v116, v116, v117, v118
    v_cmp_ne_u32 vcc, 0, v116
    s_cbranch_vccz L_mq{name}
    s_sleep {opts.get("msleep", 2)}
    s_sub_u32 s56, s56, 1
    s_cmp_lg_u32 s56, 0
    s_cbranch_scc1 L_mp{name}
    L_mq{name}:
    """)
    if opts.get("pst"): stamp(p, 2)
    for k in range(4):
        p(f"v_mul_f32 v{112+k}, {f2u(QSCALE)}, v{112+k}")
    mt = ("wr", ("M", 0))
    p("ds_write_b64 v2, v[112:113]", tag=mt)
    p("ds_write_b64 v2, v[114:115] offset:448", tag=mt)
    for st in range(NPRE, 3):
        emit_wfill("Q", st)
    MB = 72
    def modreads(ks):
        M = MB + 16 * (ks % 3)
        rt = ("rd", ("M", 0))
        return [I(f"ds_read_b128 {v(M + 8*k + 4*h, 4)}, v{V_MRD} offset:{1792*(1-k) + 128*ks + 16*h}", tag=rt)
                for k in range(2) for h in range(2)]
    NUP = 7
    p(I("WAITTAG", tag=[("M", 0)]))
    p("s_barrier")
    p.extend(modreads(0)); p.extend(modreads(1)); p.extend(modreads(2))
    for ks in range(7):
        M = MB + 16 * (ks % 3)
        for k in range(8*ks, 8*ks + 8):
            d = k % 4
            p(f"v_pk_fma_f32 {v(F+2*k,2)}, {v(F+2*k,2)}, {v(M+2*d,2)}, {v(M+8+2*d,2)}")
            p(f"v_cvt_pk_bf16_f32 v{V_H+k}, v{F+2*k}, v{F+2*k+1}")
        if ks + 3 < 7:
            p.extend(modreads(ks + 3))
    stamp(p, 3 if opts.get("pst") else 1)
    srd(p, SRD_O, 10, 11, 4096 * 896)
    p(f"""
    s_lshl_b32 s14, {s(S_J)}, 20
    s_add_u32 {s(SRD_K)}, s4, s14
    s_addc_u32 {s(SRD_K+1)}, s5, 0
    s_mov_b32 {s(SRD_K+2)}, 0x100000
    s_mov_b32 {s(SRD_K+3)}, 0x20000
    s_add_u32 {s(SRD_V)}, s6, s14
    s_addc_u32 {s(SRD_V+1)}, s7, 0
    s_mov_b32 {s(SRD_V+2)}, 0x100000
    s_mov_b32 {s(SRD_V+3)}, 0x20000
    s_mov_b32 {s(S_KOFF)}, 0
    s_mov_b32 {s(S_VOFF)}, 0
    s_mov_b32 {s(S_THR)}, {thr}
    s_lshl_b32 s15, {s(S_W)}, 3
    """)
    setup = f"""
    v_bfe_u32 v1, v0, 5, 1
    v_and_b32 v2, 31, v0
    v_add_u32 v16, s15, v1
    v_lshlrev_b32 v17, 9, v16
    v_and_b32 v16, 15, v16
    v_xor_b32 v16, v16, v2
    v_lshl_add_u32 {v(V_KDMA)}, v16, 4, v17
    v_xor_b32 {v(V_KDMA+1)}, 32, {v(V_KDMA)}
    v_xor_b32 {v(V_KDMA+2)}, 64, {v(V_KDMA)}
    v_xor_b32 {v(V_KDMA+3)}, 96, {v(V_KDMA)}
    v_lshlrev_b32 v16, 2, v1
    v_add_u32 v16, {s(S_W)}, v16
    v_lshlrev_b32 v16, 9, v16
    v_lshlrev_b32 v17, 1, v1
    v_xor_b32 v17, v17, v2
    v_lshl_add_u32 {v(V_VDMA)}, v17, 4, v16
    v_add_u32 {v(V_VDMA+1)}, 3072, {v(V_VDMA)}
    v_add_u32 {v(V_VDMA+2)}, 6144, {v(V_VDMA)}
    v_add_u32 {v(V_VDMA+3)}, 9216, {v(V_VDMA)}
    v_and_b32 v16, 15, v0
    v_bfe_u32 v17, v0, 4, 2
    v_xor_b32 v17, v17, v16
    v_lshlrev_b32 v16, 9, v16
    v_add_u32 v16, {4*SLOT}, v16
    v_lshl_add_u32 {v(V_KRD)}, v17, 4, v16
    v_xor_b32 {v(V_KRD+1)}, 64, {v(V_KRD)}
    v_xor_b32 {v(V_KRD+2)}, 0x80, {v(V_KRD)}
    v_xor_b32 {v(V_KRD+3)}, 0xc0, {v(V_KRD)}
    v_mov_b32 {v(V_VRD)}, {v(V_TMP)}
    v_xor_b32 {v(V_VRD+1)}, 32, {v(V_TMP)}
    v_mov_b32 {v(V_L)}, 0
    v_mov_b32 {v(V_L+1)}, 0
    """
    setup = [I(x.strip()) for x in setup.strip().split("\n")]
    WRA = 21; WRB = 88
    p(f"""
    s_movk_i32 s31, 0x493
    s_and_b32 s12, {s(S_W)}, 1
    s_mul_i32 s13, {s(S_W)}, 7
    """)
    setup.append(I("v_and_b32 v1, 63, v0"))
    for m in range(7):
        setup += [I(f"v_add_u32 v16, {64*m}, v1"), I("v_mul_u32_u24 v16, s31, v16"), I("v_bfe_u32 v16, v16, 17, 2"),
                  I("v_lshlrev_b32 v16, 5, v16"), I(f"v_xor_b32 v{at.WDR[m]}, v16, {v(V_LIN)}")]
    setup += [I("v_lshrrev_b32 v16, 2, v1"), I("v_mul_u32_u24 v16, 896, v16"), I("v_and_b32 v17, 3, v0"),
              I("v_lshl_add_u32 v16, v17, 3, v16"), I("v_bfe_u32 v17, v0, 3, 2")]
    for mt in range(7):
        if mt < 6:
            p(f"s_add_u32 s{52+mt}, s13, s12")
            p(f"s_add_u32 s{52+mt}, s{52+mt}, {mt}")
        else:
            p(f"s_mul_i32 s58, s12, 6")
            p(f"s_sub_u32 s58, s13, s58")
            p(f"s_add_u32 s58, s58, 6")
        setup += [I(f"v_xor_b32 v18, s{52+mt}, v17"), I(f"v_lshl_add_u32 v{WRB+mt}, v18, 5, v16"),
                  I(f"v_add_u32 v{WRA+mt}, {4*SLOT}, v{WRB+mt}")]
    assert (4 * SLOT) % 256 == 0
    def q_mfma(i, t, qt, fr):
        D = v(V_O + 8*t + 4*qt, 4)
        Bop = v(V_H + 8*i + 4*qt, 4) if i < 7 else a(A_HP + 8*(i-7) + 4*qt, 4)
        return f"v_mfma_f32_16x16x32_bf16 {D}, {fr}, {Bop}, {D if i else 0}"
    def q_fills(i):
        st = i + 3
        if i == 0 and NPRE == 4: return []
        if st < 14:
            return [at.wfill("Q", st, hf) + ([],) for hf in range(2)]
        if i == 11: return [at.kvfill("K", 0), at.kvfill("K", 1)]
        if i == 12: return [at.kvfill("K", 2)]
        return [at.kvfill("V", 0), at.kvfill("V", 1, range(at.nafter))]
    def q_bar(i):
        ks = at.wkeys("Q", i + 1) if i < 13 else [at.key("K", 0)]
        i -= 1
        if 0 <= i < 8:
            ks = ks + [(8, i // 2)] if i % 2 == 0 else ks + [("rd", 8, i // 2)]
        return ks
    def q_valu(i):
        out = []
        if i in (8, 9, 10):
            n = 33
            out += setup[(i-8)*n//3:(i-7)*n//3]
        if i in (11, 12, 13):
            n = len(setup) - 33
            out += setup[33+(i-11)*n//3:33+(i-10)*n//3]
        return out
    def q_xds(i):
        out = []
        i -= 1
        if 0 <= i < 8:
            rho = i // 2
            for k in range(4):
                u, qt = 2*rho + k // 2, k % 2
                if u >= 7: continue
                if i % 2 == 0:
                    out.append(I(f"ds_write_b128 {v(V_XW)}, {v(V_H + 8*u + 4*qt, 4)} offset:{1024*k}", tag=("wr", (8, rho))))
                else:
                    out.append(I(f"ds_read_b128 {a(A_HP + 8*u + 4*qt, 4)}, {v(V_XR)} offset:{1024*k}", tag=("rd", (8, rho))))
        return out
    at.gemm_phase(p, "Q", 14, 16, q_mfma, q_fills, q_bar, q_valu, q_xds)
    p("s_load_dwordx4 s[4:7], s[0:1], 48")
    p("s_load_dwordx2 s[8:9], s[0:1], 72")
    p("s_load_dwordx2 s[10:11], s[0:1], 0")
    p("s_load_dwordx2 s[54:55], s[0:1], 80")
    p("s_load_dwordx2 s[56:57], s[0:1], 88")
    p("s_waitcnt lgkmcnt(0)")
    srd(p, SRD_Q, 4, 5, 448 * 3584)
    for g in range(at.gB + 1, 64):
        for (f, e, nx) in at.ds.get(g, []):
            p(at.kread(lambda it: 0, 0, f))
    p(f"""
    s_mul_i32 s53, {s(S_J)}, {512*896}
    s_mul_i32 s59, {s(S_W)}, 7168
    s_add_u32 {s(S_WBASE)}, s53, s59
    """)
    assert (8 * SLOT) & 0x3fff == (8 * SLOT) % 16384 and ((8 * SLOT) % 16384) + 4096 <= 8192
    AW = 184
    p(f"""
    s_sub_u32 s13, s2, 40
    s_lshl_b32 s13, s13, 12
    s_add_u32 s13, s13, {WS_FLAG}
    v_lshlrev_b32 v1, 4, v0
    v_mov_b32 v4, 0
    v_mov_b32 v5, 0
    v_mov_b32 v6, 0
    v_mov_b32 v7, 0
    s_sub_u32 s12, s2, 40
    s_cmp_ge_u32 s12, 36
    s_cselect_b32 s13, 0x40000000, s13
    s_cselect_b32 s31, 0, 1
    s_cmp_eq_u32 {s(S_W)}, 0
    s_cselect_b32 s31, s31, 0
    """)
    p(f"buffer_store_dwordx4 v[4:7], v1, {s(SRD_W,4)}, s13 offen sc1", tag=("wr", ("ZERO", 0), "private"))
    for sx in range(8):
        for qt in range(2):
            X = V_O + 16*sx + 4*qt
            Y = X + 8
            p(f"v_cvt_pk_bf16_f32 v{X}, v{X}, v{X+1}")
            p(f"v_cvt_pk_bf16_f32 v{X+1}, v{X+2}, v{X+3}")
            p(f"v_cvt_pk_bf16_f32 v{Y}, v{Y}, v{Y+1}")
            p(f"v_cvt_pk_bf16_f32 v{Y+1}, v{Y+2}, v{Y+3}")
        for qt in range(2):
            X = V_O + 16*sx + 4*qt
            Y = X + 8
            p(f"v_permlane32_swap_b32 v{X}, v{Y}")
            p(f"v_permlane32_swap_b32 v{X+1}, v{Y+1}")
        for qt in range(2):
            X = V_O + 16*sx + 4*qt
            Y = X + 8
            p(f"v_permlane16_swap_b32 v{X}, v{Y}")
            p(f"v_permlane16_swap_b32 v{X+1}, v{Y+1}")
        for qt in range(2):
            X = V_O + 16*sx + 4*qt
            Y = X + 8
            for k, r in enumerate((X, X+1, Y, Y+1)):
                p(f"v_accvgpr_write_b32 a{A_Q + 8*sx + 4*qt + k}, v{r}")
    stamp(p, 4 if opts.get("pst") else 2)
    lid = [opts.get("lid0", 0)]
    import k_prep
    son = k_prep.STAMP["on"]
    if opts.get("pst"): k_prep.STAMP["on"] = False
    def B(c, fn, aval=None, **kw):
        at.body(p, c, fn, aval=aval, lid=lid[0], **kw)
        if aval != -1:
            at.fallback(p, c % 2, lid[0], aval != 63)
        lid[0] += 1
    B(3, lambda it: -1, aval=-1)
    p("s_mov_b64 s[12:13], s[54:55]")
    p(I("WAITTAG", tag=[("ZERO", 0)]))
    if opts.get("touch", True):
        p(f"""
        v_min_u32 v1, {223 if opts.get("t64", False) else 111}, v0
        v_lshlrev_b32 v1, {6 if opts.get("t64", False) else 7}, v1
        s_mul_i32 s54, {s(S_PB)}, {112*128}
        s_add_u32 s53, s53, s54
        buffer_load_dword v2, v1, {s(SRD_O,4)}, s53 offen
        """)
    exv = None
    if opts.get("warm", True):
        p(f"""
        v_and_b32 v1, 63, v0
        s_lshl_b32 s14, {s(S_J)}, 5
        s_add_u32 s14, s14, {s(S_PB)}
        s_lshl_b32 s14, s14, 15
        s_min_u32 s14, s14, {2048*4096 - 35840}
        s_mul_i32 s15, {s(S_W)}, 640
        s_add_u32 s14, s14, s15
        v_cmp_gt_u32 vcc, 5, v1
        v_cndmask_b32 v3, 0, v1, vcc
        v_lshl_add_u32 v3, v3, 7, s14
        v_mov_b32 v16, s6
        v_mov_b32 v17, s7
        v_mov_b32 v18, 2560
        v_mov_b32 v19, 0
        s_mul_i32 s14, {s(S_PB)}, {14*3584}
        s_mul_i32 s15, {s(S_HD)}, 1792
        s_add_u32 s14, s14, s15
        s_and_b32 s15, {s(S_J)}, 1
        s_mul_i32 s15, s15, 896
        s_add_u32 s14, s14, s15
        s_and_b32 s15, {s(S_W)}, 1
        s_mul_i32 s15, s15, 384
        s_add_u32 s14, s14, s15
        s_mov_b64 exec, 0xf00
        v_and_b32 v3, 3, v1
        v_lshl_add_u32 v3, v3, 7, s14
        v_mov_b32 v16, s4
        v_mov_b32 v17, s5
        v_mov_b32 v18, 3584
        s_mov_b64 exec, -1
        s_mul_i32 s14, s2, {25*128}
        s_min_u32 s14, s14, {896*896 - 28*128}
        s_and_b32 s15, {s(S_W)}, 1
        s_lshl_b32 s15, s15, 7
        s_add_u32 s14, s14, s15
        v_writelane_b32 v3, s14, 6
        v_writelane_b32 v16, s8, 6
        v_writelane_b32 v17, s9, 6
        s_movk_i32 s14, 0x100
        v_writelane_b32 v18, s14, 6
        s_min_u32 s14, s2, 223
        s_lshl_b32 s14, s14, 1
        s_add_u32 s14, s14, {s(S_HD)}
        s_mul_i32 s14, s14, 5376
        s_and_b32 s15, {s(S_W)}, 1
        s_add_u32 s15, s15, 1
        s_mul_i32 s15, s15, 1792
        s_add_u32 s14, s14, s15
        v_writelane_b32 v3, s14, 7
        v_writelane_b32 v16, s56, 7
        v_writelane_b32 v17, s57, 7
        s_movk_i32 s14, 0x80
        v_writelane_b32 v18, s14, 7
        v_add_co_u32 v16, vcc, v16, v3
        v_addc_co_u32 v17, vcc, 0, v17, vcc
        """)
        exv = [(at.gB, I("global_load_dword v20, v[16:17], off"))]
        exv2 = [(at.gJ, I("v_lshl_add_u64 v[16:17], v[16:17], 0, v[18:19]"))]
    B(0, lambda it: 0, aval=0, extra_scalar=[(60, I(f"s_mov_b32 {s(S_CNT)}, 14"))])
    p(f"""
    s_cmp_eq_u32 s31, 0
    s_cbranch_scc1 L_na{name}
    v_mov_b32 v1, 1
    v_mov_b32 v3, 0
    """)
    p("s_mov_b64 exec, 1")
    p(raw(f"buffer_atomic_add v1, v3, {s(SRD_D,4)}, 0 offen offset:4 sc1"))
    p("s_mov_b64 exec, -1")
    p(f"L_na{name}:")
    srd(p, 52, 56, 57, 448 * 5376)
    p(f"""
    v_and_b32 v1, 3, v0
    v_lshrrev_b32 v4, 2, v0
    v_mul_u32_u24 v5, 14, v4
    v_and_b32 v5, -4, v5
    v_mul_u32_u24 v4, {7*5376}, v4
    v_lshl_add_u32 v4, v1, 4, v4
    v_mov_b32 v10, 1
    v_mov_b32 v11, 0x40000000
    v_cmp_ne_u32 vcc, 0, v0
    v_cndmask_b32 v11, 0, v11, vcc
    v_lshlrev_b32 v6, 2, v0
    v_add_u32 v6, {MODL}, v6
    v_mov_b32 v7, {MODL}
    """)
    p.begin_loop(14)
    p(f"L_loop{name}:")
    for c in range(1, 5):
        ex = [(60, I(f"s_sub_u32 {s(S_CNT)}, {s(S_CNT)}, 1"))] if c == 2 else None
        B(c % 4, (lambda c: lambda it: 4*it + c)(c), extra_scalar=ex,
          extra_valu=(exv if c == 1 else exv2 if c == 3 else None) if exv else None)
    p(f"s_cmp_lg_u32 {s(S_CNT)}, 0")
    p(f"s_cbranch_scc1 L_loop{name}")
    p.end_loop()
    ZD = 96
    ZT = 103
    zops = []
    for m in range(7):
        zops += [I(f"v_add_u32 v{ZT}, {64*m}, v1"), I(f"v_mul_u32_u24 v{ZT+1}, s31, v{ZT}"), I(f"v_lshrrev_b32 v{ZT+1}, 16, v{ZT+1}"),
                 I(f"v_mul_u32_u24 v{ZT+2}, 14, v{ZT+1}"), I(f"v_sub_u32 v{ZT}, v{ZT}, v{ZT+2}"),
                 I(f"v_add_u32 v{ZT}, s57, v{ZT}"), I(f"v_subrev_u32 v{ZT+2}, 14, v{ZT}"), I(f"v_min_u32 v{ZT}, v{ZT}, v{ZT+2}"),
                 I(f"v_mul_u32_u24 v{ZT+1}, 3584, v{ZT+1}"), I(f"v_lshl_add_u32 v{ZD+m}, v{ZT}, 4, v{ZT+1}")]
        if m % 4:
            zops.append(I(f"v_subrev_u32 v{ZD+m}, {(m % 4)*1024}, v{ZD+m}"))
    ZBASE = [[2 * SLOT, 3 * 2 * SLOT, 0, 8 * SLOT], [2 * 2 * SLOT, 2 * SLOT, 3 * 2 * SLOT, 8 * SLOT]]
    ZKEYS = [[[(2, 300), (3, 300)], [(6, 300), (7, 300)], [(0, 300), (1, 300)], [(8, 300)]],
             [[(4, 310), (5, 310)], [(2, 310), (3, 310)], [(6, 310), (7, 310)], [(8, 310)]]]
    def zfill(rnd, z1=0):
        gs = []
        so = 34 if z1 else 37
        for hf in range(2):
            pre = [I(f"s_add_u32 m0, s36, {ZBASE[z1][rnd] + hf*4096}")]
            d = [I(f"buffer_load_dwordx4 v{ZD+m}, {s(SRD_Q,4)}, s{so} offen offset:{(m % 4)*1024} lds", tag=("dma", ZKEYS[z1][rnd]))
                 for m in range(4*hf, min(7, 4*hf+4))]
            post = [I(f"s_add_u32 s{so}, s{so}, {4*32*3584}")] if hf else []
            gs.append((pre, d, post))
        return gs
    def flat(gs):
        return [x for g in gs for lst in g for x in lst]
    p(f"""
    v_mov_b32 v8, 4
    buffer_load_dword v9, v8, {s(SRD_D,4)}, 0 offen sc1
    s_movk_i32 s31, 0x124a
    s_and_b32 s57, {s(S_PB)}, 1
    s_lshl_b32 s57, s57, 1
    v_and_b32 v1, 63, v0
    """)
    for av in range(57, 64):
        exx = None
        if av == 59:
            p(f"""
            v_readfirstlane_b32 s14, v9
            s_cmp_lt_u32 s14, 36
            s_cbranch_scc1 L_mslow{name}
            L_mok{name}:
            """)
            p.begin_side()
            p(f"L_mslow{name}:")
            p("s_mov_b32 s14, 0")
            poll(p, SRD_D, 14, 8, 9, "m2" + name, 56, 36, sleep=4)
            p(f"s_branch L_mok{name}")
            p.end_side()
            p(f"s_lshl_b32 s14, {s(S_PB)}, 7")
            p(f"s_add_u32 s14, s14, {WS_FLAG + 4096 + 16}")
            exx = [(2, I(f"buffer_atomic_add v10, v11, {s(SRD_W,4)}, s14 offen sc0 sc1"))]
        if av == 61:
            exx = [(at.gJ, I("ds_write_b32 v6, v10", tag=("wr", ("TK", 0))))]
        if av == 62:
            exx = [(at.gJ, I("ds_read_b32 v10, v7", tag=("rd", ("TK", 0))))]
        if av == 63:
            p(f"""
            v_readfirstlane_b32 s58, v10
            s_cmp_ge_u32 s58, 2
            s_cselect_b32 s58, 64, s58
            s_lshl_b32 s14, {s(S_PB)}, 1
            s_add_u32 s58, s58, s14
            s_lshl_b32 s14, s58, 6
            s_add_u32 s14, s14, {28*64}
            s_cmp_ge_u32 s58, 56
            s_cselect_b32 s14, 0x40000000, s14
            """)
            exx = [(1 + (k * 30) // len(zops), x) for k, x in enumerate(zops)]
            for i in range(7):
                exx += [(2 + 3*i, I(f"buffer_load_dwordx4 {a(AW+4*i,4)}, v4, s[52:55], s14 offen")), (2 + 3*i, I("s_add_u32 s14, s14, 5376"))]
            exx += [(24, I(f"global_load_dwordx4 {a(AW+28,4)}, v5, s[12:13]"))]
        B(av % 4, (lambda av: lambda it: av)(av), aval=av, extra_valu=exx)
    if not opts.get("pst"): stamp(p, 3)
    for qt in range(2):
        at.xreduce(p, V_L + qt, "v_add_f32")
        p(f"v_rcp_f32 v{2+qt}, {v(V_L+qt)}")
    p("s_mov_b32 s57, 0x40000000")
    p(f"WAITFOR {a(AW,32)}")
    p("s_waitcnt lgkmcnt(0)")
    modblock(False, MW=48, CR=76, MC=104, MA=80, MT=120, MS=30, scr=161792,
             pre=[I(f"v_accvgpr_read_b32 v{48+k}, a{AW+k}") for k in range(32)])
    X1B = 28672; X2B = 8 * SLOT
    def xaddr(ks, q):
        return X1B + (4*ks + q) * 1024 if ks < 9 else X2B + (4*(ks-9) + q) * 1024
    XKEY = [(2, 250), (3, 250), (8, 250), ("T", 250)]
    p(f"""
    s_and_b32 s14, {s(S_W)}, 1
    s_lshl_b32 s14, s14, 11
    s_mul_i32 s15, {s(S_HD)}, 32768
    s_add_u32 s15, s15, s14
    s_add_u32 s15, s15, {X1B}
    v_add_u32 v4, s15, {v(V_LIN)}
    s_mul_i32 s15, {s(S_HD)}, {X2B - X1B - 4096}
    s_add_u32 s15, s15, s14
    s_add_u32 s15, s15, {X1B}
    v_add_u32 v5, s15, {v(V_LIN)}
    v_add_u32 v6, {X1B}, {v(V_LIN)}
    v_add_u32 v7, {X2B}, {v(V_LIN)}
    s_lshl_b32 s14, {s(S_PB)}, 7
    s_add_u32 s14, s14, {WS_FLAG}
    v_mov_b32 v13, s14
    v_mov_b32 v10, 1
    v_mov_b32 v9, 12
    s_barrier
    """)
    for u in range(8):
        for qt in range(2):
            X = V_O + 16*u + 4*qt
            Y = X + 8
            sel = "op_sel_hi:[1,0]" if qt == 0 else "op_sel:[0,1] op_sel_hi:[1,1]"
            for r in (X, X+2, Y, Y+2):
                p(f"v_pk_mul_f32 {v(r,2)}, {v(r,2)}, v[2:3] {sel}")
            p(f"v_cvt_pk_bf16_f32 v{X}, v{X}, v{X+1}")
            p(f"v_cvt_pk_bf16_f32 v{X+1}, v{X+2}, v{X+3}")
            p(f"v_cvt_pk_bf16_f32 v{X+2}, v{Y}, v{Y+1}")
            p(f"v_cvt_pk_bf16_f32 v{X+3}, v{Y+2}, v{Y+3}")
            p(f"ds_write_b128 v{4 if u == 0 else 5}, {v(X,4)} offset:{4096*u + 1024*qt}", tag=("wr", XKEY))
    ACC = V_O
    p(f"""
    s_and_b32 s15, {s(S_J)}, 1
    s_lshl_b32 s15, s15, 2
    s_and_b32 s32, {s(S_PB)}, 3
    s_add_u32 s32, s32, s15              ; fb
    s_lshr_b32 s15, {s(S_J)}, 1
    s_lshl_b32 s15, s15, 3
    s_lshr_b32 s33, {s(S_PB)}, 2
    s_add_u32 s33, s33, s15              ; tb
    s_mul_i32 s34, s32, 224
    s_mul_i32 s36, {s(S_W)}, {32*3584}
    s_add_u32 s34, s34, s36
    s_add_u32 s37, s34, 1792
    s_mul_i32 s36, {s(S_W)}, 7168
    """)
    A_OB = 0
    NRW = 8
    def wrd(st, mt):
        pr = at.OPAIR[st % 3]
        reg, off = (WRB + mt, 0) if pr == 0 else (WRA + mt, (pr - 2) * 2 * SLOT)
        f = st * 7 + mt
        return [I(f"ds_read_b64_tr_b16 {a(A_F + 4*(f % NRW) + 2*e, 2)}, v{reg} offset:{off + e*14336}", tag=("rd", at.okeys(st))) for e in range(2)]
    def brd(st):
        ky = [(2, 250), (3, 250), ("T", 250)] if st < 9 else [(8, 250)]
        return [I(f"ds_read_b128 {a(A_OB + 16*(st % 2) + 4*q, 4)}, v{6 if st < 9 else 7} offset:{xaddr(st, q) - (X1B if st < 9 else X2B)}",
                  tag=("rd", ky)) for q in range(4)]
    LF = opts.get("lf", 2)
    for f in range(LF):
        p.extend(wrd(0, f))
    p("s_waitcnt lgkmcnt(0)")
    p("s_barrier")
    if opts.get("ost"): stamp(p, 4)
    p.extend(brd(0))
    G = 28
    gb = G - 4 * LF - 1
    for st in range(16):
        kind = ["m"] * G
        SC = [[] for _ in range(G + 1)]
        VE = [[] for _ in range(G)]
        if st < 15:
            kind[gb] = "B"
            VE[gb] = [I("WAITTAG", tag=at.okeys(st + 1)), I("s_barrier")]
        if 0 < st < 15:
            kind[0] = "B"
            VE[0] = [I("s_barrier")]
        if st + 2 < 16:
            new = [at.ofill(st + 2, hf) + ([],) for hf in range(2)]
        else:
            new = zfill(st - 14)
        newl = []
        for pre, d, post in new:
            for k, x in enumerate(d):
                newl.append((pre if k == 0 else [], x, post if k == len(d) - 1 else []))
        dpos = [3, 5, 7, 9, 12, 14, 16, 20]
        if st == 4:
            newl.append(([], I(f"buffer_atomic_add v10, v11, {s(SRD_D,4)}, s57 offen offset:12 sc1"), []))
        if st == 14:
            newl.append(([], I(f"buffer_load_dword v15, v9, {s(SRD_D,4)}, 0 offen sc1"), []))
        if st == opts.get("eflag", 15):
            newl.append(([], I(f"buffer_load_dword v14, v13, {s(SRD_W,4)}, 0 offen sc1"), []))
        for g, it in zip(dpos, newl):
            pre, x, post = it
            kind[g] = "d"; VE[g] = [x]
            for k, y in enumerate(pre):
                SC[g - len(pre) + k].append(y)
            SC[g + 1] += post
        dsq = []
        for mt in range(7):
            nf = mt + LF
            if nf < 7: rr = wrd(st, nf)
            elif st < 15: rr = wrd(st + 1, nf - 7)
            else: rr = []
            dsq += [(4*mt + k, x) for k, x in enumerate(rr)]
        if st < 15:
            dsq += [(17 + k, x) for k, x in enumerate(brd(st + 1))]
        dsq.sort(key=lambda z: z[0])
        nds = [0] * G
        q = 0
        for g in range(G):
            while kind[g] == "m" and q < len(dsq) and dsq[q][0] <= g and nds[g] < (2 if dsq[q][0] <= g - 2 else 1):
                VE[g].append(dsq[q][1]); nds[g] += 1; q += 1
        assert q == len(dsq)
        ops = []
        mg = [g for g in range(G) if kind[g] == "m" and nds[g] < 2]
        for k, x in enumerate(ops):
            VE[mg[(k * len(mg)) // len(ops)]].append(x)
        for mt in range(1, 8):
            if mt == 7 and st == 15: continue
            g = 4*mt - 1
            while kind[g] != "m" or SC[g]: g -= 1
            ex = f", {a(A_OB + 16*((st+1) % 2), 16)}" if mt == 7 else ""
            SC[g].append(I(f"WAITFOR {a(A_F + 4*((st*7 + mt) % NRW), 4)}{ex}"))
        for g in range(G):
            mt, q = g // 4, g % 4
            D = v(ACC + 16*mt + 4*q, 4)
            p(f"v_mfma_f32_16x16x32_bf16 {D}, {a(A_F + 4*((st*7 + mt) % NRW), 4)}, {a(A_OB + 16*(st % 2) + 4*q, 4)}, {D if st else 0}")
            oabl = opts.get("oabl", "")
            p.extend([x for x in SC[g] + VE[g] if not (("D" in oabl and x.kind == "dma" and st < 14) or ("B" in oabl and x.kind == "barrier")
                                                       or ("R" in oabl and x.kind == "ds_read"))])
        p.extend(SC[G])
        if opts.get("ost") and st in (3, 7, 11): stamp(p, [5, 6, 7][st // 4])
    if opts.get("ost"):
        stamp(p, 8)
        k_prep.STAMP["on"] = False
    if not opts.get("pst"): stamp(p, 4)
    p(f"""
    s_lshl_b32 s14, {s(S_J)}, 7
    s_lshl_b32 s15, {s(S_PB)}, 2
    s_add_u32 s14, s14, s15
    s_mul_i32 s14, s14, {14*1024}
    s_mul_i32 s15, {s(S_W)}, 7
    s_add_u32 s15, s15, 1
    s_lshr_b32 s15, s15, 1
    s_lshl_b32 s15, s15, 10
    s_add_u32 s14, s14, s15
    s_add_u32 s14, s14, {WS_PART}
    s_and_b32 s50, {s(S_W)}, 1
    s_mul_i32 s15, s50, {2*14*1024 - 4096}
    s_add_u32 s15, s15, s14
    s_add_u32 s15, s15, 3072
    s_mul_i32 s51, {s(S_HD)}, {2*SLOT}
    s_add_u32 s51, s51, {4*SLOT + 28672}
    s_lshl_b32 s52, s50, 3
    s_add_u32 s52, s52, s51
    v_add_u32 v4, s52, {v(V_LIN)}
    s_lshl_b32 s52, s50, 11
    s_add_u32 s52, s52, s51
    v_add_u32 v5, s52, {v(V_LIN)}
    """)
    pt = ("wr", ("PT", 0), "private")
    for q in range(4):
        X = ACC + 96 + 4*q
        p(f"v_cvt_pk_bf16_f32 v{X}, v{X}, v{X+1}")
        p(f"v_cvt_pk_bf16_f32 v{X+1}, v{X+2}, v{X+3}")
        p(f"ds_write_b64 v4, {v(X,2)} offset:{1024*q}", tag=("wr", ("MG", 0)))
    for q in range(4):
        for pr in range(3):
            X = ACC + 32*pr + 4*q
            Y = X + 16
            p(f"v_cvt_pk_bf16_f32 v{X}, v{X}, v{X+1}")
            p(f"v_cvt_pk_bf16_f32 v{X+1}, v{X+2}, v{X+3}")
            p(f"v_cvt_pk_bf16_f32 v{X+2}, v{Y}, v{Y+1}")
            p(f"v_cvt_pk_bf16_f32 v{X+3}, v{Y+2}, v{Y+3}")
            p(f"buffer_store_dwordx4 {v(X,4)}, {v(V_LIN)}, {s(SRD_W,4)}, s14 offen offset:{pr*1024} sc1", tag=pt)
        if q < 3:
            p(f"s_add_u32 s14, s14, {14*1024}")
        if q == 0:
            p("s_waitcnt lgkmcnt(0)")
            p("s_barrier")
            for k in range(2):
                p(f"ds_read_b128 {v(ACC+112+4*k,4)}, v5 offset:{1024*k}", tag=("rd", ("MG", 0)))
    for k in range(2):
        p(f"buffer_store_dwordx4 {v(ACC+112+4*k,4)}, {v(V_LIN)}, {s(SRD_W,4)}, s15 offen sc1", tag=pt)
        p(f"s_add_u32 s15, s15, {14*1024}")
    p(f"""
    v_cmp_gt_u32 vcc, 56, v15
    s_cbranch_vccnz L_nslow{name}
    L_nok{name}:
    """)
    p.begin_side()
    p(f"L_nslow{name}:")
    p("s_mov_b32 s14, 0")
    poll(p, SRD_D, 14, 9, 15, "m3" + name, 56, 56, sleep=8)
    p(f"s_branch L_nok{name}")
    p.end_side()
    srd(p, SRD_K, 10, 11, 2048 * 896)
    emit_red_pre(p, S_W, S_PB, S_J, SRD_W, SRD_K, B=184)
    emit_red_early(p, SRD_W, 14)
    p(f"""
    s_lshl_b32 s14, {s(S_PB)}, 7
    s_add_u32 s14, s14, {WS_FLAG}
    """)
    p(f"s_lshl_b32 s15, 1, {s(S_J)}")
    signal(p, SRD_W, 14, S_W, "r" + name, vt=10, keys=[("PT", 0)], val="s15")
    stamp(p, 5)
    zl = [zfill(2), zfill(3), zfill(0, 1)]
    zl = flat(sum(zl, []))
    emit_red(p, S_W, S_PB, SRD_W, 163840 - 512, B=184, idle=zl)
    W4 = s(SRD_W, 4)
    ZACC = 128
    NRZ = 16
    A_H = 0
    A_FZ = 64
    VB = 16; RS = 48; VDB = 64; VRB = 72; Z1 = 80; GACC = 128
    RA = 6; A_A = 0; A_MU = 168; PB0 = 131072
    p(f"""
    s_lshr_b32 s15, {s(S_J)}, 1
    s_lshl_b32 s15, s15, 5
    s_add_u32 s14, s14, s15
    s_add_u32 s14, s14, 4096
    v_and_b32 v1, 63, v0
    v_lshlrev_b32 v2, 4, v1
    v_and_b32 v3, 15, v0                 ; n
    v_bfe_u32 v8, v0, 4, 2               ; g
    s_lshl_b32 s58, s33, 2
    s_add_u32 s58, s58, {s(S_W)}
    s_mul_i32 s4, s58, {14*1024}
    s_add_u32 s4, s4, {WS_H2}
    s_add_u32 s5, s4, 4096
    s_add_u32 s12, s4, 8192
    s_add_u32 s13, s4, 12288
    v_lshrrev_b32 v9, 2, v1
    v_mul_u32_u24 v9, 224, v9
    v_and_b32 v12, 3, v0
    v_lshl_add_u32 v12, v12, 3, v9
    v_add_u32 v13, {4*SLOT}, v12
    v_add_u32 v14, {8*SLOT}, v12
    v_mov_b32 v15, 0
    s_lshl_b32 s15, s33, 7
    s_lshl_b32 s50, {s(S_W)}, 5
    s_add_u32 s15, s15, s50
    s_add_u32 s15, s15, {WS_FLAG + 4096}
    """)
    signal(p, SRD_W, 14, S_W, "z" + name, vt=48, keys=[("H2", 0)])
    stamp(p, 7)
    p("s_cmp_lg_u32 s54, 0")
    p(f"s_cbranch_scc1 L_zf{name}")
    p.extend(zl)
    p(f"L_zf{name}:")
    srd(p, SRD_V, 6, 7, 2048 * 4096 + 4096)
    p(f"""
    s_sub_u32 {s(SRD_V)}, {s(SRD_V)}, 4096
    s_subb_u32 {s(SRD_V+1)}, {s(SRD_V+1)}, 0
    s_mov_b32 s50, s32
    s_mov_b32 s51, s33
    v_lshrrev_b32 v9, 3, v1
    v_lshlrev_b32 v9, 12, v9
    v_and_b32 v4, 7, v0
    v_xor_b32 v4, v4, v8
    v_lshl_add_u32 v4, v4, 4, v9
    v_xor_b32 v5, 64, v4
    """)
    for m in range(8):
        nl = m // 2
        if m % 2 == 0:
            p(f"s_add_u32 s52, {s(S_W)}, {nl}")
            p(f"s_and_b32 s52, s52, 3")
            p(f"s_lshl_b32 s52, s52, 16")
        p(f"s_add_u32 s53, s52, {(m % 2)*32768 + 4096 - (m % 4)*1024}")
        p(f"v_add_u32 v{VDB+m}, s53, v{4 + m % 2}")
    p(f"""
    s_lshl_b32 s52, s51, 18
    s_lshl_b32 s53, {s(S_W)}, 10
    s_add_u32 s52, s52, s53
    s_lshl_b32 s54, s50, 6
    s_lshl_b32 s53, {s(S_W)}, 4
    s_add_u32 s54, s54, s53
    s_mul_i32 s54, s54, 7168
    s_add_u32 s54, s54, {WS_ZZ}
    s_add_u32 s55, s54, 4096
    s_lshl_b32 s53, {s(S_W)}, 13
    v_mov_b32 v4, {f2u(C2)}
    v_mov_b32 v6, {f2u(C1)}
    s_lshl_b32 s38, s50, 6
    s_lshr_b32 s39, s58, 1
    s_add_u32 s38, s38, s39
    s_mul_i32 s38, s38, 7168
    s_and_b32 s39, s58, 1
    s_lshl_b32 s39, s39, 9
    s_add_u32 s38, s38, s39
    s_add_u32 s38, s38, {WS_ZZ}
    s_add_u32 s39, s38, 4096
    v_and_b32 v10, 1, v8
    v_lshlrev_b32 v10, 10, v10           ; (g%2)*1024 : second tile of the pair
    v_lshrrev_b32 v11, 1, v8
    v_lshl_add_u32 v10, v11, 8, v10      ; + (g/2)*256
    v_lshl_add_u32 v10, v3, 4, v10       ; + n*16
    v_lshlrev_b32 v11, 20, v10
    v_and_b32 v11, 0x40000000, v11
    v_or_b32 v11, v11, v10
    """)
    BSL = [0, 2, 1, 3, 4]
    BOV = {0: [0, 1], 1: [2, 3], 2: [4, 5], 3: [6, 7], 4: [8]}
    def bdma(dd, half, first=False):
        pre = [I(f"s_add_u32 m0, s53, {BSL[dd % 5]*32768 + half*4096}")]
        tg = ("dma", [(f"B{dd % 5}", dd)] + [(k, 400) for k in BOV[BSL[dd % 5]]]) if first else ("dma", (f"B{dd % 5}", dd), "private")
        out = [I(f"buffer_load_dwordx4 v{VDB+4*half+k}, {s(SRD_V,4)}, s52 offen offset:{k*1024} lds", tag=tg) for k in range(4)]
        post = [I("s_add_u32 s52, s52, 128")] if half else []
        return pre, out, post
    LEADZ = 6
    def zreads(z1):
        rds = []
        for u in range(14):
            rnd = u // 4
            ab = ZBASE[z1][rnd] + (u % 4) * 7168
            base, off = (12, ab) if ab < 4 * SLOT else (13, ab - 4 * SLOT) if ab < 8 * SLOT else (14, ab - 8 * SLOT)
            for ft in range(7):
                f = u * 7 + ft + 98 * z1
                rds.append([I(f"ds_read_b64_tr_b16 {a(A_FZ + 4*(f % NRZ) + 2*e, 2)}, v{base} offset:{off + e*3584 + 32*ft}",
                              tag=("rd", ZKEYS[z1][rnd])) for e in range(2)])
        return rds
    def zgemm(z1, rds, acc, hook=None):
        for g in range(98):
            for hk in (hook or {}).get(g, []):
                p(hk)
            u, ft = g // 7, g % 7
            f = g + 98 * z1
            D = v(acc + 4*ft, 4)
            Wf = a(A_FZ + 4*(f % NRZ), 4)
            H = a(A_H + 4*u, 4)
            C = D if u else "0"
            p(f"v_mfma_f32_16x16x32_bf16 {D}, {Wf}, {H}, {C}" if z1 else f"v_mfma_f32_16x16x32_bf16 {D}, {H}, {Wf}, {C}")
            if g + 1 < 98 and (g % 2 == 1 or ft == 6):
                ex = f", {a(A_H + 4*(u+1), 4)}" if ft >= 5 and u < 13 else ""
                p(f"WAITFOR {a(A_FZ + 4*((f+1) % NRZ), 4)}, {a(A_FZ + 4*((f+2) % NRZ), 4)}{ex}")
            if g + LEADZ < 98:
                p.extend(rds[g + LEADZ])
    def interleave(gl, bl):
        step = max(1, len(gl) // len(bl))
        for k, x in enumerate(gl):
            if k % step == 0 and bl:
                p.extend(bl.pop(0))
            p(x)
        for x in bl:
            p.extend(x)
    def groups(gs):
        out = []
        for pre, o, post in gs:
            for k, x in enumerate(o):
                out.append((pre if k == 0 else []) + [x] + (post if k == len(o) - 1 else []))
        return out
    rz = zreads(0)
    for x in rz[:LEADZ]:
        p.extend(x)
    poll(p, SRD_W, 15, 15, 48, "z" + name, 56, 2)
    stamp(p, 8)
    for u in range(14):
        p(f"buffer_load_dwordx4 {a(A_H+4*u,4)}, v2, {W4}, s{[4,5,12,13][u//4]} offen offset:{(u % 4)*1024}{LD}")
    hk = {29: ["s_barrier"]}
    NZI = opts.get("nzi", 1)
    for r in range(NZI):
        g0 = 28 * (r + 1) + 2
        if r: hk.setdefault(g0 - 1, []).append("s_barrier")
        for k, x in enumerate(groups(zfill(r + 1, 1))):
            hk.setdefault(g0 + 3 * k, []).extend(x)
    zgemm(0, rz, ZACC, hook=hk)
    p("s_barrier")
    if not opts.get("zst"): stamp(p, 9)
    gp = Prog("tmp")
    gelu_pairs(gp, [ZACC + 2*k for k in range(14)], 24)
    interleave(gp.items, groups(sum([zfill(r, 1) for r in range(NZI + 1, 4)], [])))
    for k in range(0, 4, 2):
        p(f"v_pk_add_f32 {v(32+k,2)}, {v(ZACC+k,2)}, {v(ZACC+4+k,2)}")
        p(f"v_pk_mul_f32 {v(36+k,2)}, {v(ZACC+k,2)}, {v(ZACC+k,2)}")
    for ft in range(1, 7):
        for k in range(0, 4, 2):
            if ft >= 2:
                p(f"v_pk_add_f32 {v(32+k,2)}, {v(32+k,2)}, {v(ZACC+4*ft+k,2)}")
            p(f"v_pk_fma_f32 {v(36+k,2)}, {v(ZACC+4*ft+k,2)}, {v(ZACC+4*ft+k,2)}, {v(36+k,2)}")
    for sh in (8, 4, 2, 1):
        for k in range(8):
            p(f"v_add_f32_dpp v{32+k}, v{32+k}, v{32+k} row_ror:{sh} row_mask:0xf bank_mask:0xf")
    p(f"""
    v_cmp_eq_u32 vcc, 0, v3
    v_cndmask_b32 v40, v34, v32, vcc
    v_cndmask_b32 v41, v38, v36, vcc
    v_cndmask_b32 v42, v35, v33, vcc
    v_cndmask_b32 v43, v39, v37, vcc
    v_or_b32 v41, 0x80000000, v41
    v_or_b32 v43, 0x80000000, v43
    v_lshlrev_b32 v9, 5, v8
    v_lshl_add_u32 v9, v3, 4, v9
    v_mov_b32 v25, 0x40000000
    v_cmp_gt_u32 vcc, 2, v3
    v_cndmask_b32 v9, v25, v9, vcc
    s_lshl_b32 s12, s58, 10
    s_add_u32 s12, s12, {WS_ST2}
    s_lshl_b32 s13, s50, 7
    s_add_u32 s13, s13, s12
    buffer_store_dwordx4 v[40:43], v9, {W4}, s13 offen sc1
    v_and_b32 v9, 7, v3
    v_lshlrev_b32 v9, 7, v9
    v_lshl_add_u32 v9, v8, 5, v9
    v_lshrrev_b32 v25, 3, v3
    v_lshl_add_u32 v9, v25, 4, v9
    """)
    rz = zreads(1)
    for x in rz[:LEADZ]:
        p.extend(x)
    p(I("WAITTAG", tag=ZKEYS[1][1] + ZKEYS[1][2]))
    p("s_barrier")
    Z1ACC = 160
    p(f"""
    s_lshl_b32 s15, s50, 9
    s_add_u32 s15, s15, {WS_FLAG + 8192}
    s_lshr_b32 s14, s51, 3
    s_lshl_b32 s14, s14, 7
    s_add_u32 s14, s14, s15
    s_lshl_b32 s13, {s(S_W)}, 7
    s_add_u32 s15, s15, s13
    """)
    hk = {}
    NBZ = opts.get("nbz", 2)
    for dd in range(NBZ):
        g0 = 28 * dd + 2
        if dd: hk.setdefault(g0 - 1, []).extend([I("WAITTAG", tag=ZKEYS[1][3]), "s_barrier"])
        for k, x in enumerate(groups([bdma(dd, hf, first=True) for hf in range(2)])):
            hk.setdefault(g0 + 3 * k, []).extend(x)
    hk.setdefault(opts.get("spoll", 76), []).append(f"buffer_load_dwordx4 v[32:35], v9, {W4}, s12 offen sc1")
    zgemm(1, rz, Z1ACC, hook=hk)
    p(f"""
    s_mov_b32 s56, 0x100000
    s_waitcnt vmcnt(0)
    s_branch L_sp2{name}
    L_sp1{name}:
    buffer_load_dwordx4 v[32:35], v9, {W4}, s12 offen sc1
    s_waitcnt vmcnt(0)
    L_sp2{name}:
    v_and_b32 v36, v33, v35
    v_cmp_le_i32 vcc, 0, v36
    s_cbranch_vccz L_sp3{name}
    s_sub_u32 s56, s56, 1
    s_cmp_lg_u32 s56, 0
    s_cbranch_scc1 L_sp1{name}
    L_sp3{name}:
    """)
    for ctl in ("quad_perm:[1,0,3,2]", "quad_perm:[2,3,0,1]", "row_half_mirror"):
        for k in range(4):
            p(f"v_add_f32_dpp v{32+k}, v{32+k}, v{32+k} {ctl} row_mask:0xf bank_mask:0xf")
    for k in range(2):
        p(f"v_mul_f32 v{38+k}, {f2u(1.0/896)}, v{32+2*k}")
        p(f"v_mul_f32 v{36+k}, {f2u(-1.0/896)}, v{33+2*k}")
        p(f"v_fma_f32 v{36+k}, -v{38+k}, v{38+k}, v{36+k}")
        p(f"v_max_f32 v{36+k}, 0, v{36+k}")
        p(f"v_add_f32 v{36+k}, {f2u(1e-5)}, v{36+k}")
        p(f"v_rsq_f32 v{36+k}, v{36+k}")
        p(f"v_mul_f32 v{38+k}, -v{38+k}, v{36+k}")
    for k in range(4):
        p(f"v_mov_b32 v{40+k}, v{36+k}")
        p(f"v_mov_b32 v{44+k}, v{36+k}")
    for k in range(4):
        p(f"v_mov_b32_dpp v{40+k}, v{36+k} row_ror:8 row_mask:0xf bank_mask:0xc")
        p(f"v_mov_b32_dpp v{44+k}, v{36+k} row_ror:8 row_mask:0xf bank_mask:0x3")
    zt = ("wr", ("ZZ", 0), "private")
    for pr in range(4):
        X = ZACC + 8*pr
        for k in range(4 if pr < 3 else 2):
            c = 40 + 4*(k % 2)
            p(f"v_pk_fma_f32 {v(X+2*k,2)}, {v(X+2*k,2)}, {v(c,2)}, {v(c+2,2)}")
        Y = 24 + 4*(pr % 2)
        for k in range(4):
            sx = X + 2*k if pr < 3 else X + 2*(k % 2)
            p(f"v_cvt_pk_bf16_f32 v{Y+k}, v{sx}, v{sx+1}")
        p(f"v_permlane16_swap_b32 v{Y}, v{Y+2}")
        p(f"v_permlane16_swap_b32 v{Y+1}, v{Y+3}")
        p(f"buffer_store_dwordx4 {v(Y,4)}, v{10 if pr < 3 else 11}, {W4}, s{38 + pr//2} offen offset:{(pr % 2)*2048} sc1", tag=zt)
    if opts.get("zst"): stamp(p, 9)
    p("s_barrier")
    gp = Prog("tmp")
    gelu_pairs(gp, [Z1ACC + 2*k for k in range(14)], 96)
    for k in range(14):
        gp(f"v_cvt_pk_bf16_f32 v{Z1+k}, v{Z1ACC+2*k}, v{Z1ACC+2*k+1}")
    NB1 = opts.get("nb1", 4)
    interleave(gp.items, groups([bdma(dd, hf, first=True) for dd in range(NBZ, NB1) for hf in range(2)]))
    signal(p, SRD_W, 14, S_W, "g" + name, vt=48, keys=[("ZZ", 0)])
    stamp(p, 10)
    RA = 5; A_A = 0; A_BR = 144
    p("s_load_dwordx2 s[4:5], s[0:1], 64")
    p("s_load_dwordx2 s[6:7], s[0:1], 96")
    p.extend(flat([bdma(dd, hf, first=True) for dd in range(NB1, 5) for hf in range(2)]))
    p(f"""
    v_lshrrev_b32 v9, 1, v3
    v_xor_b32 v9, v9, v8
    v_lshlrev_b32 v9, 4, v9
    v_lshl_add_u32 v9, v3, 7, v9
    v_add_u32 v{VRB}, s53, v9
    v_xor_b32 v{VRB+1}, 64, v{VRB}
    v_add_u32 v{VRB+2}, 0x10000, v{VRB}
    v_add_u32 v{VRB+3}, 0x10000, v{VRB+1}
    v_add_u32 v{VRB+4}, 0x20000, v{VRB}
    v_add_u32 v{VRB+5}, 0x20000, v{VRB+1}
    s_lshl_b32 s35, s58, 5
    v_lshlrev_b32 v12, 1, v3
    v_mov_b32 v49, 0
    s_waitcnt lgkmcnt(0)
    """)
    srd(p, SRD_K, 4, 5, 4096)
    srd(p, SRD_O, 8, 9, 896 * 896)
    srd(p, SRD_Q, 6, 7, 2048 * 896)
    p(f"buffer_load_ushort v{Z1+14}, v12, {s(SRD_K,4)}, s35 offen")
    p(f"""
    s_lshl_b32 s33, {s(S_J)}, 2
    s_and_b32 s32, {s(S_PB)}, 3
    s_add_u32 s33, s33, s32              ; tb'
    s_lshr_b32 s32, {s(S_PB)}, 2         ; cb
    v_lshrrev_b32 v54, 3, v1
    v_mul_u32_u24 v54, 896, v54
    v_lshlrev_b32 v55, 1, v8
    v_and_b32 v50, 7, v0
    v_xor_b32 v55, v55, v50
    v_lshl_add_u32 v50, v55, 4, v54
    v_add_u32 v51, {7168-1024}, v50
    v_add_u32 v52, {2*(7168-1024)}, v50
    v_add_u32 v53, {3*(7168-1024)}, v50
    s_mul_i32 s59, {s(S_W)}, {224*896}
    s_lshl_b32 s57, s32, 7
    s_add_u32 s59, s59, s57
    """)
    WOFFS = [98304, 102400, 131072, 135168, 0, 4096, 32768]
    def wdma(ks):
        tg = ("dma", [(f"W{ks}", 0), (f"B{3 + ks // 2}", 90)], "private") if ks < 4 else ("dma", [(f"W{ks}", 0), ("X", 1)])
        return ([I(f"s_add_u32 m0, s53, {WOFFS[ks]}")],
                [I(f"buffer_load_dwordx4 v{50+k}, {s(SRD_O,4)}, s59 offen offset:{k*1024} lds", tag=tg) for k in range(4)],
                [I(f"s_add_u32 s59, s59, {4*7168}")])
    def breg(ks, nl):
        return a(A_BR + 16*ks + 4*nl, 4) if ks < 6 else v(VB + 16*(ks % 2) + 4*nl, 4)
    def b_reads(ks):
        dd = ks // 2
        sl = BSL[dd % 5]
        return [I(f"ds_read_b128 {breg(ks, nl)}, v{VRB + 2*(sl//2) + ks % 2} offset:{(sl % 2)*32768 + nl*2048}",
                  tag=("rd", (f"B{dd % 5}", dd), "private")) for nl in range(4)]
    NB2 = opts.get("nb2", 8)
    for dd in range(3):
        p(I("WAITTAG", tag=[(f"B{dd}", dd)]))
        p.extend(b_reads(2*dd) + b_reads(2*dd + 1))
    for dd in range(5, NB2):
        p(I("WAITTAG", tag=[("rd", f"B{dd % 5}", dd - 5)]))
        p.extend(flat([bdma(dd, hf) for hf in range(2)]))
    poll(p, SRD_W, 15, 49, 48, "g" + name, 56, 8)
    stamp(p, 11)
    def aload(ks):
        out = [I(f"buffer_load_dwordx4 {a(A_A + 28*(ks % RA) + 4*mt, 4)}, v2, {W4}, s{54 + mt//4} offen offset:{(mt % 4)*1024}{LD}")
               for mt in range(7)]
        post = [I("s_add_u32 s54, s54, 7168"), I("s_add_u32 s55, s55, 7168")]
        return out, post
    NA0 = opts.get("na0", 3)
    for ks in range(NA0):
        o, post = aload(ks); p.extend(o); p.extend(post)
    nexta = NA0
    nextb = 2 * NB2
    for ks in range(16):
        SC = [[] for _ in range(29)]
        VE = [[] for _ in range(28)]
        kind = ["m"] * 28
        vm = []
        while nexta < 16 and nexta <= ks + RA - 1 and len(vm) < (8 if ks == 0 else 1):
            o, post = aload(nexta); nexta += 1
            vm.extend([([], x, post if k == 6 else []) for k, x in enumerate(o)])
        if ks >= 2 and nextb < 16:
            pre, o, post = bdma(nextb // 2, nextb % 2); nextb += 1
            vm.extend([(pre if k == 0 else [], x, post if k == 3 else []) for k, x in enumerate(o)])
        if ks in (12, 13):
            for kk in (2*(ks-12), 2*(ks-12)+1):
                pre, o, post = wdma(kk)
                vm.extend([(pre if k == 0 else [], x, post if k == 3 else []) for k, x in enumerate(o)])
        for k, (pre, x, post) in enumerate(vm):
            g = 2 * k if len(vm) > 9 else 1 + 3 * k
            kind[g] = "d"; VE[g] = [x]
            if pre: SC[g - 1] += pre
            SC[g + 1] += post
        mg = [g for g in range(28) if kind[g] == "m"]
        if 6 <= ks + 1 < 16:
            if (ks + 1) % 2 == 0:
                SC[mg[0]].insert(0, I("WAITTAG", tag=[(f"B{((ks+1)//2) % 5}", (ks+1)//2)]))
            for k, x in enumerate(b_reads(ks + 1)):
                VE[mg[k + 1]].append(x)
        for mt in range(1, 8):
            if mt == 7 and ks == 15: continue
            g = 4*mt - 1
            while kind[g] != "m": g -= 1
            k2, m2 = (ks, mt) if mt < 7 else (ks + 1, 0)
            ex = "".join(", " + breg(ks + 1, nl) for nl in range(4)) if mt == 7 else ""
            SC[g].append(I(f"WAITFOR {a(A_A + 28*(k2 % RA) + 4*m2, 4)}{ex}"))
        for g in range(28):
            mt, nl = g // 4, g % 4
            D = v(GACC + 16*mt + 4*nl, 4)
            p(f"v_mfma_f32_16x16x32_bf16 {D}, {a(A_A + 28*(ks % RA) + 4*mt, 4)}, {breg(ks, nl)}, {D if ks else 0}")
            for x in SC[g] + VE[g]:
                p(x)
            if ks == 15:
                if g == 0:
                    p("v_add_u32 v4, s53, v2")
                    p("v_add_u32 v13, 0x10000, v4")
                g2 = g - 8
                if g2 >= 0 and g2 % 4:
                    p(f"ds_write_b128 v{13 if g2 % 4 == 3 else 4}, {v(GACC + 16*(g2//4) + 4*(g2 % 4), 4)} offset:{((g2 % 4 - 1) % 2)*32768 + (g2//4)*1024}", tag=("wr", ("X", 0)))
        assert not SC[28]
    assert nexta == 16 and nextb == 16
    stamp(p, 12)
    for nl in range(1, 4):
        p(f"s_sub_u32 s34, {s(S_W)}, {nl}")
        p(f"s_and_b32 s34, s34, 3")
        p(f"s_lshl_b32 s34, s34, 13")
        p(f"s_add_u32 s34, s34, {(nl-1)*32768}")
        p(f"v_add_u32 v{4+nl}, s34, v2")
    for mt in range(5, 7):
        for nl in range(1, 4):
            p(f"ds_write_b128 v{13 if nl == 3 else 4}, {v(GACC + 16*mt + 4*nl, 4)} offset:{((nl-1) % 2)*32768 + mt*1024}", tag=("wr", ("X", 0)))
    p("s_waitcnt lgkmcnt(0)")
    p("s_barrier")
    for mt in range(7):
        for nl in range(1, 4):
            p(f"ds_read_b128 {v(GACC + 16*mt + 4*nl, 4)}, v{4+nl} offset:{mt*1024}", tag=("rd", ("X", 0)))
    p(f"""
    s_mul_i32 s34, s58, {28*1024}
    s_add_u32 s34, s34, {WS_U}
    s_mul_i32 s35, s50, 7
    s_add_u32 s36, s35, 1
    s_lshr_b32 s36, s36, 1
    s_lshl_b32 s36, s36, 10
    s_add_u32 s36, s36, s34
    s_and_b32 s37, s50, 1
    s_mul_i32 s37, s37, {4096 - 512}
    s_sub_u32 s37, s36, s37
    s_add_u32 s37, s37, 3072
    v_lshlrev_b32 v14, 3, v1
    v_lshlrev_b32 v{Z1+14}, 16, v{Z1+14}
    """)
    def red(mt, n=2):
        X = GACC + 16*mt
        for h in range(n):
            p(f"v_pk_add_f32 {v(X+2*h,2)}, {v(X+2*h,2)}, {v(X+4+2*h,2)}")
            p(f"v_pk_add_f32 {v(X+8+2*h,2)}, {v(X+8+2*h,2)}, {v(X+12+2*h,2)}")
        for h in range(n):
            p(f"v_pk_add_f32 {v(X+2*h,2)}, {v(X+2*h,2)}, {v(X+8+2*h,2)}")
    p(f"v_mov_b32 v8, v{Z1+14}")
    for ft in range(7):
        red(ft)
        X = GACC + 16*ft
        for h in range(2):
            p(f"v_pk_add_f32 {v(X+2*h,2)}, {v(X+2*h,2)}, v[8:9] op_sel_hi:[1,0]")
            p(f"v_lshlrev_b32 v{10+2*h}, 16, v{Z1+2*ft+h}")
            p(f"v_and_b32 v{11+2*h}, 0xffff0000, v{Z1+2*ft+h}")
            p(f"v_pk_mul_f32 {v(X+2*h,2)}, {v(X+2*h,2)}, {v(10+2*h,2)}")
        Y = GACC + 16*(ft & ~1) + 4 + 2*(ft % 2)
        p(f"v_cvt_pk_bf16_f32 v{Y}, v{X}, v{X+1}")
        p(f"v_cvt_pk_bf16_f32 v{Y+1}, v{X+2}, v{X+3}")
        if ft % 2 == 1:
            p(f"buffer_store_dwordx4 {v(Y-2,4)}, v2, {W4}, s36 offen offset:{(ft//2)*1024} sc1", tag=("wr", ("U", 0), "private"))
        if ft == 6:
            p(f"buffer_store_dwordx2 {v(Y,2)}, v14, {W4}, s37 offen sc1", tag=("wr", ("U", 0), "private"))
    p("s_barrier")
    OACC = 64; A_B = 0; A_FO = 112; NRO = 8
    p(f"""
    v_bfe_u32 v8, v0, 4, 2
    s_lshl_b32 s14, s51, 7
    s_add_u32 s14, s14, {WS_FLAG + 12288}
    """)
    NW0 = opts.get("nw0", 5)
    for ks in range(4, NW0):
        p.extend(flat([wdma(ks)]))
    p("s_lshl_b32 s15, 1, s50")
    signal(p, SRD_W, 14, S_W, "o" + name, vt=48, keys=[("U", 0)], val="s15")
    stamp(p, 13)
    p(f"s_cmp_ge_u32 {s(S_PB)}, 28")
    p(f"s_cbranch_scc1 L_bump{name}")
    p.begin_side()
    p(f"""
    L_bump{name}:
    s_cmp_lg_u32 s2, 255
    s_cbranch_scc1 L_end{name}
    s_add_u32 s12, s100, 1
    s_add_u32 s13, s101, 1
    v_mov_b32 v4, s12
    v_mov_b32 v5, s13
    v_mov_b32 v6, {WS_EP}
    buffer_store_dwordx2 v[4:5], v6, {W4}, 0 offen sc1
    s_endpgm
    """)
    p.end_side()
    for ks in range(NW0, 7):
        p.extend(flat([wdma(ks)]))
    X1 = 16; GB = 24
    for nl in range(4):
        p(f"s_add_u32 s36, {s(S_W)}, {nl}")
        p(f"s_and_b32 s36, s36, 3")
        p(f"s_lshl_b32 s37, s33, 2")
        p(f"s_add_u32 s36, s36, s37")
        p(f"s_mul_i32 s36, s36, {28*1024}")
        p(f"s_mul_i32 s37, {s(S_W)}, 7168")
        p(f"s_add_u32 s36, s36, s37")
        p(f"s_add_u32 s{4+nl}, s36, {WS_U}")
        p(f"s_add_u32 s{8+nl}, s{4+nl}, 4096")
    p(f"""
    s_lshl_b32 s36, s33, 2
    s_add_u32 s36, s36, {s(S_W)}
    s_mul_i32 s37, s36, {14*1024}
    s_lshl_b32 s38, s32, 11
    s_add_u32 s37, s37, s38
    s_add_u32 s37, s37, {WS_X1}
    buffer_load_dwordx4 {v(X1,4)}, v2, {W4}, s37 offen sc1
    buffer_load_dwordx4 {v(X1+4,4)}, v2, {W4}, s37 offen offset:1024 sc1
    v_lshlrev_b32 v9, 4, v8
    s_lshl_b32 s38, s32, 8
    s_add_u32 s38, s38, {WS_MOD + 5*1792}
    """)
    for ct in range(4):
        p(f"buffer_load_dwordx4 {v(GB+4*ct,4)}, v9, {W4}, s38 offen offset:{64*ct} sc1")
    p(f"""
    v_lshrrev_b32 v3, 2, v1
    v_lshlrev_b32 v3, 7, v3
    v_bfe_u32 v10, v0, 3, 2
    v_lshl_add_u32 v3, v10, 5, v3
    v_and_b32 v10, 3, v0
    v_lshl_add_u32 v3, v10, 3, v3
    v_add_u32 v12, s53, v3
    v_xor_b32 v13, 32, v12
    v_xor_b32 v14, 64, v12
    v_xor_b32 v15, 0x60, v12
    v_add_u32 v56, 98304, v12
    v_add_u32 v57, 98304, v13
    v_add_u32 v58, 98304, v14
    v_add_u32 v59, 98304, v15
    v_mov_b32 v10, 0
    v_lshlrev_b32 v11, 3, v1
    s_lshl_b32 s15, s33, 7
    s_add_u32 s15, s15, {WS_FLAG + 12288}
    """)
    p(f"s_lshl_b32 s36, {s(S_W)}, 1")
    p("s_lshl_b32 s36, 3, s36")
    poll(p, SRD_W, 15, 10, 48, "o" + name, 56, "s36", mask="s36")
    stamp(p, 14)
    ul = [I(f"buffer_load_dwordx4 {a(A_B + 16*ks + 4*nl, 4)}, v2, {W4}, s{4 + nl + 4*(ks//4)} offen offset:{(ks % 4)*1024}{LD}")
          for ks in range(7) for nl in range(4)]
    ul[12:16] = [I(f"buffer_load_dwordx2 {a(A_B + 48 + 4*nl + 2*h, 2)}, v11, {W4}, s{4 + nl} offen offset:{3072 + 512*h}{LD}")
                 for nl in range(4) for h in range(2)]
    p.extend(ul[:20]); ul = ul[20:]
    def rd(f):
        ks, ct = f // 4, f % 4
        return [I(f"ds_read_b64_tr_b16 {a(A_FO + 4*(f % NRO) + 2*e, 2)}, v{(56 if ks < 4 else 12)+ct} offset:{WOFFS[ks] - (98304 if ks < 4 else 0) + e*2048}",
                  tag=("rd", (f"W{ks}", 0), "private")) for e in range(2)]
    PFO = 4
    YO = [0, 0, 4096, 32768]
    for f in range(PFO):
        p.extend(rd(f))
    for f in range(28):
        ks, ct = f // 4, f % 4
        nx = f + PFO
        for nl in range(4):
            D = v(OACC + 16*ct + 4*nl, 4)
            p(f"v_mfma_f32_16x16x32_bf16 {D}, {a(A_FO + 4*(f % NRO), 4)}, {a(A_B + 16*ks + 4*nl, 4)}, {D if ks else 0}")
            if nx < 28 and nl < 2:
                p(rd(nx)[nl])
            if nl == 2 and ul:
                p(ul.pop(0))
            if nl == 3 and f + 1 < 28:
                p(f"WAITFOR {a(A_FO + 4*((f+1) % NRO), 4)}, {a(A_B + 16*((f+1)//4), 16)}")
            if f == 20 and nl == 2:
                p("v_add_u32 v4, s53, v2")
                p("v_add_u32 v4, 98304, v4")
            if f >= 26 and nl:
                p(f"ds_write_b128 v4, {v(OACC + 16*(f-26) + 4*nl, 4)} offset:{YO[nl] + (f-26)*1024}", tag=("wr", ("Y", 0)))
    for nl in range(1, 4):
        p(f"s_sub_u32 s36, {s(S_W)}, {nl}")
        p(f"s_and_b32 s36, s36, 3")
        p(f"s_lshl_b32 s36, s36, 13")
        p(f"s_add_u32 s36, s36, 98304")
        p(f"v_add_u32 v{4+nl}, s36, v2")
    for ct in range(2, 4):
        for nl in range(1, 4):
            p(f"ds_write_b128 v4, {v(OACC + 16*ct + 4*nl, 4)} offset:{YO[nl] + ct*1024}", tag=("wr", ("Y", 0)))
    p("s_waitcnt lgkmcnt(0)")
    p("s_barrier")
    for ct in range(4):
        for nl in range(1, 4):
            p(f"ds_read_b128 {v(OACC + 16*ct + 4*nl, 4)}, v{4+nl} offset:{YO[nl] + ct*1024}", tag=("rd", ("Y", 0)))
    p(f"""
    v_and_b32 v3, 15, v0
    v_mul_u32_u24 v3, 896, v3
    v_lshl_add_u32 v3, v8, 4, v3
    s_lshl_b32 s36, s33, 2
    s_add_u32 s36, s36, {s(S_W)}
    s_mul_i32 s36, s36, {16*896}
    s_lshl_b32 s37, s32, 7
    s_add_u32 s36, s36, s37
    """)
    for ct in range(4):
        X = OACC + 16*ct
        for h in range(2):
            p(f"v_pk_add_f32 {v(X+2*h,2)}, {v(X+2*h,2)}, {v(X+4+2*h,2)}")
            p(f"v_pk_add_f32 {v(X+8+2*h,2)}, {v(X+8+2*h,2)}, {v(X+12+2*h,2)}")
        for h in range(2):
            p(f"v_pk_add_f32 {v(X+2*h,2)}, {v(X+2*h,2)}, {v(X+8+2*h,2)}")
            p(f"v_lshlrev_b32 v{10}, 16, v{X1+2*ct+h}")
            p(f"v_and_b32 v{11}, 0xffff0000, v{X1+2*ct+h}")
            p(f"v_pk_fma_f32 {v(X+2*h,2)}, {v(X+2*h,2)}, {v(GB+4*ct+2*h,2)}, v[10:11]")
        k, odd = ct // 2, ct % 2
        O = 40 + 4*k + 2*odd
        p(f"v_cvt_pk_bf16_f32 v{O}, v{X}, v{X+1}")
        p(f"v_cvt_pk_bf16_f32 v{O+1}, v{X+2}, v{X+3}")
        if odd:
            O = 40 + 4*k
            p(f"v_permlane32_swap_b32 v{O}, v{O+2}")
            p(f"v_permlane32_swap_b32 v{O+1}, v{O+3}")
            p(f"v_permlane16_swap_b32 v{O}, v{O+2}")
            p(f"v_permlane16_swap_b32 v{O+1}, v{O+3}")
            p(f"buffer_store_dwordx4 {v(O,4)}, v3, {s(SRD_Q,4)}, s36 offen offset:{64*k}{opts.get('of', '')}")
    k_prep.STAMP["on"] = son
    if opts.get("amp"):
        a0, a1, mul = opts["amp"]
        p("s_waitcnt vmcnt(0)")
        stamp(p, 15)
        p(f"""
        s_sub_u32 s14, s{61+2*a1}, s{3 if opts.get("t0") else 61+2*a0}
        s_mul_i32 s14, s14, {mul}
        L_amp{name}:
        s_memrealtime s[98:99]
        s_waitcnt lgkmcnt(0)
        s_sub_u32 s15, s98, s91
        s_cmp_lt_u32 s15, s14
        s_cbranch_scc1 L_amp{name}
        """)
        k_prep.STAMP["on"] = False
    if opts.get("diag"):
        p("s_waitcnt vmcnt(0)")
        stamp(p, 15)
        p("v_mov_b32 v1, 0")
        p("s_mov_b64 exec, 1")
        p("s_not_b32 s14, s61")
        p("v_mov_b32 v2, s14")
        p(f"buffer_atomic_umax v2, v1, {s(SRD_D,4)}, 0 offen offset:8 sc1")
        for k, st in enumerate((1, 2, 3, 4, 5, 7, 10, 11, 12, 13, 15)):
            p(f"v_mov_b32 v3, s{61+2*st}")
            p(f"buffer_atomic_umax v3, v1, {s(SRD_D,4)}, 0 offen offset:{12+4*k} sc1")
            p("s_nop 1")
        p("s_mov_b64 exec, -1")
        k_prep.STAMP["on"] = False
    stamp_dump(p, opts.get("slot", 1), NSTAMP, SRD_W, S_W)
    p(f"L_end{name}:")
    p("s_endpgm")
    if opts.get("gabl") or opts.get("oabl"):
        p.check_lds = lambda: None
    p.finalize()
    return p


def gen_mega(opts=None):
    p0 = build_mega(opts or {})
    if (opts or {}).get("plain"):
        return p0, "; @launch grid=(256,1,1) block=(256,1,1) lds=163840\n"
    return p0, f"; @launch kernel={p0.name} grid=(256,1,1) block=(256,1,1) lds=163840\n"
```

```python
import sys
sys.path.insert(0, "work")
from asmlib import *
from layout import *
from k_prep import srd, f2u, stamp, stamp_dump, code_prefetch, signal, poll
from k_red import emit_red_pre, emit_red

SLOT = 16640
V_WDMA = 4
V_WRD = 8
V_LIN = 12
V_XW = 13; V_XR = 14; V_TMP = 15
V_H = 16
V_O = 128
V_S = [96, 112]
V_NEGM = 80
V_P = [64, 72]
V_E = 56
V_KRD = 40
V_VRD = 48
V_KDMA = 32
V_VDMA = 36
V_L = 50
V_TS = 52
V_T0 = 54; V_T1 = 55
V_T2 = 30; V_T3 = 31
A_Q = 0
A_F = 64
NR = 16
SRD_K, SRD_V, SRD_W, SRD_Q, SRD_O = 16, 20, 24, 40, 44
S_W, S_J, S_PB = 28, 29, 30
S_KOFF, S_VOFF, S_M0K, S_M0V, S_CNT, S_THR = 32, 33, 34, 35, 36, 37
S_WOFF, S_WBASE, S_HD, S_QT = 38, 39, 48, 49
MODL = 9 * SLOT
LDS_BYTES = 9 * SLOT + 8192
A_HP = 128


def make_plan(gJ=24, gB=52, d0=3, e_first=2, e_last=58):
    pl = ["m"] * 64
    for k in range(8):
        pl[(d0 + 8 * k) % 64] = "d"
    assert pl[gJ] == "m" and pl[gB] == "m"
    pl[gJ] = "j"; pl[gB] = "B"
    es = []
    for r in range(16):
        g = gJ + e_first + round(r * (e_last - e_first) / 15)
        while pl[g % 64] != "m":
            g += -1 if r == 15 else 1
        pl[g % 64] = "e"
        es.append(g % 64)
    for i in range(10):
        g = es[(i * 16) // 10] - 1
        while pl[g % 64] != "m":
            g -= 1
        pl[g % 64] = "t"
    return "".join(pl)


def frag(f):
    return A_F + 4 * (f % NR)


def slot_of(kind, t):
    return (t % 4) + (4 if kind == "K" else 0)


class Attn:
    def __init__(self, opts):
        self.o = opts
        self.sxm = opts.get("sxm", True)
        self.plan = opts.get("plan", make_plan(gJ=31, gB=52, d0=1, e_first=5, e_last=58) if self.sxm else make_plan())
        pl = self.plan
        assert len(pl) == 64
        assert pl.count("e") + pl.count("E") == 16
        assert pl.count("d") == 8 and pl.count("B") == 1 and pl.count("j") == 1
        nds = pl.count("m") + pl.count("E") + 2 * pl.count("t")
        assert nds == 48, nds
        self.gB = pl.index("B"); self.gJ = pl.index("j")
        dsg = []
        for k in range(1, 65):
            g = (self.gB + k) % 64
            if pl[g] in "mE": dsg.append(g)
            if pl[g] == "t": dsg += [g, g]
        ops = [(f, 0) for f in range(16)] + [(f, e) for f in range(16, 32) for e in range(2)]
        self.ds = {}
        leads = []
        for g, (f, e) in zip(dsg, ops):
            nxt = g > self.gB
            assert not (nxt and f >= 16)
            self.ds.setdefault(g, []).append((f, e, nxt))
            leads.append(2 * f + (64 if nxt else 0) - g)
        assert max(leads) < 2 * NR - 2
        self.va = {}
        exps, rest = self.softmax_parts(0)
        done = set()
        ie = ir = 0
        for k in range(1, 64):
            g = (self.gJ + k) % 64
            add = []
            if pl[g] in "eE":
                self.va.setdefault(g, []).append(("e", ie)); add = [ie]; ie += 1
            elif pl[g] == "m":
                if ir < len(rest) and all(d in done for d in rest[ir][1]):
                    self.va.setdefault(g, []).append(("r", ir)); ir += 1
            done.update(add)
        assert ie == 16 and ir == len(rest), (ir, len(rest))
        pos = lambda g: (g - self.gJ) % 64
        epos = {i: pos(g) for g, l in self.va.items() for k, i in l if k == "e"}
        for g, l in self.va.items():
            for k, i in l:
                if k == "r":
                    for d in rest[i][1]:
                        assert d + 8 > 15 or pos(g) < epos[d + 8], "E ring overrun"
        self.leads = (min(leads), max(leads))
        self.nafter = sum(1 for g in range(64) if pl[g] == "d" and g > self.gB)

    @staticmethod
    def key(kind, t):
        return (slot_of(kind, t), 100 + t)

    def kread(self, tfn, c, f):
        kt, sx = (f % 2, f // 2) if self.sxm else (f // 8, f % 8)
        return I(f"ds_read_b128 {a(frag(f),4)}, {v(V_KRD + sx % 4)} offset:{(c % 4)*SLOT + kt*8192 + (sx//4)*256}",
                 tag=("rd", lambda it: self.key("K", tfn(it))))

    def vread(self, tfn, c, f, e):
        t = f - 16
        return I(f"ds_read_b64_tr_b16 {a(frag(f)+2*e,2)}, {v(V_VRD + t % 2)} offset:{(c % 4)*SLOT + e*2048 + 64*(t//2)}",
                 tag=("rd", lambda it: self.key("V", tfn(it))))

    def dma(self, kind, tfn, jj):
        tag = ("dma", lambda it: self.key(kind, tfn(it)))
        if kind == "K":
            return I(f"buffer_load_dwordx4 {v(V_KDMA+jj)}, {s(SRD_K,4)}, {s(S_KOFF)} offen offset:{jj*1024}{self.o.get('kvf', ' nt')} lds", tag=tag)
        return I(f"buffer_load_dwordx4 {v(V_VDMA+jj)}, {s(SRD_V,4)}, {s(S_VOFF)} offen offset:{jj*1024}{self.o.get('kvf', ' nt')} lds", tag=tag)

    def m0(self, kind, c):
        if kind == "K":
            return I(f"s_add_u32 m0, {s(S_M0K)}, {slot_of('K', c)*SLOT}")
        return I(f"s_add_u32 m0, {s(S_M0V)}, {slot_of('V', c)*SLOT}")

    def adv(self, kind):
        r = S_KOFF if kind == "K" else S_VOFF
        return I(f"s_add_u32 {s(r)}, {s(r)}, 16384")

    def wfill(self, which, st, hf):
        if which == "Q":
            pair = st % 4
            off = ((st + 7 * hf) % 14) * 32 * 8192 + hf * 512
            srdw = SRD_Q
            gen = st
        else:
            pair = (st + 2) % 4
            off = ((st + 8 * hf) % 16) * 32 * 896 + hf * 448
            srdw = SRD_O
            gen = 200 + st
        slot = 2 * pair + hf
        pre = [I(f"s_add_u32 m0, {s(S_M0V)}, {slot*SLOT}"), I(f"s_add_u32 {s(S_WOFF)}, {s(S_WBASE)}, {off}")]
        d = [I(f"buffer_load_dwordx4 {v(V_WDMA+jj)}, {s(srdw,4)}, {s(S_WOFF)} offen offset:{jj*1024} lds",
               tag=("dma", (slot, gen))) for jj in range(4)]
        return pre, d

    OPAIR = [2, 3, 0]
    WDR = [44, 45, 46, 47, 28, 29, 95]

    def okeys(self, st):
        pr = self.OPAIR[st % 3]
        return [(2 * pr, 200 + st), (2 * pr + 1, 200 + st)]

    def ofill(self, st, hf):
        pr = self.OPAIR[st % 3]
        pre = [I(f"s_add_u32 m0, s59, {2*pr*SLOT + hf*4096}"), I(f"s_add_u32 {s(S_WOFF)}, {s(S_WBASE)}, {st*28672 + hf*4096}")]
        d = [I(f"buffer_load_dwordx4 v{self.WDR[m]}, {s(SRD_O,4)}, {s(S_WOFF)} offen offset:{(m % 4)*1024} lds",
               tag=("dma", self.okeys(st))) for m in range(4*hf, min(7, 4*hf + 4))]
        return pre, d

    def wkeys(self, which, st):
        pair = st % 4 if which == "Q" else (st + 2) % 4
        gen = st if which == "Q" else 200 + st
        return [(2 * pair, gen), (2 * pair + 1, gen)]

    def wread(self, which, st, t, e, f):
        pair = st % 4 if which == "Q" else (st + 2) % 4
        return I(f"ds_read_b64_tr_b16 {a(frag(f)+2*e,2)}, {v(V_WRD + 2*(pair//2) + t % 2)} "
                 f"offset:{(pair % 2)*2*SLOT + e*2048 + 64*(t//2)}", tag=("rd", self.wkeys(which, st)))

    def kvfill(self, kind, t, jjs=range(4)):
        pre = [self.m0(kind, t)]
        d = [self.dma(kind, (lambda t: lambda it: t)(t), jj) for jj in jjs]
        post = [self.adv(kind)] if 3 in jjs else []
        return pre, d, post

    def softmax_parts(self, par):
        S = V_S[par]; P = V_P[par]
        exps = [I(f"v_exp_f32 {v(V_E + r % 8)}, {v(S + r)}") for r in range(16)]
        rest = []
        rest.append((I(f"v_add_f32 {v(V_L)}, {v(V_L)}, {v(V_TS)}"), [], True))
        rest.append((I(f"v_add_f32 {v(V_L+1)}, {v(V_L+1)}, {v(V_TS+1)}"), [], True))
        for q in range(16):
            kt, qt, i = q // 8, (q // 4) % 2, q % 4
            ts = v(V_TS + qt)
            e = v(V_E + q % 8)
            if kt == 0 and i == 0:
                pass
            elif kt == 0 and i == 1:
                rest.append((I(f"v_add_f32 {ts}, {v(V_E + (q-1) % 8)}, {e}"), [q-1, q], False))
            else:
                rest.append((I(f"v_add_f32 {ts}, {ts}, {e}"), [q], False))
            if q == 15:
                rest.append((I(f"v_add_f32 {v(V_T2)}, {v(V_TS)}, {v(V_TS+1)}"), [q], False))
                rest.append((I(f"v_cmp_lt_f32 vcc, {s(S_THR)}, {v(V_T2)}"), [q], False))
            if q % 2 == 1:
                rest.append((I(f"v_cvt_pk_bf16_f32 {v(P + 4*qt + 2*kt + i // 2)}, {v(V_E + (q-1) % 8)}, {e}"), [q-1, q], False))
        return exps, rest

    def softmax_linear(self, par):
        exps, rest = self.softmax_parts(par)
        out = []
        ir = 2
        for r in range(16):
            out.append(exps[r])
            while ir < len(rest) and max(rest[ir][1]) < r:
                out.append(rest[ir][0]); ir += 1
        out += [x[0] for x in rest[ir:]]
        return out

    def body(self, p, c, A, aval=None, lid=None, extra_scalar=None, extra_valu=None):
        pl = self.plan
        par = c % 2
        gB, gJ = self.gB, self.gJ
        first = aval == -1
        do_pv = not first
        do_qk = aval is None or aval + 1 <= 63
        next_k = aval is None or aval + 2 <= 63
        SC = [[] for _ in range(64)]
        VE = [[] for _ in range(64)]
        cur = self.softmax_parts(par)
        nxt = self.softmax_parts(1 - par)
        late = []
        for g in range(64):
            for (f, e, nx) in self.ds.get(g, []):
                if nx:
                    if next_k:
                        VE[g].append(self.kread(lambda it: A(it)+2, c+2, f))
                elif f < 16:
                    if do_qk:
                        VE[g].append(self.kread(lambda it: A(it)+1, c+1, f))
                else:
                    if do_pv:
                        VE[g].append(self.vread(A, c, f, e))
            for kind, idx in self.va.get(g, []):
                if g < gJ:
                    if do_pv:
                        VE[g].append(cur[0][idx] if kind == "e" else cur[1][idx][0])
                else:
                    if kind == "r" and nxt[1][idx][2]:
                        if do_pv:
                            VE[g].append(nxt[1][idx][0])
                    elif do_qk:
                        x = nxt[0][idx] if kind == "e" else nxt[1][idx][0]
                        if first and g < 32:
                            late.append(x)
                        else:
                            VE[g].append(x)
        if do_pv:
            VE[gJ].append(I(f"s_cbranch_vccnz L_fb{lid}"))
            VE[gJ].append(I(f"L_ret{lid}:"))
        def bartags(it):
            av = A(it)
            ks = []
            if av + 2 <= 63: ks.append(self.key("K", av + 2))
            if av + 1 <= 63: ks.append(self.key("V", av + 1))
            if av == 63: ks += self.okeys(0)
            return ks
        VE[gB].append(I("WAITTAG", tag=bartags))
        VE[gB].append(I("s_barrier"))
        for g, x in (extra_valu or []):
            VE[g].append(x)
        dg = [g for g in range(64) if pl[g] == "d"]
        after = [g for g in dg if g > gB]
        before = [g for g in dg if g < gB]
        def free_sc(g, step):
            while pl[g % 64] in "dBj" or SC[g % 64]:
                g += step
            assert 0 <= g < 64
            return g
        seq = [("V", 3, jj) for jj in range(4)] + [("K", 5, jj) for jj in range(4)]
        for i, g in enumerate(after + before):
            kind, off, jj = seq[i]
            if g < gB:
                off -= 1
            if aval is not None and aval + off > 63:
                t = aval + off
                m = {("K", 65): (0, 0), ("V", 64): (0, 1), ("V", 65): (1, 0), ("K", 67): (1, 1)}.get((kind, t))
                if m is None:
                    continue
                pre, d = self.ofill(m[0], m[1])
                if jj >= len(d):
                    continue
                VE[g].append(d[jj])
                if jj == 0:
                    for x in pre:
                        SC[free_sc(g - 1, -1)].append(x)
                continue
            VE[g].append(self.dma(kind, (lambda off: lambda it: A(it) + off)(off), jj))
            if jj == 0:
                SC[free_sc(g - 1, -1)].append(self.m0(kind, c + off))
            if jj == 3:
                SC[free_sc(g + 1, 1)].append(self.adv(kind))
        for g, x in (extra_scalar or []):
            SC[free_sc(g, -1)].append(x)
        WG = 2
        for f0 in range(0, 32, WG):
            fs = list(range(f0, f0 + WG))
            if f0 == 0:
                if not next_k: continue
                g = free_sc(63, -1)
            else:
                if (f0 < 16 and not do_qk) or (f0 >= 16 and not do_pv): continue
                g = free_sc(2 * f0 - 1, -1)
            SC[g].append(I("WAITFOR " + ", ".join(a(frag(f), 4) for f in fs)))
        for g in range(64):
            f, qt = g // 2, g % 2
            if self.o.get("gray") and f >= 16 and f % 2:
                qt = 1 - qt
            fr = a(frag(f), 4)
            if f < 16 and do_qk:
                Sx = V_S[1-par]
                kt, sx = (f % 2, f // 2) if self.sxm else (f // 8, f % 8)
                if self.sxm and kt: qt = 1 - qt
                D = v(Sx + 8*kt + 4*qt, 4)
                C = D if sx else ("0" if first else v(V_NEGM + 4*qt, 4))
                p(f"v_mfma_f32_16x16x32_bf16 {D}, {fr}, {a(A_Q + 8*sx + 4*qt, 4)}, {C}")
            if f >= 16 and do_pv:
                O = v(V_O + 8*(f-16) + 4*qt, 4)
                C = "0" if aval == 0 else O
                p(f"v_mfma_f32_16x16x32_bf16 {O}, {fr}, {v(V_P[par] + 4*qt, 4)}, {C}")
            for x in SC[g] + VE[g]:
                p(x)
            if g == 31 and first:
                S0 = V_S[1-par]
                self.tile_max(p, S0)
                self.apply_delta(p, S0, None, init=True)
                for x in late:
                    p(x)

    def tile_max(self, p, S):
        for qt in range(2):
            T = V_T0 + qt
            rs = [S + 4*qt + i for i in range(4)] + [S + 8 + 4*qt + i for i in range(4)]
            p(f"v_max3_f32 {v(T)}, {v(rs[0])}, {v(rs[1])}, {v(rs[2])}")
            p(f"v_max3_f32 {v(T)}, {v(T)}, {v(rs[3])}, {v(rs[4])}")
            p(f"v_max3_f32 {v(T)}, {v(T)}, {v(rs[5])}, {v(rs[6])}")
            p(f"v_max_f32 {v(T)}, {v(T)}, {v(rs[7])}")
            self.xreduce(p, T, "v_max_f32")

    def xreduce(self, p, T, op):
        p(f"v_mov_b32 {v(V_T3)}, {v(T)}")
        p(f"v_permlane32_swap_b32 {v(T)}, {v(V_T3)}")
        p(f"{op} {v(T)}, {v(T)}, {v(V_T3)}")
        p(f"v_mov_b32 {v(V_T3)}, {v(T)}")
        p(f"v_permlane16_swap_b32 {v(T)}, {v(V_T3)}")
        p(f"{op} {v(T)}, {v(T)}, {v(V_T3)}")

    def apply_delta(self, p, S, Sn, init=False):
        T = lambda r: v(V_T0 + (r // 4) % 2)
        for r in range(8):
            src = "0" if init else v(V_NEGM + r)
            p(f"v_sub_f32 {v(V_NEGM+r)}, {src}, {T(r)}")
        for r in range(16):
            p(f"v_sub_f32 {v(S+r)}, {v(S+r)}, {T(r)}")
        if Sn is not None:
            for r in range(16):
                p(f"v_sub_f32 {v(Sn+r)}, {v(Sn+r)}, {T(r)}")

    def fallback(self, p, par, lid, has_next):
        p.begin_side()
        p(f"L_fb{lid}:")
        p("s_nop 15")
        S = V_S[par]; Sn = V_S[1-par]
        self.tile_max(p, S)
        for qt in range(2):
            p(f"v_max_f32 {v(V_T0+qt)}, 0, {v(V_T0+qt)}")
        self.apply_delta(p, S, Sn if has_next else None)
        for qt in range(2):
            p(f"v_sub_f32 {v(V_T0+qt)}, 0, {v(V_T0+qt)}")
            p(f"v_exp_f32 {v(V_T0+qt)}, {v(V_T0+qt)}")
            p(f"v_mul_f32 {v(V_L+qt)}, {v(V_L+qt)}, {v(V_T0+qt)}")
        for r in range(128):
            p(f"v_mul_f32 {v(V_O+r)}, {v(V_O+r)}, {v(V_T0 + (r // 4) % 2)}")
        for x in self.softmax_linear(par):
            p(x)
        p("s_nop 1")
        p(f"s_branch L_ret{lid}")
        p.end_side()

    def gemm_phase(self, p, which, nst, nm, mfma_fn, fills, bartags, valu, xds):
        LEAD = self.o.get("lead", 18)
        SP = self.o.get("sp", 3)
        G = 2 * nm
        N = nst * G
        gb = G - LEAD - 1
        kindg = ["m"] * (N + 64)
        SC = [[] for _ in range(N + 64)]
        VE = [[] for _ in range(N + 64)]
        tail = []
        for i in range(nst):
            bt = bartags(i)
            if bt is not None:
                g = i * G + gb
                kindg[g] = "B"
                VE[g] = [I("WAITTAG", tag=bt), I("s_barrier")]
        REL = self.o.get("rel", False)
        for i in range(nst):
            k = 0
            if REL and i > 0:
                kindg[i * G + 1] = "B"
                VE[i * G + 1] = [I("s_barrier")]
            rpos = [g for g in (4, 6, 8, 10, 13, 15, 21, 23)]
            for pre, d, post in fills(i):
                for jj, x in enumerate(d):
                    g = i * G + (rpos[k] if REL else gb + 3 + k * SP)
                    k += 1
                    if g >= N:
                        if jj == 0: tail += pre
                        tail.append(x)
                        if jj == len(d) - 1: tail += post
                        continue
                    assert kindg[g] == "m" and kindg[g-1] == "m" and (jj or kindg[g-2] == "m"), (i, g)
                    kindg[g] = "d"
                    VE[g] = [x]
                    if jj == 0:
                        for kk, y in enumerate(pre):
                            SC[g - len(pre) + kk].append(y)
                    if jj == len(d) - 1:
                        if g + 1 < N: SC[g + 1] += post
                        else: tail += post
        dsq = []
        for i in range(nst):
            for t in range(nm):
                f = i * nm + t
                for e in range(2):
                    dsq.append((i * G + 2 * t + e - LEAD, self.wread(which, i, t, e, f), i * G + 2 * t))
        for i in range(nst):
            xs = xds(i)
            lo = max(0, (i - 1) * G + gb + 1); hi = i * G + gb - 4
            for k, x in enumerate(xs):
                g = lo + (k * (hi - lo)) // len(xs)
                if x.kind == "ds_write":
                    while kindg[g] != "m": g += 1
                    kindg[g] = "x"
                    VE[g] = [x]
                else:
                    dsq.append((g, x, i * G + gb + 6))
        dsq.sort(key=lambda z: z[0])
        for (g, x, c) in dsq:
            if g < 0: p(x)
        dsq = [z for z in dsq if z[0] >= 0]
        nds = [0] * (N + 64)
        q = 0
        minlead = 99
        for g in range(N):
            if kindg[g] != "m":
                continue
            while q < len(dsq) and dsq[q][0] <= g and nds[g] < 2:
                VE[g].append(dsq[q][1]); nds[g] += 1
                minlead = min(minlead, dsq[q][2] - g)
                q += 1
        assert q == len(dsq)
        assert minlead >= 7, minlead
        for i in range(nst):
            ops = valu(i)
            slots = []
            for g in range(i * G, (i + 1) * G):
                if kindg[g] == "m":
                    slots += [g] * (2 - nds[g])
            mg = [g for g in range(i * G, (i + 1) * G) if kindg[g] == "m"]
            k = 0
            while len(slots) < len(ops):
                slots.append(mg[(k * 7) % len(mg)]); k += 1
            slots.sort()
            for k, x in enumerate(ops):
                VE[slots[(k * len(slots)) // len(ops)]].append(x)
        for f0 in range(2, nst * nm, 2):
            g = 2 * f0 - 1
            while kindg[g] in "dB" or SC[g]:
                g -= 1
            SC[g].append(I("WAITFOR " + ", ".join(a(frag(f), 4) for f in (f0, f0 + 1))))
        for g in range(N):
            i, t, qt = g // G, (g % G) // 2, g % 2
            p(mfma_fn(i, t, qt, a(frag(i * nm + t), 4)))
            abl = self.o.get("gabl", "")
            for x in SC[g] + VE[g]:
                if "D" in abl and x.kind == "dma": continue
                if "B" in abl and x.kind == "barrier": continue
                if "R" in abl and x.kind == "ds_read": continue
                if "W" in abl and x.kind == "ds_write": continue
                if "V" in abl and x.kind == "valu" and (x.mn == "v_mul_f32" or "cvt" in x.mn): continue
                p(x)
        for x in tail:
            p(x)


def gen_attn(opts=None):
    opts = opts or {}
    name = opts.get("name", "attn_kernel")
    p = Prog(name)
    at = Attn(opts)
    thr = opts.get("thr", 0x5f800000)
    p(f"""
    s_cmp_ge_u32 s2, 256
    s_cbranch_scc1 L_end{name}
    s_load_dwordx8 s[4:11], s[0:1], 8
    s_load_dwordx2 s[12:13], s[0:1], 112
    v_lshrrev_b32 v1, 6, v0
    v_readfirstlane_b32 {s(S_W)}, v1
    s_and_b32 {s(S_J)}, s2, 7
    s_lshr_b32 {s(S_PB)}, s2, 3
    v_and_b32 v1, 63, v0
    v_lshlrev_b32 {v(V_LIN)}, 4, v1
    s_lshr_b32 {s(S_HD)}, {s(S_W)}, 1
    s_and_b32 s14, {s(S_W)}, 1
    s_lshl_b32 {s(S_QT)}, {s(S_PB)}, 2
    s_lshl_b32 s14, s14, 1
    s_add_u32 {s(S_QT)}, {s(S_QT)}, s14
    s_waitcnt lgkmcnt(0)
    """)
    stamp(p, 0)
    srd(p, SRD_W, 12, 13, WS_USED)
    srd(p, SRD_Q, 8, 9, 448 * 8192)
    def extras():
        if opts.get("touch", True):
            p(f"""
            v_lshrrev_b32 v1, {4 if opts.get("t64", False) else 3}, v0
            v_min_u32 v1, 13, v1
            v_lshlrev_b32 v1, 13, v1
            v_and_b32 v2, {15 if opts.get("t64", False) else 7}, v0
            v_lshl_add_u32 v1, v2, {6 if opts.get("t64", False) else 7}, v1
            s_mul_i32 s53, {s(S_PB)}, {14*8192}
            s_add_u32 s53, s53, {s(S_WBASE)}
            buffer_load_dword v{V_O+127}, v1, {s(SRD_Q,4)}, s53 offen
            """)
        if opts.get("cpf", True):
            code_prefetch(p, name, f"L_end{name}", 12, 1, V_O + 126)
    p(f"s_lshl_b32 {s(S_WBASE)}, {s(S_J)}, 10")
    extras()
    V_MRD = 3
    p(f"""
    s_mul_i32 s14, {s(S_QT)}, {14*1024}
    s_mul_i32 s15, {s(S_HD)}, {7*1024}
    s_add_u32 s14, s14, s15
    s_add_u32 s14, s14, {WS_XN}
    s_add_u32 s15, s14, {14*1024}
    s_add_u32 s50, s14, 4096
    s_add_u32 s51, s15, 4096
    s_lshl_b32 s52, {s(S_W)}, 11
    s_add_u32 s52, s52, {MODL}
    s_mov_b32 m0, s52
    s_mul_i32 s53, {s(S_HD)}, 896
    s_add_u32 s54, s53, {WS_MOD + 1792 - 1024}
    """)
    mt = ("dma", ("M", 0), "private")
    p(f"buffer_load_dwordx4 {v(V_LIN)}, {s(SRD_W,4)}, s53 offen offset:{WS_MOD} lds", tag=mt)
    p(f"buffer_load_dwordx4 {v(V_LIN)}, {s(SRD_W,4)}, s54 offen offset:1024 lds", tag=mt)
    for ks in range(7):
        for qt in range(2):
            so = (14 + qt) if ks < 4 else (50 + qt)
            p(f"buffer_load_dwordx4 {v(V_H+8*ks+4*qt,4)}, {v(V_LIN)}, {s(SRD_W,4)}, s{so} offen offset:{(ks % 4)*1024}")
    p(f"""
    s_mul_i32 {s(S_M0V)}, {s(S_W)}, 4160
    s_lshl_b32 {s(S_M0K)}, {s(S_W)}, 12
    s_lshl_b32 {s(S_WBASE)}, {s(S_J)}, 10
    v_bfe_u32 v1, v0, 5, 1              ; hh
    v_and_b32 v2, 31, v0
    v_lshlrev_b32 {v(V_TMP)}, 1, v1
    v_xor_b32 v2, v2, {v(V_TMP)}        ; chunk
    v_lshlrev_b32 v1, 3, v1
    v_add_u32 v1, {s(S_W)}, v1          ; 8hh + w
    v_lshlrev_b32 v1, 13, v1
    v_lshl_add_u32 {v(V_WDMA)}, v2, 4, v1
    """)
    for jj in range(1, 4):
        p(f"v_add_u32 {v(V_WDMA+jj)}, {(16*(jj % 2) + 4*(jj//2))*8192 - jj*1024}, {v(V_WDMA)}")
    def emit_wfill(which, st):
        for hf in range(2):
            pre, d = at.wfill(which, st, hf)
            p.extend(pre); p.extend(d)
    emit_wfill("Q", 0)
    p(f"""
    v_bfe_u32 v1, v0, 2, 2
    v_mul_u32_u24 v1, 4160, v1
    v_and_b32 v2, 3, v0
    v_lshl_add_u32 v1, v2, 3, v1
    v_bfe_u32 v2, v0, 4, 2
    v_lshl_add_u32 v1, v2, 9, v1
    v_lshlrev_b32 v{V_MRD}, 5, v2
    v_add_u32 v{V_MRD}, s52, v{V_MRD}
    v_bfe_u32 v2, v0, 4, 1
    v_lshl_add_u32 {v(V_TMP)}, v2, 5, v1
    s_mul_i32 s14, {s(S_HD)}, {SLOT}
    v_add_u32 {v(V_WRD)}, s14, {v(V_TMP)}
    v_xor_b32 {v(V_WRD+1)}, 32, {v(V_WRD)}
    v_add_u32 {v(V_WRD+2)}, {4*SLOT}, {v(V_WRD)}
    v_add_u32 {v(V_WRD+3)}, {4*SLOT}, {v(V_WRD+1)}
    s_lshl_b32 s14, {s(S_W)}, 12
    s_add_u32 s14, s14, {8*SLOT}
    v_add_u32 {v(V_XW)}, s14, {v(V_LIN)}
    v_xor_b32 {v(V_XR)}, 0x2000, {v(V_XW)}
    """)
    MB = 72
    TM = 120
    def modreads(ks):
        M = MB + 16 * (ks % 3)
        rt = ("rd", ("M", 0), "private")
        return [I(f"ds_read_b128 {v(M + 8*k + 4*h, 4)}, v{V_MRD} offset:{1024*(1-k) + 128*ks + 16*h}", tag=rt)
                for k in range(2) for h in range(2)]
    def modulate(ks, pk):
        M = MB + 16 * (ks % 3)
        out = []
        for qt in range(2):
            for d in range(4):
                x = V_H + 8*ks + 4*qt + d
                t = TM + 2 * d
                out.append(I(f"v_lshlrev_b32 v{t}, 16, v{x}"))
                out.append(I(f"v_and_b32 v{t+1}, 0xffff0000, v{x}"))
                if pk:
                    out.append(I(f"v_pk_fma_f32 {v(t,2)}, {v(t,2)}, {v(M+2*d,2)}, {v(M+8+2*d,2)}"))
                else:
                    out.append(I(f"v_fma_f32 v{t}, v{t}, v{M+2*d}, v{M+8+2*d}"))
                    out.append(I(f"v_fma_f32 v{t+1}, v{t+1}, v{M+2*d+1}, v{M+8+2*d+1}"))
                out.append(I(f"v_cvt_pk_bf16_f32 v{x}, v{t}, v{t+1}"))
        return out
    NUP = opts.get("nup", 4)
    stamp(p, 1)
    p(I("WAITTAG", tag=[("M", 0)]))
    stamp(p, 2)
    p.extend(modreads(0)); p.extend(modreads(1)); p.extend(modreads(2))
    assert NUP >= 4
    for ks in range(NUP):
        p.extend(modulate(ks, True))
        if ks + 3 < 7:
            p.extend(modreads(ks + 3))
        if ks == 0:
            emit_wfill("Q", 1)
        if ks == 2:
            emit_wfill("Q", 2)
    stamp(p, 3)
    p(I("WAITTAG", tag=at.wkeys("Q", 0)))
    p("s_barrier")
    stamp(p, 4)
    srd(p, SRD_O, 10, 11, 4096 * 896)
    p(f"""
    s_lshl_b32 s14, {s(S_J)}, 20
    s_add_u32 {s(SRD_K)}, s4, s14
    s_addc_u32 {s(SRD_K+1)}, s5, 0
    s_mov_b32 {s(SRD_K+2)}, 0x100000
    s_mov_b32 {s(SRD_K+3)}, 0x20000
    s_add_u32 {s(SRD_V)}, s6, s14
    s_addc_u32 {s(SRD_V+1)}, s7, 0
    s_mov_b32 {s(SRD_V+2)}, 0x100000
    s_mov_b32 {s(SRD_V+3)}, 0x20000
    s_mov_b32 {s(S_KOFF)}, 0
    s_mov_b32 {s(S_VOFF)}, 0
    s_mov_b32 {s(S_THR)}, {thr}
    s_lshl_b32 s15, {s(S_W)}, 3
    """)
    setup = f"""
    v_bfe_u32 v1, v0, 5, 1
    v_and_b32 v2, 31, v0
    v_add_u32 v16, s15, v1
    v_lshlrev_b32 v17, 9, v16
    v_and_b32 v16, 15, v16
    v_xor_b32 v16, v16, v2
    v_lshl_add_u32 {v(V_KDMA)}, v16, 4, v17
    v_xor_b32 {v(V_KDMA+1)}, 32, {v(V_KDMA)}
    v_xor_b32 {v(V_KDMA+2)}, 64, {v(V_KDMA)}
    v_xor_b32 {v(V_KDMA+3)}, 96, {v(V_KDMA)}
    v_lshlrev_b32 v16, 2, v1
    v_add_u32 v16, {s(S_W)}, v16
    v_lshlrev_b32 v16, 9, v16
    v_lshlrev_b32 v17, 1, v1
    v_xor_b32 v17, v17, v2
    v_lshl_add_u32 {v(V_VDMA)}, v17, 4, v16
    v_add_u32 {v(V_VDMA+1)}, 3072, {v(V_VDMA)}
    v_add_u32 {v(V_VDMA+2)}, 6144, {v(V_VDMA)}
    v_add_u32 {v(V_VDMA+3)}, 9216, {v(V_VDMA)}
    v_and_b32 v16, 15, v0
    v_bfe_u32 v17, v0, 4, 2
    v_xor_b32 v17, v17, v16
    v_lshlrev_b32 v16, 9, v16
    v_add_u32 v16, {4*SLOT}, v16
    v_lshl_add_u32 {v(V_KRD)}, v17, 4, v16
    v_xor_b32 {v(V_KRD+1)}, 64, {v(V_KRD)}
    v_xor_b32 {v(V_KRD+2)}, 0x80, {v(V_KRD)}
    v_xor_b32 {v(V_KRD+3)}, 0xc0, {v(V_KRD)}
    v_mov_b32 {v(V_VRD)}, {v(V_TMP)}
    v_xor_b32 {v(V_VRD+1)}, 32, {v(V_TMP)}
    v_mov_b32 {v(V_L)}, 0
    v_mov_b32 {v(V_L+1)}, 0
    """
    setup = [I(x.strip()) for x in setup.strip().split("\n")]
    assert (4 * SLOT) % 256 == 0
    def q_mfma(i, t, qt, fr):
        D = v(V_O + 8*t + 4*qt, 4)
        Bop = v(V_H + 8*i + 4*qt, 4) if i < 7 else a(A_HP + 8*(i-7) + 4*qt, 4)
        return f"v_mfma_f32_16x16x32_bf16 {D}, {fr}, {Bop}, {D if i else 0}"
    def q_fills(i):
        st = i + 3
        if st < 14:
            return [at.wfill("Q", st, hf) + ([],) for hf in range(2)]
        if i == 11: return [at.kvfill("K", 0), at.kvfill("K", 1)]
        if i == 12: return [at.kvfill("K", 2)]
        return [at.kvfill("V", 0), at.kvfill("V", 1, range(at.nafter))]
    def q_bar(i):
        ks = at.wkeys("Q", i + 1) if i < 13 else [at.key("K", 0)]
        i -= 1
        if 0 <= i < 8:
            ks = ks + [(8, i // 2)] if i % 2 == 0 else ks + [("rd", 8, i // 2)]
        return ks
    def q_valu(i):
        out = []
        if NUP + i < 7:
            out += modulate(NUP + i, False)
        if i in (8, 9, 10):
            n = len(setup)
            out += setup[(i-8)*n//3:(i-7)*n//3]
        return out
    def q_xds(i):
        out = []
        i -= 1
        if 0 <= i < 8:
            rho = i // 2
            for k in range(4):
                u, qt = 2*rho + k // 2, k % 2
                if u >= 7: continue
                if i % 2 == 0:
                    out.append(I(f"ds_write_b128 {v(V_XW)}, {v(V_H + 8*u + 4*qt, 4)} offset:{1024*k}", tag=("wr", (8, rho))))
                else:
                    out.append(I(f"ds_read_b128 {a(A_HP + 8*u + 4*qt, 4)}, {v(V_XR)} offset:{1024*k}", tag=("rd", (8, rho))))
        return out
    at.gemm_phase(p, "Q", 14, 16, q_mfma, q_fills, q_bar, q_valu, q_xds)
    stamp(p, 5)
    p("s_load_dwordx4 s[4:7], s[0:1], 48")
    p("s_load_dwordx2 s[8:9], s[0:1], 72")
    p("s_waitcnt lgkmcnt(0)")
    for g in range(at.gB + 1, 64):
        for (f, e, nx) in at.ds.get(g, []):
            p(at.kread(lambda it: 0, 0, f))
    p(f"""
    v_bfe_u32 v1, v0, 5, 1
    v_and_b32 v2, 31, v0
    v_lshlrev_b32 v3, 1, v1
    v_xor_b32 v3, v3, v2
    v_lshlrev_b32 v1, 2, v1
    v_add_u32 v1, {s(S_W)}, v1
    v_mul_u32_u24 v1, 896, v1
    v_lshl_add_u32 v1, v3, 4, v1
    v_mov_b32 v3, 0x40000000
    v_cmp_gt_u32 vcc, 28, v2
    v_cndmask_b32 {v(V_WDMA)}, v3, v1, vcc
    v_add_u32 {v(V_WDMA+1)}, {8*896 - 1024}, {v(V_WDMA)}
    v_add_u32 {v(V_WDMA+2)}, {16*896 - 2048}, {v(V_WDMA)}
    v_add_u32 {v(V_WDMA+3)}, {24*896 - 3072}, {v(V_WDMA)}
    s_mul_i32 {s(S_WBASE)}, {s(S_J)}, {512*896}
    """)
    assert (8 * SLOT) & 0x3fff == (8 * SLOT) % 16384 and ((8 * SLOT) % 16384) + 4096 <= 8192
    for sx in range(8):
        for qt in range(2):
            X = V_O + 16*sx + 4*qt
            Y = X + 8
            p(f"v_cvt_pk_bf16_f32 v{X}, v{X}, v{X+1}")
            p(f"v_cvt_pk_bf16_f32 v{X+1}, v{X+2}, v{X+3}")
            p(f"v_cvt_pk_bf16_f32 v{Y}, v{Y}, v{Y+1}")
            p(f"v_cvt_pk_bf16_f32 v{Y+1}, v{Y+2}, v{Y+3}")
        for qt in range(2):
            X = V_O + 16*sx + 4*qt
            Y = X + 8
            p(f"v_permlane32_swap_b32 v{X}, v{Y}")
            p(f"v_permlane32_swap_b32 v{X+1}, v{Y+1}")
        for qt in range(2):
            X = V_O + 16*sx + 4*qt
            Y = X + 8
            p(f"v_permlane16_swap_b32 v{X}, v{Y}")
            p(f"v_permlane16_swap_b32 v{X+1}, v{Y+1}")
        for qt in range(2):
            X = V_O + 16*sx + 4*qt
            Y = X + 8
            for k, r in enumerate((X, X+1, Y, Y+1)):
                p(f"v_accvgpr_write_b32 a{A_Q + 8*sx + 4*qt + k}, v{r}")
    stamp(p, 6)
    lid = [opts.get("lid0", 0)]
    def B(c, fn, aval=None, **kw):
        at.body(p, c, fn, aval=aval, lid=lid[0], **kw)
        if aval != -1:
            at.fallback(p, c % 2, lid[0], aval != 63)
        lid[0] += 1
    B(3, lambda it: -1, aval=-1)
    if opts.get("touch", True):
        p(f"""
        v_min_u32 v1, {223 if opts.get("t64", False) else 111}, v0
        v_lshlrev_b32 v1, {6 if opts.get("t64", False) else 7}, v1
        s_mul_i32 s53, {s(S_PB)}, {112*128}
        s_add_u32 s53, s53, {s(S_WBASE)}
        buffer_load_dword v2, v1, {s(SRD_O,4)}, s53 offen
        """)
    exv = None
    if opts.get("warm", True) and opts.get("wloop", False):
        srd(p, 52, 6, 7, 2048 * 4096)
        p(f"""
        v_and_b32 v16, 63, v0
        v_min_u32 v16, 4, v16
        s_mul_i32 s14, {s(S_W)}, 640
        s_lshl_b32 s59, s2, 15
        s_add_u32 s59, s59, s14
        v_lshlrev_b32 v16, 7, v16
        """)
        exv = [(at.gB, I("buffer_load_dword v17, v16, s[52:55], s59 offen"))]
    B(0, lambda it: 0, aval=0, extra_scalar=[(60, I(f"s_mov_b32 {s(S_CNT)}, 14"))])
    p.begin_loop(14)
    p(f"L_loop{name}:")
    for c in range(1, 5):
        ex = [(60, I(f"s_sub_u32 {s(S_CNT)}, {s(S_CNT)}, 1"))] if c == 2 else None
        if c == 3 and exv: ex = [(60, I("s_add_u32 s59, s59, 2560"))]
        B(c % 4, (lambda c: lambda it: 4*it + c)(c), extra_scalar=ex, extra_valu=exv if c == 1 else None)
    p(f"s_cmp_lg_u32 {s(S_CNT)}, 0")
    p(f"s_cbranch_scc1 L_loop{name}")
    p.end_loop()
    for av in range(57, 64):
        B(av % 4, (lambda av: lambda it: av)(av), aval=av)
    stamp(p, 7)
    for qt in range(2):
        at.xreduce(p, V_L + qt, "v_add_f32")
        p(f"v_rcp_f32 v{2+qt}, {v(V_L+qt)}")
    def conv(u):
        out = []
        for qt in range(2):
            X = V_O + 16*u + 4*qt
            Y = X + 8
            for r in (X, X+1, X+2, X+3, Y, Y+1, Y+2, Y+3):
                out.append(I(f"v_mul_f32 v{r}, v{r}, v{2+qt}"))
            out.append(I(f"v_cvt_pk_bf16_f32 v{X}, v{X}, v{X+1}"))
            out.append(I(f"v_cvt_pk_bf16_f32 v{X+1}, v{X+2}, v{X+3}"))
            out.append(I(f"v_cvt_pk_bf16_f32 v{X+2}, v{Y}, v{Y+1}"))
            out.append(I(f"v_cvt_pk_bf16_f32 v{X+3}, v{Y+2}, v{Y+3}"))
        return out
    p.extend(conv(0)); p.extend(conv(1))
    ACC = V_H
    WV = V_O + 8
    p(f"""
    s_mul_i32 s14, s2, {49*128}
    s_mul_i32 s15, s2, {25*128}
    s_lshl_b32 s59, s2, 8
    """)
    p("s_lshl_b32 s58, s2, 15")
    wops = [I(x) for x in (f"v_lshl_add_u32 v{WV}, v0, 7, s58", f"v_min_u32 v{WV+1}, 48, v0", f"v_lshl_add_u32 v{WV+1}, v{WV+1}, 7, s14",
                           f"v_min_u32 v{WV+2}, 24, v0", f"v_lshl_add_u32 v{WV+2}, v{WV+2}, 7, s15",
                           f"v_min_u32 v{WV+2}, {896*896-4}, v{WV+2}")]
    if opts.get("tail_code"):
        l0, l1 = opts["tail_code"]
        p("s_getpc_b64 s[10:11]")
        p(f"L_tc{name}:")
        wops += [I(x) for x in (f"v_min_u32 v{WV+3}, 1, v0", f"v_lshl_add_u32 v{WV+3}, v{WV+3}, 7, s59",
                                f"v_min_u32 v{WV+3}, {l1}-{l0}-4, v{WV+3}", f"v_add_u32 v{WV+3}, {l0}-L_tc{name}, v{WV+3}")]
    def o_mfma(i, t, qt, fr):
        D = v(ACC + 8*t + 4*qt, 4)
        Bop = v(V_O + 16*i + 4*qt, 4) if i < 8 else a(A_Q + 8*(i-8) + 4*qt, 4)
        return f"v_mfma_f32_16x16x32_bf16 {D}, {fr}, {Bop}, {D if i else 0}"
    def o_fills(i):
        st = i + 3
        if i == 13 and opts.get("warm", True):
            ld = [I(f"global_load_dword v{WV+5}, v{WV+1}, s[4:5]"),
                  I(f"global_load_dword v{WV+6}, v{WV+2}, s[8:9]")]
            if not opts.get("wloop", False):
                ld.append(I(f"global_load_dword v{WV+4}, v{WV}, s[6:7]"))
            if opts.get("tail_code"):
                ld.append(I(f"global_load_dword v{WV+7}, v{WV+3}, s[10:11]"))
            return [([], ld, [])]
        return [at.wfill("O", st, hf) + ([],) for hf in range(2)] if st < 16 else []
    def o_bar(i):
        if i == 15: return None
        ks = at.wkeys("O", i + 1)
        i -= 1
        if 0 <= i < 8:
            ks = ks + [(8, 10 + i // 2)] if i % 2 == 0 else ks + [("rd", 8, 10 + i // 2)]
        return ks
    def o_valu(i):
        if i == 12 and opts.get("warm", True):
            return wops
        return conv(i + 2) if i + 2 < 8 else []
    def o_xds(i):
        i -= 1
        if i >= 8 or i < 0: return []
        rho = i // 2
        out = []
        for k in range(4):
            u, qt = 2*rho + k // 2, k % 2
            if i % 2 == 0:
                out.append(I(f"ds_write_b128 {v(V_XW)}, {v(V_O + 16*u + 4*qt, 4)} offset:{1024*k}", tag=("wr", (8, 10 + rho))))
            else:
                out.append(I(f"ds_read_b128 {a(A_Q + 8*u + 4*qt, 4)}, {v(V_XR)} offset:{1024*k}", tag=("rd", (8, 10 + rho))))
        return out
    at.gemm_phase(p, "O", 16, 14, o_mfma, o_fills, o_bar, o_valu, o_xds)
    stamp(p, 8)
    p(f"""
    s_lshl_b32 s14, {s(S_J)}, 7
    s_add_u32 s14, s14, {s(S_QT)}
    s_mul_i32 s14, s14, {14*1024}
    s_mul_i32 s15, {s(S_HD)}, {7*1024}
    s_add_u32 s14, s14, s15
    s_add_u32 s14, s14, {WS_PART}
    s_add_u32 s15, s14, {14*1024}
    s_add_u32 s50, s14, 4096
    s_add_u32 s51, s15, 4096
    """)
    for uu in range(7):
        for qt in range(2):
            X = ACC + 16*uu + 4*qt
            Y = X + 8
            p(f"v_cvt_pk_bf16_f32 v{X}, v{X}, v{X+1}")
            p(f"v_cvt_pk_bf16_f32 v{X+1}, v{X+2}, v{X+3}")
            p(f"v_cvt_pk_bf16_f32 v{X+2}, v{Y}, v{Y+1}")
            p(f"v_cvt_pk_bf16_f32 v{X+3}, v{Y+2}, v{Y+3}")
            so = (14 + qt) if uu < 4 else (50 + qt)
            p(f"buffer_store_dwordx4 {v(X,4)}, {v(V_LIN)}, {s(SRD_W,4)}, s{so} offen offset:{(uu % 4)*1024}" + (" sc1" if opts.get("fuse") else ""))
    nst = 10
    if opts.get("fuse"):
        p("s_load_dwordx2 s[4:5], s[0:1], 0")
        p("s_waitcnt lgkmcnt(0)")
        srd(p, SRD_K, 4, 5, 2048 * 896)
        p(f"""
        s_lshl_b32 s14, {s(S_PB)}, 7
        s_lshl_b32 s15, {s(S_J)}, 2
        s_add_u32 s14, s14, s15
        s_add_u32 s14, s14, {WS_FLAG}
        """)
        signal(p, SRD_W, 14, S_W, "r" + name)
        stamp(p, 9)
        emit_red_pre(p, S_W, S_PB, S_J, SRD_W, SRD_K)
        emit_red(p, S_W, S_PB, SRD_W, MODL)
        nst = 13
    stamp_dump(p, opts.get("slot", 1), nst, SRD_W, S_W)
    p(f"L_end{name}:")
    p("s_endpgm")
    if opts.get("gabl"):
        p.check_lds = lambda: None
    p.finalize()
    return p, f"; @launch kernel={name} grid=(256,1,1) block=(256,1,1) lds={LDS_BYTES}\n"
```

```python
import sys
sys.path.insert(0, "work")
from k_attn import *
from k_z import gelu_pairs, C1, C2
from k_prep import LOG2E, QSCALE, xreduce
from k_red import emit_red_early
NSTAMP = 16

def build_mega(opts):
    opts = opts or {}
    name = opts.get("name", "adaLN_cond__gqa_block_cached__mixer_gmlp__prompt_kernel")
    p = Prog(name)
    at = Attn(opts)
    LD = opts.get("ld", " sc1")
    thr = opts.get("thr", 0x5f800000)
    SRD_D = 92
    if opts.get("t0"):
        x = I("s_memrealtime s[88:89]"); x.kind = "salu"; p(x)
    p(f"""
    s_cmp_ge_u32 s2, 256
    s_cbranch_scc1 L_end{name}
    s_load_dwordx4 s[52:55], s[0:1], 80
    s_load_dwordx2 s[50:51], s[0:1], 0
    s_load_dwordx8 s[4:11], s[0:1], 8
    s_load_dwordx4 s[56:59], s[0:1], 104
    v_lshrrev_b32 v1, 6, v0
    v_readfirstlane_b32 {s(S_W)}, v1
    s_and_b32 {s(S_J)}, s2, 7
    s_lshr_b32 {s(S_PB)}, s2, 3
    v_and_b32 v1, 63, v0
    v_lshlrev_b32 {v(V_LIN)}, 4, v1
    s_lshr_b32 {s(S_HD)}, {s(S_W)}, 1
    s_and_b32 s14, {s(S_W)}, 1
    s_lshl_b32 {s(S_QT)}, {s(S_PB)}, 2
    s_lshl_b32 s14, s14, 1
    s_add_u32 {s(S_QT)}, {s(S_QT)}, s14
    v_mov_b32 v2, 0x40000000
    v_cmp_gt_u32 vcc, 56, v1
    v_cndmask_b32 v19, v2, {v(V_LIN)}, vcc
    v_add_u32 v18, 144, v19
    v_add_u32 v17, 288, v19
    v_add_u32 v16, 432, v19
    s_lshl_b32 s14, {s(S_PB)}, 2
    s_add_u32 s14, s14, {s(S_W)}
    s_mul_i32 s14, s14, {16*896}            ; x soffset
    s_mul_i32 s15, {s(S_W)}, {SLOT}
    s_add_u32 s15, s15, {4*SLOT}
    s_waitcnt lgkmcnt(0)
    """)
    stamp(p, 0)
    if opts.get("t0"): p("s_mov_b32 s3, s88")
    ep = I(f"s_load_dwordx2 s[100:101], s[58:59], {WS_EP}"); ep.kind = "salu"
    p(ep)
    srd(p, SRD_W, 58, 59, WS_USED)
    srd(p, SRD_D, 56, 57, 256)
    srd(p, SRD_V, 54, 55, 448 * 5376)
    srd(p, SRD_O, 52, 53, 896)
    srd(p, SRD_K, 50, 51, 2048 * 896 + 432)
    p(f"""
    s_sub_u32 {s(SRD_K)}, {s(SRD_K)}, 432
    s_subb_u32 {s(SRD_K+1)}, {s(SRD_K+1)}, 0
    s_mov_b32 s31, 0
    v_and_b32 v127, 31, v0
    v_lshlrev_b32 v125, 3, v127
    s_mov_b32 s32, 0x40000000
    s_mov_b32 s33, 0x40000000
    """)
    MW = 72; CR = 100; MC = 20; MA = 36; MT = 44
    def raw(txt):
        x = I(txt); x.kind = "salu"; x.writes = []; return x
    p(f"""
    v_and_b32 v{MT}, 3, v0
    v_lshrrev_b32 v{MT+1}, 2, v0
    v_mul_u32_u24 v{MT+2}, 14, v{MT+1}
    v_mul_u32_u24 v{MT+3}, {7*5376}, v{MT+1}
    v_lshl_add_u32 v{MT+3}, v{MT}, 4, v{MT+3}
    s_lshl_b32 s12, s2, 6
    v_and_b32 v{MT+2}, -4, v{MT+2}
    s_cmp_ge_u32 s2, 28
    s_cbranch_scc1 L_mod1r{name}
    """)
    def wloads(f):
        for i in range(7):
            p(f(f"buffer_load_dwordx4 {v(MW+4*i,4)}, v{MT+3}, {s(SRD_V,4)}, s12 offen"))
            if i < 6:
                p(f"s_add_u32 s12, s12, 5376")
        p(f(f"buffer_load_dwordx4 {v(CR,4)}, v{MT+2}, {s(SRD_O,4)}, 0 offen"))
    wloads(raw)
    p(f"L_mod1r{name}:")
    XK = [(4, -1), (5, -1), (6, -1), (7, -1)]
    NX0 = opts.get("nx0", 16)
    def xdma(ms):
        for m in ms:
            if m % 4 == 0:
                p(f"s_add_u32 m0, s15, {m*1040}")
            p(f"buffer_load_dwordx4 v{16 + m % 4}, {s(SRD_K,4)}, s14 offen offset:{(m % 4)*1040} lds", tag=("dma", XK))
            if m % 4 == 3:
                p(f"s_add_u32 s14, s14, {4*896}")
    xdma(range(NX0))
    def modblock(urgent, MW=MW, CR=CR, MC=MC, MA=MA, MT=MT, MS=MT+8, scr=MODL+4096, pre=()):
        tg = ("u" if urgent else "n") + name
        st_ = opts.get("pst") and urgent
        if urgent:
            p("s_cmp_ge_u32 s2, 28")
        else:
            p("s_cmp_ge_u32 s58, 56")
        p(f"s_cbranch_scc1 L_mod2r{tg}")
        p.extend(pre)
        p(f"s_mov_b32 s13, {f2u(-LOG2E)}")
        p(f"v_bfe_u32 v{MT+1}, v0, 2, 1")
        p(f"v_lshlrev_b32 v{MT+1}, 4, v{MT+1}")
        if st_: stamp(p, 5)
        if urgent:
            p(raw(f"s_waitcnt vmcnt({NX0 + NYG})"))
        if st_: stamp(p, 6)
        for j in range(4):
            p(f"v_alignbit_b32 v{CR+j}, v{CR+min(j+1,3)}, v{CR+j}, v{MT+1}")
        for i in range(7):
            p(f"v_lshlrev_b32 v{MC+i}, 16, v{CR+i//2}" if i % 2 == 0 else f"v_and_b32 v{MC+i}, 0xffff0000, v{CR+i//2}")
        for i in range(7):
            p(f"v_mul_f32 v{MC+8+i}, s13, v{MC+i}")
        for i in range(7):
            p(f"v_exp_f32 v{MC+8+i}, v{MC+8+i}")
        for i in range(7):
            p(f"v_add_f32 v{MC+8+i}, 1.0, v{MC+8+i}")
        for i in range(7):
            p(f"v_rcp_f32 v{MC+8+i}, v{MC+8+i}")
        for i in range(7):
            p(f"v_mul_f32 v{MC+8+i}, v{MC+8+i}, v{MC+i}")
            p(f"v_cvt_pk_bf16_f32 v{MC+8+i}, v{MC+8+i}, v{MC+8+i}")
            p(f"v_lshlrev_b32 v{MS+2*i}, 16, v{MC+8+i}")
        for i in range(7):
            for d in range(4):
                w = MW + 4*i + d
                t = MC + 2 * d
                p(f"v_lshlrev_b32 v{t}, 16, v{w}")
                p(f"v_and_b32 v{t+1}, 0xffff0000, v{w}")
                if i == 0:
                    p(f"v_pk_mul_f32 {v(MA+2*d,2)}, {v(t,2)}, {v(MS,2)} op_sel_hi:[1,0]")
                else:
                    p(f"v_pk_fma_f32 {v(MA+2*d,2)}, {v(t,2)}, {v(MS+2*i,2)}, {v(MA+2*d,2)} op_sel_hi:[1,0,1]")
        for sh in (4, 8):
            for k in range(8):
                p(f"v_add_f32_dpp v{MA+k}, v{MA+k}, v{MA+k} row_ror:{sh} row_mask:0xf bank_mask:0xf")
        if st_: stamp(p, 7)
        p(f"""
        v_lshrrev_b32 v{MT+1}, 4, v0
        v_lshlrev_b32 v{MT+1}, 7, v{MT+1}
        v_and_b32 v{MT}, 3, v0
        v_lshl_add_u32 v{MT}, v{MT}, 5, v{MT+1}
        v_add_u32 v{MT}, {scr}, v{MT}
        ds_write_b128 v{MT}, {v(MA,4)}
        ds_write_b128 v{MT}, {v(MA+4,4)} offset:16
        v_lshlrev_b32 v{MT+1}, 2, v0
        v_add_u32 v{MT+1}, {scr}, v{MT+1}
        """)
        p(raw("s_waitcnt lgkmcnt(0)"))
        p(raw("s_barrier"))
        p(f"s_cmp_lg_u32 {s(S_W)}, 0")
        p(f"s_cbranch_scc1 L_mod2r{tg}")
        if st_: stamp(p, 8)
        for i in range(8):
            p(f"ds_read_b32 v{MW+i}, v{MT+1} offset:{256*i}")
        for st in (4, 2, 1):
            for i in range(st):
                p(f"v_add_f32 v{MW+i}, v{MW+i}, v{MW+i+st}")
        p(f"""
        v_mov_b32 v{MW+1}, v{MW}
        v_permlane32_swap_b32 v{MW}, v{MW+1}
        v_add_f32 v{MW}, v{MW}, v{MW+1}
        v_cvt_pk_bf16_f32 v{MW}, v{MW}, v{MW}
        v_lshlrev_b32 v{MW}, 16, v{MW}
        v_add_f32 v{MW+1}, 1.0, v{MW}
        v_cvt_pk_bf16_f32 v{MW+1}, v{MW+1}, v{MW+1}
        v_lshlrev_b32 v{MW+1}, 16, v{MW+1}
        s_sub_u32 s12, {'s2' if urgent else 's58'}, {14 if urgent else 28}
        s_cmp_lt_u32 s12, 14
        s_cselect_b64 vcc, -1, 0
        v_cndmask_b32 v{MW}, v{MW}, v{MW+1}, vcc
        """)
        if urgent:
            p(f"""
            s_add_u32 s12, s100, 1
            s_add_u32 s13, s101, 1
            s_and_b32 s13, s13, 0xffff
            v_or_b32 v{MW}, s13, v{MW}
            v_mov_b32 v{MW+1}, s12
            s_lshl_b32 s33, s2, 8
            s_add_u32 s33, s33, {WS_MG}
            L_mod2r{tg}:
            buffer_store_dwordx2 {v(MW,2)}, v125, {s(SRD_W,4)}, s33 offen sc1
            """)
        else:
            p(f"""
            s_lshl_b32 s12, s58, 7
            v_and_b32 v{MT}, 31, v0
            v_lshlrev_b32 v{MT}, 2, v{MT}
            s_mov_b32 s57, 0
            """)
            p(raw(f"buffer_store_dword v{MW}, v{MT}, {s(SRD_W,4)}, s12 offen offset:{WS_MOD + 28*128} sc1"))
            p(f"L_mod2r{tg}:")
    assert NX0 == 16
    V_MRD = 3
    p(f"s_mul_i32 {s(S_M0V)}, {s(S_W)}, 4160")
    p(f"""
    v_bfe_u32 v1, v0, 5, 1              ; hh
    v_and_b32 v2, 31, v0
    v_lshlrev_b32 {v(V_TMP)}, 1, v1
    v_xor_b32 v2, v2, {v(V_TMP)}        ; chunk
    v_lshlrev_b32 v1, 3, v1
    v_add_u32 v1, {s(S_W)}, v1          ; 8hh + w
    v_lshlrev_b32 v1, 13, v1
    v_lshl_add_u32 {v(V_WDMA)}, v2, 4, v1
    """)
    for jj in range(1, 4):
        p(f"v_add_u32 {v(V_WDMA+jj)}, {(16*(jj % 2) + 4*(jj//2))*8192 - jj*1024}, {v(V_WDMA)}")
    def emit_wfill(which, st):
        for hf in range(2):
            pre, d = at.wfill(which, st, hf)
            p.extend(pre); p.extend(d)
    p(f"""
    s_mul_i32 s52, {s(S_HD)}, 896
    s_add_u32 s52, s52, {MODL}
    v_bfe_u32 v1, v0, 2, 2
    v_mul_u32_u24 v1, 4160, v1
    v_and_b32 v2, 3, v0
    v_lshl_add_u32 v1, v2, 3, v1
    v_bfe_u32 v2, v0, 4, 2
    v_lshl_add_u32 v1, v2, 9, v1
    v_lshlrev_b32 v{V_MRD}, 5, v2
    v_add_u32 v{V_MRD}, s52, v{V_MRD}
    v_and_b32 v120, 15, v0
    v_mul_u32_u24 v120, 1040, v120
    v_lshl_add_u32 v120, v2, 4, v120
    s_and_b32 s14, {s(S_W)}, 1
    s_mul_i32 s14, s14, {2*SLOT}
    s_mul_i32 s15, {s(S_HD)}, 448
    s_add_u32 s14, s14, s15
    s_add_u32 s14, s14, {4*SLOT}
    v_add_u32 v120, s14, v120
    v_bfe_u32 v2, v0, 4, 1
    v_lshl_add_u32 {v(V_TMP)}, v2, 5, v1
    s_mul_i32 s14, {s(S_HD)}, {SLOT}
    v_add_u32 {v(V_WRD)}, s14, {v(V_TMP)}
    v_xor_b32 {v(V_WRD+1)}, 32, {v(V_WRD)}
    v_add_u32 {v(V_WRD+2)}, {4*SLOT}, {v(V_WRD)}
    v_add_u32 {v(V_WRD+3)}, {4*SLOT}, {v(V_WRD+1)}
    s_lshl_b32 s14, {s(S_W)}, 12
    s_add_u32 s14, s14, {8*SLOT}
    v_add_u32 {v(V_XW)}, s14, {v(V_LIN)}
    v_xor_b32 {v(V_XR)}, 0x2000, {v(V_XW)}
    """)
    MBP = opts.get("mbp", 0)
    NYG = [0, 2, 2 + 8 * opts.get("nearly", 1)][MBP]
    if MBP == 0: modblock(True)
    srd(p, SRD_Q, 8, 9, 448 * 8192)
    V_MRD = 3
    p(f"""
    s_mul_i32 {s(S_M0V)}, {s(S_W)}, 4160
    s_lshl_b32 {s(S_M0K)}, {s(S_W)}, 12
    s_lshl_b32 {s(S_WBASE)}, {s(S_J)}, 10
    v_lshrrev_b32 v1, 3, v0
    v_min_u32 v1, 13, v1
    v_lshlrev_b32 v1, 13, v1
    v_and_b32 v2, 7, v0
    v_lshl_add_u32 v1, v2, 7, v1
    s_mul_i32 s53, {s(S_PB)}, {14*8192}
    s_add_u32 s53, s53, {s(S_WBASE)}
    buffer_load_dword v{V_O+127}, v1, {s(SRD_Q,4)}, s53 offen
    """)
    code_prefetch(p, name, f"L_end{name}", 22, 1, V_O + 126)
    if MBP == 1: modblock(True)
    NE = opts.get("nearly", 1)
    for st in range(NE):
        emit_wfill("Q", st)
    if MBP == 2: modblock(True)
    if opts.get("pst"): stamp(p, 9)
    p(I("WAITTAG", tag=XK))
    p("s_barrier")
    for ks in range(7):
        for qt in range(2):
            p(f"ds_read_b128 {v(V_H+8*ks+4*qt,4)}, v120 offset:{qt*SLOT + 64*ks}", tag=("rd", XK))
    if NE < 1: emit_wfill("Q", 0)
    F = V_O
    SA = 112
    for k in range(56):
        qt = (k // 4) % 2
        p(f"v_lshlrev_b32 v{F+2*k}, 16, v{V_H+k}")
        p(f"v_and_b32 v{F+2*k+1}, 0xffff0000, v{V_H+k}")
        if k in (0, 4):
            p(f"v_pk_mul_f32 {v(SA+4+2*qt,2)}, {v(F+2*k,2)}, {v(F+2*k,2)}")
        else:
            p(f"v_pk_add_f32 {v(SA+2*qt,2)}, {v(F+2*k-2,2) if k in (1, 5) else v(SA+2*qt,2)}, {v(F+2*k,2)}")
            p(f"v_pk_fma_f32 {v(SA+4+2*qt,2)}, {v(F+2*k,2)}, {v(F+2*k,2)}, {v(SA+4+2*qt,2)}")
    for k in range(4):
        p(f"v_add_f32 v{SA+k}, v{SA+2*k}, v{SA+2*k+1}")
    for k in range(4):
        xreduce(p, SA + k, 121 + k, "v_add_f32")
    p(f"ds_write_b128 {v(V_XW)}, {v(SA,4)}", tag=("wr", (8, -1)))
    p("s_waitcnt lgkmcnt(0)")
    p("s_barrier")
    p(f"ds_read_b128 {v(SA+4,4)}, {v(V_XR)}", tag=("rd", (8, -1)))
    if NE < 2: emit_wfill("Q", 1)
    for qt in range(2):
        m_, r_ = 120 + 4*qt, 122 + 4*qt
        p(f"v_add_f32 v{SA+qt}, v{SA+qt}, v{SA+4+qt}")
        p(f"v_add_f32 v{SA+2+qt}, v{SA+2+qt}, v{SA+6+qt}")
        p(f"v_mul_f32 v{m_}, {f2u(1.0/448)}, v{SA+qt}")
        p(f"v_mul_f32 v{r_}, {f2u(1.0/448)}, v{SA+2+qt}")
        p(f"v_fma_f32 v{r_}, -v{m_}, v{m_}, v{r_}")
        p(f"v_max_f32 v{r_}, 0, v{r_}")
        p(f"v_add_f32 v{r_}, {f2u(1e-5)}, v{r_}")
        p(f"v_rsq_f32 v{r_}, v{r_}")
        p(f"v_mul_f32 v{m_}, -v{m_}, v{r_}")
    for k in range(56):
        qt = (k // 4) % 2
        p(f"v_pk_fma_f32 {v(F+2*k,2)}, {v(F+2*k,2)}, {v(122+4*qt,2)}, {v(120+4*qt,2)} op_sel_hi:[1,0,0]")
    NPRE = opts.get("npre", 4)
    for st in range(2, NPRE):
        emit_wfill("Q", st)
    srd(p, SRD_O, 10, 11, 4096 * 896)
    p(f"""
    s_lshl_b32 s14, {s(S_J)}, 20
    s_add_u32 {s(SRD_K)}, s4, s14
    s_addc_u32 {s(SRD_K+1)}, s5, 0
    s_mov_b32 {s(SRD_K+2)}, 0x100000
    s_mov_b32 {s(SRD_K+3)}, 0x20000
    s_add_u32 {s(SRD_V)}, s6, s14
    s_addc_u32 {s(SRD_V+1)}, s7, 0
    s_mov_b32 {s(SRD_V+2)}, 0x100000
    s_mov_b32 {s(SRD_V+3)}, 0x20000
    s_mov_b32 {s(S_KOFF)}, 0
    s_mov_b32 {s(S_VOFF)}, 0
    s_mov_b32 {s(S_THR)}, {thr}
    s_lshl_b32 s15, {s(S_W)}, 3
    """)
    setup = f"""
    v_bfe_u32 v1, v0, 5, 1
    v_and_b32 v2, 31, v0
    v_add_u32 v16, s15, v1
    v_lshlrev_b32 v17, 9, v16
    v_and_b32 v16, 15, v16
    v_xor_b32 v16, v16, v2
    v_lshl_add_u32 {v(V_KDMA)}, v16, 4, v17
    v_xor_b32 {v(V_KDMA+1)}, 32, {v(V_KDMA)}
    v_xor_b32 {v(V_KDMA+2)}, 64, {v(V_KDMA)}
    v_xor_b32 {v(V_KDMA+3)}, 96, {v(V_KDMA)}
    v_lshlrev_b32 v16, 2, v1
    v_add_u32 v16, {s(S_W)}, v16
    v_lshlrev_b32 v16, 9, v16
    v_lshlrev_b32 v17, 1, v1
    v_xor_b32 v17, v17, v2
    v_lshl_add_u32 {v(V_VDMA)}, v17, 4, v16
    v_add_u32 {v(V_VDMA+1)}, 3072, {v(V_VDMA)}
    v_add_u32 {v(V_VDMA+2)}, 6144, {v(V_VDMA)}
    v_add_u32 {v(V_VDMA+3)}, 9216, {v(V_VDMA)}
    v_and_b32 v16, 15, v0
    v_bfe_u32 v17, v0, 4, 2
    v_xor_b32 v17, v17, v16
    v_lshlrev_b32 v16, 9, v16
    v_add_u32 v16, {4*SLOT}, v16
    v_lshl_add_u32 {v(V_KRD)}, v17, 4, v16
    v_xor_b32 {v(V_KRD+1)}, 64, {v(V_KRD)}
    v_xor_b32 {v(V_KRD+2)}, 0x80, {v(V_KRD)}
    v_xor_b32 {v(V_KRD+3)}, 0xc0, {v(V_KRD)}
    v_mov_b32 {v(V_VRD)}, {v(V_TMP)}
    v_xor_b32 {v(V_VRD+1)}, 32, {v(V_TMP)}
    v_mov_b32 {v(V_L)}, 0
    v_mov_b32 {v(V_L+1)}, 0
    """
    setup = [I(x.strip()) for x in setup.strip().split("\n")]
    WRA = 21; WRB = 88
    p(f"""
    s_movk_i32 s31, 0x493
    s_and_b32 s12, {s(S_W)}, 1
    s_mul_i32 s13, {s(S_W)}, 7
    """)
    setup.append(I("v_and_b32 v1, 63, v0"))
    for m in range(7):
        setup += [I(f"v_add_u32 v16, {64*m}, v1"), I("v_mul_u32_u24 v16, s31, v16"), I("v_bfe_u32 v16, v16, 17, 2"),
                  I("v_lshlrev_b32 v16, 5, v16"), I(f"v_xor_b32 v{at.WDR[m]}, v16, {v(V_LIN)}")]
    setup += [I("v_lshrrev_b32 v16, 2, v1"), I("v_mul_u32_u24 v16, 896, v16"), I("v_and_b32 v17, 3, v0"),
              I("v_lshl_add_u32 v16, v17, 3, v16"), I("v_bfe_u32 v17, v0, 3, 2")]
    for mt in range(7):
        if mt < 6:
            p(f"s_add_u32 s{52+mt}, s13, s12")
            p(f"s_add_u32 s{52+mt}, s{52+mt}, {mt}")
        else:
            p(f"s_mul_i32 s58, s12, 6")
            p(f"s_sub_u32 s58, s13, s58")
            p(f"s_add_u32 s58, s58, 6")
        setup += [I(f"v_xor_b32 v18, s{52+mt}, v17"), I(f"v_lshl_add_u32 v{WRB+mt}, v18, 5, v16"),
                  I(f"v_add_u32 v{WRA+mt}, {4*SLOT}, v{WRB+mt}")]
    assert (4 * SLOT) % 256 == 0
    p(f"""
    v_min_u32 v1, {55*16}, {v(V_LIN)}
    s_mul_i32 s3, {s(S_W)}, 1792
    s_add_u32 s3, s3, {WS_MG}
    s_add_u32 s50, s100, 1
    s_add_u32 s51, s101, 1
    s_and_b32 s51, s51, 0xffff
    s_mul_i32 s36, {s(S_W)}, 896
    s_add_u32 s36, s36, {MODL}
    v_lshrrev_b32 v2, 1, v1
    v_add_u32 v2, s36, v2
    s_mov_b32 s59, 0x100000
    """)
    if opts.get("pst"): stamp(p, 1)
    p(f"""
    L_mp{name}:
    buffer_load_dwordx4 v[120:123], v1, {s(SRD_W,4)}, s3 offen sc1
    buffer_load_dwordx4 v[124:127], v1, {s(SRD_W,4)}, s3 offen offset:896 sc1
    s_waitcnt vmcnt(0)
    v_xor_b32 v112, s51, v120
    v_xor_b32 v113, s51, v122
    v_xor_b32 v114, s51, v124
    v_xor_b32 v115, s51, v126
    v_or3_b32 v116, v112, v113, v114
    v_or_b32 v116, v116, v115
    v_and_b32 v116, 0xffff, v116
    v_xor_b32 v117, s50, v121
    v_xor_b32 v118, s50, v123
    v_or3_b32 v116, v116, v117, v118
    v_xor_b32 v117, s50, v125
    v_xor_b32 v118, s50, v127
    v_or3_b32 v116, v116, v117, v118
    v_cmp_ne_u32 vcc, 0, v116
    s_cbranch_vccz L_mq{name}
    s_sleep {opts.get("msleep", 2)}
    s_sub_u32 s59, s59, 1
    s_cmp_lg_u32 s59, 0
    s_cbranch_scc1 L_mp{name}
    L_mq{name}:
    """)
    if opts.get("pst"): stamp(p, 2)
    for k in range(4):
        p(f"v_mul_f32 v{112+k}, {f2u(QSCALE)}, v{112+k}")
    mt = ("wr", ("M", 0))
    p("ds_write_b64 v2, v[112:113]", tag=mt)
    p("ds_write_b64 v2, v[114:115] offset:448", tag=mt)
    for st in range(NPRE, 3):
        emit_wfill("Q", st)
    MB = 72
    def modreads(ks):
        M = MB + 16 * (ks % 3)
        rt = ("rd", ("M", 0))
        return [I(f"ds_read_b128 {v(M + 8*k + 4*h, 4)}, v{V_MRD} offset:{1792*(1-k) + 128*ks + 16*h}", tag=rt)
                for k in range(2) for h in range(2)]
    NUP = 7
    p(I("WAITTAG", tag=[("M", 0)]))
    p("s_barrier")
    p.extend(modreads(0)); p.extend(modreads(1)); p.extend(modreads(2))
    for ks in range(7):
        M = MB + 16 * (ks % 3)
        for k in range(8*ks, 8*ks + 8):
            d = k % 4
            p(f"v_pk_fma_f32 {v(F+2*k,2)}, {v(F+2*k,2)}, {v(M+2*d,2)}, {v(M+8+2*d,2)}")
            p(f"v_cvt_pk_bf16_f32 v{V_H+k}, v{F+2*k}, v{F+2*k+1}")
        if ks + 3 < 7:
            p.extend(modreads(ks + 3))
    stamp(p, 3 if opts.get("pst") else 1)
    def q_mfma(i, t, qt, fr):
        D = v(V_O + 8*t + 4*qt, 4)
        Bop = v(V_H + 8*i + 4*qt, 4) if i < 7 else a(A_HP + 8*(i-7) + 4*qt, 4)
        return f"v_mfma_f32_16x16x32_bf16 {D}, {fr}, {Bop}, {D if i else 0}"
    def q_fills(i):
        st = i + 3
        if i == 0 and NPRE == 4: return []
        if st < 14:
            return [at.wfill("Q", st, hf) + ([],) for hf in range(2)]
        if i == 11: return [at.kvfill("K", 0), at.kvfill("K", 1)]
        if i == 12: return [at.kvfill("K", 2)]
        return [at.kvfill("V", 0), at.kvfill("V", 1, range(at.nafter))]
    def q_bar(i):
        ks = at.wkeys("Q", i + 1) if i < 13 else [at.key("K", 0)]
        i -= 1
        if 0 <= i < 8:
            ks = ks + [(8, i // 2)] if i % 2 == 0 else ks + [("rd", 8, i // 2)]
        return ks
    def q_valu(i):
        out = []
        if i in (8, 9, 10):
            n = 33
            out += setup[(i-8)*n//3:(i-7)*n//3]
        if i in (11, 12, 13):
            n = len(setup) - 33
            out += setup[33+(i-11)*n//3:33+(i-10)*n//3]
        return out
    def q_xds(i):
        out = []
        i -= 1
        if 0 <= i < 8:
            rho = i // 2
            for k in range(4):
                u, qt = 2*rho + k // 2, k % 2
                if u >= 7: continue
                if i % 2 == 0:
                    out.append(I(f"ds_write_b128 {v(V_XW)}, {v(V_H + 8*u + 4*qt, 4)} offset:{1024*k}", tag=("wr", (8, rho))))
                else:
                    out.append(I(f"ds_read_b128 {a(A_HP + 8*u + 4*qt, 4)}, {v(V_XR)} offset:{1024*k}", tag=("rd", (8, rho))))
        return out
    at.gemm_phase(p, "Q", 14, 16, q_mfma, q_fills, q_bar, q_valu, q_xds)
    p("s_load_dwordx4 s[4:7], s[0:1], 48")
    p("s_load_dwordx2 s[8:9], s[0:1], 72")
    p("s_load_dwordx2 s[10:11], s[0:1], 0")
    p("s_load_dwordx2 s[54:55], s[0:1], 80")
    p("s_load_dwordx2 s[56:57], s[0:1], 88")
    p("s_waitcnt lgkmcnt(0)")
    srd(p, SRD_Q, 4, 5, 448 * 3584)
    for g in range(at.gB + 1, 64):
        for (f, e, nx) in at.ds.get(g, []):
            p(at.kread(lambda it: 0, 0, f))
    p(f"""
    s_mul_i32 s53, {s(S_J)}, {512*896}
    s_mul_i32 s59, {s(S_W)}, 7168
    s_add_u32 {s(S_WBASE)}, s53, s59
    """)
    assert (8 * SLOT) & 0x3fff == (8 * SLOT) % 16384 and ((8 * SLOT) % 16384) + 4096 <= 8192
    AW = 184
    p(f"""
    s_sub_u32 s13, s2, 40
    s_lshl_b32 s13, s13, 12
    s_add_u32 s13, s13, {WS_FLAG}
    v_lshlrev_b32 v1, 4, v0
    v_mov_b32 v4, 0
    v_mov_b32 v5, 0
    v_mov_b32 v6, 0
    v_mov_b32 v7, 0
    s_sub_u32 s12, s2, 40
    s_cmp_ge_u32 s12, 36
    s_cselect_b32 s13, 0x40000000, s13
    s_cselect_b32 s31, 0, 1
    s_cmp_eq_u32 {s(S_W)}, 0
    s_cselect_b32 s31, s31, 0
    """)
    p(f"buffer_store_dwordx4 v[4:7], v1, {s(SRD_W,4)}, s13 offen sc1", tag=("wr", ("ZERO", 0), "private"))
    for sx in range(8):
        for qt in range(2):
            X = V_O + 16*sx + 4*qt
            Y = X + 8
            p(f"v_cvt_pk_bf16_f32 v{X}, v{X}, v{X+1}")
            p(f"v_cvt_pk_bf16_f32 v{X+1}, v{X+2}, v{X+3}")
            p(f"v_cvt_pk_bf16_f32 v{Y}, v{Y}, v{Y+1}")
            p(f"v_cvt_pk_bf16_f32 v{Y+1}, v{Y+2}, v{Y+3}")
        for qt in range(2):
            X = V_O + 16*sx + 4*qt
            Y = X + 8
            p(f"v_permlane32_swap_b32 v{X}, v{Y}")
            p(f"v_permlane32_swap_b32 v{X+1}, v{Y+1}")
        for qt in range(2):
            X = V_O + 16*sx + 4*qt
            Y = X + 8
            p(f"v_permlane16_swap_b32 v{X}, v{Y}")
            p(f"v_permlane16_swap_b32 v{X+1}, v{Y+1}")
        for qt in range(2):
            X = V_O + 16*sx + 4*qt
            Y = X + 8
            for k, r in enumerate((X, X+1, Y, Y+1)):
                p(f"v_accvgpr_write_b32 a{A_Q + 8*sx + 4*qt + k}, v{r}")
    stamp(p, 4 if opts.get("pst") else 2)
    lid = [opts.get("lid0", 0)]
    import k_prep
    son = k_prep.STAMP["on"]
    if opts.get("pst"): k_prep.STAMP["on"] = False
    def B(c, fn, aval=None, **kw):
        at.body(p, c, fn, aval=aval, lid=lid[0], **kw)
        if aval != -1:
            at.fallback(p, c % 2, lid[0], aval != 63)
        lid[0] += 1
    B(3, lambda it: -1, aval=-1)
    p("s_mov_b64 s[12:13], s[54:55]")
    p(I("WAITTAG", tag=[("ZERO", 0)]))
    if opts.get("touch", True):
        p(f"""
        v_min_u32 v1, {223 if opts.get("t64", False) else 111}, v0
        v_lshlrev_b32 v1, {6 if opts.get("t64", False) else 7}, v1
        s_mul_i32 s54, {s(S_PB)}, {112*128}
        s_add_u32 s53, s53, s54
        buffer_load_dword v2, v1, {s(SRD_O,4)}, s53 offen
        """)
    exv = None
    if opts.get("warm", True):
        p(f"""
        v_and_b32 v1, 63, v0
        s_lshl_b32 s14, {s(S_J)}, 5
        s_add_u32 s14, s14, {s(S_PB)}
        s_lshl_b32 s14, s14, 15
        s_min_u32 s14, s14, {2048*4096 - 35840}
        s_mul_i32 s15, {s(S_W)}, 640
        s_add_u32 s14, s14, s15
        v_cmp_gt_u32 vcc, 5, v1
        v_cndmask_b32 v3, 0, v1, vcc
        v_lshl_add_u32 v3, v3, 7, s14
        v_mov_b32 v16, s6
        v_mov_b32 v17, s7
        v_mov_b32 v18, 2560
        v_mov_b32 v19, 0
        s_mul_i32 s14, {s(S_PB)}, {14*3584}
        s_mul_i32 s15, {s(S_HD)}, 1792
        s_add_u32 s14, s14, s15
        s_and_b32 s15, {s(S_J)}, 1
        s_mul_i32 s15, s15, 896
        s_add_u32 s14, s14, s15
        s_and_b32 s15, {s(S_W)}, 1
        s_mul_i32 s15, s15, 384
        s_add_u32 s14, s14, s15
        s_mov_b64 exec, 0xf00
        v_and_b32 v3, 3, v1
        v_lshl_add_u32 v3, v3, 7, s14
        v_mov_b32 v16, s4
        v_mov_b32 v17, s5
        v_mov_b32 v18, 3584
        s_mov_b64 exec, -1
        s_mul_i32 s14, s2, {25*128}
        s_min_u32 s14, s14, {896*896 - 28*128}
        s_and_b32 s15, {s(S_W)}, 1
        s_lshl_b32 s15, s15, 7
        s_add_u32 s14, s14, s15
        v_writelane_b32 v3, s14, 6
        v_writelane_b32 v16, s8, 6
        v_writelane_b32 v17, s9, 6
        s_movk_i32 s14, 0x100
        v_writelane_b32 v18, s14, 6
        s_min_u32 s14, s2, 223
        s_lshl_b32 s14, s14, 1
        s_add_u32 s14, s14, {s(S_HD)}
        s_mul_i32 s14, s14, 5376
        s_and_b32 s15, {s(S_W)}, 1
        s_add_u32 s15, s15, 1
        s_mul_i32 s15, s15, 1792
        s_add_u32 s14, s14, s15
        v_writelane_b32 v3, s14, 7
        v_writelane_b32 v16, s56, 7
        v_writelane_b32 v17, s57, 7
        s_movk_i32 s14, 0x80
        v_writelane_b32 v18, s14, 7
        v_add_co_u32 v16, vcc, v16, v3
        v_addc_co_u32 v17, vcc, 0, v17, vcc
        """)
        exv = [(at.gB, I("global_load_dword v20, v[16:17], off"))]
        exv2 = [(at.gJ, I("v_lshl_add_u64 v[16:17], v[16:17], 0, v[18:19]"))]
    B(0, lambda it: 0, aval=0, extra_scalar=[(60, I(f"s_mov_b32 {s(S_CNT)}, 14"))])
    p(f"""
    s_cmp_eq_u32 s31, 0
    s_cbranch_scc1 L_na{name}
    v_mov_b32 v1, 1
    v_mov_b32 v3, 0
    """)
    p("s_mov_b64 exec, 1")
    p(raw(f"buffer_atomic_add v1, v3, {s(SRD_D,4)}, 0 offen offset:4 sc1"))
    p("s_mov_b64 exec, -1")
    p(f"L_na{name}:")
    srd(p, 52, 56, 57, 448 * 5376)
    p(f"""
    v_and_b32 v1, 3, v0
    v_lshrrev_b32 v4, 2, v0
    v_mul_u32_u24 v5, 14, v4
    v_and_b32 v5, -4, v5
    v_mul_u32_u24 v4, {7*5376}, v4
    v_lshl_add_u32 v4, v1, 4, v4
    v_mov_b32 v10, 1
    v_mov_b32 v11, 0x40000000
    v_cmp_ne_u32 vcc, 0, v0
    v_cndmask_b32 v11, 0, v11, vcc
    v_lshlrev_b32 v6, 2, v0
    v_add_u32 v6, {MODL}, v6
    v_mov_b32 v7, {MODL}
    """)
    p.begin_loop(14)
    p(f"L_loop{name}:")
    for c in range(1, 5):
        ex = [(60, I(f"s_sub_u32 {s(S_CNT)}, {s(S_CNT)}, 1"))] if c == 2 else None
        B(c % 4, (lambda c: lambda it: 4*it + c)(c), extra_scalar=ex,
          extra_valu=(exv if c == 1 else exv2 if c == 3 else None) if exv else None)
    p(f"s_cmp_lg_u32 {s(S_CNT)}, 0")
    p(f"s_cbranch_scc1 L_loop{name}")
    p.end_loop()
    ZD = 96
    ZT = 103
    zops = []
    for m in range(7):
        zops += [I(f"v_add_u32 v{ZT}, {64*m}, v1"), I(f"v_mul_u32_u24 v{ZT+1}, s31, v{ZT}"), I(f"v_lshrrev_b32 v{ZT+1}, 16, v{ZT+1}"),
                 I(f"v_mul_u32_u24 v{ZT+2}, 14, v{ZT+1}"), I(f"v_sub_u32 v{ZT}, v{ZT}, v{ZT+2}"),
                 I(f"v_add_u32 v{ZT}, s57, v{ZT}"), I(f"v_subrev_u32 v{ZT+2}, 14, v{ZT}"), I(f"v_min_u32 v{ZT}, v{ZT}, v{ZT+2}"),
                 I(f"v_mul_u32_u24 v{ZT+1}, 3584, v{ZT+1}"), I(f"v_lshl_add_u32 v{ZD+m}, v{ZT}, 4, v{ZT+1}")]
        if m % 4:
            zops.append(I(f"v_subrev_u32 v{ZD+m}, {(m % 4)*1024}, v{ZD+m}"))
    ZBASE = [[2 * SLOT, 3 * 2 * SLOT, 0, 8 * SLOT], [2 * 2 * SLOT, 2 * SLOT, 3 * 2 * SLOT, 8 * SLOT]]
    ZKEYS = [[[(2, 300), (3, 300)], [(6, 300), (7, 300)], [(0, 300), (1, 300)], [(8, 300)]],
             [[(4, 310), (5, 310)], [(2, 310), (3, 310)], [(6, 310), (7, 310)], [(8, 310)]]]
    def zfill(rnd, z1=0):
        gs = []
        so = 34 if z1 else 37
        for hf in range(2):
            pre = [I(f"s_add_u32 m0, s36, {ZBASE[z1][rnd] + hf*4096}")]
            d = [I(f"buffer_load_dwordx4 v{ZD+m}, {s(SRD_Q,4)}, s{so} offen offset:{(m % 4)*1024} lds", tag=("dma", ZKEYS[z1][rnd]))
                 for m in range(4*hf, min(7, 4*hf+4))]
            post = [I(f"s_add_u32 s{so}, s{so}, {4*32*3584}")] if hf else []
            gs.append((pre, d, post))
        return gs
    def flat(gs):
        return [x for g in gs for lst in g for x in lst]
    p(f"""
    v_mov_b32 v8, 4
    buffer_load_dword v9, v8, {s(SRD_D,4)}, 0 offen sc1
    s_movk_i32 s31, 0x124a
    s_and_b32 s57, {s(S_PB)}, 1
    s_lshl_b32 s57, s57, 1
    v_and_b32 v1, 63, v0
    """)
    for av in range(57, 64):
        exx = None
        if av == 59:
            p(f"""
            v_readfirstlane_b32 s14, v9
            s_cmp_lt_u32 s14, 36
            s_cbranch_scc1 L_mslow{name}
            L_mok{name}:
            """)
            p.begin_side()
            p(f"L_mslow{name}:")
            p("s_mov_b32 s14, 0")
            poll(p, SRD_D, 14, 8, 9, "m2" + name, 56, 36, sleep=4)
            p(f"s_branch L_mok{name}")
            p.end_side()
            p(f"s_lshl_b32 s14, {s(S_PB)}, 7")
            p(f"s_add_u32 s14, s14, {WS_FLAG + 4096 + 16}")
            exx = [(2, I(f"buffer_atomic_add v10, v11, {s(SRD_W,4)}, s14 offen sc0 sc1"))]
        if av == 61:
            exx = [(at.gJ, I("ds_write_b32 v6, v10", tag=("wr", ("TK", 0))))]
        if av == 62:
            exx = [(at.gJ, I("ds_read_b32 v10, v7", tag=("rd", ("TK", 0))))]
        if av == 63:
            p(f"""
            v_readfirstlane_b32 s58, v10
            s_cmp_ge_u32 s58, 2
            s_cselect_b32 s58, 64, s58
            s_lshl_b32 s14, {s(S_PB)}, 1
            s_add_u32 s58, s58, s14
            s_lshl_b32 s14, s58, 6
            s_add_u32 s14, s14, {28*64}
            s_cmp_ge_u32 s58, 56
            s_cselect_b32 s14, 0x40000000, s14
            """)
            exx = [(1 + (k * 30) // len(zops), x) for k, x in enumerate(zops)]
            for i in range(7):
                exx += [(2 + 3*i, I(f"buffer_load_dwordx4 {a(AW+4*i,4)}, v4, s[52:55], s14 offen")), (2 + 3*i, I("s_add_u32 s14, s14, 5376"))]
            exx += [(24, I(f"global_load_dwordx4 {a(AW+28,4)}, v5, s[12:13]"))]
        B(av % 4, (lambda av: lambda it: av)(av), aval=av, extra_valu=exx)
    if not opts.get("pst"): stamp(p, 3)
    for qt in range(2):
        at.xreduce(p, V_L + qt, "v_add_f32")
        p(f"v_rcp_f32 v{2+qt}, {v(V_L+qt)}")
    p("s_mov_b32 s57, 0x40000000")
    p(f"WAITFOR {a(AW,32)}")
    p("s_waitcnt lgkmcnt(0)")
    modblock(False, MW=48, CR=76, MC=104, MA=80, MT=120, MS=30, scr=161792,
             pre=[I(f"v_accvgpr_read_b32 v{48+k}, a{AW+k}") for k in range(32)])
    X1B = 28672; X2B = 8 * SLOT
    def xaddr(ks, q):
        return X1B + (4*ks + q) * 1024 if ks < 9 else X2B + (4*(ks-9) + q) * 1024
    XKEY = [(2, 250), (3, 250), (8, 250), ("T", 250)]
    p(f"""
    s_and_b32 s14, {s(S_W)}, 1
    s_lshl_b32 s14, s14, 11
    s_mul_i32 s15, {s(S_HD)}, 32768
    s_add_u32 s15, s15, s14
    s_add_u32 s15, s15, {X1B}
    v_add_u32 v4, s15, {v(V_LIN)}
    s_mul_i32 s15, {s(S_HD)}, {X2B - X1B - 4096}
    s_add_u32 s15, s15, s14
    s_add_u32 s15, s15, {X1B}
    v_add_u32 v5, s15, {v(V_LIN)}
    v_add_u32 v6, {X1B}, {v(V_LIN)}
    v_add_u32 v7, {X2B}, {v(V_LIN)}
    s_lshl_b32 s14, {s(S_PB)}, 7
    s_add_u32 s14, s14, {WS_FLAG}
    v_mov_b32 v13, s14
    v_mov_b32 v10, 1
    v_mov_b32 v9, 12
    s_barrier
    """)
    for u in range(8):
        for qt in range(2):
            X = V_O + 16*u + 4*qt
            Y = X + 8
            sel = "op_sel_hi:[1,0]" if qt == 0 else "op_sel:[0,1] op_sel_hi:[1,1]"
            for r in (X, X+2, Y, Y+2):
                p(f"v_pk_mul_f32 {v(r,2)}, {v(r,2)}, v[2:3] {sel}")
            p(f"v_cvt_pk_bf16_f32 v{X}, v{X}, v{X+1}")
            p(f"v_cvt_pk_bf16_f32 v{X+1}, v{X+2}, v{X+3}")
            p(f"v_cvt_pk_bf16_f32 v{X+2}, v{Y}, v{Y+1}")
            p(f"v_cvt_pk_bf16_f32 v{X+3}, v{Y+2}, v{Y+3}")
            p(f"ds_write_b128 v{4 if u == 0 else 5}, {v(X,4)} offset:{4096*u + 1024*qt}", tag=("wr", XKEY))
    ACC = V_O
    p(f"""
    s_and_b32 s15, {s(S_J)}, 1
    s_lshl_b32 s15, s15, 2
    s_and_b32 s32, {s(S_PB)}, 3
    s_add_u32 s32, s32, s15              ; fb
    s_lshr_b32 s15, {s(S_J)}, 1
    s_lshl_b32 s15, s15, 3
    s_lshr_b32 s33, {s(S_PB)}, 2
    s_add_u32 s33, s33, s15              ; tb
    s_mul_i32 s34, s32, 224
    s_mul_i32 s36, {s(S_W)}, {32*3584}
    s_add_u32 s34, s34, s36
    s_add_u32 s37, s34, 1792
    s_mul_i32 s36, {s(S_W)}, 7168
    """)
    A_OB = 0
    NRW = 8
    def wrd(st, mt):
        pr = at.OPAIR[st % 3]
        reg, off = (WRB + mt, 0) if pr == 0 else (WRA + mt, (pr - 2) * 2 * SLOT)
        f = st * 7 + mt
        return [I(f"ds_read_b64_tr_b16 {a(A_F + 4*(f % NRW) + 2*e, 2)}, v{reg} offset:{off + e*14336}", tag=("rd", at.okeys(st))) for e in range(2)]
    def brd(st):
        ky = [(2, 250), (3, 250), ("T", 250)] if st < 9 else [(8, 250)]
        return [I(f"ds_read_b128 {a(A_OB + 16*(st % 2) + 4*q, 4)}, v{6 if st < 9 else 7} offset:{xaddr(st, q) - (X1B if st < 9 else X2B)}",
                  tag=("rd", ky)) for q in range(4)]
    LF = opts.get("lf", 2)
    for f in range(LF):
        p.extend(wrd(0, f))
    p("s_waitcnt lgkmcnt(0)")
    p("s_barrier")
    if opts.get("ost"): stamp(p, 4)
    p.extend(brd(0))
    G = 28
    gb = G - 4 * LF - 1
    for st in range(16):
        kind = ["m"] * G
        SC = [[] for _ in range(G + 1)]
        VE = [[] for _ in range(G)]
        if st < 15:
            kind[gb] = "B"
            VE[gb] = [I("WAITTAG", tag=at.okeys(st + 1)), I("s_barrier")]
        if 0 < st < 15:
            kind[0] = "B"
            VE[0] = [I("s_barrier")]
        if st + 2 < 16:
            new = [at.ofill(st + 2, hf) + ([],) for hf in range(2)]
        else:
            new = zfill(st - 14)
        newl = []
        for pre, d, post in new:
            for k, x in enumerate(d):
                newl.append((pre if k == 0 else [], x, post if k == len(d) - 1 else []))
        dpos = [3, 5, 7, 9, 12, 14, 16, 20]
        if st == 4:
            newl.append(([], I(f"buffer_atomic_add v10, v11, {s(SRD_D,4)}, s57 offen offset:12 sc1"), []))
        if st == 14:
            newl.append(([], I(f"buffer_load_dword v15, v9, {s(SRD_D,4)}, 0 offen sc1"), []))
        if st == opts.get("eflag", 15):
            newl.append(([], I(f"buffer_load_dword v14, v13, {s(SRD_W,4)}, 0 offen sc1"), []))
        for g, it in zip(dpos, newl):
            pre, x, post = it
            kind[g] = "d"; VE[g] = [x]
            for k, y in enumerate(pre):
                SC[g - len(pre) + k].append(y)
            SC[g + 1] += post
        dsq = []
        for mt in range(7):
            nf = mt + LF
            if nf < 7: rr = wrd(st, nf)
            elif st < 15: rr = wrd(st + 1, nf - 7)
            else: rr = []
            dsq += [(4*mt + k, x) for k, x in enumerate(rr)]
        if st < 15:
            dsq += [(17 + k, x) for k, x in enumerate(brd(st + 1))]
        dsq.sort(key=lambda z: z[0])
        nds = [0] * G
        q = 0
        for g in range(G):
            while kind[g] == "m" and q < len(dsq) and dsq[q][0] <= g and nds[g] < (2 if dsq[q][0] <= g - 2 else 1):
                VE[g].append(dsq[q][1]); nds[g] += 1; q += 1
        assert q == len(dsq)
        ops = []
        mg = [g for g in range(G) if kind[g] == "m" and nds[g] < 2]
        for k, x in enumerate(ops):
            VE[mg[(k * len(mg)) // len(ops)]].append(x)
        for mt in range(1, 8):
            if mt == 7 and st == 15: continue
            g = 4*mt - 1
            while kind[g] != "m" or SC[g]: g -= 1
            ex = f", {a(A_OB + 16*((st+1) % 2), 16)}" if mt == 7 else ""
            SC[g].append(I(f"WAITFOR {a(A_F + 4*((st*7 + mt) % NRW), 4)}{ex}"))
        for g in range(G):
            mt, q = g // 4, g % 4
            D = v(ACC + 16*mt + 4*q, 4)
            p(f"v_mfma_f32_16x16x32_bf16 {D}, {a(A_F + 4*((st*7 + mt) % NRW), 4)}, {a(A_OB + 16*(st % 2) + 4*q, 4)}, {D if st else 0}")
            oabl = opts.get("oabl", "")
            p.extend([x for x in SC[g] + VE[g] if not (("D" in oabl and x.kind == "dma" and st < 14) or ("B" in oabl and x.kind == "barrier")
                                                       or ("R" in oabl and x.kind == "ds_read"))])
        p.extend(SC[G])
        if opts.get("ost") and st in (3, 7, 11): stamp(p, [5, 6, 7][st // 4])
    if opts.get("ost"):
        stamp(p, 8)
        k_prep.STAMP["on"] = False
    if not opts.get("pst"): stamp(p, 4)
    p(f"""
    s_lshl_b32 s14, {s(S_J)}, 7
    s_lshl_b32 s15, {s(S_PB)}, 2
    s_add_u32 s14, s14, s15
    s_mul_i32 s14, s14, {14*1024}
    s_mul_i32 s15, {s(S_W)}, 7
    s_add_u32 s15, s15, 1
    s_lshr_b32 s15, s15, 1
    s_lshl_b32 s15, s15, 10
    s_add_u32 s14, s14, s15
    s_add_u32 s14, s14, {WS_PART}
    s_and_b32 s50, {s(S_W)}, 1
    s_mul_i32 s15, s50, {2*14*1024 - 4096}
    s_add_u32 s15, s15, s14
    s_add_u32 s15, s15, 3072
    s_mul_i32 s51, {s(S_HD)}, {2*SLOT}
    s_add_u32 s51, s51, {4*SLOT + 28672}
    s_lshl_b32 s52, s50, 3
    s_add_u32 s52, s52, s51
    v_add_u32 v4, s52, {v(V_LIN)}
    s_lshl_b32 s52, s50, 11
    s_add_u32 s52, s52, s51
    v_add_u32 v5, s52, {v(V_LIN)}
    """)
    pt = ("wr", ("PT", 0), "private")
    for q in range(4):
        X = ACC + 96 + 4*q
        p(f"v_cvt_pk_bf16_f32 v{X}, v{X}, v{X+1}")
        p(f"v_cvt_pk_bf16_f32 v{X+1}, v{X+2}, v{X+3}")
        p(f"ds_write_b64 v4, {v(X,2)} offset:{1024*q}", tag=("wr", ("MG", 0)))
    for q in range(4):
        for pr in range(3):
            X = ACC + 32*pr + 4*q
            Y = X + 16
            p(f"v_cvt_pk_bf16_f32 v{X}, v{X}, v{X+1}")
            p(f"v_cvt_pk_bf16_f32 v{X+1}, v{X+2}, v{X+3}")
            p(f"v_cvt_pk_bf16_f32 v{X+2}, v{Y}, v{Y+1}")
            p(f"v_cvt_pk_bf16_f32 v{X+3}, v{Y+2}, v{Y+3}")
            p(f"buffer_store_dwordx4 {v(X,4)}, {v(V_LIN)}, {s(SRD_W,4)}, s14 offen offset:{pr*1024} sc1", tag=pt)
        if q < 3:
            p(f"s_add_u32 s14, s14, {14*1024}")
        if q == 0:
            p("s_waitcnt lgkmcnt(0)")
            p("s_barrier")
            for k in range(2):
                p(f"ds_read_b128 {v(ACC+112+4*k,4)}, v5 offset:{1024*k}", tag=("rd", ("MG", 0)))
    for k in range(2):
        p(f"buffer_store_dwordx4 {v(ACC+112+4*k,4)}, {v(V_LIN)}, {s(SRD_W,4)}, s15 offen sc1", tag=pt)
        p(f"s_add_u32 s15, s15, {14*1024}")
    p(f"""
    v_cmp_gt_u32 vcc, 56, v15
    s_cbranch_vccnz L_nslow{name}
    L_nok{name}:
    """)
    p.begin_side()
    p(f"L_nslow{name}:")
    p("s_mov_b32 s14, 0")
    poll(p, SRD_D, 14, 9, 15, "m3" + name, 56, 56, sleep=8)
    p(f"s_branch L_nok{name}")
    p.end_side()
    srd(p, SRD_K, 10, 11, 2048 * 896)
    emit_red_pre(p, S_W, S_PB, S_J, SRD_W, SRD_K, B=184)
    emit_red_early(p, SRD_W, 14)
    p(f"""
    s_lshl_b32 s14, {s(S_PB)}, 7
    s_add_u32 s14, s14, {WS_FLAG}
    """)
    p(f"s_lshl_b32 s15, 1, {s(S_J)}")
    signal(p, SRD_W, 14, S_W, "r" + name, vt=10, keys=[("PT", 0)], val="s15")
    stamp(p, 5)
    zl = [zfill(2), zfill(3), zfill(0, 1)]
    zl = flat(sum(zl, []))
    emit_red(p, S_W, S_PB, SRD_W, 163840 - 512, B=184, idle=zl)
    W4 = s(SRD_W, 4)
    ZACC = 128
    NRZ = 16
    A_H = 0
    A_FZ = 64
    VB = 16; RS = 48; VDB = 64; VRB = 72; Z1 = 80; GACC = 128
    RA = 6; A_A = 0; A_MU = 168; PB0 = 131072
    p(f"""
    s_lshr_b32 s15, {s(S_J)}, 1
    s_lshl_b32 s15, s15, 5
    s_add_u32 s14, s14, s15
    s_add_u32 s14, s14, 4096
    v_and_b32 v1, 63, v0
    v_lshlrev_b32 v2, 4, v1
    v_and_b32 v3, 15, v0                 ; n
    v_bfe_u32 v8, v0, 4, 2               ; g
    s_lshl_b32 s58, s33, 2
    s_add_u32 s58, s58, {s(S_W)}
    s_mul_i32 s4, s58, {14*1024}
    s_add_u32 s4, s4, {WS_H2}
    s_add_u32 s5, s4, 4096
    s_add_u32 s12, s4, 8192
    s_add_u32 s13, s4, 12288
    v_lshrrev_b32 v9, 2, v1
    v_mul_u32_u24 v9, 224, v9
    v_and_b32 v12, 3, v0
    v_lshl_add_u32 v12, v12, 3, v9
    v_add_u32 v13, {4*SLOT}, v12
    v_add_u32 v14, {8*SLOT}, v12
    v_mov_b32 v15, 0
    s_lshl_b32 s15, s33, 7
    s_lshl_b32 s50, {s(S_W)}, 5
    s_add_u32 s15, s15, s50
    s_add_u32 s15, s15, {WS_FLAG + 4096}
    """)
    signal(p, SRD_W, 14, S_W, "z" + name, vt=48, keys=[("H2", 0)])
    stamp(p, 7)
    p("s_cmp_lg_u32 s54, 0")
    p(f"s_cbranch_scc1 L_zf{name}")
    p.extend(zl)
    p(f"L_zf{name}:")
    srd(p, SRD_V, 6, 7, 2048 * 4096 + 4096)
    p(f"""
    s_sub_u32 {s(SRD_V)}, {s(SRD_V)}, 4096
    s_subb_u32 {s(SRD_V+1)}, {s(SRD_V+1)}, 0
    s_mov_b32 s50, s32
    s_mov_b32 s51, s33
    v_lshrrev_b32 v9, 3, v1
    v_lshlrev_b32 v9, 12, v9
    v_and_b32 v4, 7, v0
    v_xor_b32 v4, v4, v8
    v_lshl_add_u32 v4, v4, 4, v9
    v_xor_b32 v5, 64, v4
    """)
    for m in range(8):
        nl = m // 2
        if m % 2 == 0:
            p(f"s_add_u32 s52, {s(S_W)}, {nl}")
            p(f"s_and_b32 s52, s52, 3")
            p(f"s_lshl_b32 s52, s52, 16")
        p(f"s_add_u32 s53, s52, {(m % 2)*32768 + 4096 - (m % 4)*1024}")
        p(f"v_add_u32 v{VDB+m}, s53, v{4 + m % 2}")
    p(f"""
    s_lshl_b32 s52, s51, 18
    s_lshl_b32 s53, {s(S_W)}, 10
    s_add_u32 s52, s52, s53
    s_lshl_b32 s54, s50, 6
    s_lshl_b32 s53, {s(S_W)}, 4
    s_add_u32 s54, s54, s53
    s_mul_i32 s54, s54, 7168
    s_add_u32 s54, s54, {WS_ZZ}
    s_add_u32 s55, s54, 4096
    s_lshl_b32 s53, {s(S_W)}, 13
    v_mov_b32 v4, {f2u(C2)}
    v_mov_b32 v6, {f2u(C1)}
    s_lshl_b32 s38, s50, 6
    s_lshr_b32 s39, s58, 1
    s_add_u32 s38, s38, s39
    s_mul_i32 s38, s38, 7168
    s_and_b32 s39, s58, 1
    s_lshl_b32 s39, s39, 9
    s_add_u32 s38, s38, s39
    s_add_u32 s38, s38, {WS_ZZ}
    s_add_u32 s39, s38, 4096
    v_and_b32 v10, 1, v8
    v_lshlrev_b32 v10, 10, v10           ; (g%2)*1024 : second tile of the pair
    v_lshrrev_b32 v11, 1, v8
    v_lshl_add_u32 v10, v11, 8, v10      ; + (g/2)*256
    v_lshl_add_u32 v10, v3, 4, v10       ; + n*16
    v_lshlrev_b32 v11, 20, v10
    v_and_b32 v11, 0x40000000, v11
    v_or_b32 v11, v11, v10
    """)
    BSL = [0, 2, 1, 3, 4]
    BOV = {0: [0, 1], 1: [2, 3], 2: [4, 5], 3: [6, 7], 4: [8]}
    def bdma(dd, half, first=False):
        pre = [I(f"s_add_u32 m0, s53, {BSL[dd % 5]*32768 + half*4096}")]
        tg = ("dma", [(f"B{dd % 5}", dd)] + [(k, 400) for k in BOV[BSL[dd % 5]]]) if first else ("dma", (f"B{dd % 5}", dd), "private")
        out = [I(f"buffer_load_dwordx4 v{VDB+4*half+k}, {s(SRD_V,4)}, s52 offen offset:{k*1024} lds", tag=tg) for k in range(4)]
        post = [I("s_add_u32 s52, s52, 128")] if half else []
        return pre, out, post
    LEADZ = 6
    def zreads(z1):
        rds = []
        for u in range(14):
            rnd = u // 4
            ab = ZBASE[z1][rnd] + (u % 4) * 7168
            base, off = (12, ab) if ab < 4 * SLOT else (13, ab - 4 * SLOT) if ab < 8 * SLOT else (14, ab - 8 * SLOT)
            for ft in range(7):
                f = u * 7 + ft + 98 * z1
                rds.append([I(f"ds_read_b64_tr_b16 {a(A_FZ + 4*(f % NRZ) + 2*e, 2)}, v{base} offset:{off + e*3584 + 32*ft}",
                              tag=("rd", ZKEYS[z1][rnd])) for e in range(2)])
        return rds
    def zgemm(z1, rds, acc, hook=None):
        for g in range(98):
            for hk in (hook or {}).get(g, []):
                p(hk)
            u, ft = g // 7, g % 7
            f = g + 98 * z1
            D = v(acc + 4*ft, 4)
            Wf = a(A_FZ + 4*(f % NRZ), 4)
            H = a(A_H + 4*u, 4)
            C = D if u else "0"
            p(f"v_mfma_f32_16x16x32_bf16 {D}, {Wf}, {H}, {C}" if z1 else f"v_mfma_f32_16x16x32_bf16 {D}, {H}, {Wf}, {C}")
            if g + 1 < 98 and (g % 2 == 1 or ft == 6):
                ex = f", {a(A_H + 4*(u+1), 4)}" if ft >= 5 and u < 13 else ""
                p(f"WAITFOR {a(A_FZ + 4*((f+1) % NRZ), 4)}, {a(A_FZ + 4*((f+2) % NRZ), 4)}{ex}")
            if g + LEADZ < 98:
                p.extend(rds[g + LEADZ])
    def interleave(gl, bl):
        step = max(1, len(gl) // len(bl))
        for k, x in enumerate(gl):
            if k % step == 0 and bl:
                p.extend(bl.pop(0))
            p(x)
        for x in bl:
            p.extend(x)
    def groups(gs):
        out = []
        for pre, o, post in gs:
            for k, x in enumerate(o):
                out.append((pre if k == 0 else []) + [x] + (post if k == len(o) - 1 else []))
        return out
    rz = zreads(0)
    for x in rz[:LEADZ]:
        p.extend(x)
    poll(p, SRD_W, 15, 15, 48, "z" + name, 56, 2)
    stamp(p, 8)
    for u in range(14):
        p(f"buffer_load_dwordx4 {a(A_H+4*u,4)}, v2, {W4}, s{[4,5,12,13][u//4]} offen offset:{(u % 4)*1024}{LD}")
    hk = {29: ["s_barrier"]}
    NZI = opts.get("nzi", 1)
    for r in range(NZI):
        g0 = 28 * (r + 1) + 2
        if r: hk.setdefault(g0 - 1, []).append("s_barrier")
        for k, x in enumerate(groups(zfill(r + 1, 1))):
            hk.setdefault(g0 + 3 * k, []).extend(x)
    zgemm(0, rz, ZACC, hook=hk)
    p("s_barrier")
    if not opts.get("zst"): stamp(p, 9)
    gp = Prog("tmp")
    gelu_pairs(gp, [ZACC + 2*k for k in range(14)], 24)
    interleave(gp.items, groups(sum([zfill(r, 1) for r in range(NZI + 1, 4)], [])))
    for k in range(0, 4, 2):
        p(f"v_pk_add_f32 {v(32+k,2)}, {v(ZACC+k,2)}, {v(ZACC+4+k,2)}")
        p(f"v_pk_mul_f32 {v(36+k,2)}, {v(ZACC+k,2)}, {v(ZACC+k,2)}")
    for ft in range(1, 7):
        for k in range(0, 4, 2):
            if ft >= 2:
                p(f"v_pk_add_f32 {v(32+k,2)}, {v(32+k,2)}, {v(ZACC+4*ft+k,2)}")
            p(f"v_pk_fma_f32 {v(36+k,2)}, {v(ZACC+4*ft+k,2)}, {v(ZACC+4*ft+k,2)}, {v(36+k,2)}")
    for sh in (8, 4, 2, 1):
        for k in range(8):
            p(f"v_add_f32_dpp v{32+k}, v{32+k}, v{32+k} row_ror:{sh} row_mask:0xf bank_mask:0xf")
    p(f"""
    v_cmp_eq_u32 vcc, 0, v3
    v_cndmask_b32 v40, v34, v32, vcc
    v_cndmask_b32 v41, v38, v36, vcc
    v_cndmask_b32 v42, v35, v33, vcc
    v_cndmask_b32 v43, v39, v37, vcc
    v_or_b32 v41, 0x80000000, v41
    v_or_b32 v43, 0x80000000, v43
    v_lshlrev_b32 v9, 5, v8
    v_lshl_add_u32 v9, v3, 4, v9
    v_mov_b32 v25, 0x40000000
    v_cmp_gt_u32 vcc, 2, v3
    v_cndmask_b32 v9, v25, v9, vcc
    s_lshl_b32 s12, s58, 10
    s_add_u32 s12, s12, {WS_ST2}
    s_lshl_b32 s13, s50, 7
    s_add_u32 s13, s13, s12
    buffer_store_dwordx4 v[40:43], v9, {W4}, s13 offen sc1
    v_and_b32 v9, 7, v3
    v_lshlrev_b32 v9, 7, v9
    v_lshl_add_u32 v9, v8, 5, v9
    v_lshrrev_b32 v25, 3, v3
    v_lshl_add_u32 v9, v25, 4, v9
    """)
    rz = zreads(1)
    for x in rz[:LEADZ]:
        p.extend(x)
    p(I("WAITTAG", tag=ZKEYS[1][1] + ZKEYS[1][2]))
    p("s_barrier")
    Z1ACC = 160
    p(f"""
    s_lshl_b32 s15, s50, 9
    s_add_u32 s15, s15, {WS_FLAG + 8192}
    s_lshr_b32 s14, s51, 3
    s_lshl_b32 s14, s14, 7
    s_add_u32 s14, s14, s15
    s_lshl_b32 s13, {s(S_W)}, 7
    s_add_u32 s15, s15, s13
    """)
    hk = {}
    NBZ = opts.get("nbz", 2)
    for dd in range(NBZ):
        g0 = 28 * dd + 2
        if dd: hk.setdefault(g0 - 1, []).extend([I("WAITTAG", tag=ZKEYS[1][3]), "s_barrier"])
        for k, x in enumerate(groups([bdma(dd, hf, first=True) for hf in range(2)])):
            hk.setdefault(g0 + 3 * k, []).extend(x)
    hk.setdefault(opts.get("spoll", 76), []).append(f"buffer_load_dwordx4 v[32:35], v9, {W4}, s12 offen sc1")
    zgemm(1, rz, Z1ACC, hook=hk)
    p(f"""
    s_mov_b32 s56, 0x100000
    s_waitcnt vmcnt(0)
    s_branch L_sp2{name}
    L_sp1{name}:
    buffer_load_dwordx4 v[32:35], v9, {W4}, s12 offen sc1
    s_waitcnt vmcnt(0)
    L_sp2{name}:
    v_and_b32 v36, v33, v35
    v_cmp_le_i32 vcc, 0, v36
    s_cbranch_vccz L_sp3{name}
    s_sub_u32 s56, s56, 1
    s_cmp_lg_u32 s56, 0
    s_cbranch_scc1 L_sp1{name}
    L_sp3{name}:
    """)
    for ctl in ("quad_perm:[1,0,3,2]", "quad_perm:[2,3,0,1]", "row_half_mirror"):
        for k in range(4):
            p(f"v_add_f32_dpp v{32+k}, v{32+k}, v{32+k} {ctl} row_mask:0xf bank_mask:0xf")
    for k in range(2):
        p(f"v_mul_f32 v{38+k}, {f2u(1.0/896)}, v{32+2*k}")
        p(f"v_mul_f32 v{36+k}, {f2u(-1.0/896)}, v{33+2*k}")
        p(f"v_fma_f32 v{36+k}, -v{38+k}, v{38+k}, v{36+k}")
        p(f"v_max_f32 v{36+k}, 0, v{36+k}")
        p(f"v_add_f32 v{36+k}, {f2u(1e-5)}, v{36+k}")
        p(f"v_rsq_f32 v{36+k}, v{36+k}")
        p(f"v_mul_f32 v{38+k}, -v{38+k}, v{36+k}")
    for k in range(4):
        p(f"v_mov_b32 v{40+k}, v{36+k}")
        p(f"v_mov_b32 v{44+k}, v{36+k}")
    for k in range(4):
        p(f"v_mov_b32_dpp v{40+k}, v{36+k} row_ror:8 row_mask:0xf bank_mask:0xc")
        p(f"v_mov_b32_dpp v{44+k}, v{36+k} row_ror:8 row_mask:0xf bank_mask:0x3")
    zt = ("wr", ("ZZ", 0), "private")
    for pr in range(4):
        X = ZACC + 8*pr
        for k in range(4 if pr < 3 else 2):
            c = 40 + 4*(k % 2)
            p(f"v_pk_fma_f32 {v(X+2*k,2)}, {v(X+2*k,2)}, {v(c,2)}, {v(c+2,2)}")
        Y = 24 + 4*(pr % 2)
        for k in range(4):
            sx = X + 2*k if pr < 3 else X + 2*(k % 2)
            p(f"v_cvt_pk_bf16_f32 v{Y+k}, v{sx}, v{sx+1}")
        p(f"v_permlane16_swap_b32 v{Y}, v{Y+2}")
        p(f"v_permlane16_swap_b32 v{Y+1}, v{Y+3}")
        p(f"buffer_store_dwordx4 {v(Y,4)}, v{10 if pr < 3 else 11}, {W4}, s{38 + pr//2} offen offset:{(pr % 2)*2048} sc1", tag=zt)
    if opts.get("zst"): stamp(p, 9)
    p("s_barrier")
    gp = Prog("tmp")
    gelu_pairs(gp, [Z1ACC + 2*k for k in range(14)], 96)
    for k in range(14):
        gp(f"v_cvt_pk_bf16_f32 v{Z1+k}, v{Z1ACC+2*k}, v{Z1ACC+2*k+1}")
    NB1 = opts.get("nb1", 4)
    interleave(gp.items, groups([bdma(dd, hf, first=True) for dd in range(NBZ, NB1) for hf in range(2)]))
    signal(p, SRD_W, 14, S_W, "g" + name, vt=48, keys=[("ZZ", 0)])
    stamp(p, 10)
    RA = 5; A_A = 0; A_BR = 144
    p("s_load_dwordx2 s[4:5], s[0:1], 64")
    p("s_load_dwordx2 s[6:7], s[0:1], 96")
    p.extend(flat([bdma(dd, hf, first=True) for dd in range(NB1, 5) for hf in range(2)]))
    p(f"""
    v_lshrrev_b32 v9, 1, v3
    v_xor_b32 v9, v9, v8
    v_lshlrev_b32 v9, 4, v9
    v_lshl_add_u32 v9, v3, 7, v9
    v_add_u32 v{VRB}, s53, v9
    v_xor_b32 v{VRB+1}, 64, v{VRB}
    v_add_u32 v{VRB+2}, 0x10000, v{VRB}
    v_add_u32 v{VRB+3}, 0x10000, v{VRB+1}
    v_add_u32 v{VRB+4}, 0x20000, v{VRB}
    v_add_u32 v{VRB+5}, 0x20000, v{VRB+1}
    s_lshl_b32 s35, s58, 5
    v_lshlrev_b32 v12, 1, v3
    v_mov_b32 v49, 0
    s_waitcnt lgkmcnt(0)
    """)
    srd(p, SRD_K, 4, 5, 4096)
    srd(p, SRD_O, 8, 9, 896 * 896)
    srd(p, SRD_Q, 6, 7, 2048 * 896)
    p(f"buffer_load_ushort v{Z1+14}, v12, {s(SRD_K,4)}, s35 offen")
    p(f"""
    s_lshl_b32 s33, {s(S_J)}, 2
    s_and_b32 s32, {s(S_PB)}, 3
    s_add_u32 s33, s33, s32              ; tb'
    s_lshr_b32 s32, {s(S_PB)}, 2         ; cb
    v_lshrrev_b32 v54, 3, v1
    v_mul_u32_u24 v54, 896, v54
    v_lshlrev_b32 v55, 1, v8
    v_and_b32 v50, 7, v0
    v_xor_b32 v55, v55, v50
    v_lshl_add_u32 v50, v55, 4, v54
    v_add_u32 v51, {7168-1024}, v50
    v_add_u32 v52, {2*(7168-1024)}, v50
    v_add_u32 v53, {3*(7168-1024)}, v50
    s_mul_i32 s59, {s(S_W)}, {224*896}
    s_lshl_b32 s57, s32, 7
    s_add_u32 s59, s59, s57
    """)
    WOFFS = [98304, 102400, 131072, 135168, 0, 4096, 32768]
    def wdma(ks):
        tg = ("dma", [(f"W{ks}", 0), (f"B{3 + ks // 2}", 90)], "private") if ks < 4 else ("dma", [(f"W{ks}", 0), ("X", 1)])
        return ([I(f"s_add_u32 m0, s53, {WOFFS[ks]}")],
                [I(f"buffer_load_dwordx4 v{50+k}, {s(SRD_O,4)}, s59 offen offset:{k*1024} lds", tag=tg) for k in range(4)],
                [I(f"s_add_u32 s59, s59, {4*7168}")])
    def breg(ks, nl):
        return a(A_BR + 16*ks + 4*nl, 4) if ks < 6 else v(VB + 16*(ks % 2) + 4*nl, 4)
    def b_reads(ks):
        dd = ks // 2
        sl = BSL[dd % 5]
        return [I(f"ds_read_b128 {breg(ks, nl)}, v{VRB + 2*(sl//2) + ks % 2} offset:{(sl % 2)*32768 + nl*2048}",
                  tag=("rd", (f"B{dd % 5}", dd), "private")) for nl in range(4)]
    NB2 = opts.get("nb2", 8)
    for dd in range(3):
        p(I("WAITTAG", tag=[(f"B{dd}", dd)]))
        p.extend(b_reads(2*dd) + b_reads(2*dd + 1))
    for dd in range(5, NB2):
        p(I("WAITTAG", tag=[("rd", f"B{dd % 5}", dd - 5)]))
        p.extend(flat([bdma(dd, hf) for hf in range(2)]))
    poll(p, SRD_W, 15, 49, 48, "g" + name, 56, 8)
    stamp(p, 11)
    def aload(ks):
        out = [I(f"buffer_load_dwordx4 {a(A_A + 28*(ks % RA) + 4*mt, 4)}, v2, {W4}, s{54 + mt//4} offen offset:{(mt % 4)*1024}{LD}")
               for mt in range(7)]
        post = [I("s_add_u32 s54, s54, 7168"), I("s_add_u32 s55, s55, 7168")]
        return out, post
    NA0 = opts.get("na0", 3)
    for ks in range(NA0):
        o, post = aload(ks); p.extend(o); p.extend(post)
    nexta = NA0
    nextb = 2 * NB2
    for ks in range(16):
        SC = [[] for _ in range(29)]
        VE = [[] for _ in range(28)]
        kind = ["m"] * 28
        vm = []
        while nexta < 16 and nexta <= ks + RA - 1 and len(vm) < (8 if ks == 0 else 1):
            o, post = aload(nexta); nexta += 1
            vm.extend([([], x, post if k == 6 else []) for k, x in enumerate(o)])
        if ks >= 2 and nextb < 16:
            pre, o, post = bdma(nextb // 2, nextb % 2); nextb += 1
            vm.extend([(pre if k == 0 else [], x, post if k == 3 else []) for k, x in enumerate(o)])
        if ks in (12, 13):
            for kk in (2*(ks-12), 2*(ks-12)+1):
                pre, o, post = wdma(kk)
                vm.extend([(pre if k == 0 else [], x, post if k == 3 else []) for k, x in enumerate(o)])
        for k, (pre, x, post) in enumerate(vm):
            g = 2 * k if len(vm) > 9 else 1 + 3 * k
            kind[g] = "d"; VE[g] = [x]
            if pre: SC[g - 1] += pre
            SC[g + 1] += post
        mg = [g for g in range(28) if kind[g] == "m"]
        if 6 <= ks + 1 < 16:
            if (ks + 1) % 2 == 0:
                SC[mg[0]].insert(0, I("WAITTAG", tag=[(f"B{((ks+1)//2) % 5}", (ks+1)//2)]))
            for k, x in enumerate(b_reads(ks + 1)):
                VE[mg[k + 1]].append(x)
        for mt in range(1, 8):
            if mt == 7 and ks == 15: continue
            g = 4*mt - 1
            while kind[g] != "m": g -= 1
            k2, m2 = (ks, mt) if mt < 7 else (ks + 1, 0)
            ex = "".join(", " + breg(ks + 1, nl) for nl in range(4)) if mt == 7 else ""
            SC[g].append(I(f"WAITFOR {a(A_A + 28*(k2 % RA) + 4*m2, 4)}{ex}"))
        for g in range(28):
            mt, nl = g // 4, g % 4
            D = v(GACC + 16*mt + 4*nl, 4)
            p(f"v_mfma_f32_16x16x32_bf16 {D}, {a(A_A + 28*(ks % RA) + 4*mt, 4)}, {breg(ks, nl)}, {D if ks else 0}")
            for x in SC[g] + VE[g]:
                p(x)
            if ks == 15:
                if g == 0:
                    p("v_add_u32 v4, s53, v2")
                    p("v_add_u32 v13, 0x10000, v4")
                g2 = g - 8
                if g2 >= 0 and g2 % 4:
                    p(f"ds_write_b128 v{13 if g2 % 4 == 3 else 4}, {v(GACC + 16*(g2//4) + 4*(g2 % 4), 4)} offset:{((g2 % 4 - 1) % 2)*32768 + (g2//4)*1024}", tag=("wr", ("X", 0)))
        assert not SC[28]
    assert nexta == 16 and nextb == 16
    stamp(p, 12)
    for nl in range(1, 4):
        p(f"s_sub_u32 s34, {s(S_W)}, {nl}")
        p(f"s_and_b32 s34, s34, 3")
        p(f"s_lshl_b32 s34, s34, 13")
        p(f"s_add_u32 s34, s34, {(nl-1)*32768}")
        p(f"v_add_u32 v{4+nl}, s34, v2")
    for mt in range(5, 7):
        for nl in range(1, 4):
            p(f"ds_write_b128 v{13 if nl == 3 else 4}, {v(GACC + 16*mt + 4*nl, 4)} offset:{((nl-1) % 2)*32768 + mt*1024}", tag=("wr", ("X", 0)))
    p("s_waitcnt lgkmcnt(0)")
    p("s_barrier")
    for mt in range(7):
        for nl in range(1, 4):
            p(f"ds_read_b128 {v(GACC + 16*mt + 4*nl, 4)}, v{4+nl} offset:{mt*1024}", tag=("rd", ("X", 0)))
    p(f"""
    s_mul_i32 s34, s58, {28*1024}
    s_add_u32 s34, s34, {WS_U}
    s_mul_i32 s35, s50, 7
    s_add_u32 s36, s35, 1
    s_lshr_b32 s36, s36, 1
    s_lshl_b32 s36, s36, 10
    s_add_u32 s36, s36, s34
    s_and_b32 s37, s50, 1
    s_mul_i32 s37, s37, {4096 - 512}
    s_sub_u32 s37, s36, s37
    s_add_u32 s37, s37, 3072
    v_lshlrev_b32 v14, 3, v1
    v_lshlrev_b32 v{Z1+14}, 16, v{Z1+14}
    """)
    def red(mt, n=2):
        X = GACC + 16*mt
        for h in range(n):
            p(f"v_pk_add_f32 {v(X+2*h,2)}, {v(X+2*h,2)}, {v(X+4+2*h,2)}")
            p(f"v_pk_add_f32 {v(X+8+2*h,2)}, {v(X+8+2*h,2)}, {v(X+12+2*h,2)}")
        for h in range(n):
            p(f"v_pk_add_f32 {v(X+2*h,2)}, {v(X+2*h,2)}, {v(X+8+2*h,2)}")
    p(f"v_mov_b32 v8, v{Z1+14}")
    for ft in range(7):
        red(ft)
        X = GACC + 16*ft
        for h in range(2):
            p(f"v_pk_add_f32 {v(X+2*h,2)}, {v(X+2*h,2)}, v[8:9] op_sel_hi:[1,0]")
            p(f"v_lshlrev_b32 v{10+2*h}, 16, v{Z1+2*ft+h}")
            p(f"v_and_b32 v{11+2*h}, 0xffff0000, v{Z1+2*ft+h}")
            p(f"v_pk_mul_f32 {v(X+2*h,2)}, {v(X+2*h,2)}, {v(10+2*h,2)}")
        Y = GACC + 16*(ft & ~1) + 4 + 2*(ft % 2)
        p(f"v_cvt_pk_bf16_f32 v{Y}, v{X}, v{X+1}")
        p(f"v_cvt_pk_bf16_f32 v{Y+1}, v{X+2}, v{X+3}")
        if ft % 2 == 1:
            p(f"buffer_store_dwordx4 {v(Y-2,4)}, v2, {W4}, s36 offen offset:{(ft//2)*1024} sc1", tag=("wr", ("U", 0), "private"))
        if ft == 6:
            p(f"buffer_store_dwordx2 {v(Y,2)}, v14, {W4}, s37 offen sc1", tag=("wr", ("U", 0), "private"))
    p("s_barrier")
    OACC = 64; A_B = 0; A_FO = 112; NRO = 8
    p(f"""
    v_bfe_u32 v8, v0, 4, 2
    s_lshl_b32 s14, s51, 7
    s_add_u32 s14, s14, {WS_FLAG + 12288}
    """)
    NW0 = opts.get("nw0", 5)
    for ks in range(4, NW0):
        p.extend(flat([wdma(ks)]))
    p("s_lshl_b32 s15, 1, s50")
    signal(p, SRD_W, 14, S_W, "o" + name, vt=48, keys=[("U", 0)], val="s15")
    stamp(p, 13)
    p(f"s_cmp_ge_u32 {s(S_PB)}, 28")
    p(f"s_cbranch_scc1 L_bump{name}")
    p.begin_side()
    p(f"""
    L_bump{name}:
    s_cmp_lg_u32 s2, 255
    s_cbranch_scc1 L_end{name}
    s_add_u32 s12, s100, 1
    s_add_u32 s13, s101, 1
    v_mov_b32 v4, s12
    v_mov_b32 v5, s13
    v_mov_b32 v6, {WS_EP}
    buffer_store_dwordx2 v[4:5], v6, {W4}, 0 offen sc1
    s_endpgm
    """)
    p.end_side()
    for ks in range(NW0, 7):
        p.extend(flat([wdma(ks)]))
    X1 = 16; GB = 24
    for nl in range(4):
        p(f"s_add_u32 s36, {s(S_W)}, {nl}")
        p(f"s_and_b32 s36, s36, 3")
        p(f"s_lshl_b32 s37, s33, 2")
        p(f"s_add_u32 s36, s36, s37")
        p(f"s_mul_i32 s36, s36, {28*1024}")
        p(f"s_mul_i32 s37, {s(S_W)}, 7168")
        p(f"s_add_u32 s36, s36, s37")
        p(f"s_add_u32 s{4+nl}, s36, {WS_U}")
        p(f"s_add_u32 s{8+nl}, s{4+nl}, 4096")
    p(f"""
    s_lshl_b32 s36, s33, 2
    s_add_u32 s36, s36, {s(S_W)}
    s_mul_i32 s37, s36, {14*1024}
    s_lshl_b32 s38, s32, 11
    s_add_u32 s37, s37, s38
    s_add_u32 s37, s37, {WS_X1}
    buffer_load_dwordx4 {v(X1,4)}, v2, {W4}, s37 offen sc1
    buffer_load_dwordx4 {v(X1+4,4)}, v2, {W4}, s37 offen offset:1024 sc1
    v_lshlrev_b32 v9, 4, v8
    s_lshl_b32 s38, s32, 8
    s_add_u32 s38, s38, {WS_MOD + 5*1792}
    """)
    for ct in range(4):
        p(f"buffer_load_dwordx4 {v(GB+4*ct,4)}, v9, {W4}, s38 offen offset:{64*ct} sc1")
    p(f"""
    v_lshrrev_b32 v3, 2, v1
    v_lshlrev_b32 v3, 7, v3
    v_bfe_u32 v10, v0, 3, 2
    v_lshl_add_u32 v3, v10, 5, v3
    v_and_b32 v10, 3, v0
    v_lshl_add_u32 v3, v10, 3, v3
    v_add_u32 v12, s53, v3
    v_xor_b32 v13, 32, v12
    v_xor_b32 v14, 64, v12
    v_xor_b32 v15, 0x60, v12
    v_add_u32 v56, 98304, v12
    v_add_u32 v57, 98304, v13
    v_add_u32 v58, 98304, v14
    v_add_u32 v59, 98304, v15
    v_mov_b32 v10, 0
    v_lshlrev_b32 v11, 3, v1
    s_lshl_b32 s15, s33, 7
    s_add_u32 s15, s15, {WS_FLAG + 12288}
    """)
    p(f"s_lshl_b32 s36, {s(S_W)}, 1")
    p("s_lshl_b32 s36, 3, s36")
    poll(p, SRD_W, 15, 10, 48, "o" + name, 56, "s36", mask="s36")
    stamp(p, 14)
    ul = [I(f"buffer_load_dwordx4 {a(A_B + 16*ks + 4*nl, 4)}, v2, {W4}, s{4 + nl + 4*(ks//4)} offen offset:{(ks % 4)*1024}{LD}")
          for ks in range(7) for nl in range(4)]
    ul[12:16] = [I(f"buffer_load_dwordx2 {a(A_B + 48 + 4*nl + 2*h, 2)}, v11, {W4}, s{4 + nl} offen offset:{3072 + 512*h}{LD}")
                 for nl in range(4) for h in range(2)]
    p.extend(ul[:20]); ul = ul[20:]
    def rd(f):
        ks, ct = f // 4, f % 4
        return [I(f"ds_read_b64_tr_b16 {a(A_FO + 4*(f % NRO) + 2*e, 2)}, v{(56 if ks < 4 else 12)+ct} offset:{WOFFS[ks] - (98304 if ks < 4 else 0) + e*2048}",
                  tag=("rd", (f"W{ks}", 0), "private")) for e in range(2)]
    PFO = 4
    YO = [0, 0, 4096, 32768]
    for f in range(PFO):
        p.extend(rd(f))
    for f in range(28):
        ks, ct = f // 4, f % 4
        nx = f + PFO
        for nl in range(4):
            D = v(OACC + 16*ct + 4*nl, 4)
            p(f"v_mfma_f32_16x16x32_bf16 {D}, {a(A_FO + 4*(f % NRO), 4)}, {a(A_B + 16*ks + 4*nl, 4)}, {D if ks else 0}")
            if nx < 28 and nl < 2:
                p(rd(nx)[nl])
            if nl == 2 and ul:
                p(ul.pop(0))
            if nl == 3 and f + 1 < 28:
                p(f"WAITFOR {a(A_FO + 4*((f+1) % NRO), 4)}, {a(A_B + 16*((f+1)//4), 16)}")
            if f == 20 and nl == 2:
                p("v_add_u32 v4, s53, v2")
                p("v_add_u32 v4, 98304, v4")
            if f >= 26 and nl:
                p(f"ds_write_b128 v4, {v(OACC + 16*(f-26) + 4*nl, 4)} offset:{YO[nl] + (f-26)*1024}", tag=("wr", ("Y", 0)))
    for nl in range(1, 4):
        p(f"s_sub_u32 s36, {s(S_W)}, {nl}")
        p(f"s_and_b32 s36, s36, 3")
        p(f"s_lshl_b32 s36, s36, 13")
        p(f"s_add_u32 s36, s36, 98304")
        p(f"v_add_u32 v{4+nl}, s36, v2")
    for ct in range(2, 4):
        for nl in range(1, 4):
            p(f"ds_write_b128 v4, {v(OACC + 16*ct + 4*nl, 4)} offset:{YO[nl] + ct*1024}", tag=("wr", ("Y", 0)))
    p("s_waitcnt lgkmcnt(0)")
    p("s_barrier")
    for ct in range(4):
        for nl in range(1, 4):
            p(f"ds_read_b128 {v(OACC + 16*ct + 4*nl, 4)}, v{4+nl} offset:{YO[nl] + ct*1024}", tag=("rd", ("Y", 0)))
    p(f"""
    v_and_b32 v3, 15, v0
    v_mul_u32_u24 v3, 896, v3
    v_lshl_add_u32 v3, v8, 4, v3
    s_lshl_b32 s36, s33, 2
    s_add_u32 s36, s36, {s(S_W)}
    s_mul_i32 s36, s36, {16*896}
    s_lshl_b32 s37, s32, 7
    s_add_u32 s36, s36, s37
    """)
    for ct in range(4):
        X = OACC + 16*ct
        for h in range(2):
            p(f"v_pk_add_f32 {v(X+2*h,2)}, {v(X+2*h,2)}, {v(X+4+2*h,2)}")
            p(f"v_pk_add_f32 {v(X+8+2*h,2)}, {v(X+8+2*h,2)}, {v(X+12+2*h,2)}")
        for h in range(2):
            p(f"v_pk_add_f32 {v(X+2*h,2)}, {v(X+2*h,2)}, {v(X+8+2*h,2)}")
            p(f"v_lshlrev_b32 v{10}, 16, v{X1+2*ct+h}")
            p(f"v_and_b32 v{11}, 0xffff0000, v{X1+2*ct+h}")
            p(f"v_pk_fma_f32 {v(X+2*h,2)}, {v(X+2*h,2)}, {v(GB+4*ct+2*h,2)}, v[10:11]")
        k, odd = ct // 2, ct % 2
        O = 40 + 4*k + 2*odd
        p(f"v_cvt_pk_bf16_f32 v{O}, v{X}, v{X+1}")
        p(f"v_cvt_pk_bf16_f32 v{O+1}, v{X+2}, v{X+3}")
        if odd:
            O = 40 + 4*k
            p(f"v_permlane32_swap_b32 v{O}, v{O+2}")
            p(f"v_permlane32_swap_b32 v{O+1}, v{O+3}")
            p(f"v_permlane16_swap_b32 v{O}, v{O+2}")
            p(f"v_permlane16_swap_b32 v{O+1}, v{O+3}")
            p(f"buffer_store_dwordx4 {v(O,4)}, v3, {s(SRD_Q,4)}, s36 offen offset:{64*k}{opts.get('of', '')}")
    k_prep.STAMP["on"] = son
    if opts.get("amp"):
        a0, a1, mul = opts["amp"]
        p("s_waitcnt vmcnt(0)")
        stamp(p, 15)
        p(f"""
        s_sub_u32 s14, s{61+2*a1}, s{3 if opts.get("t0") else 61+2*a0}
        s_mul_i32 s14, s14, {mul}
        L_amp{name}:
        s_memrealtime s[98:99]
        s_waitcnt lgkmcnt(0)
        s_sub_u32 s15, s98, s91
        s_cmp_lt_u32 s15, s14
        s_cbranch_scc1 L_amp{name}
        """)
        k_prep.STAMP["on"] = False
    if opts.get("diag"):
        p("s_waitcnt vmcnt(0)")
        stamp(p, 15)
        p("v_mov_b32 v1, 0")
        p("s_mov_b64 exec, 1")
        p("s_not_b32 s14, s61")
        p("v_mov_b32 v2, s14")
        p(f"buffer_atomic_umax v2, v1, {s(SRD_D,4)}, 0 offen offset:8 sc1")
        for k, st in enumerate((1, 2, 3, 4, 5, 7, 10, 11, 12, 13, 15)):
            p(f"v_mov_b32 v3, s{61+2*st}")
            p(f"buffer_atomic_umax v3, v1, {s(SRD_D,4)}, 0 offen offset:{12+4*k} sc1")
            p("s_nop 1")
        p("s_mov_b64 exec, -1")
        k_prep.STAMP["on"] = False
    stamp_dump(p, opts.get("slot", 1), NSTAMP, SRD_W, S_W)
    p(f"L_end{name}:")
    p("s_endpgm")
    if opts.get("gabl") or opts.get("oabl"):
        p.check_lds = lambda: None
    p.finalize()
    return p


def gen_mega(opts=None):
    p0 = build_mega(opts or {})
    if (opts or {}).get("plain"):
        return p0, "; @launch grid=(256,1,1) block=(256,1,1) lds=163840\n"
    return p0, f"; @launch kernel={p0.name} grid=(256,1,1) block=(256,1,1) lds=163840\n"
```

```python
import sys
sys.path.insert(0, "work")
from k_attn import *
from k_z import gelu_pairs, C1, C2
from k_prep import LOG2E, QSCALE, xreduce
from k_red import emit_red_early
NSTAMP = 16

def build_mega(opts):
    opts = opts or {}
    name = opts.get("name", "adaLN_cond__gqa_block_cached__mixer_gmlp__prompt_kernel")
    p = Prog(name)
    at = Attn(opts)
    LD = opts.get("ld", " sc1")
    thr = opts.get("thr", 0x5f800000)
    SRD_D = 92
    if opts.get("t0"):
        x = I("s_memrealtime s[88:89]"); x.kind = "salu"; p(x)
    p(f"""
    s_cmp_ge_u32 s2, 256
    s_cbranch_scc1 L_end{name}
    s_load_dwordx4 s[52:55], s[0:1], 80
    s_load_dwordx2 s[50:51], s[0:1], 0
    s_load_dwordx8 s[4:11], s[0:1], 8
    s_load_dwordx4 s[56:59], s[0:1], 104
    v_lshrrev_b32 v1, 6, v0
    v_readfirstlane_b32 {s(S_W)}, v1
    s_and_b32 {s(S_J)}, s2, 7
    s_lshr_b32 {s(S_PB)}, s2, 3
    v_and_b32 v1, 63, v0
    v_lshlrev_b32 {v(V_LIN)}, 4, v1
    s_lshr_b32 {s(S_HD)}, {s(S_W)}, 1
    s_and_b32 s14, {s(S_W)}, 1
    s_lshl_b32 {s(S_QT)}, {s(S_PB)}, 2
    s_lshl_b32 s14, s14, 1
    s_add_u32 {s(S_QT)}, {s(S_QT)}, s14
    v_mov_b32 v2, 0x40000000
    v_cmp_gt_u32 vcc, 56, v1
    v_cndmask_b32 v19, v2, {v(V_LIN)}, vcc
    v_add_u32 v18, 144, v19
    v_add_u32 v17, 288, v19
    v_add_u32 v16, 432, v19
    s_lshl_b32 s14, {s(S_PB)}, 2
    s_add_u32 s14, s14, {s(S_W)}
    s_mul_i32 s14, s14, {16*896}            ; x soffset
    s_mul_i32 s15, {s(S_W)}, {SLOT}
    s_add_u32 s15, s15, {4*SLOT}
    s_waitcnt lgkmcnt(0)
    """)
    stamp(p, 0)
    if opts.get("t0"): p("s_mov_b32 s3, s88")
    ep = I(f"s_load_dwordx2 s[100:101], s[58:59], {WS_EP}"); ep.kind = "salu"
    p(ep)
    srd(p, SRD_W, 58, 59, WS_USED)
    srd(p, SRD_D, 56, 57, 256)
    srd(p, SRD_V, 54, 55, 448 * 5376)
    srd(p, SRD_O, 52, 53, 896)
    srd(p, SRD_K, 50, 51, 2048 * 896 + 432)
    p(f"""
    s_sub_u32 {s(SRD_K)}, {s(SRD_K)}, 432
    s_subb_u32 {s(SRD_K+1)}, {s(SRD_K+1)}, 0
    s_mov_b32 s31, 0
    v_and_b32 v127, 31, v0
    v_lshlrev_b32 v125, 3, v127
    s_mov_b32 s32, 0x40000000
    s_mov_b32 s33, 0x40000000
    """)
    MW = 72; CR = 100; MC = 20; MA = 36; MT = 44
    def raw(txt):
        x = I(txt); x.kind = "salu"; x.writes = []; return x
    p(f"""
    v_and_b32 v{MT}, 3, v0
    v_lshrrev_b32 v{MT+1}, 2, v0
    v_mul_u32_u24 v{MT+2}, 14, v{MT+1}
    v_mul_u32_u24 v{MT+3}, {7*5376}, v{MT+1}
    v_lshl_add_u32 v{MT+3}, v{MT}, 4, v{MT+3}
    s_lshl_b32 s12, s2, 6
    v_and_b32 v{MT+2}, -4, v{MT+2}
    s_cmp_ge_u32 s2, 28
    s_cbranch_scc1 L_mod1r{name}
    """)
    def wloads(f):
        for i in range(7):
            p(f(f"buffer_load_dwordx4 {v(MW+4*i,4)}, v{MT+3}, {s(SRD_V,4)}, s12 offen"))
            if i < 6:
                p(f"s_add_u32 s12, s12, 5376")
        p(f(f"buffer_load_dwordx4 {v(CR,4)}, v{MT+2}, {s(SRD_O,4)}, 0 offen"))
    wloads(raw)
    p(f"L_mod1r{name}:")
    XK = [(4, -1), (5, -1), (6, -1), (7, -1)]
    NX0 = opts.get("nx0", 16)
    def xdma(ms):
        for m in ms:
            if m % 4 == 0:
                p(f"s_add_u32 m0, s15, {m*1040}")
            p(f"buffer_load_dwordx4 v{16 + m % 4}, {s(SRD_K,4)}, s14 offen offset:{(m % 4)*1040} lds", tag=("dma", XK))
            if m % 4 == 3:
                p(f"s_add_u32 s14, s14, {4*896}")
    xdma(range(NX0))
    def modblock(urgent, MW=MW, CR=CR, MC=MC, MA=MA, MT=MT, MS=MT+8, scr=MODL+4096, pre=()):
        tg = ("u" if urgent else "n") + name
        st_ = opts.get("pst") and urgent
        if urgent:
            p("s_cmp_ge_u32 s2, 28")
        else:
            p("s_cmp_ge_u32 s58, 56")
        p(f"s_cbranch_scc1 L_mod2r{tg}")
        p.extend(pre)
        p(f"s_mov_b32 s13, {f2u(-LOG2E)}")
        p(f"v_bfe_u32 v{MT+1}, v0, 2, 1")
        p(f"v_lshlrev_b32 v{MT+1}, 4, v{MT+1}")
        if st_: stamp(p, 5)
        if urgent:
            p(raw(f"s_waitcnt vmcnt({NX0 + NYG})"))
        if st_: stamp(p, 6)
        for j in range(4):
            p(f"v_alignbit_b32 v{CR+j}, v{CR+min(j+1,3)}, v{CR+j}, v{MT+1}")
        for i in range(7):
            p(f"v_lshlrev_b32 v{MC+i}, 16, v{CR+i//2}" if i % 2 == 0 else f"v_and_b32 v{MC+i}, 0xffff0000, v{CR+i//2}")
        for i in range(7):
            p(f"v_mul_f32 v{MC+8+i}, s13, v{MC+i}")
        for i in range(7):
            p(f"v_exp_f32 v{MC+8+i}, v{MC+8+i}")
        for i in range(7):
            p(f"v_add_f32 v{MC+8+i}, 1.0, v{MC+8+i}")
        for i in range(7):
            p(f"v_rcp_f32 v{MC+8+i}, v{MC+8+i}")
        for i in range(7):
            p(f"v_mul_f32 v{MC+8+i}, v{MC+8+i}, v{MC+i}")
            p(f"v_cvt_pk_bf16_f32 v{MC+8+i}, v{MC+8+i}, v{MC+8+i}")
            p(f"v_lshlrev_b32 v{MS+2*i}, 16, v{MC+8+i}")
        for i in range(7):
            for d in range(4):
                w = MW + 4*i + d
                t = MC + 2 * d
                p(f"v_lshlrev_b32 v{t}, 16, v{w}")
                p(f"v_and_b32 v{t+1}, 0xffff0000, v{w}")
                if i == 0:
                    p(f"v_pk_mul_f32 {v(MA+2*d,2)}, {v(t,2)}, {v(MS,2)} op_sel_hi:[1,0]")
                else:
                    p(f"v_pk_fma_f32 {v(MA+2*d,2)}, {v(t,2)}, {v(MS+2*i,2)}, {v(MA+2*d,2)} op_sel_hi:[1,0,1]")
        for sh in (4, 8):
            for k in range(8):
                p(f"v_add_f32_dpp v{MA+k}, v{MA+k}, v{MA+k} row_ror:{sh} row_mask:0xf bank_mask:0xf")
        if st_: stamp(p, 7)
        p(f"""
        v_lshrrev_b32 v{MT+1}, 4, v0
        v_lshlrev_b32 v{MT+1}, 7, v{MT+1}
        v_and_b32 v{MT}, 3, v0
        v_lshl_add_u32 v{MT}, v{MT}, 5, v{MT+1}
        v_add_u32 v{MT}, {scr}, v{MT}
        ds_write_b128 v{MT}, {v(MA,4)}
        ds_write_b128 v{MT}, {v(MA+4,4)} offset:16
        v_lshlrev_b32 v{MT+1}, 2, v0
        v_add_u32 v{MT+1}, {scr}, v{MT+1}
        """)
        p(raw("s_waitcnt lgkmcnt(0)"))
        p(raw("s_barrier"))
        p(f"s_cmp_lg_u32 {s(S_W)}, 0")
        p(f"s_cbranch_scc1 L_mod2r{tg}")
        if st_: stamp(p, 8)
        for i in range(8):
            p(f"ds_read_b32 v{MW+i}, v{MT+1} offset:{256*i}")
        for st in (4, 2, 1):
            for i in range(st):
                p(f"v_add_f32 v{MW+i}, v{MW+i}, v{MW+i+st}")
        p(f"""
        v_mov_b32 v{MW+1}, v{MW}
        v_permlane32_swap_b32 v{MW}, v{MW+1}
        v_add_f32 v{MW}, v{MW}, v{MW+1}
        v_cvt_pk_bf16_f32 v{MW}, v{MW}, v{MW}
        v_lshlrev_b32 v{MW}, 16, v{MW}
        v_add_f32 v{MW+1}, 1.0, v{MW}
        v_cvt_pk_bf16_f32 v{MW+1}, v{MW+1}, v{MW+1}
        v_lshlrev_b32 v{MW+1}, 16, v{MW+1}
        s_sub_u32 s12, {'s2' if urgent else 's58'}, {14 if urgent else 28}
        s_cmp_lt_u32 s12, 14
        s_cselect_b64 vcc, -1, 0
        v_cndmask_b32 v{MW}, v{MW}, v{MW+1}, vcc
        """)
        if urgent:
            p(f"""
            s_add_u32 s12, s100, 1
            s_add_u32 s13, s101, 1
            s_and_b32 s13, s13, 0xffff
            v_or_b32 v{MW}, s13, v{MW}
            v_mov_b32 v{MW+1}, s12
            s_lshl_b32 s33, s2, 8
            s_add_u32 s33, s33, {WS_MG}
            L_mod2r{tg}:
            buffer_store_dwordx2 {v(MW,2)}, v125, {s(SRD_W,4)}, s33 offen sc1
            """)
        else:
            p(f"""
            s_lshl_b32 s12, s58, 7
            v_and_b32 v{MT}, 31, v0
            v_lshlrev_b32 v{MT}, 2, v{MT}
            s_mov_b32 s57, 0
            """)
            p(raw(f"buffer_store_dword v{MW}, v{MT}, {s(SRD_W,4)}, s12 offen offset:{WS_MOD + 28*128} sc1"))
            p(f"L_mod2r{tg}:")
    assert NX0 == 16
    V_MRD = 3
    p(f"s_mul_i32 {s(S_M0V)}, {s(S_W)}, 4160")
    p(f"""
    v_bfe_u32 v1, v0, 5, 1              ; hh
    v_and_b32 v2, 31, v0
    v_lshlrev_b32 {v(V_TMP)}, 1, v1
    v_xor_b32 v2, v2, {v(V_TMP)}        ; chunk
    v_lshlrev_b32 v1, 3, v1
    v_add_u32 v1, {s(S_W)}, v1          ; 8hh + w
    v_lshlrev_b32 v1, 13, v1
    v_lshl_add_u32 {v(V_WDMA)}, v2, 4, v1
    """)
    for jj in range(1, 4):
        p(f"v_add_u32 {v(V_WDMA+jj)}, {(16*(jj % 2) + 4*(jj//2))*8192 - jj*1024}, {v(V_WDMA)}")
    def emit_wfill(which, st):
        for hf in range(2):
            pre, d = at.wfill(which, st, hf)
            p.extend(pre); p.extend(d)
    p(f"""
    s_mul_i32 s52, {s(S_HD)}, 896
    s_add_u32 s52, s52, {MODL}
    v_bfe_u32 v1, v0, 2, 2
    v_mul_u32_u24 v1, 4160, v1
    v_and_b32 v2, 3, v0
    v_lshl_add_u32 v1, v2, 3, v1
    v_bfe_u32 v2, v0, 4, 2
    v_lshl_add_u32 v1, v2, 9, v1
    v_lshlrev_b32 v{V_MRD}, 5, v2
    v_add_u32 v{V_MRD}, s52, v{V_MRD}
    v_and_b32 v120, 15, v0
    v_mul_u32_u24 v120, 1040, v120
    v_lshl_add_u32 v120, v2, 4, v120
    s_and_b32 s14, {s(S_W)}, 1
    s_mul_i32 s14, s14, {2*SLOT}
    s_mul_i32 s15, {s(S_HD)}, 448
    s_add_u32 s14, s14, s15
    s_add_u32 s14, s14, {4*SLOT}
    v_add_u32 v120, s14, v120
    v_bfe_u32 v2, v0, 4, 1
    v_lshl_add_u32 {v(V_TMP)}, v2, 5, v1
    s_mul_i32 s14, {s(S_HD)}, {SLOT}
    v_add_u32 {v(V_WRD)}, s14, {v(V_TMP)}
    v_xor_b32 {v(V_WRD+1)}, 32, {v(V_WRD)}
    v_add_u32 {v(V_WRD+2)}, {4*SLOT}, {v(V_WRD)}
    v_add_u32 {v(V_WRD+3)}, {4*SLOT}, {v(V_WRD+1)}
    s_lshl_b32 s14, {s(S_W)}, 12
    s_add_u32 s14, s14, {8*SLOT}
    v_add_u32 {v(V_XW)}, s14, {v(V_LIN)}
    v_xor_b32 {v(V_XR)}, 0x2000, {v(V_XW)}
    """)
    MBP = opts.get("mbp", 0)
    NYG = [0, 2, 2 + 8 * opts.get("nearly", 1)][MBP]
    if MBP == 0: modblock(True)
    srd(p, SRD_Q, 8, 9, 448 * 8192)
    V_MRD = 3
    p(f"""
    s_mul_i32 {s(S_M0V)}, {s(S_W)}, 4160
    s_lshl_b32 {s(S_M0K)}, {s(S_W)}, 12
    s_lshl_b32 {s(S_WBASE)}, {s(S_J)}, 10
    v_lshrrev_b32 v1, 3, v0
    v_min_u32 v1, 13, v1
    v_lshlrev_b32 v1, 13, v1
    v_and_b32 v2, 7, v0
    v_lshl_add_u32 v1, v2, 7, v1
    s_mul_i32 s53, {s(S_PB)}, {14*8192}
    s_add_u32 s53, s53, {s(S_WBASE)}
    buffer_load_dword v{V_O+127}, v1, {s(SRD_Q,4)}, s53 offen
    """)
    code_prefetch(p, name, f"L_end{name}", 22, 1, V_O + 126)
    if MBP == 1: modblock(True)
    NE = opts.get("nearly", 1)
    for st in range(NE):
        emit_wfill("Q", st)
    if MBP == 2: modblock(True)
    if opts.get("pst"): stamp(p, 9)
    p(I("WAITTAG", tag=XK))
    p("s_barrier")
    for ks in range(7):
        for qt in range(2):
            p(f"ds_read_b128 {v(V_H+8*ks+4*qt,4)}, v120 offset:{qt*SLOT + 64*ks}", tag=("rd", XK))
    if NE < 1: emit_wfill("Q", 0)
    F = V_O
    SA = 112
    for k in range(56):
        qt = (k // 4) % 2
        p(f"v_lshlrev_b32 v{F+2*k}, 16, v{V_H+k}")
        p(f"v_and_b32 v{F+2*k+1}, 0xffff0000, v{V_H+k}")
        if k in (0, 4):
            p(f"v_pk_mul_f32 {v(SA+4+2*qt,2)}, {v(F+2*k,2)}, {v(F+2*k,2)}")
        else:
            p(f"v_pk_add_f32 {v(SA+2*qt,2)}, {v(F+2*k-2,2) if k in (1, 5) else v(SA+2*qt,2)}, {v(F+2*k,2)}")
            p(f"v_pk_fma_f32 {v(SA+4+2*qt,2)}, {v(F+2*k,2)}, {v(F+2*k,2)}, {v(SA+4+2*qt,2)}")
    for k in range(4):
        p(f"v_add_f32 v{SA+k}, v{SA+2*k}, v{SA+2*k+1}")
    for k in range(4):
        xreduce(p, SA + k, 121 + k, "v_add_f32")
    p(f"ds_write_b128 {v(V_XW)}, {v(SA,4)}", tag=("wr", (8, -1)))
    p("s_waitcnt lgkmcnt(0)")
    p("s_barrier")
    p(f"ds_read_b128 {v(SA+4,4)}, {v(V_XR)}", tag=("rd", (8, -1)))
    if NE < 2: emit_wfill("Q", 1)
    for qt in range(2):
        m_, r_ = 120 + 4*qt, 122 + 4*qt
        p(f"v_add_f32 v{SA+qt}, v{SA+qt}, v{SA+4+qt}")
        p(f"v_add_f32 v{SA+2+qt}, v{SA+2+qt}, v{SA+6+qt}")
        p(f"v_mul_f32 v{m_}, {f2u(1.0/448)}, v{SA+qt}")
        p(f"v_mul_f32 v{r_}, {f2u(1.0/448)}, v{SA+2+qt}")
        p(f"v_fma_f32 v{r_}, -v{m_}, v{m_}, v{r_}")
        p(f"v_max_f32 v{r_}, 0, v{r_}")
        p(f"v_add_f32 v{r_}, {f2u(1e-5)}, v{r_}")
        p(f"v_rsq_f32 v{r_}, v{r_}")
        p(f"v_mul_f32 v{m_}, -v{m_}, v{r_}")
    for k in range(56):
        qt = (k // 4) % 2
        p(f"v_pk_fma_f32 {v(F+2*k,2)}, {v(F+2*k,2)}, {v(122+4*qt,2)}, {v(120+4*qt,2)} op_sel_hi:[1,0,0]")
    NPRE = opts.get("npre", 4)
    for st in range(2, NPRE):
        emit_wfill("Q", st)
    srd(p, SRD_O, 10, 11, 4096 * 896)
    p(f"""
    s_lshl_b32 s14, {s(S_J)}, 20
    s_add_u32 {s(SRD_K)}, s4, s14
    s_addc_u32 {s(SRD_K+1)}, s5, 0
    s_mov_b32 {s(SRD_K+2)}, 0x100000
    s_mov_b32 {s(SRD_K+3)}, 0x20000
    s_add_u32 {s(SRD_V)}, s6, s14
    s_addc_u32 {s(SRD_V+1)}, s7, 0
    s_mov_b32 {s(SRD_V+2)}, 0x100000
    s_mov_b32 {s(SRD_V+3)}, 0x20000
    s_mov_b32 {s(S_KOFF)}, 0
    s_mov_b32 {s(S_VOFF)}, 0
    s_mov_b32 {s(S_THR)}, {thr}
    s_lshl_b32 s15, {s(S_W)}, 3
    """)
    setup = f"""
    v_bfe_u32 v1, v0, 5, 1
    v_and_b32 v2, 31, v0
    v_add_u32 v16, s15, v1
    v_lshlrev_b32 v17, 9, v16
    v_and_b32 v16, 15, v16
    v_xor_b32 v16, v16, v2
    v_lshl_add_u32 {v(V_KDMA)}, v16, 4, v17
    v_xor_b32 {v(V_KDMA+1)}, 32, {v(V_KDMA)}
    v_xor_b32 {v(V_KDMA+2)}, 64, {v(V_KDMA)}
    v_xor_b32 {v(V_KDMA+3)}, 96, {v(V_KDMA)}
    v_lshlrev_b32 v16, 2, v1
    v_add_u32 v16, {s(S_W)}, v16
    v_lshlrev_b32 v16, 9, v16
    v_lshlrev_b32 v17, 1, v1
    v_xor_b32 v17, v17, v2
    v_lshl_add_u32 {v(V_VDMA)}, v17, 4, v16
    v_add_u32 {v(V_VDMA+1)}, 3072, {v(V_VDMA)}
    v_add_u32 {v(V_VDMA+2)}, 6144, {v(V_VDMA)}
    v_add_u32 {v(V_VDMA+3)}, 9216, {v(V_VDMA)}
    v_and_b32 v16, 15, v0
    v_bfe_u32 v17, v0, 4, 2
    v_xor_b32 v17, v17, v16
    v_lshlrev_b32 v16, 9, v16
    v_add_u32 v16, {4*SLOT}, v16
    v_lshl_add_u32 {v(V_KRD)}, v17, 4, v16
    v_xor_b32 {v(V_KRD+1)}, 64, {v(V_KRD)}
    v_xor_b32 {v(V_KRD+2)}, 0x80, {v(V_KRD)}
    v_xor_b32 {v(V_KRD+3)}, 0xc0, {v(V_KRD)}
    v_mov_b32 {v(V_VRD)}, {v(V_TMP)}
    v_xor_b32 {v(V_VRD+1)}, 32, {v(V_TMP)}
    v_mov_b32 {v(V_L)}, 0
    v_mov_b32 {v(V_L+1)}, 0
    """
    setup = [I(x.strip()) for x in setup.strip().split("\n")]
    WRA = 21; WRB = 88
    p(f"""
    s_movk_i32 s31, 0x493
    s_and_b32 s12, {s(S_W)}, 1
    s_mul_i32 s13, {s(S_W)}, 7
    """)
    setup.append(I("v_and_b32 v1, 63, v0"))
    for m in range(7):
        setup += [I(f"v_add_u32 v16, {64*m}, v1"), I("v_mul_u32_u24 v16, s31, v16"), I("v_bfe_u32 v16, v16, 17, 2"),
                  I("v_lshlrev_b32 v16, 5, v16"), I(f"v_xor_b32 v{at.WDR[m]}, v16, {v(V_LIN)}")]
    setup += [I("v_lshrrev_b32 v16, 2, v1"), I("v_mul_u32_u24 v16, 896, v16"), I("v_and_b32 v17, 3, v0"),
              I("v_lshl_add_u32 v16, v17, 3, v16"), I("v_bfe_u32 v17, v0, 3, 2")]
    for mt in range(7):
        if mt < 6:
            p(f"s_add_u32 s{52+mt}, s13, s12")
            p(f"s_add_u32 s{52+mt}, s{52+mt}, {mt}")
        else:
            p(f"s_mul_i32 s58, s12, 6")
            p(f"s_sub_u32 s58, s13, s58")
            p(f"s_add_u32 s58, s58, 6")
        setup += [I(f"v_xor_b32 v18, s{52+mt}, v17"), I(f"v_lshl_add_u32 v{WRB+mt}, v18, 5, v16"),
                  I(f"v_add_u32 v{WRA+mt}, {4*SLOT}, v{WRB+mt}")]
    assert (4 * SLOT) % 256 == 0
    p(f"""
    v_min_u32 v1, {55*16}, {v(V_LIN)}
    s_mul_i32 s3, {s(S_W)}, 1792
    s_add_u32 s3, s3, {WS_MG}
    s_add_u32 s50, s100, 1
    s_add_u32 s51, s101, 1
    s_and_b32 s51, s51, 0xffff
    s_mul_i32 s36, {s(S_W)}, 896
    s_add_u32 s36, s36, {MODL}
    v_lshrrev_b32 v2, 1, v1
    v_add_u32 v2, s36, v2
    s_mov_b32 s59, 0x100000
    """)
    if opts.get("pst"): stamp(p, 1)
    p(f"""
    L_mp{name}:
    buffer_load_dwordx4 v[120:123], v1, {s(SRD_W,4)}, s3 offen sc1
    buffer_load_dwordx4 v[124:127], v1, {s(SRD_W,4)}, s3 offen offset:896 sc1
    s_waitcnt vmcnt(0)
    v_xor_b32 v112, s51, v120
    v_xor_b32 v113, s51, v122
    v_xor_b32 v114, s51, v124
    v_xor_b32 v115, s51, v126
    v_or3_b32 v116, v112, v113, v114
    v_or_b32 v116, v116, v115
    v_and_b32 v116, 0xffff, v116
    v_xor_b32 v117, s50, v121
    v_xor_b32 v118, s50, v123
    v_or3_b32 v116, v116, v117, v118
    v_xor_b32 v117, s50, v125
    v_xor_b32 v118, s50, v127
    v_or3_b32 v116, v116, v117, v118
    v_cmp_ne_u32 vcc, 0, v116
    s_cbranch_vccz L_mq{name}
    s_sleep {opts.get("msleep", 2)}
    s_sub_u32 s59, s59, 1
    s_cmp_lg_u32 s59, 0
    s_cbranch_scc1 L_mp{name}
    L_mq{name}:
    """)
    if opts.get("pst"): stamp(p, 2)
    for k in range(4):
        p(f"v_mul_f32 v{112+k}, {f2u(QSCALE)}, v{112+k}")
    mt = ("wr", ("M", 0))
    p("ds_write_b64 v2, v[112:113]", tag=mt)
    p("ds_write_b64 v2, v[114:115] offset:448", tag=mt)
    for st in range(NPRE, 3):
        emit_wfill("Q", st)
    MB = 72
    def modreads(ks):
        M = MB + 16 * (ks % 3)
        rt = ("rd", ("M", 0))
        return [I(f"ds_read_b128 {v(M + 8*k + 4*h, 4)}, v{V_MRD} offset:{1792*(1-k) + 128*ks + 16*h}", tag=rt)
                for k in range(2) for h in range(2)]
    NUP = 7
    p(I("WAITTAG", tag=[("M", 0)]))
    p("s_barrier")
    p.extend(modreads(0)); p.extend(modreads(1)); p.extend(modreads(2))
    for ks in range(7):
        M = MB + 16 * (ks % 3)
        for k in range(8*ks, 8*ks + 8):
            d = k % 4
            p(f"v_pk_fma_f32 {v(F+2*k,2)}, {v(F+2*k,2)}, {v(M+2*d,2)}, {v(M+8+2*d,2)}")
            p(f"v_cvt_pk_bf16_f32 v{V_H+k}, v{F+2*k}, v{F+2*k+1}")
        if ks + 3 < 7:
            p.extend(modreads(ks + 3))
    stamp(p, 3 if opts.get("pst") else 1)
    def q_mfma(i, t, qt, fr):
        D = v(V_O + 8*t + 4*qt, 4)
        Bop = v(V_H + 8*i + 4*qt, 4) if i < 7 else a(A_HP + 8*(i-7) + 4*qt, 4)
        return f"v_mfma_f32_16x16x32_bf16 {D}, {fr}, {Bop}, {D if i else 0}"
    def q_fills(i):
        st = i + 3
        if i == 0 and NPRE == 4: return []
        if st < 14:
            return [at.wfill("Q", st, hf) + ([],) for hf in range(2)]
        if i == 11: return [at.kvfill("K", 0), at.kvfill("K", 1)]
        if i == 12: return [at.kvfill("K", 2)]
        return [at.kvfill("V", 0), at.kvfill("V", 1, range(at.nafter))]
    def q_bar(i):
        ks = at.wkeys("Q", i + 1) if i < 13 else [at.key("K", 0)]
        i -= 1
        if 0 <= i < 8:
            ks = ks + [(8, i // 2)] if i % 2 == 0 else ks + [("rd", 8, i // 2)]
        return ks
    def q_valu(i):
        out = []
        if i in (8, 9, 10):
            n = 33
            out += setup[(i-8)*n//3:(i-7)*n//3]
        if i in (11, 12, 13):
            n = len(setup) - 33
            out += setup[33+(i-11)*n//3:33+(i-10)*n//3]
        return out
    def q_xds(i):
        out = []
        i -= 1
        if 0 <= i < 8:
            rho = i // 2
            for k in range(4):
                u, qt = 2*rho + k // 2, k % 2
                if u >= 7: continue
                if i % 2 == 0:
                    out.append(I(f"ds_write_b128 {v(V_XW)}, {v(V_H + 8*u + 4*qt, 4)} offset:{1024*k}", tag=("wr", (8, rho))))
                else:
                    out.append(I(f"ds_read_b128 {a(A_HP + 8*u + 4*qt, 4)}, {v(V_XR)} offset:{1024*k}", tag=("rd", (8, rho))))
        return out
    at.gemm_phase(p, "Q", 14, 16, q_mfma, q_fills, q_bar, q_valu, q_xds)
    p("s_load_dwordx4 s[4:7], s[0:1], 48")
    p("s_load_dwordx2 s[8:9], s[0:1], 72")
    p("s_load_dwordx2 s[10:11], s[0:1], 0")
    p("s_load_dwordx2 s[54:55], s[0:1], 80")
    p("s_load_dwordx2 s[56:57], s[0:1], 88")
    p("s_waitcnt lgkmcnt(0)")
    srd(p, SRD_Q, 4, 5, 448 * 3584)
    for g in range(at.gB + 1, 64):
        for (f, e, nx) in at.ds.get(g, []):
            p(at.kread(lambda it: 0, 0, f))
    p(f"""
    s_mul_i32 s53, {s(S_J)}, {512*896}
    s_mul_i32 s59, {s(S_W)}, 7168
    s_add_u32 {s(S_WBASE)}, s53, s59
    """)
    assert (8 * SLOT) & 0x3fff == (8 * SLOT) % 16384 and ((8 * SLOT) % 16384) + 4096 <= 8192
    AW = 184
    p(f"""
    s_sub_u32 s13, s2, 40
    s_lshl_b32 s13, s13, 12
    s_add_u32 s13, s13, {WS_FLAG}
    v_lshlrev_b32 v1, 4, v0
    v_mov_b32 v4, 0
    v_mov_b32 v5, 0
    v_mov_b32 v6, 0
    v_mov_b32 v7, 0
    s_sub_u32 s12, s2, 40
    s_cmp_ge_u32 s12, 36
    s_cselect_b32 s13, 0x40000000, s13
    s_cselect_b32 s31, 0, 1
    s_cmp_eq_u32 {s(S_W)}, 0
    s_cselect_b32 s31, s31, 0
    """)
    p(f"buffer_store_dwordx4 v[4:7], v1, {s(SRD_W,4)}, s13 offen sc1", tag=("wr", ("ZERO", 0), "private"))
    for sx in range(8):
        for qt in range(2):
            X = V_O + 16*sx + 4*qt
            Y = X + 8
            p(f"v_cvt_pk_bf16_f32 v{X}, v{X}, v{X+1}")
            p(f"v_cvt_pk_bf16_f32 v{X+1}, v{X+2}, v{X+3}")
            p(f"v_cvt_pk_bf16_f32 v{Y}, v{Y}, v{Y+1}")
            p(f"v_cvt_pk_bf16_f32 v{Y+1}, v{Y+2}, v{Y+3}")
        for qt in range(2):
            X = V_O + 16*sx + 4*qt
            Y = X + 8
            p(f"v_permlane32_swap_b32 v{X}, v{Y}")
            p(f"v_permlane32_swap_b32 v{X+1}, v{Y+1}")
        for qt in range(2):
            X = V_O + 16*sx + 4*qt
            Y = X + 8
            p(f"v_permlane16_swap_b32 v{X}, v{Y}")
            p(f"v_permlane16_swap_b32 v{X+1}, v{Y+1}")
        for qt in range(2):
            X = V_O + 16*sx + 4*qt
            Y = X + 8
            for k, r in enumerate((X, X+1, Y, Y+1)):
                p(f"v_accvgpr_write_b32 a{A_Q + 8*sx + 4*qt + k}, v{r}")
    stamp(p, 4 if opts.get("pst") else 2)
    lid = [opts.get("lid0", 0)]
    import k_prep
    son = k_prep.STAMP["on"]
    if opts.get("pst"): k_prep.STAMP["on"] = False
    def B(c, fn, aval=None, **kw):
        at.body(p, c, fn, aval=aval, lid=lid[0], **kw)
        if aval != -1:
            at.fallback(p, c % 2, lid[0], aval != 63)
        lid[0] += 1
    B(3, lambda it: -1, aval=-1)
    p("s_mov_b64 s[12:13], s[54:55]")
    p(I("WAITTAG", tag=[("ZERO", 0)]))
    if opts.get("touch", True):
        p(f"""
        v_min_u32 v1, {223 if opts.get("t64", False) else 111}, v0
        v_lshlrev_b32 v1, {6 if opts.get("t64", False) else 7}, v1
        s_mul_i32 s54, {s(S_PB)}, {112*128}
        s_add_u32 s53, s53, s54
        buffer_load_dword v2, v1, {s(SRD_O,4)}, s53 offen
        """)
    exv = None
    if opts.get("warm", True):
        p(f"""
        v_and_b32 v1, 63, v0
        s_lshl_b32 s14, {s(S_J)}, 5
        s_add_u32 s14, s14, {s(S_PB)}
        s_lshl_b32 s14, s14, 15
        s_min_u32 s14, s14, {2048*4096 - 35840}
        s_mul_i32 s15, {s(S_W)}, 640
        s_add_u32 s14, s14, s15
        v_cmp_gt_u32 vcc, 5, v1
        v_cndmask_b32 v3, 0, v1, vcc
        v_lshl_add_u32 v3, v3, 7, s14
        v_mov_b32 v16, s6
        v_mov_b32 v17, s7
        v_mov_b32 v18, 2560
        v_mov_b32 v19, 0
        s_mul_i32 s14, {s(S_PB)}, {14*3584}
        s_mul_i32 s15, {s(S_HD)}, 1792
        s_add_u32 s14, s14, s15
        s_and_b32 s15, {s(S_J)}, 1
        s_mul_i32 s15, s15, 896
        s_add_u32 s14, s14, s15
        s_and_b32 s15, {s(S_W)}, 1
        s_mul_i32 s15, s15, 384
        s_add_u32 s14, s14, s15
        s_mov_b64 exec, 0xf00
        v_and_b32 v3, 3, v1
        v_lshl_add_u32 v3, v3, 7, s14
        v_mov_b32 v16, s4
        v_mov_b32 v17, s5
        v_mov_b32 v18, 3584
        s_mov_b64 exec, -1
        s_mul_i32 s14, s2, {25*128}
        s_min_u32 s14, s14, {896*896 - 28*128}
        s_and_b32 s15, {s(S_W)}, 1
        s_lshl_b32 s15, s15, 7
        s_add_u32 s14, s14, s15
        v_writelane_b32 v3, s14, 6
        v_writelane_b32 v16, s8, 6
        v_writelane_b32 v17, s9, 6
        s_movk_i32 s14, 0x100
        v_writelane_b32 v18, s14, 6
        s_min_u32 s14, s2, 223
        s_lshl_b32 s14, s14, 1
        s_add_u32 s14, s14, {s(S_HD)}
        s_mul_i32 s14, s14, 5376
        s_and_b32 s15, {s(S_W)}, 1
        s_add_u32 s15, s15, 1
        s_mul_i32 s15, s15, 1792
        s_add_u32 s14, s14, s15
        v_writelane_b32 v3, s14, 7
        v_writelane_b32 v16, s56, 7
        v_writelane_b32 v17, s57, 7
        s_movk_i32 s14, 0x80
        v_writelane_b32 v18, s14, 7
        v_add_co_u32 v16, vcc, v16, v3
        v_addc_co_u32 v17, vcc, 0, v17, vcc
        """)
        exv = [(at.gB, I("global_load_dword v20, v[16:17], off"))]
        exv2 = [(at.gJ, I("v_lshl_add_u64 v[16:17], v[16:17], 0, v[18:19]"))]
    B(0, lambda it: 0, aval=0, extra_scalar=[(60, I(f"s_mov_b32 {s(S_CNT)}, 14"))])
    p(f"""
    s_cmp_eq_u32 s31, 0
    s_cbranch_scc1 L_na{name}
    v_mov_b32 v1, 1
    v_mov_b32 v3, 0
    """)
    p("s_mov_b64 exec, 1")
    p(raw(f"buffer_atomic_add v1, v3, {s(SRD_D,4)}, 0 offen offset:4 sc1"))
    p("s_mov_b64 exec, -1")
    p(f"L_na{name}:")
    srd(p, 52, 56, 57, 448 * 5376)
    p(f"""
    v_and_b32 v1, 3, v0
    v_lshrrev_b32 v4, 2, v0
    v_mul_u32_u24 v5, 14, v4
    v_and_b32 v5, -4, v5
    v_mul_u32_u24 v4, {7*5376}, v4
    v_lshl_add_u32 v4, v1, 4, v4
    v_mov_b32 v10, 1
    v_mov_b32 v11, 0x40000000
    v_cmp_ne_u32 vcc, 0, v0
    v_cndmask_b32 v11, 0, v11, vcc
    v_lshlrev_b32 v6, 2, v0
    v_add_u32 v6, {MODL}, v6
    v_mov_b32 v7, {MODL}
    """)
    p.begin_loop(14)
    p(f"L_loop{name}:")
    for c in range(1, 5):
        ex = [(60, I(f"s_sub_u32 {s(S_CNT)}, {s(S_CNT)}, 1"))] if c == 2 else None
        B(c % 4, (lambda c: lambda it: 4*it + c)(c), extra_scalar=ex,
          extra_valu=(exv if c == 1 else exv2 if c == 3 else None) if exv else None)
    p(f"s_cmp_lg_u32 {s(S_CNT)}, 0")
    p(f"s_cbranch_scc1 L_loop{name}")
    p.end_loop()
    ZD = 96
    ZT = 103
    zops = []
    for m in range(7):
        zops += [I(f"v_add_u32 v{ZT}, {64*m}, v1"), I(f"v_mul_u32_u24 v{ZT+1}, s31, v{ZT}"), I(f"v_lshrrev_b32 v{ZT+1}, 16, v{ZT+1}"),
                 I(f"v_mul_u32_u24 v{ZT+2}, 14, v{ZT+1}"), I(f"v_sub_u32 v{ZT}, v{ZT}, v{ZT+2}"),
                 I(f"v_add_u32 v{ZT}, s57, v{ZT}"), I(f"v_subrev_u32 v{ZT+2}, 14, v{ZT}"), I(f"v_min_u32 v{ZT}, v{ZT}, v{ZT+2}"),
                 I(f"v_mul_u32_u24 v{ZT+1}, 3584, v{ZT+1}"), I(f"v_lshl_add_u32 v{ZD+m}, v{ZT}, 4, v{ZT+1}")]
        if m % 4:
            zops.append(I(f"v_subrev_u32 v{ZD+m}, {(m % 4)*1024}, v{ZD+m}"))
    ZBASE = [[2 * SLOT, 3 * 2 * SLOT, 0, 8 * SLOT], [2 * 2 * SLOT, 2 * SLOT, 3 * 2 * SLOT, 8 * SLOT]]
    ZKEYS = [[[(2, 300), (3, 300)], [(6, 300), (7, 300)], [(0, 300), (1, 300)], [(8, 300)]],
             [[(4, 310), (5, 310)], [(2, 310), (3, 310)], [(6, 310), (7, 310)], [(8, 310)]]]
    def zfill(rnd, z1=0):
        gs = []
        so = 34 if z1 else 37
        for hf in range(2):
            pre = [I(f"s_add_u32 m0, s36, {ZBASE[z1][rnd] + hf*4096}")]
            d = [I(f"buffer_load_dwordx4 v{ZD+m}, {s(SRD_Q,4)}, s{so} offen offset:{(m % 4)*1024} lds", tag=("dma", ZKEYS[z1][rnd]))
                 for m in range(4*hf, min(7, 4*hf+4))]
            post = [I(f"s_add_u32 s{so}, s{so}, {4*32*3584}")] if hf else []
            gs.append((pre, d, post))
        return gs
    def flat(gs):
        return [x for g in gs for lst in g for x in lst]
    p(f"""
    v_mov_b32 v8, 4
    buffer_load_dword v9, v8, {s(SRD_D,4)}, 0 offen sc1
    s_movk_i32 s31, 0x124a
    s_and_b32 s57, {s(S_PB)}, 1
    s_lshl_b32 s57, s57, 1
    v_and_b32 v1, 63, v0
    """)
    for av in range(57, 64):
        exx = None
        if av == 57 and opts.get("tlb"):
            p(f"""
            v_and_b32 v13, 63, v0
            v_lshlrev_b32 v13, 19, v13
            v_add_u32 v13, {4*MB + 4096}, v13
            """)
            exx = [(at.gB, I(f"buffer_load_dword v14, v13, {s(SRD_W,4)}, 0 offen sc1"))]
        if av == 59:
            p(f"""
            v_readfirstlane_b32 s14, v9
            s_cmp_lt_u32 s14, 36
            s_cbranch_scc1 L_mslow{name}
            L_mok{name}:
            """)
            p.begin_side()
            p(f"L_mslow{name}:")
            p("s_mov_b32 s14, 0")
            poll(p, SRD_D, 14, 8, 9, "m2" + name, 56, 36, sleep=4)
            p(f"s_branch L_mok{name}")
            p.end_side()
            p(f"s_lshl_b32 s14, {s(S_PB)}, 7")
            p(f"s_add_u32 s14, s14, {WS_FLAG + 4096 + 16}")
            exx = [(2, I(f"buffer_atomic_add v10, v11, {s(SRD_W,4)}, s14 offen sc0 sc1"))]
        if av == 61:
            exx = [(at.gJ, I("ds_write_b32 v6, v10", tag=("wr", ("TK", 0))))]
        if av == 62:
            exx = [(at.gJ, I("ds_read_b32 v10, v7", tag=("rd", ("TK", 0))))]
        if av == 63:
            p(f"""
            v_readfirstlane_b32 s58, v10
            s_cmp_ge_u32 s58, 2
            s_cselect_b32 s58, 64, s58
            s_lshl_b32 s14, {s(S_PB)}, 1
            s_add_u32 s58, s58, s14
            s_lshl_b32 s14, s58, 6
            s_add_u32 s14, s14, {28*64}
            s_cmp_ge_u32 s58, 56
            s_cselect_b32 s14, 0x40000000, s14
            """)
            exx = [(1 + (k * 30) // len(zops), x) for k, x in enumerate(zops)]
            for i in range(7):
                exx += [(2 + 3*i, I(f"buffer_load_dwordx4 {a(AW+4*i,4)}, v4, s[52:55], s14 offen")), (2 + 3*i, I("s_add_u32 s14, s14, 5376"))]
            exx += [(24, I(f"global_load_dwordx4 {a(AW+28,4)}, v5, s[12:13]"))]
        B(av % 4, (lambda av: lambda it: av)(av), aval=av, extra_valu=exx)
    if not opts.get("pst"): stamp(p, 3)
    for qt in range(2):
        at.xreduce(p, V_L + qt, "v_add_f32")
        p(f"v_rcp_f32 v{2+qt}, {v(V_L+qt)}")
    p("s_mov_b32 s57, 0x40000000")
    p(f"WAITFOR {a(AW,32)}")
    p("s_waitcnt lgkmcnt(0)")
    modblock(False, MW=48, CR=76, MC=104, MA=80, MT=120, MS=30, scr=161792,
             pre=[I(f"v_accvgpr_read_b32 v{48+k}, a{AW+k}") for k in range(32)])
    X1B = 28672; X2B = 8 * SLOT
    def xaddr(ks, q):
        return X1B + (4*ks + q) * 1024 if ks < 9 else X2B + (4*(ks-9) + q) * 1024
    XKEY = [(2, 250), (3, 250), (8, 250), ("T", 250)]
    p(f"""
    s_and_b32 s14, {s(S_W)}, 1
    s_lshl_b32 s14, s14, 11
    s_mul_i32 s15, {s(S_HD)}, 32768
    s_add_u32 s15, s15, s14
    s_add_u32 s15, s15, {X1B}
    v_add_u32 v4, s15, {v(V_LIN)}
    s_mul_i32 s15, {s(S_HD)}, {X2B - X1B - 4096}
    s_add_u32 s15, s15, s14
    s_add_u32 s15, s15, {X1B}
    v_add_u32 v5, s15, {v(V_LIN)}
    v_add_u32 v6, {X1B}, {v(V_LIN)}
    v_add_u32 v7, {X2B}, {v(V_LIN)}
    s_lshl_b32 s14, {s(S_PB)}, 7
    s_add_u32 s14, s14, {WS_FLAG}
    v_mov_b32 v13, s14
    v_mov_b32 v10, 1
    v_mov_b32 v9, 12
    s_barrier
    """)
    for u in range(8):
        for qt in range(2):
            X = V_O + 16*u + 4*qt
            Y = X + 8
            sel = "op_sel_hi:[1,0]" if qt == 0 else "op_sel:[0,1] op_sel_hi:[1,1]"
            for r in (X, X+2, Y, Y+2):
                p(f"v_pk_mul_f32 {v(r,2)}, {v(r,2)}, v[2:3] {sel}")
            p(f"v_cvt_pk_bf16_f32 v{X}, v{X}, v{X+1}")
            p(f"v_cvt_pk_bf16_f32 v{X+1}, v{X+2}, v{X+3}")
            p(f"v_cvt_pk_bf16_f32 v{X+2}, v{Y}, v{Y+1}")
            p(f"v_cvt_pk_bf16_f32 v{X+3}, v{Y+2}, v{Y+3}")
            p(f"ds_write_b128 v{4 if u == 0 else 5}, {v(X,4)} offset:{4096*u + 1024*qt}", tag=("wr", XKEY))
    ACC = V_O
    p(f"""
    s_and_b32 s15, {s(S_J)}, 1
    s_lshl_b32 s15, s15, 2
    s_and_b32 s32, {s(S_PB)}, 3
    s_add_u32 s32, s32, s15              ; fb
    s_lshr_b32 s15, {s(S_J)}, 1
    s_lshl_b32 s15, s15, 3
    s_lshr_b32 s33, {s(S_PB)}, 2
    s_add_u32 s33, s33, s15              ; tb
    s_mul_i32 s34, s32, 224
    s_mul_i32 s36, {s(S_W)}, {32*3584}
    s_add_u32 s34, s34, s36
    s_add_u32 s37, s34, 1792
    s_mul_i32 s36, {s(S_W)}, 7168
    """)
    A_OB = 0
    NRW = 8
    def wrd(st, mt):
        pr = at.OPAIR[st % 3]
        reg, off = (WRB + mt, 0) if pr == 0 else (WRA + mt, (pr - 2) * 2 * SLOT)
        f = st * 7 + mt
        return [I(f"ds_read_b64_tr_b16 {a(A_F + 4*(f % NRW) + 2*e, 2)}, v{reg} offset:{off + e*14336}", tag=("rd", at.okeys(st))) for e in range(2)]
    def brd(st):
        ky = [(2, 250), (3, 250), ("T", 250)] if st < 9 else [(8, 250)]
        return [I(f"ds_read_b128 {a(A_OB + 16*(st % 2) + 4*q, 4)}, v{6 if st < 9 else 7} offset:{xaddr(st, q) - (X1B if st < 9 else X2B)}",
                  tag=("rd", ky)) for q in range(4)]
    LF = opts.get("lf", 2)
    for f in range(LF):
        p.extend(wrd(0, f))
    p("s_waitcnt lgkmcnt(0)")
    p("s_barrier")
    if opts.get("ost"): stamp(p, 4)
    p.extend(brd(0))
    G = 28
    gb = G - 4 * LF - 1
    for st in range(16):
        kind = ["m"] * G
        SC = [[] for _ in range(G + 1)]
        VE = [[] for _ in range(G)]
        if st < 15:
            kind[gb] = "B"
            VE[gb] = [I("WAITTAG", tag=at.okeys(st + 1)), I("s_barrier")]
        if 0 < st < 15:
            kind[0] = "B"
            VE[0] = [I("s_barrier")]
        if st + 2 < 16:
            new = [at.ofill(st + 2, hf) + ([],) for hf in range(2)]
        else:
            new = zfill(st - 14)
        newl = []
        for pre, d, post in new:
            for k, x in enumerate(d):
                newl.append((pre if k == 0 else [], x, post if k == len(d) - 1 else []))
        dpos = [3, 5, 7, 9, 12, 14, 16, 20]
        if st == 4:
            newl.append(([], I(f"buffer_atomic_add v10, v11, {s(SRD_D,4)}, s57 offen offset:12 sc1"), []))
        if st == 14:
            newl.append(([], I(f"buffer_load_dword v15, v9, {s(SRD_D,4)}, 0 offen sc1"), []))
        if st == opts.get("eflag", 15):
            newl.append(([], I(f"buffer_load_dword v14, v13, {s(SRD_W,4)}, 0 offen sc1"), []))
        for g, it in zip(dpos, newl):
            pre, x, post = it
            kind[g] = "d"; VE[g] = [x]
            for k, y in enumerate(pre):
                SC[g - len(pre) + k].append(y)
            SC[g + 1] += post
        dsq = []
        for mt in range(7):
            nf = mt + LF
            if nf < 7: rr = wrd(st, nf)
            elif st < 15: rr = wrd(st + 1, nf - 7)
            else: rr = []
            dsq += [(4*mt + k, x) for k, x in enumerate(rr)]
        if st < 15:
            dsq += [(17 + k, x) for k, x in enumerate(brd(st + 1))]
        dsq.sort(key=lambda z: z[0])
        nds = [0] * G
        q = 0
        for g in range(G):
            while kind[g] == "m" and q < len(dsq) and dsq[q][0] <= g and nds[g] < (2 if dsq[q][0] <= g - 2 else 1):
                VE[g].append(dsq[q][1]); nds[g] += 1; q += 1
        assert q == len(dsq)
        ops = []
        mg = [g for g in range(G) if kind[g] == "m" and nds[g] < 2]
        for k, x in enumerate(ops):
            VE[mg[(k * len(mg)) // len(ops)]].append(x)
        for mt in range(1, 8):
            if mt == 7 and st == 15: continue
            g = 4*mt - 1
            while kind[g] != "m" or SC[g]: g -= 1
            ex = f", {a(A_OB + 16*((st+1) % 2), 16)}" if mt == 7 else ""
            SC[g].append(I(f"WAITFOR {a(A_F + 4*((st*7 + mt) % NRW), 4)}{ex}"))
        for g in range(G):
            mt, q = g // 4, g % 4
            D = v(ACC + 16*mt + 4*q, 4)
            p(f"v_mfma_f32_16x16x32_bf16 {D}, {a(A_F + 4*((st*7 + mt) % NRW), 4)}, {a(A_OB + 16*(st % 2) + 4*q, 4)}, {D if st else 0}")
            oabl = opts.get("oabl", "")
            p.extend([x for x in SC[g] + VE[g] if not (("D" in oabl and x.kind == "dma" and st < 14) or ("B" in oabl and x.kind == "barrier")
                                                       or ("R" in oabl and x.kind == "ds_read"))])
        p.extend(SC[G])
        if opts.get("ost") and st in (3, 7, 11): stamp(p, [5, 6, 7][st // 4])
    if opts.get("ost"):
        stamp(p, 8)
        k_prep.STAMP["on"] = False
    if not opts.get("pst"): stamp(p, 4)
    p(f"""
    s_lshl_b32 s14, {s(S_J)}, 7
    s_lshl_b32 s15, {s(S_PB)}, 2
    s_add_u32 s14, s14, s15
    s_mul_i32 s14, s14, {14*1024}
    s_mul_i32 s15, {s(S_W)}, 7
    s_add_u32 s15, s15, 1
    s_lshr_b32 s15, s15, 1
    s_lshl_b32 s15, s15, 10
    s_add_u32 s14, s14, s15
    s_add_u32 s14, s14, {WS_PART}
    s_and_b32 s50, {s(S_W)}, 1
    s_mul_i32 s15, s50, {2*14*1024 - 4096}
    s_add_u32 s15, s15, s14
    s_add_u32 s15, s15, 3072
    s_mul_i32 s51, {s(S_HD)}, {2*SLOT}
    s_add_u32 s51, s51, {4*SLOT + 28672}
    s_lshl_b32 s52, s50, 3
    s_add_u32 s52, s52, s51
    v_add_u32 v4, s52, {v(V_LIN)}
    s_lshl_b32 s52, s50, 11
    s_add_u32 s52, s52, s51
    v_add_u32 v5, s52, {v(V_LIN)}
    """)
    pt = ("wr", ("PT", 0), "private")
    for q in range(4):
        X = ACC + 96 + 4*q
        p(f"v_cvt_pk_bf16_f32 v{X}, v{X}, v{X+1}")
        p(f"v_cvt_pk_bf16_f32 v{X+1}, v{X+2}, v{X+3}")
        p(f"ds_write_b64 v4, {v(X,2)} offset:{1024*q}", tag=("wr", ("MG", 0)))
    for q in range(4):
        for pr in range(3):
            X = ACC + 32*pr + 4*q
            Y = X + 16
            p(f"v_cvt_pk_bf16_f32 v{X}, v{X}, v{X+1}")
            p(f"v_cvt_pk_bf16_f32 v{X+1}, v{X+2}, v{X+3}")
            p(f"v_cvt_pk_bf16_f32 v{X+2}, v{Y}, v{Y+1}")
            p(f"v_cvt_pk_bf16_f32 v{X+3}, v{Y+2}, v{Y+3}")
            p(f"buffer_store_dwordx4 {v(X,4)}, {v(V_LIN)}, {s(SRD_W,4)}, s14 offen offset:{pr*1024} sc1", tag=pt)
        if q < 3:
            p(f"s_add_u32 s14, s14, {14*1024}")
        if q == 0:
            p("s_waitcnt lgkmcnt(0)")
            p("s_barrier")
            for k in range(2):
                p(f"ds_read_b128 {v(ACC+112+4*k,4)}, v5 offset:{1024*k}", tag=("rd", ("MG", 0)))
    for k in range(2):
        p(f"buffer_store_dwordx4 {v(ACC+112+4*k,4)}, {v(V_LIN)}, {s(SRD_W,4)}, s15 offen sc1", tag=pt)
        p(f"s_add_u32 s15, s15, {14*1024}")
    p(f"""
    v_cmp_gt_u32 vcc, 56, v15
    s_cbranch_vccnz L_nslow{name}
    L_nok{name}:
    """)
    p.begin_side()
    p(f"L_nslow{name}:")
    p("s_mov_b32 s14, 0")
    poll(p, SRD_D, 14, 9, 15, "m3" + name, 56, 56, sleep=8)
    p(f"s_branch L_nok{name}")
    p.end_side()
    srd(p, SRD_K, 10, 11, 2048 * 896)
    emit_red_pre(p, S_W, S_PB, S_J, SRD_W, SRD_K, B=184)
    emit_red_early(p, SRD_W, 14)
    p(f"""
    s_lshl_b32 s14, {s(S_PB)}, 7
    s_add_u32 s14, s14, {WS_FLAG}
    """)
    p(f"s_lshl_b32 s15, 1, {s(S_J)}")
    signal(p, SRD_W, 14, S_W, "r" + name, vt=10, keys=[("PT", 0)], val="s15")
    stamp(p, 5)
    zl = [zfill(2), zfill(3), zfill(0, 1)]
    zl = flat(sum(zl, []))
    emit_red(p, S_W, S_PB, SRD_W, 163840 - 512, B=184, idle=zl)
    W4 = s(SRD_W, 4)
    ZACC = 128
    NRZ = 16
    A_H = 0
    A_FZ = 64
    VB = 16; RS = 48; VDB = 64; VRB = 72; Z1 = 80; GACC = 128
    RA = 6; A_A = 0; A_MU = 168; PB0 = 131072
    p(f"""
    s_lshr_b32 s15, {s(S_J)}, 1
    s_lshl_b32 s15, s15, 5
    s_add_u32 s14, s14, s15
    s_add_u32 s14, s14, 4096
    v_and_b32 v1, 63, v0
    v_lshlrev_b32 v2, 4, v1
    v_and_b32 v3, 15, v0                 ; n
    v_bfe_u32 v8, v0, 4, 2               ; g
    s_lshl_b32 s58, s33, 2
    s_add_u32 s58, s58, {s(S_W)}
    s_mul_i32 s4, s58, {14*1024}
    s_add_u32 s4, s4, {WS_H2}
    s_add_u32 s5, s4, 4096
    s_add_u32 s12, s4, 8192
    s_add_u32 s13, s4, 12288
    v_lshrrev_b32 v9, 2, v1
    v_mul_u32_u24 v9, 224, v9
    v_and_b32 v12, 3, v0
    v_lshl_add_u32 v12, v12, 3, v9
    v_add_u32 v13, {4*SLOT}, v12
    v_add_u32 v14, {8*SLOT}, v12
    v_mov_b32 v15, 0
    s_lshl_b32 s15, s33, 7
    s_lshl_b32 s50, {s(S_W)}, 5
    s_add_u32 s15, s15, s50
    s_add_u32 s15, s15, {WS_FLAG + 4096}
    """)
    signal(p, SRD_W, 14, S_W, "z" + name, vt=48, keys=[("H2", 0)])
    stamp(p, 7)
    p("s_cmp_lg_u32 s54, 0")
    p(f"s_cbranch_scc1 L_zf{name}")
    p.extend(zl)
    p(f"L_zf{name}:")
    srd(p, SRD_V, 6, 7, 2048 * 4096 + 4096)
    p(f"""
    s_sub_u32 {s(SRD_V)}, {s(SRD_V)}, 4096
    s_subb_u32 {s(SRD_V+1)}, {s(SRD_V+1)}, 0
    s_mov_b32 s50, s32
    s_mov_b32 s51, s33
    v_lshrrev_b32 v9, 3, v1
    v_lshlrev_b32 v9, 12, v9
    v_and_b32 v4, 7, v0
    v_xor_b32 v4, v4, v8
    v_lshl_add_u32 v4, v4, 4, v9
    v_xor_b32 v5, 64, v4
    """)
    for m in range(8):
        nl = m // 2
        if m % 2 == 0:
            p(f"s_add_u32 s52, {s(S_W)}, {nl}")
            p(f"s_and_b32 s52, s52, 3")
            p(f"s_lshl_b32 s52, s52, 16")
        p(f"s_add_u32 s53, s52, {(m % 2)*32768 + 4096 - (m % 4)*1024}")
        p(f"v_add_u32 v{VDB+m}, s53, v{4 + m % 2}")
    p(f"""
    s_lshl_b32 s52, s51, 18
    s_lshl_b32 s53, {s(S_W)}, 10
    s_add_u32 s52, s52, s53
    s_lshl_b32 s54, s50, 6
    s_lshl_b32 s53, {s(S_W)}, 4
    s_add_u32 s54, s54, s53
    s_mul_i32 s54, s54, 7168
    s_add_u32 s54, s54, {WS_ZZ}
    s_add_u32 s55, s54, 4096
    s_lshl_b32 s53, {s(S_W)}, 13
    v_mov_b32 v4, {f2u(C2)}
    v_mov_b32 v6, {f2u(C1)}
    s_lshl_b32 s38, s50, 6
    s_lshr_b32 s39, s58, 1
    s_add_u32 s38, s38, s39
    s_mul_i32 s38, s38, 7168
    s_and_b32 s39, s58, 1
    s_lshl_b32 s39, s39, 9
    s_add_u32 s38, s38, s39
    s_add_u32 s38, s38, {WS_ZZ}
    s_add_u32 s39, s38, 4096
    v_and_b32 v10, 1, v8
    v_lshlrev_b32 v10, 10, v10           ; (g%2)*1024 : second tile of the pair
    v_lshrrev_b32 v11, 1, v8
    v_lshl_add_u32 v10, v11, 8, v10      ; + (g/2)*256
    v_lshl_add_u32 v10, v3, 4, v10       ; + n*16
    v_lshlrev_b32 v11, 20, v10
    v_and_b32 v11, 0x40000000, v11
    v_or_b32 v11, v11, v10
    """)
    BSL = [0, 2, 1, 3, 4]
    BOV = {0: [0, 1], 1: [2, 3], 2: [4, 5], 3: [6, 7], 4: [8]}
    def bdma(dd, half, first=False):
        pre = [I(f"s_add_u32 m0, s53, {BSL[dd % 5]*32768 + half*4096}")]
        tg = ("dma", [(f"B{dd % 5}", dd)] + [(k, 400) for k in BOV[BSL[dd % 5]]]) if first else ("dma", (f"B{dd % 5}", dd), "private")
        out = [I(f"buffer_load_dwordx4 v{VDB+4*half+k}, {s(SRD_V,4)}, s52 offen offset:{k*1024} lds", tag=tg) for k in range(4)]
        post = [I("s_add_u32 s52, s52, 128")] if half else []
        return pre, out, post
    LEADZ = 6
    def zreads(z1):
        rds = []
        for u in range(14):
            rnd = u // 4
            ab = ZBASE[z1][rnd] + (u % 4) * 7168
            base, off = (12, ab) if ab < 4 * SLOT else (13, ab - 4 * SLOT) if ab < 8 * SLOT else (14, ab - 8 * SLOT)
            for ft in range(7):
                f = u * 7 + ft + 98 * z1
                rds.append([I(f"ds_read_b64_tr_b16 {a(A_FZ + 4*(f % NRZ) + 2*e, 2)}, v{base} offset:{off + e*3584 + 32*ft}",
                              tag=("rd", ZKEYS[z1][rnd])) for e in range(2)])
        return rds
    def zgemm(z1, rds, acc, hook=None):
        for g in range(98):
            for hk in (hook or {}).get(g, []):
                p(hk)
            u, ft = g // 7, g % 7
            f = g + 98 * z1
            D = v(acc + 4*ft, 4)
            Wf = a(A_FZ + 4*(f % NRZ), 4)
            H = a(A_H + 4*u, 4)
            C = D if u else "0"
            p(f"v_mfma_f32_16x16x32_bf16 {D}, {Wf}, {H}, {C}" if z1 else f"v_mfma_f32_16x16x32_bf16 {D}, {H}, {Wf}, {C}")
            if g + 1 < 98 and (g % 2 == 1 or ft == 6):
                ex = f", {a(A_H + 4*(u+1), 4)}" if ft >= 5 and u < 13 else ""
                p(f"WAITFOR {a(A_FZ + 4*((f+1) % NRZ), 4)}, {a(A_FZ + 4*((f+2) % NRZ), 4)}{ex}")
            if g + LEADZ < 98:
                p.extend(rds[g + LEADZ])
    def interleave(gl, bl):
        step = max(1, len(gl) // len(bl))
        for k, x in enumerate(gl):
            if k % step == 0 and bl:
                p.extend(bl.pop(0))
            p(x)
        for x in bl:
            p.extend(x)
    def groups(gs):
        out = []
        for pre, o, post in gs:
            for k, x in enumerate(o):
                out.append((pre if k == 0 else []) + [x] + (post if k == len(o) - 1 else []))
        return out
    rz = zreads(0)
    for x in rz[:LEADZ]:
        p.extend(x)
    poll(p, SRD_W, 15, 15, 48, "z" + name, 56, 2)
    stamp(p, 8)
    for u in range(14):
        p(f"buffer_load_dwordx4 {a(A_H+4*u,4)}, v2, {W4}, s{[4,5,12,13][u//4]} offen offset:{(u % 4)*1024}{LD}")
    hk = {29: ["s_barrier"]}
    NZI = opts.get("nzi", 1)
    for r in range(NZI):
        g0 = 28 * (r + 1) + 2
        if r: hk.setdefault(g0 - 1, []).append("s_barrier")
        for k, x in enumerate(groups(zfill(r + 1, 1))):
            hk.setdefault(g0 + 3 * k, []).extend(x)
    zgemm(0, rz, ZACC, hook=hk)
    p("s_barrier")
    if not opts.get("zst"): stamp(p, 9)
    gp = Prog("tmp")
    gelu_pairs(gp, [ZACC + 2*k for k in range(14)], 24)
    interleave(gp.items, groups(sum([zfill(r, 1) for r in range(NZI + 1, 4)], [])))
    for k in range(0, 4, 2):
        p(f"v_pk_add_f32 {v(32+k,2)}, {v(ZACC+k,2)}, {v(ZACC+4+k,2)}")
        p(f"v_pk_mul_f32 {v(36+k,2)}, {v(ZACC+k,2)}, {v(ZACC+k,2)}")
    for ft in range(1, 7):
        for k in range(0, 4, 2):
            if ft >= 2:
                p(f"v_pk_add_f32 {v(32+k,2)}, {v(32+k,2)}, {v(ZACC+4*ft+k,2)}")
            p(f"v_pk_fma_f32 {v(36+k,2)}, {v(ZACC+4*ft+k,2)}, {v(ZACC+4*ft+k,2)}, {v(36+k,2)}")
    for sh in (8, 4, 2, 1):
        for k in range(8):
            p(f"v_add_f32_dpp v{32+k}, v{32+k}, v{32+k} row_ror:{sh} row_mask:0xf bank_mask:0xf")
    p(f"""
    v_cmp_eq_u32 vcc, 0, v3
    v_cndmask_b32 v40, v34, v32, vcc
    v_cndmask_b32 v41, v38, v36, vcc
    v_cndmask_b32 v42, v35, v33, vcc
    v_cndmask_b32 v43, v39, v37, vcc
    v_or_b32 v41, 0x80000000, v41
    v_or_b32 v43, 0x80000000, v43
    v_lshlrev_b32 v9, 5, v8
    v_lshl_add_u32 v9, v3, 4, v9
    v_mov_b32 v25, 0x40000000
    v_cmp_gt_u32 vcc, 2, v3
    v_cndmask_b32 v9, v25, v9, vcc
    s_lshl_b32 s12, s58, 10
    s_add_u32 s12, s12, {WS_ST2}
    s_lshl_b32 s13, s50, 7
    s_add_u32 s13, s13, s12
    buffer_store_dwordx4 v[40:43], v9, {W4}, s13 offen sc1
    v_and_b32 v9, 7, v3
    v_lshlrev_b32 v9, 7, v9
    v_lshl_add_u32 v9, v8, 5, v9
    v_lshrrev_b32 v25, 3, v3
    v_lshl_add_u32 v9, v25, 4, v9
    """)
    rz = zreads(1)
    for x in rz[:LEADZ]:
        p.extend(x)
    p(I("WAITTAG", tag=ZKEYS[1][1] + ZKEYS[1][2]))
    p("s_barrier")
    Z1ACC = 160
    p(f"""
    s_lshl_b32 s15, s50, 9
    s_add_u32 s15, s15, {WS_FLAG + 8192}
    s_lshr_b32 s14, s51, 3
    s_lshl_b32 s14, s14, 7
    s_add_u32 s14, s14, s15
    s_lshl_b32 s13, {s(S_W)}, 7
    s_add_u32 s15, s15, s13
    """)
    hk = {}
    NBZ = opts.get("nbz", 2)
    for dd in range(NBZ):
        g0 = 28 * dd + 2
        if dd: hk.setdefault(g0 - 1, []).extend([I("WAITTAG", tag=ZKEYS[1][3]), "s_barrier"])
        for k, x in enumerate(groups([bdma(dd, hf, first=True) for hf in range(2)])):
            hk.setdefault(g0 + 3 * k, []).extend(x)
    hk.setdefault(opts.get("spoll", 76), []).append(f"buffer_load_dwordx4 v[32:35], v9, {W4}, s12 offen sc1")
    zgemm(1, rz, Z1ACC, hook=hk)
    p(f"""
    s_mov_b32 s56, 0x100000
    s_waitcnt vmcnt(0)
    s_branch L_sp2{name}
    L_sp1{name}:
    buffer_load_dwordx4 v[32:35], v9, {W4}, s12 offen sc1
    s_waitcnt vmcnt(0)
    L_sp2{name}:
    v_and_b32 v36, v33, v35
    v_cmp_le_i32 vcc, 0, v36
    s_cbranch_vccz L_sp3{name}
    s_sub_u32 s56, s56, 1
    s_cmp_lg_u32 s56, 0
    s_cbranch_scc1 L_sp1{name}
    L_sp3{name}:
    """)
    for ctl in ("quad_perm:[1,0,3,2]", "quad_perm:[2,3,0,1]", "row_half_mirror"):
        for k in range(4):
            p(f"v_add_f32_dpp v{32+k}, v{32+k}, v{32+k} {ctl} row_mask:0xf bank_mask:0xf")
    for k in range(2):
        p(f"v_mul_f32 v{38+k}, {f2u(1.0/896)}, v{32+2*k}")
        p(f"v_mul_f32 v{36+k}, {f2u(-1.0/896)}, v{33+2*k}")
        p(f"v_fma_f32 v{36+k}, -v{38+k}, v{38+k}, v{36+k}")
        p(f"v_max_f32 v{36+k}, 0, v{36+k}")
        p(f"v_add_f32 v{36+k}, {f2u(1e-5)}, v{36+k}")
        p(f"v_rsq_f32 v{36+k}, v{36+k}")
        p(f"v_mul_f32 v{38+k}, -v{38+k}, v{36+k}")
    for k in range(4):
        p(f"v_mov_b32 v{40+k}, v{36+k}")
        p(f"v_mov_b32 v{44+k}, v{36+k}")
    for k in range(4):
        p(f"v_mov_b32_dpp v{40+k}, v{36+k} row_ror:8 row_mask:0xf bank_mask:0xc")
        p(f"v_mov_b32_dpp v{44+k}, v{36+k} row_ror:8 row_mask:0xf bank_mask:0x3")
    zt = ("wr", ("ZZ", 0), "private")
    for pr in range(4):
        X = ZACC + 8*pr
        for k in range(4 if pr < 3 else 2):
            c = 40 + 4*(k % 2)
            p(f"v_pk_fma_f32 {v(X+2*k,2)}, {v(X+2*k,2)}, {v(c,2)}, {v(c+2,2)}")
        Y = 24 + 4*(pr % 2)
        for k in range(4):
            sx = X + 2*k if pr < 3 else X + 2*(k % 2)
            p(f"v_cvt_pk_bf16_f32 v{Y+k}, v{sx}, v{sx+1}")
        p(f"v_permlane16_swap_b32 v{Y}, v{Y+2}")
        p(f"v_permlane16_swap_b32 v{Y+1}, v{Y+3}")
        p(f"buffer_store_dwordx4 {v(Y,4)}, v{10 if pr < 3 else 11}, {W4}, s{38 + pr//2} offen offset:{(pr % 2)*2048} sc1", tag=zt)
    if opts.get("zst"): stamp(p, 9)
    p("s_barrier")
    gp = Prog("tmp")
    gelu_pairs(gp, [Z1ACC + 2*k for k in range(14)], 96)
    for k in range(14):
        gp(f"v_cvt_pk_bf16_f32 v{Z1+k}, v{Z1ACC+2*k}, v{Z1ACC+2*k+1}")
    NB1 = opts.get("nb1", 4)
    interleave(gp.items, groups([bdma(dd, hf, first=True) for dd in range(NBZ, NB1) for hf in range(2)]))
    signal(p, SRD_W, 14, S_W, "g" + name, vt=48, keys=[("ZZ", 0)])
    stamp(p, 10)
    RA = 5; A_A = 0; A_BR = 144
    p("s_load_dwordx2 s[4:5], s[0:1], 64")
    p("s_load_dwordx2 s[6:7], s[0:1], 96")
    p.extend(flat([bdma(dd, hf, first=True) for dd in range(NB1, 5) for hf in range(2)]))
    p(f"""
    v_lshrrev_b32 v9, 1, v3
    v_xor_b32 v9, v9, v8
    v_lshlrev_b32 v9, 4, v9
    v_lshl_add_u32 v9, v3, 7, v9
    v_add_u32 v{VRB}, s53, v9
    v_xor_b32 v{VRB+1}, 64, v{VRB}
    v_add_u32 v{VRB+2}, 0x10000, v{VRB}
    v_add_u32 v{VRB+3}, 0x10000, v{VRB+1}
    v_add_u32 v{VRB+4}, 0x20000, v{VRB}
    v_add_u32 v{VRB+5}, 0x20000, v{VRB+1}
    s_lshl_b32 s35, s58, 5
    v_lshlrev_b32 v12, 1, v3
    v_mov_b32 v49, 0
    s_waitcnt lgkmcnt(0)
    """)
    srd(p, SRD_K, 4, 5, 4096)
    srd(p, SRD_O, 8, 9, 896 * 896)
    srd(p, SRD_Q, 6, 7, 2048 * 896)
    p(f"buffer_load_ushort v{Z1+14}, v12, {s(SRD_K,4)}, s35 offen")
    p(f"""
    s_lshl_b32 s33, {s(S_J)}, 2
    s_and_b32 s32, {s(S_PB)}, 3
    s_add_u32 s33, s33, s32              ; tb'
    s_lshr_b32 s32, {s(S_PB)}, 2         ; cb
    v_lshrrev_b32 v54, 3, v1
    v_mul_u32_u24 v54, 896, v54
    v_lshlrev_b32 v55, 1, v8
    v_and_b32 v50, 7, v0
    v_xor_b32 v55, v55, v50
    v_lshl_add_u32 v50, v55, 4, v54
    v_add_u32 v51, {7168-1024}, v50
    v_add_u32 v52, {2*(7168-1024)}, v50
    v_add_u32 v53, {3*(7168-1024)}, v50
    s_mul_i32 s59, {s(S_W)}, {224*896}
    s_lshl_b32 s57, s32, 7
    s_add_u32 s59, s59, s57
    """)
    WOFFS = [98304, 102400, 131072, 135168, 0, 4096, 32768]
    def wdma(ks):
        tg = ("dma", [(f"W{ks}", 0), (f"B{3 + ks // 2}", 90)], "private") if ks < 4 else ("dma", [(f"W{ks}", 0), ("X", 1)])
        return ([I(f"s_add_u32 m0, s53, {WOFFS[ks]}")],
                [I(f"buffer_load_dwordx4 v{50+k}, {s(SRD_O,4)}, s59 offen offset:{k*1024} lds", tag=tg) for k in range(4)],
                [I(f"s_add_u32 s59, s59, {4*7168}")])
    def breg(ks, nl):
        return a(A_BR + 16*ks + 4*nl, 4) if ks < 6 else v(VB + 16*(ks % 2) + 4*nl, 4)
    def b_reads(ks):
        dd = ks // 2
        sl = BSL[dd % 5]
        return [I(f"ds_read_b128 {breg(ks, nl)}, v{VRB + 2*(sl//2) + ks % 2} offset:{(sl % 2)*32768 + nl*2048}",
                  tag=("rd", (f"B{dd % 5}", dd), "private")) for nl in range(4)]
    NB2 = opts.get("nb2", 8)
    for dd in range(3):
        p(I("WAITTAG", tag=[(f"B{dd}", dd)]))
        p.extend(b_reads(2*dd) + b_reads(2*dd + 1))
    for dd in range(5, NB2):
        p(I("WAITTAG", tag=[("rd", f"B{dd % 5}", dd - 5)]))
        p.extend(flat([bdma(dd, hf) for hf in range(2)]))
    poll(p, SRD_W, 15, 49, 48, "g" + name, 56, 8)
    stamp(p, 11)
    def aload(ks):
        out = [I(f"buffer_load_dwordx4 {a(A_A + 28*(ks % RA) + 4*mt, 4)}, v2, {W4}, s{54 + mt//4} offen offset:{(mt % 4)*1024}{LD}")
               for mt in range(7)]
        post = [I("s_add_u32 s54, s54, 7168"), I("s_add_u32 s55, s55, 7168")]
        return out, post
    NA0 = opts.get("na0", 3)
    for ks in range(NA0):
        o, post = aload(ks); p.extend(o); p.extend(post)
    nexta = NA0
    nextb = 2 * NB2
    for ks in range(16):
        SC = [[] for _ in range(29)]
        VE = [[] for _ in range(28)]
        kind = ["m"] * 28
        vm = []
        while nexta < 16 and nexta <= ks + RA - 1 and len(vm) < (8 if ks == 0 else 1):
            o, post = aload(nexta); nexta += 1
            vm.extend([([], x, post if k == 6 else []) for k, x in enumerate(o)])
        if ks >= 2 and nextb < 16:
            pre, o, post = bdma(nextb // 2, nextb % 2); nextb += 1
            vm.extend([(pre if k == 0 else [], x, post if k == 3 else []) for k, x in enumerate(o)])
        if ks in (12, 13):
            for kk in (2*(ks-12), 2*(ks-12)+1):
                pre, o, post = wdma(kk)
                vm.extend([(pre if k == 0 else [], x, post if k == 3 else []) for k, x in enumerate(o)])
        for k, (pre, x, post) in enumerate(vm):
            g = 2 * k if len(vm) > 9 else 1 + 3 * k
            kind[g] = "d"; VE[g] = [x]
            if pre: SC[g - 1] += pre
            SC[g + 1] += post
        mg = [g for g in range(28) if kind[g] == "m"]
        if 6 <= ks + 1 < 16:
            if (ks + 1) % 2 == 0:
                SC[mg[0]].insert(0, I("WAITTAG", tag=[(f"B{((ks+1)//2) % 5}", (ks+1)//2)]))
            for k, x in enumerate(b_reads(ks + 1)):
                VE[mg[k + 1]].append(x)
        for mt in range(1, 8):
            if mt == 7 and ks == 15: continue
            g = 4*mt - 1
            while kind[g] != "m": g -= 1
            k2, m2 = (ks, mt) if mt < 7 else (ks + 1, 0)
            ex = "".join(", " + breg(ks + 1, nl) for nl in range(4)) if mt == 7 else ""
            SC[g].append(I(f"WAITFOR {a(A_A + 28*(k2 % RA) + 4*m2, 4)}{ex}"))
        for g in range(28):
            mt, nl = g // 4, g % 4
            D = v(GACC + 16*mt + 4*nl, 4)
            p(f"v_mfma_f32_16x16x32_bf16 {D}, {a(A_A + 28*(ks % RA) + 4*mt, 4)}, {breg(ks, nl)}, {D if ks else 0}")
            for x in SC[g] + VE[g]:
                p(x)
            if ks == 15:
                if g == 0:
                    p("v_add_u32 v4, s53, v2")
                    p("v_add_u32 v13, 0x10000, v4")
                g2 = g - 8
                if g2 >= 0 and g2 % 4:
                    p(f"ds_write_b128 v{13 if g2 % 4 == 3 else 4}, {v(GACC + 16*(g2//4) + 4*(g2 % 4), 4)} offset:{((g2 % 4 - 1) % 2)*32768 + (g2//4)*1024}", tag=("wr", ("X", 0)))
        assert not SC[28]
    assert nexta == 16 and nextb == 16
    stamp(p, 12)
    for nl in range(1, 4):
        p(f"s_sub_u32 s34, {s(S_W)}, {nl}")
        p(f"s_and_b32 s34, s34, 3")
        p(f"s_lshl_b32 s34, s34, 13")
        p(f"s_add_u32 s34, s34, {(nl-1)*32768}")
        p(f"v_add_u32 v{4+nl}, s34, v2")
    for mt in range(5, 7):
        for nl in range(1, 4):
            p(f"ds_write_b128 v{13 if nl == 3 else 4}, {v(GACC + 16*mt + 4*nl, 4)} offset:{((nl-1) % 2)*32768 + mt*1024}", tag=("wr", ("X", 0)))
    p("s_waitcnt lgkmcnt(0)")
    p("s_barrier")
    for mt in range(7):
        for nl in range(1, 4):
            p(f"ds_read_b128 {v(GACC + 16*mt + 4*nl, 4)}, v{4+nl} offset:{mt*1024}", tag=("rd", ("X", 0)))
    p(f"""
    s_mul_i32 s34, s58, {28*1024}
    s_add_u32 s34, s34, {WS_U}
    s_mul_i32 s35, s50, 7
    s_add_u32 s36, s35, 1
    s_lshr_b32 s36, s36, 1
    s_lshl_b32 s36, s36, 10
    s_add_u32 s36, s36, s34
    s_and_b32 s37, s50, 1
    s_mul_i32 s37, s37, {4096 - 512}
    s_sub_u32 s37, s36, s37
    s_add_u32 s37, s37, 3072
    v_lshlrev_b32 v14, 3, v1
    v_lshlrev_b32 v{Z1+14}, 16, v{Z1+14}
    """)
    def red(mt, n=2):
        X = GACC + 16*mt
        for h in range(n):
            p(f"v_pk_add_f32 {v(X+2*h,2)}, {v(X+2*h,2)}, {v(X+4+2*h,2)}")
            p(f"v_pk_add_f32 {v(X+8+2*h,2)}, {v(X+8+2*h,2)}, {v(X+12+2*h,2)}")
        for h in range(n):
            p(f"v_pk_add_f32 {v(X+2*h,2)}, {v(X+2*h,2)}, {v(X+8+2*h,2)}")
    p(f"v_mov_b32 v8, v{Z1+14}")
    for ft in range(7):
        red(ft)
        X = GACC + 16*ft
        for h in range(2):
            p(f"v_pk_add_f32 {v(X+2*h,2)}, {v(X+2*h,2)}, v[8:9] op_sel_hi:[1,0]")
            p(f"v_lshlrev_b32 v{10+2*h}, 16, v{Z1+2*ft+h}")
            p(f"v_and_b32 v{11+2*h}, 0xffff0000, v{Z1+2*ft+h}")
            p(f"v_pk_mul_f32 {v(X+2*h,2)}, {v(X+2*h,2)}, {v(10+2*h,2)}")
        Y = GACC + 16*(ft & ~1) + 4 + 2*(ft % 2)
        p(f"v_cvt_pk_bf16_f32 v{Y}, v{X}, v{X+1}")
        p(f"v_cvt_pk_bf16_f32 v{Y+1}, v{X+2}, v{X+3}")
        if ft % 2 == 1:
            p(f"buffer_store_dwordx4 {v(Y-2,4)}, v2, {W4}, s36 offen offset:{(ft//2)*1024} sc1", tag=("wr", ("U", 0), "private"))
        if ft == 6:
            p(f"buffer_store_dwordx2 {v(Y,2)}, v14, {W4}, s37 offen sc1", tag=("wr", ("U", 0), "private"))
    p("s_barrier")
    OACC = 64; A_B = 0; A_FO = 112; NRO = 8
    p(f"""
    v_bfe_u32 v8, v0, 4, 2
    s_lshl_b32 s14, s51, 7
    s_add_u32 s14, s14, {WS_FLAG + 12288}
    """)
    NW0 = opts.get("nw0", 5)
    for ks in range(4, NW0):
        p.extend(flat([wdma(ks)]))
    p("s_lshl_b32 s15, 1, s50")
    signal(p, SRD_W, 14, S_W, "o" + name, vt=48, keys=[("U", 0)], val="s15")
    stamp(p, 13)
    p(f"s_cmp_ge_u32 {s(S_PB)}, 28")
    p(f"s_cbranch_scc1 L_bump{name}")
    p.begin_side()
    p(f"""
    L_bump{name}:
    s_cmp_lg_u32 s2, 255
    s_cbranch_scc1 L_end{name}
    s_add_u32 s12, s100, 1
    s_add_u32 s13, s101, 1
    v_mov_b32 v4, s12
    v_mov_b32 v5, s13
    v_mov_b32 v6, {WS_EP}
    buffer_store_dwordx2 v[4:5], v6, {W4}, 0 offen sc1
    s_endpgm
    """)
    p.end_side()
    for ks in range(NW0, 7):
        p.extend(flat([wdma(ks)]))
    X1 = 16; GB = 24
    for nl in range(4):
        p(f"s_add_u32 s36, {s(S_W)}, {nl}")
        p(f"s_and_b32 s36, s36, 3")
        p(f"s_lshl_b32 s37, s33, 2")
        p(f"s_add_u32 s36, s36, s37")
        p(f"s_mul_i32 s36, s36, {28*1024}")
        p(f"s_mul_i32 s37, {s(S_W)}, 7168")
        p(f"s_add_u32 s36, s36, s37")
        p(f"s_add_u32 s{4+nl}, s36, {WS_U}")
        p(f"s_add_u32 s{8+nl}, s{4+nl}, 4096")
    p(f"""
    s_lshl_b32 s36, s33, 2
    s_add_u32 s36, s36, {s(S_W)}
    s_mul_i32 s37, s36, {14*1024}
    s_lshl_b32 s38, s32, 11
    s_add_u32 s37, s37, s38
    s_add_u32 s37, s37, {WS_X1}
    buffer_load_dwordx4 {v(X1,4)}, v2, {W4}, s37 offen sc1
    buffer_load_dwordx4 {v(X1+4,4)}, v2, {W4}, s37 offen offset:1024 sc1
    v_lshlrev_b32 v9, 4, v8
    s_lshl_b32 s38, s32, 8
    s_add_u32 s38, s38, {WS_MOD + 5*1792}
    """)
    for ct in range(4):
        p(f"buffer_load_dwordx4 {v(GB+4*ct,4)}, v9, {W4}, s38 offen offset:{64*ct} sc1")
    p(f"""
    v_lshrrev_b32 v3, 2, v1
    v_lshlrev_b32 v3, 7, v3
    v_bfe_u32 v10, v0, 3, 2
    v_lshl_add_u32 v3, v10, 5, v3
    v_and_b32 v10, 3, v0
    v_lshl_add_u32 v3, v10, 3, v3
    v_add_u32 v12, s53, v3
    v_xor_b32 v13, 32, v12
    v_xor_b32 v14, 64, v12
    v_xor_b32 v15, 0x60, v12
    v_add_u32 v56, 98304, v12
    v_add_u32 v57, 98304, v13
    v_add_u32 v58, 98304, v14
    v_add_u32 v59, 98304, v15
    v_mov_b32 v10, 0
    v_lshlrev_b32 v11, 3, v1
    s_lshl_b32 s15, s33, 7
    s_add_u32 s15, s15, {WS_FLAG + 12288}
    """)
    p(f"s_lshl_b32 s36, {s(S_W)}, 1")
    p("s_lshl_b32 s36, 3, s36")
    poll(p, SRD_W, 15, 10, 48, "o" + name, 56, "s36", mask="s36")
    stamp(p, 14)
    ul = [I(f"buffer_load_dwordx4 {a(A_B + 16*ks + 4*nl, 4)}, v2, {W4}, s{4 + nl + 4*(ks//4)} offen offset:{(ks % 4)*1024}{LD}")
          for ks in range(7) for nl in range(4)]
    ul[12:16] = [I(f"buffer_load_dwordx2 {a(A_B + 48 + 4*nl + 2*h, 2)}, v11, {W4}, s{4 + nl} offen offset:{3072 + 512*h}{LD}")
                 for nl in range(4) for h in range(2)]
    p.extend(ul[:20]); ul = ul[20:]
    def rd(f):
        ks, ct = f // 4, f % 4
        return [I(f"ds_read_b64_tr_b16 {a(A_FO + 4*(f % NRO) + 2*e, 2)}, v{(56 if ks < 4 else 12)+ct} offset:{WOFFS[ks] - (98304 if ks < 4 else 0) + e*2048}",
                  tag=("rd", (f"W{ks}", 0), "private")) for e in range(2)]
    PFO = 4
    YO = [0, 0, 4096, 32768]
    for f in range(PFO):
        p.extend(rd(f))
    for f in range(28):
        ks, ct = f // 4, f % 4
        nx = f + PFO
        for nl in range(4):
            D = v(OACC + 16*ct + 4*nl, 4)
            p(f"v_mfma_f32_16x16x32_bf16 {D}, {a(A_FO + 4*(f % NRO), 4)}, {a(A_B + 16*ks + 4*nl, 4)}, {D if ks else 0}")
            if nx < 28 and nl < 2:
                p(rd(nx)[nl])
            if nl == 2 and ul:
                p(ul.pop(0))
            if nl == 3 and f + 1 < 28:
                p(f"WAITFOR {a(A_FO + 4*((f+1) % NRO), 4)}, {a(A_B + 16*((f+1)//4), 16)}")
            if f == 20 and nl == 2:
                p("v_add_u32 v4, s53, v2")
                p("v_add_u32 v4, 98304, v4")
            if f >= 26 and nl:
                p(f"ds_write_b128 v4, {v(OACC + 16*(f-26) + 4*nl, 4)} offset:{YO[nl] + (f-26)*1024}", tag=("wr", ("Y", 0)))
    for nl in range(1, 4):
        p(f"s_sub_u32 s36, {s(S_W)}, {nl}")
        p(f"s_and_b32 s36, s36, 3")
        p(f"s_lshl_b32 s36, s36, 13")
        p(f"s_add_u32 s36, s36, 98304")
        p(f"v_add_u32 v{4+nl}, s36, v2")
    for ct in range(2, 4):
        for nl in range(1, 4):
            p(f"ds_write_b128 v4, {v(OACC + 16*ct + 4*nl, 4)} offset:{YO[nl] + ct*1024}", tag=("wr", ("Y", 0)))
    p("s_waitcnt lgkmcnt(0)")
    p("s_barrier")
    for ct in range(4):
        for nl in range(1, 4):
            p(f"ds_read_b128 {v(OACC + 16*ct + 4*nl, 4)}, v{4+nl} offset:{YO[nl] + ct*1024}", tag=("rd", ("Y", 0)))
    p(f"""
    v_and_b32 v3, 15, v0
    v_mul_u32_u24 v3, 896, v3
    v_lshl_add_u32 v3, v8, 4, v3
    s_lshl_b32 s36, s33, 2
    s_add_u32 s36, s36, {s(S_W)}
    s_mul_i32 s36, s36, {16*896}
    s_lshl_b32 s37, s32, 7
    s_add_u32 s36, s36, s37
    """)
    for ct in range(4):
        X = OACC + 16*ct
        for h in range(2):
            p(f"v_pk_add_f32 {v(X+2*h,2)}, {v(X+2*h,2)}, {v(X+4+2*h,2)}")
            p(f"v_pk_add_f32 {v(X+8+2*h,2)}, {v(X+8+2*h,2)}, {v(X+12+2*h,2)}")
        for h in range(2):
            p(f"v_pk_add_f32 {v(X+2*h,2)}, {v(X+2*h,2)}, {v(X+8+2*h,2)}")
            p(f"v_lshlrev_b32 v{10}, 16, v{X1+2*ct+h}")
            p(f"v_and_b32 v{11}, 0xffff0000, v{X1+2*ct+h}")
            p(f"v_pk_fma_f32 {v(X+2*h,2)}, {v(X+2*h,2)}, {v(GB+4*ct+2*h,2)}, v[10:11]")
        k, odd = ct // 2, ct % 2
        O = 40 + 4*k + 2*odd
        p(f"v_cvt_pk_bf16_f32 v{O}, v{X}, v{X+1}")
        p(f"v_cvt_pk_bf16_f32 v{O+1}, v{X+2}, v{X+3}")
        if odd:
            O = 40 + 4*k
            p(f"v_permlane32_swap_b32 v{O}, v{O+2}")
            p(f"v_permlane32_swap_b32 v{O+1}, v{O+3}")
            p(f"v_permlane16_swap_b32 v{O}, v{O+2}")
            p(f"v_permlane16_swap_b32 v{O+1}, v{O+3}")
            p(f"buffer_store_dwordx4 {v(O,4)}, v3, {s(SRD_Q,4)}, s36 offen offset:{64*k}{opts.get('of', '')}")
    k_prep.STAMP["on"] = son
    if opts.get("amp"):
        a0, a1, mul = opts["amp"]
        p("s_waitcnt vmcnt(0)")
        stamp(p, 15)
        p(f"""
        s_sub_u32 s14, s{61+2*a1}, s{3 if opts.get("t0") else 61+2*a0}
        s_mul_i32 s14, s14, {mul}
        L_amp{name}:
        s_memrealtime s[98:99]
        s_waitcnt lgkmcnt(0)
        s_sub_u32 s15, s98, s91
        s_cmp_lt_u32 s15, s14
        s_cbranch_scc1 L_amp{name}
        """)
        k_prep.STAMP["on"] = False
    if opts.get("diag"):
        p("s_waitcnt vmcnt(0)")
        stamp(p, 15)
        p("v_mov_b32 v1, 0")
        p("s_mov_b64 exec, 1")
        p("s_not_b32 s14, s61")
        p("v_mov_b32 v2, s14")
        p(f"buffer_atomic_umax v2, v1, {s(SRD_D,4)}, 0 offen offset:8 sc1")
        for k, st in enumerate((1, 2, 3, 4, 5, 7, 10, 11, 12, 13, 15)):
            p(f"v_mov_b32 v3, s{61+2*st}")
            p(f"buffer_atomic_umax v3, v1, {s(SRD_D,4)}, 0 offen offset:{12+4*k} sc1")
            p("s_nop 1")
        p("s_mov_b64 exec, -1")
        k_prep.STAMP["on"] = False
    stamp_dump(p, opts.get("slot", 1), NSTAMP, SRD_W, S_W)
    p(f"L_end{name}:")
    p("s_endpgm")
    if opts.get("gabl") or opts.get("oabl"):
        p.check_lds = lambda: None
    p.finalize()
    return p


def gen_mega(opts=None):
    p0 = build_mega(opts or {})
    if (opts or {}).get("plain"):
        return p0, "; @launch grid=(256,1,1) block=(256,1,1) lds=163840\n"
    return p0, f"; @launch kernel={p0.name} grid=(256,1,1) block=(256,1,1) lds=163840\n"
```
